```python
import torch

def _softmax(x, axis=-1):
    return torch.softmax(x, dim=axis)

def _gelu(x):
    return torch.nn.functional.gelu(x, approximate='tanh')

def _silu(x):
    return torch.nn.functional.silu(x)

def _sigmoid(x):
    return torch.sigmoid(x)

def _layernorm(x, axis=-1, eps=1e-05):
    m = x.mean(dim=axis, keepdim=True)
    v = x.var(dim=axis, keepdim=True, unbiased=False)
    return (x - m) / torch.sqrt(v + eps)

def _scatter_add(tgt, idx, src, axis=0):
    return tgt.clone().index_add_(axis, idx, src)

def _segment_sum(src, seg, n):
    out = torch.zeros((n,) + src.shape[1:], dtype=src.dtype)
    return out.index_add_(0, seg, src)

def _pad(x, pw):
    flat = tuple((v for pair in reversed(pw) for v in pair))
    return torch.nn.functional.pad(x, flat)
kernel_name = 'sequential_preLN__memory_aug_recurrent_mem_tr__mixer_gmlp__prompt'

def setup_inputs():

    _w = lambda a: (lambda t: t.to(torch.bfloat16) if t.is_floating_point() else t)(torch.as_tensor(a))

    def _A_setup():
        B, S, Dm = (1, 2048, 640)
        H, Dh = (32, 192)
        M, seg = (8, 32)
        seg = min(seg, S)
        S = S // seg * seg
        return {'x': _w((lambda *s: torch.randn(*s, dtype=torch.bfloat16) * 0.05)(B, S, Dm)), 'mem0': _w((lambda *s: torch.randn(*s, dtype=torch.bfloat16) * 0.2)(B, M, Dm)), 'Wq': _w((lambda *s: torch.randn(*s, dtype=torch.bfloat16) * 1.6)(Dm, H, Dh) * Dm ** (-0.5)), 'Wk': _w((lambda *s: torch.randn(*s, dtype=torch.bfloat16) * 1.6)(Dm, H, Dh) * Dm ** (-0.5)), 'Wv': _w((lambda *s: torch.randn(*s, dtype=torch.bfloat16) * 0.2)(Dm, H, Dh) * Dm ** (-0.5)), 'Wo': _w((lambda *s: torch.randn(*s, dtype=torch.bfloat16) * 0.2)(H, Dh, Dm) * (H * Dh) ** (-0.5)), 'seg_len': seg}
    _A_in = _A_setup()

    def _B_setup():
        B, S, D, F = (1, 2048, 640, 1536)
        Fh = F // 2
        return {'x': _w((lambda *s: torch.randn(*s, dtype=torch.bfloat16) * 0.05)(B, S, D)), 'w_in': _w((lambda *s: torch.randn(*s, dtype=torch.bfloat16) * 0.4)(D, 2 * Fh)), 'w_sp': _w(0.01 * (lambda *s: torch.randn(*s, dtype=torch.bfloat16) * 0.4)(S, S)), 'b_sp': _w(1.0 + 0.01 * (lambda *s: torch.randn(*s, dtype=torch.bfloat16) * 0.05)(S)), 'w_out': _w((lambda *s: torch.randn(*s, dtype=torch.bfloat16) * 0.05)(Fh, D))}
    _B_in = _B_setup()
    return {'A_x': _A_in['x'], 'A_mem0': _A_in['mem0'], 'A_Wq': _A_in['Wq'], 'A_Wk': _A_in['Wk'], 'A_Wv': _A_in['Wv'], 'A_Wo': _A_in['Wo'], 'A_seg_len': _A_in['seg_len'], 'B_x': _B_in['x'], 'B_w_in': _B_in['w_in'], 'B_w_sp': _B_in['w_sp'], 'B_b_sp': _B_in['b_sp'], 'B_w_out': _B_in['w_out']}

def reference(A_x, A_mem0, A_Wq, A_Wk, A_Wv, A_Wo, A_seg_len, B_x, B_w_in, B_w_sp, B_b_sp, B_w_out):

    def _A_ref(x, mem0, Wq, Wk, Wv, Wo, seg_len):
        B, S, Dm = x.shape
        H, Dh = (Wq.shape[1], Wq.shape[2])
        M = mem0.shape[1]
        scale = Dh ** (-0.5)
        n_seg = S // seg_len
        L = M + seg_len
        idx = torch.arange(L)
        mask = (idx[:, None] < M) | (idx[:, None] >= idx[None, :])
        mem = mem0
        outs = []
        for s in range(n_seg):
            xs = x[:, s * seg_len:(s + 1) * seg_len, :].clone()
            h = torch.concatenate([mem, xs], axis=1)
            q = torch.einsum('btd,dhe->bhte', h, Wq)
            k = torch.einsum('btd,dhe->bhte', h, Wk)
            v = torch.einsum('btd,dhe->bhte', h, Wv)
            scores = torch.einsum('bhqe,bhke->bhqk', q, k) * scale
            scores = torch.where(mask[None, None], scores, -1000000000.0)
            p = _softmax(scores, axis=-1)
            o = torch.einsum('bhqk,bhke->bhqe', p, v)
            o = torch.einsum('bhte,hed->btd', o, Wo)
            mem = o[:, :M, :].clone()
            outs.append(o[:, M:, :])
        return torch.concatenate(outs, axis=1)

    def _B_ref(x, w_in, w_sp, b_sp, w_out):
        B, S, D = x.shape
        F = w_in.shape[-1]
        Fh = F // 2
        z = _gelu(torch.einsum('bsd,df->bsf', x, w_in))
        z1 = z[..., :Fh].clone()
        z2 = _layernorm(z[..., Fh:], axis=-1)
        g = torch.einsum('ts,bsf->btf', w_sp, z2) + b_sp[None, :, None]
        return torch.einsum('bsf,fd->bsd', z1 * g, w_out)
    x = A_x
    h = x + _A_ref(_layernorm(x, axis=-1), A_mem0, A_Wq, A_Wk, A_Wv, A_Wo, A_seg_len)
    h2 = h + _B_ref(_layernorm(h, axis=-1), B_w_in, B_w_sp, B_b_sp, B_w_out)
    return h2
```

```python
import re

TRANS = ('v_exp_f32','v_log_f32','v_rcp_f32','v_rsq_f32','v_sqrt_f32','v_sin_f32','v_cos_f32','v_rcp_iflag_f32')

def _regs(tok):
    tok = tok.strip()
    neg = tok.lstrip('-')
    m = re.fullmatch(r'abs\((.*)\)', neg)
    if m: neg = m.group(1)
    neg = neg.strip('|')
    m = re.fullmatch(r'([vas])(\d+)', neg)
    if m: return [(m.group(1), int(m.group(2)))]
    m = re.fullmatch(r'([vas])\[(\d+):(\d+)\]', neg)
    if m: return [(m.group(1), i) for i in range(int(m.group(2)), int(m.group(3)) + 1)]
    if neg in ('vcc', 'vcc_lo', 'vcc_hi'): return [('x', 'vcc')]
    if neg in ('exec', 'exec_lo', 'exec_hi'): return [('x', 'exec')]
    if neg == 'm0': return [('x', 'm0')]
    return []

class Ins:
    __slots__ = ('text','op','ops','mods','cls','dst','src','srcA','srcB','srcC','passes','states','is_label','target','dpp','stdata','lds')
    def __init__(self, text):
        self.text = text
        t = text.split(';')[0].strip()
        self.is_label = t.endswith(':')
        self.op = ''; self.ops = []; self.cls = 'none'; self.dst = []; self.src = []
        self.srcA = []; self.srcB = []; self.srcC = []; self.passes = 0; self.states = 0; self.target = None
        self.dpp = False; self.stdata = []; self.lds = False; self.mods = ''
        if not t or self.is_label or t.startswith('.'):
            return
        parts = t.split(None, 1)
        op = parts[0]; self.op = op
        rest = parts[1] if len(parts) > 1 else ''
        rest = re.sub(r'(quad_perm|op_sel_hi|op_sel|neg_lo|neg_hi):\[([^\]]*)\]', lambda m: m.group(1) + ':' + m.group(2).replace(',', '_'), rest)
        toks = [x.strip() for x in rest.split(',')] if rest else []
        mods = ''
        if toks:
            lt = toks[-1].split(None, 1)
            if len(lt) > 1 and not toks[-1].startswith('hwreg') and not op.startswith('s_waitcnt'):
                toks[-1] = lt[0]; mods = lt[1]
        self.ops = toks; self.mods = mods
        self.states = 1
        base = re.sub(r'_(e32|e64|dpp|sdwa)$', '', op)
        R = [_regs(x) for x in toks]
        flat = lambda L: [r for x in L for r in x]
        if op == 's_nop':
            self.cls = 'salu'; self.states = int(toks[0], 0) + 1
        elif op.startswith('v_mfma') :
            self.cls = 'mfma'; self.dst = R[0]; self.srcA = R[1]; self.srcB = R[2]; self.srcC = R[3]
            self.src = R[1] + R[2] + R[3]
            self.passes = 8 if '32x32' in op else 4
        elif op.startswith('v_smfmac'):
            self.cls = 'mfma'; self.dst = R[0]; self.srcA = R[1] + R[3]; self.srcB = R[2]; self.srcC = R[0]
            self.src = R[0] + R[1] + R[2] + R[3]
            self.passes = 8 if '32x32' in op else 4
        elif op.startswith('v_'):
            self.cls = 'valu'
            self.dpp = ('row_' in mods or 'quad_perm' in mods or 'wave_' in mods or op.endswith('_dpp'))
            if base.startswith('v_cmp'):
                self.dst = R[0]; self.src = flat(R[1:])
            elif base.startswith('v_permlane') and 'swap' in base:
                self.dst = R[0] + R[1]; self.src = R[0] + R[1]
            elif base in ('v_add_co_u32','v_sub_co_u32','v_addc_co_u32','v_subb_co_u32','v_mad_u64_u32','v_div_scale_f32'):
                self.dst = R[0] + R[1]; self.src = flat(R[2:])
            else:
                self.dst = R[0]; self.src = flat(R[1:])
                if base in ('v_fmac_f32','v_dot2c_f32_bf16','v_pk_fmac_f16','v_writelane_b32') or self.dpp:
                    self.src = self.src + R[0]
        elif op.startswith('ds_'):
            self.cls = 'ds'
            if op.startswith('ds_read') or op.startswith('ds_bpermute') or op.startswith('ds_permute') or op.startswith('ds_swizzle'):
                self.dst = R[0]; self.src = flat(R[1:])
                if 'd16' in op: self.src = self.src + R[0]
            else:
                self.src = flat(R)
        elif op.startswith('global_') or op.startswith('buffer_') or op.startswith('flat_'):
            self.cls = 'vmem'
            self.lds = ('_lds_' in op) or bool(re.search(r'\blds\b', mods))
            if op in ('buffer_wbl2','buffer_inv'):
                pass
            elif self.lds:
                self.src = flat(R) + [('x','m0')]
            elif '_load_' in op:
                self.dst = R[0]; self.src = flat(R[1:])
            elif '_store_' in op:
                self.src = flat(R)
                if op.endswith('x3') or op.endswith('x4'):
                    self.stdata = R[1] if op.startswith('global_') or op.startswith('flat_') else R[0]
            elif '_atomic_' in op:
                if 'sc0' in mods.split() and op.startswith('global_'):
                    self.dst = R[0]; self.src = flat(R[1:])
                else:
                    self.src = flat(R)
                    if 'sc0' in mods.split(): self.dst = R[0]
        elif op.startswith('s_'):
            self.cls = 'salu'
            if op.startswith('s_cbranch') or op == 's_branch':
                self.target = toks[0]
            elif op.startswith('s_cmp') or op in ('s_waitcnt','s_barrier','s_endpgm','s_sleep','s_setprio','s_sethalt'):
                self.src = flat(R)
            elif 'saveexec' in op:
                self.dst = R[0] + [('x','exec')]; self.src = flat(R[1:])
            else:
                self.dst = R[0] if R else []; self.src = flat(R[1:])
        else:
            raise ValueError('unknown op: ' + text)

def _ov(a, b):
    return bool(set(a) & set(b))

def need(p, c):
    n = 0
    isvg = lambda L: [r for r in L if r[0] in 'va']
    issg = lambda L: [r for r in L if r[0] == 's' or r == ('x','vcc')]
    if p.cls == 'valu':
        pv = isvg(p.dst); ps = issg(p.dst)
        if c.cls == 'mfma' and _ov(pv, c.src): n = max(n, 2)
        if c.cls == 'valu':
            cb = re.sub(r'_(e32|e64|dpp|sdwa)$', '', c.op)
            if cb.startswith('v_permlane') and _ov(pv, c.src): n = max(n, 2)
            if c.dpp and _ov(pv, c.src): n = max(n, 2)
            if cb in ('v_readlane_b32','v_readfirstlane_b32') and _ov(pv, c.src): n = max(n, 1)
            pb = re.sub(r'_(e32|e64|dpp|sdwa)$', '', p.op)
            if pb in TRANS and _ov(pv, c.src): n = max(n, 1)
            if pb.startswith('v_dot') and (_ov(pv, c.src) or _ov(pv, c.dst)): n = max(n, 3)
            if ('op_sel' in p.mods or 'sdwa' in p.op or 'dst_sel' in p.mods) and not pb.startswith('v_pk_') and (_ov(pv, c.src) or _ov(pv, c.dst)): n = max(n, 1)
            csrc = list(c.src)
            if cb in ('v_cndmask_b32','v_addc_co_u32','v_subb_co_u32','v_div_fmas_f32') : csrc = csrc + [('x','vcc')] if len(c.ops) < 4 else csrc
            if _ov(ps, csrc):
                n = max(n, 4 if cb in ('v_readlane_b32','v_writelane_b32','v_div_fmas_f32') else 2)
        if c.cls in ('mfma','ds','vmem'):
            pb = re.sub(r'_(e32|e64|dpp|sdwa)$', '', p.op)
            if pb.startswith('v_dot') and _ov(pv, c.src): n = max(n, 3)
            if pb in TRANS and _ov(pv, c.src): n = max(n, 1)
        if c.cls == 'vmem' and _ov(ps, c.src): n = max(n, 5)
        if c.cls == 'salu' and _ov(ps, c.src): n = max(n, 1)
    if p.cls == 'mfma':
        big = p.passes == 8
        if c.cls == 'mfma':
            if _ov(p.dst, c.srcA) or _ov(p.dst, c.srcB): n = max(n, 12 if big else 8)
            if _ov(p.dst, c.srcC):
                same = (p.dst == c.srcC and p.passes == c.passes)
                if not same: n = max(n, 10 if big else 6)
            elif _ov(p.dst, c.dst):
                n = max(n, 10 if big else 6)
        elif c.cls == 'valu':
            if _ov(p.dst, c.src) or _ov(p.dst, c.dst): n = max(n, 12 if big else 8)
            if _ov(p.srcC, c.dst): n = max(n, 7 if big else 3)
        elif c.cls in ('ds','vmem'):
            if _ov(p.dst, c.src) or _ov(p.dst, c.dst): n = max(n, 12 if big else 8)
    if p.cls == 'salu':
        if ('x','m0') in p.dst and c.cls == 'vmem' and c.lds: n = max(n, 1)
    if p.cls == 'vmem' and p.stdata:
        if _ov(p.stdata, c.dst): n = max(n, 2 if c.cls in ('valu','mfma') else 1)
    if p.cls == 'ds' and p.op in ('ds_write_b128','ds_write_b96') and c.cls in ('valu','mfma') and _ov(p.src, c.dst):
        n = max(n, 1)
    return n

WINDOW = 14

def fix_hazards(lines, verbose=False):
    ins = [Ins(l) for l in lines]
    out = []
    ninserted = 0
    for c in ins:
        if c.cls != 'none':
            dist = 0; req = 0; nM = 0; after = 0
            for p in reversed(out):
                if p.cls == 'none': continue
                if p.op in ('s_branch','s_endpgm'): break
                d = dist
                if p.cls == 'mfma' and nM:
                    d = max(dist, 4*nM + after - 1)
                k = need(p, c) - d
                if k > req: req = k
                if p.cls == 'mfma': nM += 1
                elif nM == 0: after += p.states
                dist += p.states
                if dist >= WINDOW: break
            while req > 0:
                k = min(req, 16)
                out.append(Ins(f'  s_nop {k-1}'))
                req -= k; ninserted += 1
        out.append(c)
    labels = {i.text.split(';')[0].strip()[:-1]: n for n, i in enumerate(out) if i.is_label}
    errs = []
    for n, b in enumerate(out):
        if b.target is None: continue
        if b.target not in labels: raise ValueError('unknown label ' + b.target)
        pre = []; d = 0
        for p in reversed(out[:n+1]):
            if p.cls == 'none': continue
            if p is not b and p.op in ('s_branch','s_endpgm'): break
            pre.append(p); d += p.states
            if d >= WINDOW: break
        d2 = 0
        for c in out[labels[b.target]:]:
            if c.cls == 'none': continue
            dist = d2
            for p in pre:
                if need(p, c) > dist:
                    errs.append(f'branch hazard: [{p.text.strip()}] -> [{c.text.strip()}] via {b.text.strip()} need {need(p,c)} have {dist}')
                dist += p.states
            d2 += c.states
            if d2 >= WINDOW or c.op in ('s_branch','s_endpgm'): break
    if errs:
        raise ValueError('\n'.join(errs[:20]))
    return [i.text for i in out], ninserted

class Asm:
    def __init__(self):
        self.lines = []
        self.uid = 0
        self.deferred = []
    def __call__(self, s):
        for l in s.split('\n'):
            l = l.rstrip()
            if l.strip():
                t = l.strip()
                self.lines.append(t if (t.endswith(':') or t.startswith('.') or t.startswith(';')) else '  ' + t)
    def label(self, name): self.lines.append(name + ':')
    def flush_deferred(self):
        for d in self.deferred: self(d)
        self.deferred = []
    def newlabel(self, base):
        self.uid += 1
        return f'{base}_{self.uid}'
    def text(self, hazards=True):
        L = self.lines
        if hazards:
            L, n = fix_hazards(L)
        return '\n'.join(L) + '\n'

def vr(n, k=1, f='v'):
    return f'{f}{n}' if k == 1 else f'{f}[{n}:{n+k-1}]'
def sr(n, k=1): return vr(n, k, 's')
def ar(n, k=1): return vr(n, k, 'a')
def ur(n, k=1):
    if n >= 256: return vr(n - 256, k, 'a')
    assert n + k <= 256
    return vr(n, k, 'v')

def kdesc(name, vgpr=512, sgpr=102, accum=256):
    return f""".section .rodata,"a"
.p2align 6
.amdhsa_kernel {name}
  .amdhsa_next_free_vgpr {vgpr}
  .amdhsa_next_free_sgpr {sgpr}
  .amdhsa_accum_offset {accum}
  .amdhsa_group_segment_fixed_size 0
  .amdhsa_kernarg_size 120
  .amdhsa_user_sgpr_count 2
  .amdhsa_user_sgpr_kernarg_segment_ptr 1
  .amdhsa_system_sgpr_workgroup_id_x 1
  .amdhsa_float_denorm_mode_32 3
.end_amdhsa_kernel
.text
"""
```

```python
from asmlib import *

S_TOK, DM, NH, DH, NSEG = 2048, 640, 32, 192, 64
KA_X, KA_MEM0, KA_WQ, KA_WK, KA_WV, KA_WO = 0, 8, 16, 24, 32, 40
KA_WIN, KA_WSP, KA_BSP, KA_WOUT, KA_OUT, KA_DBG, KA_WS = 64, 72, 80, 88, 96, 104, 112

MB = 1 << 20
WS_RING = 0
WS_FLAG = 2 * MB
WS_XNF  = 3 * MB
WS_QF   = 6 * MB
WS_KF   = 30 * MB
WS_VF   = 54 * MB
WS_UF   = 78 * MB
WS_YF   = 158 * MB
WS_PF   = 178 * MB
WS_H    = 184 * MB
WS_HNF  = 187 * MB
WS_Z1   = 190 * MB
WS_Z2   = 194 * MB
WS_GY   = 198 * MB
WS_STAT = 202 * MB
WS_LRING = 204 * MB
WS_GY2 = 208 * MB
SEG_XN = 40960
SEG_QKV = NH * 12288
SEG_U = NH * 40960
SEG_Y = 40 * 8 * 1024
SEG_P = 80 * 1024

def add64(A, d, s, imm_or_sreg):
    A(f"s_add_u32 s{d}, s{s}, {imm_or_sreg}\ns_addc_u32 s{d+1}, s{s+1}, 0")

def prologue_ids(A, s_wave, v_lane):
    A(f"""v_lshrrev_b32 v{v_lane}, 6, v0
    v_readfirstlane_b32 s{s_wave}, v{v_lane}
    v_and_b32 v{v_lane}, 63, v0""")

def xlane_sum_g(A, v, t):
    A(f"""v_mov_b32 v{t}, v{v}
    v_permlane16_swap_b32 v{v}, v{t}
    v_add_f32 v{v}, v{v}, v{t}
    v_mov_b32 v{t}, v{v}
    v_permlane32_swap_b32 v{v}, v{t}
    v_add_f32 v{v}, v{v}, v{t}""")

def xlane_max_g(A, v, t):
    A(f"""v_mov_b32 v{t}, v{v}
    v_permlane16_swap_b32 v{v}, v{t}
    v_max_f32 v{v}, v{v}, v{t}
    v_mov_b32 v{t}, v{v}
    v_permlane32_swap_b32 v{v}, v{t}
    v_max_f32 v{v}, v{v}, v{t}""")
```

```python
from common import *

def ln_rowtile(A, s_src, s_dst, v_lane, st_flags='', natural_tokens=False, vb=16):
    raw = vb; f = vb + 80
    t0, t1, t2, t3, vs, vo = vb - 8, vb - 7, vb - 6, vb - 5, vb - 4, vb - 3
    A(f"v_and_b32 v{t0}, 15, v{v_lane}\nv_lshrrev_b32 v{t1}, 4, v{v_lane}")
    if natural_tokens:
        A(f"""v_lshrrev_b32 v{t2}, 2, v{t0}
        v_lshlrev_b32 v{t2}, 3, v{t2}
        v_and_b32 v{t0}, 3, v{t0}
        v_add_u32 v{t0}, v{t0}, v{t2}""")
    A(f"""v_mul_u32_u24 v{t0}, 1280, v{t0}
    v_lshl_add_u32 v{vs}, v{t1}, 4, v{t0}
    v_lshlrev_b32 v{vo}, 4, v{v_lane}""")
    for ks in range(20):
        A(f"global_load_dwordx4 {vr(raw+4*ks,4)}, v{vs}, {sr(s_src,2)} offset:{64*ks}")
    A(f"v_mov_b32 v{t0}, 0\nv_mov_b32 v{t1}, 0")
    for ks in range(20):
        A(f"s_waitcnt vmcnt({19-ks})")
        for j in range(4):
            r = raw + 4*ks + j; lo = f + 2*(4*ks+j); hi = lo + 1
            A(f"""v_lshlrev_b32 {ur(lo)}, 16, v{r}
            v_and_b32 {ur(hi)}, 0xffff0000, v{r}
            v_add_f32 v{t0}, v{t0}, {ur(lo)}
            v_add_f32 v{t1}, v{t1}, {ur(hi)}""")
    A(f"v_add_f32 v{t0}, v{t0}, v{t1}")
    xlane_sum_g(A, t0, t1)
    A(f"v_mul_f32 v{t0}, {1.0/640!r}, v{t0}".replace(repr(1.0/640), hexf(1.0/640)))
    A(f"v_mov_b32 v{t1}, 0\nv_mov_b32 v{t2}, 0")
    for i in range(80):
        lo = f + 2*i; hi = lo + 1
        A(f"""v_sub_f32 v{lo}, v{lo}, v{t0}
        v_sub_f32 v{hi}, v{hi}, v{t0}
        v_fmac_f32 v{t1}, v{lo}, v{lo}
        v_fmac_f32 v{t2}, v{hi}, v{hi}""")
    A(f"v_add_f32 v{t1}, v{t1}, v{t2}")
    xlane_sum_g(A, t1, t2)
    A(f"""v_mov_b32 v{t2}, {hexf(1e-5)}
    v_fmac_f32 v{t2}, {hexf(1.0/640)}, v{t1}
    v_rsq_f32 v{t2}, v{t2}""")
    for ks in range(20):
        for j in range(4):
            i = 4*ks + j; lo = f + 2*i; hi = lo + 1
            A(f"""v_mul_f32 v{lo}, v{lo}, v{t2}
            v_mul_f32 v{hi}, v{hi}, v{t2}
            v_cvt_pk_bf16_f32 v{raw+i}, v{lo}, v{hi}""")
        if ks % 4 == 0 and ks:
            A(f"v_add_u32 v{vo}, 4096, v{vo}")
        A(f"global_store_dwordx4 v{vo}, {vr(raw+4*ks,4)}, {sr(s_dst,2)} offset:{1024*(ks%4)} {st_flags}")

import struct
def hexf(x):
    return '0x%08x' % struct.unpack('<I', struct.pack('<f', x))[0]
```

```python
from common import *
from r_ln import hexf
from r_rec import Lg, WS_OP, SEG_OP
from r_proj import SEG_Z, SEG_ST
from r_u import load_w_rows
WS_ST2 = WS_STAT + MB
WS_WOF = 206 * MB

def ln2_task(A, s_ws, s_x, s_task, s_wave, v_lane, s_t, flags):
    VO, VX, T0, T1, T2, T3, VS = 2, 3, 4, 5, 6, 7, 8
    OPR, XR, F, PK = 16, 96, 120, 160
    so, sx, sh, sn = s_t, s_t+2, s_t+4, s_t+6
    A(f"""s_mul_i32 s{sn}, s{s_task}, {SEG_OP//2}
    s_mul_i32 s{sn+1}, s{s_wave}, 20480
    s_add_u32 s{sn}, s{sn}, s{sn+1}
    s_add_u32 s{sn}, s{sn}, {WS_OP}""")
    add64(A, so, s_ws, f"s{sn}")
    A(f"""s_mul_i32 s{sn}, s{s_task}, 20480
    s_mul_i32 s{sn+1}, s{s_wave}, 320
    s_add_u32 s{sn}, s{sn}, s{sn+1}""")
    add64(A, sx, s_x, f"s{sn}")
    A(f"s_add_u32 s{sn}, s{sn}, {WS_H}")
    add64(A, sh, s_ws, f"s{sn}")
    A(f"""v_lshlrev_b32 v{VO}, 4, v{v_lane}
    v_and_b32 v{T0}, 15, v{v_lane}
    v_lshrrev_b32 v{T1}, 4, v{v_lane}
    v_mul_u32_u24 v{VX}, 1280, v{T0}
    v_lshl_add_u32 v{VX}, v{T1}, 3, v{VX}""")
    for p in range(5):
        for hb in range(2):
            A(f"global_load_dwordx2 {vr(XR+4*p+2*hb,2)}, v{VX}, {sr(sx,2)} offset:{64*p+32*hb}")
        for g in range(4):
            A(f"global_load_dwordx4 {vr(OPR+16*p+4*g,4)}, v{VO}, {sr(so,2)} offset:{1024*g}")
        if p < 4: add64(A, so, so, 4096)
    A(f"""s_lshr_b32 s{sn}, s{s_task}, 1
    s_mul_i32 s{sn}, s{sn}, {SEG_XN}
    s_mul_i32 s{sn+1}, s{s_wave}, 5120
    s_add_u32 s{sn}, s{sn}, s{sn+1}
    s_and_b32 s{sn+1}, s{s_task}, 1
    s_lshl_b32 s{sn+1}, s{sn+1}, 7
    s_add_u32 s{sn}, s{sn}, s{sn+1}
    s_add_u32 s{sn}, s{sn}, {WS_HNF + 2048}
    v_bfe_u32 v{T2}, v{v_lane}, 2, 1
    v_mul_u32_u24 v{VS}, 20480, v{T2}
    v_lshl_add_u32 v{VS}, v{T1}, 8, v{VS}
    v_bfe_u32 v{T2}, v{v_lane}, 3, 1
    v_lshl_add_u32 v{VS}, v{T2}, 6, v{VS}
    v_and_b32 v{T2}, 3, v{v_lane}
    v_lshl_add_u32 v{VS}, v{T2}, 4, v{VS}""")
    add64(A, so, s_ws, f"s{sn}")
    A(f"s_mov_b32 s{sn}, 0x00003f80\ns_mov_b32 s{sn+1}, 0x3f800000\nv_mov_b32 v{T2}, 0\nv_mov_b32 v{T3}, 0")
    for p in range(5):
        A(f"s_waitcnt vmcnt({6*(4-p) + 2*p})")
        for j in range(4):
            A(f"v_lshlrev_b32 v{F+8*p+2*j}, 16, v{XR+4*p+j}\nv_and_b32 v{F+8*p+2*j+1}, 0xffff0000, v{XR+4*p+j}")
        for g in range(4):
            for j in range(8):
                A(f"v_dot2_f32_bf16 v{F+8*p+j}, v{OPR+16*p+4*g+j//2}, s{sn+j%2}, v{F+8*p+j}")
        for j in range(4): A(f"v_cvt_pk_bf16_f32 v{PK+4*p+j}, v{F+8*p+2*j}, v{F+8*p+2*j+1}")
        for hb in range(2):
            A(f"global_store_dwordx2 v{VX}, {vr(PK+4*p+2*hb,2)}, {sr(sh,2)} offset:{64*p+32*hb} {flags}")
        for j in range(4):
            A(f"""v_lshlrev_b32 v{F+8*p+2*j}, 16, v{PK+4*p+j}
            v_and_b32 v{F+8*p+2*j+1}, 0xffff0000, v{PK+4*p+j}
            v_add_f32 v{T2}, v{T2}, v{F+8*p+2*j}
            v_add_f32 v{T3}, v{T3}, v{F+8*p+2*j+1}""")
    def allsum(v, t, off):
        xlane_sum_g(A, v, t)
        A(f"""v_lshlrev_b32 v{t}, 4, v{T0}
        s_lshl_b32 s{sn}, s{s_wave}, 2
        v_add_u32 v{9}, s{sn}, v{t}
        ds_write_b32 v9, v{v} offset:{off}
        s_waitcnt lgkmcnt(0)
        s_barrier
        ds_read_b128 v[12:15], v{t} offset:{off}
        s_waitcnt lgkmcnt(0)
        v_add_f32 v12, v12, v13
        v_add_f32 v14, v14, v15
        v_add_f32 v{v}, v12, v14""")
    A(f"v_add_f32 v{T2}, v{T2}, v{T3}")
    allsum(T2, T3, 0)
    A(f"v_mul_f32 v{T2}, {hexf(1.0/640)}, v{T2}\nv_mov_b32 v{T1}, 0\nv_mov_b32 v{T3}, 0")
    for i in range(20):
        A(f"""v_sub_f32 v{F+2*i}, v{F+2*i}, v{T2}
        v_sub_f32 v{F+2*i+1}, v{F+2*i+1}, v{T2}
        v_fmac_f32 v{T1}, v{F+2*i}, v{F+2*i}
        v_fmac_f32 v{T3}, v{F+2*i+1}, v{F+2*i+1}""")
    A(f"v_add_f32 v{T1}, v{T1}, v{T3}")
    allsum(T1, T3, 256)
    A(f"""v_mov_b32 v{T2}, {hexf(1e-5)}
    v_fmac_f32 v{T2}, {hexf(1.0/640)}, v{T1}
    v_rsq_f32 v{T2}, v{T2}""")
    for p in range(5):
        for j in range(4):
            A(f"""v_mul_f32 v{F+8*p+2*j}, v{F+8*p+2*j}, v{T2}
            v_mul_f32 v{F+8*p+2*j+1}, v{F+8*p+2*j+1}, v{T2}
            v_cvt_pk_bf16_f32 v{OPR+4*p+j}, v{F+8*p+2*j}, v{F+8*p+2*j+1}""")
        A(f"global_store_dwordx4 v{VS}, {vr(OPR+4*p,4)}, {sr(so,2)} offset:{1024*p-2048} {flags}")

def spatial_role(A, name, s_ws, s_tb, s_fb, s_wave, v_lane, s_t, flags, wait_z=None, wait_z1=None, peek_issue=None, peek_test=None):
    VL, VW, VST, VA, VB, VZW, T0, T1 = 2, 3, 4, 5, 6, 7, 8, 9
    ZR, SR, MU, RS, BF, AF = 16, 32, 48, 56, 64, 96
    TM = 128
    sw, sz, ss, sm, sc, sx = s_t, s_t+2, s_t+4, s_t+6, s_t+7, s_t+8
    NB = 4; LB, LA = 0, NB*16384
    A(f"""s_load_dwordx2 {sr(sw,2)}, s[0:1], {KA_WSP}
    v_lshlrev_b32 v{VL}, 4, v{v_lane}
    v_bfe_u32 v{T0}, v{v_lane}, 2, 2
    v_lshlrev_b32 v{VW}, 3, v{T0}
    v_and_b32 v{T0}, 3, v{v_lane}
    v_add_u32 v{VW}, v{VW}, v{T0}
    v_lshlrev_b32 v{VW}, 12, v{VW}
    v_lshrrev_b32 v{T1}, 4, v{v_lane}
    v_lshl_add_u32 v{VW}, v{T1}, 4, v{VW}
    s_lshl_b32 s{sx}, s{s_tb}, 2
    s_add_u32 s{sx}, s{sx}, s{s_wave}
    s_lshl_b32 s{sx}, s{sx}, 18
    s_waitcnt lgkmcnt(0)""")
    add64(A, sw, sw, f"s{sx}")
    A(f"""s_lshl_b32 s{sx}, s{s_fb}, 2
    s_add_u32 s{sx}, s{sx}, s{s_wave}
    s_lshl_b32 s{sx}, s{sx}, 12
    s_add_u32 s{sx}, s{sx}, {WS_Z2}""")
    add64(A, sz, s_ws, f"s{sx}")
    add64(A, ss, s_ws, WS_ST2)
    A(f"""v_and_b32 v{T0}, 15, v{v_lane}
    v_lshlrev_b32 v{VST}, 8, v{T0}
    v_lshl_add_u32 v{VST}, v{T1}, 6, v{VST}
    s_lshr_b32 s{sx}, s{s_wave}, 1
    s_lshl_b32 s{sx}, s{sx}, 13
    v_add_u32 v{VB}, s{sx}, v{VL}
    s_and_b32 s{sx}, s{s_wave}, 1
    s_lshl_b32 s{sx}, s{sx}, 13
    s_add_u32 s{sx}, s{sx}, {LA}
    v_add_u32 v{VA}, s{sx}, v{VL}
    s_lshl_b32 s{sm}, s{s_wave}, 12
    s_add_u32 s{sx}, s{sm}, {LA}
    v_add_u32 v{VZW}, s{sx}, v{VL}""")
    for i in range(4): A(f"v_add_u32 v{10+i}, {(i>>1)*32*4096 + (i&1)*4*4096}, v{VW}")
    def dma_w():
        for i in range(4):
            A(f"s_add_u32 m0, s{sm}, {i*1024}\nglobal_load_lds_dwordx4 v{10+i}, {sr(sw,2)}")
        add64(A, sw, sw, 64)
        A(f"s_add_u32 s{sm}, s{sm}, 16384\ns_and_b32 s{sm}, s{sm}, {NB*16384-1}")
    for i in range(256): A(f"v_accvgpr_write_b32 a{i}, 0")
    for _ in range(2): dma_w()
    spf = s_t + 9
    def zloads():
        for i in range(16): A(f"v_mov_b32 v{SR+i}, 0")
        A("s_mov_b32 exec_lo, 0x0fff0fff\ns_mov_b32 exec_hi, 0x0fff0fff")
        for i in range(4): A(f"global_load_dwordx4 {vr(SR+4*i,4)}, v{VST}, {sr(ss,2)} offset:{16*i}")
        A("s_mov_b64 exec, -1")
        for i in range(4): A(f"global_load_dwordx4 {vr(ZR+4*i,4)}, v{VL}, {sr(sz,2)} offset:{1024*i}")
        add64(A, ss, ss, SEG_ST); add64(A, sz, sz, SEG_Z)
    A(f"s_mov_b32 s{sc}, 0\ns_mov_b32 s{spf}, 0")
    A(f"{name}_loop:")
    lpf = A.newlabel('sp_pf')
    A(f"s_cmp_lg_u32 s{spf}, 0\ns_cbranch_scc1 {lpf}")
    if wait_z: wait_z(A, sc)
    zloads()
    A(f"{lpf}:")
    if peek_issue: peek_issue(A, sc)
    l = A.newlabel('sp_nd'); l2 = A.newlabel('sp_j')
    A(f"s_cmp_ge_u32 s{sc}, {NSEG-2}\ns_cbranch_scc1 {l}")
    dma_w()
    A(f"s_waitcnt vmcnt(4)\ns_branch {l2}\n{l}:\ns_waitcnt vmcnt(0)\n{l2}:")
    for sh in (8, 4, 2, 1):
        for i in range(16): A(f"v_add_f32_dpp v{SR+i}, v{SR+i}, v{SR+i} row_ror:{sh} row_mask:0xf bank_mask:0xf")
    su = lambda j: SR + 8*(j >> 2) + (j & 3)
    A(f"s_mov_b32 s{sx}, {hexf(1.0/768)}")
    for j in range(8): A(f"v_mul_f32 v{MU+j}, s{sx}, v{su(j)}")
    for j in range(8): A(f"v_mul_f32 v{RS+j}, v{MU+j}, v{MU+j}")
    for j in range(8): A(f"v_fma_f32 v{RS+j}, v{su(j)+4}, s{sx}, -v{RS+j}")
    for j in range(8): A(f"v_max_f32 v{RS+j}, 0, v{RS+j}")
    for j in range(8): A(f"v_add_f32 v{RS+j}, {hexf(1e-5)}, v{RS+j}")
    for j in range(8): A(f"v_rsq_f32 v{RS+j}, v{RS+j}")
    for j in range(8): A(f"v_mul_f32 v{MU+j}, v{MU+j}, v{RS+j}")
    for f in range(4):
        for j in range(4):
            A(f"v_lshlrev_b32 v{TM+2*j}, 16, v{ZR+4*f+j}\nv_and_b32 v{TM+2*j+1}, 0xffff0000, v{ZR+4*f+j}")
        for j in range(8): A(f"v_fma_f32 v{TM+j}, v{TM+j}, v{RS+j}, -v{MU+j}")
        for j in range(4): A(f"v_cvt_pk_bf16_f32 v{ZR+4*f+j}, v{TM+2*j}, v{TM+2*j+1}")
        A(f"ds_write_b128 v{VZW}, {vr(ZR+4*f,4)} offset:{1024*f}")
    A("s_waitcnt lgkmcnt(0)")
    lnp = A.newlabel('sp_np')
    A(f"s_mov_b32 s{spf}, 0\ns_cmp_ge_u32 s{sc}, {NSEG-1}\ns_cbranch_scc1 {lnp}")
    if peek_test: peek_test(A, sc, lnp)
    zloads()
    A(f"s_mov_b32 s{spf}, 1\n{lnp}:\ns_barrier")
    lg = Lg(A)
    lg.ds(f"ds_read_b128 {vr(AF,4)}, v{VA}", ('a', 0))
    for t in range(8): lg.ds(f"ds_read_b128 {vr(BF+4*t,4)}, v{VB} offset:{1024*t}", ('b', t))
    for f in range(1, 4): lg.ds(f"ds_read_b128 {vr(AF+4*f,4)}, v{VA} offset:{1024*f}", ('a', f))
    for f in range(8):
        lg.need(('a', f))
        for t in range(8):
            lg.need(('b', t))
            a = ar(4*(8*t+f), 4)
            A(f"v_mfma_f32_16x16x32_bf16 {a}, {vr(AF+4*f,4)}, {vr(BF+4*t,4)}, {a}")
            if t == 2 and f + 4 < 8: lg.ds(f"ds_read_b128 {vr(AF+4*(f+4),4)}, v{VA} offset:{1024*(f+4)}", ('a', f+4))
    A(f"""v_xor_b32 v{VA}, 16384, v{VA}
    v_xor_b32 v{VZW}, 16384, v{VZW}
    v_add_u32 v{VB}, 16384, v{VB}
    v_and_b32 v{VB}, {NB*16384-1}, v{VB}
    s_add_u32 s{sc}, s{sc}, 1
    s_cmp_lt_u32 s{sc}, {NSEG}
    s_cbranch_scc1 {name}_loop""")
    if wait_z1: wait_z1(A)
    A(f"""s_load_dwordx2 {sr(sw,2)}, s[0:1], {KA_BSP}
    s_lshr_b32 s{sx}, s{s_wave}, 1
    s_lshl_b32 s{sm}, s{s_tb}, 1
    s_add_u32 s{sx}, s{sx}, s{sm}
    s_lshl_b32 s{sm}, s{sx}, 8
    s_mul_i32 s{sx}, s{sx}, {8*24576}
    s_and_b32 s{sc}, s{s_wave}, 1
    s_lshl_b32 s{sc}, s{sc}, 12
    s_add_u32 s{sx}, s{sx}, s{sc}
    s_lshl_b32 s{sc}, s{s_fb}, 13
    s_add_u32 s{sx}, s{sx}, s{sc}
    s_add_u32 s{sc}, s{sx}, {WS_Z1}""")
    add64(A, sz, s_ws, f"s{sc}")
    A(f"s_add_u32 s{sc}, s{sx}, {WS_GY}")
    add64(A, ss, s_ws, f"s{sc}")
    A(f"""v_lshrrev_b32 v{T0}, 11, v{VW}
    v_and_b32 v{T0}, 0x7e, v{T0}
    v_add_u32 v{T0}, s{sm}, v{T0}
    s_waitcnt lgkmcnt(0)""")
    BI = 16; Z1 = 32; OUT = 176
    for t in range(8): A(f"global_load_ushort v{BI+t}, v{T0}, {sr(sw,2)} offset:{(t>>1)*64 + (t&1)*8}")
    for t in range(8):
        for p in range(4): A(f"global_load_dwordx4 {vr(Z1+16*t+4*p,4)}, v{VL}, {sr(sz,2)} offset:{1024*p}")
        if t < 7: add64(A, sz, sz, 24576)
    A("s_waitcnt vmcnt(32)")
    for t in range(8): A(f"v_lshlrev_b32 v{BI+t}, 16, v{BI+t}")
    G = 160
    for t in range(8):
        A(f"s_waitcnt vmcnt({min(63, 4*(7-t) + 4*t)})")
        for p in range(4):
            o = OUT + 16*(t % 2) + 4*p; z = Z1 + 16*t + 4*p
            for j in range(8): A(f"v_accvgpr_read_b32 v{G+j}, a{4*(8*t+2*p)+j}")
            for j in range(4): A(f"v_lshlrev_b32 v{G+8+2*j}, 16, v{z+j}\nv_and_b32 v{G+9+2*j}, 0xffff0000, v{z+j}")
            for j in range(8): A(f"v_add_f32 v{G+j}, v{G+j}, v{BI+t}")
            for j in range(4): A(f"v_pk_mul_f32 {vr(G+2*j,2)}, {vr(G+2*j,2)}, {vr(G+8+2*j,2)}")
            for j in range(4): A(f"v_cvt_pk_bf16_f32 v{o+j}, v{G+2*j}, v{G+2*j+1}")
            A(f"global_store_dwordx4 v{VL}, {vr(o,4)}, {sr(ss,2)} offset:{1024*p} {flags}")
        if t < 7: add64(A, ss, ss, 24576)

def wout_prep(A, s_ws, s_kq, s_wave, v_lane, s_t, flags):
    sw, so, sb = s_t, s_t+2, s_t+4
    tr, t, vo = 6, 7, 8
    A(f"""s_load_dwordx2 {sr(sw,2)}, s[0:1], {KA_WOUT}
    s_mul_i32 s{sb}, s{s_kq}, {96*1280}
    s_mul_i32 s{sb+1}, s{s_wave}, 320
    s_add_u32 s{sb}, s{sb}, s{sb+1}
    s_waitcnt lgkmcnt(0)""")
    add64(A, sw, sw, f"s{sb}")
    A(f"""s_mul_i32 s{sb}, s{s_wave}, {10*24576}
    s_mul_i32 s{sb+1}, s{s_kq}, 3072
    s_add_u32 s{sb}, s{sb}, s{sb+1}
    s_add_u32 s{sb}, s{sb}, {WS_WOF}""")
    add64(A, so, s_ws, f"s{sb}")
    A(f"""v_lshrrev_b32 v{t}, 4, v{v_lane}
    v_lshlrev_b32 v{tr}, 3, v{t}
    v_bfe_u32 v{t}, v{v_lane}, 2, 2
    v_add_u32 v{tr}, v{tr}, v{t}
    v_mul_u32_u24 v{tr}, 320, v{tr}
    v_and_b32 v{t}, 3, v{v_lane}
    v_lshl_add_u32 v{tr}, v{t}, 4, v{tr}
    s_mul_i32 s{sb}, s{s_wave}, 40960
    v_add_u32 v{tr}, s{sb}, v{tr}
    v_lshlrev_b32 v{vo}, 4, v{v_lane}""")
    def reads(A, kk, off):
        for dt in range(10):
            for q in range(2):
                A(f"ds_read_b64_tr_b16 {vr(16+4*(dt*3+kk)+2*q,2)}, v{tr} offset:{off + q*4*320 + (dt>>1)*64 + (dt&1)*8}")
    load_w_rows(A, sw, 1280, 20, 96, 32, 3, sb, v_lane, sb+1, 4, reads)
    for dt in range(10):
        for kk in range(3):
            A(f"global_store_dwordx4 v{vo}, {vr(16+4*(dt*3+kk),4)}, {sr(so,2)} offset:{1024*kk} {flags}")
        if dt < 9: add64(A, so, so, 24576)

def out_kernel_body(A):
    prologue_ids(A, 3, 1)
    A(f"""s_load_dwordx2 s[4:5], s[0:1], {KA_WS}
    s_load_dwordx2 s[6:7], s[0:1], {KA_OUT}
    s_lshr_b32 s8, s2, 2
    s_and_b32 s9, s2, 3
    s_mul_i32 s10, s8, {SEG_Z}
    s_mul_i32 s11, s3, 6144
    s_add_u32 s10, s10, s11
    s_add_u32 s10, s10, {WS_GY+2048}
    s_mul_i32 s12, s9, {10*24576}
    s_add_u32 s12, s12, s11
    s_add_u32 s12, s12, {WS_WOF+2048}
    v_lshlrev_b32 v2, 4, v1
    s_waitcnt lgkmcnt(0)""")
    add64(A, 14, 4, 's10'); add64(A, 16, 4, 's12')
    GB = 16; ACC_ = 64
    for rt in range(2):
        for k in range(6): A(f"global_load_dwordx4 {vr(GB+24*rt+4*k,4)}, v2, s[14:15] offset:{1024*k-2048}")
        if rt == 0: add64(A, 14, 14, 24576)
    def wl(dt):
        for k in range(6): A(f"global_load_dwordx4 {ar(24*dt+4*k,4)}, v2, s[16:17] offset:{1024*k-2048}")
        add64(A, 16, 16, 24576)
    for dt in range(8): wl(dt)
    A(f"""v_bfe_u32 v3, v1, 2, 2
    v_lshlrev_b32 v3, 3, v3
    v_and_b32 v4, 3, v1
    v_add_u32 v3, v3, v4
    v_mul_u32_u24 v3, 1280, v3
    v_lshrrev_b32 v4, 4, v1
    v_lshl_add_u32 v3, v4, 4, v3
    s_mul_i32 s10, s8, 40960
    s_mul_i32 s11, s9, 320
    s_add_u32 s10, s10, s11
    s_mul_i32 s13, s3, 20480
    v_add_u32 v5, s13, v2""")
    add64(A, 6, 6, 's10')
    A(f"s_add_u32 s10, s10, {WS_H}")
    add64(A, 18, 4, 's10')
    for dt in range(10):
        A(f"s_waitcnt vmcnt({6*(min(dt+8,10)-1-dt) if dt < 2 else 6*(9-dt)})")
        for k in range(6):
            for rt in range(2):
                a = vr(ACC_+8*dt+4*rt, 4)
                A(f"v_mfma_f32_16x16x32_bf16 {a}, {ar(24*dt+4*k,4)}, {vr(GB+24*rt+4*k,4)}, {'0' if k == 0 else a}")
        if dt + 8 < 10: wl(dt+8)
        if dt >= 1:
            for rt in range(2): A(f"ds_write_b128 v5, {vr(ACC_+8*(dt-1)+4*rt,4)} offset:{2048*(dt-1)+1024*rt}")
    for rt in range(2): A(f"ds_write_b128 v5, {vr(ACC_+72+4*rt,4)} offset:{2048*9+1024*rt}")
    A(f"""s_and_b32 s10, s3, 1
    s_lshr_b32 s11, s3, 1
    s_mul_i32 s12, s10, 5120
    s_lshl_b32 s13, s11, 6
    s_add_u32 s12, s12, s13
    v_add_u32 v3, s12, v3
    s_lshl_b32 s12, s10, 10
    s_lshl_b32 s13, s11, 12
    s_add_u32 s12, s12, s13
    v_add_u32 v6, s12, v2
    v_add_u32 v7, 40960, v6""")
    HR = 16
    for i in range(2): A(f"global_load_dwordx4 {vr(HR+4*i,4)}, v3, s[18:19] offset:{128*i}")
    A("s_cmp_ge_u32 s3, 2\ns_cbranch_scc1 out_nh")
    A(f"global_load_dwordx4 {vr(HR+8,4)}, v3, s[18:19] offset:256\nout_nh:")
    A("s_waitcnt lgkmcnt(0)\ns_barrier")
    R = 64
    for i in range(3):
        if i == 2: A("s_cmp_ge_u32 s3, 2\ns_cbranch_scc1 out_done")
        for ww in range(4):
            for ab in range(2):
                A(f"ds_read_b128 {vr(R+8*ww+4*ab,4)}, v{6+ww//2} offset:{(ww%2)*20480 + 8192*i + 2048*ab}")
        A(f"s_waitcnt vmcnt(0)")
        for j in range(4): A(f"v_lshlrev_b32 v{40+2*j}, 16, v{HR+4*i+j}\nv_and_b32 v{41+2*j}, 0xffff0000, v{HR+4*i+j}")
        A("s_waitcnt lgkmcnt(0)")
        for ww in range(4):
            for j in range(4): A(f"v_pk_add_f32 {vr(40+2*j,2)}, {vr(40+2*j,2)}, {vr(R+8*ww+2*j,2)}")
        for j in range(4): A(f"v_cvt_pk_bf16_f32 v{48+4*i+j}, v{40+2*j}, v{41+2*j}")
        A(f"global_store_dwordx4 v3, {vr(48+4*i,4)}, s[6:7] offset:{128*i}")
```

```python
from common import *

def wreg_proj(f):
    return 256 + 4*f if f < 64 else 192 + 4*(f-64)

def load_w64(A, s_w, wstride, s_wave, v_lane, s_t, vt, kperm=False):
    voff, tr0, tr1, t = vt, vt+1, vt+2, vt+3
    sl = s_t
    A(f"""s_mul_i32 s{sl}, s{s_wave}, 40960
    v_lshrrev_b32 v{t}, 3, v{v_lane}
    s_mov_b32 s{s_t+1}, {wstride}
    v_mul_lo_u32 v{voff}, v{t}, s{s_t+1}
    v_lshlrev_b32 v{t}, 1, v{t}
    v_and_b32 v{t}, 4, v{t}
    v_and_b32 v{tr0}, 7, v{v_lane}
    v_xor_b32 v{t}, v{t}, v{tr0}
    v_lshl_add_u32 v{voff}, v{t}, 4, v{voff}
    v_lshrrev_b32 v{t}, 4, v{v_lane}
    v_lshlrev_b32 v{tr0}, {9 if kperm else 10}, v{t}
    v_bfe_u32 v{t}, v{v_lane}, 2, 2
    v_lshl_add_u32 v{tr0}, v{t}, 7, v{tr0}
    v_lshlrev_b32 v{t}, 1, v{t}
    v_and_b32 v{t}, 4, v{t}
    v_and_b32 v{tr1}, 3, v{v_lane}
    v_add_u32 v{t}, v{t}, v{tr1}
    v_lshl_add_u32 v{tr0}, v{t}, 4, v{tr0}
    v_xor_b32 v{tr1}, 64, v{tr0}
    v_add_u32 v{tr0}, s{sl}, v{tr0}
    v_add_u32 v{tr1}, s{sl}, v{tr1}""")
    def issue(c):
        for i in range(8):
            A(f"s_add_u32 m0, s{sl}, {(c%5)*8192 + i*1024}")
            A(f"global_load_lds_dwordx4 v{voff}, {sr(s_w,2)}")
            add64(A, s_w, s_w, 8*wstride)
    for c in range(5): issue(c)
    for c in range(10):
        A(f"s_waitcnt vmcnt({8*min(4, 9-c)})")
        for ksl in range(2):
            for tt in range(4):
                p, ab = tt >> 1, tt & 1
                r = wreg_proj((2*c+ksl)*4 + tt)
                for q in range(2):
                    A(f"ds_read_b64_tr_b16 {ur(r+2*q,2)}, v{tr1 if p else tr0} offset:{(c%5)*8192 + ksl*4096 + q*(2048 if kperm else 512) + 8*ab}")
        if c + 5 < 10:
            A("s_waitcnt lgkmcnt(0)")
            issue(c+5)
    A("s_waitcnt lgkmcnt(0)")

ACC = 128
XR = 160
EP = 176

def proj_loop(A, name, s_x, s_cnt, s_wave, v_lane, epi, swap=False, mid_hook=None, s_t=None, vt=8):
    vdma, vcur, vnxt = vt, vt+1, vt+2
    sdm, snx = s_t, s_t+1
    A(f"""v_lshlrev_b32 v{vcur}, 4, v{v_lane}
    s_mul_i32 s{sdm}, s{s_wave}, 10240
    v_add_u32 v{vdma}, s{sdm}, v{vcur}
    v_add_u32 v{vnxt}, {SEG_XN}, v{vcur}
    s_barrier""")
    def dma(i, boff):
        A(f"s_add_u32 m0, s{boff}, {(i//4)*4096}" if i % 4 == 0 else "")
        A(f"global_load_lds_dwordx4 v{vdma}, {sr(s_x,2)} offset:{(i%4)*1024}")
        if i % 4 == 3: add64(A, s_x, s_x, 4096)
        if i == 9: add64(A, s_x, s_x, SEG_XN - 8192)
    for i in range(10): dma(i, sdm)
    A(f"s_add_u32 s{sdm}, s{sdm}, {SEG_XN}")
    for i in range(10): dma(i, sdm)
    A(f"s_add_u32 s{sdm}, s{sdm}, {SEG_XN}")
    A(f"s_mov_b32 s{snx}, 1")
    A("s_waitcnt vmcnt(10)\ns_barrier")
    for n in range(3):
        A(f"ds_read_b128 {vr(XR+4*n,4)}, v{vcur} offset:{n*1024}")
    A(f"s_mov_b32 s{s_t+2}, 0")
    A(f"{name}_loop:")
    for n in range(40):
        rt, ks = divmod(n, 20)
        m = n + 3
        A(f"ds_read_b128 {vr(XR+4*(m%4),4)}, v{vcur if m < 40 else vnxt} offset:{(m%40)*1024}")
        A("s_waitcnt lgkmcnt(3)")
        for t in range(4):
            a = vr(ACC + 16*rt + 4*t, 4)
            w = ur(wreg_proj(ks*4+t), 4); x = vr(XR+4*(n%4), 4)
            o1, o2 = (x, w) if swap else (w, x)
            A(f"v_mfma_f32_16x16x32_bf16 {a}, {o1}, {o2}, {'0' if ks == 0 else a}")
            if ks >= 1:
                step = (ks-1)*4 + t
                if rt == 0:
                    epi(A, 1, step, guard=s_t+2)
                else:
                    epi(A, 0, step, guard=None)
        if n == 19:
            A("s_waitcnt vmcnt(0)\ns_barrier")
            if mid_hook: mid_hook(A)
        if 20 <= n < 30:
            dma(n-20, sdm)
    A(f"""s_add_u32 s{snx}, s{snx}, 1
    s_cmp_eq_u32 s{snx}, 3
    s_cselect_b32 s{snx}, 0, s{snx}
    v_mov_b32 v{vcur}, v{vnxt}
    s_mul_i32 s{s_t+2}, s{snx}, {SEG_XN}
    v_lshlrev_b32 v{vnxt}, 4, v{v_lane}
    v_add_u32 v{vnxt}, s{s_t+2}, v{vnxt}
    s_add_u32 s{sdm}, s{sdm}, {SEG_XN}
    s_cmp_eq_u32 s{snx}, 2
    s_cselect_b32 s{s_t+2}, {3*SEG_XN}, 0
    s_sub_u32 s{sdm}, s{sdm}, s{s_t+2}
    s_mov_b32 s{s_t+2}, 1
    s_sub_u32 s{s_cnt}, s{s_cnt}, 1
    s_cmp_lg_u32 s{s_cnt}, 0
    s_cbranch_scc1 {name}_loop""")
    step = 0
    while epi(A, 1, step, guard=None): step += 1
    A("s_waitcnt lgkmcnt(0)")

def make_epi_qkv(s_o, v_o, flags):
    def epi(A, rt, step, guard):
        if step < 2: return True
        step -= 2
        if step < 8:
            p, j = divmod(step, 4)
            a = ACC + 16*rt + 8*p + 2*j
            A(f"v_cvt_pk_bf16_f32 v{EP+4*p+j}, v{a}, v{a+1}")
            return True
        if step == 8:
            if guard is not None:
                l = A.newlabel('skip')
                A(f"s_cmp_eq_u32 s{guard}, 0\ns_cbranch_scc1 {l}")
            if rt == 1: add64(A, s_o, s_o, 6144)
            A(f"global_store_dwordx4 v{v_o}, {vr(EP,4)}, {sr(s_o,2)} {flags}")
            A(f"global_store_dwordx4 v{v_o}, {vr(EP+4,4)}, {sr(s_o,2)} offset:1024 {flags}")
            if rt == 1: add64(A, s_o, s_o, SEG_QKV - 6144)
            if guard is not None: A(f"{l}:")
            return True
        return False
    return epi

from r_ln import hexf
import math
GC0 = -2.0*math.sqrt(2.0/math.pi)*math.log2(math.e)
GC1 = GC0*0.044715
def gelu_ops(regs, tmp, s_c0, s_c1):
    n = len(regs); ops = []
    ops += [f"v_mul_f32 v{tmp+i}, v{r}, v{r}" for i, r in enumerate(regs)]
    ops += [f"v_fma_f32 v{tmp+i}, v{tmp+i}, s{s_c1}, v{s_c0}" for i, r in enumerate(regs)]
    ops += [f"v_mul_f32 v{tmp+i}, v{tmp+i}, v{r}" for i, r in enumerate(regs)]
    ops += [f"v_exp_f32 v{tmp+i}, v{tmp+i}" for i, r in enumerate(regs)]
    ops += [f"v_add_f32 v{tmp+i}, 1.0, v{tmp+i}" for i, r in enumerate(regs)]
    ops += [f"v_rcp_f32 v{tmp+i}, v{tmp+i}" for i, r in enumerate(regs)]
    ops += [f"v_mul_f32 v{tmp+i}, v{tmp+i}, v{r}" for i, r in enumerate(regs)]
    return ops

def make_epi_list(build, per=3):
    cache = {}
    def epi(A, rt, step, guard):
        if step == 0: cache[rt] = build(rt)
        ops, tail = cache[rt]
        if step < 2: return True
        k = (step-2)*per
        if k < len(ops):
            for o in ops[k:k+per]: A(o)
            return True
        if k < len(ops) + per:
            if guard is not None:
                l = A.newlabel('skip')
                A(f"s_cmp_eq_u32 s{guard}, 0\ns_cbranch_scc1 {l}")
            A(tail)
            if guard is not None: A(f"{l}:")
            return True
        return False
    return epi

SEG_Z = 48*1024
SEG_ST = 12*256
GT, ZP, ST_ = 32, 64, 96
def make_epi_z1(s_o, v_o, v_c0, s_c1, flags, seg_step=1):
    def build(rt):
        regs = [ACC + 16*rt + i for i in range(16)]
        ops = gelu_ops(regs, GT, v_c0, s_c1)
        ops += [f"v_cvt_pk_bf16_f32 v{EP+i}, v{GT+2*i}, v{GT+2*i+1}" for i in range(8)]
        tail = f"""global_store_dwordx4 v{v_o}, {vr(EP,4)}, {sr(s_o,2)} {flags}
        global_store_dwordx4 v{v_o}, {vr(EP+4,4)}, {sr(s_o,2)} offset:1024 {flags}
        s_add_u32 s{s_o}, s{s_o}, {24576 + (seg_step-1)*SEG_Z*rt}
        s_addc_u32 s{s_o+1}, s{s_o+1}, 0"""
        return ops, tail
    return make_epi_list(build, 2)

def make_epi_z2(s_o, s_st, v_o, v_st, v_c0, s_c1, flags, seg_step=1):
    def build(rt):
        regs = [ACC + 16*rt + i for i in range(16)]
        ops = gelu_ops(regs, GT, v_c0, s_c1)
        ops += [f"v_cvt_pk_bf16_f32 v{ZP+4*t+2*rt+j}, v{GT+4*t+2*j}, v{GT+4*t+2*j+1}" for t in range(4) for j in range(2)]
        ops += [f"v_add_f32 v{ST_+i}, v{GT+i}, v{GT+4+i}" for i in range(4)]
        ops += [f"v_mul_f32 v{ST_+4+i}, v{GT+i}, v{GT+i}" for i in range(4)]
        for t in range(1, 4):
            if t > 1: ops += [f"v_add_f32 v{ST_+i}, v{ST_+i}, v{GT+4*t+i}" for i in range(4)]
            ops += [f"v_fmac_f32 v{ST_+4+i}, v{GT+4*t+i}, v{GT+4*t+i}" for i in range(4)]
        for sh in (8, 4, 2, 1):
            ops += [f"v_add_f32_dpp v{ST_+i}, v{ST_+i}, v{ST_+i} row_ror:{sh} row_mask:0xf bank_mask:0xf" for i in range(8)]
        tail = f"""s_mov_b32 exec_lo, 0x00010001
        s_mov_b32 exec_hi, 0x00010001
        global_store_dwordx4 v{v_st}, {vr(ST_,4)}, {sr(s_st,2)} offset:{32*rt} {flags}
        global_store_dwordx4 v{v_st}, {vr(ST_+4,4)}, {sr(s_st,2)} offset:{32*rt+16} {flags}
        s_mov_b64 exec, -1
        """
        if rt == 1:
            tail += '\n'.join(f"global_store_dwordx4 v{v_o}, {vr(ZP+4*t,4)}, {sr(s_o,2)} offset:{1024*t} {flags}" for t in range(4))
            tail += f"""
            s_add_u32 s{s_o}, s{s_o}, {SEG_Z*seg_step}
            s_addc_u32 s{s_o+1}, s{s_o+1}, 0
            s_add_u32 s{s_st}, s{s_st}, {SEG_ST*seg_step}
            s_addc_u32 s{s_st+1}, s{s_st+1}, 0"""
        return ops, tail
    return make_epi_list(build, 3)

def proj_once_loop(A, name, s_x, s_seg, seg_step, s_wave, v_lane, epi, swap, s_t, vt, wait_in, done_hook):
    vdma, vcur = vt, vt+1
    sdm = s_t
    A(f"""v_lshlrev_b32 v{vcur}, 4, v{v_lane}
    s_mul_i32 s{sdm}, s{s_wave}, 10240
    v_add_u32 v{vdma}, s{sdm}, v{vcur}
    s_barrier
    {name}_loop:""")
    wait_in(A)
    for i in range(10):
        if i % 4 == 0: A(f"s_add_u32 m0, s{sdm}, {(i//4)*4096}")
        A(f"global_load_lds_dwordx4 v{vdma}, {sr(s_x,2)} offset:{(i%4)*1024}")
        if i % 4 == 3: add64(A, s_x, s_x, 4096)
    add64(A, s_x, s_x, seg_step*SEG_XN - 8192)
    A("s_waitcnt vmcnt(0)\ns_barrier")
    for n in range(3):
        A(f"ds_read_b128 {vr(XR+4*n,4)}, v{vcur} offset:{n*1024}")
    for n in range(40):
        rt, ks = divmod(n, 20)
        m = n + 3
        if m < 40: A(f"ds_read_b128 {vr(XR+4*(m%4),4)}, v{vcur} offset:{m*1024}")
        A(f"s_waitcnt lgkmcnt({min(3, 39-n)})")
        for t in range(4):
            a = vr(ACC + 16*rt + 4*t, 4)
            w = ur(wreg_proj(ks*4+t), 4); x = vr(XR+4*(n%4), 4)
            o1, o2 = (x, w) if swap else (w, x)
            A(f"v_mfma_f32_16x16x32_bf16 {a}, {o1}, {o2}, {'0' if ks == 0 else a}")
            if ks >= 1 and rt == 1: epi(A, 0, (ks-1)*4 + t, guard=None)
    step = 0
    while epi(A, 1, step, guard=None): step += 1
    A("s_waitcnt vmcnt(0)\ns_barrier")
    done_hook(A)
    A(f"""s_add_u32 s{s_seg}, s{s_seg}, {seg_step}
    s_cmp_lt_u32 s{s_seg}, {NSEG}
    s_cbranch_scc1 {name}_loop""")
```

```python
from common import *
from r_u import load_w_rows
from r_ln import hexf
import math, os
TOUCH = int(os.environ.get('TOUCH', '128'))
NOU = int(os.environ.get('NOU', '0'))
NOKQ = int(os.environ.get('NOKQ', '0'))

NG, HG, NR = 4, 8, 10
GBLK = 32768
GSLOT = 32*GBLK
LBASE = WS_LRING
M_OFF = 0
P_OFF = 16384
PX_OFF = 32768
Y_OFF = 163840
NSYNC = NG*(2*HG+NR)
WS_OP = WS_YF
SEG_OP = 2*20*4*1024
TLANES = int(os.environ.get('TLANES', '64'))
TOUT = int(os.environ.get('TOUT', '0'))
KQP = int(os.environ.get('KQP', '8'))
GDROP = int(os.environ.get('GDROP', '0'))
ASLEEP = int(os.environ.get('ASLEEP', '16'))
BSLEEP = int(os.environ.get('BSLEEP', '24'))
RSLEEP = int(os.environ.get('RSLEEP', '10'))
MPIPE = int(os.environ.get('MPIPE', '0'))
YPIPE = int(os.environ.get('YPIPE', '2'))
XFLAGNOW = int(os.environ.get('XFLAGNOW', '0'))
SCRUB = int(os.environ.get('SCRUB', '1'))
XLEAD = int(os.environ.get('XLEAD', '3'))
AB1 = int(os.environ.get('AB1', '9'))
BB1 = int(os.environ.get('BB1', '7'))
GDELAY = int(os.environ.get('GDELAY', '1'))
KQW3 = int(os.environ.get('KQW3', '0'))
POLL_LIMIT = 1 << 17

class Lg:
    def __init__(s, A): s.A = A; s.n = 0; s.done = 0; s.tag = {}
    def ds(s, text, tag=None):
        s.A(text); s.n += 1
        if tag is not None: s.tag[tag] = s.n
    def need(s, tag):
        k = s.tag[tag]
        if k > s.done:
            w = s.n - k
            if w <= 15:
                s.A(f"s_waitcnt lgkmcnt({w})"); s.done = k
            else:
                s.A("s_waitcnt lgkmcnt(15)"); s.done = s.n - 15
    def all(s):
        s.A("s_waitcnt lgkmcnt(0)"); s.done = s.n

V_LANE16, V_P1, V_P2, V_RD0, V_RD3, V_IDX, V_TW, V_TR, V_WS, V_X1, V_X2, V_X3, V_JUNK = 1, 2, 3, 4, 7, 8, 9, 10, 11, 12, 13, 14, 15
MOP, ACC, STG = 16, 56, 80
LPOS = [0, 4, 8, 12, 16, 20, 24, 28, 32, 36]
def wloc(p):
    if p in LPOS: return ('lds', LPOS.index(p))
    k = p - sum(1 for x in LPOS if x < p)
    return ('reg', 256 + 8*k if k < 32 else 112 + 8*(k-32))
def wreg(p):
    kind, x = wloc(p)
    return STG + 8*(x % 4) if kind == 'lds' else x
L_T = 0
L_MS = 8192
L_X = 18432
L_R = L_X + 49152
L_W = 81920
S_WAVE = 3
SRD = 4
S_GRP, S_HL, S_STEP, S_TO = 8, 9, 10, 11
S_T = 12
S_A, S_B = 20, 22
S_POL, S_SLOW, S_H = 24, 25, 26
S_CUR, S_TAG, S_TAGM = 27, 28, 29
S_ML, S_ML4, S_MR, S_MR4 = 30, 31, 32, 33
S_MSK = 34
S_HI = 52
S_EVEN = 54
S_C1, S_C2, S_C3, S_C4, S_C5, S_C6 = 56, 57, 58, 59, 60, 61
S_O1, S_O2, S_O3, S_O4 = 62, 63, 64, 65
S_NT, S_CT0, S_SEL0, S_SEL1, S_CSC = 66, 67, 68, 69, 70
srd = sr(SRD, 4)

def smf(A, acc, a, b):
    A(f"v_smfmac_f32_16x16x64_bf16 {vr(acc,4)}, {vr(a,4)}, {ur(b,8)}, v{V_IDX}")
def bld(n, dst, va, so, off=0, fl=''):
    nm = {1: 'dword', 2: 'dwordx2', 4: 'dwordx4'}[n]
    return f"buffer_load_{nm} {vr(dst,n)}, v{va}, {srd}, s{so} offen offset:{off} {fl}"
def bst(n, src, va, so, off=0, fl=''):
    nm = {1: 'dword', 2: 'dwordx2', 4: 'dwordx4'}[n]
    return f"buffer_store_{nm} {vr(src,n)}, v{va}, {srd}, s{so} offen offset:{off} {fl}"
def bdma(va, so, off=0):
    return f"buffer_load_dwordx4 v{va}, {srd}, s{so} offen offset:{off} lds"

def common_init(A):
    w = S_WAVE
    A(f"""v_lshlrev_b32 v{V_LANE16}, 4, v0
    s_lshl_b32 s{S_T}, s{w}, 10
    v_add_u32 v{V_P1}, s{S_T}, v{V_LANE16}
    s_and_b32 s{S_T+1}, s{S_T}, 1024
    s_add_u32 s{S_T+2}, s{S_T+1}, 8192
    v_add_u32 v{V_P2}, s{S_T+2}, v{V_LANE16}
    s_xor_b32 s{S_T+1}, s{S_T+1}, 1024
    v_add_u32 v{V_RD3}, s{S_T+1}, v{V_LANE16}""")
    for i in range(3):
        A(f"s_xor_b32 s{S_T+1}, s{S_T}, {(i+1)*1024}\nv_add_u32 v{V_RD0+i}, s{S_T+1}, v{V_LANE16}")
    A(f"""s_mov_b32 s{S_HI}, 0xff00ff00
    s_mov_b32 s{S_HI+1}, 0xff00ff00
    v_mov_b32 v{V_IDX}, 0x4444
    v_mov_b32 v{V_TW}, 0xeeee
    v_cndmask_b32 v{V_IDX}, v{V_IDX}, v{V_TW}, {sr(S_HI,2)}
    s_mul_i32 s{S_T+1}, s{w}, 20480
    s_add_u32 s{S_T+1}, s{S_T+1}, {L_W}
    v_add_u32 v{V_WS}, s{S_T+1}, v{V_LANE16}
    s_lshl_b32 s{S_H}, s{S_GRP}, 3
    s_add_u32 s{S_H}, s{S_H}, s{S_HL}
    s_mov_b32 s{S_SEL0}, 0x00003f80
    s_mov_b32 s{S_SEL1}, 0x3f800000
    s_lshl_b32 s{S_CUR}, s{S_GRP}, 18
    s_add_u32 s{S_CUR}, s{S_CUR}, {LBASE}
    s_mov_b32 s{S_TAG}, 0
    s_mov_b32 s{S_TAGM}, 0
    s_add_u32 s{S_ML}, s{S_CUR}, {M_OFF}
    s_add_u32 s{S_ML4}, s{S_ML}, 4096
    s_mov_b32 s{S_STEP}, 0""")

def kappa_sreg(A, kp, dst):
    w = S_WAVE
    if kp == 0: A(f"s_mov_b32 s{dst}, s{w}")
    elif kp == 1: A(f"s_add_u32 s{dst}, s{w}, 4")
    elif kp == 2: A(f"s_and_b32 s{dst}, s{w}, 1\ns_add_u32 s{dst}, s{dst}, 8")
    elif kp < 6: A(f"s_xor_b32 s{dst}, s{w}, {kp-2}")
    elif kp < 9: A(f"s_xor_b32 s{dst}, s{w}, {kp-5}\ns_add_u32 s{dst}, s{dst}, 4")
    else: A(f"s_and_b32 s{dst}, s{w}, 1\ns_xor_b32 s{dst}, s{dst}, 9")

def tr_addr_sparseB(A, dst, t, rowbytes, s_base):
    A(f"""v_bfe_u32 v{dst}, v0, 2, 1
    v_bfe_u32 v{t}, v0, 3, 1
    v_lshl_add_u32 v{dst}, v{t}, 3, v{dst}
    v_bfe_u32 v{t}, v0, 4, 1
    v_lshl_add_u32 v{dst}, v{t}, 2, v{dst}
    v_bfe_u32 v{t}, v0, 5, 1
    v_lshl_add_u32 v{dst}, v{t}, 4, v{dst}
    v_mul_u32_u24 v{dst}, {rowbytes}, v{dst}
    v_and_b32 v{t}, 3, v0
    v_lshl_add_u32 v{dst}, v{t}, 3, v{dst}
    v_add_u32 v{dst}, s{s_base}, v{dst}""")

def read_operand(A, p, vtr, off, rowbytes, halves=(0,1), hrows=32):
    kind, x = wloc(p)
    r = STG if kind == 'lds' else x
    for half in halves:
        for q in range(2):
            A(f"ds_read_b64_tr_b16 {ur(r+4*half+2*q,2)}, v{vtr} offset:{off + (hrows*(half-halves[0]) + 2*q)*rowbytes}")
    if kind == 'lds':
        A("s_waitcnt lgkmcnt(0)")
        for half in halves:
            A(f"ds_write_b128 v{V_WS}, {vr(STG+4*half,4)} offset:{x*2048+1024*half}")
        A("s_waitcnt lgkmcnt(0)")

def load_w48(A, s_w, pos_of):
    vt = MOP
    sb = S_T + 4
    A(f"s_mul_i32 s{sb}, s{S_WAVE}, 20480")
    tr_addr_sparseB(A, vt+2, vt+3, 96, sb)
    voff, t = vt, vt+1
    A(f"""v_mul_u32_u24 v{t}, {(65536+5)//6}, v0
    v_lshrrev_b32 v{t}, 16, v{t}
    s_mov_b32 s{S_T}, {12288-96}
    v_mul_lo_u32 v{voff}, v{t}, s{S_T}
    v_lshl_add_u32 v{voff}, v0, 4, v{voff}""")
    depth = 3; slot = 6144
    def issue(kp):
        kappa_sreg(A, kp, S_T)
        A(f"s_mul_i32 s{S_T}, s{S_T}, {64*12288}")
        add64(A, S_T+2, s_w, f"s{S_T}")
        A(f"s_mov_b32 exec_hi, 0x0fffffff")
        for i in range(7):
            if i == 6: A("s_mov_b32 exec_lo, 0xffffff\ns_mov_b32 exec_hi, 0")
            A(f"s_add_u32 m0, s{sb}, {(kp%depth)*slot + i*960}")
            A(f"global_load_lds_dwordx4 v{voff}, {sr(S_T+2,2)}")
            if i < 6: add64(A, S_T+2, S_T+2, 10*12288)
        A("s_mov_b64 exec, -1")
    for kp in range(depth): issue(kp)
    for kp in range(10):
        A(f"s_waitcnt vmcnt({7*min(depth-1, 9-kp)})")
        for t_ in range(3):
            read_operand(A, pos_of(kp, t_), vt+2, (kp%depth)*slot + t_*32, 96)
        A("s_waitcnt lgkmcnt(0)")
        if kp + depth < 10: issue(kp+depth)

def tick(A, exitlab):
    A(f"""s_add_u32 s{S_TO}, s{S_TO}, 1
    s_cmp_gt_u32 s{S_TO}, {POLL_LIMIT}
    s_cbranch_scc1 {exitlab}""")

def check(A, regs, stag, target):
    t = V_X3
    c = list(regs)
    if len(c) == 1:
        A(f"v_bitop3_b32 v{t}, v{c[0]}, 1, s{stag} bitop3:0x48")
    else:
        A(f"v_bitop3_b32 v{t}, v{c[0]}, v{c[1]}, s{stag} bitop3:0x7e")
        for x in c[2:]:
            A(f"v_bitop3_b32 v{t}, v{x}, v{t}, s{stag} bitop3:0xde")
        A(f"v_and_b32 v{t}, 1, v{t}")
    A(f"v_cmp_ne_u32 vcc, 0, v{t}\ns_cbranch_vccnz {target}")

def poll(A, name, loads, checks, stag, exitlab, shadow=None):
    l = A.newlabel(name)
    if shadow is not None:
        l2 = A.newlabel(name)
        for x in loads: A(x)
        shadow()
        A(f"s_branch {l2}")
    A(f"{l}:")
    for x in loads: A(x)
    tick(A, exitlab)
    if shadow is not None: A(f"{l2}:")
    A("s_waitcnt vmcnt(0)")
    check(A, checks, stag, l)

def ingest_mem(A, lg, exitlab, shadow=None):
    def L(b): return [bld(4, b, V_P1, S_ML, 0, 'sc1'), bld(4, b+4, V_P1, S_ML4, 0, 'sc1'), bld(4, b+8, V_P2, S_ML, 0, 'sc1')]
    W = [(V_P1, L_MS), (V_P1, L_MS+4096), (V_P2, L_MS)]
    if not MPIPE:
        poll(A, 'pm', L(MOP), [MOP, MOP+4, MOP+8], S_TAG, exitlab, shadow)
        for f, (v, off) in enumerate(W):
            lg.ds(f"ds_write_b128 v{v}, {vr(MOP+4*f,4)} offset:{off}", ('mw', f))
        return
    S = [MOP+12, MOP+24]
    lp, n0, j = A.newlabel('pm'), A.newlabel('pm'), A.newlabel('pm')
    for x in L(S[0]): A(x)
    A(f"s_sleep {MPIPE}\n{lp}:")
    def fin(b):
        for f, (v, off) in enumerate(W):
            A(f"ds_write_b128 v{v}, {vr(b+4*f,4)} offset:{off}")
            A(f"v_pk_mov_b32 {vr(MOP+4*f,2)}, {vr(b+4*f,2)}, {vr(b+4*f,2)} op_sel:[0,1]\nv_pk_mov_b32 {vr(MOP+4*f+2,2)}, {vr(b+4*f+2,2)}, {vr(b+4*f+2,2)} op_sel:[0,1]")
    for x in L(S[1]): A(x)
    tick(A, exitlab)
    A("s_waitcnt vmcnt(3)")
    check(A, [S[0], S[0]+4, S[0]+8], S_TAG, n0)
    fin(S[0])
    A(f"s_branch {j}\n{n0}:")
    for x in L(S[0]): A(x)
    A("s_waitcnt vmcnt(3)")
    check(A, [S[1], S[1]+4, S[1]+8], S_TAG, lp)
    fin(S[1])
    A(f"{j}:")
    lg.n += 3; lg.tag[('mw', 2)] = lg.n

def read_mem_frags(A, lg):
    if MPIPE: A('s_waitcnt vmcnt(0)')
    for kp in range(3, 10):
        if kp < 6: v, off = V_RD0 + kp - 3, L_MS
        elif kp < 9: v, off = V_RD0 + kp - 6, L_MS + 4096
        else: v, off = V_RD3, L_MS + 8192
        lg.ds(f"ds_read_b128 {vr(MOP+4*kp,4)}, v{v} offset:{off}", ('m', kp))

def stg_load(lg, i):
    r = STG + 8*(i % 4)
    lg.ds(f"ds_read_b128 {vr(r,4)}, v{V_WS} offset:{i*2048}")
    lg.ds(f"ds_read_b128 {vr(r+4,4)}, v{V_WS} offset:{i*2048+1024}", ('w', i))

def next_step(A):
    A(f"""s_add_u32 s{S_STEP}, s{S_STEP}, 1
    s_xor_b32 s{S_TAG}, s{S_TAG}, 1""")

def t_plane_base(A, dst, c, t, plane):
    A(f"""v_mul_u32_u24 v{dst}, {plane}, v{c}
    v_and_b32 v{t}, 1, v{c}
    v_lshl_add_u32 v{dst}, v{t}, 5, v{dst}
    v_lshrrev_b32 v{t}, 1, v{c}
    v_lshl_add_u32 v{dst}, v{t}, 7, v{dst}""")

def checkin(A, s_dbg, vt=None):
    vt = MOP if vt is None else vt
    l2 = A.newlabel('isk')
    A(f"""s_waitcnt vmcnt(0)
    s_barrier
    s_cmp_lg_u32 s{S_WAVE}, 0
    s_cbranch_scc1 {l2}
    v_mov_b32 v{vt}, 64
    v_mov_b32 v{vt+1}, 1
    s_mov_b64 exec, 1
    global_atomic_add v{vt}, v{vt+1}, {sr(s_dbg,2)}
    s_mov_b64 exec, -1
    {l2}:""")

def waitall(A, s_dbg, exitlab, total, vt=None, s_slow=None, s_pol=None, st=None):
    vt = MOP if vt is None else vt
    st = S_T if st is None else st
    l = A.newlabel('isync')
    A(f"""v_mov_b32 v{vt}, 64
    {l}:
    global_load_dwordx4 {vr(vt+4,4)}, v{vt}, {sr(s_dbg,2)} sc1""")
    tick(A, exitlab)
    A(f"""s_waitcnt vmcnt(0)
    v_readfirstlane_b32 s{st}, v{vt+4}
    s_cmp_lt_u32 s{st}, {total}
    s_cbranch_scc1 {l}""")
    if s_slow is not None: A(f"v_readfirstlane_b32 s{s_slow}, v{vt+5}")
    if s_pol is not None: A(f"v_readfirstlane_b32 s{s_pol}, v{vt+6}\ns_and_b32 s{s_pol}, s{s_pol}, 8192")

FSLEEP = int(os.environ.get('FSLEEP', '0'))
def wait_flags(A, v_addr, v_tmp, s_need, exitlab, sleep=2):
    l, l2 = A.newlabel('wf'), A.newlabel('wf')
    A(f"""s_branch {l2}
    {l}:
    s_sleep {FSLEEP or sleep}""")
    tick(A, exitlab)
    A(f"""{l2}:
    buffer_load_dword v{v_tmp}, v{v_addr}, {srd}, 0 offen sc1
    s_waitcnt vmcnt(0)
    v_cmp_gt_u32 vcc, s{s_need}, v{v_tmp}
    s_cbranch_vccnz {l}""")

def wait_flags_wg(A, v_addr, v_tmp, s_need, exitlab, sleep=6):
    l = A.newlabel('wg')
    A(f"s_cmp_lg_u32 s{S_WAVE}, 0\ns_cbranch_scc1 {l}")
    wait_flags(A, v_addr, v_tmp, s_need, exitlab, sleep)
    A(f"{l}:\ns_barrier")

def put_flag(A, s_off, s_val, vt):
    A(f"""v_mov_b32 v{vt}, s{s_val}
    s_mov_b64 exec, 1
    buffer_store_dword v{vt}, off, {srd}, s{s_off} sc1
    s_mov_b64 exec, -1""")

CSC = (192 ** -0.5) * math.log2(math.e)
NEG = 0xf149f2ca

def posA(kp, t):
    return kp*6 + t if kp < 3 else 18 + (t//2)*14 + (kp-3)*2 + (t % 2)

def H(hooks, name, *a):
    if name in hooks: hooks[name](*a)

def role_A(A, exitlab, s_dbg, hooks, slow_too=True):
    w = S_WAVE
    common_init(A)
    t0, t1, t2 = MOP, MOP+1, MOP+2
    A(f"v_lshrrev_b32 v{t0}, 4, v0")
    t_plane_base(A, V_TW, t0, t1, 1536)
    A(f"""v_and_b32 v{t1}, 15, v0
    s_mul_i32 s{S_T}, s{w}, 48
    v_add_u32 v{t1}, s{S_T}, v{t1}
    v_lshl_add_u32 v{V_TW}, v{t1}, 3, v{V_TW}
    v_and_b32 v{t2}, 3, v0""")
    t_plane_base(A, V_TR, t2, t1, 1536)
    A(f"""v_bfe_u32 v{t1}, v0, 2, 2
    v_lshl_add_u32 v{t1}, v{t0}, 3, v{t1}
    v_lshl_add_u32 v{V_TR}, v{t1}, 3, v{V_TR}
    v_add_u32 v{V_X1}, {L_X}, v{V_LANE16}
    v_and_b32 v{t2}, 1, v0""")
    t_plane_base(A, V_JUNK, t2, t1, 1536)
    A(f"""v_bfe_u32 v{t1}, v0, 2, 2
    v_lshl_add_u32 v{t1}, v{t0}, 3, v{t1}
    v_lshl_add_u32 v{V_JUNK}, v{t1}, 3, v{V_JUNK}
    v_and_b32 v{t1}, 15, v0
    v_lshlrev_b32 v{V_X2}, 4, v{t1}
    v_and_b32 v{t1}, 1, v{t0}
    v_lshl_add_u32 v{V_X2}, v{t1}, 3, v{V_X2}""")
    A(f"v_and_b32 v{t1}, 15, v0\ns_sub_u32 s{S_T}, s{w}, 1\ns_lshl_b32 s{S_T}, s{S_T}, 4\nv_add_u32 v{t1}, s{S_T}, v{t1}")
    for kt in range(2):
        for i in range(4):
            A(f"""v_lshlrev_b32 v{t2}, 2, v{t0}
            v_add_u32 v{t2}, {16*kt+i}, v{t2}
            v_cmp_le_i32 {sr(S_MSK+8*kt+2*i,2)}, v{t2}, v{t1}""")
    A(f"s_mov_b32 s{S_MSK+16}, 0\ns_mov_b32 s{S_MSK+17}, -1\ns_mov_b32 s{S_CSC}, {hexf(CSC)}")
    l = A.newlabel('a_i')
    A(f"""v_bfe_u32 v{t1}, v0, 4, 1
    v_lshlrev_b32 v{t1}, 2, v{t1}
    v_sub_u32 v{V_X3}, v{V_X2}, v{t1}
    s_cmp_lg_u32 s{w}, 0
    s_cbranch_scc1 {l}
    v_lshrrev_b32 v{t2}, 5, v0
    v_lshl_add_u32 v{V_X2}, v{t2}, 8, v{V_X2}
    {l}:""")
    A(f"""s_mul_i32 s{S_T}, s{S_H}, 12288
    s_add_u32 s{S_C1}, s{S_T}, {WS_KF}
    s_add_u32 s{S_C2}, s{S_T}, {WS_QF}
    s_lshl_b32 s{S_C3}, s{S_HL}, 9
    s_add_u32 s{S_C3}, s{S_C3}, {P_OFF}
    s_lshr_b32 s{S_T+1}, s{S_HL}, 1
    s_lshl_b32 s{S_T+1}, s{S_T+1}, 8
    s_and_b32 s{S_T+2}, s{S_HL}, 1
    s_lshl_b32 s{S_T+2}, s{S_T+2}, 3
    s_add_u32 s{S_C4}, s{S_T+1}, s{S_T+2}
    s_add_u32 s{S_C4}, s{S_C4}, {P_OFF+4096}
    s_sub_u32 s{S_T}, s{w}, 1
    s_and_b32 s{S_T}, s{S_T}, 1
    s_mul_i32 s{S_T}, s{S_T}, 10240
    s_add_u32 s{S_T}, s{S_T}, {PX_OFF}
    s_add_u32 s{S_T}, s{S_T}, s{S_CUR}
    s_lshl_b32 s{S_C5}, s{S_HL}, 10
    s_add_u32 s{S_C5}, s{S_C5}, s{S_T}
    s_lshl_b32 s{S_C6}, s{S_HL}, 8
    s_add_u32 s{S_C6}, s{S_C6}, s{S_T}
    s_add_u32 s{S_C6}, s{S_C6}, 8192
    s_add_u32 s{S_C3}, s{S_C3}, s{S_CUR}
    s_add_u32 s{S_C4}, s{S_C4}, s{S_CUR}
    s_mul_i32 s{S_T}, s{w}, 3072
    s_add_u32 s{S_C1}, s{S_C1}, s{S_T}
    s_add_u32 s{S_C2}, s{S_C2}, s{S_T}
    s_add_u32 s{S_O1}, s{S_T}, {L_X}""")
    def bulk_pieces():
        P = []
        for m, sp in enumerate((S_C1, S_C2)):
            for i in range(3):
                x = f"s_add_u32 m0, s{S_O1}, {m*12288}\n" if i == 0 else ''
                if not NOKQ: x += bdma(V_LANE16, sp, i*1024)
                if i == 2: x += f"\ns_add_u32 s{sp}, s{sp}, {SEG_QKV}"
                P.append(x)
        return P
    l = A.newlabel('a_i')
    l2 = A.newlabel('a_i')
    for i in range(4): A(f"v_mov_b32 v{MOP+4+i}, -1")
    A(f"s_cmp_lg_u32 s{w}, 0\ns_cbranch_scc1 {l}")
    A(bst(2, MOP+4, V_X2, S_C3, 0, 'sc1')); A(bst(1, MOP+4, V_X3, S_C4, 0, 'sc1'))
    A(f"s_branch {l2}\n{l}:")
    for sl in range(4):
        A(f"s_add_u32 s{S_T}, s{S_C5}, {sl*32768}\ns_add_u32 s{S_T+1}, s{S_C6}, {sl*32768}")
        A(bst(4, MOP+4, V_LANE16, S_T, 0, 'sc1')); A(bst(2, MOP+4, V_X2, S_T+1, 0, 'sc1'))
    A(f"{l2}:")
    checkin(A, s_dbg)
    A(f"""s_load_dwordx4 s[{S_A}:{S_A+3}], s[0:1], {KA_WQ}
    s_mul_i32 s{S_T}, s{S_H}, 384
    s_mul_i32 s{S_T+1}, s{w}, 96
    s_add_u32 s{S_T}, s{S_T}, s{S_T+1}
    s_waitcnt lgkmcnt(0)""")
    add64(A, S_A, S_A, f"s{S_T}"); add64(A, S_B, S_B, f"s{S_T}")
    load_w48(A, S_A, lambda kp, t: posA(kp, 2*t))
    load_w48(A, S_B, lambda kp, t: posA(kp, 2*t+1))
    A("s_barrier")
    l = A.newlabel('a_i')
    A(f"s_cmp_lg_u32 s{w}, 0\ns_cbranch_scc1 {l}\nv_mov_b32 v0, v{V_X3}\n{l}:")
    waitall(A, s_dbg, exitlab, hooks['total'], s_slow=S_SLOW)
    H(hooks, 'wait_in', A, True)
    for x in bulk_pieces(): A(x)
    A(f"s_add_u32 s{S_O1}, s{S_O1}, 24576\ns_mov_b32 s{S_O3}, -24576")
    if slow_too: A(f"s_cmp_lg_u32 s{S_SLOW}, 0\ns_cbranch_scc1 a_loop_slow")
    for ver in (['', '_slow'] if slow_too else ['']):
        LF = 'sc1' if ver else ''
        A(f"a_loop{ver}:")
        lg = Lg(A)
        for i in range(4): stg_load(lg, i)
        for i in range(24): A(f"v_mov_b32 v{ACC+i}, 0")
        H(hooks, 'wait_in', A, False)
        H(hooks, 'stamp', A, 0)
        if ASLEEP: A(f"s_sleep {ASLEEP}")
        ingest_mem(A, lg, exitlab)
        H(hooks, 'stamp', A, 1)
        bulk = bulk_pieces() if not KQW3 else []
        seq = [(kp, t) for kp in range(3) for t in range(6)] + [(kp, 2*tp+x) for tp in range(3) for kp in range(3, 10) for x in range(2)]
        KX = [MOP, MOP+4, MOP+8, STG+16, STG+20, STG+24, STG+28, STG, STG+4, STG+8, STG+12, ACC+4]
        kx_at = {20: [0], 22: [1], 24: [2], 27: [3], 29: [4], 31: [5], 33: [6], 35: [7], 37: [8], 39: [9], 41: [10], 46: [11]}
        S0, S1, SM = ACC+8, ACC+12, ACC
        def epi_ops(tp):
            Q, K = ACC + 8*tp, ACC + 8*tp + 4
            ops = [f"v_permlane32_swap_b32 v{Q+r}, v{K+r}" for r in range(4)]
            if tp < 2: ops += [f"v_add_f32 v{Q+r}, v{Q+r}, v{K+r}" for r in range(4)]
            else: ops += [f"v_pk_add_f32 {vr(Q+r,2)}, {vr(Q+r,2)}, {vr(K+r,2)}" for r in (0, 2)]
            ops += [f"v_cvt_pk_bf16_f32 v{K}, v{Q}, v{Q+1}", f"v_cvt_pk_bf16_f32 v{K+1}, v{Q+2}, v{Q+3}"]
            ops += [('ds', f"ds_write_b64 v{V_TW}, {vr(K,2)} offset:{L_T + tp*128}")]
            return ops
        pend = []
        for p, (kp, t) in enumerate(seq):
            if p == AB1:
                lg.need(('mw', 2)); A("s_barrier"); H(hooks, 'stamp', A, 5); read_mem_frags(A, lg)
                H(hooks, 'after_b1', A)
            kind, x = wloc(p)
            if kind == 'lds': lg.need(('w', x))
            if kp >= 3: lg.need(('m', kp))
            smf(A, ACC+4*t, MOP+4*kp, wreg(p))
            if kind == 'lds' and x + 4 < 10: stg_load(lg, x+4)
            for f in kx_at.get(p, []):
                lg.ds(f"ds_read_b128 {vr(KX[f],4)}, v{V_X1} offset:{f*1024}", ('kx', f))
            if p == 30: pend += [f"v_mov_b32 v{V_X3}, 0x{NEG:x}"]
            if p > AB1 and (p - AB1) % KQP == 1 and bulk: A(bulk.pop(0))
            if p == 34: pend += epi_ops(0) + [f"v_cndmask_b32 v{SM+r}, v{V_X3}, 0, {sr(S_MSK+16,2)}" for r in range(3)]
            if p == 48: pend += epi_ops(1) + [f"v_cndmask_b32 v{SM+3}, v{V_X3}, 0, {sr(S_MSK+16,2)}"]
            if pend:
                o = pend.pop(0)
                if isinstance(o, tuple): lg.ds(o[1])
                else: A(o)
        assert not pend and not bulk
        lx, l3, lend = f'a_xrows{ver}', f'a_w3{ver}', f'a_end{ver}'
        A(f"s_cmp_lg_u32 s{w}, 0")
        for o in epi_ops(2):
            if isinstance(o, tuple): lg.ds(o[1])
            else: A(o)
        lg.all(); A("s_barrier")
        H(hooks, 'stamp', A, 2)
        A(f"s_cbranch_scc1 {lx}")
        QK = MOP + 12
        QQ = [MOP+36, ACC+16, ACC+20]
        lg = Lg(A)
        def rd_qq(kk):
            for q in range(2): lg.ds(f"ds_read_b64_tr_b16 {vr(QQ[kk%3]+2*q,2)}, v{V_JUNK} offset:{L_T + kk*256 + q*32}", ('qq', kk))
        def rd_qk(kk):
            for q in range(2): lg.ds(f"ds_read_b64_tr_b16 {vr(QK+4*kk+2*q,2)}, v{V_TR} offset:{L_T + kk*256 + q*32}", ('qk', kk))
        for kk in range(3): rd_qq(kk); rd_qk(kk)
        for kk in range(6):
            lg.need(('qq', kk))
            b = vr(QQ[kk%3], 4)
            A(f"v_mfma_f32_16x16x32_bf16 {vr(S0,4)}, {vr(KX[kk],4)}, {b}, {'0' if kk == 0 else vr(S0,4)}")
            A(f"v_mfma_f32_16x16x32_bf16 {vr(S1,4)}, {vr(KX[6+kk],4)}, {b}, {'0' if kk == 0 else vr(S1,4)}")
            lg.need(('qk', kk))
            A(f"v_mfma_f32_16x16x32_bf16 {vr(SM,4)}, {vr(QK+4*kk,4)}, {b}, {vr(SM,4)}")
            if kk + 3 < 6: rd_qq(kk+3); rd_qk(kk+3)
        H(hooks, 'stamp', A, 4)
        E = MOP; M_, T_, L_, G_ = MOP+8, MOP+9, MOP+10, MOP+11
        for n, s_ in enumerate((S0, S1, SM)):
            for j in range(2):
                A(f"v_cndmask_b32 v{E+2*n+j}, v{s_+j}, v{s_+2+j}, {sr(S_HI,2)}")
        A(f"""v_max3_f32 v{M_}, v{E}, v{E+1}, v{E+2}
        v_max3_f32 v{M_}, v{M_}, v{E+3}, v{E+4}
        v_max_f32 v{M_}, v{M_}, v{E+5}
        v_mul_f32 v{M_}, s{S_CSC}, v{M_}
        v_fma_f32 v{E}, v{E}, s{S_CSC}, -v{M_}
        v_fma_f32 v{E+1}, v{E+1}, s{S_CSC}, -v{M_}
        v_max_f32_dpp v{G_}, v{M_}, v{M_} row_ror:8 row_mask:0xf bank_mask:0xf
        v_mov_b32 v{T_}, v{G_}
        v_fma_f32 v{E+2}, v{E+2}, s{S_CSC}, -v{M_}
        v_fma_f32 v{E+3}, v{E+3}, s{S_CSC}, -v{M_}
        v_permlane16_swap_b32 v{G_}, v{T_}
        v_max_f32 v{G_}, v{G_}, v{T_}
        v_mov_b32 v{T_}, v{G_}
        v_fma_f32 v{E+4}, v{E+4}, s{S_CSC}, -v{M_}
        v_fma_f32 v{E+5}, v{E+5}, s{S_CSC}, -v{M_}
        v_permlane32_swap_b32 v{G_}, v{T_}
        v_max_f32 v{G_}, v{G_}, v{T_}
        v_sub_f32 v{G_}, v{M_}, v{G_}""")
        for j in range(6): A(f"v_exp_f32 v{E+j}, v{E+j}")
        A(f"""v_exp_f32 v{G_}, v{G_}
        v_pk_add_f32 {vr(M_,2)}, {vr(E,2)}, {vr(E+2,2)}
        v_pk_add_f32 {vr(M_,2)}, {vr(M_,2)}, {vr(E+4,2)}
        v_add_f32 v{L_}, v{M_}, v{T_}
        v_mul_f32 v{L_}, v{L_}, v{G_}
        v_add_f32_dpp v{L_}, v{L_}, v{L_} row_ror:8 row_mask:0xf bank_mask:0xf""")
        xlane_sum_g(A, L_, T_)
        A(f"""v_rcp_f32 v{L_}, v{L_}
        v_mul_f32 v{L_}, v{L_}, v{G_}""")
        for j in range(3): A(f"v_pk_mul_f32 {vr(E+2*j,2)}, {vr(E+2*j,2)}, {vr(L_,2)} op_sel_hi:[1,0]")
        for n in range(3): A(f"v_cvt_pk_bf16_f32 v{E+16+n}, v{E+2*n}, v{E+2*n+1}")
        A(f"v_and_or_b32 v{E+16}, v{E+16}, -2, s{S_TAG}\nv_and_or_b32 v{E+18}, v{E+18}, -2, s{S_TAG}")
        A(bst(2, E+16, V_X2, S_C3, 0, LF))
        A(f"s_mov_b32 exec_lo, 0")
        A(bst(1, E+18, 0, S_C4, 0, LF))
        A("s_mov_b32 exec_lo, -1")
        H(hooks, 'stamp', A, 3)
        A(f"s_branch {lend}")
        A(f"{l3}:")
        H(hooks, 'steplog', A)
        if KQW3:
            for m, sp in enumerate((S_C1, S_C2)):
                for i in range(12):
                    if i % 3 == 0: A(f"s_add_u32 m0, s{S_O1}, {m*12288 + i*1024 - 9216}\ns_add_u32 s{S_T}, s{sp}, {i*1024 - 9216}")
                    if not NOKQ: A(bdma(V_LANE16, S_T, (i % 3)*1024))
                A(f"s_add_u32 s{sp}, s{sp}, {SEG_QKV}")
        A(f"s_sleep {(7 if KQW3 else 12) if ASLEEP else 0}\ns_branch {lend}")
        A(f"{lx}:\ns_cmp_eq_u32 s{w}, 3\ns_cbranch_scc1 {l3}")
        lg = Lg(A)
        A(f"s_mul_i32 s{S_T}, s{w}, 6144\nv_add_u32 v{V_JUNK}, s{S_T}, v{V_X1}")
        def rd_qx(kk): lg.ds(f"ds_read_b128 {vr(QQ[kk%3],4)}, v{V_JUNK} offset:{6144 + kk*1024}", ('qq', kk))
        for kt, s_ in enumerate((S0, S1)):
            for r in range(4): A(f"v_cndmask_b32 v{s_+r}, v{V_X3}, 0, {sr(S_MSK+8*kt+2*r,2)}")
        for kk in range(3): rd_qx(kk); rd_qk(kk)
        for kk in range(6):
            lg.need(('qq', kk))
            b = vr(QQ[kk%3], 4)
            A(f"v_mfma_f32_16x16x32_bf16 {vr(S0,4)}, {vr(KX[kk],4)}, {b}, {vr(S0,4)}")
            A(f"v_mfma_f32_16x16x32_bf16 {vr(S1,4)}, {vr(KX[6+kk],4)}, {b}, {vr(S1,4)}")
            lg.need(('qk', kk))
            A(f"v_mfma_f32_16x16x32_bf16 {vr(SM,4)}, {vr(QK+4*kk,4)}, {b}, {vr(SM,4)}")
            if kk + 3 < 6: rd_qx(kk+3); rd_qk(kk+3)
        vals = [S0+i for i in range(4)] + [S1+i for i in range(4)] + [SM+i for i in range(4)]
        A(f"v_max3_f32 v{M_}, v{vals[0]}, v{vals[1]}, v{vals[2]}")
        for j in range(3, 11, 2): A(f"v_max3_f32 v{M_}, v{M_}, v{vals[j]}, v{vals[j+1]}")
        A(f"v_max_f32 v{M_}, v{M_}, v{vals[11]}")
        xlane_max_g(A, M_, T_)
        A(f"v_mul_f32 v{M_}, s{S_CSC}, v{M_}")
        for v in vals: A(f"v_fma_f32 v{v}, v{v}, s{S_CSC}, -v{M_}")
        for v in vals: A(f"v_exp_f32 v{v}, v{v}")
        A(f"v_add_f32 v{L_}, v{vals[0]}, v{vals[1]}")
        for v in vals[2:]: A(f"v_add_f32 v{L_}, v{L_}, v{v}")
        xlane_sum_g(A, L_, T_)
        A(f"v_rcp_f32 v{L_}, v{L_}")
        for v in vals: A(f"v_mul_f32 v{v}, v{v}, v{L_}")
        for n in range(6): A(f"v_cvt_pk_bf16_f32 v{E+n}, v{vals[2*n]}, v{vals[2*n+1]}")
        A(f"""s_bfe_u32 s{S_T}, s{S_STEP}, 0x10002
        s_and_b32 s{S_T+1}, s{S_STEP}, 3
        s_lshl_b32 s{S_T+1}, s{S_T+1}, 15
        s_add_u32 s{S_T+2}, s{S_T+1}, s{S_C6}
        s_add_u32 s{S_T+1}, s{S_T+1}, s{S_C5}
        v_and_or_b32 v{E}, v{E}, -2, s{S_T}
        v_and_or_b32 v{E+4}, v{E+4}, -2, s{S_T}""")
        A(bst(4, E, V_LANE16, S_T+1, 0, LF))
        A("s_mov_b32 exec_lo, 0")
        A(bst(2, E+4, V_X2, S_T+2, 0, LF))
        A("s_mov_b32 exec_lo, -1")
        A(f"{lend}:")
        H(hooks, 'stamp', A, 6)
        next_step(A)
        A(f"""s_add_u32 s{S_O1}, s{S_O1}, s{S_O3}
        s_sub_u32 s{S_O3}, 0, s{S_O3}
        v_add_u32 v{V_X1}, s{S_O3}, v{V_X1}
        s_cmp_lt_u32 s{S_STEP}, {NSEG}
        s_cbranch_scc1 a_loop{ver}
        s_branch a_fin""")
    A("a_fin:")
    H(hooks, 'final', A)
    A(f"s_branch {exitlab}")

def posB_v(kp, t): return kp*3 + t if kp < 3 else 9 + t*7 + (kp-3)
def posB_o(pr, kk): return 30 + (kk*2 + pr if pr < 2 else pr*6 + kk)

def role_B(A, exitlab, s_dbg, hooks, slow_too=True):
    w = S_WAVE
    common_init(A)
    t0, t1, t2 = MOP, MOP+1, MOP+2
    A(f"""v_lshrrev_b32 v{t0}, 4, v0
    v_and_b32 v{t1}, 1, v{t0}
    v_mul_u32_u24 v{V_TW}, 1568, v{t1}
    v_and_b32 v{t1}, 15, v0
    s_mul_i32 s{S_T}, s{w}, 48
    v_add_u32 v{t1}, s{S_T}, v{t1}
    v_lshl_add_u32 v{V_TW}, v{t1}, 3, v{V_TW}
    v_lshrrev_b32 v{t1}, 5, v0
    v_lshl_add_u32 v{V_X1}, v{t1}, 2, v{V_TW}
    v_lshl_add_u32 v{V_TW}, v{t1}, 7, v{V_TW}
    v_and_b32 v{t1}, 1, v0
    v_mul_u32_u24 v{V_TR}, 1568, v{t1}
    v_bfe_u32 v{t1}, v0, 2, 2
    v_lshl_add_u32 v{V_TR}, v{t1}, 3, v{V_TR}
    v_lshl_add_u32 v{V_TR}, v{t0}, 6, v{V_TR}
    v_and_b32 v{t1}, 15, v0
    v_lshlrev_b32 v{V_X2}, 4, v{t1}
    v_and_b32 v{t1}, 1, v{t0}
    v_lshl_add_u32 v{V_X2}, v{t1}, 3, v{V_X2}
    v_lshrrev_b32 v{t1}, 5, v0
    v_lshl_add_u32 v{V_X2}, v{t1}, 10, v{V_X2}""")
    A(f"""s_lshr_b32 s{S_T}, s{S_HL}, 2
    s_mul_i32 s{S_T}, s{S_T}, 40960
    s_mul_i32 s{S_T+1}, s{w}, 10240
    s_add_u32 s{S_T}, s{S_T}, s{S_T+1}
    s_and_b32 s{S_T+1}, s{S_HL}, 3
    s_lshl_b32 s{S_T+1}, s{S_T+1}, 8
    s_add_u32 s{S_T}, s{S_T}, s{S_T+1}
    s_add_u32 s{S_T}, s{S_T}, s{S_CUR}
    s_add_u32 s{S_C1}, s{S_T}, {Y_OFF}
    s_add_u32 s{S_C2}, s{S_C1}, 4096
    s_add_u32 s{S_C3}, s{S_C1}, 8192
    v_mov_b32 v{MOP+4}, -1
    v_mov_b32 v{MOP+5}, -1""")
    YSO = [S_C1, S_C2, S_C3]
    for pr in range(5): A(bst(2, MOP+4, V_X2, YSO[pr//2], (pr % 2)*2048, 'sc1'))
    checkin(A, s_dbg)
    A(f"""s_load_dwordx4 s[{S_A}:{S_A+3}], s[0:1], {KA_WV}
    s_mul_i32 s{S_T}, s{S_H}, 384
    s_mul_i32 s{S_T+1}, s{w}, 96
    s_add_u32 s{S_T}, s{S_T}, s{S_T+1}
    s_mul_i32 s{S_T+1}, s{S_H}, 245760
    s_mul_i32 s{S_T+2}, s{w}, 320
    s_add_u32 s{S_T+1}, s{S_T+1}, s{S_T+2}
    s_waitcnt lgkmcnt(0)""")
    add64(A, S_A, S_A, f"s{S_T}"); add64(A, S_B, S_B, f"s{S_T+1}")
    load_w48(A, S_A, posB_v)
    d_, t_ = MOP+2, MOP+3
    A(f"""v_bfe_u32 v{d_}, v0, 2, 1
    v_lshrrev_b32 v{t_}, 4, v0
    v_lshl_add_u32 v{d_}, v{t_}, 2, v{d_}
    v_mul_u32_u24 v{d_}, 320, v{d_}
    v_bfe_u32 v{t_}, v0, 3, 1
    v_lshl_add_u32 v{d_}, v{t_}, 5, v{d_}
    v_and_b32 v{t_}, 3, v0
    v_lshl_add_u32 v{d_}, v{t_}, 3, v{d_}
    v_add_u32 v{d_}, s{S_T+4}, v{d_}""")
    def reads(A, r, off):
        for pr in range(5):
            read_operand(A, posB_o(pr, r), MOP+2, off + pr*64, 320, hrows=16)
    load_w_rows(A, S_B, 1280, 20, 192, 32, 2, S_T+4, 0, S_T, MOP, reads)
    A("s_barrier")
    waitall(A, s_dbg, exitlab, hooks['total'], s_slow=S_SLOW)
    if slow_too: A(f"s_cmp_lg_u32 s{S_SLOW}, 0\ns_cbranch_scc1 b_loop_slow")
    for ver in (['', '_slow'] if slow_too else ['']):
        LF = 'sc1' if ver else ''
        A(f"b_loop{ver}:")
        lg = Lg(A)
        for i in range(4): stg_load(lg, i)
        for i in range(24): A(f"v_mov_b32 v{ACC+i}, 0")
        H(hooks, 'stamp', A, 0)
        if BSLEEP: A(f"s_sleep {BSLEEP}")
        ingest_mem(A, lg, exitlab)
        H(hooks, 'stamp', A, 1)
        seqv = [(kp, t) for kp in range(3) for t in range(3)] + [(kp, t) for t in range(3) for kp in range(3, 10)]
        pend = []
        for p, (kp, t) in enumerate(seqv):
            if p == BB1:
                lg.need(('mw', 2)); A("s_barrier"); read_mem_frags(A, lg)
                H(hooks, 'after_b1', A)
            kind, x = wloc(p)
            if kind == 'lds': lg.need(('w', x))
            if kp >= 3: lg.need(('m', kp))
            smf(A, ACC+4*t, MOP+4*kp, wreg(p))
            if kind == 'lds' and x + 4 < 10: stg_load(lg, x+4)
            if p == 25:
                a, b = ACC, ACC+4
                pend += [f"v_permlane32_swap_b32 v{a+r}, v{b+r}" for r in range(4)]
                pend += [f"v_pk_add_f32 {vr(a,2)}, {vr(a,2)}, {vr(b,2)}\nv_pk_add_f32 {vr(a+2,2)}, {vr(a+2,2)}, {vr(b+2,2)}"]
            if pend: A(pend.pop(0))
        assert not pend
        A(f"v_cvt_pk_bf16_f32 v{ACC+4}, v{ACC}, v{ACC+1}\nv_cvt_pk_bf16_f32 v{ACC+5}, v{ACC+2}, v{ACC+3}")
        lg.ds(f"ds_write_b64 v{V_TW}, {vr(ACC+4,2)} offset:{L_T}")
        YA = [ACC+12, ACC+16, ACC+20, MOP+24, MOP+28]
        c = ACC + 8
        A(f"""v_permlane32_swap_b32 v{c}, v{c+2}
        v_permlane32_swap_b32 v{c+1}, v{c+3}
        v_pk_add_f32 {vr(c,2)}, {vr(c,2)}, {vr(c+2,2)}
        v_cvt_pk_bf16_f32 v{c}, v{c}, v{c+1}""")
        lg.ds(f"ds_write_b32 v{V_X1}, v{c} offset:{L_T+256}")
        for i in range(8): A(f"v_mov_b32 v{MOP+24+i}, 0")
        lg.all(); A("s_barrier")
        H(hooks, 'stamp', A, 2)
        for kk in range(6):
            for q in range(2):
                lg.ds(f"ds_read_b64_tr_b16 {vr(MOP+4*kk+2*q,2)}, v{V_TR} offset:{L_T + kk*256 + q*32}", ('v', kk))
        def yepi(pr):
            a = YA[pr]
            return [f"v_cvt_pk_bf16_f32 v{a}, v{a}, v{a+1}", f"v_cvt_pk_bf16_f32 v{a+1}, v{a+2}, v{a+3}",
                    f"v_and_or_b32 v{a}, v{a}, -2, s{S_TAG}\n" + bst(2, a, V_X2, YSO[pr//2], (pr % 2)*2048, LF)]
        pend = []
        seqy = sorted([(posB_o(pr, kk), pr, kk) for pr in range(5) for kk in range(6)])
        for p, pr, kk in seqy:
            kind, x = wloc(p)
            if kind == 'lds': lg.need(('w', x))
            lg.need(('v', kk))
            smf(A, YA[pr], MOP+4*kk, wreg(p))
            if p == 43: pend += yepi(0) + yepi(1)
            if p == 50: pend += yepi(2)
            if p == 56: pend += yepi(3)
            if pend: A(pend.pop(0))
        for o in pend + yepi(4): A(o)
        H(hooks, 'stamp', A, 3)
        next_step(A)
        A(f"""s_cmp_lt_u32 s{S_STEP}, {NSEG}
        s_cbranch_scc1 b_loop{ver}
        s_branch b_fin""")
    A("b_fin:")
    H(hooks, 'final', A)
    A(f"s_branch {exitlab}")

GREP = int(os.environ.get('GREP', '6'))
GPRE = int(os.environ.get('GPRE', '3'))
GGAP = int(os.environ.get('GGAP', '3'))
PPIPE = int(os.environ.get('PPIPE', '2'))
GMODE = os.environ.get('GMODE', 'load')
QREJ = int(os.environ.get('QREJ', '1'))
GLOOPGAP = int(os.environ.get('GLOOPGAP', '0'))

def role_R(A, exitlab, s_dbg, hooks, slow_too=True):
    w = S_WAVE
    LU, LY = 0, 98304
    VL, VIDX, VT, VG, VM, VTM, VU, VY = 1, V_IDX, 2, 3, 4, 5, 6, 7
    A(f"""v_lshlrev_b32 v{VL}, 4, v0
    s_mov_b32 s{S_HI}, 0xff00ff00
    s_mov_b32 s{S_HI+1}, 0xff00ff00
    v_mov_b32 v{VIDX}, 0x4444
    v_mov_b32 v{VT}, 0xeeee
    v_cndmask_b32 v{VIDX}, v{VIDX}, v{VT}, {sr(S_HI,2)}
    s_mov_b32 s{S_SEL0}, 0x00003f80
    s_mov_b32 s{S_SEL1}, 0x3f800000
    s_lshl_b32 s{S_CUR}, s{S_GRP}, 18
    s_add_u32 s{S_CUR}, s{S_CUR}, {LBASE}
    s_mov_b32 s{S_TAG}, 0
    s_mov_b32 s{S_STEP}, 0
    s_mov_b32 s{S_EVEN}, 0x55555555
    s_mov_b32 s{S_EVEN+1}, 0x55555555
    s_cmp_ge_u32 s{w}, 2
    s_cbranch_scc1 r_x""")
    S_UGc, S_UDc, S_ULc = S_MSK+8, S_MSK+9, S_MSK+10
    A(f"""s_lshl_b32 s{S_T+1}, s{S_GRP}, 1
    s_add_u32 s{S_T+1}, s{S_T+1}, s{w}
    s_mul_i32 s{S_UGc}, s{S_T+1}, {4*40960}
    s_lshl_b32 s{S_T+1}, s{S_HL}, 12
    s_add_u32 s{S_UGc}, s{S_UGc}, s{S_T+1}
    s_add_u32 s{S_UGc}, s{S_UGc}, {WS_UF}
    s_lshl_b32 s{S_ULc}, s{w}, 14
    s_mov_b32 s{S_UDc}, 0""")
    def dma_pieces():
        P = []
        for hh in range(4):
            for t_ in range(4):
                x = ''
                if hh == 0 and t_ == 0: x += f"s_add_u32 s{S_T}, s{S_UDc}, s{S_ULc}\n"
                if t_ == 0: x += f"s_add_u32 m0, s{S_T}, {hh*4096}\n"
                if not NOU: x += bdma(VL, S_UGc, t_*1024) + '\n'
                if t_ == 3: x += f"s_add_u32 s{S_UGc}, s{S_UGc}, {40960 if hh < 3 else SEG_U - 3*40960}\n"
                if hh == 3 and t_ == 3: x += f"s_add_u32 s{S_UDc}, s{S_UDc}, 32768\ns_cmp_eq_u32 s{S_UDc}, 98304\ns_cselect_b32 s{S_UDc}, 0, s{S_UDc}"
                P.append(x)
        return P
    def dma_u():
        for x in dma_pieces(): A(x)
    S_GS, S_GR = S_MSK, S_MSK+4
    S_YC, S_YC2, S_PC, S_MO, S_UB, S_TAGN, S_GD = S_C1, S_C2, S_C3, S_C4, S_C5, S_C6, S_O1
    A(f"""s_load_dwordx2 {sr(S_A,2)}, s[0:1], {KA_MEM0}
    s_lshl_b32 s{S_T}, s{S_HL}, 1
    s_add_u32 s{S_T}, s{S_T}, s{w}
    s_lshr_b32 s{S_T+1}, s{S_T}, 4
    s_lshl_b32 s{S_T+1}, s{S_T+1}, 14
    s_and_b32 s{S_T+2}, s{S_T}, 15
    s_lshl_b32 s{S_T+2}, s{S_T+2}, 9
    s_add_u32 s{S_T+1}, s{S_T+1}, s{S_T+2}""")
    for k in range(NG):
        A(f"""s_xor_b32 s{S_T+2}, s{S_GRP}, {k}
        s_lshl_b32 s{S_T+2}, s{S_T+2}, 18
        s_add_u32 s{S_GS+k}, s{S_T+2}, s{S_T+1}""")
    A(f"""s_lshl_b32 s{S_T+1}, s{S_T}, 11
    s_add_u32 s{S_YC}, s{S_T+1}, s{S_CUR}
    s_add_u32 s{S_YC}, s{S_YC}, {Y_OFF}
    s_add_u32 s{S_YC2}, s{S_YC}, 40960
    s_add_u32 s{S_PC}, s{S_CUR}, {P_OFF}
    s_add_u32 s{S_O2}, s{S_PC}, 4096
    s_lshl_b32 s{S_MO}, s{S_T}, 9
    s_add_u32 s{S_MO}, s{S_MO}, s{S_CUR}
    s_add_u32 s{S_MO}, s{S_MO}, {M_OFF}
    s_mov_b32 s{S_UB}, 0
    s_mov_b32 s{S_GD}, {GSLOT}
    v_lshlrev_b32 v{VG}, 3, v0
    s_lshl_b32 s{S_T+1}, s{w}, 11
    v_add_u32 v{VU}, s{S_T+1}, v{VL}
    s_lshl_b32 s{S_T+1}, s{w}, 12
    s_add_u32 s{S_T+1}, s{S_T+1}, {LY}
    v_add_u32 v{VY}, s{S_T+1}, v{VL}""")
    t = 16
    A(f"""v_bfe_u32 v{VM}, v0, 5, 1
    v_bfe_u32 v{t}, v0, 3, 1
    v_lshl_add_u32 v{VM}, v{VM}, 1, v{t}
    v_bfe_u32 v{t}, v0, 4, 1
    v_lshl_add_u32 v{VM}, v{VM}, 1, v{t}
    v_and_b32 v{t}, 1, v0
    v_lshl_add_u32 v{VM}, v{VM}, 1, v{t}
    v_bfe_u32 v{t}, v0, 1, 2
    v_lshl_add_u32 v{VM}, v{VM}, 3, v{t}
    v_lshlrev_b32 v{VM}, 2, v{VM}
    v_cmp_eq_u32 vcc, 0, v{t}
    v_cndmask_b32 v{VTM}, 0, 1, vcc""")
    A(f"""v_bfe_u32 v{t}, v0, 1, 3
    v_mul_u32_u24 v{t}, 1280, v{t}
    v_lshrrev_b32 v{t+1}, 4, v0
    v_lshl_add_u32 v{t}, v{t+1}, 4, v{t}
    v_and_b32 v{t+1}, 1, v0
    v_lshl_add_u32 v{t}, v{t+1}, 3, v{t}
    s_lshl_b32 s{S_T}, s{S_T}, 6
    v_add_u32 v{t}, s{S_T}, v{t}
    s_waitcnt lgkmcnt(0)
    global_load_dwordx2 {vr(t+2,2)}, v{t}, {sr(S_A,2)}
    v_cndmask_b32 v{t+1}, -1, -2, {sr(S_EVEN,2)}
    v_mov_b32 v{t+4}, -1
    v_mov_b32 v{t+5}, -1
    s_waitcnt vmcnt(0)
    v_and_b32 v{t+2}, v{t+1}, v{t+2}""")
    A(bst(2, t+2, VG, S_MO, 0, 'sc1'))
    VGR = 240
    A(f"s_add_u32 s{S_T}, s{S_GS}, {GSLOT}\ns_add_u32 s{S_T+1}, s{S_GS}, 8192\ns_add_u32 s{S_T+2}, s{S_T}, 8192")
    for r in range(GREP):
        A(f"v_add_u32 v{VGR+r}, {r*GBLK}, v{VG}")
        for so in (S_GS, S_T, S_T+1, S_T+2): A(bst(2, t+4, VGR+r, so, 0, 'sc1'))
    checkin(A, s_dbg)
    waitall(A, s_dbg, exitlab, hooks['total'], s_slow=S_SLOW, s_pol=S_POL)
    H(hooks, 'pol', A)
    for k in range(NG): A(f"s_add_u32 s{S_GS+k}, s{S_GS+k}, s{S_POL}")
    H(hooks, 'wait_u', A, 0)
    dma_u()
    A("s_waitcnt vmcnt(0)\ns_barrier")
    if slow_too: A(f"s_cmp_lg_u32 s{S_SLOW}, 0\ns_cbranch_scc1 r_loop_slow")
    UR = lambda t_, hh: 32 + 32*t_ + 4*hh
    YR = lambda t_, q: 96 + 8*t_ + 4*q
    PS = lambda st, f: 112 + 20*st + 4*f
    RA = 16
    GO, GF = 24, 26
    GS = lambda st, k: 172 + 8*st + 2*k
    def ypark():
        for t_ in range(2):
            for q in range(2): A(f"ds_write_b128 v{VY}, {vr(YR(t_,q),4)} offset:{t_*2048+q*1024}")
        A(f"v_xor_b32 v{VY}, 8192, v{VY}")
    for ver in (['', '_slow'] if slow_too else ['']):
        LF = 'sc1' if ver else ''
        A(f"r_loop{ver}:")
        H(hooks, 'stamp', A, 0)
        lg = Lg(A)
        A(f"v_add_u32 v{VT}, s{S_UB}, v{VU}")
        for hh in range(8):
            for t_ in range(2):
                lg.ds(f"ds_read_b128 {vr(UR(t_,hh),4)}, v{VT} offset:{hh*4096+t_*1024}")
        A(f"""s_add_u32 s{S_UB}, s{S_UB}, 32768
        s_cmp_eq_u32 s{S_UB}, 98304
        s_cselect_b32 s{S_UB}, 0, s{S_UB}
        s_bfe_u32 s{S_TAGM}, s{S_STEP}, 0x10001
        s_xor_b32 s{S_TAGN}, s{S_TAG}, 1
        s_xor_b32 s{S_T}, s{S_TAGM}, 1
        v_mov_b32 v{GF}, s{S_T}""")
        if XLEAD: A(f"s_sleep {XLEAD}")
        l = A.newlabel('r_nd')
        A(f"s_cmp_ge_u32 s{S_STEP}, {NSEG-1}\ns_cbranch_scc1 {l}")
        H(hooks, 'cached_u', A)
        dma_u()
        H(hooks, 'peek_u', A)
        for r in range(GREP if SCRUB else 0): A(bst(2, GF, VGR+r, S_GS, 0, 'sc1'))
        A(f"{l}:")
        if RSLEEP: A(f"s_sleep {RSLEEP}")
        shadow = None
        yl = lambda b: [bld(4, b+8*t_+4*q, VL, [S_YC, S_YC2][q], t_*1024, 'sc1') for t_ in range(2) for q in range(2)]
        yc = lambda b: [b+2*i for i in range(8)]
        if not YPIPE:
            poll(A, 'ry', yl(YR(0, 0)), yc(YR(0, 0)), S_TAG, exitlab, shadow)
        else:
            Y0, Y1 = 220, YR(0, 0)
            lp, n0, jj = A.newlabel('py'), A.newlabel('py'), A.newlabel('py')
            for x in yl(Y0): A(x)
            A(f"s_sleep {YPIPE}\n{lp}:")
            for x in yl(Y1): A(x)
            tick(A, exitlab)
            A("s_waitcnt vmcnt(4)")
            check(A, yc(Y0), S_TAG, n0)
            A(f"s_branch {jj}\n{n0}:")
            for x in yl(Y0): A(x)
            A("s_waitcnt vmcnt(4)")
            check(A, yc(Y1), S_TAG, lp)
            A(f"{jj}:")
        H(hooks, 'stamp', A, 1)
        def pl(st):
            for f in range(4): A(bld(4, PS(st, f), VL, S_PC, f*1024, 'sc1'))
            A(bld(4, PS(st, 4), VL, S_O2, 0, 'sc1'))
        A(f"s_cmp_ge_u32 s{S_STEP}, {NSEG-1}\ns_cbranch_scc1 r_last")
        for st in range(PPIPE-1): pl(st)
        lg.all()
        lp, lok = A.newlabel('rp'), A.newlabel('rok')
        nx = [A.newlabel('rn') for _ in range(PPIPE)]
        for i in range(8): A(f"v_mov_b32 v{RA+i}, 0")
        A(f"{lp}:")
        for st in range(PPIPE):
            pl((st+PPIPE-1) % PPIPE)
            if st == 0: tick(A, exitlab)
            A(f"s_waitcnt vmcnt({5*(PPIPE-1)})")
            ck = [PS(st, f)+j for f in range(4) for j in (0, 2)] + [PS(st, 4)+j for j in ((1, 3) if QREJ else range(4))]
            if QREJ: check(A, [PS(st, 4), PS(st, 4)+2], S_TAG, nx[st] if st < PPIPE-1 else lp)
            ops = [f"v_bitop3_b32 v{V_X3}, v{ck[0]}, v{ck[1]}, s{S_TAG} bitop3:0x7e"]
            ops += [f"v_bitop3_b32 v{V_X3}, v{x}, v{V_X3}, s{S_TAG} bitop3:0xde" for x in ck[2:]]
            ops += [f"v_and_b32 v{V_X3}, 1, v{V_X3}", f"v_cmp_ne_u32 vcc, 0, v{V_X3}"]
            for f in range(5):
                for t_ in range(2):
                    smf(A, RA+4*t_, PS(st, f), UR(t_, 2*f) if f < 4 else YR(t_, 0))
                    A(ops.pop(0))
            for o in ops: A(o)
            A(f"s_nop {4 if QREJ else 2}\ns_cbranch_vccz {lok}")
            for i in range(8): A(f"v_mov_b32 v{RA+i}, 0")
            if st < PPIPE-1: A(f"{nx[st]}:")
            else: A(f"s_branch {lp}")
        A(f"{lok}:")
        H(hooks, 'stamp', A, 2)
        a, b = RA, RA+4
        A(f"s_mov_b64 vcc, {sr(S_EVEN,2)}")
        for r in range(4): A(f"v_permlane32_swap_b32 v{a+r}, v{b+r}")
        A(f"""v_pk_add_f32 {vr(a,2)}, {vr(a,2)}, {vr(b,2)}
        v_pk_add_f32 {vr(a+2,2)}, {vr(a+2,2)}, {vr(b+2,2)}
        v_cvt_pk_bf16_f32 v{b}, v{a}, v{a+1}
        v_cvt_pk_bf16_f32 v{b+1}, v{a+2}, v{a+3}
        v_cndmask_b32_dpp v{GO}, v{b+1}, v{b}, vcc quad_perm:[0,0,2,2] row_mask:0xf bank_mask:0xf
        s_not_b64 vcc, vcc
        v_and_or_b32 v{GO}, v{GO}, -2, s{S_TAGM}
        v_cndmask_b32_dpp v{GO+1}, v{b}, v{b+1}, vcc quad_perm:[1,1,3,3] row_mask:0xf bank_mask:0xf""")
        for r in range(GREP): A(bst(2, GO, VGR+r, S_GS, 0, 'sc1'))
        H(hooks, 'stamp', A, 3)
        ypark()
        A(f"""v_lshlrev_b32 v{GF}, 16, v{GO}
        v_and_b32 v{GF+1}, 0xffff0000, v{GO}
        v_lshlrev_b32 v{GF+2}, 16, v{GO+1}
        v_and_b32 v{GF+3}, 0xffff0000, v{GO+1}""")
        if GDELAY: A(f"s_sleep {GDELAY}")
        def gl(r):
            for k in range(1, NG): A(bld(2, GS(r, k), VGR+r, S_GS+k, 0, 'sc1'))
        def gc(r, lab):
            A(f"""v_bitop3_b32 v{V_X3}, v{GS(r,1)}, v{GS(r,2)}, s{S_TAGM} bitop3:0x7e
            v_bitop3_b32 v{V_X3}, v{GS(r,3)}, v{V_X3}, s{S_TAGM} bitop3:0xde
            v_and_b32 v{V_X3}, 1, v{V_X3}
            v_cmp_ne_u32 vcc, 0, v{V_X3}
            s_cbranch_vccz {lab}""")
        lp, lj = A.newlabel('rg'), A.newlabel('rj')
        oks = [A.newlabel('rgo') for _ in range(GREP)]
        pre = min(GPRE, GREP)
        for r in range(pre):
            gl(r)
            if r < pre-1: A(f"s_sleep {GGAP}")
        for r in range(GREP):
            A(f"s_waitcnt vmcnt({(NG-1)*(min(r+pre, GREP)-1-r)})")
            gc(r, oks[r])
            if r + pre < GREP: gl(r+pre)
        A(f"{lp}:")
        gl(0); tick(A, exitlab)
        A("s_waitcnt vmcnt(0)")
        gc(0, oks[0])
        A(f"s_branch {lp}")
        for st in range(GREP):
            A(f"{oks[st]}:")
            for k in range(1, NG):
                for j in range(4):
                    A(f"v_dot2_f32_bf16 v{GF+j}, v{GS(st,k)+j//2}, s{[S_SEL0, S_SEL1][j % 2]}, v{GF+j}")
            A(f"""v_cvt_pk_bf16_f32 v{GO}, v{GF}, v{GF+2}
            v_cvt_pk_bf16_f32 v{GO+1}, v{GF+1}, v{GF+3}
            v_bfi_b32 v{GO}, v{VTM}, s{S_TAGN}, v{GO}
            v_bfi_b32 v{GO+1}, v{VTM}, s{S_TAGN}, v{GO+1}""")
            A(bst(1, GO, VM, S_MO, 0, LF)); A(bst(1, GO+1, VM, S_MO, 16, LF))
            if st < GREP-1: A(f"s_branch {lj}")
        A(f"{lj}:")
        H(hooks, 'stamp', A, 4)
        for k in range(NG): A(f"s_add_u32 s{S_GS+k}, s{S_GS+k}, s{S_GD}")
        A(f"s_sub_u32 s{S_GD}, 0, s{S_GD}")
        next_step(A)
        A(f"s_waitcnt lgkmcnt(0)\ns_barrier")
        H(hooks, 'stamp', A, 5)
        A(f"s_branch r_loop{ver}")
    A("r_last:\ns_waitcnt vmcnt(0)")
    ypark()
    A("s_waitcnt lgkmcnt(0)\ns_barrier")
    H(hooks, 'final', A)
    A(f"s_branch {exitlab}")
    A("r_x:")
    S_UG, S_UD, S_PX, S_OP, S_UR = S_C1, S_C2, S_C3, S_C4, S_C5
    A(f"""s_sub_u32 s{S_T}, s{w}, 2
    s_lshl_b32 s{S_T+1}, s{S_GRP}, 1
    s_add_u32 s{S_T+1}, s{S_T+1}, s{S_T}
    s_mul_i32 s{S_UG}, s{S_T+1}, {4*40960}
    s_lshl_b32 s{S_T+1}, s{S_HL}, 12
    s_add_u32 s{S_UG}, s{S_UG}, s{S_T+1}
    s_add_u32 s{S_UG}, s{S_UG}, {WS_UF}
    s_lshl_b32 s{S_O1}, s{S_T}, 14
    s_mov_b32 s{S_UD}, 0
    s_mov_b32 s{S_UR}, 0
    s_mul_i32 s{S_PX}, s{S_T}, 10240
    s_add_u32 s{S_PX}, s{S_PX}, s{S_CUR}
    s_add_u32 s{S_PX}, s{S_PX}, {PX_OFF}
    s_mul_i32 s{S_OP}, s{S_T}, {20*4096}
    s_lshl_b32 s{S_T+1}, s{S_HL}, 13
    s_add_u32 s{S_OP}, s{S_OP}, s{S_T+1}
    s_lshl_b32 s{S_T+1}, s{S_GRP}, 10
    s_add_u32 s{S_OP}, s{S_OP}, s{S_T+1}
    s_add_u32 s{S_OP}, s{S_OP}, {WS_OP}
    v_add_u32 v{VY}, {LY}, v{VL}""")
    checkin(A, s_dbg)
    waitall(A, s_dbg, exitlab, hooks['total'], s_pol=S_POL)
    H(hooks, 'x_init', A)
    A("s_barrier")
    A("s_barrier")
    PXR, ZR, XA = 16, 64, 96
    A("rx_loop:")
    H(hooks, 'stamp', A, 0)
    A(f"""s_bfe_u32 s{S_TAG}, s{S_STEP}, 0x10002
    s_and_b32 s{S_T+2}, s{S_STEP}, 3
    s_lshl_b32 s{S_T+2}, s{S_T+2}, 15
    s_add_u32 s{S_T+2}, s{S_T+2}, s{S_PX}
    s_add_u32 s{S_T+3}, s{S_T+2}, 4096
    s_add_u32 s{S_T+4}, s{S_T+2}, 8192
    v_add_u32 v{VT}, s{S_UR}, v{VL}""")
    pxl = [bld(4, PXR+4*f, VL, S_T+2+f//4, (f % 4)*1024, 'sc1') for f in range(10)]
    pxc = [PXR+4*f for f in range(10)] + [PXR+34, PXR+38]
    poll(A, 'px', pxl, pxc, S_TAG, exitlab)
    H(hooks, 'stamp', A, 1)
    seq = [(f, t_) for f in range(10) for t_ in range(4)]
    if not XFLAGNOW: H(hooks, 'x_flag', A)
    lg = Lg(A)
    def zrd(n):
        f, t_ = seq[n]
        if f < 8: lg.ds(f"ds_read_b128 {vr(ZR+4*(n%8),4)}, v{VT} offset:{f*4096+t_*1024}", n)
        else: lg.ds(f"ds_read_b128 {vr(ZR+4*(n%8),4)}, v{VY} offset:{t_*2048+(f-8)*1024}", n)
    for n in range(7): zrd(n)
    for n, (f, t_) in enumerate(seq):
        if n + 7 < 40: zrd(n+7)
        lg.need(n)
        A(f"v_mfma_f32_16x16x32_bf16 {vr(XA+4*t_,4)}, {vr(ZR+4*(n%8),4)}, {vr(PXR+4*f,4)}, {'0' if f == 0 else vr(XA+4*t_,4)}")
    A(f"""v_xor_b32 v{VY}, 8192, v{VY}
    s_add_u32 s{S_UR}, s{S_UR}, 32768
    s_cmp_eq_u32 s{S_UR}, 98304
    s_cselect_b32 s{S_UR}, 0, s{S_UR}""")
    for i in range(8): A(f"v_cvt_pk_bf16_f32 v{XA+16+i}, v{XA+2*i}, v{XA+2*i+1}")
    for t_ in range(2):
        A(bst(4, XA+16+4*t_, VL, S_OP, 0, 'sc1'))
        A(f"s_add_u32 s{S_OP}, s{S_OP}, {4096 if t_ < 1 else SEG_OP - 4096}")
    H(hooks, 'stamp', A, 2)
    A(f"""s_add_u32 s{S_STEP}, s{S_STEP}, 1
    s_waitcnt vmcnt(0)""")
    H(hooks, 'stamp', A, 4)
    l = A.newlabel('rx_nf')
    if not XFLAGNOW: A(f"s_cmp_lt_u32 s{S_STEP}, {NSEG-2}\ns_cbranch_scc1 {l}")
    H(hooks, 'x_flag', A)
    A(f"s_cmp_ge_u32 s{S_STEP}, {NSEG}\ns_cbranch_scc1 rx_fin\n{l}:")
    H(hooks, 'stamp', A, 3)
    A("s_barrier\ns_branch rx_loop\nrx_fin:")
    H(hooks, 'final', A)
    A(f"s_branch {exitlab}")
```

```python
from common import *

def load_w_rows(A, s_w, rowstride, nch, nrows, rpr, depth, s_base, v_lane, s_t, vt, reads):
    rpi = 64 // nch
    ni = -(-rpr // rpi)
    slot = rpr * nch * 16
    assert depth * ni <= 63 and nrows % rpr == 0
    voff, t = vt, vt + 1
    magic = (65536 + nch - 1) // nch
    A(f"""v_mul_u32_u24 v{t}, {magic}, v{v_lane}
    v_lshrrev_b32 v{t}, 16, v{t}
    s_mov_b32 s{s_t}, {rowstride - nch*16}
    v_mul_lo_u32 v{voff}, v{t}, s{s_t}
    v_lshl_add_u32 v{voff}, v{v_lane}, 4, v{voff}""")
    def setmask(rows):
        mask = (1 << (rows*nch)) - 1
        A(f"s_mov_b32 exec_lo, 0x{mask & 0xffffffff:x}\ns_mov_b32 exec_hi, 0x{mask >> 32:x}")
    def issue(r):
        setmask(rpi)
        for i in range(ni):
            rows = min(rpi, rpr - i*rpi)
            if rows != rpi: setmask(rows)
            A(f"s_add_u32 m0, s{s_base}, {(r%depth)*slot + i*rpi*nch*16}")
            A(f"global_load_lds_dwordx4 v{voff}, {sr(s_w,2)}")
            add64(A, s_w, s_w, rows*rowstride)
        A("s_mov_b64 exec, -1")
    nr = nrows // rpr
    for r in range(min(depth, nr)): issue(r)
    for r in range(nr):
        A(f"s_waitcnt vmcnt({ni*min(depth-1, nr-1-r)})")
        reads(A, r, (r%depth)*slot)
        A("s_waitcnt lgkmcnt(0)")
        if r + depth < nr: issue(r+depth)

def wreg_u(ct, kk): return 256 + 4*(ct*6+kk)

def u_load_w(A, s_w, s_wave, v_lane, s_t, vt):
    tr = vt + 2; t = vt + 3
    A(f"""v_lshrrev_b32 v{t}, 4, v{v_lane}
    v_lshlrev_b32 v{tr}, 3, v{t}
    v_bfe_u32 v{t}, v{v_lane}, 2, 2
    v_add_u32 v{tr}, v{tr}, v{t}
    v_mul_u32_u24 v{tr}, 320, v{tr}
    v_and_b32 v{t}, 3, v{v_lane}
    v_lshl_add_u32 v{tr}, v{t}, 3, v{tr}
    s_mul_i32 s{s_t}, s{s_wave}, 40960
    v_add_u32 v{tr}, s{s_t}, v{tr}""")
    def reads(A, kk, off):
        for ct in range(10):
            for q in range(2):
                A(f"ds_read_b64_tr_b16 {ur(wreg_u(ct,kk)+2*q,2)}, v{tr} offset:{off + q*4*320 + ct*32}")
    load_w_rows(A, s_w, 1280, 20, 192, 32, 4, s_t, v_lane, s_t+1, vt, reads)

VF0 = 64
UACC = 160
UEP = 176

def u_loop(A, name, s_v, s_o, s_cnt, s_wave, v_lane, s_t, vt, flags, mid_hook=None, pre_dma=None):
    vdma, vrd, vo = vt, vt+1, vt+2
    sdm = s_t
    BUF = 12288
    A(f"""v_lshlrev_b32 v{vrd}, 4, v{v_lane}
    v_mov_b32 v{vo}, v{vrd}
    s_mul_i32 s{sdm}, s{s_wave}, 3072
    v_add_u32 v{vdma}, s{sdm}, v{vrd}
    s_barrier""")
    def dma(buf):
        if pre_dma: pre_dma(A)
        A(f"s_add_u32 m0, s{sdm}, {buf*BUF}")
        for i in range(3):
            A(f"global_load_lds_dwordx4 v{vdma}, {sr(s_v,2)} offset:{i*1024}")
        add64(A, s_v, s_v, SEG_QKV)
    dma(0); dma(1)
    A("s_waitcnt vmcnt(3)\ns_barrier")
    for f in range(12):
        A(f"ds_read_b128 {vr(VF0+4*f,4)}, v{vrd} offset:{f*1024}")
    A(f"s_mov_b32 s{s_t+1}, 0")
    A(f"{name}_loop:")
    def epi(a, e, ct, step, guard):
        if step < 4:
            rt, j = divmod(step, 2)
            A(f"v_cvt_pk_bf16_f32 v{e+step}, v{a+4*rt+2*j}, v{a+4*rt+2*j+1}")
        elif step == 4:
            if guard:
                l = A.newlabel('skip'); A(f"s_cmp_eq_u32 s{s_t+1}, 0\ns_cbranch_scc1 {l}")
            A(f"global_store_dwordx4 v{vo}, {vr(e,4)}, {sr(s_o,2)} offset:{(ct%4)*1024} {flags}")
            if ct % 4 == 3: add64(A, s_o, s_o, 4096)
            if ct == 9: add64(A, s_o, s_o, SEG_U - 8192)
            if guard: A(f"{l}:")
    for par in range(2):
        cur = VF0 + 48*par; nxt = VF0 + 48*(1-par)
        A("s_waitcnt lgkmcnt(0)")
        for ct in range(10):
            a = UACC + 8*(ct%2); pa = UACC + 8*(1-ct%2)
            pct = (ct + 9) % 10
            i = 0
            for kk in range(6):
                for rt in range(2):
                    acc = vr(a+4*rt, 4)
                    A(f"v_mfma_f32_16x16x32_bf16 {acc}, {vr(cur+4*(rt*6+kk),4)}, {ur(wreg_u(ct,kk),4)}, {'0' if kk == 0 else acc}")
                    if 4 <= i < 9: epi(pa, UEP+4*(1-ct%2), pct, i-4, guard=(ct == 0 and par == 0))
                    if ct >= 6 and i % 4 == 0:
                        f = (ct-6)*3 + i//4
                        A(f"ds_read_b128 {vr(nxt+4*f,4)}, v{vrd} offset:{(1-par)*BUF + f*1024}")
                    i += 1
            if ct == 4:
                A("s_waitcnt vmcnt(4)\ns_barrier")
                if mid_hook: mid_hook(A, par)
                dma(par)
    A(f"""s_mov_b32 s{s_t+1}, 1
    s_sub_u32 s{s_cnt}, s{s_cnt}, 1
    s_cmp_lg_u32 s{s_cnt}, 0
    s_cbranch_scc1 {name}_loop""")
    for st in range(5): epi(UACC+8, UEP+4, 9, st, False)
    A("s_waitcnt lgkmcnt(0)")
```

```python
import sys, os
from common import *
from r_ln import *
from r_proj import *
from r_u import *
import r_rec as R
from r_rec import checkin, waitall, wait_flags, wait_flags_wg, put_flag, tick
from r_post import *
STAMP = int(os.environ.get('STAMP', '0'), 0)
DBG = 90
F_QKV = WS_FLAG
F_U = WS_FLAG + 0x4000
F_X = 7*32768
F_LN = F_X + 6144
F_WIN = WS_FLAG + 0x9000
EXIT = 'mega_done'
X, TK, W = R.S_GRP, 2, 3
srd = R.srd

def zero_flag(A, s_off, both=False):
    A(f"""v_mov_b32 v16, 0
    v_lshlrev_b32 v17, 2, v0
    v_add_u32 v18, 8192, v17
    s_mov_b32 exec_hi, 0
    buffer_store_dword v16, v17, {srd}, s{s_off} offen sc1""")
    if both: A(f"buffer_store_dword v16, v18, {srd}, s{s_off} offen sc1")
    A("s_mov_b32 exec_hi, -1")

def wave0(A, fn):
    l = A.newlabel('w0')
    A(f"s_cmp_lg_u32 s{W}, 0\ns_cbranch_scc1 {l}")
    fn()
    A(f"{l}:")

def rt_stamp(A, idx):
    if not STAMP: return
    def f():
        A(f"""s_memrealtime s[86:87]
        s_lshl_b32 s84, s{X}, 5
        s_add_u32 s84, s84, s{TK}
        s_lshl_b32 s84, s84, 6
        s_add_u32 s84, s84, {WS_STAT + 65536 + 4*idx}
        s_waitcnt lgkmcnt(0)""")
        put_flag(A, 84, 86, 15)
    wave0(A, f)

def ln1_duty(A, s_idx):
    A(f"""s_load_dwordx2 s[12:13], s[0:1], {KA_X}
    s_lshl_b32 s16, s{s_idx}, 2
    s_add_u32 s16, s16, s{W}
    s_mul_i32 s16, s16, 20480
    s_waitcnt lgkmcnt(0)""")
    add64(A, 12, 12, 's16')
    A(f"s_add_u32 s16, s16, {WS_XNF}")
    add64(A, 14, 4, 's16')
    ln_rowtile(A, 12, 14, 0, 'sc1')

def k_mega(A):
    A(f""".p2align 8
    mega_kernel:
    s_cmp_ge_u32 s2, 256
    s_cbranch_scc1 {EXIT}
    s_load_dwordx2 s[4:5], s[0:1], {KA_WS}
    s_load_dwordx2 s[{DBG}:{DBG+1}], s[0:1], {KA_DBG}
    s_getreg_b32 s9, hwreg(HW_REG_XCC_ID)
    s_and_b32 s9, s9, 15
    s_and_b32 s{X}, s9, 7
    v_lshrrev_b32 v1, 6, v0
    v_readfirstlane_b32 s{W}, v1
    v_and_b32 v0, 63, v0
    s_mov_b32 s{R.S_TO}, 0
    s_mov_b32 s6, 0x10000000
    s_mov_b32 s7, 0x20000""")
    if STAMP: A("s_memrealtime s[88:89]")
    A(f"""s_waitcnt lgkmcnt(0)
    v_mov_b32 v1, 0
    s_cmp_lg_u32 s{W}, 0
    s_cbranch_scc1 mega_t1
    s_mov_b64 exec, 1
    s_cmp_lg_u32 s2, 0
    s_cbranch_scc1 mega_nocal""")
    A(f"v_mov_b32 v2, {(1<<21) - 16384}\nv_mov_b32 v5, {(1<<21) - 8192}\ns_mov_b32 s20, -1\ns_mov_b32 s21, -1")
    for rep in range(3):
        for v, d in ((2, 20), (5, 21)):
            A(f"""s_memtime s[12:13]
            s_waitcnt lgkmcnt(0)
            global_store_dword v{v}, v1, s[4:5] sc1
            s_waitcnt vmcnt(0)
            s_memtime s[14:15]
            s_waitcnt lgkmcnt(0)
            s_sub_u32 s16, s14, s12
            s_min_u32 s{d}, s{d}, s16""")
    A(f"""s_cmp_lt_u32 s21, s20
    s_cselect_b32 s16, 8192, 0
    s_and_b32 s17, s9, 4
    s_lshl_b32 s17, s17, 11
    s_xor_b32 s16, s16, s17
    v_mov_b32 v2, 72
    v_mov_b32 v3, s16
    global_store_dword v2, v3, s[{DBG}:{DBG+1}] sc1
    mega_nocal:
    v_mov_b32 v3, 1
    s_mov_b32 s12, 0
    mega_tk:
    s_lshl_b32 s14, s{X}, 2
    s_add_u32 s14, s14, 128
    v_mov_b32 v2, s14
    global_atomic_add v4, v2, v3, s[{DBG}:{DBG+1}] sc0
    s_waitcnt vmcnt(0)
    v_readfirstlane_b32 s14, v4
    s_cmp_lt_u32 s14, 32
    s_cbranch_scc1 mega_got
    s_add_u32 s{X}, s{X}, 1
    s_and_b32 s{X}, s{X}, 7
    s_add_u32 s12, s12, 1
    s_cmp_lt_u32 s12, 8
    s_cbranch_scc1 mega_tk
    mega_got:
    s_cmp_eq_u32 s{X}, s9
    s_cbranch_scc1 mega_home
    v_mov_b32 v2, 68
    global_store_dword v2, v3, s[{DBG}:{DBG+1}] sc1
    mega_home:
    v_mov_b32 v5, s{X}
    ds_write_b64 v1, v[4:5]
    s_waitcnt lgkmcnt(0)
    s_mov_b64 exec, -1
    mega_t1:
    s_barrier
    ds_read_b64 v[4:5], v1
    s_waitcnt lgkmcnt(0)
    v_readfirstlane_b32 s{TK}, v4
    v_readfirstlane_b32 s{X}, v5
    s_barrier
    s_cmp_ge_u32 s{TK}, 32
    s_cbranch_scc1 {EXIT}""")
    if STAMP:
        A("s_mov_b32 s71, s88")
        for i in range(72, 88): A(f"s_mov_b32 s{i}, 0")
        wave0(A, lambda: (A(f"s_lshl_b32 s84, s{X}, 5\ns_add_u32 s84, s84, s{TK}\ns_lshl_b32 s84, s84, 6\ns_add_u32 s84, s84, {WS_STAT+65536}"), put_flag(A, 84, 88, 15)))
    rt_stamp(A, 1)
    A(f"""s_cmp_ge_u32 s{X}, 4
    s_cbranch_scc1 mega_hi
    s_cmp_ge_u32 s{TK}, 29
    s_cbranch_scc1 mega_ln2
    s_cmp_ge_u32 s{TK}, 26
    s_cbranch_scc1 mega_win
    s_and_b32 s{R.S_HL}, s{TK}, 7
    s_cmp_ge_u32 s{TK}, 16
    s_cbranch_scc1 mega_R
    s_cmp_ge_u32 s{TK}, 8
    s_cbranch_scc1 mega_B
    s_branch mega_A
    mega_hi:
    s_cmp_ge_u32 s{TK}, 26
    s_cbranch_scc1 mega_sp
    s_cmp_ge_u32 s{TK}, 18
    s_cbranch_scc1 mega_U""")
    A(f"""s_mul_hi_u32 s22, s{TK}, {-(-(1<<32)//6)}
    s_mul_i32 s23, s22, 6
    s_sub_u32 s23, s{TK}, s23
    s_sub_u32 s22, 2, s22
    s_sub_u32 s20, s{X}, 4
    s_mul_i32 s20, s20, 6
    s_add_u32 s23, s23, s20
    s_mul_i32 s30, s22, 24
    s_add_u32 s30, s30, s23
    s_lshl_b32 s30, s30, 7
    s_add_u32 s30, s30, {F_QKV}
    s_lshl_b32 s24, s22, 3
    s_add_u32 s24, s24, {KA_WQ}
    s_load_dwordx2 s[32:33], s[0:1], s24
    s_lshl_b32 s25, s23, 2
    s_add_u32 s25, s25, s{W}
    s_lshl_b32 s26, s25, 7
    s_mul_hi_u32 s27, s25, {-(-(1<<32)//3)}
    s_mul_i32 s28, s27, 3
    s_sub_u32 s28, s25, s28
    s_mul_i32 s27, s27, 12288
    s_lshl_b32 s28, s28, 11
    s_add_u32 s27, s27, s28
    s_mul_i32 s28, s22, {WS_KF-WS_QF}
    s_add_u32 s27, s27, s28
    s_add_u32 s27, s27, {WS_QF}""")
    zero_flag(A, 30); checkin(A, DBG)
    A("s_waitcnt lgkmcnt(0)")
    add64(A, 32, 32, 's26'); add64(A, 34, 4, 's27'); add64(A, 36, 4, WS_XNF)
    load_w64(A, 32, 12288, W, 0, 12, 4)
    rt_stamp(A, 2)
    waitall(A, DBG, EXIT, 256)
    rt_stamp(A, 3)
    A(f"s_mov_b32 s16, {NSEG}\nv_lshlrev_b32 v2, 4, v0")
    def mid(A): wave0(A, lambda: (A(f"s_sub_u32 s17, {NSEG}, s16"), put_flag(A, 30, 17, 12)))
    proj_loop(A, 'proj', 36, 16, W, 0, make_epi_qkv(34, 2, 'sc1'), mid_hook=mid, s_t=12, vt=8)
    A("s_waitcnt vmcnt(0)\ns_barrier"); mid(A)
    rt_stamp(A, 4)
    A(f"s_branch {EXIT}")
    A(f"""mega_U:
    s_load_dwordx2 s[32:33], s[0:1], {KA_WO}
    s_sub_u32 s20, s{X}, 4
    s_lshl_b32 s20, s20, 3
    s_add_u32 s20, s20, s{TK}
    s_sub_u32 s20, s20, 18
    s_lshl_b32 s30, s20, 7
    s_add_u32 s30, s30, {F_U}
    s_mul_i32 s22, s20, 245760
    s_mul_i32 s23, s{W}, 320
    s_add_u32 s22, s22, s23
    s_mul_i32 s23, s20, 12288
    s_add_u32 s23, s23, {WS_VF}
    s_mul_i32 s24, s20, 40960
    s_mul_i32 s25, s{W}, 10240
    s_add_u32 s24, s24, s25
    s_add_u32 s24, s24, {WS_UF}
    s_mul_i32 s25, s20, 192
    v_and_b32 v3, 1, v0
    v_mul_u32_u24 v3, 191, v3
    v_add_u32 v3, s25, v3
    v_lshrrev_b32 v3, 8, v3
    v_lshlrev_b32 v3, 7, v3
    v_add_u32 v3, {F_QKV + 48*128}, v3""")
    zero_flag(A, 30); checkin(A, DBG)
    A("s_waitcnt lgkmcnt(0)")
    add64(A, 32, 32, 's22'); add64(A, 34, 4, 's23'); add64(A, 36, 4, 's24')
    u_load_w(A, 32, W, 0, 12, 4)
    rt_stamp(A, 2)
    waitall(A, DBG, EXIT, 256)
    A(f"s_mov_b32 s16, {NSEG//2}\ns_mov_b32 s17, 0\ns_mov_b32 s18, 0")
    def pre(A):
        A(f"s_add_u32 s17, s17, 1\ns_min_u32 s17, s17, {NSEG}")
        wait_flags(A, 3, 12, 17, EXIT)
    def midu(A, par=None):
        wave0(A, lambda: put_flag(A, 30, 18, 12))
        A("s_add_u32 s18, s18, 1")
    u_loop(A, 'u', 34, 36, 16, W, 0, 12, 8, 'sc1', mid_hook=midu, pre_dma=pre)
    A("s_waitcnt vmcnt(0)\ns_barrier"); midu(A)
    rt_stamp(A, 4)
    A(f"s_branch {EXIT}")
    A(f"""mega_sp:
    s_sub_u32 s20, s{X}, 4
    s_sub_u32 s21, s{TK}, 26
    s_mul_i32 s22, s20, 6
    s_add_u32 s22, s22, s21""")
    ln1_duty(A, 22)
    checkin(A, DBG)
    rt_stamp(A, 2)
    waitall(A, DBG, EXIT, 256)
    A(f"""s_lshl_b32 s30, s20, 1
    s_and_b32 s31, s21, 1
    s_add_u32 s30, s30, s31
    s_lshr_b32 s31, s21, 1
    v_min_u32 v14, 2, v0
    v_lshlrev_b32 v14, 7, v14
    v_add_u32 v14, {F_WIN + 3*128}, v14""")
    def zaddr(A, sc, d):
        A(f"""s_add_u32 s33, s{sc}, {d}
        s_and_b32 s32, s33, 1
        s_mul_i32 s32, s32, 768
        v_add_u32 v15, s32, v14
        s_add_u32 s33, s33, 1""")
    def wait_z(A, sc):
        zaddr(A, sc, 0); wait_flags(A, 15, 140, 33, EXIT, sleep=6)
    def peek_issue(A, sc):
        zaddr(A, sc, 1); A(f"buffer_load_dword v141, v15, {srd}, 0 offen sc1")
    def peek_test(A, sc, lab):
        A(f"v_cmp_gt_u32 vcc, s33, v141\ns_cbranch_vccnz {lab}")
    def wait_z1(A):
        rt_stamp(A, 3)
        A(f"v_subrev_u32 v15, {3*128}, v14\ns_mov_b32 s33, {NSEG-1}")
        wait_flags(A, 15, 140, 33, EXIT, sleep=1)
        A(f"v_add_u32 v15, {3*128}, v14\ns_mov_b32 s33, {NSEG}")
        wait_flags(A, 15, 140, 33, EXIT, sleep=1)
    spatial_role(A, 'sp', 4, 30, 31, W, 0, 12, '', wait_z, wait_z1, peek_issue, peek_test)
    A("s_waitcnt vmcnt(0)")
    rt_stamp(A, 4)
    A(f"s_branch {EXIT}")
    A(f"""mega_ln2:
    s_mul_i32 s24, s{X}, 3
    s_add_u32 s24, s24, s{TK}
    s_sub_u32 s24, s24, 29
    s_lshl_b32 s30, s24, 7
    s_add_u32 s30, s30, {F_LN}""")
    zero_flag(A, 30, True)
    A("s_cmp_ge_u32 s24, 8\ns_cbranch_scc1 mega_ln2w\ns_add_u32 s22, s24, 24")
    ln1_duty(A, 22)
    checkin(A, DBG)
    A("s_branch mega_ln2j\nmega_ln2w:")
    checkin(A, DBG)
    A("s_sub_u32 s22, s24, 8\nmega_wp:")
    wout_prep(A, 4, 22, W, 0, 12, '')
    A("s_add_u32 s22, s22, 4\ns_cmp_lt_u32 s22, 8\ns_cbranch_scc1 mega_wp\ns_barrier\nmega_ln2j:")
    waitall(A, DBG, EXIT, 256, s_pol=28)
    A(f"""s_load_dwordx2 s[26:27], s[0:1], {KA_X}
    s_add_u32 s30, s30, s28
    s_and_b32 s25, s24, 1
    s_lshl_b32 s25, s25, 6
    s_add_u32 s25, s25, {F_X}
    s_add_u32 s25, s25, s28
    v_min_u32 v10, 39, v0
    v_lshlrev_b32 v10, 7, v10
    v_add_u32 v10, s25, v10
    s_waitcnt lgkmcnt(0)
    ln2_loop:
    s_lshr_b32 s25, s24, 1
    s_add_u32 s25, s25, 1""")
    wait_flags_wg(A, 10, 11, 25, EXIT)
    ln2_task(A, 4, 26, 24, W, 0, 12, 'sc1')
    A("s_waitcnt vmcnt(0)\ns_barrier")
    wave0(A, lambda: put_flag(A, 30, 25, 11))
    A(f"s_add_u32 s24, s24, 12\ns_cmp_lt_u32 s24, {2*NSEG}\ns_cbranch_scc1 ln2_loop")
    rt_stamp(A, 4)
    A(f"s_branch {EXIT}")
    A(f"""mega_win:
    s_load_dwordx2 s[32:33], s[0:1], {KA_WIN}
    s_mul_i32 s21, s{X}, 3
    s_add_u32 s21, s21, s{TK}
    s_sub_u32 s21, s21, 26
    s_lshl_b32 s30, s21, 7
    s_add_u32 s30, s30, {F_WIN}
    s_cmp_ge_u32 s21, 6
    s_cselect_b32 s20, 1, 0
    s_mul_i32 s22, s20, 6
    s_sub_u32 s21, s21, s22
    s_lshl_b32 s25, s21, 2
    s_add_u32 s25, s25, s{W}
    s_lshl_b32 s26, s25, 7
    s_mul_i32 s28, s20, {SEG_XN}
    s_add_u32 s28, s28, {WS_HNF}""")
    zero_flag(A, 30); checkin(A, DBG)
    waitall(A, DBG, EXIT, 256, s_pol=29)
    A("s_waitcnt lgkmcnt(0)")
    add64(A, 32, 32, 's26'); add64(A, 36, 4, 's28')
    load_w64(A, 32, 3072, W, 0, 12, 4, kperm=True)
    A(f"""v_lshlrev_b32 v2, 4, v0
    v_mov_b32 v3, {hexf(GC0)}
    s_mov_b32 s17, {hexf(GC1)}
    v_and_b32 v5, 1, v0
    v_lshlrev_b32 v5, 7, v5
    v_add_u32 v5, {F_LN}, v5
    v_add_u32 v5, s29, v5
    s_mul_i32 s27, s20, {SEG_Z}
    s_cmp_ge_u32 s21, 3
    s_cbranch_scc1 win_z2
    s_lshl_b32 s28, s25, 11
    s_add_u32 s27, s27, s28
    s_add_u32 s27, s27, {WS_Z1}""")
    add64(A, 34, 4, 's27')
    def win_wait(A):
        A(f"""s_mul_hi_u32 s22, s20, {-(-(1<<32)//6)}
        s_mul_i32 s22, s22, 6
        s_sub_u32 s22, s20, s22
        s_lshl_b32 s22, s22, 8
        v_add_u32 v6, s22, v5
        s_add_u32 s23, s20, 1""")
        wait_flags_wg(A, 6, 7, 23, EXIT)
    def win_done(A): wave0(A, lambda: put_flag(A, 30, 23, 7))
    proj_once_loop(A, 'win1', 36, 20, 2, W, 0, make_epi_z1(34, 2, 3, 17, 'sc1', 2), False, 12, 8, win_wait, win_done)
    rt_stamp(A, 4)
    A(f"""s_branch {EXIT}
    win_z2:
    s_sub_u32 s25, s25, 12
    s_lshl_b32 s28, s25, 12
    s_add_u32 s27, s27, s28
    s_add_u32 s27, s27, {WS_Z2}""")
    add64(A, 34, 4, 's27')
    A(f"""s_mul_i32 s27, s20, {SEG_ST}
    s_lshl_b32 s28, s25, 8
    s_add_u32 s27, s27, s28
    s_add_u32 s27, s27, {WS_ST2}
    v_lshlrev_b32 v4, 2, v0""")
    add64(A, 38, 4, 's27')
    proj_once_loop(A, 'win2', 36, 20, 2, W, 0, make_epi_z2(34, 38, 2, 4, 3, 17, 'sc1', 2), True, 12, 8, win_wait, win_done)
    rt_stamp(A, 4)
    A(f"s_branch {EXIT}")
    A(f"{EXIT}:\ns_endpgm")
    hooks = {'total': 256}
    if STAMP:
        def stamp(A, i):
            if i == 0:
                l = A.newlabel('st')
                A(f"s_memtime s[86:87]\ns_memrealtime s[88:89]\ns_waitcnt lgkmcnt(0)\ns_cmp_lg_u32 s{R.S_STEP}, {int(os.environ.get('SSTEP','21'))}\ns_cbranch_scc1 {l}")
                for k in range(1, 8): A(f"s_sub_u32 s{92+k}, s{72+2*k}, s72")
                A(f"s_mov_b32 s92, s73\ns_mov_b32 s100, s88")
                A(f"{l}:\ns_mov_b32 s72, s86\ns_mov_b32 s73, s88")
                l = A.newlabel('st')
                A(f"s_cmp_lg_u32 s{R.S_STEP}, 0\ns_cbranch_scc1 {l}\ns_sub_u32 s101, s88, s71\n{l}:")
            elif (STAMP >> i) & 1:
                A(f"s_memtime s[{72+2*i}:{73+2*i}]\ns_waitcnt lgkmcnt(0)")
        hooks['stamp'] = stamp
        def final(A):
            A(f"""s_lshl_b32 s14, s{X}, 5
            s_add_u32 s14, s14, s{TK}
            s_lshl_b32 s14, s14, 2
            s_add_u32 s14, s14, s{W}
            s_lshl_b32 s14, s14, 6
            s_add_u32 s14, s14, {WS_STAT}
            s_memrealtime s[86:87]
            s_waitcnt lgkmcnt(0)
            s_sub_u32 s15, s86, s71
            v_mov_b32 v17, 0""")
            for i, r in enumerate(list(range(92, 102)) + [15, R.S_TO]):
                A(f"v_mov_b32 v16, s{r}\nbuffer_store_dword v16, v17, s[4:7], s14 offen offset:{4*i}")
            rt_stamp(A, 4)
        hooks['final'] = final
        def steplog(A):
            l = A.newlabel('sl')
            A(f"""s_cmp_lg_u32 s{R.S_H}, 0
            s_cbranch_scc1 {l}
            s_memrealtime s[84:85]
            s_lshl_b32 s{R.S_T}, s{R.S_STEP}, 2
            s_add_u32 s{R.S_T}, s{R.S_T}, {WS_STAT + 131072}
            s_waitcnt lgkmcnt(0)""")
            put_flag(A, R.S_T, 84, R.MOP)
            A(f"{l}:")
        hooks['steplog'] = steplog
    def wait_in(A, first):
        t = R.MOP
        if first: A(f"s_mov_b32 s{R.S_T}, 1")
        else: A(f"s_add_u32 s{R.S_T}, s{R.S_STEP}, 2\ns_min_u32 s{R.S_T}, s{R.S_T}, {NSEG}")
        A(f"""s_mul_i32 s{R.S_T+1}, s{R.S_H}, 192
        v_bfe_u32 v{t}, v{R.V_LANE16}, 4, 1
        v_mul_u32_u24 v{t}, 191, v{t}
        v_add_u32 v{t}, s{R.S_T+1}, v{t}
        v_lshrrev_b32 v{t}, 8, v{t}
        v_bfe_u32 v{t+1}, v{R.V_LANE16}, 5, 1
        v_mad_u32_u24 v{t}, v{t+1}, 24, v{t}
        v_lshlrev_b32 v{t}, 7, v{t}
        v_add_u32 v{t}, {F_QKV}, v{t}""")
        wait_flags(A, t, t+1, R.S_T, EXIT)
    hooks['wait_in'] = wait_in
    def wait_u(A, k):
        if k == 0:
            A(f"""s_lshl_b32 s{R.S_T}, s{X}, 1
            s_add_u32 s{R.S_T}, s{R.S_T}, s{W}
            s_lshl_b32 s{R.S_T}, s{R.S_T}, 9
            s_add_u32 s{R.S_T}, s{R.S_T}, {F_U}
            v_and_b32 v10, 3, v0
            v_lshlrev_b32 v10, 7, v10
            v_add_u32 v10, s{R.S_T}, v10""")
        A(f"s_add_u32 s{R.S_T}, s{R.S_STEP}, {k+1}\ns_min_u32 s{R.S_T}, s{R.S_T}, {NSEG}")
        wait_flags(A, 10, 11, R.S_T, EXIT)
    hooks['wait_u'] = wait_u
    hooks['x_flag'] = lambda A: put_flag(A, R.S_O4, R.S_STEP, 12)
    hooks['x_init'] = lambda A: A(f"s_add_u32 s{R.S_O4}, s{R.S_O4}, s{R.S_POL}")
    def cached_u(A):
        l = A.newlabel('cu')
        A(f"s_add_u32 s{R.S_T}, s{R.S_STEP}, 2\nv_cmp_gt_u32 vcc, s{R.S_T}, v11\ns_cbranch_vccz {l}")
        wait_flags(A, 10, 11, R.S_T, EXIT)
        A(f"{l}:")
    hooks['cached_u'] = cached_u
    hooks['peek_u'] = lambda A: A(f"buffer_load_dword v11, v10, {srd}, 0 offen sc1")
    A("mega_A:")
    R.role_A(A, EXIT, DBG, hooks)
    A("mega_B:")
    R.role_B(A, EXIT, DBG, hooks)
    A(f"""mega_R:
    s_sub_u32 s{R.S_HL}, s{TK}, 16
    s_mul_i32 s{R.S_O4}, s{X}, 10
    s_add_u32 s{R.S_O4}, s{R.S_O4}, s{R.S_HL}
    s_lshl_b32 s{R.S_O4}, s{R.S_O4}, 7
    s_add_u32 s{R.S_O4}, s{R.S_O4}, {F_X}""")
    zero_flag(A, R.S_O4, True)
    A(f"s_and_b32 s12, s{W}, 1\ns_lshl_b32 s12, s12, 6\ns_add_u32 s{R.S_O4}, s{R.S_O4}, s12")
    R.role_R(A, EXIT, DBG, hooks)

def k_out(A):
    A(""".p2align 8
    out_kernel:
    s_cmp_ge_u32 s2, 256
    s_cbranch_scc1 out_done""")
    out_kernel_body(A)
    A("out_done:\ns_endpgm")

def build(kernels):
    hdr = ''.join(f"; @launch kernel={n} grid=({g},1,1) block=(256,1,1) lds={l}\n" for n, g, l, f in kernels)
    A = Asm()
    A('.amdgcn_target "amdgcn-amd-amdhsa--gfx950"\n.text')
    for n, g, l, f in kernels: f(A)
    return hdr + A.text() + ''.join(kdesc(n) for n, g, l, f in kernels)

KERNELS = [('mega_kernel', 256, 163840, k_mega), ('out_kernel', 256, 81920, k_out)]
if __name__ == '__main__':
    open(sys.argv[1], 'w').write(build(KERNELS))
```

```python
import re

TRANS = ('v_exp_f32','v_log_f32','v_rcp_f32','v_rsq_f32','v_sqrt_f32','v_sin_f32','v_cos_f32','v_rcp_iflag_f32')

def _regs(tok):
    tok = tok.strip()
    neg = tok.lstrip('-')
    m = re.fullmatch(r'abs\((.*)\)', neg)
    if m: neg = m.group(1)
    neg = neg.strip('|')
    m = re.fullmatch(r'([vas])(\d+)', neg)
    if m: return [(m.group(1), int(m.group(2)))]
    m = re.fullmatch(r'([vas])\[(\d+):(\d+)\]', neg)
    if m: return [(m.group(1), i) for i in range(int(m.group(2)), int(m.group(3)) + 1)]
    if neg in ('vcc', 'vcc_lo', 'vcc_hi'): return [('x', 'vcc')]
    if neg in ('exec', 'exec_lo', 'exec_hi'): return [('x', 'exec')]
    if neg == 'm0': return [('x', 'm0')]
    return []

class Ins:
    __slots__ = ('text','op','ops','mods','cls','dst','src','srcA','srcB','srcC','passes','states','is_label','target','dpp','stdata','lds')
    def __init__(self, text):
        self.text = text
        t = text.split(';')[0].strip()
        self.is_label = t.endswith(':')
        self.op = ''; self.ops = []; self.cls = 'none'; self.dst = []; self.src = []
        self.srcA = []; self.srcB = []; self.srcC = []; self.passes = 0; self.states = 0; self.target = None
        self.dpp = False; self.stdata = []; self.lds = False; self.mods = ''
        if not t or self.is_label or t.startswith('.'):
            return
        parts = t.split(None, 1)
        op = parts[0]; self.op = op
        rest = parts[1] if len(parts) > 1 else ''
        rest = re.sub(r'(quad_perm|op_sel_hi|op_sel|neg_lo|neg_hi):\[([^\]]*)\]', lambda m: m.group(1) + ':' + m.group(2).replace(',', '_'), rest)
        toks = [x.strip() for x in rest.split(',')] if rest else []
        mods = ''
        if toks:
            lt = toks[-1].split(None, 1)
            if len(lt) > 1 and not toks[-1].startswith('hwreg') and not op.startswith('s_waitcnt'):
                toks[-1] = lt[0]; mods = lt[1]
        self.ops = toks; self.mods = mods
        self.states = 1
        base = re.sub(r'_(e32|e64|dpp|sdwa)$', '', op)
        R = [_regs(x) for x in toks]
        flat = lambda L: [r for x in L for r in x]
        if op == 's_nop':
            self.cls = 'salu'; self.states = int(toks[0], 0) + 1
        elif op.startswith('v_mfma') :
            self.cls = 'mfma'; self.dst = R[0]; self.srcA = R[1]; self.srcB = R[2]; self.srcC = R[3]
            self.src = R[1] + R[2] + R[3]
            self.passes = 8 if '32x32' in op else 4
        elif op.startswith('v_smfmac'):
            self.cls = 'mfma'; self.dst = R[0]; self.srcA = R[1] + R[3]; self.srcB = R[2]; self.srcC = R[0]
            self.src = R[0] + R[1] + R[2] + R[3]
            self.passes = 8 if '32x32' in op else 4
        elif op.startswith('v_'):
            self.cls = 'valu'
            self.dpp = ('row_' in mods or 'quad_perm' in mods or 'wave_' in mods or op.endswith('_dpp'))
            if base.startswith('v_cmp'):
                self.dst = R[0]; self.src = flat(R[1:])
            elif base.startswith('v_permlane') and 'swap' in base:
                self.dst = R[0] + R[1]; self.src = R[0] + R[1]
            elif base in ('v_add_co_u32','v_sub_co_u32','v_addc_co_u32','v_subb_co_u32','v_mad_u64_u32','v_div_scale_f32'):
                self.dst = R[0] + R[1]; self.src = flat(R[2:])
            else:
                self.dst = R[0]; self.src = flat(R[1:])
                if base in ('v_fmac_f32','v_dot2c_f32_bf16','v_pk_fmac_f16','v_writelane_b32') or self.dpp:
                    self.src = self.src + R[0]
        elif op.startswith('ds_'):
            self.cls = 'ds'
            if op.startswith('ds_read') or op.startswith('ds_bpermute') or op.startswith('ds_permute') or op.startswith('ds_swizzle'):
                self.dst = R[0]; self.src = flat(R[1:])
                if 'd16' in op: self.src = self.src + R[0]
            else:
                self.src = flat(R)
        elif op.startswith('global_') or op.startswith('buffer_') or op.startswith('flat_'):
            self.cls = 'vmem'
            self.lds = ('_lds_' in op) or bool(re.search(r'\blds\b', mods))
            if op in ('buffer_wbl2','buffer_inv'):
                pass
            elif self.lds:
                self.src = flat(R) + [('x','m0')]
            elif '_load_' in op:
                self.dst = R[0]; self.src = flat(R[1:])
            elif '_store_' in op:
                self.src = flat(R)
                if op.endswith('x3') or op.endswith('x4'):
                    self.stdata = R[1] if op.startswith('global_') or op.startswith('flat_') else R[0]
            elif '_atomic_' in op:
                if 'sc0' in mods.split() and op.startswith('global_'):
                    self.dst = R[0]; self.src = flat(R[1:])
                else:
                    self.src = flat(R)
                    if 'sc0' in mods.split(): self.dst = R[0]
        elif op.startswith('s_'):
            self.cls = 'salu'
            if op.startswith('s_cbranch') or op == 's_branch':
                self.target = toks[0]
            elif op.startswith('s_cmp') or op in ('s_waitcnt','s_barrier','s_endpgm','s_sleep','s_setprio','s_sethalt'):
                self.src = flat(R)
            elif 'saveexec' in op:
                self.dst = R[0] + [('x','exec')]; self.src = flat(R[1:])
            else:
                self.dst = R[0] if R else []; self.src = flat(R[1:])
        else:
            raise ValueError('unknown op: ' + text)

def _ov(a, b):
    return bool(set(a) & set(b))

def need(p, c):
    n = 0
    isvg = lambda L: [r for r in L if r[0] in 'va']
    issg = lambda L: [r for r in L if r[0] == 's' or r == ('x','vcc')]
    if p.cls == 'valu':
        pv = isvg(p.dst); ps = issg(p.dst)
        if c.cls == 'mfma' and _ov(pv, c.src): n = max(n, 2)
        if c.cls == 'valu':
            cb = re.sub(r'_(e32|e64|dpp|sdwa)$', '', c.op)
            if cb.startswith('v_permlane') and _ov(pv, c.src): n = max(n, 2)
            if c.dpp and _ov(pv, c.src): n = max(n, 2)
            if cb in ('v_readlane_b32','v_readfirstlane_b32') and _ov(pv, c.src): n = max(n, 1)
            pb = re.sub(r'_(e32|e64|dpp|sdwa)$', '', p.op)
            if pb in TRANS and _ov(pv, c.src): n = max(n, 1)
            if pb.startswith('v_dot') and (_ov(pv, c.src) or _ov(pv, c.dst)): n = max(n, 3)
            if ('op_sel' in p.mods or 'sdwa' in p.op or 'dst_sel' in p.mods) and not pb.startswith('v_pk_') and (_ov(pv, c.src) or _ov(pv, c.dst)): n = max(n, 1)
            csrc = list(c.src)
            if cb in ('v_cndmask_b32','v_addc_co_u32','v_subb_co_u32','v_div_fmas_f32') : csrc = csrc + [('x','vcc')] if len(c.ops) < 4 else csrc
            if _ov(ps, csrc):
                n = max(n, 4 if cb in ('v_readlane_b32','v_writelane_b32','v_div_fmas_f32') else 2)
        if c.cls in ('mfma','ds','vmem'):
            pb = re.sub(r'_(e32|e64|dpp|sdwa)$', '', p.op)
            if pb.startswith('v_dot') and _ov(pv, c.src): n = max(n, 3)
            if pb in TRANS and _ov(pv, c.src): n = max(n, 1)
        if c.cls == 'vmem' and _ov(ps, c.src): n = max(n, 5)
        if c.cls == 'salu' and _ov(ps, c.src): n = max(n, 1)
    if p.cls == 'mfma':
        big = p.passes == 8
        if c.cls == 'mfma':
            if _ov(p.dst, c.srcA) or _ov(p.dst, c.srcB): n = max(n, 12 if big else 8)
            if _ov(p.dst, c.srcC):
                same = (p.dst == c.srcC and p.passes == c.passes)
                if not same: n = max(n, 10 if big else 6)
            elif _ov(p.dst, c.dst):
                n = max(n, 10 if big else 6)
        elif c.cls == 'valu':
            if _ov(p.dst, c.src) or _ov(p.dst, c.dst): n = max(n, 12 if big else 8)
            if _ov(p.srcC, c.dst): n = max(n, 7 if big else 3)
        elif c.cls in ('ds','vmem'):
            if _ov(p.dst, c.src) or _ov(p.dst, c.dst): n = max(n, 12 if big else 8)
    if p.cls == 'salu':
        if ('x','m0') in p.dst and c.cls == 'vmem' and c.lds: n = max(n, 1)
    if p.cls == 'vmem' and p.stdata:
        if _ov(p.stdata, c.dst): n = max(n, 2 if c.cls in ('valu','mfma') else 1)
    if p.cls == 'ds' and p.op in ('ds_write_b128','ds_write_b96') and c.cls in ('valu','mfma') and _ov(p.src, c.dst):
        n = max(n, 1)
    return n

WINDOW = 14

def fix_hazards(lines, verbose=False):
    ins = [Ins(l) for l in lines]
    out = []
    ninserted = 0
    for c in ins:
        if c.cls != 'none':
            dist = 0; req = 0; nM = 0; after = 0
            for p in reversed(out):
                if p.cls == 'none': continue
                if p.op in ('s_branch','s_endpgm'): break
                d = dist
                if p.cls == 'mfma' and nM:
                    d = max(dist, 4*nM + after - 1)
                k = need(p, c) - d
                if k > req: req = k
                if p.cls == 'mfma': nM += 1
                elif nM == 0: after += p.states
                dist += p.states
                if dist >= WINDOW: break
            while req > 0:
                k = min(req, 16)
                out.append(Ins(f'  s_nop {k-1}'))
                req -= k; ninserted += 1
        out.append(c)
    labels = {i.text.split(';')[0].strip()[:-1]: n for n, i in enumerate(out) if i.is_label}
    errs = []
    for n, b in enumerate(out):
        if b.target is None: continue
        if b.target not in labels: raise ValueError('unknown label ' + b.target)
        pre = []; d = 0
        for p in reversed(out[:n+1]):
            if p.cls == 'none': continue
            if p is not b and p.op in ('s_branch','s_endpgm'): break
            pre.append(p); d += p.states
            if d >= WINDOW: break
        d2 = 0; post = []
        for c in out[labels[b.target]:]:
            if c.cls == 'none': continue
            dist = 0; nM = 0; after = 0
            for k, p in enumerate(list(reversed(post)) + pre):
                d = dist
                if p.cls == 'mfma' and nM: d = max(dist, 4*nM + after - 1)
                if k >= len(post) and need(p, c) > d:
                    errs.append(f'branch hazard: [{p.text.strip()}] -> [{c.text.strip()}] via {b.text.strip()} need {need(p,c)} have {d}')
                if p.cls == 'mfma': nM += 1
                elif nM == 0: after += p.states
                dist += p.states
            post.append(c)
            d2 += c.states
            if d2 >= WINDOW or c.op in ('s_branch','s_endpgm'): break
    if errs:
        raise ValueError('\n'.join(errs[:20]))
    return [i.text for i in out], ninserted

class Asm:
    def __init__(self):
        self.lines = []
        self.uid = 0
        self.deferred = []
    def __call__(self, s):
        for l in s.split('\n'):
            l = l.rstrip()
            if l.strip():
                t = l.strip()
                self.lines.append(t if (t.endswith(':') or t.startswith('.') or t.startswith(';')) else '  ' + t)
    def label(self, name): self.lines.append(name + ':')
    def flush_deferred(self):
        for d in self.deferred: self(d)
        self.deferred = []
    def newlabel(self, base):
        self.uid += 1
        return f'{base}_{self.uid}'
    def text(self, hazards=True):
        L = self.lines
        if hazards:
            L, n = fix_hazards(L)
        return '\n'.join(L) + '\n'

def vr(n, k=1, f='v'):
    return f'{f}{n}' if k == 1 else f'{f}[{n}:{n+k-1}]'
def sr(n, k=1): return vr(n, k, 's')
def ar(n, k=1): return vr(n, k, 'a')
def ur(n, k=1):
    if n >= 256: return vr(n - 256, k, 'a')
    assert n + k <= 256
    return vr(n, k, 'v')

def kdesc(name, vgpr=512, sgpr=102, accum=256):
    return f""".section .rodata,"a"
.p2align 6
.amdhsa_kernel {name}
  .amdhsa_next_free_vgpr {vgpr}
  .amdhsa_next_free_sgpr {sgpr}
  .amdhsa_accum_offset {accum}
  .amdhsa_group_segment_fixed_size 0
  .amdhsa_kernarg_size 120
  .amdhsa_user_sgpr_count 2
  .amdhsa_user_sgpr_kernarg_segment_ptr 1
  .amdhsa_system_sgpr_workgroup_id_x 1
  .amdhsa_float_denorm_mode_32 3
.end_amdhsa_kernel
.text
"""
```

```python
from common import *

def ln_rowtile(A, s_src, s_dst, v_lane, st_flags='', natural_tokens=False, vb=16):
    raw = vb; f = vb + 80
    t0, t1, t2, t3, vs, vo = vb - 8, vb - 7, vb - 6, vb - 5, vb - 4, vb - 3
    A(f"v_and_b32 v{t0}, 15, v{v_lane}\nv_lshrrev_b32 v{t1}, 4, v{v_lane}")
    if natural_tokens:
        A(f"""v_lshrrev_b32 v{t2}, 2, v{t0}
        v_lshlrev_b32 v{t2}, 3, v{t2}
        v_and_b32 v{t0}, 3, v{t0}
        v_add_u32 v{t0}, v{t0}, v{t2}""")
    A(f"""v_mul_u32_u24 v{t0}, 1280, v{t0}
    v_lshl_add_u32 v{vs}, v{t1}, 4, v{t0}
    v_lshlrev_b32 v{vo}, 4, v{v_lane}""")
    for ks in range(20):
        A(f"global_load_dwordx4 {vr(raw+4*ks,4)}, v{vs}, {sr(s_src,2)} offset:{64*ks}")
    A(f"v_mov_b32 v{t0}, 0\nv_mov_b32 v{t1}, 0")
    for ks in range(20):
        A(f"s_waitcnt vmcnt({19-ks})")
        for j in range(4):
            r = raw + 4*ks + j; lo = f + 2*(4*ks+j); hi = lo + 1
            A(f"""v_lshlrev_b32 {ur(lo)}, 16, v{r}
            v_and_b32 {ur(hi)}, 0xffff0000, v{r}
            v_add_f32 v{t0}, v{t0}, {ur(lo)}
            v_add_f32 v{t1}, v{t1}, {ur(hi)}""")
    A(f"v_add_f32 v{t0}, v{t0}, v{t1}")
    xlane_sum_g(A, t0, t1)
    A(f"v_mul_f32 v{t0}, {1.0/640!r}, v{t0}".replace(repr(1.0/640), hexf(1.0/640)))
    A(f"v_mov_b32 v{t1}, 0\nv_mov_b32 v{t2}, 0")
    for i in range(80):
        lo = f + 2*i; hi = lo + 1
        A(f"""v_sub_f32 v{lo}, v{lo}, v{t0}
        v_sub_f32 v{hi}, v{hi}, v{t0}
        v_fmac_f32 v{t1}, v{lo}, v{lo}
        v_fmac_f32 v{t2}, v{hi}, v{hi}""")
    A(f"v_add_f32 v{t1}, v{t1}, v{t2}")
    xlane_sum_g(A, t1, t2)
    A(f"""v_mov_b32 v{t2}, {hexf(1e-5)}
    v_fmac_f32 v{t2}, {hexf(1.0/640)}, v{t1}
    v_rsq_f32 v{t2}, v{t2}""")
    for ks in range(20):
        for j in range(4):
            i = 4*ks + j; lo = f + 2*i; hi = lo + 1
            A(f"""v_mul_f32 v{lo}, v{lo}, v{t2}
            v_mul_f32 v{hi}, v{hi}, v{t2}
            v_cvt_pk_bf16_f32 v{raw+i}, v{lo}, v{hi}""")
        if ks % 4 == 0 and ks:
            A(f"v_add_u32 v{vo}, 4096, v{vo}")
        A(f"global_store_dwordx4 v{vo}, {vr(raw+4*ks,4)}, {sr(s_dst,2)} offset:{1024*(ks%4)} {st_flags}")

import struct
def hexf(x):
    return '0x%08x' % struct.unpack('<I', struct.pack('<f', x))[0]

def ln1_small(A, s_x, s_wg, srd, xnf_off):
    raw, f = 16, 56
    A(f"""v_and_b32 v2, 7, v0
    v_lshrrev_b32 v3, 3, v0
    v_mul_u32_u24 v4, 1280, v2
    v_lshl_add_u32 v4, v3, 4, v4
    s_mul_i32 s12, s{s_wg}, 10240
    v_add_u32 v4, s12, v4""")
    for i in range(10): A(f"global_load_dwordx4 {vr(raw+4*i,4)}, v4, {sr(s_x,2)} offset:{128*i}")
    A(f"""v_lshlrev_b32 v5, 4, v2
    v_lshl_add_u32 v5, v3, 8, v5
    s_lshr_b32 s12, s{s_wg}, 1
    s_mul_i32 s12, s12, 20480
    s_and_b32 s13, s{s_wg}, 1
    s_lshl_b32 s13, s13, 7
    s_add_u32 s12, s12, s13
    s_add_u32 s12, s12, {xnf_off}
    v_mov_b32 v6, 0
    v_mov_b32 v7, 0""")
    for i in range(10):
        A(f"s_waitcnt vmcnt({9-i})")
        for j in range(4):
            r = raw+4*i+j; lo = f+2*(4*i+j)
            A(f"v_lshlrev_b32 v{lo}, 16, v{r}\nv_and_b32 v{lo+1}, 0xffff0000, v{r}\nv_pk_add_f32 v[6:7], v[6:7], {vr(lo,2)}")
    def allsum(v, t):
        A(f"v_add_f32_dpp v{v}, v{v}, v{v} row_ror:8 row_mask:0xf bank_mask:0xf")
        xlane_sum_g(A, v, t)
    A("v_add_f32 v6, v6, v7"); allsum(6, 7)
    A(f"v_mul_f32 v6, {hexf(-1.0/640)}, v6\nv_mov_b32 v8, 0\nv_mov_b32 v9, 0")
    for i in range(40):
        lo = f+2*i
        A(f"v_pk_add_f32 {vr(lo,2)}, {vr(lo,2)}, v[6:7] op_sel_hi:[1,0]\nv_pk_fma_f32 v[8:9], {vr(lo,2)}, {vr(lo,2)}, v[8:9]")
    A("v_add_f32 v8, v8, v9"); allsum(8, 9)
    A(f"v_mov_b32 v10, {hexf(1e-5)}\nv_fmac_f32 v10, {hexf(1.0/640)}, v8\nv_rsq_f32 v10, v10")
    for i in range(10):
        for j in range(4):
            lo = f+2*(4*i+j)
            A(f"v_pk_mul_f32 {vr(lo,2)}, {vr(lo,2)}, v[10:11] op_sel_hi:[1,0]\nv_cvt_pk_bf16_f32 v{raw+4*i+j}, v{lo}, v{lo+1}")
        A(f"buffer_store_dwordx4 {vr(raw+4*i,4)}, v5, {srd}, s12 offen offset:{2048*(i%2)} sc1")
        if i % 2: A("s_add_u32 s12, s12, 4096")
```

```python
from common import *
from r_u import load_w_rows
from r_ln import hexf
import math, os
TOUCH = int(os.environ.get('TOUCH', '128'))
NOU = int(os.environ.get('NOU', '0'))
NOKQ = int(os.environ.get('NOKQ', '0'))

NG, HG, NR = 4, 8, 10
GBLK = 32768
GSLOT = 32*GBLK
LBASE = WS_LRING
M_OFF = 0
P_OFF = 16384
PX_OFF = 32768
Y_OFF = 163840
NSYNC = NG*(2*HG+NR)
WS_OP = WS_YF
SEG_OP = 2*20*4*1024
TLANES = int(os.environ.get('TLANES', '64'))
TOUT = int(os.environ.get('TOUT', '0'))
KQP = int(os.environ.get('KQP', '8'))
GDROP = int(os.environ.get('GDROP', '0'))
ASLEEP = int(os.environ.get('ASLEEP', '16'))
BSLEEP = int(os.environ.get('BSLEEP', '24'))
RSLEEP = int(os.environ.get('RSLEEP', '10'))
MPIPE = int(os.environ.get('MPIPE', '0'))
YPIPE = int(os.environ.get('YPIPE', '2'))
XFLAGNOW = int(os.environ.get('XFLAGNOW', '0'))
SCRUB = int(os.environ.get('SCRUB', '1'))
XLEAD = int(os.environ.get('XLEAD', '3'))
AB1 = int(os.environ.get('AB1', '9'))
BB1 = int(os.environ.get('BB1', '7'))
GDELAY = int(os.environ.get('GDELAY', '1'))
KQW3 = int(os.environ.get('KQW3', '0'))
POLL_LIMIT = 1 << 17

class Lg:
    def __init__(s, A): s.A = A; s.n = 0; s.done = 0; s.tag = {}
    def ds(s, text, tag=None):
        s.A(text); s.n += 1
        if tag is not None: s.tag[tag] = s.n
    def need(s, tag):
        k = s.tag[tag]
        if k > s.done:
            w = s.n - k
            if w <= 15:
                s.A(f"s_waitcnt lgkmcnt({w})"); s.done = k
            else:
                s.A("s_waitcnt lgkmcnt(15)"); s.done = s.n - 15
    def all(s):
        s.A("s_waitcnt lgkmcnt(0)"); s.done = s.n

V_LANE16, V_P1, V_P2, V_RD0, V_RD3, V_IDX, V_TW, V_TR, V_WS, V_X1, V_X2, V_X3, V_JUNK = 1, 2, 3, 4, 7, 8, 9, 10, 11, 12, 13, 14, 15
MOP, ACC, STG = 16, 56, 80
LPOS = [0, 4, 8, 12, 16, 20, 24, 28, 32, 36]
def wloc(p):
    if p in LPOS: return ('lds', LPOS.index(p))
    k = p - sum(1 for x in LPOS if x < p)
    return ('reg', 256 + 8*k if k < 32 else 112 + 8*(k-32))
def wreg(p):
    kind, x = wloc(p)
    return STG + 8*(x % 4) if kind == 'lds' else x
L_T = 0
L_MS = 8192
L_X = 18432
L_R = L_X + 49152
L_W = 81920
S_WAVE = 3
SRD = 4
S_GRP, S_HL, S_STEP, S_TO = 8, 9, 10, 11
S_T = 12
S_A, S_B = 20, 22
S_POL, S_SLOW, S_H = 24, 25, 26
S_CUR, S_TAG, S_TAGM = 27, 28, 29
S_ML, S_ML4, S_MR, S_MR4 = 30, 31, 32, 33
S_MSK = 34
S_HI = 52
S_EVEN = 54
S_C1, S_C2, S_C3, S_C4, S_C5, S_C6 = 56, 57, 58, 59, 60, 61
S_O1, S_O2, S_O3, S_O4 = 62, 63, 64, 65
S_NT, S_CT0, S_SEL0, S_SEL1, S_CSC = 66, 67, 68, 69, 70
srd = sr(SRD, 4)

def smf(A, acc, a, b):
    A(f"v_smfmac_f32_16x16x64_bf16 {vr(acc,4)}, {vr(a,4)}, {ur(b,8)}, v{V_IDX}")
def bld(n, dst, va, so, off=0, fl=''):
    nm = {1: 'dword', 2: 'dwordx2', 4: 'dwordx4'}[n]
    return f"buffer_load_{nm} {vr(dst,n)}, v{va}, {srd}, s{so} offen offset:{off} {fl}"
def bst(n, src, va, so, off=0, fl=''):
    nm = {1: 'dword', 2: 'dwordx2', 4: 'dwordx4'}[n]
    return f"buffer_store_{nm} {vr(src,n)}, v{va}, {srd}, s{so} offen offset:{off} {fl}"
def bdma(va, so, off=0):
    return f"buffer_load_dwordx4 v{va}, {srd}, s{so} offen offset:{off} lds"

def common_init(A):
    w = S_WAVE
    A(f"""v_lshlrev_b32 v{V_LANE16}, 4, v0
    s_lshl_b32 s{S_T}, s{w}, 10
    v_add_u32 v{V_P1}, s{S_T}, v{V_LANE16}
    s_and_b32 s{S_T+1}, s{S_T}, 1024
    s_add_u32 s{S_T+2}, s{S_T+1}, 8192
    v_add_u32 v{V_P2}, s{S_T+2}, v{V_LANE16}
    s_xor_b32 s{S_T+1}, s{S_T+1}, 1024
    v_add_u32 v{V_RD3}, s{S_T+1}, v{V_LANE16}""")
    for i in range(3):
        A(f"s_xor_b32 s{S_T+1}, s{S_T}, {(i+1)*1024}\nv_add_u32 v{V_RD0+i}, s{S_T+1}, v{V_LANE16}")
    A(f"""s_mov_b32 s{S_HI}, 0xff00ff00
    s_mov_b32 s{S_HI+1}, 0xff00ff00
    v_mov_b32 v{V_IDX}, 0x4444
    v_mov_b32 v{V_TW}, 0xeeee
    v_cndmask_b32 v{V_IDX}, v{V_IDX}, v{V_TW}, {sr(S_HI,2)}
    s_mul_i32 s{S_T+1}, s{w}, 20480
    s_add_u32 s{S_T+1}, s{S_T+1}, {L_W}
    v_add_u32 v{V_WS}, s{S_T+1}, v{V_LANE16}
    s_lshl_b32 s{S_H}, s{S_GRP}, 3
    s_add_u32 s{S_H}, s{S_H}, s{S_HL}
    s_mov_b32 s{S_SEL0}, 0x00003f80
    s_mov_b32 s{S_SEL1}, 0x3f800000
    s_lshl_b32 s{S_CUR}, s{S_GRP}, 18
    s_add_u32 s{S_CUR}, s{S_CUR}, {LBASE}
    s_mov_b32 s{S_TAG}, 0
    s_mov_b32 s{S_TAGM}, 0
    s_add_u32 s{S_ML}, s{S_CUR}, {M_OFF}
    s_add_u32 s{S_ML4}, s{S_ML}, 4096
    s_mov_b32 s{S_STEP}, 0""")

def kappa_sreg(A, kp, dst):
    w = S_WAVE
    if kp == 0: A(f"s_mov_b32 s{dst}, s{w}")
    elif kp == 1: A(f"s_add_u32 s{dst}, s{w}, 4")
    elif kp == 2: A(f"s_and_b32 s{dst}, s{w}, 1\ns_add_u32 s{dst}, s{dst}, 8")
    elif kp < 6: A(f"s_xor_b32 s{dst}, s{w}, {kp-2}")
    elif kp < 9: A(f"s_xor_b32 s{dst}, s{w}, {kp-5}\ns_add_u32 s{dst}, s{dst}, 4")
    else: A(f"s_and_b32 s{dst}, s{w}, 1\ns_xor_b32 s{dst}, s{dst}, 9")

def tr_addr_sparseB(A, dst, t, rowbytes, s_base):
    A(f"""v_bfe_u32 v{dst}, v0, 2, 1
    v_bfe_u32 v{t}, v0, 3, 1
    v_lshl_add_u32 v{dst}, v{t}, 3, v{dst}
    v_bfe_u32 v{t}, v0, 4, 1
    v_lshl_add_u32 v{dst}, v{t}, 2, v{dst}
    v_bfe_u32 v{t}, v0, 5, 1
    v_lshl_add_u32 v{dst}, v{t}, 4, v{dst}
    v_mul_u32_u24 v{dst}, {rowbytes}, v{dst}
    v_and_b32 v{t}, 3, v0
    v_lshl_add_u32 v{dst}, v{t}, 3, v{dst}
    v_add_u32 v{dst}, s{s_base}, v{dst}""")

def read_operand(A, p, vtr, off, rowbytes, halves=(0,1), hrows=32):
    kind, x = wloc(p)
    r = STG if kind == 'lds' else x
    for half in halves:
        for q in range(2):
            A(f"ds_read_b64_tr_b16 {ur(r+4*half+2*q,2)}, v{vtr} offset:{off + (hrows*(half-halves[0]) + 2*q)*rowbytes}")
    if kind == 'lds':
        A("s_waitcnt lgkmcnt(0)")
        for half in halves:
            A(f"ds_write_b128 v{V_WS}, {vr(STG+4*half,4)} offset:{x*2048+1024*half}")
        A("s_waitcnt lgkmcnt(0)")

def kp_of(kappa, w):
    if kappa < 4: d = kappa ^ w; return 0 if d == 0 else d + 2
    if kappa < 8: d = (kappa-4) ^ w; return 1 if d == 0 else d + 5
    return 2 if kappa - 8 == (w & 1) else 9

def load_heads(A, mats):
    VA_, VT_, t, u = MOP, MOP+6, MOP+10, MOP+11
    sb = S_T + 4
    w = S_WAVE
    for i in range(6):
        A(f"""v_add_u32 v{t}, {64*i}, v0
        v_mul_u32_u24 v{u}, {(65536+23)//24}, v{t}
        v_lshrrev_b32 v{u}, 16, v{u}
        v_mul_u32_u24 v{VA_+i}, 24, v{u}
        v_sub_u32 v{t}, v{t}, v{VA_+i}
        v_lshrrev_b32 v{VA_+i}, 1, v{u}
        v_and_b32 v{VA_+i}, 6, v{VA_+i}
        v_xor_b32 v{t}, v{t}, v{VA_+i}
        v_mul_u32_u24 v{VA_+i}, 12288, v{u}
        v_lshl_add_u32 v{VA_+i}, v{t}, 4, v{VA_+i}""")
    for tt in range(3):
        A(f"""v_bfe_u32 v{u}, v0, 4, 1
        v_bfe_u32 v{t}, v0, 3, 1
        v_lshl_add_u32 v{u}, v{t}, 1, v{u}
        v_lshlrev_b32 v{VT_+tt}, 1, v{u}
        s_mul_i32 s{S_T}, s{w}, 6
        s_add_u32 s{S_T}, s{S_T}, {2*tt}
        v_bfe_u32 v{t}, v0, 1, 1
        v_add_u32 v{t}, s{S_T}, v{t}
        v_xor_b32 v{VT_+tt}, v{VT_+tt}, v{t}
        v_lshlrev_b32 v{VT_+tt}, 4, v{VT_+tt}
        v_and_b32 v{t}, 1, v0
        v_lshl_add_u32 v{VT_+tt}, v{t}, 3, v{VT_+tt}
        v_lshlrev_b32 v{u}, 2, v{u}
        v_bfe_u32 v{t}, v0, 2, 1
        v_add_u32 v{u}, v{u}, v{t}
        v_bfe_u32 v{t}, v0, 5, 1
        v_lshl_add_u32 v{u}, v{t}, 4, v{u}
        v_mul_u32_u24 v{u}, 384, v{u}
        v_add_u32 v{VT_+tt}, v{VT_+tt}, v{u}""")
    A(f"s_mul_i32 s{sb}, s{w}, 6144\ns_mul_i32 s{S_T}, s{w}, {16*12288}")
    for sp, _ in mats: add64(A, sp, sp, f"s{S_T}")
    rounds = [(m, k) for m in range(len(mats)) for k in range(10)]
    depth, slot = 3, 24576
    def issue(r):
        sp = mats[rounds[r][0]][0]
        for i in range(6):
            A(f"s_add_u32 m0, s{sb}, {(r % depth)*slot + i*1024}")
            A(f"global_load_lds_dwordx4 v{VA_+i}, {sr(sp,2)}")
        add64(A, sp, sp, 64*12288)
    for r in range(depth): issue(r)
    labs = [A.newlabel('lw') for _ in range(4)]; lend = A.newlabel('lw')
    for ww in range(1, 4): A(f"s_cmp_eq_u32 s{w}, {ww}\ns_cbranch_scc1 {labs[ww]}")
    n = len(rounds)
    for ww in range(4):
        A(f"{labs[ww]}:")
        for r, (m, k) in enumerate(rounds):
            A(f"s_waitcnt vmcnt({6*min(depth-1, n-1-r)})\ns_barrier")
            hi = (r % depth) == 2
            if hi:
                for tt in range(3): A(f"v_add_u32 v{VT_+tt}, {2*slot}, v{VT_+tt}")
            for tt in range(3):
                read_operand(A, mats[m][1](kp_of(k, ww), tt), VT_+tt, 0 if hi else (r % depth)*slot, 384)
            if hi:
                for tt in range(3): A(f"v_subrev_u32 v{VT_+tt}, {2*slot}, v{VT_+tt}")
            A("s_waitcnt lgkmcnt(0)\ns_barrier")
            if r + depth < n: issue(r+depth)
        if ww < 3: A(f"s_branch {lend}")
    A(f"{lend}:")

def tick(A, exitlab):
    A(f"""s_add_u32 s{S_TO}, s{S_TO}, 1
    s_cmp_gt_u32 s{S_TO}, {POLL_LIMIT}
    s_cbranch_scc1 {exitlab}""")

def check(A, regs, stag, target):
    t = V_X3
    c = list(regs)
    if len(c) == 1:
        A(f"v_bitop3_b32 v{t}, v{c[0]}, 1, s{stag} bitop3:0x48")
    else:
        A(f"v_bitop3_b32 v{t}, v{c[0]}, v{c[1]}, s{stag} bitop3:0x7e")
        for x in c[2:]:
            A(f"v_bitop3_b32 v{t}, v{x}, v{t}, s{stag} bitop3:0xde")
        A(f"v_and_b32 v{t}, 1, v{t}")
    A(f"v_cmp_ne_u32 vcc, 0, v{t}\ns_cbranch_vccnz {target}")

def poll(A, name, loads, checks, stag, exitlab, shadow=None):
    l = A.newlabel(name)
    if shadow is not None:
        l2 = A.newlabel(name)
        for x in loads: A(x)
        shadow()
        A(f"s_branch {l2}")
    A(f"{l}:")
    for x in loads: A(x)
    tick(A, exitlab)
    if shadow is not None: A(f"{l2}:")
    A("s_waitcnt vmcnt(0)")
    check(A, checks, stag, l)

def ingest_mem(A, lg, exitlab, shadow=None):
    def L(b): return [bld(4, b, V_P1, S_ML, 0, 'sc1'), bld(4, b+4, V_P1, S_ML4, 0, 'sc1'), bld(4, b+8, V_P2, S_ML, 0, 'sc1')]
    W = [(V_P1, L_MS), (V_P1, L_MS+4096), (V_P2, L_MS)]
    if not MPIPE:
        poll(A, 'pm', L(MOP), [MOP, MOP+4, MOP+8], S_TAG, exitlab, shadow)
        for f, (v, off) in enumerate(W):
            lg.ds(f"ds_write_b128 v{v}, {vr(MOP+4*f,4)} offset:{off}", ('mw', f))
        return
    S = [MOP+12, MOP+24]
    lp, n0, j = A.newlabel('pm'), A.newlabel('pm'), A.newlabel('pm')
    for x in L(S[0]): A(x)
    A(f"s_sleep {MPIPE}\n{lp}:")
    def fin(b):
        for f, (v, off) in enumerate(W):
            A(f"ds_write_b128 v{v}, {vr(b+4*f,4)} offset:{off}")
            A(f"v_pk_mov_b32 {vr(MOP+4*f,2)}, {vr(b+4*f,2)}, {vr(b+4*f,2)} op_sel:[0,1]\nv_pk_mov_b32 {vr(MOP+4*f+2,2)}, {vr(b+4*f+2,2)}, {vr(b+4*f+2,2)} op_sel:[0,1]")
    for x in L(S[1]): A(x)
    tick(A, exitlab)
    A("s_waitcnt vmcnt(3)")
    check(A, [S[0], S[0]+4, S[0]+8], S_TAG, n0)
    fin(S[0])
    A(f"s_branch {j}\n{n0}:")
    for x in L(S[0]): A(x)
    A("s_waitcnt vmcnt(3)")
    check(A, [S[1], S[1]+4, S[1]+8], S_TAG, lp)
    fin(S[1])
    A(f"{j}:")
    lg.n += 3; lg.tag[('mw', 2)] = lg.n

def read_mem_frags(A, lg):
    if MPIPE: A('s_waitcnt vmcnt(0)')
    for kp in range(3, 10):
        if kp < 6: v, off = V_RD0 + kp - 3, L_MS
        elif kp < 9: v, off = V_RD0 + kp - 6, L_MS + 4096
        else: v, off = V_RD3, L_MS + 8192
        lg.ds(f"ds_read_b128 {vr(MOP+4*kp,4)}, v{v} offset:{off}", ('m', kp))

def stg_load(lg, i):
    r = STG + 8*(i % 4)
    lg.ds(f"ds_read_b128 {vr(r,4)}, v{V_WS} offset:{i*2048}")
    lg.ds(f"ds_read_b128 {vr(r+4,4)}, v{V_WS} offset:{i*2048+1024}", ('w', i))

def next_step(A):
    A(f"""s_add_u32 s{S_STEP}, s{S_STEP}, 1
    s_xor_b32 s{S_TAG}, s{S_TAG}, 1""")

def t_plane_base(A, dst, c, t, plane):
    A(f"""v_mul_u32_u24 v{dst}, {plane}, v{c}
    v_and_b32 v{t}, 1, v{c}
    v_lshl_add_u32 v{dst}, v{t}, 5, v{dst}
    v_lshrrev_b32 v{t}, 1, v{c}
    v_lshl_add_u32 v{dst}, v{t}, 7, v{dst}""")

D_CNT, D_SLOW, D_POL = 2, 18, 34
D_LN = 4
NINIT = 48 + NG*NR
def checkin(A, s_dbg, vt=None):
    vt = MOP if vt is None else vt
    l2 = A.newlabel('isk')
    A(f"""s_waitcnt vmcnt(0)
    s_barrier
    s_cmp_lg_u32 s{S_WAVE}, 0
    s_cbranch_scc1 {l2}
    v_mov_b32 v{vt}, {4*D_CNT}
    v_mov_b32 v{vt+1}, 1
    s_mov_b64 exec, 1
    global_atomic_add v{vt}, v{vt+1}, {sr(s_dbg,2)}
    s_mov_b64 exec, -1
    {l2}:""")

def waitall(A, s_dbg, exitlab, vl4, vt=None, s_slow=None, s_pol=None):
    vt = MOP if vt is None else vt
    l, l2 = A.newlabel('isync'), A.newlabel('isync')
    A(f"""v_lshrrev_b32 v{vt}, 2, v{vl4}
    v_mov_b32 v{vt+1}, 0
    s_mov_b32 exec_lo, 0x00030003
    s_mov_b32 exec_hi, 0x00030003
    v_mov_b32 v{vt+1}, 32
    s_mov_b32 exec_lo, 0x00100010
    s_mov_b32 exec_hi, 0x00100010
    v_mov_b32 v{vt+1}, 64
    s_mov_b64 exec, {1 << D_CNT}
    v_mov_b32 v{vt+1}, {NINIT}""")
    if s_pol is not None: A(f"s_mov_b32 exec_lo, 0\ns_mov_b32 exec_hi, {1 << (D_POL-32)}\nv_mov_b32 v{vt+1}, 1")
    A(f"""s_mov_b64 exec, -1
    s_branch {l2}
    {l}:
    s_sleep 4""")
    tick(A, exitlab)
    A(f"""{l2}:
    global_load_dword v{vt+2}, v{vt}, {sr(s_dbg,2)} sc1
    s_waitcnt vmcnt(0)
    v_cmp_gt_u32 vcc, v{vt+1}, v{vt+2}
    s_cbranch_vccnz {l}""")
    if s_slow is not None or s_pol is not None:
        A(f"global_load_dword v{vt+2}, v{vt}, {sr(s_dbg,2)} sc1\ns_waitcnt vmcnt(0)")
    if s_slow is not None: A(f"v_readlane_b32 s{s_slow}, v{vt+2}, {D_SLOW}")
    if s_pol is not None: A(f"v_readlane_b32 s{s_pol}, v{vt+2}, {D_POL}\ns_and_b32 s{s_pol}, s{s_pol}, 8192")

FSLEEP = int(os.environ.get('FSLEEP', '0'))
def wait_flags(A, v_addr, v_tmp, s_need, exitlab, sleep=2):
    l, l2 = A.newlabel('wf'), A.newlabel('wf')
    A(f"""s_branch {l2}
    {l}:
    s_sleep {FSLEEP or sleep}""")
    tick(A, exitlab)
    A(f"""{l2}:
    buffer_load_dword v{v_tmp}, v{v_addr}, {srd}, 0 offen sc1
    s_waitcnt vmcnt(0)
    v_cmp_gt_u32 vcc, s{s_need}, v{v_tmp}
    s_cbranch_vccnz {l}""")

def wait_flags_wg(A, v_addr, v_tmp, s_need, exitlab, sleep=6):
    l = A.newlabel('wg')
    A(f"s_cmp_lg_u32 s{S_WAVE}, 0\ns_cbranch_scc1 {l}")
    wait_flags(A, v_addr, v_tmp, s_need, exitlab, sleep)
    A(f"{l}:\ns_barrier")

def put_flag(A, s_off, s_val, vt):
    A(f"""v_mov_b32 v{vt}, s{s_val}
    s_mov_b64 exec, 1
    buffer_store_dword v{vt}, off, {srd}, s{s_off} sc1
    s_mov_b64 exec, -1""")

CSC = (192 ** -0.5) * math.log2(math.e)
NEG = 0xf149f2ca

def posA(kp, t):
    return kp*6 + t if kp < 3 else 18 + (t//2)*14 + (kp-3)*2 + (t % 2)

def H(hooks, name, *a):
    if name in hooks: hooks[name](*a)

def role_A(A, exitlab, s_dbg, hooks, slow_too=True):
    w = S_WAVE
    common_init(A)
    t0, t1, t2 = MOP, MOP+1, MOP+2
    A(f"v_lshrrev_b32 v{t0}, 4, v0")
    t_plane_base(A, V_TW, t0, t1, 1536)
    A(f"""v_and_b32 v{t1}, 15, v0
    s_mul_i32 s{S_T}, s{w}, 48
    v_add_u32 v{t1}, s{S_T}, v{t1}
    v_lshl_add_u32 v{V_TW}, v{t1}, 3, v{V_TW}
    v_and_b32 v{t2}, 3, v0""")
    t_plane_base(A, V_TR, t2, t1, 1536)
    A(f"""v_bfe_u32 v{t1}, v0, 2, 2
    v_lshl_add_u32 v{t1}, v{t0}, 3, v{t1}
    v_lshl_add_u32 v{V_TR}, v{t1}, 3, v{V_TR}
    v_add_u32 v{V_X1}, {L_X}, v{V_LANE16}
    v_and_b32 v{t2}, 1, v0""")
    t_plane_base(A, V_JUNK, t2, t1, 1536)
    A(f"""v_bfe_u32 v{t1}, v0, 2, 2
    v_lshl_add_u32 v{t1}, v{t0}, 3, v{t1}
    v_lshl_add_u32 v{V_JUNK}, v{t1}, 3, v{V_JUNK}
    v_and_b32 v{t1}, 15, v0
    v_lshlrev_b32 v{V_X2}, 4, v{t1}
    v_and_b32 v{t1}, 1, v{t0}
    v_lshl_add_u32 v{V_X2}, v{t1}, 3, v{V_X2}""")
    A(f"v_and_b32 v{t1}, 15, v0\ns_sub_u32 s{S_T}, s{w}, 1\ns_lshl_b32 s{S_T}, s{S_T}, 4\nv_add_u32 v{t1}, s{S_T}, v{t1}")
    for kt in range(2):
        for i in range(4):
            A(f"""v_lshlrev_b32 v{t2}, 2, v{t0}
            v_add_u32 v{t2}, {16*kt+i}, v{t2}
            v_cmp_le_i32 {sr(S_MSK+8*kt+2*i,2)}, v{t2}, v{t1}""")
    A(f"s_mov_b32 s{S_MSK+16}, 0\ns_mov_b32 s{S_MSK+17}, -1\ns_mov_b32 s{S_CSC}, {hexf(CSC)}")
    l = A.newlabel('a_i')
    A(f"""v_bfe_u32 v{t1}, v0, 4, 1
    v_lshlrev_b32 v{t1}, 2, v{t1}
    v_sub_u32 v{V_X3}, v{V_X2}, v{t1}
    s_cmp_lg_u32 s{w}, 0
    s_cbranch_scc1 {l}
    v_lshrrev_b32 v{t2}, 5, v0
    v_lshl_add_u32 v{V_X2}, v{t2}, 8, v{V_X2}
    {l}:""")
    A(f"""s_mul_i32 s{S_T}, s{S_H}, 12288
    s_add_u32 s{S_C1}, s{S_T}, {WS_KF}
    s_add_u32 s{S_C2}, s{S_T}, {WS_QF}
    s_lshl_b32 s{S_C3}, s{S_HL}, 9
    s_add_u32 s{S_C3}, s{S_C3}, {P_OFF}
    s_lshr_b32 s{S_T+1}, s{S_HL}, 1
    s_lshl_b32 s{S_T+1}, s{S_T+1}, 8
    s_and_b32 s{S_T+2}, s{S_HL}, 1
    s_lshl_b32 s{S_T+2}, s{S_T+2}, 3
    s_add_u32 s{S_C4}, s{S_T+1}, s{S_T+2}
    s_add_u32 s{S_C4}, s{S_C4}, {P_OFF+4096}
    s_sub_u32 s{S_T}, s{w}, 1
    s_and_b32 s{S_T}, s{S_T}, 1
    s_mul_i32 s{S_T}, s{S_T}, 10240
    s_add_u32 s{S_T}, s{S_T}, {PX_OFF}
    s_add_u32 s{S_T}, s{S_T}, s{S_CUR}
    s_lshl_b32 s{S_C5}, s{S_HL}, 10
    s_add_u32 s{S_C5}, s{S_C5}, s{S_T}
    s_lshl_b32 s{S_C6}, s{S_HL}, 8
    s_add_u32 s{S_C6}, s{S_C6}, s{S_T}
    s_add_u32 s{S_C6}, s{S_C6}, 8192
    s_add_u32 s{S_C3}, s{S_C3}, s{S_CUR}
    s_add_u32 s{S_C4}, s{S_C4}, s{S_CUR}
    s_mul_i32 s{S_T}, s{w}, 3072
    s_add_u32 s{S_C1}, s{S_C1}, s{S_T}
    s_add_u32 s{S_C2}, s{S_C2}, s{S_T}
    s_add_u32 s{S_O1}, s{S_T}, {L_X}""")
    def bulk_pieces():
        P = []
        for m, sp in enumerate((S_C1, S_C2)):
            for i in range(3):
                x = f"s_add_u32 m0, s{S_O1}, {m*12288}\n" if i == 0 else ''
                if not NOKQ: x += bdma(V_LANE16, sp, i*1024)
                if i == 2: x += f"\ns_add_u32 s{sp}, s{sp}, {SEG_QKV}"
                P.append(x)
        return P
    A(f"""s_load_dwordx4 s[{S_A}:{S_A+3}], s[0:1], {KA_WQ}
    s_mul_i32 s{S_T}, s{S_H}, 384
    s_waitcnt lgkmcnt(0)""")
    add64(A, S_A, S_A, f"s{S_T}"); add64(A, S_B, S_B, f"s{S_T}")
    load_heads(A, [(S_A, lambda kp, t: posA(kp, 2*t)), (S_B, lambda kp, t: posA(kp, 2*t+1))])
    H(hooks, 'rts', A, 2)
    l = A.newlabel('a_i')
    A(f"s_cmp_lg_u32 s{w}, 0\ns_cbranch_scc1 {l}\nv_mov_b32 v0, v{V_X3}\n{l}:")
    waitall(A, s_dbg, exitlab, V_LANE16, s_slow=S_SLOW)
    H(hooks, 'wait_in', A, 'first')
    for x in bulk_pieces(): A(x)
    A(f"s_add_u32 s{S_O1}, s{S_O1}, 24576\ns_mov_b32 s{S_O3}, -24576")
    if slow_too: A(f"s_cmp_lg_u32 s{S_SLOW}, 0\ns_cbranch_scc1 a_loop_slow")
    for ver in (['', '_slow'] if slow_too else ['']):
        LF = 'sc1' if ver else ''
        A(f"a_loop{ver}:")
        lg = Lg(A)
        for i in range(4): stg_load(lg, i)
        for i in range(24): A(f"v_mov_b32 v{ACC+i}, 0")
        H(hooks, 'wait_in', A, 'peek')
        H(hooks, 'stamp', A, 0)
        if ASLEEP: A(f"s_sleep {ASLEEP}")
        ingest_mem(A, lg, exitlab)
        H(hooks, 'stamp', A, 1)
        bulk = bulk_pieces() if not KQW3 else []
        seq = [(kp, t) for kp in range(3) for t in range(6)] + [(kp, 2*tp+x) for tp in range(3) for kp in range(3, 10) for x in range(2)]
        KX = [MOP, MOP+4, MOP+8, STG+16, STG+20, STG+24, STG+28, STG, STG+4, STG+8, STG+12, ACC+4]
        kx_at = {20: [0], 22: [1], 24: [2], 27: [3], 29: [4], 31: [5], 33: [6], 35: [7], 37: [8], 39: [9], 41: [10], 46: [11]}
        S0, S1, SM = ACC+8, ACC+12, ACC
        def epi_ops(tp):
            Q, K = ACC + 8*tp, ACC + 8*tp + 4
            ops = [f"v_permlane32_swap_b32 v{Q+r}, v{K+r}" for r in range(4)]
            if tp < 2: ops += [f"v_add_f32 v{Q+r}, v{Q+r}, v{K+r}" for r in range(4)]
            else: ops += [f"v_pk_add_f32 {vr(Q+r,2)}, {vr(Q+r,2)}, {vr(K+r,2)}" for r in (0, 2)]
            ops += [f"v_cvt_pk_bf16_f32 v{K}, v{Q}, v{Q+1}", f"v_cvt_pk_bf16_f32 v{K+1}, v{Q+2}, v{Q+3}"]
            ops += [('ds', f"ds_write_b64 v{V_TW}, {vr(K,2)} offset:{L_T + tp*128}")]
            return ops
        pend = []
        for p, (kp, t) in enumerate(seq):
            if p == AB1:
                lg.need(('mw', 2)); A("s_barrier"); H(hooks, 'stamp', A, 5); read_mem_frags(A, lg)
                H(hooks, 'after_b1', A)
            kind, x = wloc(p)
            if kind == 'lds': lg.need(('w', x))
            if kp >= 3: lg.need(('m', kp))
            smf(A, ACC+4*t, MOP+4*kp, wreg(p))
            if kind == 'lds' and x + 4 < 10: stg_load(lg, x+4)
            for f in kx_at.get(p, []):
                lg.ds(f"ds_read_b128 {vr(KX[f],4)}, v{V_X1} offset:{f*1024}", ('kx', f))
            if p == 30: pend += [f"v_mov_b32 v{V_X3}, 0x{NEG:x}"]
            if p == AB1: A(f"s_mov_b64 vcc, {sr(S_EVEN,2)}")
            if p > AB1 and (p - AB1) % KQP == 1 and bulk:
                lb = A.newlabel('kq'); A(f"s_cbranch_vccnz {lb}"); A(bulk.pop(0)); A(f"{lb}:")
            if p == 34: pend += epi_ops(0) + [f"v_cndmask_b32 v{SM+r}, v{V_X3}, 0, {sr(S_MSK+16,2)}" for r in range(3)]
            if p == 48: pend += epi_ops(1) + [f"v_cndmask_b32 v{SM+3}, v{V_X3}, 0, {sr(S_MSK+16,2)}"]
            if pend:
                o = pend.pop(0)
                if isinstance(o, tuple): lg.ds(o[1])
                else: A(o)
        assert not pend and not bulk
        lx, l3, lend = f'a_xrows{ver}', f'a_w3{ver}', f'a_end{ver}'
        A(f"s_cmp_lg_u32 s{w}, 0")
        for o in epi_ops(2):
            if isinstance(o, tuple): lg.ds(o[1])
            else: A(o)
        lg.all(); A("s_barrier")
        H(hooks, 'stamp', A, 2)
        A(f"s_cbranch_scc1 {lx}")
        QK = MOP + 12
        QQ = [MOP+36, ACC+16, ACC+20]
        lg = Lg(A)
        def rd_qq(kk):
            for q in range(2): lg.ds(f"ds_read_b64_tr_b16 {vr(QQ[kk%3]+2*q,2)}, v{V_JUNK} offset:{L_T + kk*256 + q*32}", ('qq', kk))
        def rd_qk(kk):
            for q in range(2): lg.ds(f"ds_read_b64_tr_b16 {vr(QK+4*kk+2*q,2)}, v{V_TR} offset:{L_T + kk*256 + q*32}", ('qk', kk))
        for kk in range(3): rd_qq(kk); rd_qk(kk)
        for kk in range(6):
            lg.need(('qq', kk))
            b = vr(QQ[kk%3], 4)
            A(f"v_mfma_f32_16x16x32_bf16 {vr(S0,4)}, {vr(KX[kk],4)}, {b}, {'0' if kk == 0 else vr(S0,4)}")
            A(f"v_mfma_f32_16x16x32_bf16 {vr(S1,4)}, {vr(KX[6+kk],4)}, {b}, {'0' if kk == 0 else vr(S1,4)}")
            lg.need(('qk', kk))
            A(f"v_mfma_f32_16x16x32_bf16 {vr(SM,4)}, {vr(QK+4*kk,4)}, {b}, {vr(SM,4)}")
            if kk + 3 < 6: rd_qq(kk+3); rd_qk(kk+3)
        H(hooks, 'stamp', A, 4)
        E = MOP; M_, T_, L_, G_ = MOP+8, MOP+9, MOP+10, MOP+11
        for n, s_ in enumerate((S0, S1, SM)):
            for j in range(2):
                A(f"v_cndmask_b32 v{E+2*n+j}, v{s_+j}, v{s_+2+j}, {sr(S_HI,2)}")
        A(f"""v_max3_f32 v{M_}, v{E}, v{E+1}, v{E+2}
        v_max3_f32 v{M_}, v{M_}, v{E+3}, v{E+4}
        v_max_f32 v{M_}, v{M_}, v{E+5}
        v_mul_f32 v{M_}, s{S_CSC}, v{M_}
        v_fma_f32 v{E}, v{E}, s{S_CSC}, -v{M_}
        v_fma_f32 v{E+1}, v{E+1}, s{S_CSC}, -v{M_}
        v_max_f32_dpp v{G_}, v{M_}, v{M_} row_ror:8 row_mask:0xf bank_mask:0xf
        v_mov_b32 v{T_}, v{G_}
        v_fma_f32 v{E+2}, v{E+2}, s{S_CSC}, -v{M_}
        v_fma_f32 v{E+3}, v{E+3}, s{S_CSC}, -v{M_}
        v_permlane16_swap_b32 v{G_}, v{T_}
        v_max_f32 v{G_}, v{G_}, v{T_}
        v_mov_b32 v{T_}, v{G_}
        v_fma_f32 v{E+4}, v{E+4}, s{S_CSC}, -v{M_}
        v_fma_f32 v{E+5}, v{E+5}, s{S_CSC}, -v{M_}
        v_permlane32_swap_b32 v{G_}, v{T_}
        v_max_f32 v{G_}, v{G_}, v{T_}
        v_sub_f32 v{G_}, v{M_}, v{G_}""")
        for j in range(6): A(f"v_exp_f32 v{E+j}, v{E+j}")
        A(f"""v_exp_f32 v{G_}, v{G_}
        v_pk_add_f32 {vr(M_,2)}, {vr(E,2)}, {vr(E+2,2)}
        v_pk_add_f32 {vr(M_,2)}, {vr(M_,2)}, {vr(E+4,2)}
        v_add_f32 v{L_}, v{M_}, v{T_}
        v_mul_f32 v{L_}, v{L_}, v{G_}
        v_add_f32_dpp v{L_}, v{L_}, v{L_} row_ror:8 row_mask:0xf bank_mask:0xf""")
        xlane_sum_g(A, L_, T_)
        A(f"""v_rcp_f32 v{L_}, v{L_}
        v_mul_f32 v{L_}, v{L_}, v{G_}""")
        for j in range(3): A(f"v_pk_mul_f32 {vr(E+2*j,2)}, {vr(E+2*j,2)}, {vr(L_,2)} op_sel_hi:[1,0]")
        for n in range(3): A(f"v_cvt_pk_bf16_f32 v{E+16+n}, v{E+2*n}, v{E+2*n+1}")
        A(f"v_and_or_b32 v{E+16}, v{E+16}, -2, s{S_TAG}\nv_and_or_b32 v{E+18}, v{E+18}, -2, s{S_TAG}")
        A(bst(2, E+16, V_X2, S_C3, 0, LF))
        A(f"s_mov_b32 exec_lo, 0")
        A(bst(1, E+18, 0, S_C4, 0, LF))
        A("s_mov_b32 exec_lo, -1")
        H(hooks, 'stamp', A, 3)
        A(f"s_branch {lend}")
        A(f"{l3}:")
        H(hooks, 'steplog', A)
        if KQW3:
            for m, sp in enumerate((S_C1, S_C2)):
                for i in range(12):
                    if i % 3 == 0: A(f"s_add_u32 m0, s{S_O1}, {m*12288 + i*1024 - 9216}\ns_add_u32 s{S_T}, s{sp}, {i*1024 - 9216}")
                    if not NOKQ: A(bdma(V_LANE16, S_T, (i % 3)*1024))
                A(f"s_add_u32 s{sp}, s{sp}, {SEG_QKV}")
        A(f"s_sleep {(7 if KQW3 else 12) if ASLEEP else 0}\ns_branch {lend}")
        A(f"{lx}:\ns_cmp_eq_u32 s{w}, 3\ns_cbranch_scc1 {l3}")
        lg = Lg(A)
        A(f"s_mul_i32 s{S_T}, s{w}, 6144\nv_add_u32 v{V_JUNK}, s{S_T}, v{V_X1}")
        def rd_qx(kk): lg.ds(f"ds_read_b128 {vr(QQ[kk%3],4)}, v{V_JUNK} offset:{6144 + kk*1024}", ('qq', kk))
        for kt, s_ in enumerate((S0, S1)):
            for r in range(4): A(f"v_cndmask_b32 v{s_+r}, v{V_X3}, 0, {sr(S_MSK+8*kt+2*r,2)}")
        for kk in range(3): rd_qx(kk); rd_qk(kk)
        for kk in range(6):
            lg.need(('qq', kk))
            b = vr(QQ[kk%3], 4)
            A(f"v_mfma_f32_16x16x32_bf16 {vr(S0,4)}, {vr(KX[kk],4)}, {b}, {vr(S0,4)}")
            A(f"v_mfma_f32_16x16x32_bf16 {vr(S1,4)}, {vr(KX[6+kk],4)}, {b}, {vr(S1,4)}")
            lg.need(('qk', kk))
            A(f"v_mfma_f32_16x16x32_bf16 {vr(SM,4)}, {vr(QK+4*kk,4)}, {b}, {vr(SM,4)}")
            if kk + 3 < 6: rd_qx(kk+3); rd_qk(kk+3)
        vals = [S0+i for i in range(4)] + [S1+i for i in range(4)] + [SM+i for i in range(4)]
        A(f"v_max3_f32 v{M_}, v{vals[0]}, v{vals[1]}, v{vals[2]}")
        for j in range(3, 11, 2): A(f"v_max3_f32 v{M_}, v{M_}, v{vals[j]}, v{vals[j+1]}")
        A(f"v_max_f32 v{M_}, v{M_}, v{vals[11]}")
        xlane_max_g(A, M_, T_)
        A(f"v_mul_f32 v{M_}, s{S_CSC}, v{M_}")
        for v in vals: A(f"v_fma_f32 v{v}, v{v}, s{S_CSC}, -v{M_}")
        for v in vals: A(f"v_exp_f32 v{v}, v{v}")
        A(f"v_add_f32 v{L_}, v{vals[0]}, v{vals[1]}")
        for v in vals[2:]: A(f"v_add_f32 v{L_}, v{L_}, v{v}")
        xlane_sum_g(A, L_, T_)
        A(f"v_rcp_f32 v{L_}, v{L_}")
        for v in vals: A(f"v_mul_f32 v{v}, v{v}, v{L_}")
        for n in range(6): A(f"v_cvt_pk_bf16_f32 v{E+n}, v{vals[2*n]}, v{vals[2*n+1]}")
        A(f"""s_bfe_u32 s{S_T}, s{S_STEP}, 0x10002
        s_and_b32 s{S_T+1}, s{S_STEP}, 3
        s_lshl_b32 s{S_T+1}, s{S_T+1}, 15
        s_add_u32 s{S_T+2}, s{S_T+1}, s{S_C6}
        s_add_u32 s{S_T+1}, s{S_T+1}, s{S_C5}
        v_and_or_b32 v{E}, v{E}, -2, s{S_T}
        v_and_or_b32 v{E+4}, v{E+4}, -2, s{S_T}""")
        A(bst(4, E, V_LANE16, S_T+1, 0, LF))
        A("s_mov_b32 exec_lo, 0")
        A(bst(2, E+4, V_X2, S_T+2, 0, LF))
        A("s_mov_b32 exec_lo, -1")
        A(f"{lend}:")
        H(hooks, 'stamp', A, 6)
        if 'wait_in' in hooks:
            lb = A.newlabel('kq')
            A(f"s_cmp_eq_u64 {sr(S_EVEN,2)}, 0\ns_cbranch_scc1 {lb}")
            H(hooks, 'wait_in', A, 'block')
            for x in bulk_pieces(): A(x)
            A(f"{lb}:")
        next_step(A)
        A(f"""s_add_u32 s{S_O1}, s{S_O1}, s{S_O3}
        s_sub_u32 s{S_O3}, 0, s{S_O3}
        v_add_u32 v{V_X1}, s{S_O3}, v{V_X1}
        s_cmp_lt_u32 s{S_STEP}, {NSEG}
        s_cbranch_scc1 a_loop{ver}
        s_branch a_fin""")
    A("a_fin:")
    H(hooks, 'final', A)
    A(f"v_lshrrev_b32 v0, 4, v{V_LANE16}\ns_branch {hooks['next_ab']}")

def posB_v(kp, t): return kp*3 + t if kp < 3 else 9 + t*7 + (kp-3)
def posB_o(pr, kk): return 30 + (kk*2 + pr if pr < 2 else pr*6 + kk)

def role_B(A, exitlab, s_dbg, hooks, slow_too=True):
    w = S_WAVE
    common_init(A)
    t0, t1, t2 = MOP, MOP+1, MOP+2
    A(f"""v_lshrrev_b32 v{t0}, 4, v0
    v_and_b32 v{t1}, 1, v{t0}
    v_mul_u32_u24 v{V_TW}, 1568, v{t1}
    v_and_b32 v{t1}, 15, v0
    s_mul_i32 s{S_T}, s{w}, 48
    v_add_u32 v{t1}, s{S_T}, v{t1}
    v_lshl_add_u32 v{V_TW}, v{t1}, 3, v{V_TW}
    v_lshrrev_b32 v{t1}, 5, v0
    v_lshl_add_u32 v{V_X1}, v{t1}, 2, v{V_TW}
    v_lshl_add_u32 v{V_TW}, v{t1}, 7, v{V_TW}
    v_and_b32 v{t1}, 1, v0
    v_mul_u32_u24 v{V_TR}, 1568, v{t1}
    v_bfe_u32 v{t1}, v0, 2, 2
    v_lshl_add_u32 v{V_TR}, v{t1}, 3, v{V_TR}
    v_lshl_add_u32 v{V_TR}, v{t0}, 6, v{V_TR}
    v_and_b32 v{t1}, 15, v0
    v_lshlrev_b32 v{V_X2}, 4, v{t1}
    v_and_b32 v{t1}, 1, v{t0}
    v_lshl_add_u32 v{V_X2}, v{t1}, 3, v{V_X2}
    v_lshrrev_b32 v{t1}, 5, v0
    v_lshl_add_u32 v{V_X2}, v{t1}, 10, v{V_X2}""")
    A(f"""s_lshr_b32 s{S_T}, s{S_HL}, 2
    s_mul_i32 s{S_T}, s{S_T}, 40960
    s_mul_i32 s{S_T+1}, s{w}, 10240
    s_add_u32 s{S_T}, s{S_T}, s{S_T+1}
    s_and_b32 s{S_T+1}, s{S_HL}, 3
    s_lshl_b32 s{S_T+1}, s{S_T+1}, 8
    s_add_u32 s{S_T}, s{S_T}, s{S_T+1}
    s_add_u32 s{S_T}, s{S_T}, s{S_CUR}
    s_add_u32 s{S_C1}, s{S_T}, {Y_OFF}
    s_add_u32 s{S_C2}, s{S_C1}, 4096
    s_add_u32 s{S_C3}, s{S_C1}, 8192""")
    YSO = [S_C1, S_C2, S_C3]
    A(f"""s_load_dwordx4 s[{S_A}:{S_A+3}], s[0:1], {KA_WV}
    s_mul_i32 s{S_T}, s{S_H}, 384
    s_mul_i32 s{S_T+1}, s{S_H}, 245760
    s_mul_i32 s{S_T+2}, s{w}, 320
    s_add_u32 s{S_T+1}, s{S_T+1}, s{S_T+2}
    s_waitcnt lgkmcnt(0)""")
    add64(A, S_A, S_A, f"s{S_T}"); add64(A, S_B, S_B, f"s{S_T+1}")
    load_heads(A, [(S_A, posB_v)])
    A(f"s_mul_i32 s{S_T+4}, s{w}, 20480")
    d_, t_ = MOP+2, MOP+3
    A(f"""v_bfe_u32 v{d_}, v0, 2, 1
    v_lshrrev_b32 v{t_}, 4, v0
    v_lshl_add_u32 v{d_}, v{t_}, 2, v{d_}
    v_mul_u32_u24 v{d_}, 320, v{d_}
    v_bfe_u32 v{t_}, v0, 3, 1
    v_lshl_add_u32 v{d_}, v{t_}, 5, v{d_}
    v_and_b32 v{t_}, 3, v0
    v_lshl_add_u32 v{d_}, v{t_}, 3, v{d_}
    v_add_u32 v{d_}, s{S_T+4}, v{d_}""")
    def reads(A, r, off):
        for pr in range(5):
            read_operand(A, posB_o(pr, r), MOP+2, off + pr*64, 320, hrows=16)
    load_w_rows(A, S_B, 1280, 20, 192, 32, 2, S_T+4, 0, S_T, MOP, reads)
    A("s_barrier")
    H(hooks, 'rts', A, 2)
    waitall(A, s_dbg, exitlab, V_LANE16, s_slow=S_SLOW)
    if slow_too: A(f"s_cmp_lg_u32 s{S_SLOW}, 0\ns_cbranch_scc1 b_loop_slow")
    for ver in (['', '_slow'] if slow_too else ['']):
        LF = 'sc1' if ver else ''
        A(f"b_loop{ver}:")
        lg = Lg(A)
        for i in range(4): stg_load(lg, i)
        for i in range(24): A(f"v_mov_b32 v{ACC+i}, 0")
        H(hooks, 'stamp', A, 0)
        if BSLEEP: A(f"s_sleep {BSLEEP}")
        ingest_mem(A, lg, exitlab)
        H(hooks, 'stamp', A, 1)
        seqv = [(kp, t) for kp in range(3) for t in range(3)] + [(kp, t) for t in range(3) for kp in range(3, 10)]
        pend = []
        for p, (kp, t) in enumerate(seqv):
            if p == BB1:
                lg.need(('mw', 2)); A("s_barrier"); read_mem_frags(A, lg)
                H(hooks, 'after_b1', A)
            kind, x = wloc(p)
            if kind == 'lds': lg.need(('w', x))
            if kp >= 3: lg.need(('m', kp))
            smf(A, ACC+4*t, MOP+4*kp, wreg(p))
            if kind == 'lds' and x + 4 < 10: stg_load(lg, x+4)
            if p == 25:
                a, b = ACC, ACC+4
                pend += [f"v_permlane32_swap_b32 v{a+r}, v{b+r}" for r in range(4)]
                pend += [f"v_pk_add_f32 {vr(a,2)}, {vr(a,2)}, {vr(b,2)}\nv_pk_add_f32 {vr(a+2,2)}, {vr(a+2,2)}, {vr(b+2,2)}"]
            if pend: A(pend.pop(0))
        assert not pend
        A(f"v_cvt_pk_bf16_f32 v{ACC+4}, v{ACC}, v{ACC+1}\nv_cvt_pk_bf16_f32 v{ACC+5}, v{ACC+2}, v{ACC+3}")
        lg.ds(f"ds_write_b64 v{V_TW}, {vr(ACC+4,2)} offset:{L_T}")
        YA = [ACC+12, ACC+16, ACC+20, MOP+24, MOP+28]
        c = ACC + 8
        A(f"""v_permlane32_swap_b32 v{c}, v{c+2}
        v_permlane32_swap_b32 v{c+1}, v{c+3}
        v_pk_add_f32 {vr(c,2)}, {vr(c,2)}, {vr(c+2,2)}
        v_cvt_pk_bf16_f32 v{c}, v{c}, v{c+1}""")
        lg.ds(f"ds_write_b32 v{V_X1}, v{c} offset:{L_T+256}")
        for i in range(8): A(f"v_mov_b32 v{MOP+24+i}, 0")
        lg.all(); A("s_barrier")
        H(hooks, 'stamp', A, 2)
        for kk in range(6):
            for q in range(2):
                lg.ds(f"ds_read_b64_tr_b16 {vr(MOP+4*kk+2*q,2)}, v{V_TR} offset:{L_T + kk*256 + q*32}", ('v', kk))
        def yepi(pr):
            a = YA[pr]
            return [f"v_cvt_pk_bf16_f32 v{a}, v{a}, v{a+1}", f"v_cvt_pk_bf16_f32 v{a+1}, v{a+2}, v{a+3}",
                    f"v_and_or_b32 v{a}, v{a}, -2, s{S_TAG}\n" + bst(2, a, V_X2, YSO[pr//2], (pr % 2)*2048, LF)]
        pend = []
        seqy = sorted([(posB_o(pr, kk), pr, kk) for pr in range(5) for kk in range(6)])
        for p, pr, kk in seqy:
            kind, x = wloc(p)
            if kind == 'lds': lg.need(('w', x))
            lg.need(('v', kk))
            smf(A, YA[pr], MOP+4*kk, wreg(p))
            if p == 43: pend += yepi(0) + yepi(1)
            if p == 50: pend += yepi(2)
            if p == 56: pend += yepi(3)
            if pend: A(pend.pop(0))
        for o in pend + yepi(4): A(o)
        H(hooks, 'stamp', A, 3)
        next_step(A)
        A(f"""s_cmp_lt_u32 s{S_STEP}, {NSEG}
        s_cbranch_scc1 b_loop{ver}
        s_branch b_fin""")
    A("b_fin:")
    H(hooks, 'final', A)
    A(f"s_branch {hooks['next_ab']}")

GREP = int(os.environ.get('GREP', '6'))
GPRE = int(os.environ.get('GPRE', '3'))
GGAP = int(os.environ.get('GGAP', '3'))
PPIPE = int(os.environ.get('PPIPE', '2'))
GMODE = os.environ.get('GMODE', 'load')
QREJ = int(os.environ.get('QREJ', '1'))
GLOOPGAP = int(os.environ.get('GLOOPGAP', '0'))

def role_R(A, exitlab, s_dbg, hooks, slow_too=True):
    w = S_WAVE
    LU, LY = 0, 98304
    VL, VIDX, VT, VG, VM, VTM, VU, VY = 1, V_IDX, 2, 3, 4, 5, 6, 7
    A(f"""v_lshlrev_b32 v{VL}, 4, v0
    s_mov_b32 s{S_HI}, 0xff00ff00
    s_mov_b32 s{S_HI+1}, 0xff00ff00
    v_mov_b32 v{VIDX}, 0x4444
    v_mov_b32 v{VT}, 0xeeee
    v_cndmask_b32 v{VIDX}, v{VIDX}, v{VT}, {sr(S_HI,2)}
    s_mov_b32 s{S_SEL0}, 0x00003f80
    s_mov_b32 s{S_SEL1}, 0x3f800000
    s_lshl_b32 s{S_CUR}, s{S_GRP}, 18
    s_add_u32 s{S_CUR}, s{S_CUR}, {LBASE}
    s_mov_b32 s{S_TAG}, 0
    s_mov_b32 s{S_STEP}, 0
    s_mov_b32 s{S_EVEN}, 0x55555555
    s_mov_b32 s{S_EVEN+1}, 0x55555555
    s_lshl_b32 s{S_T}, s{S_HL}, 2
    s_add_u32 s{S_T}, s{S_T}, s{w}
    s_mul_i32 s{S_T}, s{S_T}, 6144
    s_add_u32 s{S_T}, s{S_T}, s{S_CUR}
    s_add_u32 s{S_T}, s{S_T}, {P_OFF}
    s_add_u32 s{S_T+1}, s{S_T}, 3072""")
    for i in range(4): A(f"v_mov_b32 v{20+i}, -1")
    for i in range(6): A(bst(4, 20, VL, S_T + i//3, (i % 3)*1024, 'sc1'))
    A(f"""s_cmp_ge_u32 s{w}, 2
    s_cbranch_scc1 r_x""")
    S_UGc, S_UDc, S_ULc, S_LATE = S_MSK+8, S_MSK+9, S_MSK+10, S_MSK+12
    A(f"""s_lshl_b32 s{S_T+1}, s{S_GRP}, 1
    s_add_u32 s{S_T+1}, s{S_T+1}, s{w}
    s_mul_i32 s{S_UGc}, s{S_T+1}, {4*40960}
    s_lshl_b32 s{S_T+1}, s{S_HL}, 12
    s_add_u32 s{S_UGc}, s{S_UGc}, s{S_T+1}
    s_add_u32 s{S_UGc}, s{S_UGc}, {WS_UF}
    s_lshl_b32 s{S_ULc}, s{w}, 14
    s_mov_b32 s{S_UDc}, 0""")
    def dma_pieces():
        P = []
        for hh in range(4):
            for t_ in range(4):
                x = ''
                if hh == 0 and t_ == 0: x += f"s_add_u32 s{S_T}, s{S_UDc}, s{S_ULc}\n"
                if t_ == 0: x += f"s_add_u32 m0, s{S_T}, {hh*4096}\n"
                if not NOU: x += bdma(VL, S_UGc, t_*1024) + '\n'
                if t_ == 3: x += f"s_add_u32 s{S_UGc}, s{S_UGc}, {40960 if hh < 3 else SEG_U - 3*40960}\n"
                if hh == 3 and t_ == 3: x += f"s_add_u32 s{S_UDc}, s{S_UDc}, 32768\ns_cmp_eq_u32 s{S_UDc}, 98304\ns_cselect_b32 s{S_UDc}, 0, s{S_UDc}"
                P.append(x)
        return P
    def dma_u():
        for x in dma_pieces(): A(x)
    S_GS, S_GR = S_MSK, S_MSK+4
    S_YC, S_YC2, S_PC, S_MO, S_UB, S_TAGN, S_GD = S_C1, S_C2, S_C3, S_C4, S_C5, S_C6, S_O1
    A(f"""s_load_dwordx2 {sr(S_A,2)}, s[0:1], {KA_MEM0}
    s_lshl_b32 s{S_T}, s{S_HL}, 1
    s_add_u32 s{S_T}, s{S_T}, s{w}
    s_lshr_b32 s{S_T+1}, s{S_T}, 4
    s_lshl_b32 s{S_T+1}, s{S_T+1}, 14
    s_and_b32 s{S_T+2}, s{S_T}, 15
    s_lshl_b32 s{S_T+2}, s{S_T+2}, 9
    s_add_u32 s{S_T+1}, s{S_T+1}, s{S_T+2}""")
    for k in range(NG):
        A(f"""s_xor_b32 s{S_T+2}, s{S_GRP}, {k}
        s_lshl_b32 s{S_T+2}, s{S_T+2}, 18
        s_add_u32 s{S_GS+k}, s{S_T+2}, s{S_T+1}""")
    A(f"""s_lshl_b32 s{S_T+1}, s{S_T}, 11
    s_add_u32 s{S_YC}, s{S_T+1}, s{S_CUR}
    s_add_u32 s{S_YC}, s{S_YC}, {Y_OFF}
    s_add_u32 s{S_YC2}, s{S_YC}, 40960
    s_add_u32 s{S_PC}, s{S_CUR}, {P_OFF}
    s_add_u32 s{S_O2}, s{S_PC}, 4096
    s_lshl_b32 s{S_MO}, s{S_T}, 9
    s_add_u32 s{S_MO}, s{S_MO}, s{S_CUR}
    s_add_u32 s{S_MO}, s{S_MO}, {M_OFF}
    s_mov_b32 s{S_UB}, 0
    s_mov_b32 s{S_GD}, {GSLOT}
    v_lshlrev_b32 v{VG}, 3, v0
    s_lshl_b32 s{S_T+1}, s{w}, 11
    v_add_u32 v{VU}, s{S_T+1}, v{VL}
    s_lshl_b32 s{S_T+1}, s{w}, 12
    s_add_u32 s{S_T+1}, s{S_T+1}, {LY}
    v_add_u32 v{VY}, s{S_T+1}, v{VL}""")
    t = 16
    A(f"""v_bfe_u32 v{VM}, v0, 5, 1
    v_bfe_u32 v{t}, v0, 3, 1
    v_lshl_add_u32 v{VM}, v{VM}, 1, v{t}
    v_bfe_u32 v{t}, v0, 4, 1
    v_lshl_add_u32 v{VM}, v{VM}, 1, v{t}
    v_and_b32 v{t}, 1, v0
    v_lshl_add_u32 v{VM}, v{VM}, 1, v{t}
    v_bfe_u32 v{t}, v0, 1, 2
    v_lshl_add_u32 v{VM}, v{VM}, 3, v{t}
    v_lshlrev_b32 v{VM}, 2, v{VM}
    v_cmp_eq_u32 vcc, 0, v{t}
    v_cndmask_b32 v{VTM}, 0, 1, vcc""")
    A(f"""v_bfe_u32 v{t}, v0, 1, 3
    v_mul_u32_u24 v{t}, 1280, v{t}
    v_lshrrev_b32 v{t+1}, 4, v0
    v_lshl_add_u32 v{t}, v{t+1}, 4, v{t}
    v_and_b32 v{t+1}, 1, v0
    v_lshl_add_u32 v{t}, v{t+1}, 3, v{t}
    s_lshl_b32 s{S_T}, s{S_T}, 6
    v_add_u32 v{t}, s{S_T}, v{t}
    s_waitcnt lgkmcnt(0)
    global_load_dwordx2 {vr(t+2,2)}, v{t}, {sr(S_A,2)}
    v_cndmask_b32 v{t+1}, -1, -2, {sr(S_EVEN,2)}
    v_mov_b32 v{t+4}, -1
    v_mov_b32 v{t+5}, -1
    s_waitcnt vmcnt(0)
    v_and_b32 v{t+2}, v{t+1}, v{t+2}""")
    A(bst(2, t+2, VG, S_MO, 0, 'sc1'))
    VGR = 240
    A(f"s_add_u32 s{S_T}, s{S_GS}, {GSLOT}\ns_add_u32 s{S_T+1}, s{S_GS}, 8192\ns_add_u32 s{S_T+2}, s{S_T}, 8192")
    for r in range(GREP):
        A(f"v_add_u32 v{VGR+r}, {r*GBLK}, v{VG}")
        for so in (S_GS, S_T, S_T+1, S_T+2): A(bst(2, t+4, VGR+r, so, 0, 'sc1'))
    checkin(A, s_dbg)
    waitall(A, s_dbg, exitlab, VL, s_slow=S_SLOW, s_pol=S_POL)
    for k in range(NG): A(f"s_add_u32 s{S_GS+k}, s{S_GS+k}, s{S_POL}")
    H(hooks, 'wait_u', A, 0)
    dma_u()
    A("s_waitcnt vmcnt(0)\ns_barrier")
    if slow_too: A(f"s_cmp_lg_u32 s{S_SLOW}, 0\ns_cbranch_scc1 r_loop_slow")
    UR = lambda t_, hh: 32 + 32*t_ + 4*hh
    YR = lambda t_, q: 96 + 8*t_ + 4*q
    PS = lambda st, f: 112 + 20*st + 4*f
    RA = 16
    GO, GF = 24, 26
    GS = lambda st, k: 172 + 8*st + 2*k
    def ypark():
        for t_ in range(2):
            for q in range(2): A(f"ds_write_b128 v{VY}, {vr(YR(t_,q),4)} offset:{t_*2048+q*1024}")
        A(f"v_xor_b32 v{VY}, 8192, v{VY}")
    for ver in (['', '_slow'] if slow_too else ['']):
        LF = 'sc1' if ver else ''
        A(f"r_loop{ver}:")
        H(hooks, 'stamp', A, 0)
        lg = Lg(A)
        A(f"v_add_u32 v{VT}, s{S_UB}, v{VU}")
        for hh in range(8):
            for t_ in range(2):
                lg.ds(f"ds_read_b128 {vr(UR(t_,hh),4)}, v{VT} offset:{hh*4096+t_*1024}")
        A(f"""s_add_u32 s{S_UB}, s{S_UB}, 32768
        s_cmp_eq_u32 s{S_UB}, 98304
        s_cselect_b32 s{S_UB}, 0, s{S_UB}
        s_bfe_u32 s{S_TAGM}, s{S_STEP}, 0x10001
        s_xor_b32 s{S_TAGN}, s{S_TAG}, 1
        s_xor_b32 s{S_T}, s{S_TAGM}, 1
        v_mov_b32 v{GF}, s{S_T}""")
        if XLEAD: A(f"s_sleep {XLEAD}")
        l = A.newlabel('r_nd')
        A(f"s_cmp_ge_u32 s{S_STEP}, {NSEG-1}\ns_cbranch_scc1 {l}")
        lk = A.newlabel('r_sk')
        H(hooks, 'cached_u', A, lk, S_LATE)
        dma_u()
        A(f"{lk}:")
        H(hooks, 'peek_u', A)
        for r in range(GREP if SCRUB else 0): A(bst(2, GF, VGR+r, S_GS, 0, 'sc1'))
        A(f"{l}:")
        if RSLEEP: A(f"s_sleep {RSLEEP}")
        shadow = None
        yl = lambda b: [bld(4, b+8*t_+4*q, VL, [S_YC, S_YC2][q], t_*1024, 'sc1') for t_ in range(2) for q in range(2)]
        yc = lambda b: [b+2*i for i in range(8)]
        if not YPIPE:
            poll(A, 'ry', yl(YR(0, 0)), yc(YR(0, 0)), S_TAG, exitlab, shadow)
        else:
            Y0, Y1 = 220, YR(0, 0)
            lp, n0, jj = A.newlabel('py'), A.newlabel('py'), A.newlabel('py')
            for x in yl(Y0): A(x)
            A(f"s_sleep {YPIPE}\n{lp}:")
            for x in yl(Y1): A(x)
            tick(A, exitlab)
            A("s_waitcnt vmcnt(4)")
            check(A, yc(Y0), S_TAG, n0)
            A(f"s_branch {jj}\n{n0}:")
            for x in yl(Y0): A(x)
            A("s_waitcnt vmcnt(4)")
            check(A, yc(Y1), S_TAG, lp)
            A(f"{jj}:")
        H(hooks, 'stamp', A, 1)
        def pl(st):
            for f in range(4): A(bld(4, PS(st, f), VL, S_PC, f*1024, 'sc1'))
            A(bld(4, PS(st, 4), VL, S_O2, 0, 'sc1'))
        A(f"s_cmp_ge_u32 s{S_STEP}, {NSEG-1}\ns_cbranch_scc1 r_last")
        for st in range(PPIPE-1): pl(st)
        lg.all()
        lp, lok = A.newlabel('rp'), A.newlabel('rok')
        nx = [A.newlabel('rn') for _ in range(PPIPE)]
        for i in range(8): A(f"v_mov_b32 v{RA+i}, 0")
        A(f"{lp}:")
        for st in range(PPIPE):
            pl((st+PPIPE-1) % PPIPE)
            if st == 0: tick(A, exitlab)
            A(f"s_waitcnt vmcnt({5*(PPIPE-1)})")
            ck = [PS(st, f)+j for f in range(4) for j in (0, 2)] + [PS(st, 4)+j for j in ((1, 3) if QREJ else range(4))]
            if QREJ: check(A, [PS(st, 4), PS(st, 4)+2], S_TAG, nx[st] if st < PPIPE-1 else lp)
            ops = [f"v_bitop3_b32 v{V_X3}, v{ck[0]}, v{ck[1]}, s{S_TAG} bitop3:0x7e"]
            ops += [f"v_bitop3_b32 v{V_X3}, v{x}, v{V_X3}, s{S_TAG} bitop3:0xde" for x in ck[2:]]
            ops += [f"v_and_b32 v{V_X3}, 1, v{V_X3}", f"v_cmp_ne_u32 vcc, 0, v{V_X3}"]
            for f in range(5):
                for t_ in range(2):
                    smf(A, RA+4*t_, PS(st, f), UR(t_, 2*f) if f < 4 else YR(t_, 0))
                    A(ops.pop(0))
            for o in ops: A(o)
            A(f"s_nop {4 if QREJ else 2}\ns_cbranch_vccz {lok}")
            for i in range(8): A(f"v_mov_b32 v{RA+i}, 0")
            if st < PPIPE-1: A(f"{nx[st]}:")
            else: A(f"s_branch {lp}")
        A(f"{lok}:")
        H(hooks, 'stamp', A, 2)
        a, b = RA, RA+4
        A(f"s_mov_b64 vcc, {sr(S_EVEN,2)}")
        for r in range(4): A(f"v_permlane32_swap_b32 v{a+r}, v{b+r}")
        A(f"""v_pk_add_f32 {vr(a,2)}, {vr(a,2)}, {vr(b,2)}
        v_pk_add_f32 {vr(a+2,2)}, {vr(a+2,2)}, {vr(b+2,2)}
        v_cvt_pk_bf16_f32 v{b}, v{a}, v{a+1}
        v_cvt_pk_bf16_f32 v{b+1}, v{a+2}, v{a+3}
        v_cndmask_b32_dpp v{GO}, v{b+1}, v{b}, vcc quad_perm:[0,0,2,2] row_mask:0xf bank_mask:0xf
        s_not_b64 vcc, vcc
        v_and_or_b32 v{GO}, v{GO}, -2, s{S_TAGM}
        v_cndmask_b32_dpp v{GO+1}, v{b}, v{b+1}, vcc quad_perm:[1,1,3,3] row_mask:0xf bank_mask:0xf""")
        for r in range(GREP): A(bst(2, GO, VGR+r, S_GS, 0, 'sc1'))
        H(hooks, 'stamp', A, 3)
        ypark()
        A(f"""v_lshlrev_b32 v{GF}, 16, v{GO}
        v_and_b32 v{GF+1}, 0xffff0000, v{GO}
        v_lshlrev_b32 v{GF+2}, 16, v{GO+1}
        v_and_b32 v{GF+3}, 0xffff0000, v{GO+1}""")
        if GDELAY: A(f"s_sleep {GDELAY}")
        def gl(r):
            for k in range(1, NG): A(bld(2, GS(r, k), VGR+r, S_GS+k, 0, 'sc1'))
        def gc(r, lab):
            A(f"""v_bitop3_b32 v{V_X3}, v{GS(r,1)}, v{GS(r,2)}, s{S_TAGM} bitop3:0x7e
            v_bitop3_b32 v{V_X3}, v{GS(r,3)}, v{V_X3}, s{S_TAGM} bitop3:0xde
            v_and_b32 v{V_X3}, 1, v{V_X3}
            v_cmp_ne_u32 vcc, 0, v{V_X3}
            s_cbranch_vccz {lab}""")
        lp, lj = A.newlabel('rg'), A.newlabel('rj')
        oks = [A.newlabel('rgo') for _ in range(GREP)]
        pre = min(GPRE, GREP)
        for r in range(pre):
            gl(r)
            if r < pre-1: A(f"s_sleep {GGAP}")
        for r in range(GREP):
            A(f"s_waitcnt vmcnt({(NG-1)*(min(r+pre, GREP)-1-r)})")
            gc(r, oks[r])
            if r + pre < GREP: gl(r+pre)
        A(f"{lp}:")
        gl(0); tick(A, exitlab)
        A("s_waitcnt vmcnt(0)")
        gc(0, oks[0])
        A(f"s_branch {lp}")
        for st in range(GREP):
            A(f"{oks[st]}:")
            for k in range(1, NG):
                for j in range(4):
                    A(f"v_dot2_f32_bf16 v{GF+j}, v{GS(st,k)+j//2}, s{[S_SEL0, S_SEL1][j % 2]}, v{GF+j}")
            A(f"""v_cvt_pk_bf16_f32 v{GO}, v{GF}, v{GF+2}
            v_cvt_pk_bf16_f32 v{GO+1}, v{GF+1}, v{GF+3}
            v_bfi_b32 v{GO}, v{VTM}, s{S_TAGN}, v{GO}
            v_bfi_b32 v{GO+1}, v{VTM}, s{S_TAGN}, v{GO+1}""")
            A(bst(1, GO, VM, S_MO, 0, LF)); A(bst(1, GO+1, VM, S_MO, 16, LF))
            if st < GREP-1: A(f"s_branch {lj}")
        A(f"{lj}:")
        H(hooks, 'stamp', A, 4)
        for k in range(NG): A(f"s_add_u32 s{S_GS+k}, s{S_GS+k}, s{S_GD}")
        A(f"s_sub_u32 s{S_GD}, 0, s{S_GD}")
        if 'cached_u' in hooks:
            lk = A.newlabel('r_sk')
            A(f"s_cmp_eq_u64 {sr(S_LATE,2)}, 0\ns_cbranch_scc1 {lk}")
            H(hooks, 'wait_u', A, 1)
            dma_u()
            A(f"s_waitcnt vmcnt(0)\n{lk}:")
        next_step(A)
        A(f"s_waitcnt lgkmcnt(0)\ns_barrier")
        H(hooks, 'stamp', A, 5)
        A(f"s_branch r_loop{ver}")
    A("r_last:\ns_waitcnt vmcnt(0)")
    ypark()
    A("s_waitcnt lgkmcnt(0)\ns_barrier")
    H(hooks, 'final', A)
    A(f"s_branch {hooks['next_r']}")
    A("r_x:")
    S_UG, S_UD, S_PX, S_OP, S_UR = S_C1, S_C2, S_C3, S_C4, S_C5
    A(f"""s_sub_u32 s{S_T}, s{w}, 2
    s_lshl_b32 s{S_T+1}, s{S_GRP}, 1
    s_add_u32 s{S_T+1}, s{S_T+1}, s{S_T}
    s_mul_i32 s{S_UG}, s{S_T+1}, {4*40960}
    s_lshl_b32 s{S_T+1}, s{S_HL}, 12
    s_add_u32 s{S_UG}, s{S_UG}, s{S_T+1}
    s_add_u32 s{S_UG}, s{S_UG}, {WS_UF}
    s_lshl_b32 s{S_O1}, s{S_T}, 14
    s_mov_b32 s{S_UD}, 0
    s_mov_b32 s{S_UR}, 0
    s_mul_i32 s{S_PX}, s{S_T}, 10240
    s_add_u32 s{S_PX}, s{S_PX}, s{S_CUR}
    s_add_u32 s{S_PX}, s{S_PX}, {PX_OFF}
    s_mul_i32 s{S_OP}, s{S_T}, {20*4096}
    s_lshl_b32 s{S_T+1}, s{S_HL}, 13
    s_add_u32 s{S_OP}, s{S_OP}, s{S_T+1}
    s_lshl_b32 s{S_T+1}, s{S_GRP}, 10
    s_add_u32 s{S_OP}, s{S_OP}, s{S_T+1}
    s_add_u32 s{S_OP}, s{S_OP}, {WS_OP}
    v_add_u32 v{VY}, {LY}, v{VL}""")
    checkin(A, s_dbg)
    waitall(A, s_dbg, exitlab, VL, s_pol=S_POL)
    H(hooks, 'x_init', A)
    A("s_barrier")
    A("s_barrier")
    PXR, ZR, XA = 16, 64, 96
    A("rx_loop:")
    H(hooks, 'stamp', A, 0)
    A(f"""s_bfe_u32 s{S_TAG}, s{S_STEP}, 0x10002
    s_and_b32 s{S_T+2}, s{S_STEP}, 3
    s_lshl_b32 s{S_T+2}, s{S_T+2}, 15
    s_add_u32 s{S_T+2}, s{S_T+2}, s{S_PX}
    s_add_u32 s{S_T+3}, s{S_T+2}, 4096
    s_add_u32 s{S_T+4}, s{S_T+2}, 8192
    v_add_u32 v{VT}, s{S_UR}, v{VL}""")
    pxl = [bld(4, PXR+4*f, VL, S_T+2+f//4, (f % 4)*1024, 'sc1') for f in range(10)]
    pxc = [PXR+4*f for f in range(10)] + [PXR+34, PXR+38]
    poll(A, 'px', pxl, pxc, S_TAG, exitlab)
    H(hooks, 'stamp', A, 1)
    seq = [(f, t_) for f in range(10) for t_ in range(4)]
    if not XFLAGNOW: H(hooks, 'x_flag', A)
    lg = Lg(A)
    def zrd(n):
        f, t_ = seq[n]
        if f < 8: lg.ds(f"ds_read_b128 {vr(ZR+4*(n%8),4)}, v{VT} offset:{f*4096+t_*1024}", n)
        else: lg.ds(f"ds_read_b128 {vr(ZR+4*(n%8),4)}, v{VY} offset:{t_*2048+(f-8)*1024}", n)
    for n in range(7): zrd(n)
    for n, (f, t_) in enumerate(seq):
        if n + 7 < 40: zrd(n+7)
        lg.need(n)
        A(f"v_mfma_f32_16x16x32_bf16 {vr(XA+4*t_,4)}, {vr(ZR+4*(n%8),4)}, {vr(PXR+4*f,4)}, {'0' if f == 0 else vr(XA+4*t_,4)}")
    A(f"""v_xor_b32 v{VY}, 8192, v{VY}
    s_add_u32 s{S_UR}, s{S_UR}, 32768
    s_cmp_eq_u32 s{S_UR}, 98304
    s_cselect_b32 s{S_UR}, 0, s{S_UR}""")
    for i in range(8): A(f"v_cvt_pk_bf16_f32 v{XA+16+i}, v{XA+2*i}, v{XA+2*i+1}")
    for t_ in range(2):
        A(bst(4, XA+16+4*t_, VL, S_OP, 0, 'sc1'))
        A(f"s_add_u32 s{S_OP}, s{S_OP}, {4096 if t_ < 1 else SEG_OP - 4096}")
    H(hooks, 'stamp', A, 2)
    A(f"""s_add_u32 s{S_STEP}, s{S_STEP}, 1
    s_waitcnt vmcnt(0)""")
    H(hooks, 'stamp', A, 4)
    l = A.newlabel('rx_nf')
    if not XFLAGNOW: A(f"s_cmp_lt_u32 s{S_STEP}, {NSEG-2}\ns_cbranch_scc1 {l}")
    H(hooks, 'x_flag', A)
    A(f"s_cmp_ge_u32 s{S_STEP}, {NSEG}\ns_cbranch_scc1 rx_fin\n{l}:")
    H(hooks, 'stamp', A, 3)
    A("s_barrier\ns_branch rx_loop\nrx_fin:")
    H(hooks, 'final', A)
    A(f"s_branch {hooks['next_r']}")
```

```python
from common import *
from r_ln import hexf
from r_rec import Lg, WS_OP, SEG_OP, srd, tick, wait_flags, put_flag, S_WAVE
from r_proj import gelu_ops, GC0, GC1, SEG_Z
from r_u import load_w_rows
WS_SX = WS_STAT + MB
SEG_SX = 6*256
W = S_WAVE

def bl(n, dst, va, so, off=0, fl=''):
    nm = {1: 'dword', 2: 'dwordx2', 4: 'dwordx4'}[n]
    return f"buffer_load_{nm} {vr(dst,n)}, v{va}, {srd}, {so} offen offset:{off} {fl}"
def bs(n, src, va, so, off=0, fl=''):
    nm = {1: 'dword', 2: 'dwordx2', 4: 'dwordx4'}[n]
    return f"buffer_store_{nm} {vr(src,n)}, v{va}, {srd}, {so} offen offset:{off} {fl}"

def load_wout(A, s_dq, s_t, vt):
    sw, sb = s_t, s_t+2
    tr, t = vt+2, vt+3
    A(f"""s_load_dwordx2 {sr(sw,2)}, s[0:1], {KA_WOUT}
    s_mul_i32 s{sb}, s{W}, {192*1280}
    s_mul_i32 s{sb+1}, s{s_dq}, 320
    s_add_u32 s{sb}, s{sb}, s{sb+1}
    v_lshrrev_b32 v{t}, 4, v0
    v_lshlrev_b32 v{tr}, 3, v{t}
    v_bfe_u32 v{t}, v0, 2, 2
    v_add_u32 v{tr}, v{tr}, v{t}
    v_mul_u32_u24 v{tr}, 320, v{tr}
    v_and_b32 v{t}, 3, v0
    v_lshl_add_u32 v{tr}, v{t}, 4, v{tr}
    s_waitcnt lgkmcnt(0)""")
    add64(A, sw, sw, f"s{sb}")
    A(f"s_mul_i32 s{sb}, s{W}, 40960\nv_add_u32 v{tr}, s{sb}, v{tr}")
    def reads(A, kk, off):
        for dt in range(10):
            for q in range(2):
                A(f"ds_read_b64_tr_b16 {ar(24*dt+4*kk+2*q,2)}, v{tr} offset:{off + q*4*320 + (dt>>1)*64 + (dt&1)*8}")
    load_w_rows(A, sw, 1280, 20, 192, 32, 4, sb, 0, sb+1, vt, reads)

def out_task(A, s_task, f_gy, exitlab, done):
    A(f"""s_load_dwordx2 s[20:21], s[0:1], {KA_OUT}
    s_lshr_b32 s12, s{s_task}, 2
    s_and_b32 s13, s{s_task}, 3
    s_mul_i32 s14, s12, {SEG_Z}
    s_mul_i32 s15, s{W}, 6144
    s_add_u32 s14, s14, s15
    s_add_u32 s14, s14, {WS_GY}
    s_add_u32 s15, s14, 4096
    s_add_u32 s16, s14, 24576
    s_add_u32 s17, s16, 4096
    v_lshlrev_b32 v2, 4, v0
    v_bfe_u32 v3, v0, 2, 2
    v_lshlrev_b32 v3, 3, v3
    v_and_b32 v4, 3, v0
    v_add_u32 v3, v3, v4
    v_mul_u32_u24 v3, 1280, v3
    v_lshrrev_b32 v4, 4, v0
    v_lshl_add_u32 v3, v4, 4, v3
    s_mul_i32 s18, s12, 40960
    s_mul_i32 s19, s13, 320
    s_add_u32 s18, s18, s19
    s_and_b32 s22, s{W}, 1
    s_lshr_b32 s23, s{W}, 1
    s_mul_i32 s19, s22, 5120
    s_add_u32 s18, s18, s19
    s_lshl_b32 s19, s23, 6
    s_add_u32 s18, s18, s19
    s_mul_i32 s19, s{W}, 20480
    v_add_u32 v5, s19, v2
    s_lshl_b32 s19, s22, 10
    s_lshl_b32 s24, s23, 12
    s_add_u32 s19, s19, s24
    v_add_u32 v6, s19, v2
    v_add_u32 v7, 40960, v6
    s_lshr_b32 s19, s12, 2
    s_mul_i32 s19, s19, {6*128}
    s_add_u32 s19, s19, {f_gy}
    v_min_u32 v8, 5, v0
    v_lshlrev_b32 v8, 7, v8
    v_add_u32 v8, s19, v8
    s_mov_b32 s19, 1
    s_waitcnt lgkmcnt(0)""")
    add64(A, 20, 20, 's18')
    A(f"s_add_u32 s18, s18, {WS_H}\ns_barrier")
    wait_flags(A, 8, 9, 19, exitlab, sleep=2)
    GB, ACC_, HR = 16, 64, 144
    for k in range(6):
        for rt in range(2): A(bl(4, GB+24*rt+4*k, 2, f"s{14+2*rt+k//4}", 1024*(k % 4)))
    for i in range(3): A(bl(4, HR+4*i, 3, 's18', 128*i))
    for k in range(6):
        A(f"s_waitcnt vmcnt({2*(5-k)+3})")
        for dt in (range(10) if k < 4 else []):
            for rt in range(2):
                a = vr(ACC_+8*dt+4*rt, 4)
                A(f"v_mfma_f32_16x16x32_bf16 {a}, {ar(24*dt+4*k,4)}, {vr(GB+24*rt+4*k,4)}, {'0' if k == 0 else a}")
    for dt in range(10):
        for k in (4, 5):
            for rt in range(2):
                a = vr(ACC_+8*dt+4*rt, 4)
                A(f"v_mfma_f32_16x16x32_bf16 {a}, {ar(24*dt+4*k,4)}, {vr(GB+24*rt+4*k,4)}, {a}")
        if dt >= 1:
            for rt in range(2): A(f"ds_write_b128 v5, {vr(ACC_+8*(dt-1)+4*rt,4)} offset:{2048*(dt-1)+1024*rt}")
    for rt in range(2): A(f"ds_write_b128 v5, {vr(ACC_+72+4*rt,4)} offset:{2048*9+1024*rt}")
    A("s_waitcnt vmcnt(0)")
    F = 16
    for i in range(3):
        for j in range(4): A(f"v_lshlrev_b32 v{F+8*i+2*j}, 16, v{HR+4*i+j}\nv_and_b32 v{F+8*i+2*j+1}, 0xffff0000, v{HR+4*i+j}")
    A("s_waitcnt lgkmcnt(0)\ns_barrier")
    R = 64
    def rd(i):
        for ww in range(4):
            for ab in range(2):
                A(f"ds_read_b128 {vr(R+32*i+8*ww+4*ab,4)}, v{6+ww//2} offset:{(ww%2)*20480 + 8192*i + 2048*ab}")
    def fin(i):
        for ww in range(4):
            for j in range(4): A(f"v_pk_add_f32 {vr(F+8*i+2*j,2)}, {vr(F+8*i+2*j,2)}, {vr(R+32*i+8*ww+2*j,2)}")
        for j in range(4): A(f"v_cvt_pk_bf16_f32 v{48+4*i+j}, v{F+8*i+2*j}, v{F+8*i+2*j+1}")
        A(f"global_store_dwordx4 v3, {vr(48+4*i,4)}, s[20:21] offset:{128*i}")
    rd(0); rd(1)
    A("s_waitcnt lgkmcnt(8)"); fin(0)
    A("s_waitcnt lgkmcnt(0)")
    l = A.newlabel('o2')
    A(f"s_cmp_ge_u32 s{W}, 2\ns_cbranch_scc1 {l}")
    rd(2); fin(1)
    A("s_waitcnt lgkmcnt(0)"); fin(2)
    A(f"s_branch {done}\n{l}:")
    fin(1)
    A(f"s_branch {done}")

def ln2_loop(A, s_j, ncu, f_x, s_flag, s_pol, exitlab):
    VO, VX, VS, VF, VLW, VLR, T0, T1, T2, T3 = 2, 3, 4, 5, 6, 7, 8, 9, 10, 11
    OPR, XR, F, PK = 16, 64, 80, 104
    sx, so, sh, sn, ne, s0, s1 = 12, 14, 15, 16, 17, 18, 19
    A(f"""s_load_dwordx2 s[26:27], s[0:1], {KA_X}
    v_and_b32 v{T0}, 7, v0
    v_bfe_u32 v{T1}, v0, 3, 1
    v_lshrrev_b32 v{T2}, 4, v0
    s_and_b32 s{sn}, s{s_j}, 1
    s_lshl_b32 s{sn}, s{sn}, 7
    s_lshl_b32 s{ne}, s{W}, 13
    s_add_u32 s{sn}, s{sn}, s{ne}
    v_lshlrev_b32 v{VO}, 4, v{T0}
    v_lshl_add_u32 v{VO}, v{T2}, 8, v{VO}
    v_lshl_add_u32 v{VO}, v{T1}, 12, v{VO}
    v_add_u32 v{VO}, s{sn}, v{VO}
    v_mul_u32_u24 v{VX}, 1280, v{T0}
    v_lshl_add_u32 v{VX}, v{T2}, 3, v{VX}
    v_lshl_add_u32 v{VX}, v{T1}, 6, v{VX}
    s_lshl_b32 s{sn}, s{W}, 7
    v_add_u32 v{VX}, s{sn}, v{VX}
    v_bfe_u32 v{T3}, v0, 2, 1
    v_mul_u32_u24 v{VS}, 20480, v{T3}
    v_lshl_add_u32 v{VS}, v{T2}, 8, v{VS}
    v_and_b32 v{T3}, 3, v0
    v_lshl_add_u32 v{VS}, v{T3}, 4, v{VS}
    v_lshl_add_u32 v{VS}, v{T1}, 10, v{VS}
    s_and_b32 s{sn}, s{s_j}, 3
    s_lshl_b32 s{sn}, s{sn}, 6
    s_lshl_b32 s{ne}, s{W}, 11
    s_add_u32 s{sn}, s{sn}, s{ne}
    v_add_u32 v{VS}, s{sn}, v{VS}
    v_lshlrev_b32 v{VLR}, 5, v{T0}
    s_lshl_b32 s{sn}, s{W}, 3
    v_add_u32 v{VLW}, s{sn}, v{VLR}
    s_bfe_u32 s{sn}, s{s_j}, 0x10001
    s_lshl_b32 s{sn}, s{sn}, 6
    s_add_u32 s{sn}, s{sn}, {f_x}
    s_add_u32 s{sn}, s{sn}, s{s_pol}
    v_min_u32 v{VF}, 39, v0
    v_lshlrev_b32 v{VF}, 7, v{VF}
    v_add_u32 v{VF}, s{sn}, v{VF}
    s_mov_b32 s{s0}, 0x00003f80
    s_mov_b32 s{s1}, 0x3f800000
    s_cmp_lt_u32 s{W}, 2
    s_cselect_b64 s[28:29], -1, 0
    s_waitcnt lgkmcnt(0)
    ln2_loop:
    s_mul_i32 s{sh}, s{s_j}, 10240""")
    add64(A, sx, 26, f"s{sh}")
    A(f"""s_add_u32 s{sh}, s{sh}, {WS_H}
    s_lshr_b32 s{so}, s{s_j}, 1
    s_mul_i32 s{so}, s{so}, {SEG_OP//2}
    s_add_u32 s{so}, s{so}, {WS_OP}
    s_lshr_b32 s{ne}, s{s_j}, 2
    s_mul_i32 s{sn}, s{ne}, {SEG_XN}
    s_add_u32 s{sn}, s{sn}, {WS_HNF}
    s_add_u32 s{ne}, s{ne}, 1""")
    for j in range(4): A(f"v_mov_b32 v{XR+8+j}, 0")
    for j in range(16): A(f"v_mov_b32 v{OPR+32+j}, 0")
    l1, l2, l3, l4 = [A.newlabel('l2') for _ in range(4)]
    def xl(i):
        for hb in range(2): A(f"global_load_dwordx2 {vr(XR+4*i+2*hb,2)}, v{VX}, {sr(sx,2)} offset:{512*i+32*hb}")
    xl(0); xl(1)
    A(f"s_cmp_ge_u32 s{W}, 2\ns_cbranch_scc1 {l1}"); xl(2); A(f"{l1}:")
    A(f"s_cmp_lg_u32 s{W}, 0\ns_cbranch_scc1 {l2}")
    wait_flags(A, VF, T0, ne, exitlab, sleep=3)
    A(f"{l2}:\ns_waitcnt vmcnt(0)")
    for i in range(12): A(f"v_lshlrev_b32 v{F+2*i}, 16, v{XR+i}\nv_and_b32 v{F+2*i+1}, 0xffff0000, v{XR+i}")
    A(f"s_add_u32 s20, s{so}, 32768\ns_add_u32 s21, s{so}, 65536\ns_barrier")
    A(f"s_cmp_ge_u32 s{W}, 2\ns_cbranch_scc1 {l3}")
    for g in range(4): A(bl(4, OPR+32+4*g, VO, 's21', 1024*g))
    A(f"{l3}:")
    for i in range(2):
        for g in range(4): A(bl(4, OPR+16*i+4*g, VO, [f"s{so}", 's20'][i], 1024*g))
    A(f"v_mov_b32 v{T0}, 0\nv_mov_b32 v{T1}, 0")
    for n, i in enumerate((2, 0, 1)):
        A(f"s_waitcnt vmcnt({(8, 4, 0)[n]})")
        for g in range(4):
            for j in range(8):
                A(f"v_dot2_f32_bf16 v{F+8*i+j}, v{OPR+16*i+4*g+j//2}, s{s0+j%2}, v{F+8*i+j}")
        for j in range(4): A(f"v_cvt_pk_bf16_f32 v{PK+4*i+j}, v{F+8*i+2*j}, v{F+8*i+2*j+1}")
        for j in range(4): A(f"v_lshlrev_b32 v{F+8*i+2*j}, 16, v{PK+4*i+j}\nv_and_b32 v{F+8*i+2*j+1}, 0xffff0000, v{PK+4*i+j}")
        for j in range(8): A(f"v_add_f32 v{T0}, v{T0}, v{F+8*i+j}\nv_fmac_f32 v{T1}, v{F+8*i+j}, v{F+8*i+j}")
    A(f"""v_add_f32_dpp v{T0}, v{T0}, v{T0} row_ror:8 row_mask:0xf bank_mask:0xf
    v_add_f32_dpp v{T1}, v{T1}, v{T1} row_ror:8 row_mask:0xf bank_mask:0xf
    v_mov_b32 v{T2}, v{T0}
    v_mov_b32 v{T3}, v{T1}
    v_permlane16_swap_b32 v{T0}, v{T2}
    v_permlane16_swap_b32 v{T1}, v{T3}
    v_pk_add_f32 {vr(T0,2)}, {vr(T0,2)}, {vr(T2,2)}
    v_mov_b32 v{T2}, v{T0}
    v_mov_b32 v{T3}, v{T1}
    v_permlane32_swap_b32 v{T0}, v{T2}
    v_permlane32_swap_b32 v{T1}, v{T3}
    v_pk_add_f32 {vr(T0,2)}, {vr(T0,2)}, {vr(T2,2)}
    ds_write_b64 v{VLW}, {vr(T0,2)}""")
    for i in range(2):
        for hb in range(2): A(bs(2, PK+4*i+2*hb, VX, f"s{sh}", 512*i+32*hb, 'sc1'))
    A(f"""s_waitcnt lgkmcnt(0)
    s_barrier
    ds_read_b128 v[120:123], v{VLR}
    ds_read_b128 v[124:127], v{VLR} offset:16
    s_mov_b64 exec, s[28:29]""")
    A(f"s_cbranch_execz {l4}")
    for hb in range(2): A(bs(2, PK+8+2*hb, VX, f"s{sh}", 1024+32*hb, 'sc1'))
    A(f"""{l4}:
    s_mov_b64 exec, -1
    s_waitcnt lgkmcnt(0)
    v_pk_add_f32 v[120:121], v[120:121], v[122:123]
    v_pk_add_f32 v[124:125], v[124:125], v[126:127]
    v_pk_add_f32 v[120:121], v[120:121], v[124:125]
    v_mul_f32 v{T0}, {hexf(1.0/640)}, v120
    v_mul_f32 v{T1}, {hexf(1.0/640)}, v121
    v_fma_f32 v{T1}, -v{T0}, v{T0}, v{T1}
    v_max_f32 v{T1}, 0, v{T1}
    v_add_f32 v{T1}, {hexf(1e-5)}, v{T1}
    v_rsq_f32 v{T1}, v{T1}
    v_mul_f32 v{T0}, v{T0}, v{T1}
    s_add_u32 s20, s{sn}, 8192
    s_add_u32 s21, s{sn}, 16384""")
    l5 = A.newlabel('l2')
    for i in range(3):
        if i == 2: A(f"s_cmp_ge_u32 s{W}, 2\ns_cbranch_scc1 {l5}")
        for j in range(8): A(f"v_fma_f32 v{F+8*i+j}, v{F+8*i+j}, v{T1}, -v{T0}")
        for j in range(4): A(f"v_cvt_pk_bf16_f32 v{OPR+4*i+j}, v{F+8*i+2*j}, v{F+8*i+2*j+1}")
        A(bs(4, OPR+4*i, VS, [f"s{sn}", 's20', 's21'][i], 0, 'sc1'))
    l6 = A.newlabel('l2')
    A(f"{l5}:\ns_waitcnt vmcnt(0)\ns_barrier\ns_cmp_lg_u32 s{W}, 0\ns_cbranch_scc1 {l6}")
    put_flag(A, s_flag, ne, T0)
    A(f"""{l6}:
    s_add_u32 s{s_j}, s{s_j}, {ncu}
    s_cmp_lt_u32 s{s_j}, {4*NSEG}
    s_cbranch_scc1 ln2_loop""")

WW = 96
def win_load(A, s_w, s_t, vt):
    tr, t = vt+2, vt+3
    A(f"""v_lshrrev_b32 v{t}, 4, v0
    v_lshlrev_b32 v{tr}, 2, v{t}
    v_bfe_u32 v{t}, v0, 2, 2
    v_add_u32 v{tr}, v{tr}, v{t}
    v_lshlrev_b32 v{tr}, 6, v{tr}
    v_and_b32 v{t}, 3, v0
    v_lshl_add_u32 v{tr}, v{t}, 4, v{tr}
    s_mul_i32 s{s_t}, s{W}, 40960
    v_add_u32 v{tr}, s{s_t}, v{tr}""")
    def reads(A, r, off):
        for ksl in range(5):
            for ab in range(2):
                for q in range(2):
                    A(f"ds_read_b64_tr_b16 {vr(WW+4*((5*r+ksl)*2+ab)+2*q,2)}, v{tr} offset:{off + ksl*2048 + q*1024 + 8*ab}")
    load_w_rows(A, s_w, 3072, 4, 640, 160, 4, s_t, 0, s_t+1, vt, reads)

def win_loop(A, name, z2, s_seg, s_unit, f_ln, s_flag, s_pol, exitlab):
    VL, VD, VC0, VF, VF2, T0, T1, VST = 2, 3, 4, 5, 6, 7, 8, 9
    ACC, XR, GT, ST, PKD = 16, 32, 48, 64, 80
    sx, so, sdm, ne, c1, sx2 = 12, 13, 14, 15, 16, 17
    LST = 40960
    A(f"""v_lshlrev_b32 v{VL}, 4, v0
    s_mul_i32 s{sdm}, s{W}, 10240
    v_add_u32 v{VD}, s{sdm}, v{VL}
    v_mov_b32 v{VC0}, {hexf(GC0)}
    s_mov_b32 s{c1}, {hexf(GC1)}
    v_and_b32 v{VF}, 3, v0
    v_lshlrev_b32 v{VF}, 7, v{VF}
    v_add_u32 v{VF}, {f_ln}, v{VF}
    v_add_u32 v{VF}, s{s_pol}, v{VF}
    s_lshl_b32 s18, s{s_unit}, 2
    s_add_u32 s18, s18, s{W}
    s_lshl_b32 s18, s18, {11 if z2 else 10}
    s_add_u32 s18, s18, {WS_Z2 if z2 else WS_Z1}
    s_barrier
    {name}_loop:
    s_mul_hi_u32 s19, s{s_seg}, {-(-(1<<32)//6)}
    s_mul_i32 s19, s19, 6
    s_sub_u32 s19, s{s_seg}, s19
    s_lshl_b32 s19, s19, 9
    v_add_u32 v{VF2}, s19, v{VF}
    s_add_u32 s{ne}, s{s_seg}, 1
    s_mul_i32 s{sx}, s{s_seg}, {SEG_XN}
    s_add_u32 s{sx}, s{sx}, {WS_HNF}
    s_mul_i32 s{so}, s{s_seg}, {SEG_Z}
    s_add_u32 s{so}, s{so}, s18""")
    wait_flags(A, VF2, T0, ne, exitlab, sleep=3)
    for i in range(10):
        if i % 4 == 0: A(f"s_add_u32 m0, s{sdm}, {(i//4)*4096}\ns_add_u32 s{sx2}, s{sx}, {(i//4)*4096}")
        A(f"buffer_load_dwordx4 v{VD}, {srd}, s{sx2} offen offset:{(i%4)*1024} lds")
    A("s_waitcnt vmcnt(0)\ns_barrier")
    def epi_ops(rt):
        regs = [ACC+8*rt+i for i in range(8)]
        g = GT + 8*rt
        ops = gelu_ops(regs, g, VC0, c1)
        if not z2:
            ops += [f"v_cvt_pk_bf16_f32 v{PKD+4*rt+j}, v{g+2*j}, v{g+2*j+1}" for j in range(4)]
            if rt: ops += [f"s_add_u32 s{so}, s{so}, 24576"]
            ops += [bs(4, PKD+4*rt, VL, f"s{so}", 0, 'sc1')]
        else:
            s_ = ST + 8*rt
            ops += [f"v_add_f32 v{s_+i}, v{g+i}, v{g+4+i}" for i in range(4)]
            ops += [f"v_mul_f32 v{s_+4+i}, v{g+i}, v{g+i}" for i in range(4)]
            ops += [f"v_fmac_f32 v{s_+4+i}, v{g+4+i}, v{g+4+i}" for i in range(4)]
            for sh in (8, 4, 2, 1):
                ops += [f"v_add_f32_dpp v{s_+i}, v{s_+i}, v{s_+i} row_ror:{sh} row_mask:0xf bank_mask:0xf" for i in range(8)]
        return ops
    NP = 4
    for n in range(NP-1): A(f"ds_read_b128 {vr(XR+4*n,4)}, v{VL} offset:{n*1024}")
    pend = []
    for n in range(40):
        rt, ks = divmod(n, 20)
        m = n + NP - 1
        if m < 40: A(f"ds_read_b128 {vr(XR+4*(m%NP),4)}, v{VL} offset:{m*1024}")
        A(f"s_waitcnt lgkmcnt({min(NP-1, 39-n)})")
        if n == 22: pend = epi_ops(0)
        for ab in range(2):
            a = vr(ACC+8*rt+4*ab, 4); w = vr(WW+4*(ks*2+ab), 4); x = vr(XR+4*(n % NP), 4)
            o1, o2 = (x, w) if z2 else (w, x)
            A(f"v_mfma_f32_16x16x32_bf16 {a}, {o1}, {o2}, {'0' if ks == 0 else a}")
            for _ in range(2):
                if pend: A(pend.pop(0))
    for o in pend + epi_ops(1): A(o)
    if z2:
        A(f"""s_lshl_b32 s19, s{W}, 8
        s_add_u32 s19, s19, {LST}
        v_lshlrev_b32 v{T0}, 2, v0
        v_add_u32 v{T0}, s19, v{T0}
        s_mov_b32 exec_lo, 0x00010001
        s_mov_b32 exec_hi, 0x00010001""")
        for i in range(4): A(f"ds_write_b128 v{T0}, {vr(ST+4*i,4)} offset:{16*i}")
        A(f"""s_mov_b64 exec, -1
        v_lshlrev_b32 v{VST}, 2, v0
        s_mul_i32 s19, s{s_seg}, {SEG_SX}
        s_add_u32 s19, s19, {WS_SX}
        s_lshl_b32 s20, s{s_unit}, 8
        s_add_u32 s20, s20, s19
        s_waitcnt lgkmcnt(0)
        s_barrier""")
        l = A.newlabel('wz')
        A(f"s_cmp_lg_u32 s{W}, 0\ns_cbranch_scc1 {l}")
        for i in range(4): A(f"ds_read_b32 v{ST+i}, v{VST} offset:{LST+256*i}")
        A(f"""s_waitcnt lgkmcnt(0)
        v_add_f32 v{ST}, v{ST}, v{ST+1}
        v_add_f32 v{ST+2}, v{ST+2}, v{ST+3}
        v_add_f32 v{ST}, v{ST}, v{ST+2}
        v_min_u32 v{ST}, -2, v{ST}""")
        A(bs(1, ST, VST, 's20', 0, 'sc1'))
        lp = A.newlabel('wz')
        A(f"s_sleep 3\n{lp}:")
        for u in range(6): A(bl(1, ST+u, VST, 's19', 256*u, 'sc1'))
        tick(A, exitlab)
        A(f"""s_waitcnt vmcnt(0)
        v_max3_u32 v{T0}, v{ST}, v{ST+1}, v{ST+2}
        v_max3_u32 v{T1}, v{ST+3}, v{ST+4}, v{ST+5}
        v_max_u32 v{T0}, v{T0}, v{T1}
        v_cmp_eq_u32 vcc, -1, v{T0}
        s_cbranch_vccnz {lp}
        v_add_f32 v{ST}, v{ST}, v{ST+1}
        v_add_f32 v{ST+2}, v{ST+2}, v{ST+3}
        v_add_f32 v{ST+4}, v{ST+4}, v{ST+5}
        v_add_f32 v{ST}, v{ST}, v{ST+2}
        v_add_f32 v{ST}, v{ST}, v{ST+4}
        v_mul_f32 v{ST}, {hexf(1.0/768)}, v{ST}
        v_mov_b32_dpp v{ST+1}, v{ST} row_shl:4 row_mask:0xf bank_mask:0x5
        v_mov_b32_dpp v{ST+1}, v{ST} row_shr:4 row_mask:0xf bank_mask:0xa
        s_mov_b32 vcc_lo, 0xf0f0f0f0
        s_mov_b32 vcc_hi, 0xf0f0f0f0
        v_cndmask_b32 v{ST+2}, v{ST}, v{ST+1}, vcc
        v_cndmask_b32 v{ST+3}, v{ST+1}, v{ST}, vcc
        v_fma_f32 v{ST+3}, -v{ST+2}, v{ST+2}, v{ST+3}
        v_max_f32 v{ST+3}, 0, v{ST+3}
        v_add_f32 v{ST+3}, {hexf(1e-5)}, v{ST+3}
        v_rsq_f32 v{ST+3}, v{ST+3}
        v_mul_f32 v{ST+2}, v{ST+2}, v{ST+3}
        v_cndmask_b32 v{ST+2}, v{ST+2}, v{ST+3}, vcc
        ds_write_b32 v{VST}, v{ST+2} offset:{LST+1024}
        s_waitcnt lgkmcnt(0)
        {l}:
        v_and_b32 v{T0}, 0xc0, v{VST}
        s_barrier""")
        for i in range(4): A(f"ds_read_b128 {vr(ST+4*i,4)}, v{T0} offset:{LST+1024+16*i}")
        A("s_waitcnt lgkmcnt(0)")
        for ab in range(2):
            for rt in range(2):
                for i in range(4):
                    g = GT+8*rt+4*ab+i
                    A(f"v_fma_f32 v{g}, v{g}, v{ST+8*rt+4+i}, -v{ST+8*rt+i}")
                for j in range(2): A(f"v_cvt_pk_bf16_f32 v{PKD+4*ab+2*rt+j}, v{GT+8*rt+4*ab+2*j}, v{GT+8*rt+4*ab+2*j+1}")
            A(bs(4, PKD+4*ab, VL, f"s{so}", 1024*ab, 'sc1'))
    l = A.newlabel('wz')
    A(f"s_waitcnt vmcnt(0)\ns_barrier\ns_cmp_lg_u32 s{W}, 0\ns_cbranch_scc1 {l}")
    put_flag(A, s_flag, ne, T0)
    A(f"""{l}:
    s_add_u32 s{s_seg}, s{s_seg}, 2
    s_cmp_lt_u32 s{s_seg}, {NSEG}
    s_cbranch_scc1 {name}_loop""")

def sx_init(A, s_set, s_unit):
    A(f"""s_lshl_b32 s12, s{W}, 4
    s_add_u32 s12, s12, s{s_set}
    s_mul_i32 s12, s12, {SEG_SX}
    s_lshl_b32 s13, s{s_unit}, 8
    s_add_u32 s12, s12, s13
    s_add_u32 s12, s12, {WS_SX}
    v_lshlrev_b32 v16, 2, v0
    v_mov_b32 v17, -1""")
    for i in range(8):
        A(bs(1, 17, 16, 's12', 0, 'sc1'))
        if i < 7: A(f"s_add_u32 s12, s12, {2*SEG_SX}")

def spatial2(A, s_tb, s_fb, f_win, s_flag, exitlab, stamp=None):
    VL, VA, VB, VF, VSG, VN, T0, T1 = 2, 3, 4, 5, 6, 7, 8, 9
    VW = 10
    AC, FA, FB, Z1, ZF, BI = 64, 16, 32, 128, 160, 12
    sw, sz, sc, sm, sx, tg = 12, 14, 15, 16, 17, 18
    A(f"""s_load_dwordx2 {sr(sw,2)}, s[0:1], {KA_WSP}
    s_load_dwordx2 s[20:21], s[0:1], {KA_BSP}
    v_lshlrev_b32 v{VL}, 4, v0
    v_bfe_u32 v{T0}, v0, 2, 2
    v_lshlrev_b32 v{T1}, 3, v{T0}
    v_and_b32 v{T0}, 3, v0
    v_add_u32 v{T1}, v{T1}, v{T0}
    v_lshlrev_b32 v{VW}, 12, v{T1}
    v_lshrrev_b32 v{T0}, 4, v0
    v_lshl_add_u32 v{VW}, v{T0}, 4, v{VW}
    v_add_u32 v{VW+1}, {4*4096}, v{VW}
    s_lshl_b32 s{sx}, s{s_tb}, 2
    s_add_u32 s{sx}, s{sx}, s{W}
    s_lshl_b32 s{sx}, s{sx}, 17
    s_lshr_b32 s22, s{W}, 1
    s_and_b32 s23, s{W}, 1
    s_lshl_b32 s24, s{s_tb}, 1
    s_add_u32 s24, s24, s22
    s_lshl_b32 s25, s24, 7
    v_lshlrev_b32 v{T1}, 1, v{T1}
    v_add_u32 v{T1}, s25, v{T1}
    s_waitcnt lgkmcnt(0)""")
    add64(A, sw, sw, f"s{sx}")
    for t in range(4): A(f"global_load_ushort v{BI+t}, v{T1}, s[20:21] offset:{(t>>1)*64 + (t&1)*8}")
    A(f"""s_lshl_b32 s{sz}, s{s_fb}, 2
    s_add_u32 s{sz}, s{sz}, s{W}
    s_lshl_b32 s{sz}, s{sz}, 11
    s_add_u32 s{sz}, s{sz}, {WS_Z2}
    s_lshl_b32 s{sm}, s{W}, 11
    s_lshl_b32 s{sx}, s22, 12
    v_add_u32 v{VB}, s{sx}, v{VL}
    s_lshl_b32 s{sx}, s23, 12
    s_add_u32 s{sx}, s{sx}, 8192
    v_add_u32 v{VA}, s{sx}, v{VL}
    v_and_b32 v{VSG}, 1, v0
    v_mul_u32_u24 v{VF}, {12*128}, v{VSG}
    s_lshl_b32 s{sx}, s{s_fb}, 7
    s_add_u32 s{sx}, s{sx}, {f_win + 6*128}
    v_add_u32 v{VF}, s{sx}, v{VF}
    s_mul_i32 s26, s24, {4*24576}
    s_lshl_b32 s27, s{s_fb}, 12
    s_add_u32 s26, s26, s27
    s_lshl_b32 s27, s23, 11
    s_add_u32 s26, s26, s27
    s_mov_b32 s{sc}, 0
    s_waitcnt vmcnt(0)""")
    for t in range(4):
        A(f"v_lshlrev_b32 v{BI+t}, 16, v{BI+t}")
        for i in range(16): A(f"v_mov_b32 v{AC+16*t+i}, v{BI+t}")
    def need(d):
        A(f"""s_add_u32 s{tg}, s{sc}, {d}
        v_add_u32 v{VN}, s{tg}, v{VSG}
        v_and_b32 v{VN}, 1, v{VN}
        v_xor_b32 v{VN}, 1, v{VN}
        v_sub_u32 v{VN}, s{tg}, v{VN}""")
    def dma_w(slot):
        for i in range(2):
            A(f"s_add_u32 m0, s{sm}, {slot*16384 + i*1024}\nglobal_load_lds_dwordx4 v{VW+i}, {sr(sw,2)}")
        add64(A, sw, sw, 64)
    def dma_z(slot):
        A(f"s_add_u32 m0, s{sm}, {slot*16384 + 8192}")
        for i in range(2): A(f"buffer_load_dwordx4 v{VL}, {srd}, s{sz} offen offset:{i*1024} lds")
        A(f"s_add_u32 s{sz}, s{sz}, {SEG_Z}")
    def mm(slots):
        lg = Lg(A)
        def rd(n):
            o = 32*(n % 2) if False else 0
            for t in range(4): lg.ds(f"ds_read_b128 {vr(FB+4*t,4) if n % 2 == 0 else vr(224+4*t,4)}, v{VB} offset:{slots[n]*16384+1024*t}", ('b', n, t))
            for f in range(4): lg.ds(f"ds_read_b128 {vr(FA+4*f,4) if n % 2 == 0 else vr(240+4*f,4)}, v{VA} offset:{slots[n]*16384+1024*f}", ('a', n, f))
        rd(0)
        for n in range(len(slots)):
            fb_, fa_ = (FB, FA) if n % 2 == 0 else (224, 240)
            for f in range(4):
                lg.need(('a', n, f))
                if f == 3 and n + 1 < len(slots): pass
                for t in range(4):
                    a = vr(AC+16*t+4*f, 4)
                    A(f"v_mfma_f32_16x16x32_bf16 {a}, {vr(fa_+4*f,4)}, {vr(fb_+4*t,4)}, {a}")
                if f == 0 and n + 1 < len(slots): rd(n+1)
    def z1_load():
        A(f"v_subrev_u32 v{T1}, {6*128}, v{VF}\ns_lshl_b32 s{sc}, s{s_tb}, 2")
        need(4)
        l, l2 = A.newlabel('z1'), A.newlabel('z1')
        A(f"s_branch {l2}\n{l}:\ns_sleep 2"); tick(A, exitlab)
        A(f"""{l2}:
        buffer_load_dword v{T0}, v{T1}, {srd}, 0 offen sc1
        s_waitcnt vmcnt(0)
        v_cmp_gt_u32 vcc, v{VN}, v{T0}
        s_cbranch_vccnz {l}
        s_add_u32 s27, s26, {WS_Z1}""")
        for t in range(4):
            for p in range(2): A(bl(4, Z1+8*t+4*p, VL, 's27', 1024*p))
            if t < 3: A("s_add_u32 s27, s27, 24576")
        A("s_waitcnt vmcnt(0)")
        for i in range(32): A(f"v_lshlrev_b32 v{ZF+2*i}, 16, v{Z1+i}\nv_and_b32 v{ZF+2*i+1}, 0xffff0000, v{Z1+i}")
        A(f"s_mov_b32 s{sc}, {NSEG-1}")
    A("s_barrier\nsp_top:")
    A(f"s_cmp_ge_u32 s{sc}, {NSEG-4}\ns_cbranch_scc1 sp_one")
    need(4)
    A(f"""buffer_load_dword v{T0}, v{VF}, {srd}, 0 offen sc1
    s_waitcnt vmcnt(0)
    v_cmp_gt_u32 vcc, v{VN}, v{T0}
    s_cmp_eq_u64 vcc, 0
    s_cselect_b32 s19, 1, 0
    v_mov_b32 v{T0}, s19
    v_mov_b32 v{T1}, 65536
    s_cmp_lg_u32 s{W}, 0
    s_cbranch_scc1 sp_nb
    ds_write_b32 v{T1}, v{T0}
    s_waitcnt lgkmcnt(0)
    sp_nb:
    s_barrier
    ds_read_b32 v{T0}, v{T1}
    s_waitcnt lgkmcnt(0)
    v_readfirstlane_b32 s19, v{T0}
    s_cmp_eq_u32 s19, 0
    s_cbranch_scc1 sp_one""")
    for sl in range(4): dma_w(sl); dma_z(sl)
    A("s_waitcnt vmcnt(0)\ns_barrier")
    mm([0, 1, 2, 3])
    A(f"s_add_u32 s{sc}, s{sc}, 4\ns_branch sp_top\nsp_one:\ns_barrier")
    dma_w(0)
    l = A.newlabel('sp')
    A(f"s_cmp_lg_u32 s{sc}, {NSEG-1}\ns_cbranch_scc1 {l}")
    z1_load()
    A(f"{l}:")
    need(1)
    l, l2 = A.newlabel('sp'), A.newlabel('sp')
    A(f"s_branch {l2}\n{l}:\ns_sleep 3"); tick(A, exitlab)
    A(f"""{l2}:
    buffer_load_dword v{T0}, v{VF}, {srd}, 0 offen sc1
    s_waitcnt vmcnt(0)
    v_cmp_gt_u32 vcc, v{VN}, v{T0}
    s_cbranch_vccnz {l}""")
    dma_z(0)
    A("s_waitcnt vmcnt(0)\ns_barrier")
    mm([0])
    A(f"s_add_u32 s{sc}, s{sc}, 1\ns_cmp_lt_u32 s{sc}, {NSEG}\ns_cbranch_scc1 sp_top")
    if stamp: stamp(A)
    A(f"s_add_u32 s27, s26, {WS_GY}")
    for t in range(4):
        for p in range(2):
            a = AC+16*t+8*p; z = ZF+16*t+8*p
            for j in range(4): A(f"v_pk_mul_f32 {vr(a+2*j,2)}, {vr(a+2*j,2)}, {vr(z+2*j,2)}")
            for j in range(4): A(f"v_cvt_pk_bf16_f32 v{Z1+8*t+4*p+j}, v{a+2*j}, v{a+2*j+1}")
            A(bs(4, Z1+8*t+4*p, VL, 's27', 1024*p, 'sc1'))
        if t < 3: A("s_add_u32 s27, s27, 24576")
    l = A.newlabel('sp')
    A(f"s_mov_b32 s19, 1\ns_waitcnt vmcnt(0)\ns_barrier\ns_cmp_lg_u32 s{W}, 0\ns_cbranch_scc1 {l}")
    put_flag(A, s_flag, 19, T0)
    A(f"{l}:")
```

```python
from common import *

def load_w_rows(A, s_w, rowstride, nch, nrows, rpr, depth, s_base, v_lane, s_t, vt, reads):
    rpi = 64 // nch
    ni = -(-rpr // rpi)
    slot = rpr * nch * 16
    assert depth * ni <= 63 and nrows % rpr == 0
    voff, t = vt, vt + 1
    magic = (65536 + nch - 1) // nch
    A(f"""v_mul_u32_u24 v{t}, {magic}, v{v_lane}
    v_lshrrev_b32 v{t}, 16, v{t}
    s_mov_b32 s{s_t}, {rowstride - nch*16}
    v_mul_lo_u32 v{voff}, v{t}, s{s_t}
    v_lshl_add_u32 v{voff}, v{v_lane}, 4, v{voff}""")
    def setmask(rows):
        mask = (1 << (rows*nch)) - 1
        A(f"s_mov_b32 exec_lo, 0x{mask & 0xffffffff:x}\ns_mov_b32 exec_hi, 0x{mask >> 32:x}")
    def issue(r):
        setmask(rpi)
        for i in range(ni):
            rows = min(rpi, rpr - i*rpi)
            if rows != rpi: setmask(rows)
            A(f"s_add_u32 m0, s{s_base}, {(r%depth)*slot + i*rpi*nch*16}")
            A(f"global_load_lds_dwordx4 v{voff}, {sr(s_w,2)}")
            add64(A, s_w, s_w, rows*rowstride)
        A("s_mov_b64 exec, -1")
    nr = nrows // rpr
    for r in range(min(depth, nr)): issue(r)
    for r in range(nr):
        A(f"s_waitcnt vmcnt({ni*min(depth-1, nr-1-r)})")
        reads(A, r, (r%depth)*slot)
        A("s_waitcnt lgkmcnt(0)")
        if r + depth < nr: issue(r+depth)

def wreg_u(ct, kk): return 256 + 4*(ct*6+kk)

def u_load_w(A, s_w, s_wave, v_lane, s_t, vt):
    tr = vt + 2; t = vt + 3
    A(f"""v_lshrrev_b32 v{t}, 4, v{v_lane}
    v_lshlrev_b32 v{tr}, 3, v{t}
    v_bfe_u32 v{t}, v{v_lane}, 2, 2
    v_add_u32 v{tr}, v{tr}, v{t}
    v_mul_u32_u24 v{tr}, 320, v{tr}
    v_and_b32 v{t}, 3, v{v_lane}
    v_lshl_add_u32 v{tr}, v{t}, 3, v{tr}
    s_mul_i32 s{s_t}, s{s_wave}, 40960
    v_add_u32 v{tr}, s{s_t}, v{tr}""")
    def reads(A, kk, off):
        for ct in range(10):
            for q in range(2):
                A(f"ds_read_b64_tr_b16 {ur(wreg_u(ct,kk)+2*q,2)}, v{tr} offset:{off + q*4*320 + ct*32}")
    load_w_rows(A, s_w, 1280, 20, 192, 32, 4, s_t, v_lane, s_t+1, vt, reads)

VF0 = 64
UACC = 160
UEP = 176

def u_loop(A, name, s_v, s_o, s_cnt, s_wave, v_lane, s_t, vt, flags, mid_hook=None, pre_dma=None):
    vdma, vrd, vo = vt, vt+1, vt+2
    sdm = s_t
    BUF = 12288
    A(f"""v_lshlrev_b32 v{vrd}, 4, v{v_lane}
    v_mov_b32 v{vo}, v{vrd}
    s_mul_i32 s{sdm}, s{s_wave}, 3072
    v_add_u32 v{vdma}, s{sdm}, v{vrd}
    s_barrier""")
    def dma(buf):
        if pre_dma: pre_dma(A)
        A(f"s_add_u32 m0, s{sdm}, {buf*BUF}")
        for i in range(3):
            A(f"global_load_lds_dwordx4 v{vdma}, {sr(s_v,2)} offset:{i*1024}")
        add64(A, s_v, s_v, SEG_QKV)
    dma(0); dma(1)
    A("s_waitcnt vmcnt(3)\ns_barrier")
    for f in range(12):
        A(f"ds_read_b128 {vr(VF0+4*f,4)}, v{vrd} offset:{f*1024}")
    A(f"s_mov_b32 s{s_t+1}, 0")
    A(f"{name}_loop:")
    def epi(a, e, ct, step, guard):
        if step < 4:
            rt, j = divmod(step, 2)
            A(f"v_cvt_pk_bf16_f32 v{e+step}, v{a+4*rt+2*j}, v{a+4*rt+2*j+1}")
        elif step == 4:
            if guard:
                l = A.newlabel('skip'); A(f"s_cmp_eq_u32 s{s_t+1}, 0\ns_cbranch_scc1 {l}")
            A(f"global_store_dwordx4 v{vo}, {vr(e,4)}, {sr(s_o,2)} offset:{(ct%4)*1024} {flags}")
            if ct % 4 == 3: add64(A, s_o, s_o, 4096)
            if ct == 9: add64(A, s_o, s_o, SEG_U - 8192)
            if guard: A(f"{l}:")
    for par in range(2):
        cur = VF0 + 48*par; nxt = VF0 + 48*(1-par)
        A("s_waitcnt lgkmcnt(0)")
        for ct in range(10):
            a = UACC + 8*(ct%2); pa = UACC + 8*(1-ct%2)
            pct = (ct + 9) % 10
            i = 0
            for kk in range(6):
                for rt in range(2):
                    acc = vr(a+4*rt, 4)
                    A(f"v_mfma_f32_16x16x32_bf16 {acc}, {vr(cur+4*(rt*6+kk),4)}, {ur(wreg_u(ct,kk),4)}, {'0' if kk == 0 else acc}")
                    if 4 <= i < 9: epi(pa, UEP+4*(1-ct%2), pct, i-4, guard=(ct == 0 and par == 0))
                    if ct >= 6 and i % 4 == 0:
                        f = (ct-6)*3 + i//4
                        A(f"ds_read_b128 {vr(nxt+4*f,4)}, v{vrd} offset:{(1-par)*BUF + f*1024}")
                    i += 1
            if ct == 4:
                A("s_waitcnt vmcnt(4)\ns_barrier")
                if mid_hook: mid_hook(A, par)
                dma(par)
    A(f"""s_mov_b32 s{s_t+1}, 1
    s_sub_u32 s{s_cnt}, s{s_cnt}, 1
    s_cmp_lg_u32 s{s_cnt}, 0
    s_cbranch_scc1 {name}_loop""")
    for st in range(5): epi(UACC+8, UEP+4, 9, st, False)
    A("s_waitcnt lgkmcnt(0)")

def u_loop2(A, name, s_v, s_o, s_flag, v_fl, wait_flags, put_flag, srd, exitlab):
    vl, vp = 8, 9
    seg, ne, pf, sa = 16, 17, 18, 12
    A(f"v_lshlrev_b32 v{vl}, 4, v0\ns_mov_b32 s{seg}, 0\ns_mov_b32 s{pf}, 0")
    def loads(base):
        L = []
        for f in range(12):
            x = f"s_add_u32 s{sa}, s{s_v}, {(f//4)*4096}\n" if f % 4 == 0 else ''
            x += f"buffer_load_dwordx4 {vr(base+4*f,4)}, v{vl}, {srd}, s{sa} offen offset:{(f%4)*1024}"
            if f == 11: x += f"\ns_add_u32 s{s_v}, s{s_v}, {SEG_QKV}"
            L.append(x)
        return L
    def epi(a, e, ct, step):
        if step < 4:
            rt, j = divmod(step, 2)
            A(f"v_cvt_pk_bf16_f32 v{e+step}, v{a+4*rt+2*j}, v{a+4*rt+2*j+1}")
        else:
            A(f"buffer_store_dwordx4 {vr(e,4)}, v{vl}, {srd}, s{s_o} offen offset:{(ct%4)*1024} sc1")
            if ct % 4 == 3: A(f"s_add_u32 s{s_o}, s{s_o}, 4096")
            if ct == 9: A(f"s_add_u32 s{s_o}, s{s_o}, {SEG_U - 8192}")
    A(f"{name}_loop:")
    for par in range(2):
        cur = VF0 + 48*par; nxt = VF0 + 48*(1-par)
        l1, l2, l3 = A.newlabel('u'), A.newlabel('u'), A.newlabel('u')
        A(f"s_cmp_lg_u32 s{pf}, 0\ns_cbranch_scc1 {l1}\ns_waitcnt vmcnt(0)")
        put_flag(A, s_flag, seg, vp)
        A(f"s_add_u32 s{ne}, s{seg}, 1")
        wait_flags(A, v_fl, vp, ne, exitlab)
        for x in loads(cur): A(x)
        A(f"s_waitcnt vmcnt(0)\ns_branch {l2}\n{l1}:\ns_waitcnt vmcnt(8)\n{l2}:")
        A(f"buffer_load_dword v{vp+1}, v{v_fl}, {srd}, 0 offen sc1\ns_add_u32 s{ne}, s{seg}, 2")
        for ct in range(10):
            a = UACC + 8*(ct % 2); pa = UACC + 8*(1-ct % 2)
            i = 0
            for kk in range(6):
                for rt in range(2):
                    acc = vr(a+4*rt, 4)
                    A(f"v_mfma_f32_16x16x32_bf16 {acc}, {vr(cur+4*(rt*6+kk),4)}, {ur(wreg_u(ct,kk),4)}, {'0' if kk == 0 else acc}")
                    if ct >= 1 and 4 <= i < 9: epi(pa, UEP+4*(1-ct % 2), ct-1, i-4)
                    i += 1
            if ct == 2:
                A("s_waitcnt vmcnt(2)")
                put_flag(A, s_flag, seg, vp)
                A(f"""s_mov_b32 s{pf}, 0
                v_cmp_gt_u32 vcc, s{ne}, v{vp+1}
                s_cbranch_vccnz {l3}""")
                for x in loads(nxt): A(x)
                A(f"s_mov_b32 s{pf}, 1\n{l3}:")
        for st in range(5): epi(UACC+8, UEP+4, 9, st)
        A(f"s_add_u32 s{seg}, s{seg}, 1")
    A(f"s_cmp_lt_u32 s{seg}, {NSEG}\ns_cbranch_scc1 {name}_loop\ns_waitcnt vmcnt(0)")
    put_flag(A, s_flag, seg, vp)
```

```python
import sys, os
from common import *
from r_ln import *
from r_proj import *
from r_u import *
import r_rec as R
from r_rec import checkin, waitall, wait_flags, wait_flags_wg, put_flag, tick
from r_tail import *
KNAME = 'sequential_preLN__memory_aug_recurrent_mem_tr__mixer_gmlp__prompt_kernel'
STAMP = int(os.environ.get('STAMP', '0'), 0)
DBG = 90
F_QKV = WS_FLAG
F_U = WS_FLAG + 0x4000
F_X = 7*32768
F_LN = F_X + 5120
F_WIN = WS_FLAG + 0x5000
F_GY = WS_FLAG + 0x6000
EXIT = 'mega_done'
X, TK, W = R.S_GRP, 2, 3
srd = R.srd

def wave0(A, fn):
    l = A.newlabel('w0')
    A(f"s_cmp_lg_u32 s{W}, 0\ns_cbranch_scc1 {l}")
    fn()
    A(f"{l}:")

def rt_stamp(A, idx, vt=15):
    if not STAMP: return
    def f():
        A(f"""s_memrealtime s[86:87]
        s_lshl_b32 s84, s{X}, 5
        s_add_u32 s84, s84, s{TK}
        s_lshl_b32 s84, s84, 6
        s_add_u32 s84, s84, {WS_STAT + 65536 + 4*idx}
        s_waitcnt lgkmcnt(0)""")
        put_flag(A, 84, 86, vt)
    wave0(A, f)

def cy_stamp(A, idx, vt=15):
    if not STAMP: return
    def f():
        A(f"""s_memtime s[86:87]
        s_lshl_b32 s84, s{X}, 5
        s_add_u32 s84, s84, s{TK}
        s_lshl_b32 s84, s84, 6
        s_add_u32 s84, s84, {WS_STAT + 65536 + 4*idx}
        s_waitcnt lgkmcnt(0)""")
        put_flag(A, 84, 86, vt)
    wave0(A, f)

def ln1_duty(A, s_idx):
    A(f"""s_load_dwordx2 s[12:13], s[0:1], {KA_X}
    s_lshl_b32 s16, s{s_idx}, 2
    s_add_u32 s16, s16, s{W}
    s_mul_i32 s16, s16, 20480
    s_waitcnt lgkmcnt(0)""")
    add64(A, 12, 12, 's16')
    A(f"s_add_u32 s16, s16, {WS_XNF}")
    add64(A, 14, 4, 's16')
    ln_rowtile(A, 12, 14, 0, 'sc1')

def k_mega(A):
    A(f""".p2align 8
    {KNAME}:
    s_cmp_ge_u32 s2, 256
    s_cbranch_scc1 {EXIT}
    s_load_dwordx2 s[4:5], s[0:1], {KA_WS}
    s_load_dwordx2 s[{DBG}:{DBG+1}], s[0:1], {KA_DBG}
    s_load_dwordx2 s[16:17], s[0:1], {KA_X}
    s_getreg_b32 s9, hwreg(HW_REG_XCC_ID)
    s_and_b32 s9, s9, 15
    s_and_b32 s{X}, s9, 7
    v_lshrrev_b32 v1, 6, v0
    v_readfirstlane_b32 s{W}, v1
    v_and_b32 v0, 63, v0
    s_mov_b32 s{R.S_TO}, 0
    s_mov_b32 s6, 0x10000000
    s_mov_b32 s7, 0x20000""")
    if STAMP: A("s_memrealtime s[88:89]")
    A(f"""s_waitcnt lgkmcnt(0)
    v_mov_b32 v1, 0
    s_and_b32 s18, s2, 3
    s_cmp_lg_u32 s2, 0
    s_cbranch_scc1 mega_nocal
    s_cmp_lg_u32 s{W}, 3
    s_cbranch_scc1 mega_calj
    s_mov_b64 exec, 1
    v_mov_b32 v2, {(1<<21) - 16384}
    v_mov_b32 v3, {(1<<21) - 8192}
    s_mov_b32 s20, 0""")
    for rep in range(6):
        a, b = (2, 3) if rep % 2 == 0 else (3, 2)
        A(f"""global_store_dword v{a}, v1, s[4:5] sc1
        global_store_dword v{b}, v1, s[4:5] sc1
        s_waitcnt vmcnt(1)
        s_memtime s[12:13]
        s_waitcnt vmcnt(0)
        s_memtime s[14:15]
        s_waitcnt lgkmcnt(0)
        s_sub_u32 s14, s14, s12
        s_min_u32 s14, s14, 400
        {'s_add_u32' if rep % 2 == 0 else 's_sub_u32'} s20, s20, s14""")
    A(f"""s_cmp_lt_i32 s20, 0
    s_cselect_b32 s14, 8193, 1
    s_and_b32 s15, s9, 4
    s_lshl_b32 s15, s15, 11
    s_xor_b32 s14, s14, s15
    v_mov_b32 v2, {4*R.D_POL}
    v_mov_b32 v4, s14
    v_mov_b32 v5, s20
    global_store_dwordx2 v2, v[4:5], s[{DBG}:{DBG+1}] sc1
    s_mov_b64 exec, -1
    mega_calj:
    s_barrier
    mega_nocal:
    s_cmp_lg_u32 s{W}, 3
    s_cbranch_scc1 mega_noln""")
    ln1_small(A, 16, 2, srd, WS_XNF)
    A(f"""mega_noln:
    s_cmp_lg_u32 s{W}, 0
    s_cbranch_scc1 mega_t1
    s_mov_b64 exec, 1
    v_mov_b32 v3, 1
    s_mov_b32 s12, 0
    mega_tk:
    s_cmp_eq_u32 s{X}, s9
    s_cbranch_scc1 mega_home
    v_mov_b32 v2, {4*R.D_SLOW}
    global_store_dword v2, v3, s[{DBG}:{DBG+1}] sc1
    s_waitcnt vmcnt(0)
    mega_home:
    s_and_b32 s14, s{X}, 3
    s_lshl_b32 s14, s14, 6
    s_and_b32 s15, s{X}, 4
    s_add_u32 s14, s14, s15
    v_mov_b32 v2, s14
    global_atomic_add v4, v2, v3, s[{DBG}:{DBG+1}] sc0
    s_waitcnt vmcnt(0)
    v_readfirstlane_b32 s14, v4
    s_cmp_lt_u32 s14, 32
    s_cbranch_scc1 mega_got
    s_add_u32 s{X}, s{X}, 1
    s_and_b32 s{X}, s{X}, 7
    s_add_u32 s12, s12, 1
    s_cmp_lt_u32 s12, 8
    s_cbranch_scc1 mega_tk
    mega_got:
    v_mov_b32 v5, s{X}
    ds_write_b64 v1, v[4:5]
    s_waitcnt lgkmcnt(0)
    s_mov_b64 exec, -1
    mega_t1:
    s_barrier
    ds_read_b64 v[4:5], v1
    s_waitcnt lgkmcnt(0)
    v_readfirstlane_b32 s{TK}, v4
    v_readfirstlane_b32 s{X}, v5
    s_barrier
    s_cmp_lg_u32 s{W}, 3
    s_cbranch_scc1 mega_noln2
    s_lshl_b32 s18, s18, 6
    s_add_u32 s18, s18, {4*R.D_LN}
    v_mov_b32 v2, s18
    v_mov_b32 v3, 1
    s_mov_b64 exec, 1
    s_waitcnt vmcnt(0)
    global_atomic_add v2, v3, s[{DBG}:{DBG+1}]
    s_mov_b64 exec, -1
    mega_noln2:
    s_cmp_ge_u32 s{TK}, 32
    s_cbranch_scc1 {EXIT}""")
    if STAMP:
        A("s_mov_b32 s71, s88")
        for i in range(72, 88): A(f"s_mov_b32 s{i}, 0")
        wave0(A, lambda: (A(f"s_lshl_b32 s84, s{X}, 5\ns_add_u32 s84, s84, s{TK}\ns_lshl_b32 s84, s84, 6\ns_add_u32 s84, s84, {WS_STAT+65536}"), put_flag(A, 84, 88, 15)))
    rt_stamp(A, 1)
    A(f"""s_cmp_ge_u32 s{X}, 4
    s_cbranch_scc1 mega_hi
    s_cmp_ge_u32 s{TK}, 26
    s_cbranch_scc1 mega_ln2
    s_and_b32 s{R.S_HL}, s{TK}, 7
    s_cmp_ge_u32 s{TK}, 16
    s_cbranch_scc1 mega_R
    s_cmp_ge_u32 s{TK}, 8
    s_cbranch_scc1 mega_B
    s_branch mega_A
    mega_hi:
    s_cmp_ge_u32 s{TK}, 26
    s_cbranch_scc1 mega_win
    s_cmp_ge_u32 s{TK}, 18
    s_cbranch_scc1 mega_U""")
    A(f"""s_mul_hi_u32 s22, s{TK}, {-(-(1<<32)//6)}
    s_mul_i32 s23, s22, 6
    s_sub_u32 s23, s{TK}, s23
    s_sub_u32 s22, 2, s22
    s_sub_u32 s20, s{X}, 4
    s_mul_i32 s20, s20, 6
    s_add_u32 s23, s23, s20
    s_mul_i32 s30, s22, 24
    s_add_u32 s30, s30, s23
    s_lshl_b32 s30, s30, 7
    s_add_u32 s30, s30, {F_QKV}
    s_lshl_b32 s24, s22, 3
    s_add_u32 s24, s24, {KA_WQ}
    s_load_dwordx2 s[32:33], s[0:1], s24
    s_lshl_b32 s25, s23, 2
    s_add_u32 s25, s25, s{W}
    s_lshl_b32 s26, s25, 7
    s_mul_hi_u32 s27, s25, {-(-(1<<32)//3)}
    s_mul_i32 s28, s27, 3
    s_sub_u32 s28, s25, s28
    s_mul_i32 s27, s27, 12288
    s_lshl_b32 s28, s28, 11
    s_add_u32 s27, s27, s28
    s_mul_i32 s28, s22, {WS_KF-WS_QF}
    s_add_u32 s27, s27, s28
    s_add_u32 s27, s27, {WS_QF}""")
    A("s_waitcnt lgkmcnt(0)")
    add64(A, 32, 32, 's26'); add64(A, 34, 4, 's27'); add64(A, 36, 4, WS_XNF)
    load_w64(A, 32, 12288, W, 0, 12, 4)
    rt_stamp(A, 2)
    A(f"s_mov_b32 s16, {NSEG}\nv_lshlrev_b32 v2, 4, v0")
    waitall(A, DBG, EXIT, 2)
    rt_stamp(A, 3); cy_stamp(A, 8)
    def mid(A): wave0(A, lambda: (A(f"s_sub_u32 s17, {NSEG}, s16"), put_flag(A, 30, 17, 12)))
    proj_loop(A, 'proj', 36, 16, W, 0, make_epi_qkv(34, 2, os.environ.get('PST', 'sc1')), mid_hook=mid, s_t=12, vt=8)
    A("s_waitcnt vmcnt(0)\ns_barrier"); mid(A)
    rt_stamp(A, 4); cy_stamp(A, 9)
    A(f"s_branch mega_sp")
    A(f"""mega_U:
    s_load_dwordx2 s[32:33], s[0:1], {KA_WO}
    s_sub_u32 s20, s{X}, 4
    s_lshl_b32 s20, s20, 3
    s_add_u32 s20, s20, s{TK}
    s_sub_u32 s20, s20, 18
    s_lshl_b32 s30, s20, 7
    s_add_u32 s30, s30, {F_U}
    s_mul_i32 s22, s20, 245760
    s_mul_i32 s23, s{W}, 320
    s_add_u32 s22, s22, s23
    s_mul_i32 s23, s20, 12288
    s_add_u32 s23, s23, {WS_VF}
    s_mul_i32 s24, s20, 40960
    s_mul_i32 s25, s{W}, 10240
    s_add_u32 s24, s24, s25
    s_add_u32 s24, s24, {WS_UF}
    s_mul_i32 s25, s20, 192
    v_and_b32 v3, 1, v0
    v_mul_u32_u24 v3, 191, v3
    v_add_u32 v3, s25, v3
    v_lshrrev_b32 v3, 8, v3
    v_lshlrev_b32 v3, 7, v3
    v_add_u32 v3, {F_QKV + 48*128}, v3""")
    A("s_waitcnt lgkmcnt(0)")
    add64(A, 32, 32, 's22')
    u_load_w(A, 32, W, 0, 12, 4)
    rt_stamp(A, 2)
    A(f"v_lshlrev_b32 v2, 4, v0\ns_lshl_b32 s12, s{W}, 2\ns_add_u32 s30, s30, s12")
    waitall(A, DBG, EXIT, 2)
    u_loop2(A, 'u', 23, 24, 30, 3, wait_flags, put_flag, srd, EXIT)
    rt_stamp(A, 4)
    A(f"mega_sp:\ns_and_b32 s40, s{TK}, 3")
    load_wout(A, 40, 12, 4)
    A(f"""s_cmp_ge_u32 s{TK}, 24
    s_cbranch_scc1 mega_out
    s_mul_hi_u32 s30, s{TK}, {-(-(1<<32)//6)}
    s_mul_i32 s31, s30, 6
    s_sub_u32 s31, s{TK}, s31
    s_sub_u32 s32, s{X}, 4
    s_lshl_b32 s33, s32, 2
    s_add_u32 s30, s30, s33
    s_mul_i32 s32, s32, 24
    s_add_u32 s32, s32, s{TK}
    s_lshl_b32 s32, s32, 7
    s_add_u32 s32, s32, {F_GY}""")
    rt_stamp(A, 5)
    spatial2(A, 30, 31, F_WIN, 32, EXIT, stamp=lambda A: rt_stamp(A, 6))
    A(f"""mega_out:
    s_lshl_b32 s40, s{X}, 5
    s_add_u32 s40, s40, s{TK}""")
    out_task(A, 40, F_GY, EXIT, 'mega_end')
    A("mega_end:")
    if STAMP: A("s_waitcnt vmcnt(0)")
    rt_stamp(A, 7)
    A(f"{EXIT}:\ns_endpgm")
    A(f"mega_wo:\ns_waitcnt vmcnt(0)\ns_barrier\ns_and_b32 s40, s{TK}, 3")
    load_wout(A, 40, 12, 4)
    A("s_branch mega_out")
    A(f"""mega_ln2:
    s_mul_i32 s24, s{X}, 6
    s_add_u32 s24, s24, s{TK}
    s_sub_u32 s24, s24, 26
    s_lshl_b32 s30, s24, 7
    s_add_u32 s30, s30, {F_LN}
    s_cmp_lt_u32 s{TK}, 28
    s_cbranch_scc1 mega_ln2j
    s_lshl_b32 s12, s{X}, 2
    s_add_u32 s12, s12, s{TK}
    s_sub_u32 s12, s12, 28
    s_lshl_b32 s12, s12, 2
    s_add_u32 s12, s12, s{W}
    s_lshl_b32 s13, s12, 10
    s_add_u32 s13, s13, {WS_FLAG}
    s_and_b32 s12, s12, 15
    s_lshl_b32 s12, s12, 10
    s_add_u32 s12, s12, {F_X}
    v_lshlrev_b32 v2, 4, v0""")
    for i in range(4): A(f"v_mov_b32 v{16+i}, 0")
    A(bs(4, 16, 2, 's13', 0, 'sc1')); A(bs(4, 16, 2, 's12', 0, 'sc1'))
    A("mega_ln2j:")
    checkin(A, DBG)
    rt_stamp(A, 2)
    A(f"s_and_b32 s40, s{TK}, 3\nv_lshlrev_b32 v2, 4, v0")
    waitall(A, DBG, EXIT, 2, s_pol=31)
    A(f'v_mov_b32 v4, {F_U}\ns_mov_b32 s12, 1')
    wait_flags(A, 4, 5, 12, EXIT, sleep=20)
    load_wout(A, 40, 12, 4)
    A("s_add_u32 s30, s30, s31\ns_barrier")
    ln2_loop(A, 24, 24, F_X, 30, 31, EXIT)
    rt_stamp(A, 4)
    A("s_branch mega_out")
    A(f"""mega_win:
    s_sub_u32 s34, s{X}, 4
    s_sub_u32 s35, s{TK}, 26
    s_mul_i32 s22, s34, 6
    s_add_u32 s22, s22, s35
    s_lshl_b32 s30, s22, 7
    s_add_u32 s30, s30, {F_WIN}
    s_lshr_b32 s36, s34, 1
    s_and_b32 s34, s34, 1""")
    sx_init(A, 36, 35)
    checkin(A, DBG)
    rt_stamp(A, 2)
    A(f"""s_load_dwordx2 s[32:33], s[0:1], {KA_WIN}
    s_and_b32 s40, s{TK}, 3
    v_lshlrev_b32 v2, 4, v0""")
    waitall(A, DBG, EXIT, 2, s_pol=31)
    A(f'v_mov_b32 v4, {F_U}\ns_mov_b32 s12, 1')
    wait_flags(A, 4, 5, 12, EXIT, sleep=20)
    load_wout(A, 40, 12, 4)
    A(f"""s_mul_i32 s25, s34, 6
    s_add_u32 s25, s25, s35
    s_lshl_b32 s25, s25, 2
    s_add_u32 s25, s25, s{W}
    s_lshl_b32 s25, s25, 6""")
    add64(A, 32, 32, 's25')
    win_load(A, 32, 12, 4)
    A("s_cmp_lg_u32 s34, 0\ns_cbranch_scc1 mega_win2")
    win_loop(A, 'win1', False, 36, 35, F_LN, 30, 31, EXIT)
    rt_stamp(A, 4)
    A("s_branch mega_out\nmega_win2:")
    win_loop(A, 'win2', True, 36, 35, F_LN, 30, 31, EXIT)
    rt_stamp(A, 4)
    A("s_branch mega_out")
    hooks = {'next_ab': 'mega_wo', 'next_r': 'mega_wo'}
    hooks['rts'] = lambda A, i: rt_stamp(A, i, R.MOP)
    if STAMP:
        def stamp(A, i):
            if i == 0:
                l = A.newlabel('st')
                A(f"s_memtime s[86:87]\ns_memrealtime s[88:89]\ns_waitcnt lgkmcnt(0)\ns_cmp_lg_u32 s{R.S_STEP}, {int(os.environ.get('SSTEP','21'))}\ns_cbranch_scc1 {l}")
                for k in range(1, 8): A(f"s_sub_u32 s{92+k}, s{72+2*k}, s72")
                A(f"s_mov_b32 s92, s73\ns_mov_b32 s100, s88")
                A(f"{l}:\ns_mov_b32 s72, s86\ns_mov_b32 s73, s88")
                l = A.newlabel('st')
                A(f"s_cmp_lg_u32 s{R.S_STEP}, 0\ns_cbranch_scc1 {l}\ns_sub_u32 s101, s88, s71\n{l}:")
            elif (STAMP >> i) & 1:
                A(f"s_memtime s[{72+2*i}:{73+2*i}]\ns_waitcnt lgkmcnt(0)")
        hooks['stamp'] = stamp
        def final(A):
            A(f"""s_lshl_b32 s14, s{X}, 5
            s_add_u32 s14, s14, s{TK}
            s_lshl_b32 s14, s14, 2
            s_add_u32 s14, s14, s{W}
            s_lshl_b32 s14, s14, 6
            s_add_u32 s14, s14, {WS_STAT}
            s_memrealtime s[86:87]
            s_waitcnt lgkmcnt(0)
            s_sub_u32 s15, s86, s71
            v_mov_b32 v17, 0""")
            for i, r in enumerate(list(range(92, 102)) + [15, R.S_TO]):
                A(f"v_mov_b32 v16, s{r}\nbuffer_store_dword v16, v17, s[4:7], s14 offen offset:{4*i}")
            rt_stamp(A, 4)
        hooks['final'] = final
        def steplog(A):
            l = A.newlabel('sl')
            A(f"""s_cmp_lg_u32 s{R.S_H}, 0
            s_cbranch_scc1 {l}
            s_memrealtime s[84:85]
            s_lshl_b32 s{R.S_T}, s{R.S_STEP}, 2
            s_add_u32 s{R.S_T}, s{R.S_T}, {WS_STAT + 131072}
            s_waitcnt lgkmcnt(0)""")
            put_flag(A, R.S_T, 84, R.MOP)
            A(f"{l}:")
        hooks['steplog'] = steplog
    def wait_in(A, mode):
        t = R.MOP + 24
        if mode == 'first': A(f"s_mov_b32 s{R.S_T}, 1")
        else: A(f"s_add_u32 s{R.S_T}, s{R.S_STEP}, 2\ns_min_u32 s{R.S_T}, s{R.S_T}, {NSEG}")
        A(f"""s_mul_i32 s{R.S_T+1}, s{R.S_H}, 192
        v_bfe_u32 v{t}, v{R.V_LANE16}, 4, 1
        v_mul_u32_u24 v{t}, 191, v{t}
        v_add_u32 v{t}, s{R.S_T+1}, v{t}
        v_lshrrev_b32 v{t}, 8, v{t}
        v_bfe_u32 v{t+1}, v{R.V_LANE16}, 5, 1
        v_mad_u32_u24 v{t}, v{t+1}, 24, v{t}
        v_lshlrev_b32 v{t}, 7, v{t}
        v_add_u32 v{t}, {F_QKV}, v{t}""")
        if mode == 'peek':
            A(f"""buffer_load_dword v{t+1}, v{t}, {srd}, 0 offen sc1
            s_waitcnt vmcnt(0)
            v_cmp_gt_u32 {sr(R.S_EVEN,2)}, s{R.S_T}, v{t+1}""")
        else: wait_flags(A, t, t+1, R.S_T, EXIT)
    hooks['wait_in'] = wait_in
    def wait_u(A, k):
        if k == 0:
            rt_stamp(A, 3, 24)
            A(f"""s_lshl_b32 s{R.S_T}, s{X}, 1
            s_add_u32 s{R.S_T}, s{R.S_T}, s{W}
            s_lshl_b32 s{R.S_T}, s{R.S_T}, 9
            s_add_u32 s{R.S_T}, s{R.S_T}, {F_U}
            v_and_b32 v10, 3, v0
            v_lshlrev_b32 v10, 7, v10
            v_and_b32 v11, 12, v0
            v_add3_u32 v10, v10, v11, s{R.S_T}""")
        A(f"s_add_u32 s{R.S_T}, s{R.S_STEP}, {k+1}\ns_min_u32 s{R.S_T}, s{R.S_T}, {NSEG}")
        wait_flags(A, 10, 11, R.S_T, EXIT)
        if k == 0: rt_stamp(A, 5, 24)
    hooks['wait_u'] = wait_u
    hooks['x_flag'] = lambda A: put_flag(A, R.S_O4, R.S_STEP, 12)
    hooks['x_init'] = lambda A: A(f"s_add_u32 s{R.S_O4}, s{R.S_O4}, s{R.S_POL}")
    def cached_u(A, skip, s_late):
        A(f"""s_add_u32 s{R.S_T}, s{R.S_STEP}, 2
        v_cmp_gt_u32 vcc, s{R.S_T}, v11
        s_cbranch_vccz {skip}_ok
        buffer_load_dword v11, v10, {srd}, 0 offen sc1
        s_waitcnt vmcnt(0)
        v_cmp_gt_u32 vcc, s{R.S_T}, v11
        {skip}_ok:
        s_mov_b64 {sr(s_late,2)}, vcc
        s_cbranch_vccnz {skip}""")
    hooks['cached_u'] = cached_u
    hooks['peek_u'] = lambda A: A(f"buffer_load_dword v11, v10, {srd}, 0 offen sc1")
    A("mega_A:")
    R.role_A(A, EXIT, DBG, hooks)
    A("mega_B:")
    R.role_B(A, EXIT, DBG, hooks)
    A(f"""mega_R:
    s_sub_u32 s{R.S_HL}, s{TK}, 16
    s_mul_i32 s{R.S_O4}, s{X}, 10
    s_add_u32 s{R.S_O4}, s{R.S_O4}, s{R.S_HL}
    s_lshl_b32 s{R.S_O4}, s{R.S_O4}, 7
    s_add_u32 s{R.S_O4}, s{R.S_O4}, {F_X}""")
    A(f"s_and_b32 s12, s{W}, 1\ns_lshl_b32 s12, s12, 6\ns_add_u32 s{R.S_O4}, s{R.S_O4}, s12")
    R.role_R(A, EXIT, DBG, hooks)

def build():
    ref = open('sequential_preLN__memory_aug_recurrent_mem_tr__mixer_gmlp__prompt.s.ref').read().split('\n')
    hdr = '\n'.join(l for l in ref if l.startswith(';') and '@launch' not in l) + '\n'
    if os.environ.get('LIST', '1') == '1': hdr += f"; @launch kernel={KNAME} grid=(256,1,1) block=(256,1,1) lds=163840\n"
    else: hdr += "; @launch grid=(256,1,1) block=(256,1,1) lds=163840\n"
    A = Asm()
    A(f'.amdgcn_target "amdgcn-amd-amdhsa--gfx950"\n.text\n.globl {KNAME}\n.type {KNAME},@function')
    k_mega(A)
    return hdr + A.text() + kdesc(KNAME)

if __name__ == '__main__':
    open(sys.argv[1], 'w').write(build())
```

```python
from common import *

def wreg_proj(f):
    return 256 + 4*f if f < 64 else 192 + 4*(f-64)

def load_w64(A, s_w, wstride, s_wave, v_lane, s_t, vt, kperm=False, depth=5, base=0, hook=None):
    voff, tr0, tr1, t = vt, vt+1, vt+2, vt+3
    sl = s_t
    A(f"""s_mul_i32 s{sl}, s{s_wave}, {8192*depth}
    s_add_u32 s{sl}, s{sl}, {base}
    v_lshrrev_b32 v{t}, 3, v{v_lane}
    s_mov_b32 s{s_t+1}, {wstride}
    v_mul_lo_u32 v{voff}, v{t}, s{s_t+1}
    v_lshlrev_b32 v{t}, 1, v{t}
    v_and_b32 v{t}, 4, v{t}
    v_and_b32 v{tr0}, 7, v{v_lane}
    v_xor_b32 v{t}, v{t}, v{tr0}
    v_lshl_add_u32 v{voff}, v{t}, 4, v{voff}
    v_lshrrev_b32 v{t}, 4, v{v_lane}
    v_lshlrev_b32 v{tr0}, {9 if kperm else 10}, v{t}
    v_bfe_u32 v{t}, v{v_lane}, 2, 2
    v_lshl_add_u32 v{tr0}, v{t}, 7, v{tr0}
    v_lshlrev_b32 v{t}, 1, v{t}
    v_and_b32 v{t}, 4, v{t}
    v_and_b32 v{tr1}, 3, v{v_lane}
    v_add_u32 v{t}, v{t}, v{tr1}
    v_lshl_add_u32 v{tr0}, v{t}, 4, v{tr0}
    v_xor_b32 v{tr1}, 64, v{tr0}
    v_add_u32 v{tr0}, s{sl}, v{tr0}
    v_add_u32 v{tr1}, s{sl}, v{tr1}""")
    def issue(c):
        for i in range(8):
            A(f"s_add_u32 m0, s{sl}, {(c%depth)*8192 + i*1024}")
            A(f"global_load_lds_dwordx4 v{voff}, {sr(s_w,2)}")
            add64(A, s_w, s_w, 8*wstride)
    for c in range(depth): issue(c)
    for c in range(10):
        A(f"s_waitcnt vmcnt({8*min(depth-1, 9-c)})")
        for ksl in range(2):
            for tt in range(4):
                p, ab = tt >> 1, tt & 1
                r = wreg_proj((2*c+ksl)*4 + tt)
                for q in range(2):
                    A(f"ds_read_b64_tr_b16 {ur(r+2*q,2)}, v{tr1 if p else tr0} offset:{(c%depth)*8192 + ksl*4096 + q*(2048 if kperm else 512) + 8*ab}")
        if hook: hook(A, c, 0)
        if c + depth < 10:
            A("s_waitcnt lgkmcnt(0)")
            issue(c+depth)
        if hook: hook(A, c, 1)
    A("s_waitcnt lgkmcnt(0)")

ACC = 128
XR = 160
EP = 176

def proj_loop(A, name, s_x, s_cnt, s_wave, v_lane, epi, swap=False, mid_hook=None, s_t=None, vt=8, seg0_done=False, nmid=19):
    vdma, vcur, vnxt = vt, vt+1, vt+2
    sdm, snx = s_t, s_t+1
    A(f"""v_lshlrev_b32 v{vcur}, 4, v{v_lane}
    s_mul_i32 s{sdm}, s{s_wave}, 10240
    v_add_u32 v{vdma}, s{sdm}, v{vcur}
    v_add_u32 v{vnxt}, {SEG_XN}, v{vcur}
    s_barrier""")
    def dma(i, boff):
        A(f"s_add_u32 m0, s{boff}, {(i//4)*4096}" if i % 4 == 0 else "")
        A(f"global_load_lds_dwordx4 v{vdma}, {sr(s_x,2)} offset:{(i%4)*1024}")
        if i % 4 == 3: add64(A, s_x, s_x, 4096)
        if i == 9: add64(A, s_x, s_x, SEG_XN - 8192)
    if not seg0_done:
        for i in range(10): dma(i, sdm)
    A(f"s_add_u32 s{sdm}, s{sdm}, {SEG_XN}")
    for i in range(10): dma(i, sdm)
    A(f"s_add_u32 s{sdm}, s{sdm}, {SEG_XN}")
    A(f"s_mov_b32 s{snx}, 1")
    A("s_waitcnt vmcnt(10)\ns_barrier")
    for n in range(3):
        A(f"ds_read_b128 {vr(XR+4*n,4)}, v{vcur} offset:{n*1024}")
    A(f"s_mov_b32 s{s_t+2}, 0")
    A(f"{name}_loop:")
    for n in range(40):
        rt, ks = divmod(n, 20)
        m = n + 3
        A(f"ds_read_b128 {vr(XR+4*(m%4),4)}, v{vcur if m < 40 else vnxt} offset:{(m%40)*1024}")
        A("s_waitcnt lgkmcnt(3)")
        for t in range(4):
            a = vr(ACC + 16*rt + 4*t, 4)
            w = ur(wreg_proj(ks*4+t), 4); x = vr(XR+4*(n%4), 4)
            o1, o2 = (x, w) if swap else (w, x)
            A(f"v_mfma_f32_16x16x32_bf16 {a}, {o1}, {o2}, {'0' if ks == 0 else a}")
            if ks >= 1:
                step = (ks-1)*4 + t
                if rt == 0:
                    epi(A, 1, step, guard=s_t+2)
                else:
                    epi(A, 0, step, guard=None)
        if n == nmid:
            A("s_waitcnt vmcnt(0)\ns_barrier")
            if mid_hook: mid_hook(A)
        if nmid < n <= nmid+10:
            dma(n-nmid-1, sdm)
    A(f"""s_add_u32 s{snx}, s{snx}, 1
    s_cmp_eq_u32 s{snx}, 3
    s_cselect_b32 s{snx}, 0, s{snx}
    v_mov_b32 v{vcur}, v{vnxt}
    s_mul_i32 s{s_t+2}, s{snx}, {SEG_XN}
    v_lshlrev_b32 v{vnxt}, 4, v{v_lane}
    v_add_u32 v{vnxt}, s{s_t+2}, v{vnxt}
    s_add_u32 s{sdm}, s{sdm}, {SEG_XN}
    s_cmp_eq_u32 s{snx}, 2
    s_cselect_b32 s{s_t+2}, {3*SEG_XN}, 0
    s_sub_u32 s{sdm}, s{sdm}, s{s_t+2}
    s_mov_b32 s{s_t+2}, 1
    s_sub_u32 s{s_cnt}, s{s_cnt}, 1
    s_cmp_lg_u32 s{s_cnt}, 0
    s_cbranch_scc1 {name}_loop""")
    step = 0
    while epi(A, 1, step, guard=None): step += 1
    A("s_waitcnt lgkmcnt(0)")

def make_epi_qkv(s_o, v_o, flags):
    def epi(A, rt, step, guard):
        if step < 2: return True
        step -= 2
        if step < 8:
            p, j = divmod(step, 4)
            a = ACC + 16*rt + 8*p + 2*j
            A(f"v_cvt_pk_bf16_f32 v{EP+4*p+j}, v{a}, v{a+1}")
            return True
        if step == 8:
            if guard is not None:
                l = A.newlabel('skip')
                A(f"s_cmp_eq_u32 s{guard}, 0\ns_cbranch_scc1 {l}")
            if rt == 1: add64(A, s_o, s_o, 6144)
            A(f"global_store_dwordx4 v{v_o}, {vr(EP,4)}, {sr(s_o,2)} {flags}")
            A(f"global_store_dwordx4 v{v_o}, {vr(EP+4,4)}, {sr(s_o,2)} offset:1024 {flags}")
            if rt == 1: add64(A, s_o, s_o, SEG_QKV - 6144)
            if guard is not None: A(f"{l}:")
            return True
        return False
    return epi

from r_ln import hexf
import math
GC0 = -2.0*math.sqrt(2.0/math.pi)*math.log2(math.e)
GC1 = GC0*0.044715
def gelu_ops(regs, tmp, s_c0, s_c1):
    n = len(regs); ops = []
    ops += [f"v_mul_f32 v{tmp+i}, v{r}, v{r}" for i, r in enumerate(regs)]
    ops += [f"v_fma_f32 v{tmp+i}, v{tmp+i}, s{s_c1}, v{s_c0}" for i, r in enumerate(regs)]
    ops += [f"v_mul_f32 v{tmp+i}, v{tmp+i}, v{r}" for i, r in enumerate(regs)]
    ops += [f"v_exp_f32 v{tmp+i}, v{tmp+i}" for i, r in enumerate(regs)]
    ops += [f"v_add_f32 v{tmp+i}, 1.0, v{tmp+i}" for i, r in enumerate(regs)]
    ops += [f"v_rcp_f32 v{tmp+i}, v{tmp+i}" for i, r in enumerate(regs)]
    ops += [f"v_mul_f32 v{tmp+i}, v{tmp+i}, v{r}" for i, r in enumerate(regs)]
    return ops

def make_epi_list(build, per=3):
    cache = {}
    def epi(A, rt, step, guard):
        if step == 0: cache[rt] = build(rt)
        ops, tail = cache[rt]
        if step < 2: return True
        k = (step-2)*per
        if k < len(ops):
            for o in ops[k:k+per]: A(o)
            return True
        if k < len(ops) + per:
            if guard is not None:
                l = A.newlabel('skip')
                A(f"s_cmp_eq_u32 s{guard}, 0\ns_cbranch_scc1 {l}")
            A(tail)
            if guard is not None: A(f"{l}:")
            return True
        return False
    return epi

SEG_Z = 48*1024
SEG_ST = 12*256
GT, ZP, ST_ = 32, 64, 96
def make_epi_z1(s_o, v_o, v_c0, s_c1, flags, seg_step=1):
    def build(rt):
        regs = [ACC + 16*rt + i for i in range(16)]
        ops = gelu_ops(regs, GT, v_c0, s_c1)
        ops += [f"v_cvt_pk_bf16_f32 v{EP+i}, v{GT+2*i}, v{GT+2*i+1}" for i in range(8)]
        tail = f"""global_store_dwordx4 v{v_o}, {vr(EP,4)}, {sr(s_o,2)} {flags}
        global_store_dwordx4 v{v_o}, {vr(EP+4,4)}, {sr(s_o,2)} offset:1024 {flags}
        s_add_u32 s{s_o}, s{s_o}, {24576 + (seg_step-1)*SEG_Z*rt}
        s_addc_u32 s{s_o+1}, s{s_o+1}, 0"""
        return ops, tail
    return make_epi_list(build, 2)

def make_epi_z2(s_o, s_st, v_o, v_st, v_c0, s_c1, flags, seg_step=1):
    def build(rt):
        regs = [ACC + 16*rt + i for i in range(16)]
        ops = gelu_ops(regs, GT, v_c0, s_c1)
        ops += [f"v_cvt_pk_bf16_f32 v{ZP+4*t+2*rt+j}, v{GT+4*t+2*j}, v{GT+4*t+2*j+1}" for t in range(4) for j in range(2)]
        ops += [f"v_add_f32 v{ST_+i}, v{GT+i}, v{GT+4+i}" for i in range(4)]
        ops += [f"v_mul_f32 v{ST_+4+i}, v{GT+i}, v{GT+i}" for i in range(4)]
        for t in range(1, 4):
            if t > 1: ops += [f"v_add_f32 v{ST_+i}, v{ST_+i}, v{GT+4*t+i}" for i in range(4)]
            ops += [f"v_fmac_f32 v{ST_+4+i}, v{GT+4*t+i}, v{GT+4*t+i}" for i in range(4)]
        for sh in (8, 4, 2, 1):
            ops += [f"v_add_f32_dpp v{ST_+i}, v{ST_+i}, v{ST_+i} row_ror:{sh} row_mask:0xf bank_mask:0xf" for i in range(8)]
        tail = f"""s_mov_b32 exec_lo, 0x00010001
        s_mov_b32 exec_hi, 0x00010001
        global_store_dwordx4 v{v_st}, {vr(ST_,4)}, {sr(s_st,2)} offset:{32*rt} {flags}
        global_store_dwordx4 v{v_st}, {vr(ST_+4,4)}, {sr(s_st,2)} offset:{32*rt+16} {flags}
        s_mov_b64 exec, -1
        """
        if rt == 1:
            tail += '\n'.join(f"global_store_dwordx4 v{v_o}, {vr(ZP+4*t,4)}, {sr(s_o,2)} offset:{1024*t} {flags}" for t in range(4))
            tail += f"""
            s_add_u32 s{s_o}, s{s_o}, {SEG_Z*seg_step}
            s_addc_u32 s{s_o+1}, s{s_o+1}, 0
            s_add_u32 s{s_st}, s{s_st}, {SEG_ST*seg_step}
            s_addc_u32 s{s_st+1}, s{s_st+1}, 0"""
        return ops, tail
    return make_epi_list(build, 3)

def proj_once_loop(A, name, s_x, s_seg, seg_step, s_wave, v_lane, epi, swap, s_t, vt, wait_in, done_hook):
    vdma, vcur = vt, vt+1
    sdm = s_t
    A(f"""v_lshlrev_b32 v{vcur}, 4, v{v_lane}
    s_mul_i32 s{sdm}, s{s_wave}, 10240
    v_add_u32 v{vdma}, s{sdm}, v{vcur}
    s_barrier
    {name}_loop:""")
    wait_in(A)
    for i in range(10):
        if i % 4 == 0: A(f"s_add_u32 m0, s{sdm}, {(i//4)*4096}")
        A(f"global_load_lds_dwordx4 v{vdma}, {sr(s_x,2)} offset:{(i%4)*1024}")
        if i % 4 == 3: add64(A, s_x, s_x, 4096)
    add64(A, s_x, s_x, seg_step*SEG_XN - 8192)
    A("s_waitcnt vmcnt(0)\ns_barrier")
    for n in range(3):
        A(f"ds_read_b128 {vr(XR+4*n,4)}, v{vcur} offset:{n*1024}")
    for n in range(40):
        rt, ks = divmod(n, 20)
        m = n + 3
        if m < 40: A(f"ds_read_b128 {vr(XR+4*(m%4),4)}, v{vcur} offset:{m*1024}")
        A(f"s_waitcnt lgkmcnt({min(3, 39-n)})")
        for t in range(4):
            a = vr(ACC + 16*rt + 4*t, 4)
            w = ur(wreg_proj(ks*4+t), 4); x = vr(XR+4*(n%4), 4)
            o1, o2 = (x, w) if swap else (w, x)
            A(f"v_mfma_f32_16x16x32_bf16 {a}, {o1}, {o2}, {'0' if ks == 0 else a}")
            if ks >= 1 and rt == 1: epi(A, 0, (ks-1)*4 + t, guard=None)
    step = 0
    while epi(A, 1, step, guard=None): step += 1
    A("s_waitcnt vmcnt(0)\ns_barrier")
    done_hook(A)
    A(f"""s_add_u32 s{s_seg}, s{s_seg}, {seg_step}
    s_cmp_lt_u32 s{s_seg}, {NSEG}
    s_cbranch_scc1 {name}_loop""")
```

```python
from common import *
from r_u import load_w_rows
from r_ln import hexf
import math, os
TOUCH = int(os.environ.get('TOUCH', '128'))
NOU = int(os.environ.get('NOU', '0'))
NOKQ = int(os.environ.get('NOKQ', '0'))

NG, HG, NR = 4, 8, 10
GBLK = 32768
GSLOT = 32*GBLK
LBASE = WS_LRING
M_OFF = 0
P_OFF = 16384
PX_OFF = 32768
Y_OFF = 163840
NSYNC = NG*(2*HG+NR)
WS_OP = WS_YF
SEG_OP = 2*20*4*1024
TLANES = int(os.environ.get('TLANES', '64'))
TOUT = int(os.environ.get('TOUT', '0'))
KQP = int(os.environ.get('KQP', '8'))
GDROP = int(os.environ.get('GDROP', '0'))
ASLEEP = int(os.environ.get('ASLEEP', '2'))
BSLEEP = int(os.environ.get('BSLEEP', '24'))
RSLEEP = int(os.environ.get('RSLEEP', '0'))
MPIPE = int(os.environ.get('MPIPE', '0'))
YPIPE = int(os.environ.get('YPIPE', '2'))
XFLAGNOW = int(os.environ.get('XFLAGNOW', '0'))
SCRUB = int(os.environ.get('SCRUB', '1'))
XLEAD = int(os.environ.get('XLEAD', '3'))
MMASK = int(os.environ.get('MMASK', '0'))
KQEND = int(os.environ.get('KQEND', '1'))
BTOUCH = int(os.environ.get('BTOUCH', '0'))
BTEARLY = int(os.environ.get('BTEARLY', '1'))
XDEFER = int(os.environ.get('XDEFER', '0'))
RST6 = int(os.environ.get('RST6', '1'))
UPARK = int(os.environ.get('UPARK', '3'))
AB1 = int(os.environ.get('AB1', '9'))
BB1 = int(os.environ.get('BB1', '7'))
GDELAY = int(os.environ.get('GDELAY', '2'))
KQW3 = int(os.environ.get('KQW3', '0'))
POLL_LIMIT = 1 << 17

class Lg:
    def __init__(s, A): s.A = A; s.n = 0; s.done = 0; s.tag = {}
    def ds(s, text, tag=None):
        s.A(text); s.n += 1
        if tag is not None: s.tag[tag] = s.n
    def need(s, tag):
        k = s.tag[tag]
        if k > s.done:
            w = s.n - k
            if w <= 15:
                s.A(f"s_waitcnt lgkmcnt({w})"); s.done = k
            else:
                s.A("s_waitcnt lgkmcnt(15)"); s.done = s.n - 15
    def all(s):
        s.A("s_waitcnt lgkmcnt(0)"); s.done = s.n

V_LANE16, V_P1, V_P2, V_RD0, V_RD3, V_IDX, V_TW, V_TR, V_WS, V_X1, V_X2, V_X3, V_JUNK = 1, 2, 3, 4, 7, 8, 9, 10, 11, 12, 13, 14, 15
MOP, ACC, STG = 16, 56, 80
LPOS = [0, 4, 8, 12, 16, 20, 24, 28, 32, 36]
def wloc(p):
    if p in LPOS: return ('lds', LPOS.index(p))
    k = p - sum(1 for x in LPOS if x < p)
    return ('reg', 256 + 8*k if k < 32 else 112 + 8*(k-32))
def wreg(p):
    kind, x = wloc(p)
    return STG + 8*(x % 4) if kind == 'lds' else x
L_T = 0
L_MS = 8192
L_X = 18432
L_R = L_X + 49152
L_W = 81920
S_WAVE = 3
SRD = 4
S_GRP, S_HL, S_STEP, S_TO = 8, 9, 10, 11
S_T = 12
S_A, S_B = 20, 22
S_POL, S_SLOW, S_H = 24, 25, 26
S_CUR, S_TAG, S_TAGM = 27, 28, 29
S_ML, S_ML4, S_MR, S_MR4 = 30, 31, 32, 33
S_MSK = 34
S_HI = 52
S_EVEN = 54
S_C1, S_C2, S_C3, S_C4, S_C5, S_C6 = 56, 57, 58, 59, 60, 61
S_O1, S_O2, S_O3, S_O4 = 62, 63, 64, 65
S_NT, S_CT0, S_SEL0, S_SEL1, S_CSC = 66, 67, 68, 69, 70
srd = sr(SRD, 4)

def smf(A, acc, a, b):
    A(f"v_smfmac_f32_16x16x64_bf16 {vr(acc,4)}, {vr(a,4)}, {ur(b,8)}, v{V_IDX}")
def bld(n, dst, va, so, off=0, fl=''):
    nm = {1: 'dword', 2: 'dwordx2', 4: 'dwordx4'}[n]
    return f"buffer_load_{nm} {vr(dst,n)}, v{va}, {srd}, s{so} offen offset:{off} {fl}"
def bst(n, src, va, so, off=0, fl=''):
    nm = {1: 'dword', 2: 'dwordx2', 4: 'dwordx4'}[n]
    return f"buffer_store_{nm} {vr(src,n)}, v{va}, {srd}, s{so} offen offset:{off} {fl}"
def bdma(va, so, off=0):
    return f"buffer_load_dwordx4 v{va}, {srd}, s{so} offen offset:{off} lds"

def common_init(A):
    w = S_WAVE
    A(f"""v_lshlrev_b32 v{V_LANE16}, 4, v0
    s_lshl_b32 s{S_T}, s{w}, 10
    v_add_u32 v{V_P1}, s{S_T}, v{V_LANE16}
    s_and_b32 s{S_T+1}, s{S_T}, 1024
    s_add_u32 s{S_T+2}, s{S_T+1}, 8192
    v_add_u32 v{V_P2}, s{S_T+2}, v{V_LANE16}
    s_xor_b32 s{S_T+1}, s{S_T+1}, 1024
    v_add_u32 v{V_RD3}, s{S_T+1}, v{V_LANE16}""")
    for i in range(3):
        A(f"s_xor_b32 s{S_T+1}, s{S_T}, {(i+1)*1024}\nv_add_u32 v{V_RD0+i}, s{S_T+1}, v{V_LANE16}")
    A(f"""s_mov_b32 s{S_HI}, 0xff00ff00
    s_mov_b32 s{S_HI+1}, 0xff00ff00
    v_mov_b32 v{V_IDX}, 0x4444
    v_mov_b32 v{V_TW}, 0xeeee
    v_cndmask_b32 v{V_IDX}, v{V_IDX}, v{V_TW}, {sr(S_HI,2)}
    s_mul_i32 s{S_T+1}, s{w}, 20480
    s_add_u32 s{S_T+1}, s{S_T+1}, {L_W}
    v_add_u32 v{V_WS}, s{S_T+1}, v{V_LANE16}
    s_lshl_b32 s{S_H}, s{S_GRP}, 3
    s_add_u32 s{S_H}, s{S_H}, s{S_HL}
    s_mov_b32 s{S_SEL0}, 0x00003f80
    s_mov_b32 s{S_SEL1}, 0x3f800000
    s_lshl_b32 s{S_CUR}, s{S_GRP}, 18
    s_add_u32 s{S_CUR}, s{S_CUR}, {LBASE}
    s_mov_b32 s{S_TAG}, 0
    s_mov_b32 s{S_TAGM}, 0
    s_add_u32 s{S_ML}, s{S_CUR}, {M_OFF}
    s_add_u32 s{S_ML4}, s{S_ML}, 4096
    s_mov_b32 s{S_STEP}, 0""")

def kappa_sreg(A, kp, dst):
    w = S_WAVE
    if kp == 0: A(f"s_mov_b32 s{dst}, s{w}")
    elif kp == 1: A(f"s_add_u32 s{dst}, s{w}, 4")
    elif kp == 2: A(f"s_and_b32 s{dst}, s{w}, 1\ns_add_u32 s{dst}, s{dst}, 8")
    elif kp < 6: A(f"s_xor_b32 s{dst}, s{w}, {kp-2}")
    elif kp < 9: A(f"s_xor_b32 s{dst}, s{w}, {kp-5}\ns_add_u32 s{dst}, s{dst}, 4")
    else: A(f"s_and_b32 s{dst}, s{w}, 1\ns_xor_b32 s{dst}, s{dst}, 9")

def tr_addr_sparseB(A, dst, t, rowbytes, s_base):
    A(f"""v_bfe_u32 v{dst}, v0, 2, 1
    v_bfe_u32 v{t}, v0, 3, 1
    v_lshl_add_u32 v{dst}, v{t}, 3, v{dst}
    v_bfe_u32 v{t}, v0, 4, 1
    v_lshl_add_u32 v{dst}, v{t}, 2, v{dst}
    v_bfe_u32 v{t}, v0, 5, 1
    v_lshl_add_u32 v{dst}, v{t}, 4, v{dst}
    v_mul_u32_u24 v{dst}, {rowbytes}, v{dst}
    v_and_b32 v{t}, 3, v0
    v_lshl_add_u32 v{dst}, v{t}, 3, v{dst}
    v_add_u32 v{dst}, s{s_base}, v{dst}""")

def read_operand(A, p, vtr, off, rowbytes, halves=(0,1), hrows=32):
    kind, x = wloc(p)
    r = STG if kind == 'lds' else x
    for half in halves:
        for q in range(2):
            A(f"ds_read_b64_tr_b16 {ur(r+4*half+2*q,2)}, v{vtr} offset:{off + (hrows*(half-halves[0]) + 2*q)*rowbytes}")
    if kind == 'lds':
        A("s_waitcnt lgkmcnt(0)")
        for half in halves:
            A(f"ds_write_b128 v{V_WS}, {vr(STG+4*half,4)} offset:{x*2048+1024*half}")
        A("s_waitcnt lgkmcnt(0)")

def kp_of(kappa, w):
    if kappa < 4: d = kappa ^ w; return 0 if d == 0 else d + 2
    if kappa < 8: d = (kappa-4) ^ w; return 1 if d == 0 else d + 5
    return 2 if kappa - 8 == (w & 1) else 9

def load_heads(A, mats):
    VA_, VT_, t, u = MOP, MOP+6, MOP+10, MOP+11
    sb = S_T + 4
    w = S_WAVE
    for i in range(6):
        A(f"""v_add_u32 v{t}, {64*i}, v0
        v_mul_u32_u24 v{u}, {(65536+23)//24}, v{t}
        v_lshrrev_b32 v{u}, 16, v{u}
        v_mul_u32_u24 v{VA_+i}, 24, v{u}
        v_sub_u32 v{t}, v{t}, v{VA_+i}
        v_lshrrev_b32 v{VA_+i}, 1, v{u}
        v_and_b32 v{VA_+i}, 6, v{VA_+i}
        v_xor_b32 v{t}, v{t}, v{VA_+i}
        v_mul_u32_u24 v{VA_+i}, 12288, v{u}
        v_lshl_add_u32 v{VA_+i}, v{t}, 4, v{VA_+i}""")
    for tt in range(3):
        A(f"""v_bfe_u32 v{u}, v0, 4, 1
        v_bfe_u32 v{t}, v0, 3, 1
        v_lshl_add_u32 v{u}, v{t}, 1, v{u}
        v_lshlrev_b32 v{VT_+tt}, 1, v{u}
        s_mul_i32 s{S_T}, s{w}, 6
        s_add_u32 s{S_T}, s{S_T}, {2*tt}
        v_bfe_u32 v{t}, v0, 1, 1
        v_add_u32 v{t}, s{S_T}, v{t}
        v_xor_b32 v{VT_+tt}, v{VT_+tt}, v{t}
        v_lshlrev_b32 v{VT_+tt}, 4, v{VT_+tt}
        v_and_b32 v{t}, 1, v0
        v_lshl_add_u32 v{VT_+tt}, v{t}, 3, v{VT_+tt}
        v_lshlrev_b32 v{u}, 2, v{u}
        v_bfe_u32 v{t}, v0, 2, 1
        v_add_u32 v{u}, v{u}, v{t}
        v_bfe_u32 v{t}, v0, 5, 1
        v_lshl_add_u32 v{u}, v{t}, 4, v{u}
        v_mul_u32_u24 v{u}, 384, v{u}
        v_add_u32 v{VT_+tt}, v{VT_+tt}, v{u}""")
    A(f"s_mul_i32 s{sb}, s{w}, 6144\ns_mul_i32 s{S_T}, s{w}, {16*12288}")
    for sp, _ in mats: add64(A, sp, sp, f"s{S_T}")
    rounds = [(m, k) for m in range(len(mats)) for k in range(10)]
    depth, slot = 3, 24576
    def issue(r):
        sp = mats[rounds[r][0]][0]
        for i in range(6):
            A(f"s_add_u32 m0, s{sb}, {(r % depth)*slot + i*1024}")
            A(f"global_load_lds_dwordx4 v{VA_+i}, {sr(sp,2)}")
        add64(A, sp, sp, 64*12288)
    for r in range(depth): issue(r)
    labs = [A.newlabel('lw') for _ in range(4)]; lend = A.newlabel('lw')
    for ww in range(1, 4): A(f"s_cmp_eq_u32 s{w}, {ww}\ns_cbranch_scc1 {labs[ww]}")
    n = len(rounds)
    for ww in range(4):
        A(f"{labs[ww]}:")
        for r, (m, k) in enumerate(rounds):
            A(f"s_waitcnt vmcnt({6*min(depth-1, n-1-r)})\ns_barrier")
            hi = (r % depth) == 2
            if hi:
                for tt in range(3): A(f"v_add_u32 v{VT_+tt}, {2*slot}, v{VT_+tt}")
            for tt in range(3):
                read_operand(A, mats[m][1](kp_of(k, ww), tt), VT_+tt, 0 if hi else (r % depth)*slot, 384)
            if hi:
                for tt in range(3): A(f"v_subrev_u32 v{VT_+tt}, {2*slot}, v{VT_+tt}")
            A("s_waitcnt lgkmcnt(0)\ns_barrier")
            if r + depth < n: issue(r+depth)
        if ww < 3: A(f"s_branch {lend}")
    A(f"{lend}:")

def tick(A, exitlab):
    A(f"""s_add_u32 s{S_TO}, s{S_TO}, 1
    s_cmp_gt_u32 s{S_TO}, {POLL_LIMIT}
    s_cbranch_scc1 {exitlab}""")

def check(A, regs, stag, target):
    t = V_X3
    c = list(regs)
    if len(c) == 1:
        A(f"v_bitop3_b32 v{t}, v{c[0]}, 1, s{stag} bitop3:0x48")
    else:
        A(f"v_bitop3_b32 v{t}, v{c[0]}, v{c[1]}, s{stag} bitop3:0x7e")
        for x in c[2:]:
            A(f"v_bitop3_b32 v{t}, v{x}, v{t}, s{stag} bitop3:0xde")
        A(f"v_and_b32 v{t}, 1, v{t}")
    A(f"v_cmp_ne_u32 vcc, 0, v{t}\ns_cbranch_vccnz {target}")

def poll(A, name, loads, checks, stag, exitlab, shadow=None):
    l = A.newlabel(name)
    if shadow is not None:
        l2 = A.newlabel(name)
        for x in loads: A(x)
        shadow()
        A(f"s_branch {l2}")
    A(f"{l}:")
    for x in loads: A(x)
    tick(A, exitlab)
    if shadow is not None: A(f"{l2}:")
    A("s_waitcnt vmcnt(0)")
    check(A, checks, stag, l)

def ingest_mem(A, lg, exitlab, shadow=None):
    def L(b): return [bld(4, b, V_P1, S_ML, 0, 'sc1'), bld(4, b+4, V_P1, S_ML4, 0, 'sc1'), bld(4, b+8, V_P2, S_ML, 0, 'sc1')]
    W = [(V_P1, L_MS), (V_P1, L_MS+4096), (V_P2, L_MS)]
    if MMASK:
        M = [S_T, S_T+2, S_T+4]
        lp = A.newlabel('pm')
        for m in M: A(f"s_mov_b64 {sr(m,2)}, -1")
        A(f"{lp}:")
        for m, x in zip(M, L(MOP)): A(f"s_mov_b64 exec, {sr(m,2)}\n{x}")
        A("s_mov_b64 exec, -1")
        tick(A, exitlab)
        A("s_waitcnt vmcnt(0)")
        for f in range(3): A(f"v_bitop3_b32 v{MOP+12+f}, v{MOP+4*f}, 1, s{S_TAG} bitop3:0x48")
        for f in range(3): A(f"v_cmp_ne_u32 {sr(M[f],2)}, 0, v{MOP+12+f}")
        A(f"s_or_b64 vcc, {sr(M[0],2)}, {sr(M[1],2)}\ns_or_b64 vcc, vcc, {sr(M[2],2)}\ns_cbranch_scc1 {lp}")
        for f, (v, off) in enumerate(W):
            lg.ds(f"ds_write_b128 v{v}, {vr(MOP+4*f,4)} offset:{off}", ('mw', f))
        return
    if not MPIPE:
        poll(A, 'pm', L(MOP), [MOP, MOP+4, MOP+8], S_TAG, exitlab, shadow)
        for f, (v, off) in enumerate(W):
            lg.ds(f"ds_write_b128 v{v}, {vr(MOP+4*f,4)} offset:{off}", ('mw', f))
        return
    S = [MOP+12, MOP+24]
    lp, n0, j = A.newlabel('pm'), A.newlabel('pm'), A.newlabel('pm')
    for x in L(S[0]): A(x)
    A(f"s_sleep {MPIPE}\n{lp}:")
    def fin(b):
        for f, (v, off) in enumerate(W):
            A(f"ds_write_b128 v{v}, {vr(b+4*f,4)} offset:{off}")
            A(f"v_pk_mov_b32 {vr(MOP+4*f,2)}, {vr(b+4*f,2)}, {vr(b+4*f,2)} op_sel:[0,1]\nv_pk_mov_b32 {vr(MOP+4*f+2,2)}, {vr(b+4*f+2,2)}, {vr(b+4*f+2,2)} op_sel:[0,1]")
    for x in L(S[1]): A(x)
    tick(A, exitlab)
    A("s_waitcnt vmcnt(3)")
    check(A, [S[0], S[0]+4, S[0]+8], S_TAG, n0)
    fin(S[0])
    A(f"s_branch {j}\n{n0}:")
    for x in L(S[0]): A(x)
    A("s_waitcnt vmcnt(3)")
    check(A, [S[1], S[1]+4, S[1]+8], S_TAG, lp)
    fin(S[1])
    A(f"{j}:")
    lg.n += 3; lg.tag[('mw', 2)] = lg.n

def read_mem_frags(A, lg):
    if MPIPE: A('s_waitcnt vmcnt(0)')
    for kp in range(3, 10):
        if kp < 6: v, off = V_RD0 + kp - 3, L_MS
        elif kp < 9: v, off = V_RD0 + kp - 6, L_MS + 4096
        else: v, off = V_RD3, L_MS + 8192
        lg.ds(f"ds_read_b128 {vr(MOP+4*kp,4)}, v{v} offset:{off}", ('m', kp))

def stg_load(lg, i):
    r = STG + 8*(i % 4)
    lg.ds(f"ds_read_b128 {vr(r,4)}, v{V_WS} offset:{i*2048}")
    lg.ds(f"ds_read_b128 {vr(r+4,4)}, v{V_WS} offset:{i*2048+1024}", ('w', i))

def next_step(A):
    A(f"""s_add_u32 s{S_STEP}, s{S_STEP}, 1
    s_xor_b32 s{S_TAG}, s{S_TAG}, 1""")

def t_plane_base(A, dst, c, t, plane):
    A(f"""v_mul_u32_u24 v{dst}, {plane}, v{c}
    v_and_b32 v{t}, 1, v{c}
    v_lshl_add_u32 v{dst}, v{t}, 5, v{dst}
    v_lshrrev_b32 v{t}, 1, v{c}
    v_lshl_add_u32 v{dst}, v{t}, 7, v{dst}""")

D_CNT, D_SLOW, D_POL = 2, 18, 34
D_LN = 4
NINIT = 16 + NG*NR
def checkin(A, s_dbg, vt=None):
    vt = MOP if vt is None else vt
    l2 = A.newlabel('isk')
    A(f"""s_waitcnt vmcnt(0)
    s_barrier
    s_cmp_lg_u32 s{S_WAVE}, 0
    s_cbranch_scc1 {l2}
    v_mov_b32 v{vt}, {4*D_CNT}
    v_mov_b32 v{vt+1}, 1
    s_mov_b64 exec, 1
    global_atomic_add v{vt}, v{vt+1}, {sr(s_dbg,2)}
    s_mov_b64 exec, -1
    {l2}:""")

def waitall(A, s_dbg, exitlab, vl4, vt=None, s_slow=None, s_pol=None, setup_only=False):
    vt = MOP if vt is None else vt
    l, l2 = A.newlabel('isync'), A.newlabel('isync')
    A(f"""v_lshrrev_b32 v{vt}, 2, v{vl4}
    v_mov_b32 v{vt+1}, 0
    s_mov_b32 exec_lo, 0x00030003
    s_mov_b32 exec_hi, 0x00030003
    v_mov_b32 v{vt+1}, 32
    s_mov_b32 exec_lo, 0x00100010
    s_mov_b32 exec_hi, 0x00100010
    v_mov_b32 v{vt+1}, 64
    s_mov_b64 exec, {1 << D_CNT}
    v_mov_b32 v{vt+1}, {NINIT}""")
    if s_pol is not None: A(f"s_mov_b32 exec_lo, 0\ns_mov_b32 exec_hi, {1 << (D_POL-32)}\nv_mov_b32 v{vt+1}, 1")
    A("s_mov_b64 exec, -1")
    if setup_only: return
    A(f"""s_branch {l2}
    {l}:
    s_sleep 4""")
    tick(A, exitlab)
    A(f"""{l2}:
    global_load_dword v{vt+2}, v{vt}, {sr(s_dbg,2)} sc1
    s_waitcnt vmcnt(0)
    v_cmp_gt_u32 vcc, v{vt+1}, v{vt+2}
    s_cbranch_vccnz {l}""")
    if s_slow is not None or s_pol is not None:
        A(f"global_load_dword v{vt+2}, v{vt}, {sr(s_dbg,2)} sc1\ns_waitcnt vmcnt(0)")
    if s_slow is not None: A(f"v_readlane_b32 s{s_slow}, v{vt+2}, {D_SLOW}")
    if s_pol is not None: A(f"v_readlane_b32 s{s_pol}, v{vt+2}, {D_POL}\ns_and_b32 s{s_pol}, s{s_pol}, 8192")

FSLEEP = int(os.environ.get('FSLEEP', '0'))
def wait_flags(A, v_addr, v_tmp, s_need, exitlab, sleep=2):
    l, l2 = A.newlabel('wf'), A.newlabel('wf')
    A(f"""s_branch {l2}
    {l}:
    s_sleep {FSLEEP or sleep}""")
    tick(A, exitlab)
    A(f"""{l2}:
    buffer_load_dword v{v_tmp}, v{v_addr}, {srd}, 0 offen sc1
    s_waitcnt vmcnt(0)
    v_cmp_gt_u32 vcc, s{s_need}, v{v_tmp}
    s_cbranch_vccnz {l}""")

def wait_flags_wg(A, v_addr, v_tmp, s_need, exitlab, sleep=6):
    l = A.newlabel('wg')
    A(f"s_cmp_lg_u32 s{S_WAVE}, 0\ns_cbranch_scc1 {l}")
    wait_flags(A, v_addr, v_tmp, s_need, exitlab, sleep)
    A(f"{l}:\ns_barrier")

def put_flag(A, s_off, s_val, vt):
    A(f"""v_mov_b32 v{vt}, s{s_val}
    s_mov_b64 exec, 1
    buffer_store_dword v{vt}, off, {srd}, s{s_off} sc1
    s_mov_b64 exec, -1""")

CSC = (192 ** -0.5) * math.log2(math.e)
NEG = 0xf149f2ca

def posA(kp, t):
    return kp*6 + t if kp < 3 else 18 + (t//2)*14 + (kp-3)*2 + (t % 2)

def H(hooks, name, *a):
    if name in hooks: hooks[name](*a)

def role_A(A, exitlab, s_dbg, hooks, slow_too=True):
    w = S_WAVE
    common_init(A)
    t0, t1, t2 = MOP, MOP+1, MOP+2
    A(f"v_lshrrev_b32 v{t0}, 4, v0")
    t_plane_base(A, V_TW, t0, t1, 1536)
    A(f"""v_and_b32 v{t1}, 15, v0
    s_mul_i32 s{S_T}, s{w}, 48
    v_add_u32 v{t1}, s{S_T}, v{t1}
    v_lshl_add_u32 v{V_TW}, v{t1}, 3, v{V_TW}
    v_and_b32 v{t2}, 3, v0""")
    t_plane_base(A, V_TR, t2, t1, 1536)
    A(f"""v_bfe_u32 v{t1}, v0, 2, 2
    v_lshl_add_u32 v{t1}, v{t0}, 3, v{t1}
    v_lshl_add_u32 v{V_TR}, v{t1}, 3, v{V_TR}
    v_add_u32 v{V_X1}, {L_X}, v{V_LANE16}
    v_and_b32 v{t2}, 1, v0""")
    t_plane_base(A, V_JUNK, t2, t1, 1536)
    A(f"""v_bfe_u32 v{t1}, v0, 2, 2
    v_lshl_add_u32 v{t1}, v{t0}, 3, v{t1}
    v_lshl_add_u32 v{V_JUNK}, v{t1}, 3, v{V_JUNK}
    v_and_b32 v{t1}, 15, v0
    v_lshlrev_b32 v{V_X2}, 4, v{t1}
    v_and_b32 v{t1}, 1, v{t0}
    v_lshl_add_u32 v{V_X2}, v{t1}, 3, v{V_X2}""")
    A(f"v_and_b32 v{t1}, 15, v0\ns_sub_u32 s{S_T}, s{w}, 1\ns_lshl_b32 s{S_T}, s{S_T}, 4\nv_add_u32 v{t1}, s{S_T}, v{t1}")
    for kt in range(2):
        for i in range(4):
            A(f"""v_lshlrev_b32 v{t2}, 2, v{t0}
            v_add_u32 v{t2}, {16*kt+i}, v{t2}
            v_cmp_le_i32 {sr(S_MSK+8*kt+2*i,2)}, v{t2}, v{t1}""")
    A(f"s_mov_b32 s{S_MSK+16}, 0\ns_mov_b32 s{S_MSK+17}, -1\ns_mov_b32 s{S_CSC}, {hexf(CSC)}")
    l = A.newlabel('a_i')
    A(f"""v_bfe_u32 v{t1}, v0, 4, 1
    v_lshlrev_b32 v{t1}, 2, v{t1}
    v_sub_u32 v{V_X3}, v{V_X2}, v{t1}
    s_cmp_lg_u32 s{w}, 0
    s_cbranch_scc1 {l}
    v_lshrrev_b32 v{t2}, 5, v0
    v_lshl_add_u32 v{V_X2}, v{t2}, 8, v{V_X2}
    {l}:""")
    A(f"""s_mul_i32 s{S_T}, s{S_H}, 12288
    s_add_u32 s{S_C1}, s{S_T}, {WS_KF}
    s_add_u32 s{S_C2}, s{S_T}, {WS_QF}
    s_lshl_b32 s{S_C3}, s{S_HL}, 9
    s_add_u32 s{S_C3}, s{S_C3}, {P_OFF}
    s_lshr_b32 s{S_T+1}, s{S_HL}, 1
    s_lshl_b32 s{S_T+1}, s{S_T+1}, 8
    s_and_b32 s{S_T+2}, s{S_HL}, 1
    s_lshl_b32 s{S_T+2}, s{S_T+2}, 3
    s_add_u32 s{S_C4}, s{S_T+1}, s{S_T+2}
    s_add_u32 s{S_C4}, s{S_C4}, {P_OFF+4096}
    s_sub_u32 s{S_T}, s{w}, 1
    s_and_b32 s{S_T}, s{S_T}, 1
    s_mul_i32 s{S_T}, s{S_T}, 10240
    s_add_u32 s{S_T}, s{S_T}, {PX_OFF}
    s_add_u32 s{S_T}, s{S_T}, s{S_CUR}
    s_lshl_b32 s{S_C5}, s{S_HL}, 10
    s_add_u32 s{S_C5}, s{S_C5}, s{S_T}
    s_lshl_b32 s{S_C6}, s{S_HL}, 8
    s_add_u32 s{S_C6}, s{S_C6}, s{S_T}
    s_add_u32 s{S_C6}, s{S_C6}, 8192
    s_add_u32 s{S_C3}, s{S_C3}, s{S_CUR}
    s_add_u32 s{S_C4}, s{S_C4}, s{S_CUR}
    s_mul_i32 s{S_T}, s{w}, 3072
    s_add_u32 s{S_C1}, s{S_C1}, s{S_T}
    s_add_u32 s{S_C2}, s{S_C2}, s{S_T}
    s_add_u32 s{S_O1}, s{S_T}, {L_X}""")
    def bulk_pieces():
        P = []
        for m, sp in enumerate((S_C1, S_C2)):
            for i in range(3):
                x = f"s_add_u32 m0, s{S_O1}, {m*12288}\n" if i == 0 else ''
                if not NOKQ: x += bdma(V_LANE16, sp, i*1024)
                if i == 2: x += f"\ns_add_u32 s{sp}, s{sp}, {SEG_QKV}"
                P.append(x)
        return P
    A(f"""s_load_dwordx4 s[{S_A}:{S_A+3}], s[0:1], {KA_WQ}
    s_mul_i32 s{S_T}, s{S_H}, 384
    s_waitcnt lgkmcnt(0)""")
    add64(A, S_A, S_A, f"s{S_T}"); add64(A, S_B, S_B, f"s{S_T}")
    load_heads(A, [(S_A, lambda kp, t: posA(kp, 2*t)), (S_B, lambda kp, t: posA(kp, 2*t+1))])
    H(hooks, 'rts', A, 2)
    l = A.newlabel('a_i')
    A(f"s_cmp_lg_u32 s{w}, 0\ns_cbranch_scc1 {l}\nv_mov_b32 v0, v{V_X3}\n{l}:")
    waitall(A, s_dbg, exitlab, V_LANE16, s_slow=S_SLOW)
    H(hooks, 'wait_in', A, 'first')
    for x in bulk_pieces(): A(x)
    A(f"s_add_u32 s{S_O1}, s{S_O1}, 24576\ns_mov_b32 s{S_O3}, -24576")
    if slow_too: A(f"s_cmp_lg_u32 s{S_SLOW}, 0\ns_cbranch_scc1 a_loop_slow")
    for ver in (['', '_slow'] if slow_too else ['']):
        LF = 'sc1' if ver else ''
        A(f"a_loop{ver}:")
        lg = Lg(A)
        for i in range(4): stg_load(lg, i)
        for i in range(24): A(f"v_mov_b32 v{ACC+i}, 0")
        H(hooks, 'wait_in', A, 'peek')
        H(hooks, 'stamp', A, 0)
        if ASLEEP: A(f"s_sleep {ASLEEP}")
        ingest_mem(A, lg, exitlab)
        H(hooks, 'stamp', A, 1)
        bulk = bulk_pieces() if not (KQW3 or KQEND) else []
        seq = [(kp, t) for kp in range(3) for t in range(6)] + [(kp, 2*tp+x) for tp in range(3) for kp in range(3, 10) for x in range(2)]
        KX = [MOP, MOP+4, MOP+8, STG+16, STG+20, STG+24, STG+28, STG, STG+4, STG+8, STG+12, ACC+4]
        kx_at = {20: [0], 22: [1], 24: [2], 27: [3], 29: [4], 31: [5], 33: [6], 35: [7], 37: [8], 39: [9], 41: [10], 46: [11]}
        S0, S1, SM = ACC+8, ACC+12, ACC
        def epi_ops(tp):
            Q, K = ACC + 8*tp, ACC + 8*tp + 4
            ops = [f"v_permlane32_swap_b32 v{Q+r}, v{K+r}" for r in range(4)]
            if tp < 2: ops += [f"v_add_f32 v{Q+r}, v{Q+r}, v{K+r}" for r in range(4)]
            else: ops += [f"v_pk_add_f32 {vr(Q+r,2)}, {vr(Q+r,2)}, {vr(K+r,2)}" for r in (0, 2)]
            ops += [f"v_cvt_pk_bf16_f32 v{K}, v{Q}, v{Q+1}", f"v_cvt_pk_bf16_f32 v{K+1}, v{Q+2}, v{Q+3}"]
            ops += [('ds', f"ds_write_b64 v{V_TW}, {vr(K,2)} offset:{L_T + tp*128}")]
            return ops
        pend = []
        for p, (kp, t) in enumerate(seq):
            if p == AB1:
                lg.need(('mw', 2)); A("s_barrier"); H(hooks, 'stamp', A, 5); read_mem_frags(A, lg)
                H(hooks, 'after_b1', A)
            kind, x = wloc(p)
            if kind == 'lds': lg.need(('w', x))
            if kp >= 3: lg.need(('m', kp))
            smf(A, ACC+4*t, MOP+4*kp, wreg(p))
            if kind == 'lds' and x + 4 < 10: stg_load(lg, x+4)
            for f in kx_at.get(p, []):
                lg.ds(f"ds_read_b128 {vr(KX[f],4)}, v{V_X1} offset:{f*1024}", ('kx', f))
            if p == 30: pend += [f"v_mov_b32 v{V_X3}, 0x{NEG:x}"]
            if p == AB1: A(f"s_mov_b64 vcc, {sr(S_EVEN,2)}")
            if p > AB1 and (p - AB1) % KQP == 1 and bulk:
                lb = A.newlabel('kq'); A(f"s_cbranch_vccnz {lb}"); A(bulk.pop(0)); A(f"{lb}:")
            if p == 34: pend += epi_ops(0) + [f"v_cndmask_b32 v{SM+r}, v{V_X3}, 0, {sr(S_MSK+16,2)}" for r in range(3)]
            if p == 48: pend += epi_ops(1) + [f"v_cndmask_b32 v{SM+3}, v{V_X3}, 0, {sr(S_MSK+16,2)}"]
            if pend:
                o = pend.pop(0)
                if isinstance(o, tuple): lg.ds(o[1])
                else: A(o)
        assert not pend and not bulk
        lx, l3, lend = f'a_xrows{ver}', f'a_w3{ver}', f'a_end{ver}'
        A(f"s_cmp_lg_u32 s{w}, 0")
        for o in epi_ops(2):
            if isinstance(o, tuple): lg.ds(o[1])
            else: A(o)
        lg.all(); A("s_barrier")
        H(hooks, 'stamp', A, 2)
        A(f"s_cbranch_scc1 {lx}")
        QK = MOP + 12
        QQ = [MOP+36, ACC+16, ACC+20]
        lg = Lg(A)
        def rd_qq(kk):
            for q in range(2): lg.ds(f"ds_read_b64_tr_b16 {vr(QQ[kk%3]+2*q,2)}, v{V_JUNK} offset:{L_T + kk*256 + q*32}", ('qq', kk))
        def rd_qk(kk):
            for q in range(2): lg.ds(f"ds_read_b64_tr_b16 {vr(QK+4*kk+2*q,2)}, v{V_TR} offset:{L_T + kk*256 + q*32}", ('qk', kk))
        for kk in range(3): rd_qq(kk); rd_qk(kk)
        for kk in range(6):
            lg.need(('qq', kk))
            b = vr(QQ[kk%3], 4)
            A(f"v_mfma_f32_16x16x32_bf16 {vr(S0,4)}, {vr(KX[kk],4)}, {b}, {'0' if kk == 0 else vr(S0,4)}")
            A(f"v_mfma_f32_16x16x32_bf16 {vr(S1,4)}, {vr(KX[6+kk],4)}, {b}, {'0' if kk == 0 else vr(S1,4)}")
            lg.need(('qk', kk))
            A(f"v_mfma_f32_16x16x32_bf16 {vr(SM,4)}, {vr(QK+4*kk,4)}, {b}, {vr(SM,4)}")
            if kk + 3 < 6: rd_qq(kk+3); rd_qk(kk+3)
        H(hooks, 'stamp', A, 4)
        E = MOP; M_, T_, L_, G_ = MOP+8, MOP+9, MOP+10, MOP+11
        for n, s_ in enumerate((S0, S1, SM)):
            for j in range(2):
                A(f"v_cndmask_b32 v{E+2*n+j}, v{s_+j}, v{s_+2+j}, {sr(S_HI,2)}")
        A(f"""v_max3_f32 v{M_}, v{E}, v{E+1}, v{E+2}
        v_max3_f32 v{M_}, v{M_}, v{E+3}, v{E+4}
        v_max_f32 v{M_}, v{M_}, v{E+5}
        v_mul_f32 v{M_}, s{S_CSC}, v{M_}
        v_fma_f32 v{E}, v{E}, s{S_CSC}, -v{M_}
        v_fma_f32 v{E+1}, v{E+1}, s{S_CSC}, -v{M_}
        v_max_f32_dpp v{G_}, v{M_}, v{M_} row_ror:8 row_mask:0xf bank_mask:0xf
        v_mov_b32 v{T_}, v{G_}
        v_fma_f32 v{E+2}, v{E+2}, s{S_CSC}, -v{M_}
        v_fma_f32 v{E+3}, v{E+3}, s{S_CSC}, -v{M_}
        v_permlane16_swap_b32 v{G_}, v{T_}
        v_max_f32 v{G_}, v{G_}, v{T_}
        v_mov_b32 v{T_}, v{G_}
        v_fma_f32 v{E+4}, v{E+4}, s{S_CSC}, -v{M_}
        v_fma_f32 v{E+5}, v{E+5}, s{S_CSC}, -v{M_}
        v_permlane32_swap_b32 v{G_}, v{T_}
        v_max_f32 v{G_}, v{G_}, v{T_}
        v_sub_f32 v{G_}, v{M_}, v{G_}""")
        for j in range(6): A(f"v_exp_f32 v{E+j}, v{E+j}")
        A(f"""v_exp_f32 v{G_}, v{G_}
        v_pk_add_f32 {vr(M_,2)}, {vr(E,2)}, {vr(E+2,2)}
        v_pk_add_f32 {vr(M_,2)}, {vr(M_,2)}, {vr(E+4,2)}
        v_add_f32 v{L_}, v{M_}, v{T_}
        v_mul_f32 v{L_}, v{L_}, v{G_}
        v_add_f32_dpp v{L_}, v{L_}, v{L_} row_ror:8 row_mask:0xf bank_mask:0xf""")
        xlane_sum_g(A, L_, T_)
        A(f"""v_rcp_f32 v{L_}, v{L_}
        v_mul_f32 v{L_}, v{L_}, v{G_}""")
        for j in range(3): A(f"v_pk_mul_f32 {vr(E+2*j,2)}, {vr(E+2*j,2)}, {vr(L_,2)} op_sel_hi:[1,0]")
        for n in range(3): A(f"v_cvt_pk_bf16_f32 v{E+16+n}, v{E+2*n}, v{E+2*n+1}")
        A(f"v_and_or_b32 v{E+16}, v{E+16}, -2, s{S_TAG}\nv_and_or_b32 v{E+18}, v{E+18}, -2, s{S_TAG}")
        A(bst(2, E+16, V_X2, S_C3, 0, LF))
        A(f"s_mov_b32 exec_lo, 0")
        A(bst(1, E+18, 0, S_C4, 0, LF))
        A("s_mov_b32 exec_lo, -1")
        H(hooks, 'stamp', A, 3)
        A(f"s_branch {lend}")
        A(f"{l3}:")
        H(hooks, 'steplog', A)
        if KQW3:
            for m, sp in enumerate((S_C1, S_C2)):
                for i in range(12):
                    if i % 3 == 0: A(f"s_add_u32 m0, s{S_O1}, {m*12288 + i*1024 - 9216}\ns_add_u32 s{S_T}, s{sp}, {i*1024 - 9216}")
                    if not NOKQ: A(bdma(V_LANE16, S_T, (i % 3)*1024))
                A(f"s_add_u32 s{sp}, s{sp}, {SEG_QKV}")
        A(f"s_sleep {(7 if KQW3 else 12) if ASLEEP else 0}\ns_branch {lend}")
        A(f"{lx}:\ns_cmp_eq_u32 s{w}, 3\ns_cbranch_scc1 {l3}")
        lg = Lg(A)
        A(f"s_mul_i32 s{S_T}, s{w}, 6144\nv_add_u32 v{V_JUNK}, s{S_T}, v{V_X1}")
        def rd_qx(kk): lg.ds(f"ds_read_b128 {vr(QQ[kk%3],4)}, v{V_JUNK} offset:{6144 + kk*1024}", ('qq', kk))
        for kt, s_ in enumerate((S0, S1)):
            for r in range(4): A(f"v_cndmask_b32 v{s_+r}, v{V_X3}, 0, {sr(S_MSK+8*kt+2*r,2)}")
        for kk in range(3): rd_qx(kk); rd_qk(kk)
        for kk in range(6):
            lg.need(('qq', kk))
            b = vr(QQ[kk%3], 4)
            A(f"v_mfma_f32_16x16x32_bf16 {vr(S0,4)}, {vr(KX[kk],4)}, {b}, {vr(S0,4)}")
            A(f"v_mfma_f32_16x16x32_bf16 {vr(S1,4)}, {vr(KX[6+kk],4)}, {b}, {vr(S1,4)}")
            lg.need(('qk', kk))
            A(f"v_mfma_f32_16x16x32_bf16 {vr(SM,4)}, {vr(QK+4*kk,4)}, {b}, {vr(SM,4)}")
            if kk + 3 < 6: rd_qx(kk+3); rd_qk(kk+3)
        vals = [S0+i for i in range(4)] + [S1+i for i in range(4)] + [SM+i for i in range(4)]
        A(f"v_max3_f32 v{M_}, v{vals[0]}, v{vals[1]}, v{vals[2]}")
        for j in range(3, 11, 2): A(f"v_max3_f32 v{M_}, v{M_}, v{vals[j]}, v{vals[j+1]}")
        A(f"v_max_f32 v{M_}, v{M_}, v{vals[11]}")
        xlane_max_g(A, M_, T_)
        A(f"v_mul_f32 v{M_}, s{S_CSC}, v{M_}")
        for v in vals: A(f"v_fma_f32 v{v}, v{v}, s{S_CSC}, -v{M_}")
        for v in vals: A(f"v_exp_f32 v{v}, v{v}")
        A(f"v_add_f32 v{L_}, v{vals[0]}, v{vals[1]}")
        for v in vals[2:]: A(f"v_add_f32 v{L_}, v{L_}, v{v}")
        xlane_sum_g(A, L_, T_)
        A(f"v_rcp_f32 v{L_}, v{L_}")
        for v in vals: A(f"v_mul_f32 v{v}, v{v}, v{L_}")
        for n in range(6): A(f"v_cvt_pk_bf16_f32 v{E+n}, v{vals[2*n]}, v{vals[2*n+1]}")
        A(f"""s_bfe_u32 s{S_T}, s{S_STEP}, 0x10002
        s_and_b32 s{S_T+1}, s{S_STEP}, 3
        s_lshl_b32 s{S_T+1}, s{S_T+1}, 15
        s_add_u32 s{S_T+2}, s{S_T+1}, s{S_C6}
        s_add_u32 s{S_T+1}, s{S_T+1}, s{S_C5}
        v_and_or_b32 v{E}, v{E}, -2, s{S_T}
        v_and_or_b32 v{E+4}, v{E+4}, -2, s{S_T}""")
        A(bst(4, E, V_LANE16, S_T+1, 0, LF))
        A("s_mov_b32 exec_lo, 0")
        A(bst(2, E+4, V_X2, S_T+2, 0, LF))
        A("s_mov_b32 exec_lo, -1")
        A(f"{lend}:")
        H(hooks, 'stamp', A, 6)
        if 'wait_in' in hooks:
            lb = A.newlabel('kq')
            A(f"s_cmp_eq_u64 {sr(S_EVEN,2)}, 0\ns_cbranch_scc1 {lb}")
            H(hooks, 'wait_in', A, 'block')
            if KQEND: A(f"{lb}:")
            for x in bulk_pieces(): A(x)
            if not KQEND: A(f"{lb}:")
        next_step(A)
        A(f"""s_add_u32 s{S_O1}, s{S_O1}, s{S_O3}
        s_sub_u32 s{S_O3}, 0, s{S_O3}
        v_add_u32 v{V_X1}, s{S_O3}, v{V_X1}
        s_cmp_lt_u32 s{S_STEP}, {NSEG}
        s_cbranch_scc1 a_loop{ver}
        s_branch a_fin""")
    A("a_fin:")
    H(hooks, 'final', A)
    A(f"v_lshrrev_b32 v0, 4, v{V_LANE16}\ns_branch {hooks['next_ab']}")

def posB_v(kp, t): return kp*3 + t if kp < 3 else 9 + t*7 + (kp-3)
def posB_o(pr, kk): return 30 + (kk*2 + pr if pr < 2 else pr*6 + kk)

def role_B(A, exitlab, s_dbg, hooks, slow_too=True):
    w = S_WAVE
    common_init(A)
    t0, t1, t2 = MOP, MOP+1, MOP+2
    A(f"""v_lshrrev_b32 v{t0}, 4, v0
    v_and_b32 v{t1}, 1, v{t0}
    v_mul_u32_u24 v{V_TW}, 1568, v{t1}
    v_and_b32 v{t1}, 15, v0
    s_mul_i32 s{S_T}, s{w}, 48
    v_add_u32 v{t1}, s{S_T}, v{t1}
    v_lshl_add_u32 v{V_TW}, v{t1}, 3, v{V_TW}
    v_lshrrev_b32 v{t1}, 5, v0
    v_lshl_add_u32 v{V_X1}, v{t1}, 2, v{V_TW}
    v_lshl_add_u32 v{V_TW}, v{t1}, 7, v{V_TW}
    v_and_b32 v{t1}, 1, v0
    v_mul_u32_u24 v{V_TR}, 1568, v{t1}
    v_bfe_u32 v{t1}, v0, 2, 2
    v_lshl_add_u32 v{V_TR}, v{t1}, 3, v{V_TR}
    v_lshl_add_u32 v{V_TR}, v{t0}, 6, v{V_TR}
    v_and_b32 v{t1}, 15, v0
    v_lshlrev_b32 v{V_X2}, 4, v{t1}
    v_and_b32 v{t1}, 1, v{t0}
    v_lshl_add_u32 v{V_X2}, v{t1}, 3, v{V_X2}
    v_lshrrev_b32 v{t1}, 5, v0
    v_lshl_add_u32 v{V_X2}, v{t1}, 10, v{V_X2}""")
    A(f"""s_lshr_b32 s{S_T}, s{S_HL}, 2
    s_mul_i32 s{S_T}, s{S_T}, 40960
    s_mul_i32 s{S_T+1}, s{w}, 10240
    s_add_u32 s{S_T}, s{S_T}, s{S_T+1}
    s_and_b32 s{S_T+1}, s{S_HL}, 3
    s_lshl_b32 s{S_T+1}, s{S_T+1}, 8
    s_add_u32 s{S_T}, s{S_T}, s{S_T+1}
    s_add_u32 s{S_T}, s{S_T}, s{S_CUR}
    s_add_u32 s{S_C1}, s{S_T}, {Y_OFF}
    s_add_u32 s{S_C2}, s{S_C1}, 4096
    s_add_u32 s{S_C3}, s{S_C1}, 8192
    s_mul_i32 s{S_C4}, s{S_H}, 40960
    s_mul_i32 s{S_T}, s{w}, 10240
    s_add_u32 s{S_C4}, s{S_C4}, s{S_T}
    s_add_u32 s{S_C4}, s{S_C4}, {WS_UF + 2*SEG_U}
    s_mul_i32 s{S_C5}, s{S_H}, 12288
    s_mul_i32 s{S_T}, s{w}, 3072
    s_add_u32 s{S_C5}, s{S_C5}, s{S_T}
    s_add_u32 s{S_C6}, s{S_C5}, {WS_QF + 2*SEG_QKV}
    s_add_u32 s{S_C5}, s{S_C5}, {WS_KF + 2*SEG_QKV}
    v_mov_b32 v{V_JUNK}, 0""")
    YSO = [S_C1, S_C2, S_C3]
    A(f"""s_load_dwordx4 s[{S_A}:{S_A+3}], s[0:1], {KA_WV}
    s_mul_i32 s{S_T}, s{S_H}, 384
    s_mul_i32 s{S_T+1}, s{S_H}, 245760
    s_mul_i32 s{S_T+2}, s{w}, 320
    s_add_u32 s{S_T+1}, s{S_T+1}, s{S_T+2}
    s_waitcnt lgkmcnt(0)""")
    add64(A, S_A, S_A, f"s{S_T}"); add64(A, S_B, S_B, f"s{S_T+1}")
    load_heads(A, [(S_A, posB_v)])
    A(f"s_mul_i32 s{S_T+4}, s{w}, 20480")
    d_, t_ = MOP+2, MOP+3
    A(f"""v_bfe_u32 v{d_}, v0, 2, 1
    v_lshrrev_b32 v{t_}, 4, v0
    v_lshl_add_u32 v{d_}, v{t_}, 2, v{d_}
    v_mul_u32_u24 v{d_}, 320, v{d_}
    v_bfe_u32 v{t_}, v0, 3, 1
    v_lshl_add_u32 v{d_}, v{t_}, 5, v{d_}
    v_and_b32 v{t_}, 3, v0
    v_lshl_add_u32 v{d_}, v{t_}, 3, v{d_}
    v_add_u32 v{d_}, s{S_T+4}, v{d_}""")
    def reads(A, r, off):
        for pr in range(5):
            read_operand(A, posB_o(pr, r), MOP+2, off + pr*64, 320, hrows=16)
    load_w_rows(A, S_B, 1280, 20, 192, 32, 2, S_T+4, 0, S_T, MOP, reads)
    A("s_barrier")
    H(hooks, 'rts', A, 2)
    waitall(A, s_dbg, exitlab, V_LANE16, s_slow=S_SLOW)
    if slow_too: A(f"s_cmp_lg_u32 s{S_SLOW}, 0\ns_cbranch_scc1 b_loop_slow")
    for ver in (['', '_slow'] if slow_too else ['']):
        LF = 'sc1' if ver else ''
        A(f"b_loop{ver}:")
        lg = Lg(A)
        for i in range(4): stg_load(lg, i)
        for i in range(24): A(f"v_mov_b32 v{ACC+i}, 0")
        H(hooks, 'stamp', A, 0)
        if BSLEEP: A(f"s_sleep {BSLEEP}")
        ingest_mem(A, lg, exitlab)
        H(hooks, 'stamp', A, 1)
        def btouch(vt):
            lb = A.newlabel('bt')
            H(hooks, 'b_ready', A, lb)
            A(f"v_lshlrev_b32 v{vt}, 3, v{V_LANE16}\ns_mov_b32 m0, {L_X}")
            A(f"buffer_load_dword v{vt}, {srd}, s{S_C4} offen lds")
            A(f"s_add_u32 s{S_T}, s{S_C4}, 8192\ns_mov_b64 exec, 0xffff")
            A(f"buffer_load_dword v{vt}, {srd}, s{S_T} offen lds")
            if BTOUCH > 1:
                A(f"s_mov_b64 exec, 0xffffff")
                A(f"buffer_load_dword v{vt}, {srd}, s{S_C5} offen lds")
                A(f"buffer_load_dword v{vt}, {srd}, s{S_C6} offen lds")
            A(f"s_mov_b64 exec, -1\n{lb}:")
        seqv = [(kp, t) for kp in range(3) for t in range(3)] + [(kp, t) for t in range(3) for kp in range(3, 10)]
        pend = []
        for p, (kp, t) in enumerate(seqv):
            if p == BB1:
                lg.need(('mw', 2)); A("s_barrier"); read_mem_frags(A, lg)
                if BTOUCH and BTEARLY: btouch(V_X3)
            kind, x = wloc(p)
            if kind == 'lds': lg.need(('w', x))
            if kp >= 3: lg.need(('m', kp))
            smf(A, ACC+4*t, MOP+4*kp, wreg(p))
            if kind == 'lds' and x + 4 < 10: stg_load(lg, x+4)
            if p == 25:
                a, b = ACC, ACC+4
                pend += [f"v_permlane32_swap_b32 v{a+r}, v{b+r}" for r in range(4)]
                pend += [f"v_pk_add_f32 {vr(a,2)}, {vr(a,2)}, {vr(b,2)}\nv_pk_add_f32 {vr(a+2,2)}, {vr(a+2,2)}, {vr(b+2,2)}"]
            if pend: A(pend.pop(0))
        assert not pend
        A(f"v_cvt_pk_bf16_f32 v{ACC+4}, v{ACC}, v{ACC+1}\nv_cvt_pk_bf16_f32 v{ACC+5}, v{ACC+2}, v{ACC+3}")
        lg.ds(f"ds_write_b64 v{V_TW}, {vr(ACC+4,2)} offset:{L_T}")
        YA = [ACC+12, ACC+16, ACC+20, MOP+24, MOP+28]
        c = ACC + 8
        A(f"""v_permlane32_swap_b32 v{c}, v{c+2}
        v_permlane32_swap_b32 v{c+1}, v{c+3}
        v_pk_add_f32 {vr(c,2)}, {vr(c,2)}, {vr(c+2,2)}
        v_cvt_pk_bf16_f32 v{c}, v{c}, v{c+1}""")
        lg.ds(f"ds_write_b32 v{V_X1}, v{c} offset:{L_T+256}")
        for i in range(8): A(f"v_mov_b32 v{MOP+24+i}, 0")
        lg.all(); A("s_barrier")
        H(hooks, 'stamp', A, 2)
        for kk in range(6):
            for q in range(2):
                lg.ds(f"ds_read_b64_tr_b16 {vr(MOP+4*kk+2*q,2)}, v{V_TR} offset:{L_T + kk*256 + q*32}", ('v', kk))
        def yepi(pr):
            a = YA[pr]
            return [f"v_cvt_pk_bf16_f32 v{a}, v{a}, v{a+1}", f"v_cvt_pk_bf16_f32 v{a+1}, v{a+2}, v{a+3}",
                    f"v_and_or_b32 v{a}, v{a}, -2, s{S_TAG}\n" + bst(2, a, V_X2, YSO[pr//2], (pr % 2)*2048, LF)]
        pend = []
        seqy = sorted([(posB_o(pr, kk), pr, kk) for pr in range(5) for kk in range(6)])
        for p, pr, kk in seqy:
            kind, x = wloc(p)
            if kind == 'lds': lg.need(('w', x))
            lg.need(('v', kk))
            smf(A, YA[pr], MOP+4*kk, wreg(p))
            if p == 43: pend += yepi(0) + yepi(1)
            if p == 50: pend += yepi(2)
            if p == 56: pend += yepi(3)
            if pend: A(pend.pop(0))
        for o in pend + yepi(4): A(o)
        H(hooks, 'stamp', A, 3)
        if BTOUCH:
            if not BTEARLY: btouch(MOP)
            H(hooks, 'b_peek', A)
            A(f"s_add_u32 s{S_C4}, s{S_C4}, {SEG_U}\ns_add_u32 s{S_C5}, s{S_C5}, {SEG_QKV}\ns_add_u32 s{S_C6}, s{S_C6}, {SEG_QKV}")
        next_step(A)
        A(f"""s_cmp_lt_u32 s{S_STEP}, {NSEG}
        s_cbranch_scc1 b_loop{ver}
        s_branch b_fin""")
    A("b_fin:")
    H(hooks, 'final', A)
    A(f"s_branch {hooks['next_ab']}")

GREP = int(os.environ.get('GREP', '4'))
GPRE = int(os.environ.get('GPRE', '2'))
GGAP = int(os.environ.get('GGAP', '4'))
PPIPE = int(os.environ.get('PPIPE', '2'))
GMODE = os.environ.get('GMODE', 'load')
QREJ = int(os.environ.get('QREJ', '1'))
GLOOPGAP = int(os.environ.get('GLOOPGAP', '0'))

def role_R(A, exitlab, s_dbg, hooks, slow_too=True):
    w = S_WAVE
    LU, LY = 0, 98304
    VL, VIDX, VT, VG, VM, VTM, VU, VY = 1, V_IDX, 2, 3, 4, 5, 6, 7
    A(f"""v_lshlrev_b32 v{VL}, 4, v0
    s_mov_b32 s{S_HI}, 0xff00ff00
    s_mov_b32 s{S_HI+1}, 0xff00ff00
    v_mov_b32 v{VIDX}, 0x4444
    v_mov_b32 v{VT}, 0xeeee
    v_cndmask_b32 v{VIDX}, v{VIDX}, v{VT}, {sr(S_HI,2)}
    s_mov_b32 s{S_SEL0}, 0x00003f80
    s_mov_b32 s{S_SEL1}, 0x3f800000
    s_lshl_b32 s{S_CUR}, s{S_GRP}, 18
    s_add_u32 s{S_CUR}, s{S_CUR}, {LBASE}
    s_mov_b32 s{S_TAG}, 0
    s_mov_b32 s{S_STEP}, 0
    s_mov_b32 s{S_EVEN}, 0x55555555
    s_mov_b32 s{S_EVEN+1}, 0x55555555
    s_lshl_b32 s{S_T}, s{S_HL}, 2
    s_add_u32 s{S_T}, s{S_T}, s{w}
    s_mul_i32 s{S_T}, s{S_T}, 6144
    s_add_u32 s{S_T}, s{S_T}, s{S_CUR}
    s_add_u32 s{S_T}, s{S_T}, {P_OFF}
    s_add_u32 s{S_T+1}, s{S_T}, 3072""")
    for i in range(4): A(f"v_mov_b32 v{20+i}, -1")
    for i in range(6): A(bst(4, 20, VL, S_T + i//3, (i % 3)*1024, 'sc1'))
    A(f"""s_cmp_ge_u32 s{w}, 2
    s_cbranch_scc1 r_x""")
    S_UGc, S_UDc, S_ULc, S_LATE = S_MSK+8, S_MSK+9, S_MSK+10, S_MSK+12
    A(f"""s_mul_i32 s{S_UGc}, s{S_GRP}, {8*40960}
    s_lshl_b32 s{S_T+1}, s{S_HL}, 1
    s_add_u32 s{S_T+1}, s{S_T+1}, s{w}
    s_lshl_b32 s{S_T+1}, s{S_T+1}, 11
    s_add_u32 s{S_UGc}, s{S_UGc}, s{S_T+1}
    s_add_u32 s{S_UGc}, s{S_UGc}, {WS_UF}
    s_lshl_b32 s{S_ULc}, s{w}, 14
    s_mov_b32 s{S_UDc}, 0""")
    S_GS, S_GR = S_MSK, S_MSK+4
    S_YC, S_YC2, S_PC, S_MO, S_UB, S_TAGN, S_GD = S_C1, S_C2, S_C3, S_C4, S_C5, S_C6, S_O1
    A(f"""s_load_dwordx2 {sr(S_A,2)}, s[0:1], {KA_MEM0}
    s_lshl_b32 s{S_T}, s{S_HL}, 1
    s_add_u32 s{S_T}, s{S_T}, s{w}
    s_lshr_b32 s{S_T+1}, s{S_T}, 4
    s_lshl_b32 s{S_T+1}, s{S_T+1}, 14
    s_and_b32 s{S_T+2}, s{S_T}, 15
    s_lshl_b32 s{S_T+2}, s{S_T+2}, 9
    s_add_u32 s{S_T+1}, s{S_T+1}, s{S_T+2}""")
    for k in range(NG):
        A(f"""s_xor_b32 s{S_T+2}, s{S_GRP}, {k}
        s_lshl_b32 s{S_T+2}, s{S_T+2}, 18
        s_add_u32 s{S_GS+k}, s{S_T+2}, s{S_T+1}""")
    A(f"""s_lshl_b32 s{S_T+1}, s{S_T}, 11
    s_add_u32 s{S_YC}, s{S_T+1}, s{S_CUR}
    s_add_u32 s{S_YC}, s{S_YC}, {Y_OFF}
    s_add_u32 s{S_YC2}, s{S_YC}, 40960
    s_add_u32 s{S_PC}, s{S_CUR}, {P_OFF}
    s_add_u32 s{S_O2}, s{S_PC}, 4096
    s_lshl_b32 s{S_MO}, s{S_T}, 9
    s_add_u32 s{S_MO}, s{S_MO}, s{S_CUR}
    s_add_u32 s{S_MO}, s{S_MO}, {M_OFF}
    s_mov_b32 s{S_UB}, 0
    s_mov_b32 s{S_GD}, {GSLOT}
    v_lshlrev_b32 v{VG}, 3, v0
    s_lshl_b32 s{S_T+1}, s{w}, 11
    v_add_u32 v{VU}, s{S_T+1}, v{VL}
    s_lshl_b32 s{S_T+1}, s{w}, 12
    s_add_u32 s{S_T+1}, s{S_T+1}, {LY}
    v_add_u32 v{VY}, s{S_T+1}, v{VL}""")
    t = 16
    A(f"""v_bfe_u32 v{VM}, v0, 5, 1
    v_bfe_u32 v{t}, v0, 3, 1
    v_lshl_add_u32 v{VM}, v{VM}, 1, v{t}
    v_bfe_u32 v{t}, v0, 4, 1
    v_lshl_add_u32 v{VM}, v{VM}, 1, v{t}
    v_and_b32 v{t}, 1, v0
    v_lshl_add_u32 v{VM}, v{VM}, 1, v{t}
    v_bfe_u32 v{t}, v0, 1, 2
    v_lshl_add_u32 v{VM}, v{VM}, 3, v{t}
    v_lshlrev_b32 v{VM}, 2, v{VM}
    v_cmp_eq_u32 vcc, 0, v{t}
    v_cndmask_b32 v{VTM}, 0, 1, vcc""")
    A(f"""v_bfe_u32 v{t}, v0, 1, 3
    v_mul_u32_u24 v{t}, 1280, v{t}
    v_lshrrev_b32 v{t+1}, 4, v0
    v_lshl_add_u32 v{t}, v{t+1}, 4, v{t}
    v_and_b32 v{t+1}, 1, v0
    v_lshl_add_u32 v{t}, v{t+1}, 3, v{t}
    s_lshl_b32 s{S_T}, s{S_T}, 6
    v_add_u32 v{t}, s{S_T}, v{t}
    s_waitcnt lgkmcnt(0)
    global_load_dwordx2 {vr(t+2,2)}, v{t}, {sr(S_A,2)}
    v_cndmask_b32 v{t+1}, -1, -2, {sr(S_EVEN,2)}
    v_mov_b32 v{t+4}, -1
    v_mov_b32 v{t+5}, -1
    s_waitcnt vmcnt(0)
    v_and_b32 v{t+2}, v{t+1}, v{t+2}""")
    A(bst(2, t+2, VG, S_MO, 0, 'sc1'))
    VGR = 240
    A(f"s_add_u32 s{S_T}, s{S_GS}, {GSLOT}\ns_add_u32 s{S_T+1}, s{S_GS}, 8192\ns_add_u32 s{S_T+2}, s{S_T}, 8192")
    for r in range(GREP):
        A(f"v_add_u32 v{VGR+r}, {r*GBLK}, v{VG}")
        for so in (S_GS, S_T, S_T+1, S_T+2): A(bst(2, t+4, VGR+r, so, 0, 'sc1'))
    checkin(A, s_dbg)
    H(hooks, 'r_pre', A)
    waitall(A, s_dbg, exitlab, VL, s_slow=S_SLOW, s_pol=S_POL)
    for k in range(NG): A(f"s_add_u32 s{S_GS+k}, s{S_GS+k}, s{S_POL}")
    H(hooks, 'wait_u', A, 0)
    if slow_too: A(f"s_cmp_lg_u32 s{S_SLOW}, 0\ns_cbranch_scc1 r_loop_slow")
    UR = lambda t_, hh: 32 + 32*t_ + 4*hh
    YR = lambda t_, q: 96 + 8*t_ + 4*q
    PS = lambda st, f: 112 + 20*st + 4*f
    RA = 16
    GO, GF = 24, 26
    GS = lambda st, k: 172 + 8*st + 2*k
    def upark():
        return [f"ds_write_b128 v{VU}, {vr(UR(t_,hh),4)} offset:{hh*4096+t_*1024}" for hh in range(8) for t_ in range(2)] + [f"v_xor_b32 v{VU}, 32768, v{VU}"]
    def ypark():
        for t_ in range(2):
            for q in range(2): A(f"ds_write_b128 v{VY}, {vr(YR(t_,q),4)} offset:{t_*2048+q*1024}")
        A(f"v_xor_b32 v{VY}, 8192, v{VY}")
    for ver in (['', '_slow'] if slow_too else ['']):
        LF = 'sc1' if ver else ''
        A(f"r_loop{ver}:")
        H(hooks, 'stamp', A, 0)
        lg = Lg(A)
        A(f"""s_bfe_u32 s{S_TAGM}, s{S_STEP}, 0x10001
        s_xor_b32 s{S_TAGN}, s{S_TAG}, 1
        s_xor_b32 s{S_T}, s{S_TAGM}, 1
        v_mov_b32 v{GF}, s{S_T}""")
        if XLEAD: A(f"s_sleep {XLEAD}")
        H(hooks, 'cached_u', A)
        for hh in range(8):
            for t_ in range(2):
                if not NOU: A(bld(4, UR(t_, hh), VL, S_UGc, t_*1024))
            A(f"s_add_u32 s{S_UGc}, s{S_UGc}, {40960 if hh < 7 else SEG_U - 7*40960}")
        H(hooks, 'peek_u', A)
        for r in range(GREP if SCRUB else 0): A(bst(2, GF, VGR+r, S_GS, 0, 'sc1'))
        A("s_waitcnt vmcnt(0)"); H(hooks, 'stamp', A, 6)
        if UPARK == 0:
            for x in upark(): A(x)
        if RSLEEP: A(f"s_sleep {RSLEEP}")
        shadow = None
        yl = lambda b: [bld(4, b+8*t_+4*q, VL, [S_YC, S_YC2][q], t_*1024, 'sc1') for t_ in range(2) for q in range(2)]
        yc = lambda b: [b+2*i for i in range(8)]
        if not YPIPE:
            poll(A, 'ry', yl(YR(0, 0)), yc(YR(0, 0)), S_TAG, exitlab, shadow)
        else:
            Y0, Y1 = 220, YR(0, 0)
            lp, n0, jj = A.newlabel('py'), A.newlabel('py'), A.newlabel('py')
            for x in yl(Y0): A(x)
            A(f"s_sleep {YPIPE}\n{lp}:")
            for x in yl(Y1): A(x)
            tick(A, exitlab)
            A("s_waitcnt vmcnt(4)")
            check(A, yc(Y0), S_TAG, n0)
            A(f"s_branch {jj}\n{n0}:")
            for x in yl(Y0): A(x)
            A("s_waitcnt vmcnt(4)")
            check(A, yc(Y1), S_TAG, lp)
            A(f"{jj}:")
        H(hooks, 'stamp', A, 1)
        def pl(st):
            for f in range(4): A(bld(4, PS(st, f), VL, S_PC, f*1024, 'sc1'))
            A(bld(4, PS(st, 4), VL, S_O2, 0, 'sc1'))
        A(f"s_cmp_ge_u32 s{S_STEP}, {NSEG-1}\ns_cbranch_scc1 r_last")
        for st in range(PPIPE-1): pl(st)
        lg.all()
        lp, lok = A.newlabel('rp'), A.newlabel('rok')
        nx = [A.newlabel('rn') for _ in range(PPIPE)]
        for i in range(8): A(f"v_mov_b32 v{RA+i}, 0")
        A(f"{lp}:")
        for st in range(PPIPE):
            pl((st+PPIPE-1) % PPIPE)
            if st == 0: tick(A, exitlab)
            A(f"s_waitcnt vmcnt({5*(PPIPE-1)})")
            ck = [PS(st, f)+j for f in range(4) for j in (0, 2)] + [PS(st, 4)+j for j in ((1, 3) if QREJ else range(4))]
            if QREJ: check(A, [PS(st, 4), PS(st, 4)+2], S_TAG, nx[st] if st < PPIPE-1 else lp)
            ops = [f"v_bitop3_b32 v{V_X3}, v{ck[0]}, v{ck[1]}, s{S_TAG} bitop3:0x7e"]
            ops += [f"v_bitop3_b32 v{V_X3}, v{x}, v{V_X3}, s{S_TAG} bitop3:0xde" for x in ck[2:]]
            ops += [f"v_and_b32 v{V_X3}, 1, v{V_X3}", f"v_cmp_ne_u32 vcc, 0, v{V_X3}"]
            for f in range(5):
                for t_ in range(2):
                    smf(A, RA+4*t_, PS(st, f), UR(t_, 2*f) if f < 4 else YR(t_, 0))
                    A(ops.pop(0))
            for o in ops: A(o)
            A(f"s_nop {4 if QREJ else 2}\ns_cbranch_vccz {lok}")
            for i in range(8): A(f"v_mov_b32 v{RA+i}, 0")
            if st < PPIPE-1: A(f"{nx[st]}:")
            else: A(f"s_branch {lp}")
        A(f"{lok}:")
        H(hooks, 'stamp', A, 2)
        a, b = RA, RA+4
        A(f"s_mov_b64 vcc, {sr(S_EVEN,2)}")
        for r in range(4): A(f"v_permlane32_swap_b32 v{a+r}, v{b+r}")
        A(f"""v_pk_add_f32 {vr(a,2)}, {vr(a,2)}, {vr(b,2)}
        v_pk_add_f32 {vr(a+2,2)}, {vr(a+2,2)}, {vr(b+2,2)}
        v_cvt_pk_bf16_f32 v{b}, v{a}, v{a+1}
        v_cvt_pk_bf16_f32 v{b+1}, v{a+2}, v{a+3}
        v_cndmask_b32_dpp v{GO}, v{b+1}, v{b}, vcc quad_perm:[0,0,2,2] row_mask:0xf bank_mask:0xf
        s_not_b64 vcc, vcc
        v_and_or_b32 v{GO}, v{GO}, -2, s{S_TAGM}
        v_cndmask_b32_dpp v{GO+1}, v{b}, v{b+1}, vcc quad_perm:[1,1,3,3] row_mask:0xf bank_mask:0xf""")
        for r in range(GREP): A(bst(2, GO, VGR+r, S_GS, 0, 'sc1'))
        H(hooks, 'stamp', A, 3)
        ypark()
        A(f"""v_lshlrev_b32 v{GF}, 16, v{GO}
        v_and_b32 v{GF+1}, 0xffff0000, v{GO}
        v_lshlrev_b32 v{GF+2}, 16, v{GO+1}
        v_and_b32 v{GF+3}, 0xffff0000, v{GO+1}""")
        fill = upark() if UPARK else []
        def gap(n):
            k = min(len(fill), n*UPARK)
            for _ in range(k): A(fill.pop(0))
            if n and k < n*max(UPARK, 1): A(f"s_sleep {n - k//max(UPARK, 1)}")
        gap(GDELAY)
        def gl(r):
            for k in range(1, NG): A(bld(2, GS(r, k), VGR+r, S_GS+k, 0, 'sc1'))
        def gc(r, lab):
            A(f"""v_bitop3_b32 v{V_X3}, v{GS(r,1)}, v{GS(r,2)}, s{S_TAGM} bitop3:0x7e
            v_bitop3_b32 v{V_X3}, v{GS(r,3)}, v{V_X3}, s{S_TAGM} bitop3:0xde
            v_and_b32 v{V_X3}, 1, v{V_X3}
            v_cmp_ne_u32 vcc, 0, v{V_X3}
            s_cbranch_vccz {lab}""")
        lp, lj = A.newlabel('rg'), A.newlabel('rj')
        oks = [A.newlabel('rgo') for _ in range(GREP)]
        pre = min(GPRE, GREP)
        for r in range(pre):
            gl(r)
            if r < pre-1: gap(GGAP)
        for x in fill: A(x)
        for r in range(GREP):
            A(f"s_waitcnt vmcnt({(NG-1)*(min(r+pre, GREP)-1-r)})")
            gc(r, oks[r])
            if r + pre < GREP: gl(r+pre)
        A(f"{lp}:")
        gl(0); tick(A, exitlab)
        A("s_waitcnt vmcnt(0)")
        gc(0, oks[0])
        A(f"s_branch {lp}")
        for st in range(GREP):
            A(f"{oks[st]}:")
            for k in range(1, NG):
                for j in range(4):
                    A(f"v_dot2_f32_bf16 v{GF+j}, v{GS(st,k)+j//2}, s{[S_SEL0, S_SEL1][j % 2]}, v{GF+j}")
            A(f"""v_cvt_pk_bf16_f32 v{GO}, v{GF}, v{GF+2}
            v_cvt_pk_bf16_f32 v{GO+1}, v{GF+1}, v{GF+3}
            v_bfi_b32 v{GO}, v{VTM}, s{S_TAGN}, v{GO}
            v_bfi_b32 v{GO+1}, v{VTM}, s{S_TAGN}, v{GO+1}""")
            A(bst(1, GO, VM, S_MO, 0, LF)); A(bst(1, GO+1, VM, S_MO, 16, LF))
            if st < GREP-1: A(f"s_branch {lj}")
        A(f"{lj}:")
        H(hooks, 'stamp', A, 4)
        for k in range(NG): A(f"s_add_u32 s{S_GS+k}, s{S_GS+k}, s{S_GD}")
        A(f"s_sub_u32 s{S_GD}, 0, s{S_GD}")
        next_step(A)
        A(f"s_waitcnt lgkmcnt(0)\ns_barrier")
        H(hooks, 'stamp', A, 5)
        A(f"s_branch r_loop{ver}")
    A("r_last:\ns_waitcnt vmcnt(0)")
    ypark()
    if UPARK:
        for x in upark(): A(x)
    A("s_waitcnt lgkmcnt(0)\ns_barrier")
    H(hooks, 'final', A)
    A(f"s_branch {hooks['next_r']}")
    A("r_x:")
    S_UG, S_UD, S_PX, S_OP, S_UR = S_C1, S_C2, S_C3, S_C4, S_C5
    A(f"""s_sub_u32 s{S_T}, s{w}, 2
    s_lshl_b32 s{S_T+1}, s{S_GRP}, 1
    s_add_u32 s{S_T+1}, s{S_T+1}, s{S_T}
    s_mul_i32 s{S_UG}, s{S_T+1}, {4*40960}
    s_lshl_b32 s{S_T+1}, s{S_HL}, 12
    s_add_u32 s{S_UG}, s{S_UG}, s{S_T+1}
    s_add_u32 s{S_UG}, s{S_UG}, {WS_UF}
    s_lshl_b32 s{S_O1}, s{S_T}, 14
    s_mov_b32 s{S_UD}, 0
    s_mov_b32 s{S_UR}, 0
    s_mul_i32 s{S_PX}, s{S_T}, 10240
    s_add_u32 s{S_PX}, s{S_PX}, s{S_CUR}
    s_add_u32 s{S_PX}, s{S_PX}, {PX_OFF}
    s_mul_i32 s{S_OP}, s{S_T}, {20*4096}
    s_lshl_b32 s{S_T+1}, s{S_HL}, 13
    s_add_u32 s{S_OP}, s{S_OP}, s{S_T+1}
    s_lshl_b32 s{S_T+1}, s{S_GRP}, 10
    s_add_u32 s{S_OP}, s{S_OP}, s{S_T+1}
    s_add_u32 s{S_OP}, s{S_OP}, {WS_OP}
    v_add_u32 v{VY}, {LY}, v{VL}""")
    checkin(A, s_dbg)
    H(hooks, 'r_pre', A)
    waitall(A, s_dbg, exitlab, VL, s_pol=S_POL)
    H(hooks, 'x_init', A)
    A("s_barrier")
    PXR, ZR, XA = 16, 64, 96
    A("rx_loop:")
    H(hooks, 'stamp', A, 0)
    A(f"""s_bfe_u32 s{S_TAG}, s{S_STEP}, 0x10002
    s_and_b32 s{S_T+2}, s{S_STEP}, 3
    s_lshl_b32 s{S_T+2}, s{S_T+2}, 15
    s_add_u32 s{S_T+2}, s{S_T+2}, s{S_PX}
    s_add_u32 s{S_T+3}, s{S_T+2}, 4096
    s_add_u32 s{S_T+4}, s{S_T+2}, 8192
    v_add_u32 v{VT}, s{S_UR}, v{VL}""")
    pxl = [bld(4, PXR+4*f, VL, S_T+2+f//4, (f % 4)*1024, 'sc1') for f in range(10)]
    pxc = [PXR+4*f for f in range(10)] + [PXR+34, PXR+38]
    def op_store():
        for t_ in range(2):
            A(bst(4, XA+16+4*t_, VL, S_OP, 0, 'sc1'))
            A(f"s_add_u32 s{S_OP}, s{S_OP}, {4096 if t_ < 1 else SEG_OP - 4096}")
    S_DONE = S_C2
    if XDEFER:
        def shadow():
            l = A.newlabel('xd')
            H(hooks, 'x_flag2', A, S_DONE)
            A(f"s_sub_u32 s{S_T}, s{S_STEP}, 1\ns_cmp_ge_u32 s{S_T}, {XDEFER}\ns_cbranch_scc1 {l}")
            op_store()
            A(f"s_waitcnt vmcnt(3)")
            check(A, pxc, S_TAG, l)
            A(f"s_branch rx_pok\n{l}:")
        poll(A, 'px', pxl, pxc, S_TAG, exitlab, shadow)
        A("rx_pok:")
    else:
        poll(A, 'px', pxl, pxc, S_TAG, exitlab)
        if not XFLAGNOW: H(hooks, 'x_flag', A)
    H(hooks, 'stamp', A, 1)
    seq = [(f, t_) for f in range(10) for t_ in range(4)]
    lg = Lg(A)
    def zrd(n):
        f, t_ = seq[n]
        if f < 8: lg.ds(f"ds_read_b128 {vr(ZR+4*(n%8),4)}, v{VT} offset:{f*4096+t_*1024}", n)
        else: lg.ds(f"ds_read_b128 {vr(ZR+4*(n%8),4)}, v{VY} offset:{t_*2048+(f-8)*1024}", n)
    for n in range(7): zrd(n)
    for n, (f, t_) in enumerate(seq):
        if n + 7 < 40: zrd(n+7)
        lg.need(n)
        A(f"v_mfma_f32_16x16x32_bf16 {vr(XA+4*t_,4)}, {vr(ZR+4*(n%8),4)}, {vr(PXR+4*f,4)}, {'0' if f == 0 else vr(XA+4*t_,4)}")
    A(f"""v_xor_b32 v{VY}, 8192, v{VY}
    s_xor_b32 s{S_UR}, s{S_UR}, 32768""")
    for i in range(8): A(f"v_cvt_pk_bf16_f32 v{XA+16+i}, v{XA+2*i}, v{XA+2*i+1}")
    if XDEFER:
        l = A.newlabel('xd')
        A(f"s_mov_b32 s{S_DONE}, s{S_STEP}\ns_cmp_lt_u32 s{S_STEP}, {XDEFER}\ns_cbranch_scc1 {l}")
        op_store()
        A(f"s_add_u32 s{S_DONE}, s{S_DONE}, 1\n{l}:")
    else: op_store()
    H(hooks, 'stamp', A, 2)
    A(f"""s_add_u32 s{S_STEP}, s{S_STEP}, 1
    s_waitcnt vmcnt(0)""")
    H(hooks, 'stamp', A, 4)
    l = A.newlabel('rx_nf')
    if not XFLAGNOW: A(f"s_cmp_lt_u32 s{S_STEP}, {NSEG-2}\ns_cbranch_scc1 {l}")
    H(hooks, 'x_flag', A)
    A(f"s_cmp_ge_u32 s{S_STEP}, {NSEG}\ns_cbranch_scc1 rx_fin\n{l}:")
    H(hooks, 'stamp', A, 3)
    A("s_barrier\ns_branch rx_loop\nrx_fin:")
    H(hooks, 'final', A)
    A(f"s_branch {hooks['next_r']}")
```

```python
from common import *
from r_ln import hexf
import os
SPS = int(os.environ.get('SPS', '3'))
OUTS = int(os.environ.get('OUTS', '2'))
LNS = int(os.environ.get('LNS', '3'))
from r_rec import Lg, WS_OP, SEG_OP, srd, tick, wait_flags, put_flag, S_WAVE
from r_proj import gelu_ops, GC0, GC1, SEG_Z
from r_u import load_w_rows
WS_SX = WS_STAT + MB
SEG_SX = 6*256
W = S_WAVE

def bl(n, dst, va, so, off=0, fl=''):
    nm = {1: 'dword', 2: 'dwordx2', 4: 'dwordx4'}[n]
    return f"buffer_load_{nm} {vr(dst,n)}, v{va}, {srd}, {so} offen offset:{off} {fl}"
def bs(n, src, va, so, off=0, fl=''):
    nm = {1: 'dword', 2: 'dwordx2', 4: 'dwordx4'}[n]
    return f"buffer_store_{nm} {vr(src,n)}, v{va}, {srd}, {so} offen offset:{off} {fl}"

def load_wout(A, s_dq, s_t, vt):
    sw, sb = s_t, s_t+2
    tr, t = vt+2, vt+3
    A(f"""s_load_dwordx2 {sr(sw,2)}, s[0:1], {KA_WOUT}
    s_mul_i32 s{sb}, s{W}, {192*1280}
    s_mul_i32 s{sb+1}, s{s_dq}, 320
    s_add_u32 s{sb}, s{sb}, s{sb+1}
    v_lshrrev_b32 v{t}, 4, v0
    v_lshlrev_b32 v{tr}, 3, v{t}
    v_bfe_u32 v{t}, v0, 2, 2
    v_add_u32 v{tr}, v{tr}, v{t}
    v_mul_u32_u24 v{tr}, 320, v{tr}
    v_and_b32 v{t}, 3, v0
    v_lshl_add_u32 v{tr}, v{t}, 4, v{tr}
    s_waitcnt lgkmcnt(0)""")
    add64(A, sw, sw, f"s{sb}")
    A(f"s_mul_i32 s{sb}, s{W}, 40960\nv_add_u32 v{tr}, s{sb}, v{tr}")
    def reads(A, kk, off):
        for dt in range(10):
            for q in range(2):
                A(f"ds_read_b64_tr_b16 {ar(24*dt+4*kk+2*q,2)}, v{tr} offset:{off + q*4*320 + (dt>>1)*64 + (dt&1)*8}")
    load_w_rows(A, sw, 1280, 20, 192, 32, 4, sb, 0, sb+1, vt, reads)

def out_task(A, s_task, f_gy, exitlab, done, outf=''):
    A(f"""s_load_dwordx2 s[20:21], s[0:1], {KA_OUT}
    s_lshr_b32 s12, s{s_task}, 2
    s_and_b32 s13, s{s_task}, 3
    s_mul_i32 s14, s12, {SEG_Z}
    s_mul_i32 s15, s{W}, 6144
    s_add_u32 s14, s14, s15
    s_add_u32 s14, s14, {WS_GY}
    s_add_u32 s15, s14, 4096
    s_add_u32 s16, s14, 24576
    s_add_u32 s17, s16, 4096
    v_lshlrev_b32 v2, 4, v0
    v_bfe_u32 v3, v0, 2, 2
    v_lshlrev_b32 v3, 3, v3
    v_and_b32 v4, 3, v0
    v_add_u32 v3, v3, v4
    v_mul_u32_u24 v3, 1280, v3
    v_lshrrev_b32 v4, 4, v0
    v_lshl_add_u32 v3, v4, 4, v3
    s_mul_i32 s18, s12, 40960
    s_mul_i32 s19, s13, 320
    s_add_u32 s18, s18, s19
    s_and_b32 s22, s{W}, 1
    s_lshr_b32 s23, s{W}, 1
    s_mul_i32 s19, s22, 5120
    s_add_u32 s18, s18, s19
    s_lshl_b32 s19, s23, 6
    s_add_u32 s18, s18, s19
    s_mul_i32 s19, s{W}, 20480
    v_add_u32 v5, s19, v2
    s_lshl_b32 s19, s22, 10
    s_lshl_b32 s24, s23, 12
    s_add_u32 s19, s19, s24
    v_add_u32 v6, s19, v2
    v_add_u32 v7, 40960, v6
    s_lshr_b32 s19, s12, 2
    s_mul_i32 s19, s19, {6*128}
    s_add_u32 s19, s19, {f_gy}
    v_min_u32 v8, 5, v0
    v_lshlrev_b32 v8, 7, v8
    v_add_u32 v8, s19, v8
    s_mov_b32 s19, 1
    s_waitcnt lgkmcnt(0)""")
    add64(A, 20, 20, 's18')
    A(f"s_add_u32 s18, s18, {WS_H}\ns_barrier")
    wait_flags(A, 8, 9, 19, exitlab, sleep=OUTS)
    GB, ACC_, HR = 16, 64, 144
    for k in range(6):
        for rt in range(2): A(bl(4, GB+24*rt+4*k, 2, f"s{14+2*rt+k//4}", 1024*(k % 4)))
    for i in range(3): A(bl(4, HR+4*i, 3, 's18', 128*i))
    for k in range(6):
        A(f"s_waitcnt vmcnt({2*(5-k)+3})")
        for dt in (range(10) if k < 4 else []):
            for rt in range(2):
                a = vr(ACC_+8*dt+4*rt, 4)
                A(f"v_mfma_f32_16x16x32_bf16 {a}, {ar(24*dt+4*k,4)}, {vr(GB+24*rt+4*k,4)}, {'0' if k == 0 else a}")
    for dt in range(10):
        for k in (4, 5):
            for rt in range(2):
                a = vr(ACC_+8*dt+4*rt, 4)
                A(f"v_mfma_f32_16x16x32_bf16 {a}, {ar(24*dt+4*k,4)}, {vr(GB+24*rt+4*k,4)}, {a}")
        if dt >= 1:
            for rt in range(2): A(f"ds_write_b128 v5, {vr(ACC_+8*(dt-1)+4*rt,4)} offset:{2048*(dt-1)+1024*rt}")
    for rt in range(2): A(f"ds_write_b128 v5, {vr(ACC_+72+4*rt,4)} offset:{2048*9+1024*rt}")
    A("s_waitcnt vmcnt(0)")
    F = 16
    for i in range(3):
        for j in range(4): A(f"v_lshlrev_b32 v{F+8*i+2*j}, 16, v{HR+4*i+j}\nv_and_b32 v{F+8*i+2*j+1}, 0xffff0000, v{HR+4*i+j}")
    A("s_waitcnt lgkmcnt(0)\ns_barrier")
    R = 64
    def rd(i):
        for ww in range(4):
            for ab in range(2):
                A(f"ds_read_b128 {vr(R+32*i+8*ww+4*ab,4)}, v{6+ww//2} offset:{(ww%2)*20480 + 8192*i + 2048*ab}")
    def fin(i):
        for ww in range(4):
            for j in range(4): A(f"v_pk_add_f32 {vr(F+8*i+2*j,2)}, {vr(F+8*i+2*j,2)}, {vr(R+32*i+8*ww+2*j,2)}")
        for j in range(4): A(f"v_cvt_pk_bf16_f32 v{48+4*i+j}, v{F+8*i+2*j}, v{F+8*i+2*j+1}")
        A(f"global_store_dwordx4 v3, {vr(48+4*i,4)}, s[20:21] offset:{128*i} {outf}")
    rd(0); rd(1)
    A("s_waitcnt lgkmcnt(8)"); fin(0)
    A("s_waitcnt lgkmcnt(0)")
    l = A.newlabel('o2')
    A(f"s_cmp_ge_u32 s{W}, 2\ns_cbranch_scc1 {l}")
    rd(2); fin(1)
    A("s_waitcnt lgkmcnt(0)"); fin(2)
    A(f"s_branch {done}\n{l}:")
    fin(1)
    A(f"s_branch {done}")

def ln2_loop(A, s_j, ncu, f_x, s_flag, s_pol, exitlab):
    VO, VX, VS, VF, VLW, VLR, T0, T1, T2, T3 = 2, 3, 4, 5, 6, 7, 8, 9, 10, 11
    OPR, XR, F, PK = 16, 64, 80, 104
    sx, so, sh, sn, ne, s0, s1 = 12, 14, 15, 16, 17, 18, 19
    A(f"""s_load_dwordx2 s[26:27], s[0:1], {KA_X}
    v_and_b32 v{T0}, 7, v0
    v_bfe_u32 v{T1}, v0, 3, 1
    v_lshrrev_b32 v{T2}, 4, v0
    s_and_b32 s{sn}, s{s_j}, 1
    s_lshl_b32 s{sn}, s{sn}, 7
    s_lshl_b32 s{ne}, s{W}, 13
    s_add_u32 s{sn}, s{sn}, s{ne}
    v_lshlrev_b32 v{VO}, 4, v{T0}
    v_lshl_add_u32 v{VO}, v{T2}, 8, v{VO}
    v_lshl_add_u32 v{VO}, v{T1}, 12, v{VO}
    v_add_u32 v{VO}, s{sn}, v{VO}
    v_mul_u32_u24 v{VX}, 1280, v{T0}
    v_lshl_add_u32 v{VX}, v{T2}, 3, v{VX}
    v_lshl_add_u32 v{VX}, v{T1}, 6, v{VX}
    s_lshl_b32 s{sn}, s{W}, 7
    v_add_u32 v{VX}, s{sn}, v{VX}
    v_bfe_u32 v{T3}, v0, 2, 1
    v_mul_u32_u24 v{VS}, 20480, v{T3}
    v_lshl_add_u32 v{VS}, v{T2}, 8, v{VS}
    v_and_b32 v{T3}, 3, v0
    v_lshl_add_u32 v{VS}, v{T3}, 4, v{VS}
    v_lshl_add_u32 v{VS}, v{T1}, 10, v{VS}
    s_and_b32 s{sn}, s{s_j}, 3
    s_lshl_b32 s{sn}, s{sn}, 6
    s_lshl_b32 s{ne}, s{W}, 11
    s_add_u32 s{sn}, s{sn}, s{ne}
    v_add_u32 v{VS}, s{sn}, v{VS}
    v_lshlrev_b32 v{VLR}, 5, v{T0}
    s_lshl_b32 s{sn}, s{W}, 3
    v_add_u32 v{VLW}, s{sn}, v{VLR}
    s_bfe_u32 s{sn}, s{s_j}, 0x10001
    s_lshl_b32 s{sn}, s{sn}, 6
    s_add_u32 s{sn}, s{sn}, {f_x}
    s_add_u32 s{sn}, s{sn}, s{s_pol}
    v_min_u32 v{VF}, 39, v0
    v_lshlrev_b32 v{VF}, 7, v{VF}
    v_add_u32 v{VF}, s{sn}, v{VF}
    s_mov_b32 s{s0}, 0x00003f80
    s_mov_b32 s{s1}, 0x3f800000
    s_cmp_lt_u32 s{W}, 2
    s_cselect_b64 s[28:29], -1, 0
    s_waitcnt lgkmcnt(0)
    ln2_loop:
    s_mul_i32 s{sh}, s{s_j}, 10240""")
    add64(A, sx, 26, f"s{sh}")
    A(f"""s_add_u32 s{sh}, s{sh}, {WS_H}
    s_lshr_b32 s{so}, s{s_j}, 1
    s_mul_i32 s{so}, s{so}, {SEG_OP//2}
    s_add_u32 s{so}, s{so}, {WS_OP}
    s_lshr_b32 s{ne}, s{s_j}, 2
    s_mul_i32 s{sn}, s{ne}, {SEG_XN}
    s_add_u32 s{sn}, s{sn}, {WS_HNF}
    s_add_u32 s{ne}, s{ne}, 1""")
    for j in range(4): A(f"v_mov_b32 v{XR+8+j}, 0")
    for j in range(16): A(f"v_mov_b32 v{OPR+32+j}, 0")
    l1, l2, l3, l4 = [A.newlabel('l2') for _ in range(4)]
    def xl(i):
        for hb in range(2): A(f"global_load_dwordx2 {vr(XR+4*i+2*hb,2)}, v{VX}, {sr(sx,2)} offset:{512*i+32*hb}")
    xl(0); xl(1)
    A(f"s_cmp_ge_u32 s{W}, 2\ns_cbranch_scc1 {l1}"); xl(2); A(f"{l1}:")
    A(f"s_cmp_lg_u32 s{W}, 0\ns_cbranch_scc1 {l2}")
    wait_flags(A, VF, T0, ne, exitlab, sleep=LNS)
    A(f"{l2}:\ns_waitcnt vmcnt(0)")
    for i in range(12): A(f"v_lshlrev_b32 v{F+2*i}, 16, v{XR+i}\nv_and_b32 v{F+2*i+1}, 0xffff0000, v{XR+i}")
    A(f"s_add_u32 s20, s{so}, 32768\ns_add_u32 s21, s{so}, 65536\ns_barrier")
    A(f"s_cmp_ge_u32 s{W}, 2\ns_cbranch_scc1 {l3}")
    for g in range(4): A(bl(4, OPR+32+4*g, VO, 's21', 1024*g))
    A(f"{l3}:")
    for i in range(2):
        for g in range(4): A(bl(4, OPR+16*i+4*g, VO, [f"s{so}", 's20'][i], 1024*g))
    A(f"v_mov_b32 v{T0}, 0\nv_mov_b32 v{T1}, 0")
    for n, i in enumerate((2, 0, 1)):
        A(f"s_waitcnt vmcnt({(8, 4, 0)[n]})")
        for g in range(4):
            for j in range(8):
                A(f"v_dot2_f32_bf16 v{F+8*i+j}, v{OPR+16*i+4*g+j//2}, s{s0+j%2}, v{F+8*i+j}")
        for j in range(4): A(f"v_cvt_pk_bf16_f32 v{PK+4*i+j}, v{F+8*i+2*j}, v{F+8*i+2*j+1}")
        for j in range(4): A(f"v_lshlrev_b32 v{F+8*i+2*j}, 16, v{PK+4*i+j}\nv_and_b32 v{F+8*i+2*j+1}, 0xffff0000, v{PK+4*i+j}")
        for j in range(8): A(f"v_add_f32 v{T0}, v{T0}, v{F+8*i+j}\nv_fmac_f32 v{T1}, v{F+8*i+j}, v{F+8*i+j}")
    A(f"""v_add_f32_dpp v{T0}, v{T0}, v{T0} row_ror:8 row_mask:0xf bank_mask:0xf
    v_add_f32_dpp v{T1}, v{T1}, v{T1} row_ror:8 row_mask:0xf bank_mask:0xf
    v_mov_b32 v{T2}, v{T0}
    v_mov_b32 v{T3}, v{T1}
    v_permlane16_swap_b32 v{T0}, v{T2}
    v_permlane16_swap_b32 v{T1}, v{T3}
    v_pk_add_f32 {vr(T0,2)}, {vr(T0,2)}, {vr(T2,2)}
    v_mov_b32 v{T2}, v{T0}
    v_mov_b32 v{T3}, v{T1}
    v_permlane32_swap_b32 v{T0}, v{T2}
    v_permlane32_swap_b32 v{T1}, v{T3}
    v_pk_add_f32 {vr(T0,2)}, {vr(T0,2)}, {vr(T2,2)}
    ds_write_b64 v{VLW}, {vr(T0,2)}""")
    for i in range(2):
        for hb in range(2): A(bs(2, PK+4*i+2*hb, VX, f"s{sh}", 512*i+32*hb, 'sc1'))
    A(f"""s_waitcnt lgkmcnt(0)
    s_barrier
    ds_read_b128 v[120:123], v{VLR}
    ds_read_b128 v[124:127], v{VLR} offset:16
    s_mov_b64 exec, s[28:29]""")
    A(f"s_cbranch_execz {l4}")
    for hb in range(2): A(bs(2, PK+8+2*hb, VX, f"s{sh}", 1024+32*hb, 'sc1'))
    A(f"""{l4}:
    s_mov_b64 exec, -1
    s_waitcnt lgkmcnt(0)
    v_pk_add_f32 v[120:121], v[120:121], v[122:123]
    v_pk_add_f32 v[124:125], v[124:125], v[126:127]
    v_pk_add_f32 v[120:121], v[120:121], v[124:125]
    v_mul_f32 v{T0}, {hexf(1.0/640)}, v120
    v_mul_f32 v{T1}, {hexf(1.0/640)}, v121
    v_fma_f32 v{T1}, -v{T0}, v{T0}, v{T1}
    v_max_f32 v{T1}, 0, v{T1}
    v_add_f32 v{T1}, {hexf(1e-5)}, v{T1}
    v_rsq_f32 v{T1}, v{T1}
    v_mul_f32 v{T0}, v{T0}, v{T1}
    s_add_u32 s20, s{sn}, 8192
    s_add_u32 s21, s{sn}, 16384""")
    l5 = A.newlabel('l2')
    for i in range(3):
        if i == 2: A(f"s_cmp_ge_u32 s{W}, 2\ns_cbranch_scc1 {l5}")
        for j in range(8): A(f"v_fma_f32 v{F+8*i+j}, v{F+8*i+j}, v{T1}, -v{T0}")
        for j in range(4): A(f"v_cvt_pk_bf16_f32 v{OPR+4*i+j}, v{F+8*i+2*j}, v{F+8*i+2*j+1}")
        A(bs(4, OPR+4*i, VS, [f"s{sn}", 's20', 's21'][i], 0, 'sc1'))
    l6 = A.newlabel('l2')
    A(f"{l5}:\ns_waitcnt vmcnt(0)\ns_barrier\ns_cmp_lg_u32 s{W}, 0\ns_cbranch_scc1 {l6}")
    put_flag(A, s_flag, ne, T0)
    A(f"""{l6}:
    s_add_u32 s{s_j}, s{s_j}, {ncu}
    s_cmp_lt_u32 s{s_j}, {4*NSEG}
    s_cbranch_scc1 ln2_loop""")

WW = 96
def win_load(A, s_w, s_t, vt):
    tr, t = vt+2, vt+3
    A(f"""v_lshrrev_b32 v{t}, 4, v0
    v_lshlrev_b32 v{tr}, 2, v{t}
    v_bfe_u32 v{t}, v0, 2, 2
    v_add_u32 v{tr}, v{tr}, v{t}
    v_lshlrev_b32 v{tr}, 6, v{tr}
    v_and_b32 v{t}, 3, v0
    v_lshl_add_u32 v{tr}, v{t}, 4, v{tr}
    s_mul_i32 s{s_t}, s{W}, 40960
    v_add_u32 v{tr}, s{s_t}, v{tr}""")
    def reads(A, r, off):
        for ksl in range(5):
            for ab in range(2):
                for q in range(2):
                    A(f"ds_read_b64_tr_b16 {vr(WW+4*((5*r+ksl)*2+ab)+2*q,2)}, v{tr} offset:{off + ksl*2048 + q*1024 + 8*ab}")
    load_w_rows(A, s_w, 3072, 4, 640, 160, 4, s_t, 0, s_t+1, vt, reads)

def win_loop(A, name, z2, s_seg, s_unit, f_ln, s_flag, s_pol, exitlab):
    VL, VD, VC0, VF, VF2, T0, T1, VST = 2, 3, 4, 5, 6, 7, 8, 9
    ACC, XR, GT, ST, PKD = 16, 32, 48, 64, 80
    sx, so, sdm, ne, c1, sx2 = 12, 13, 14, 15, 16, 17
    LST = 40960
    A(f"""v_lshlrev_b32 v{VL}, 4, v0
    s_mul_i32 s{sdm}, s{W}, 10240
    v_add_u32 v{VD}, s{sdm}, v{VL}
    v_mov_b32 v{VC0}, {hexf(GC0)}
    s_mov_b32 s{c1}, {hexf(GC1)}
    v_and_b32 v{VF}, 3, v0
    v_lshlrev_b32 v{VF}, 7, v{VF}
    v_add_u32 v{VF}, {f_ln}, v{VF}
    v_add_u32 v{VF}, s{s_pol}, v{VF}
    s_lshl_b32 s18, s{s_unit}, 2
    s_add_u32 s18, s18, s{W}
    s_lshl_b32 s18, s18, {11 if z2 else 10}
    s_add_u32 s18, s18, {WS_Z2 if z2 else WS_Z1}
    s_barrier
    {name}_loop:
    s_mul_hi_u32 s19, s{s_seg}, {-(-(1<<32)//6)}
    s_mul_i32 s19, s19, 6
    s_sub_u32 s19, s{s_seg}, s19
    s_lshl_b32 s19, s19, 9
    v_add_u32 v{VF2}, s19, v{VF}
    s_add_u32 s{ne}, s{s_seg}, 1
    s_mul_i32 s{sx}, s{s_seg}, {SEG_XN}
    s_add_u32 s{sx}, s{sx}, {WS_HNF}
    s_mul_i32 s{so}, s{s_seg}, {SEG_Z}
    s_add_u32 s{so}, s{so}, s18""")
    wait_flags(A, VF2, T0, ne, exitlab, sleep=3)
    for i in range(10):
        if i % 4 == 0: A(f"s_add_u32 m0, s{sdm}, {(i//4)*4096}\ns_add_u32 s{sx2}, s{sx}, {(i//4)*4096}")
        A(f"buffer_load_dwordx4 v{VD}, {srd}, s{sx2} offen offset:{(i%4)*1024} lds")
    A("s_waitcnt vmcnt(0)\ns_barrier")
    def epi_ops(rt):
        regs = [ACC+8*rt+i for i in range(8)]
        g = GT + 8*rt
        ops = gelu_ops(regs, g, VC0, c1)
        if not z2:
            ops += [f"v_cvt_pk_bf16_f32 v{PKD+4*rt+j}, v{g+2*j}, v{g+2*j+1}" for j in range(4)]
            if rt: ops += [f"s_add_u32 s{so}, s{so}, 24576"]
            ops += [bs(4, PKD+4*rt, VL, f"s{so}", 0, 'sc1')]
        else:
            s_ = ST + 8*rt
            ops += [f"v_add_f32 v{s_+i}, v{g+i}, v{g+4+i}" for i in range(4)]
            ops += [f"v_mul_f32 v{s_+4+i}, v{g+i}, v{g+i}" for i in range(4)]
            ops += [f"v_fmac_f32 v{s_+4+i}, v{g+4+i}, v{g+4+i}" for i in range(4)]
            for sh in (8, 4, 2, 1):
                ops += [f"v_add_f32_dpp v{s_+i}, v{s_+i}, v{s_+i} row_ror:{sh} row_mask:0xf bank_mask:0xf" for i in range(8)]
        return ops
    NP = 4
    for n in range(NP-1): A(f"ds_read_b128 {vr(XR+4*n,4)}, v{VL} offset:{n*1024}")
    pend = []
    for n in range(40):
        rt, ks = divmod(n, 20)
        m = n + NP - 1
        if m < 40: A(f"ds_read_b128 {vr(XR+4*(m%NP),4)}, v{VL} offset:{m*1024}")
        A(f"s_waitcnt lgkmcnt({min(NP-1, 39-n)})")
        if n == 22: pend = epi_ops(0)
        for ab in range(2):
            a = vr(ACC+8*rt+4*ab, 4); w = vr(WW+4*(ks*2+ab), 4); x = vr(XR+4*(n % NP), 4)
            o1, o2 = (x, w) if z2 else (w, x)
            A(f"v_mfma_f32_16x16x32_bf16 {a}, {o1}, {o2}, {'0' if ks == 0 else a}")
            for _ in range(2):
                if pend: A(pend.pop(0))
    for o in pend + epi_ops(1): A(o)
    if z2:
        A(f"""s_lshl_b32 s19, s{W}, 8
        s_add_u32 s19, s19, {LST}
        v_lshlrev_b32 v{T0}, 2, v0
        v_add_u32 v{T0}, s19, v{T0}
        s_mov_b32 exec_lo, 0x00010001
        s_mov_b32 exec_hi, 0x00010001""")
        for i in range(4): A(f"ds_write_b128 v{T0}, {vr(ST+4*i,4)} offset:{16*i}")
        A(f"""s_mov_b64 exec, -1
        v_lshlrev_b32 v{VST}, 2, v0
        s_mul_i32 s19, s{s_seg}, {SEG_SX}
        s_add_u32 s19, s19, {WS_SX}
        s_lshl_b32 s20, s{s_unit}, 8
        s_add_u32 s20, s20, s19
        s_waitcnt lgkmcnt(0)
        s_barrier""")
        l = A.newlabel('wz')
        A(f"s_cmp_lg_u32 s{W}, 0\ns_cbranch_scc1 {l}")
        for i in range(4): A(f"ds_read_b32 v{ST+i}, v{VST} offset:{LST+256*i}")
        A(f"""s_waitcnt lgkmcnt(0)
        v_add_f32 v{ST}, v{ST}, v{ST+1}
        v_add_f32 v{ST+2}, v{ST+2}, v{ST+3}
        v_add_f32 v{ST}, v{ST}, v{ST+2}
        v_min_u32 v{ST}, -2, v{ST}""")
        A(bs(1, ST, VST, 's20', 0, 'sc1'))
        lp = A.newlabel('wz')
        A(f"s_sleep 3\n{lp}:")
        for u in range(6): A(bl(1, ST+u, VST, 's19', 256*u, 'sc1'))
        tick(A, exitlab)
        A(f"""s_waitcnt vmcnt(0)
        v_max3_u32 v{T0}, v{ST}, v{ST+1}, v{ST+2}
        v_max3_u32 v{T1}, v{ST+3}, v{ST+4}, v{ST+5}
        v_max_u32 v{T0}, v{T0}, v{T1}
        v_cmp_eq_u32 vcc, -1, v{T0}
        s_cbranch_vccnz {lp}
        v_add_f32 v{ST}, v{ST}, v{ST+1}
        v_add_f32 v{ST+2}, v{ST+2}, v{ST+3}
        v_add_f32 v{ST+4}, v{ST+4}, v{ST+5}
        v_add_f32 v{ST}, v{ST}, v{ST+2}
        v_add_f32 v{ST}, v{ST}, v{ST+4}
        v_mul_f32 v{ST}, {hexf(1.0/768)}, v{ST}
        v_mov_b32_dpp v{ST+1}, v{ST} row_shl:4 row_mask:0xf bank_mask:0x5
        v_mov_b32_dpp v{ST+1}, v{ST} row_shr:4 row_mask:0xf bank_mask:0xa
        s_mov_b32 vcc_lo, 0xf0f0f0f0
        s_mov_b32 vcc_hi, 0xf0f0f0f0
        v_cndmask_b32 v{ST+2}, v{ST}, v{ST+1}, vcc
        v_cndmask_b32 v{ST+3}, v{ST+1}, v{ST}, vcc
        v_fma_f32 v{ST+3}, -v{ST+2}, v{ST+2}, v{ST+3}
        v_max_f32 v{ST+3}, 0, v{ST+3}
        v_add_f32 v{ST+3}, {hexf(1e-5)}, v{ST+3}
        v_rsq_f32 v{ST+3}, v{ST+3}
        v_mul_f32 v{ST+2}, v{ST+2}, v{ST+3}
        v_cndmask_b32 v{ST+2}, v{ST+2}, v{ST+3}, vcc
        ds_write_b32 v{VST}, v{ST+2} offset:{LST+1024}
        s_waitcnt lgkmcnt(0)
        {l}:
        v_and_b32 v{T0}, 0xc0, v{VST}
        s_barrier""")
        for i in range(4): A(f"ds_read_b128 {vr(ST+4*i,4)}, v{T0} offset:{LST+1024+16*i}")
        A("s_waitcnt lgkmcnt(0)")
        for ab in range(2):
            for rt in range(2):
                for i in range(4):
                    g = GT+8*rt+4*ab+i
                    A(f"v_fma_f32 v{g}, v{g}, v{ST+8*rt+4+i}, -v{ST+8*rt+i}")
                for j in range(2): A(f"v_cvt_pk_bf16_f32 v{PKD+4*ab+2*rt+j}, v{GT+8*rt+4*ab+2*j}, v{GT+8*rt+4*ab+2*j+1}")
            A(bs(4, PKD+4*ab, VL, f"s{so}", 1024*ab, 'sc1'))
    l = A.newlabel('wz')
    A(f"s_waitcnt vmcnt(0)\ns_barrier\ns_cmp_lg_u32 s{W}, 0\ns_cbranch_scc1 {l}")
    put_flag(A, s_flag, ne, T0)
    A(f"""{l}:
    s_add_u32 s{s_seg}, s{s_seg}, 2
    s_cmp_lt_u32 s{s_seg}, {NSEG}
    s_cbranch_scc1 {name}_loop""")

def sx_init(A, s_set, s_unit):
    A(f"""s_lshl_b32 s12, s{W}, 4
    s_add_u32 s12, s12, s{s_set}
    s_mul_i32 s12, s12, {SEG_SX}
    s_lshl_b32 s13, s{s_unit}, 8
    s_add_u32 s12, s12, s13
    s_add_u32 s12, s12, {WS_SX}
    v_lshlrev_b32 v16, 2, v0
    v_mov_b32 v17, -1""")
    for i in range(8):
        A(bs(1, 17, 16, 's12', 0, 'sc1'))
        if i < 7: A(f"s_add_u32 s12, s12, {2*SEG_SX}")

def spatial2(A, s_tb, s_fb, f_win, s_flag, exitlab, stamp=None):
    VL, VA, VB, VF, VSG, VN, T0, T1 = 2, 3, 4, 5, 6, 7, 8, 9
    VW = 10
    AC, FA, FB, Z1, ZF, BI = 64, 16, 32, 128, 160, 12
    sw, sz, sc, sm, sx, tg = 12, 14, 15, 16, 17, 18
    A(f"""s_load_dwordx2 {sr(sw,2)}, s[0:1], {KA_WSP}
    s_load_dwordx2 s[20:21], s[0:1], {KA_BSP}
    v_lshlrev_b32 v{VL}, 4, v0
    v_bfe_u32 v{T0}, v0, 2, 2
    v_lshlrev_b32 v{T1}, 3, v{T0}
    v_and_b32 v{T0}, 3, v0
    v_add_u32 v{T1}, v{T1}, v{T0}
    v_lshlrev_b32 v{VW}, 12, v{T1}
    v_lshrrev_b32 v{T0}, 4, v0
    v_lshl_add_u32 v{VW}, v{T0}, 4, v{VW}
    v_add_u32 v{VW+1}, {4*4096}, v{VW}
    s_lshl_b32 s{sx}, s{s_tb}, 2
    s_add_u32 s{sx}, s{sx}, s{W}
    s_lshl_b32 s{sx}, s{sx}, 17
    s_lshr_b32 s22, s{W}, 1
    s_and_b32 s23, s{W}, 1
    s_lshl_b32 s24, s{s_tb}, 1
    s_add_u32 s24, s24, s22
    s_lshl_b32 s25, s24, 7
    v_lshlrev_b32 v{T1}, 1, v{T1}
    v_add_u32 v{T1}, s25, v{T1}
    s_waitcnt lgkmcnt(0)""")
    add64(A, sw, sw, f"s{sx}")
    for t in range(4): A(f"global_load_ushort v{BI+t}, v{T1}, s[20:21] offset:{(t>>1)*64 + (t&1)*8}")
    A(f"""s_lshl_b32 s{sz}, s{s_fb}, 2
    s_add_u32 s{sz}, s{sz}, s{W}
    s_lshl_b32 s{sz}, s{sz}, 11
    s_add_u32 s{sz}, s{sz}, {WS_Z2}
    s_lshl_b32 s{sm}, s{W}, 11
    s_lshl_b32 s{sx}, s22, 12
    v_add_u32 v{VB}, s{sx}, v{VL}
    s_lshl_b32 s{sx}, s23, 12
    s_add_u32 s{sx}, s{sx}, 8192
    v_add_u32 v{VA}, s{sx}, v{VL}
    v_and_b32 v{VSG}, 1, v0
    v_mul_u32_u24 v{VF}, {12*128}, v{VSG}
    s_lshl_b32 s{sx}, s{s_fb}, 7
    s_add_u32 s{sx}, s{sx}, {f_win + 6*128}
    v_add_u32 v{VF}, s{sx}, v{VF}
    s_mul_i32 s26, s24, {4*24576}
    s_lshl_b32 s27, s{s_fb}, 12
    s_add_u32 s26, s26, s27
    s_lshl_b32 s27, s23, 11
    s_add_u32 s26, s26, s27
    s_mov_b32 s{sc}, 0
    s_waitcnt vmcnt(0)""")
    for t in range(4):
        A(f"v_lshlrev_b32 v{BI+t}, 16, v{BI+t}")
        for i in range(16): A(f"v_mov_b32 v{AC+16*t+i}, v{BI+t}")
    def need(d):
        A(f"""s_add_u32 s{tg}, s{sc}, {d}
        v_add_u32 v{VN}, s{tg}, v{VSG}
        v_and_b32 v{VN}, 1, v{VN}
        v_xor_b32 v{VN}, 1, v{VN}
        v_sub_u32 v{VN}, s{tg}, v{VN}""")
    def dma_w(slot):
        for i in range(2):
            A(f"s_add_u32 m0, s{sm}, {slot*16384 + i*1024}\nglobal_load_lds_dwordx4 v{VW+i}, {sr(sw,2)}")
        add64(A, sw, sw, 64)
    def dma_z(slot):
        A(f"s_add_u32 m0, s{sm}, {slot*16384 + 8192}")
        for i in range(2): A(f"buffer_load_dwordx4 v{VL}, {srd}, s{sz} offen offset:{i*1024} lds")
        A(f"s_add_u32 s{sz}, s{sz}, {SEG_Z}")
    def mm(slots):
        lg = Lg(A)
        def rd(n):
            o = 32*(n % 2) if False else 0
            for t in range(4): lg.ds(f"ds_read_b128 {vr(FB+4*t,4) if n % 2 == 0 else vr(224+4*t,4)}, v{VB} offset:{slots[n]*16384+1024*t}", ('b', n, t))
            for f in range(4): lg.ds(f"ds_read_b128 {vr(FA+4*f,4) if n % 2 == 0 else vr(240+4*f,4)}, v{VA} offset:{slots[n]*16384+1024*f}", ('a', n, f))
        rd(0)
        for n in range(len(slots)):
            fb_, fa_ = (FB, FA) if n % 2 == 0 else (224, 240)
            for f in range(4):
                lg.need(('a', n, f))
                if f == 3 and n + 1 < len(slots): pass
                for t in range(4):
                    a = vr(AC+16*t+4*f, 4)
                    A(f"v_mfma_f32_16x16x32_bf16 {a}, {vr(fa_+4*f,4)}, {vr(fb_+4*t,4)}, {a}")
                if f == 0 and n + 1 < len(slots): rd(n+1)
    def z1_load():
        A(f"v_subrev_u32 v{T1}, {6*128}, v{VF}\ns_lshl_b32 s{sc}, s{s_tb}, 2")
        need(4)
        l, l2 = A.newlabel('z1'), A.newlabel('z1')
        A(f"s_branch {l2}\n{l}:\ns_sleep 2"); tick(A, exitlab)
        A(f"""{l2}:
        buffer_load_dword v{T0}, v{T1}, {srd}, 0 offen sc1
        s_waitcnt vmcnt(0)
        v_cmp_gt_u32 vcc, v{VN}, v{T0}
        s_cbranch_vccnz {l}
        s_add_u32 s27, s26, {WS_Z1}""")
        for t in range(4):
            for p in range(2): A(bl(4, Z1+8*t+4*p, VL, 's27', 1024*p))
            if t < 3: A("s_add_u32 s27, s27, 24576")
        A("s_waitcnt vmcnt(0)")
        for i in range(32): A(f"v_lshlrev_b32 v{ZF+2*i}, 16, v{Z1+i}\nv_and_b32 v{ZF+2*i+1}, 0xffff0000, v{Z1+i}")
        A(f"s_mov_b32 s{sc}, {NSEG-1}")
    A("s_barrier\nsp_top:")
    A(f"s_cmp_ge_u32 s{sc}, {NSEG-4}\ns_cbranch_scc1 sp_one")
    need(4)
    A(f"""buffer_load_dword v{T0}, v{VF}, {srd}, 0 offen sc1
    s_waitcnt vmcnt(0)
    v_cmp_gt_u32 vcc, v{VN}, v{T0}
    s_cmp_eq_u64 vcc, 0
    s_cselect_b32 s19, 1, 0
    v_mov_b32 v{T0}, s19
    v_mov_b32 v{T1}, 65536
    s_cmp_lg_u32 s{W}, 0
    s_cbranch_scc1 sp_nb
    ds_write_b32 v{T1}, v{T0}
    s_waitcnt lgkmcnt(0)
    sp_nb:
    s_barrier
    ds_read_b32 v{T0}, v{T1}
    s_waitcnt lgkmcnt(0)
    v_readfirstlane_b32 s19, v{T0}
    s_cmp_eq_u32 s19, 0
    s_cbranch_scc1 sp_one""")
    for sl in range(4): dma_w(sl); dma_z(sl)
    A("s_waitcnt vmcnt(0)\ns_barrier")
    mm([0, 1, 2, 3])
    A(f"s_add_u32 s{sc}, s{sc}, 4\ns_branch sp_top\nsp_one:\ns_barrier")
    dma_w(0)
    l = A.newlabel('sp')
    A(f"s_cmp_lg_u32 s{sc}, {NSEG-1}\ns_cbranch_scc1 {l}")
    z1_load()
    A(f"{l}:")
    need(1)
    l, l2 = A.newlabel('sp'), A.newlabel('sp')
    A(f"s_branch {l2}\n{l}:\ns_sleep {SPS}"); tick(A, exitlab)
    A(f"""{l2}:
    buffer_load_dword v{T0}, v{VF}, {srd}, 0 offen sc1
    s_waitcnt vmcnt(0)
    v_cmp_gt_u32 vcc, v{VN}, v{T0}
    s_cbranch_vccnz {l}""")
    dma_z(0)
    A("s_waitcnt vmcnt(0)\ns_barrier")
    mm([0])
    A(f"s_add_u32 s{sc}, s{sc}, 1\ns_cmp_lt_u32 s{sc}, {NSEG}\ns_cbranch_scc1 sp_top")
    if stamp: stamp(A)
    A(f"s_add_u32 s27, s26, {WS_GY}")
    for t in range(4):
        for p in range(2):
            a = AC+16*t+8*p; z = ZF+16*t+8*p
            for j in range(4): A(f"v_pk_mul_f32 {vr(a+2*j,2)}, {vr(a+2*j,2)}, {vr(z+2*j,2)}")
            for j in range(4): A(f"v_cvt_pk_bf16_f32 v{Z1+8*t+4*p+j}, v{a+2*j}, v{a+2*j+1}")
            A(bs(4, Z1+8*t+4*p, VL, 's27', 1024*p, 'sc1'))
        if t < 3: A("s_add_u32 s27, s27, 24576")
    l = A.newlabel('sp')
    A(f"s_mov_b32 s19, 1\ns_waitcnt vmcnt(0)\ns_barrier\ns_cmp_lg_u32 s{W}, 0\ns_cbranch_scc1 {l}")
    put_flag(A, s_flag, 19, T0)
    A(f"{l}:")
```

```python
from common import *

def load_w_rows(A, s_w, rowstride, nch, nrows, rpr, depth, s_base, v_lane, s_t, vt, reads):
    rpi = 64 // nch
    ni = -(-rpr // rpi)
    slot = rpr * nch * 16
    assert depth * ni <= 63 and nrows % rpr == 0
    voff, t = vt, vt + 1
    magic = (65536 + nch - 1) // nch
    A(f"""v_mul_u32_u24 v{t}, {magic}, v{v_lane}
    v_lshrrev_b32 v{t}, 16, v{t}
    s_mov_b32 s{s_t}, {rowstride - nch*16}
    v_mul_lo_u32 v{voff}, v{t}, s{s_t}
    v_lshl_add_u32 v{voff}, v{v_lane}, 4, v{voff}""")
    def setmask(rows):
        mask = (1 << (rows*nch)) - 1
        A(f"s_mov_b32 exec_lo, 0x{mask & 0xffffffff:x}\ns_mov_b32 exec_hi, 0x{mask >> 32:x}")
    def issue(r):
        setmask(rpi)
        for i in range(ni):
            rows = min(rpi, rpr - i*rpi)
            if rows != rpi: setmask(rows)
            A(f"s_add_u32 m0, s{s_base}, {(r%depth)*slot + i*rpi*nch*16}")
            A(f"global_load_lds_dwordx4 v{voff}, {sr(s_w,2)}")
            add64(A, s_w, s_w, rows*rowstride)
        A("s_mov_b64 exec, -1")
    nr = nrows // rpr
    for r in range(min(depth, nr)): issue(r)
    for r in range(nr):
        A(f"s_waitcnt vmcnt({ni*min(depth-1, nr-1-r)})")
        reads(A, r, (r%depth)*slot)
        A("s_waitcnt lgkmcnt(0)")
        if r + depth < nr: issue(r+depth)

def wreg_u(ct, kk): return 256 + 4*(ct*6+kk)

def u_load_w(A, s_w, s_wave, v_lane, s_t, vt):
    tr = vt + 2; t = vt + 3
    A(f"""v_lshrrev_b32 v{t}, 4, v{v_lane}
    v_lshlrev_b32 v{tr}, 3, v{t}
    v_bfe_u32 v{t}, v{v_lane}, 2, 2
    v_add_u32 v{tr}, v{tr}, v{t}
    v_mul_u32_u24 v{tr}, 320, v{tr}
    v_and_b32 v{t}, 3, v{v_lane}
    v_lshl_add_u32 v{tr}, v{t}, 3, v{tr}
    s_mul_i32 s{s_t}, s{s_wave}, 40960
    v_add_u32 v{tr}, s{s_t}, v{tr}""")
    def reads(A, kk, off):
        for ct in range(10):
            for q in range(2):
                A(f"ds_read_b64_tr_b16 {ur(wreg_u(ct,kk)+2*q,2)}, v{tr} offset:{off + q*4*320 + ct*32}")
    load_w_rows(A, s_w, 1280, 20, 192, 32, 4, s_t, v_lane, s_t+1, vt, reads)

VF0 = 64
UACC = 160
UEP = 176

def u_loop(A, name, s_v, s_o, s_cnt, s_wave, v_lane, s_t, vt, flags, mid_hook=None, pre_dma=None):
    vdma, vrd, vo = vt, vt+1, vt+2
    sdm = s_t
    BUF = 12288
    A(f"""v_lshlrev_b32 v{vrd}, 4, v{v_lane}
    v_mov_b32 v{vo}, v{vrd}
    s_mul_i32 s{sdm}, s{s_wave}, 3072
    v_add_u32 v{vdma}, s{sdm}, v{vrd}
    s_barrier""")
    def dma(buf):
        if pre_dma: pre_dma(A)
        A(f"s_add_u32 m0, s{sdm}, {buf*BUF}")
        for i in range(3):
            A(f"global_load_lds_dwordx4 v{vdma}, {sr(s_v,2)} offset:{i*1024}")
        add64(A, s_v, s_v, SEG_QKV)
    dma(0); dma(1)
    A("s_waitcnt vmcnt(3)\ns_barrier")
    for f in range(12):
        A(f"ds_read_b128 {vr(VF0+4*f,4)}, v{vrd} offset:{f*1024}")
    A(f"s_mov_b32 s{s_t+1}, 0")
    A(f"{name}_loop:")
    def epi(a, e, ct, step, guard):
        if step < 4:
            rt, j = divmod(step, 2)
            A(f"v_cvt_pk_bf16_f32 v{e+step}, v{a+4*rt+2*j}, v{a+4*rt+2*j+1}")
        elif step == 4:
            if guard:
                l = A.newlabel('skip'); A(f"s_cmp_eq_u32 s{s_t+1}, 0\ns_cbranch_scc1 {l}")
            A(f"global_store_dwordx4 v{vo}, {vr(e,4)}, {sr(s_o,2)} offset:{(ct%4)*1024} {flags}")
            if ct % 4 == 3: add64(A, s_o, s_o, 4096)
            if ct == 9: add64(A, s_o, s_o, SEG_U - 8192)
            if guard: A(f"{l}:")
    for par in range(2):
        cur = VF0 + 48*par; nxt = VF0 + 48*(1-par)
        A("s_waitcnt lgkmcnt(0)")
        for ct in range(10):
            a = UACC + 8*(ct%2); pa = UACC + 8*(1-ct%2)
            pct = (ct + 9) % 10
            i = 0
            for kk in range(6):
                for rt in range(2):
                    acc = vr(a+4*rt, 4)
                    A(f"v_mfma_f32_16x16x32_bf16 {acc}, {vr(cur+4*(rt*6+kk),4)}, {ur(wreg_u(ct,kk),4)}, {'0' if kk == 0 else acc}")
                    if 4 <= i < 9: epi(pa, UEP+4*(1-ct%2), pct, i-4, guard=(ct == 0 and par == 0))
                    if ct >= 6 and i % 4 == 0:
                        f = (ct-6)*3 + i//4
                        A(f"ds_read_b128 {vr(nxt+4*f,4)}, v{vrd} offset:{(1-par)*BUF + f*1024}")
                    i += 1
            if ct == 4:
                A("s_waitcnt vmcnt(4)\ns_barrier")
                if mid_hook: mid_hook(A, par)
                dma(par)
    A(f"""s_mov_b32 s{s_t+1}, 1
    s_sub_u32 s{s_cnt}, s{s_cnt}, 1
    s_cmp_lg_u32 s{s_cnt}, 0
    s_cbranch_scc1 {name}_loop""")
    for st in range(5): epi(UACC+8, UEP+4, 9, st, False)
    A("s_waitcnt lgkmcnt(0)")

def u_loop2(A, name, s_v, s_o, s_flag, v_fl, wait_flags, put_flag, srd, exitlab, st=None):
    vl, vp = 8, 9
    seg, ne, pf, sa = 16, 17, 18, 12
    A(f"v_lshlrev_b32 v{vl}, 4, v0\ns_mov_b32 s{seg}, 0\ns_mov_b32 s{pf}, 0")
    def loads(base):
        L = []
        for f in range(12):
            x = f"s_add_u32 s{sa}, s{s_v}, {(f//4)*4096}\n" if f % 4 == 0 else ''
            x += f"buffer_load_dwordx4 {vr(base+4*f,4)}, v{vl}, {srd}, s{sa} offen offset:{(f%4)*1024}"
            if f == 11: x += f"\ns_add_u32 s{s_v}, s{s_v}, {SEG_QKV}" + wrap(s_v, WS_VF + RING*SEG_QKV, RING*SEG_QKV, 13)
            L.append(x)
        return L
    def epi(a, e, ct, step):
        if step < 4:
            rt, j = divmod(step, 2)
            A(f"v_cvt_pk_bf16_f32 v{e+step}, v{a+4*rt+2*j}, v{a+4*rt+2*j+1}")
        else:
            A(f"buffer_store_dwordx4 {vr(e,4)}, v{vl}, {srd}, s{s_o} offen offset:{(ct%4)*1024} sc1")
            if ct % 4 == 3: A(f"s_add_u32 s{s_o}, s{s_o}, 4096")
            if ct == 9: A(f"s_add_u32 s{s_o}, s{s_o}, {SEG_U - 8192}" + wrap(s_o, WS_UF + RING*SEG_U, RING*SEG_U, 13))
    A(f"{name}_loop:")
    for par in range(2):
        cur = VF0 + 48*par; nxt = VF0 + 48*(1-par)
        l1, l2, l3 = A.newlabel('u'), A.newlabel('u'), A.newlabel('u')
        A(f"s_cmp_lg_u32 s{pf}, 0\ns_cbranch_scc1 {l1}\ns_waitcnt vmcnt(0)")
        l0 = A.newlabel('u')
        A(f"s_cmp_eq_u32 s{seg}, 0\ns_cbranch_scc1 {l0}")
        put_flag(A, s_flag, seg, vp)
        A(f"{l0}:")
        A(f"s_add_u32 s{ne}, s{seg}, 1")
        if st: st(A, 4*par)
        wait_flags(A, v_fl, vp, ne, exitlab)
        if st: st(A, 4*par+1)
        for x in loads(cur): A(x)
        A(f"s_waitcnt vmcnt(0)\ns_branch {l2}\n{l1}:\ns_waitcnt vmcnt(9)\ns_cmp_lt_u32 s{seg}, 4\ns_cselect_b32 s{pf}, 2, s{pf}\ns_cmp_eq_u32 s{pf}, 1\ns_cbranch_scc1 {l2}\ns_waitcnt vmcnt(0)")
        put_flag(A, s_flag, seg, vp)
        A(f"{l2}:")
        if st: st(A, 4*par+2)
        A(f"buffer_load_dword v{vp+1}, v{v_fl}, {srd}, 0 offen sc1\ns_add_u32 s{ne}, s{seg}, 2")
        for ct in range(10):
            a = UACC + 8*(ct % 2); pa = UACC + 8*(1-ct % 2)
            i = 0
            for kk in range(6):
                for rt in range(2):
                    acc = vr(a+4*rt, 4)
                    A(f"v_mfma_f32_16x16x32_bf16 {acc}, {vr(cur+4*(rt*6+kk),4)}, {ur(wreg_u(ct,kk),4)}, {'0' if kk == 0 else acc}")
                    if ct >= 1 and 4 <= i < 9: epi(pa, UEP+4*(1-ct % 2), ct-1, i-4)
                    i += 1
            if ct == 2:
                A("s_waitcnt vmcnt(2)")
                put_flag(A, s_flag, seg, vp)
                A(f"""s_mov_b32 s{pf}, 0
                v_cmp_gt_u32 vcc, s{ne}, v{vp+1}
                s_cbranch_vccnz {l3}""")
                for x in loads(nxt): A(x)
                A(f"s_mov_b32 s{pf}, 1\n{l3}:")
            if ct == 5: A(f"buffer_load_dword v{vp+1}, v{v_fl}, {srd}, 0 offen sc1")
            if ct == 8:
                l4 = A.newlabel('u')
                A(f"""s_cmp_lg_u32 s{pf}, 0
                s_cbranch_scc1 {l4}
                s_waitcnt vmcnt(3)
                v_cmp_gt_u32 vcc, s{ne}, v{vp+1}
                s_cbranch_vccnz {l4}""")
                for x in loads(nxt): A(x)
                A(f"s_mov_b32 s{pf}, 2\n{l4}:")
        for sp in range(5): epi(UACC+8, UEP+4, 9, sp)
        if st: st(A, 4*par+3)
        A(f"s_add_u32 s{seg}, s{seg}, 1")
    A(f"s_cmp_lt_u32 s{seg}, {NSEG}\ns_cbranch_scc1 {name}_loop\ns_waitcnt vmcnt(0)")
    put_flag(A, s_flag, seg, vp)
```

```python
import sys, os
from common import *
from r_ln import *
from r_proj import *
from r_u import *
import r_rec as R
from r_rec import checkin, waitall, wait_flags, wait_flags_wg, put_flag, tick
from r_tail import *
KNAME = 'sequential_preLN__memory_aug_recurrent_mem_tr__mixer_gmlp__prompt_kernel'
PFAB = int(os.environ.get('PFAB', '1'))
PFV = int(os.environ.get('PFV', '1'))
OUTF = os.environ.get('OUTF', '')
PFU = int(os.environ.get('PFU', '1'))
PFWO = int(os.environ.get('PFWO', '1'))
PFUN = int(os.environ.get('PFUN', '2'))
PFO = int(os.environ.get('PFO', '0'))
VFIRST = int(os.environ.get('VFIRST', '0'))
STAMP = int(os.environ.get('STAMP', '0'), 0)
DBG = 90
F_QKV = WS_FLAG
F_U = WS_FLAG + 0x4000
F_X = 7*32768
F_LN = F_X + 5120
F_WIN = WS_FLAG + 0x5000
F_GY = WS_FLAG + 0x6000
EXIT = 'mega_done'
X, TK, W = R.S_GRP, 2, 3
srd = R.srd

def wave0(A, fn):
    l = A.newlabel('w0')
    A(f"s_cmp_lg_u32 s{W}, 0\ns_cbranch_scc1 {l}")
    fn()
    A(f"{l}:")

def rt_stamp(A, idx, vt=15):
    if not STAMP: return
    def f():
        A(f"""s_memrealtime s[86:87]
        s_lshl_b32 s84, s{X}, 5
        s_add_u32 s84, s84, s{TK}
        s_lshl_b32 s84, s84, 6
        s_add_u32 s84, s84, {WS_STAT + 65536 + 4*idx}
        s_waitcnt lgkmcnt(0)""")
        put_flag(A, 84, 86, vt)
    wave0(A, f)

def cy_stamp(A, idx, vt=15):
    if not STAMP: return
    def f():
        A(f"""s_memtime s[86:87]
        s_lshl_b32 s84, s{X}, 5
        s_add_u32 s84, s84, s{TK}
        s_lshl_b32 s84, s84, 6
        s_add_u32 s84, s84, {WS_STAT + 65536 + 4*idx}
        s_waitcnt lgkmcnt(0)""")
        put_flag(A, 84, 86, vt)
    wave0(A, f)

def ln1_duty(A, s_idx):
    A(f"""s_load_dwordx2 s[12:13], s[0:1], {KA_X}
    s_lshl_b32 s16, s{s_idx}, 2
    s_add_u32 s16, s16, s{W}
    s_mul_i32 s16, s16, 20480
    s_waitcnt lgkmcnt(0)""")
    add64(A, 12, 12, 's16')
    A(f"s_add_u32 s16, s16, {WS_XNF}")
    add64(A, 14, 4, 's16')
    ln_rowtile(A, 12, 14, 0, 'sc1')

def pf_v(A, s_unit, PFV=PFV, PFO=PFO, s_u6=35, dov=True):
    if not PFV: return
    A(f"""s_load_dwordx2 s[12:13], s[0:1], {KA_WV}
    v_lshrrev_b32 v24, 2, v0
    v_mul_u32_u24 v24, 12288, v24
    v_and_b32 v25, 3, v0
    v_lshl_add_u32 v24, v25, 7, v24
    s_lshl_b32 s14, s{s_unit}, 9
    s_mul_i32 s15, s{W}, {16*12288}
    s_add_u32 s14, s14, s15
    s_add_u32 s14, s14, {64*12288}
    s_waitcnt lgkmcnt(0)""")
    add64(A, 12, 12, 's14')
    for c in range(5 if dov else 0):
        A("global_load_dword v26, v24, s[12:13]")
        if c < 4: add64(A, 12, 12, 128*12288)
    if PFO:
        A(f"""s_load_dwordx2 s[12:13], s[0:1], {KA_WO}
        s_lshl_b32 s14, s{s_u6}, 2
        s_add_u32 s14, s14, s{W}
        s_mul_hi_u32 s15, s14, {-(-(1<<32)//3)}
        s_mul_i32 s16, s15, 3
        s_sub_u32 s16, s14, s16
        s_sub_u32 s17, s{X}, 4
        s_lshl_b32 s17, s17, 3
        s_add_u32 s15, s15, s17
        s_mul_i32 s15, s15, 245760
        s_mul_i32 s16, s16, 13696
        s_add_u32 s15, s15, s16
        v_min_u32 v25, 52, v0
        v_lshlrev_b32 v25, 7, v25
        s_waitcnt lgkmcnt(0)""")
        add64(A, 12, 12, 's15')
        rr = [1, 3, 5] if PFO == 1 else list(range(6))
        prev = 0
        for r in rr:
            for hf in range(2):
                off = r*40960 + hf*6784
                add64(A, 12, 12, off - prev); prev = off
                A("global_load_dword v26, v25, s[12:13]")
    if PFV > 1:
        n = PFV - 1
        A(f"s_load_dwordx4 s[16:19], s[0:1], {KA_WQ}\ns_add_u32 s14, s14, {(5-n)*128*12288}\ns_waitcnt lgkmcnt(0)")
        add64(A, 16, 16, 's14'); add64(A, 18, 18, 's14')
        for c in range(n):
            A("global_load_dword v26, v24, s[18:19]\nglobal_load_dword v26, v24, s[16:17]")
            if c < n-1: add64(A, 16, 16, 128*12288); add64(A, 18, 18, 128*12288)

def pf_ab(A):
    if not PFAB: return
    l, l2 = A.newlabel('pf'), A.newlabel('pf')
    A(f"""s_and_b32 s18, s{TK}, 8
    s_lshl_b32 s18, s18, 1
    s_add_u32 s18, s18, {KA_WQ}
    s_load_dwordx4 s[12:15], s[0:1], s18
    s_and_b32 s16, s{TK}, 7
    s_lshl_b32 s17, s{X}, 3
    s_add_u32 s16, s16, s17
    v_mul_u32_u24 v24, {(65536+2)//3}, v0
    v_lshrrev_b32 v24, 16, v24
    v_mul_u32_u24 v25, 3, v24
    v_sub_u32 v25, v0, v25
    v_min_u32 v24, 15, v24
    v_mul_u32_u24 v24, 12288, v24
    v_lshl_add_u32 v24, v25, 7, v24
    s_mul_i32 s17, s16, 384
    s_mul_i32 s19, s{W}, {16*12288}
    s_add_u32 s17, s17, s19
    s_add_u32 s17, s17, {64*12288}
    s_waitcnt lgkmcnt(0)
    s_mov_b32 exec_hi, 0xffff""")
    add64(A, 12, 12, 's17')
    for c in range(5):
        A("global_load_dword v26, v24, s[12:13]")
        if c < 4: add64(A, 12, 12, 128*12288)
    A(f"s_cmp_lg_u32 s18, {KA_WQ}\ns_cbranch_scc1 {l}")
    add64(A, 14, 14, 's17')
    for c in range(5):
        A("global_load_dword v26, v24, s[14:15]")
        if c < 4: add64(A, 14, 14, 128*12288)
    A(f"""s_branch {l2}
    {l}:
    s_mov_b32 exec_hi, 0xff
    v_lshlrev_b32 v24, 7, v0
    s_mul_i32 s17, s16, 245760
    s_mul_i32 s19, s{W}, 10240
    s_add_u32 s17, s17, s19
    s_add_u32 s17, s17, 40960""")
    add64(A, 14, 14, 's17')
    if PFWO == 2: A("s_waitcnt vmcnt(0)")
    for c in range(3 if PFWO else 0):
        A("global_load_dword v26, v24, s[14:15]")
        add64(A, 14, 14, 5120)
        A("global_load_dword v26, v24, s[14:15]")
        if c < 2: add64(A, 14, 14, 81920-5120)
    A(f"{l2}:\ns_mov_b64 exec, -1")

def k_mega(A):
    A(f""".p2align 8
    {KNAME}:
    s_cmp_ge_u32 s2, 256
    s_cbranch_scc1 {EXIT}
    s_load_dwordx2 s[4:5], s[0:1], {KA_WS}
    s_load_dwordx2 s[{DBG}:{DBG+1}], s[0:1], {KA_DBG}
    s_load_dwordx2 s[16:17], s[0:1], {KA_X}
    s_getreg_b32 s9, hwreg(HW_REG_XCC_ID)
    s_and_b32 s9, s9, 15
    s_and_b32 s{X}, s9, 7
    v_lshrrev_b32 v1, 6, v0
    v_readfirstlane_b32 s{W}, v1
    v_and_b32 v0, 63, v0
    s_mov_b32 s{R.S_TO}, 0
    s_mov_b32 s6, 0x10000000
    s_mov_b32 s7, 0x20000""")
    if STAMP: A("s_memrealtime s[88:89]")
    A(f"""s_waitcnt lgkmcnt(0)
    v_mov_b32 v1, 0
    s_mov_b32 s19, -1
    s_cmp_lg_u32 s2, 0
    s_cbranch_scc1 mega_nocal
    s_cmp_lg_u32 s{W}, 3
    s_cbranch_scc1 mega_calj
    s_mov_b64 exec, 1
    v_mov_b32 v2, {(1<<21) - 16384}
    v_mov_b32 v3, {(1<<21) - 8192}
    s_mov_b32 s20, 0""")
    for rep in range(4):
        a, b = (2, 3) if rep % 2 == 0 else (3, 2)
        A(f"""global_store_dword v{a}, v1, s[4:5] sc1
        global_store_dword v{b}, v1, s[4:5] sc1
        s_waitcnt vmcnt(1)
        s_memtime s[12:13]
        s_waitcnt vmcnt(0)
        s_memtime s[14:15]
        s_waitcnt lgkmcnt(0)
        s_sub_u32 s14, s14, s12
        s_min_u32 s14, s14, 400
        {'s_add_u32' if rep % 2 == 0 else 's_sub_u32'} s20, s20, s14""")
    A(f"""s_cmp_lt_i32 s20, 0
    s_cselect_b32 s14, 8193, 1
    s_and_b32 s15, s9, 4
    s_lshl_b32 s15, s15, 11
    s_xor_b32 s14, s14, s15
    v_mov_b32 v2, {4*R.D_POL}
    v_mov_b32 v4, s14
    v_mov_b32 v5, s20
    global_store_dwordx2 v2, v[4:5], s[{DBG}:{DBG+1}] sc1
    s_mov_b64 exec, -1
    mega_calj:
    s_barrier
    s_branch mega_noln
    mega_nocal:
    s_cmp_eq_u32 s{W}, 3
    s_cselect_b32 s19, s2, -1
    s_lshl_b32 s12, s2, 2
    s_add_u32 s12, s12, s{W}
    s_cmp_eq_u32 s12, 6
    s_cselect_b32 s19, 0, s19
    s_cmp_eq_u32 s19, -1
    s_cbranch_scc1 mega_noln""")
    ln1_small(A, 16, 19, srd, WS_XNF)
    A(f"""mega_noln:
    s_cmp_lg_u32 s{W}, 0
    s_cbranch_scc1 mega_t1
    s_mov_b64 exec, 1
    v_mov_b32 v3, 1
    s_mov_b32 s12, 0
    mega_tk:
    s_cmp_eq_u32 s{X}, s9
    s_cbranch_scc1 mega_home
    v_mov_b32 v2, {4*R.D_SLOW}
    global_store_dword v2, v3, s[{DBG}:{DBG+1}] sc1
    s_waitcnt vmcnt(0)
    mega_home:
    s_and_b32 s14, s{X}, 3
    s_lshl_b32 s14, s14, 6
    s_and_b32 s15, s{X}, 4
    s_add_u32 s14, s14, s15
    v_mov_b32 v2, s14
    global_atomic_add v4, v2, v3, s[{DBG}:{DBG+1}] sc0
    s_waitcnt vmcnt(0)
    v_readfirstlane_b32 s14, v4
    s_cmp_lt_u32 s14, 32
    s_cbranch_scc1 mega_got
    s_add_u32 s{X}, s{X}, 1
    s_and_b32 s{X}, s{X}, 7
    s_add_u32 s12, s12, 1
    s_cmp_lt_u32 s12, 8
    s_cbranch_scc1 mega_tk
    mega_got:
    v_mov_b32 v5, s{X}
    ds_write_b64 v1, v[4:5]
    s_waitcnt lgkmcnt(0)
    s_mov_b64 exec, -1
    mega_t1:
    s_barrier
    ds_read_b64 v[4:5], v1
    s_waitcnt lgkmcnt(0)
    v_readfirstlane_b32 s{TK}, v4
    v_readfirstlane_b32 s{X}, v5
    s_cmp_eq_u32 s19, -1
    s_cbranch_scc1 mega_noln2
    s_and_b32 s18, s19, 3
    s_lshl_b32 s18, s18, 6
    s_add_u32 s18, s18, {4*R.D_LN}
    v_mov_b32 v2, s18
    v_mov_b32 v3, 1
    s_mov_b64 exec, 1
    s_waitcnt vmcnt(0)
    global_atomic_add v2, v3, s[{DBG}:{DBG+1}]
    s_mov_b64 exec, -1
    mega_noln2:
    s_barrier
    s_cmp_ge_u32 s{TK}, 32
    s_cbranch_scc1 {EXIT}""")
    if STAMP:
        A("s_mov_b32 s71, s88")
        for i in range(72, 88): A(f"s_mov_b32 s{i}, 0")
        wave0(A, lambda: (A(f"s_lshl_b32 s84, s{X}, 5\ns_add_u32 s84, s84, s{TK}\ns_lshl_b32 s84, s84, 6\ns_add_u32 s84, s84, {WS_STAT+65536}"), put_flag(A, 84, 88, 15)))
    rt_stamp(A, 1)
    A(f"""s_cmp_ge_u32 s{X}, 4
    s_cbranch_scc1 mega_hi
    s_cmp_ge_u32 s{TK}, 26
    s_cbranch_scc1 mega_ln2
    s_and_b32 s{R.S_HL}, s{TK}, 7
    s_cmp_ge_u32 s{TK}, 16
    s_cbranch_scc1 mega_R
    s_cmp_ge_u32 s{TK}, 8
    s_cbranch_scc1 mega_B
    s_branch mega_A
    mega_hi:
    s_cmp_ge_u32 s{TK}, 26
    s_cbranch_scc1 mega_win
    s_cmp_ge_u32 s{TK}, 18
    s_cbranch_scc1 mega_U""")
    A(f"""s_mul_hi_u32 s22, s{TK}, {-(-(1<<32)//6)}
    s_mul_i32 s23, s22, 6
    s_sub_u32 s23, s{TK}, s23
    s_sub_u32 s22, 2, s22
    s_sub_u32 s20, s{X}, 4
    s_mul_i32 s20, s20, 6
    s_add_u32 s23, s23, s20
    s_mul_i32 s30, s22, 24
    s_add_u32 s30, s30, s23
    s_lshl_b32 s30, s30, 7
    s_add_u32 s30, s30, {F_QKV}
    s_lshl_b32 s24, s22, 3
    s_add_u32 s24, s24, {KA_WQ}
    s_load_dwordx2 s[32:33], s[0:1], s24
    s_lshl_b32 s25, s23, 2
    s_add_u32 s25, s25, s{W}
    s_lshl_b32 s26, s25, 7
    s_mul_hi_u32 s27, s25, {-(-(1<<32)//3)}
    s_mul_i32 s28, s27, 3
    s_sub_u32 s28, s25, s28
    s_mul_i32 s27, s27, 12288
    s_lshl_b32 s28, s28, 11
    s_add_u32 s27, s27, s28
    s_mul_i32 s28, s22, {WS_KF-WS_QF}
    s_add_u32 s27, s27, s28
    s_add_u32 s27, s27, {WS_QF}""")
    A("s_waitcnt lgkmcnt(0)")
    add64(A, 32, 32, 's26'); add64(A, 34, 4, 's27'); add64(A, 36, 4, WS_XNF)
    if VFIRST:
        A(f"s_sub_u32 s21, s23, s20\ns_cmp_eq_u32 s22, 2\ns_cbranch_scc1 proj_go\ns_cmp_eq_u32 s22, 0\ns_cbranch_scc1 proj_hq")
        pf_v(A, 23, 1, 0)
        A(f"s_waitcnt vmcnt({VFIRST-1})\ns_branch proj_go\nproj_hq:")
        pf_v(A, 23, 1, 1, 21, dov=False)
        A(f"s_waitcnt vmcnt({VFIRST-1})\nproj_go:")
    A(f"s_mov_b32 s16, {NSEG}\nv_lshlrev_b32 v2, 4, v0\ns_mul_i32 s18, s{W}, 10240\nv_add_u32 v3, s18, v2\ns_mov_b32 s19, 0")
    def xn0(A):
        for i in range(10):
            if i % 4 == 0: A(f"s_add_u32 m0, s18, {(i//4)*4096}")
            A(f"global_load_lds_dwordx4 v3, s[36:37] offset:{(i%4)*1024}")
            if i % 4 == 3: add64(A, 36, 36, 4096)
        add64(A, 36, 36, SEG_XN - 8192)
    def whook(A, c, ph):
        if c == 3 and ph == 0:
            waitall(A, DBG, EXIT, 2, setup_only=True)
            A(f"global_load_dword v18, v16, s[{DBG}:{DBG+1}] sc1")
        if c == 6 and ph == 1:
            l = A.newlabel('x0')
            A(f"v_cmp_gt_u32 vcc, v17, v18\ns_cbranch_vccnz {l}")
            xn0(A)
            A(f"s_mov_b32 s19, 1\n{l}:")
    load_w64(A, 32, 12288, W, 0, 12, 4, depth=3, base=65536, hook=whook)
    rt_stamp(A, 2)
    A("s_cmp_lg_u32 s19, 0\ns_cbranch_scc1 proj_x0")
    waitall(A, DBG, EXIT, 2)
    xn0(A)
    A("proj_x0:")
    rt_stamp(A, 3); cy_stamp(A, 8)
    def mid(A):
        wave0(A, lambda: (A(f"s_sub_u32 s17, {NSEG}, s16"), put_flag(A, 30, 17, 12)))
        if STAMP & 0x100:
            for k in range(3):
                l = A.newlabel('ms'); A(f"s_cmp_lg_u32 s16, {NSEG-k}\ns_cbranch_scc1 {l}"); rt_stamp(A, 10+k); A(f"{l}:")
    proj_loop(A, 'proj', 36, 16, W, 0, make_epi_qkv(34, 2, os.environ.get('PST', 'sc1')), mid_hook=mid, s_t=12, vt=8, seg0_done=True, nmid=int(os.environ.get('NMID', '19')))
    A("s_waitcnt vmcnt(0)\ns_barrier"); mid(A)
    rt_stamp(A, 4); cy_stamp(A, 9)
    A(f"s_branch mega_sp")
    A(f"""mega_U:
    s_load_dwordx2 s[32:33], s[0:1], {KA_WO}
    s_sub_u32 s20, s{X}, 4
    s_lshl_b32 s20, s20, 3
    s_add_u32 s20, s20, s{TK}
    s_sub_u32 s20, s20, 18
    s_lshl_b32 s30, s20, 7
    s_add_u32 s30, s30, {F_U}
    s_mul_i32 s22, s20, 245760
    s_mul_i32 s23, s{W}, 320
    s_add_u32 s22, s22, s23
    s_mul_i32 s23, s20, 12288
    s_add_u32 s23, s23, {WS_VF}
    s_mul_i32 s24, s20, 40960
    s_mul_i32 s25, s{W}, 10240
    s_add_u32 s24, s24, s25
    s_add_u32 s24, s24, {WS_UF}
    s_mul_i32 s25, s20, 192
    v_and_b32 v3, 1, v0
    v_mul_u32_u24 v3, 191, v3
    v_add_u32 v3, s25, v3
    v_lshrrev_b32 v3, 8, v3
    v_lshlrev_b32 v3, 7, v3
    v_add_u32 v3, {F_QKV + 48*128}, v3""")
    A("s_waitcnt lgkmcnt(0)")
    add64(A, 32, 32, 's22')
    if PFU:
        A(f"""s_load_dwordx4 s[12:15], s[0:1], {KA_WQ}
        v_cmp_le_u32 vcc, 24, v0
        v_cndmask_b32 v24, 0, 1, vcc
        v_mul_u32_u24 v24, {12288 - 24*128}, v24
        v_lshl_add_u32 v24, v0, 7, v24
        s_sub_u32 s16, s{TK}, 18
        s_lshl_b32 s16, s16, 2
        s_add_u32 s16, s16, s{W}
        s_mul_i32 s16, s16, {2*12288}
        s_sub_u32 s17, s{X}, 4
        s_mul_i32 s17, s17, 3072
        s_add_u32 s16, s16, s17
        s_add_u32 s16, s16, {64*12288}
        s_waitcnt lgkmcnt(0)
        s_mov_b32 exec_hi, 0xffff""")
        add64(A, 12, 12, 's16'); add64(A, 14, 14, 's16')
        for c in range(PFUN):
            A("global_load_dword v26, v24, s[14:15]\nglobal_load_dword v26, v24, s[12:13]")
            if c < PFUN-1: add64(A, 12, 12, 128*12288); add64(A, 14, 14, 128*12288)
        A(f"s_mov_b64 exec, -1\ns_waitcnt vmcnt({PFU-1})")
        rt_stamp(A, 3)
    u_load_w(A, 32, W, 0, 12, 4)
    rt_stamp(A, 2)
    A(f"v_lshlrev_b32 v2, 4, v0\ns_lshl_b32 s12, s{W}, 2\ns_add_u32 s30, s30, s12")
    waitall(A, DBG, EXIT, 2)
    def ust(A, k):
        if STAMP & 0x100:
            l = A.newlabel('us'); A(f"s_cmp_lg_u32 s16, {k//4}\ns_cbranch_scc1 {l}"); rt_stamp(A, 8+k); A(f"{l}:")
    u_loop2(A, 'u', 23, 24, 30, 3, wait_flags, put_flag, srd, EXIT, ust)
    rt_stamp(A, 4)
    A(f"mega_sp:\ns_and_b32 s40, s{TK}, 3")
    load_wout(A, 40, 12, 4)
    A(f"""s_cmp_ge_u32 s{TK}, 24
    s_cbranch_scc1 mega_out
    s_mul_hi_u32 s30, s{TK}, {-(-(1<<32)//6)}
    s_mul_i32 s31, s30, 6
    s_sub_u32 s31, s{TK}, s31
    s_sub_u32 s32, s{X}, 4
    s_lshl_b32 s33, s32, 2
    s_add_u32 s30, s30, s33
    s_mul_i32 s32, s32, 24
    s_add_u32 s32, s32, s{TK}
    s_lshl_b32 s32, s32, 7
    s_add_u32 s32, s32, {F_GY}""")
    rt_stamp(A, 5)
    spatial2(A, 30, 31, F_WIN, 32, EXIT, stamp=lambda A: rt_stamp(A, 6))
    A(f"""mega_out:
    s_lshl_b32 s40, s{X}, 5
    s_add_u32 s40, s40, s{TK}""")
    out_task(A, 40, F_GY, EXIT, 'mega_end', OUTF)
    A("mega_end:")
    if STAMP: A("s_waitcnt vmcnt(0)")
    rt_stamp(A, 7)
    A(f"{EXIT}:\ns_endpgm")
    A(f"mega_wo:\ns_waitcnt vmcnt(0)\ns_barrier\ns_and_b32 s40, s{TK}, 3")
    load_wout(A, 40, 12, 4)
    A("s_branch mega_out")
    A(f"""mega_ln2:
    s_mul_i32 s24, s{X}, 6
    s_add_u32 s24, s24, s{TK}
    s_sub_u32 s24, s24, 26
    s_lshl_b32 s30, s24, 7
    s_add_u32 s30, s30, {F_LN}
    s_cmp_ge_u32 s{TK}, 30
    s_cbranch_scc1 mega_ln2j
    s_lshl_b32 s12, s{X}, 2
    s_add_u32 s12, s12, s{TK}
    s_sub_u32 s12, s12, 26
    s_lshl_b32 s12, s12, 2
    s_add_u32 s12, s12, s{W}
    s_lshl_b32 s13, s12, 10
    s_add_u32 s13, s13, {WS_FLAG}
    s_lshl_b32 s14, s12, 11
    s_add_u32 s14, s14, {WS_SX}
    s_and_b32 s12, s12, 15
    s_lshl_b32 s12, s12, 10
    s_add_u32 s12, s12, {F_X}
    v_lshlrev_b32 v2, 4, v0""")
    for i in range(4): A(f"v_mov_b32 v{16+i}, 0")
    for i in range(4): A(f"v_mov_b32 v{20+i}, -1")
    A(bs(4, 16, 2, 's13', 0, 'sc1')); A(bs(4, 16, 2, 's12', 0, 'sc1'))
    A(bs(4, 20, 2, 's14', 0, 'sc1')); A(bs(4, 20, 2, 's14', 1024, 'sc1'))
    checkin(A, DBG)
    A("mega_ln2j:")
    pf_ab(A)
    rt_stamp(A, 2)
    A(f"s_and_b32 s40, s{TK}, 3\nv_lshlrev_b32 v2, 4, v0")
    waitall(A, DBG, EXIT, 2, s_pol=31)
    A(f'v_mov_b32 v4, {F_U}\ns_mov_b32 s12, 1')
    wait_flags(A, 4, 5, 12, EXIT, sleep=20)
    load_wout(A, 40, 12, 4)
    A("s_add_u32 s30, s30, s31\ns_barrier")
    ln2_loop(A, 24, 24, F_X, 30, 31, EXIT)
    rt_stamp(A, 4)
    A("s_branch mega_out")
    A(f"""mega_win:
    s_sub_u32 s34, s{X}, 4
    s_sub_u32 s35, s{TK}, 26
    s_mul_i32 s22, s34, 6
    s_add_u32 s22, s22, s35
    s_lshl_b32 s30, s22, 7
    s_add_u32 s30, s30, {F_WIN}
    s_lshr_b32 s36, s34, 1
    s_and_b32 s34, s34, 1""")
    if VFIRST: pf_v(A, 22, 6, 0, dov=False)
    else: pf_v(A, 22)
    rt_stamp(A, 2)
    A(f"""s_load_dwordx2 s[32:33], s[0:1], {KA_WIN}
    s_and_b32 s40, s{TK}, 3
    v_lshlrev_b32 v2, 4, v0""")
    waitall(A, DBG, EXIT, 2, s_pol=31)
    A(f'v_mov_b32 v4, {F_U}\ns_mov_b32 s12, 1')
    wait_flags(A, 4, 5, 12, EXIT, sleep=20)
    load_wout(A, 40, 12, 4)
    A(f"""s_mul_i32 s25, s34, 6
    s_add_u32 s25, s25, s35
    s_lshl_b32 s25, s25, 2
    s_add_u32 s25, s25, s{W}
    s_lshl_b32 s25, s25, 6""")
    add64(A, 32, 32, 's25')
    win_load(A, 32, 12, 4)
    A("s_cmp_lg_u32 s34, 0\ns_cbranch_scc1 mega_win2")
    win_loop(A, 'win1', False, 36, 35, F_LN, 30, 31, EXIT)
    rt_stamp(A, 4)
    A("s_branch mega_out\nmega_win2:")
    win_loop(A, 'win2', True, 36, 35, F_LN, 30, 31, EXIT)
    rt_stamp(A, 4)
    A("s_branch mega_out")
    hooks = {'next_ab': 'mega_wo', 'next_r': 'mega_wo'}
    hooks['r_pre'] = pf_ab
    hooks['rts'] = lambda A, i: rt_stamp(A, i, R.MOP)
    if STAMP:
        def stamp(A, i):
            if i == 0:
                l = A.newlabel('st')
                A(f"s_memtime s[86:87]\ns_memrealtime s[88:89]\ns_waitcnt lgkmcnt(0)\ns_cmp_lg_u32 s{R.S_STEP}, {int(os.environ.get('SSTEP','21'))}\ns_cbranch_scc1 {l}")
                for k in range(1, 8): A(f"s_sub_u32 s{92+k}, s{72+2*k}, s72")
                A(f"s_mov_b32 s92, s73\ns_mov_b32 s100, s88")
                A(f"{l}:\ns_mov_b32 s72, s86\ns_mov_b32 s73, s88")
                l = A.newlabel('st')
                A(f"s_cmp_lg_u32 s{R.S_STEP}, 0\ns_cbranch_scc1 {l}\ns_sub_u32 s101, s88, s71\n{l}:")
            elif (STAMP >> i) & 1:
                A(f"s_memtime s[{72+2*i}:{73+2*i}]\ns_waitcnt lgkmcnt(0)")
        hooks['stamp'] = stamp
        def final(A):
            A(f"""s_lshl_b32 s14, s{X}, 5
            s_add_u32 s14, s14, s{TK}
            s_lshl_b32 s14, s14, 2
            s_add_u32 s14, s14, s{W}
            s_lshl_b32 s14, s14, 6
            s_add_u32 s14, s14, {WS_STAT}
            s_memrealtime s[86:87]
            s_waitcnt lgkmcnt(0)
            s_sub_u32 s15, s86, s71
            v_mov_b32 v17, 0""")
            for i, r in enumerate(list(range(92, 102)) + [15, R.S_TO]):
                A(f"v_mov_b32 v16, s{r}\nbuffer_store_dword v16, v17, s[4:7], s14 offen offset:{4*i}")
            rt_stamp(A, 4)
        hooks['final'] = final
        def steplog(A):
            l = A.newlabel('sl')
            A(f"""s_cmp_lg_u32 s{R.S_H}, 0
            s_cbranch_scc1 {l}
            s_memrealtime s[84:85]
            s_lshl_b32 s{R.S_T}, s{R.S_STEP}, 2
            s_add_u32 s{R.S_T}, s{R.S_T}, {WS_STAT + 131072}
            s_waitcnt lgkmcnt(0)""")
            put_flag(A, R.S_T, 84, R.MOP)
            A(f"{l}:")
        hooks['steplog'] = steplog
    def wait_in(A, mode):
        t = R.MOP + 24
        if mode == 'first': A(f"s_mov_b32 s{R.S_T}, 1")
        else: A(f"s_add_u32 s{R.S_T}, s{R.S_STEP}, 2\ns_min_u32 s{R.S_T}, s{R.S_T}, {NSEG}")
        A(f"""s_mul_i32 s{R.S_T+1}, s{R.S_H}, 192
        v_bfe_u32 v{t}, v{R.V_LANE16}, 4, 1
        v_mul_u32_u24 v{t}, 191, v{t}
        v_add_u32 v{t}, s{R.S_T+1}, v{t}
        v_lshrrev_b32 v{t}, 8, v{t}
        v_bfe_u32 v{t+1}, v{R.V_LANE16}, 5, 1
        v_mad_u32_u24 v{t}, v{t+1}, 24, v{t}
        v_lshlrev_b32 v{t}, 7, v{t}
        v_add_u32 v{t}, {F_QKV}, v{t}""")
        if mode == 'peek':
            A(f"""buffer_load_dword v{t+1}, v{t}, {srd}, 0 offen sc1
            s_waitcnt vmcnt(0)
            v_cmp_gt_u32 {sr(R.S_EVEN,2)}, s{R.S_T}, v{t+1}""")
        else: wait_flags(A, t, t+1, R.S_T, EXIT)
    hooks['wait_in'] = wait_in
    def b_ready(A, skip):
        A(f"s_add_u32 s{R.S_T}, s{R.S_STEP}, 3\nv_cmp_gt_u32 vcc, s{R.S_T}, v{R.V_JUNK}\ns_cbranch_vccnz {skip}")
    def b_peek(A):
        t = R.MOP + 1
        A(f"""s_mul_i32 s{R.S_T+1}, s{R.S_H}, 192
        v_and_b32 v{t}, 1, v0
        v_mul_u32_u24 v{t}, 191, v{t}
        v_add_u32 v{t}, s{R.S_T+1}, v{t}
        v_lshrrev_b32 v{t}, 8, v{t}
        v_bfe_u32 v{t+1}, v0, 1, 1
        v_mad_u32_u24 v{t}, v{t+1}, 24, v{t}
        v_lshlrev_b32 v{t}, 7, v{t}
        v_add_u32 v{t}, {F_QKV}, v{t}
        s_lshl_b32 s{R.S_T+1}, s{R.S_H}, 5
        s_add_u32 s{R.S_T+1}, s{R.S_T+1}, s{W}
        s_lshl_b32 s{R.S_T+1}, s{R.S_T+1}, 2
        s_add_u32 s{R.S_T+1}, s{R.S_T+1}, {F_U}
        s_mov_b64 exec, -16
        v_mov_b32 v{t}, s{R.S_T+1}
        s_mov_b64 exec, -1
        buffer_load_dword v{R.V_JUNK}, v{t}, {srd}, 0 offen sc1""")
    hooks['b_ready'] = b_ready; hooks['b_peek'] = b_peek
    def wait_u(A, k):
        if k == 0:
            rt_stamp(A, 3, 24)
            A(f"""s_lshl_b32 s{R.S_T}, s{R.S_HL}, 1
            s_add_u32 s{R.S_T}, s{R.S_T}, s{W}
            s_mul_hi_u32 s{R.S_T}, s{R.S_T}, {-(-(1<<32)//5)}
            s_lshl_b32 s{R.S_T}, s{R.S_T}, 2
            s_lshl_b32 s{R.S_T+1}, s{X}, 10
            s_add_u32 s{R.S_T}, s{R.S_T}, s{R.S_T+1}
            s_add_u32 s{R.S_T}, s{R.S_T}, {F_U}
            v_and_b32 v10, 7, v0
            v_lshlrev_b32 v10, 7, v10
            v_add_u32 v10, s{R.S_T}, v10""")
        A(f"s_add_u32 s{R.S_T}, s{R.S_STEP}, {k+1}\ns_min_u32 s{R.S_T}, s{R.S_T}, {NSEG}")
        wait_flags(A, 10, 11, R.S_T, EXIT)
        if k == 0: rt_stamp(A, 5, 24)
    hooks['wait_u'] = wait_u
    hooks['x_flag'] = lambda A: put_flag(A, R.S_O4, R.S_STEP, 12)
    hooks['x_flag2'] = lambda A, sv: put_flag(A, R.S_O4, sv, 12)
    hooks['x_init'] = lambda A: A(f"s_add_u32 s{R.S_O4}, s{R.S_O4}, s{R.S_POL}")
    def cached_u(A):
        l = A.newlabel('cu')
        A(f"s_add_u32 s{R.S_T}, s{R.S_STEP}, 1\nv_cmp_gt_u32 vcc, s{R.S_T}, v11\ns_cbranch_vccz {l}")
        wait_flags(A, 10, 11, R.S_T, EXIT, sleep=1)
        A(f"{l}:")
    hooks['cached_u'] = cached_u
    PEEKM = int(os.environ.get('PEEKM', '2'))
    def peek_u(A):
        if PEEKM:
            l = A.newlabel('pk')
            A(f"s_add_u32 s{R.S_T}, s{R.S_STEP}, {1+PEEKM}\ns_min_u32 s{R.S_T}, s{R.S_T}, {NSEG}\nv_cmp_gt_u32 vcc, s{R.S_T}, v11\ns_cbranch_vccz {l}")
        A(f"buffer_load_dword v11, v10, {srd}, 0 offen sc1")
        if PEEKM: A(f"{l}:")
    hooks['peek_u'] = peek_u
    A("mega_A:")
    R.role_A(A, EXIT, DBG, hooks)
    A("mega_B:")
    R.role_B(A, EXIT, DBG, hooks)
    A(f"""mega_R:
    s_sub_u32 s{R.S_HL}, s{TK}, 16
    s_mul_i32 s{R.S_O4}, s{X}, 10
    s_add_u32 s{R.S_O4}, s{R.S_O4}, s{R.S_HL}
    s_lshl_b32 s{R.S_O4}, s{R.S_O4}, 7
    s_add_u32 s{R.S_O4}, s{R.S_O4}, {F_X}""")
    A(f"s_and_b32 s12, s{W}, 1\ns_lshl_b32 s12, s12, 6\ns_add_u32 s{R.S_O4}, s{R.S_O4}, s12")
    R.role_R(A, EXIT, DBG, hooks)

def build():
    ref = open('sequential_preLN__memory_aug_recurrent_mem_tr__mixer_gmlp__prompt.s.ref').read().split('\n')
    hdr = '\n'.join(l for l in ref if l.startswith(';') and '@launch' not in l) + '\n'
    if os.environ.get('LIST', '1') == '1': hdr += f"; @launch kernel={KNAME} grid=(256,1,1) block=(256,1,1) lds=163840\n"
    else: hdr += "; @launch grid=(256,1,1) block=(256,1,1) lds=163840\n"
    A = Asm()
    A(f'.amdgcn_target "amdgcn-amd-amdhsa--gfx950"\n.text\n.globl {KNAME}\n.type {KNAME},@function')
    k_mega(A)
    return hdr + A.text() + kdesc(KNAME)

if __name__ == '__main__':
    open(sys.argv[1], 'w').write(build())
```

```python
from common import *
from r_u import load_w_rows
from r_ln import hexf
import math, os
TOUCH = int(os.environ.get('TOUCH', '128'))
NOU = int(os.environ.get('NOU', '0'))
NOKQ = int(os.environ.get('NOKQ', '0'))

NG, HG, NR = 4, 8, 10
GBLK = 32768
GSLOT = 32*GBLK
LBASE = WS_LRING
M_OFF = 0
P_OFF = 16384
PX_OFF = 32768
Y_OFF = 163840
NSYNC = NG*(2*HG+NR)
WS_OP = WS_YF
SEG_OP = 2*20*4*1024
TLANES = int(os.environ.get('TLANES', '64'))
TOUT = int(os.environ.get('TOUT', '0'))
KQP = int(os.environ.get('KQP', '8'))
GDROP = int(os.environ.get('GDROP', '0'))
ASLEEP = int(os.environ.get('ASLEEP', '2'))
BSLEEP = int(os.environ.get('BSLEEP', '24'))
RSLEEP = int(os.environ.get('RSLEEP', '0'))
MPIPE = int(os.environ.get('MPIPE', '0'))
YPIPE = int(os.environ.get('YPIPE', '2'))
XFLAGNOW = int(os.environ.get('XFLAGNOW', '0'))
SCRUB = int(os.environ.get('SCRUB', '1'))
XLEAD = int(os.environ.get('XLEAD', '3'))
MMASK = int(os.environ.get('MMASK', '0'))
KQEND = int(os.environ.get('KQEND', '1'))
BTOUCH = int(os.environ.get('BTOUCH', '0'))
BTEARLY = int(os.environ.get('BTEARLY', '1'))
XDEFER = int(os.environ.get('XDEFER', '0'))
RST6 = int(os.environ.get('RST6', '1'))
UPARK = int(os.environ.get('UPARK', '3'))
TRIM = int(os.environ.get('TRIM', '1'))
XFPOS = int(os.environ.get('XFPOS', '1'))
SCRPOS = int(os.environ.get('SCRPOS', '2'))
YQ = int(os.environ.get('YQ', '0'))
SELF = int(os.environ.get('SELF', '0'))
EP0 = int(os.environ.get('EP0', '34'))
WGAPS = eval(os.environ.get('WGAPS', '[0, 2, 4]'))
SGAPS = eval(os.environ.get('SGAPS', '[5, 6, 7, 8, 17, 18, 19, 20, 21, 22, 23, 24]'))
KGAPS = eval(os.environ.get('KGAPS', '[25, 26, 27, 28, 29, 30, 31, 32, 33, 45, 46, 47]'))
AB1 = int(os.environ.get('AB1', '10'))
BB1 = int(os.environ.get('BB1', '8'))
BNOW = int(os.environ.get('BNOW', '2'))
SGAPSB = eval(os.environ.get('SGAPSB', '[14, 15, 16, 17, 18, 19, 20, 21, 36, 37, 38, 39]'))
GDELAY = int(os.environ.get('GDELAY', '2'))
KQW3 = int(os.environ.get('KQW3', '0'))
POLL_LIMIT = 1 << 17

class Lg:
    def __init__(s, A): s.A = A; s.n = 0; s.done = 0; s.tag = {}
    def ds(s, text, tag=None):
        s.A(text); s.n += 1
        if tag is not None: s.tag[tag] = s.n
    def need(s, tag):
        k = s.tag[tag]
        if k > s.done:
            w = s.n - k
            if w <= 15:
                s.A(f"s_waitcnt lgkmcnt({w})"); s.done = k
            else:
                s.A("s_waitcnt lgkmcnt(15)"); s.done = s.n - 15
    def all(s):
        s.A("s_waitcnt lgkmcnt(0)"); s.done = s.n

V_LANE16, V_P1, V_P2, V_RD0, V_RD3, V_IDX, V_TW, V_TR, V_WS, V_X1, V_X2, V_X3, V_JUNK = 1, 2, 3, 4, 7, 8, 9, 10, 11, 12, 13, 14, 15
MOP, ACC, STG = 16, 56, 80
V_X3S = 999
V_P2S = ACC + 8
LPOS_A = eval(os.environ.get('LPOSA', '[0, 1, 2, 3, 11, 13, 24, 26, 28, 30]'))
LPOS_B = eval(os.environ.get('LPOSB', '[0, 1, 2, 3, 22, 24, 26, 28, 44, 46]'))
LPOS = LPOS_A
def set_lpos(l):
    global LPOS
    LPOS = l
def wloc(p):
    if p in LPOS: return ('lds', LPOS.index(p))
    k = p - sum(1 for x in LPOS if x < p)
    return ('reg', 256 + 8*k if k < 32 else 112 + 8*(k-32))
def wreg(p):
    kind, x = wloc(p)
    return STG + 8*(x % 4) if kind == 'lds' else x
L_T = 0
L_MS = 8192
L_X = 18432
L_R = L_X + 49152
L_W = 81920
S_WAVE = 3
SRD = 4
S_GRP, S_HL, S_STEP, S_TO = 8, 9, 10, 11
S_T = 12
S_A, S_B = 20, 22
S_POL, S_SLOW, S_H = 24, 25, 26
S_CUR, S_TAG, S_TAGM = 27, 28, 29
S_ML, S_ML4, S_MR, S_MR4 = 30, 31, 32, 33
S_MSK = 34
S_HI = 52
S_EVEN = 54
S_C1, S_C2, S_C3, S_C4, S_C5, S_C6 = 56, 57, 58, 59, 60, 61
S_O1, S_O2, S_O3, S_O4 = 62, 63, 64, 65
S_NT, S_CT0, S_SEL0, S_SEL1, S_CSC = 66, 67, 68, 69, 70
srd = sr(SRD, 4)

def smf(A, acc, a, b):
    A(f"v_smfmac_f32_16x16x64_bf16 {vr(acc,4)}, {vr(a,4)}, {ur(b,8)}, v{V_IDX}")
def bld(n, dst, va, so, off=0, fl=''):
    nm = {1: 'dword', 2: 'dwordx2', 4: 'dwordx4'}[n]
    return f"buffer_load_{nm} {vr(dst,n)}, v{va}, {srd}, s{so} offen offset:{off} {fl}"
def bst(n, src, va, so, off=0, fl=''):
    nm = {1: 'dword', 2: 'dwordx2', 4: 'dwordx4'}[n]
    return f"buffer_store_{nm} {vr(src,n)}, v{va}, {srd}, s{so} offen offset:{off} {fl}"
def bdma(va, so, off=0):
    return f"buffer_load_dwordx4 v{va}, {srd}, s{so} offen offset:{off} lds"

def common_init(A):
    w = S_WAVE
    A(f"""v_lshlrev_b32 v{V_LANE16}, 4, v0
    s_lshl_b32 s{S_T}, s{w}, 10
    v_add_u32 v{V_P1}, s{S_T}, v{V_LANE16}
    s_and_b32 s{S_T+1}, s{S_T}, 1024
    s_add_u32 s{S_T+2}, s{S_T+1}, 8192
    v_add_u32 v{V_P2}, s{S_T+2}, v{V_LANE16}
    s_xor_b32 s{S_T+1}, s{S_T+1}, 1024
    v_add_u32 v{V_RD3}, s{S_T+1}, v{V_LANE16}""")
    for i in range(3):
        A(f"s_xor_b32 s{S_T+1}, s{S_T}, {(i+1)*1024}\nv_add_u32 v{V_RD0+i}, s{S_T+1}, v{V_LANE16}")
    A(f"""s_mov_b32 s{S_HI}, 0xff00ff00
    s_mov_b32 s{S_HI+1}, 0xff00ff00
    v_mov_b32 v{V_IDX}, 0x4444
    v_mov_b32 v{V_TW}, 0xeeee
    v_cndmask_b32 v{V_IDX}, v{V_IDX}, v{V_TW}, {sr(S_HI,2)}
    s_mul_i32 s{S_T+1}, s{w}, 20480
    s_add_u32 s{S_T+1}, s{S_T+1}, {L_W}
    v_add_u32 v{V_WS}, s{S_T+1}, v{V_LANE16}
    s_lshl_b32 s{S_H}, s{S_GRP}, 3
    s_add_u32 s{S_H}, s{S_H}, s{S_HL}
    s_mov_b32 s{S_SEL0}, 0x00003f80
    s_mov_b32 s{S_SEL1}, 0x3f800000
    s_lshl_b32 s{S_CUR}, s{S_GRP}, 18
    s_add_u32 s{S_CUR}, s{S_CUR}, {LBASE}
    s_mov_b32 s{S_TAG}, 0
    s_mov_b32 s{S_TAGM}, 0
    s_add_u32 s{S_ML}, s{S_CUR}, {M_OFF}
    s_add_u32 s{S_ML4}, s{S_ML}, 4096
    s_mov_b32 s{S_STEP}, 0""")

def kappa_sreg(A, kp, dst):
    w = S_WAVE
    if kp == 0: A(f"s_mov_b32 s{dst}, s{w}")
    elif kp == 1: A(f"s_add_u32 s{dst}, s{w}, 4")
    elif kp == 2: A(f"s_and_b32 s{dst}, s{w}, 1\ns_add_u32 s{dst}, s{dst}, 8")
    elif kp < 6: A(f"s_xor_b32 s{dst}, s{w}, {kp-2}")
    elif kp < 9: A(f"s_xor_b32 s{dst}, s{w}, {kp-5}\ns_add_u32 s{dst}, s{dst}, 4")
    else: A(f"s_and_b32 s{dst}, s{w}, 1\ns_xor_b32 s{dst}, s{dst}, 9")

def tr_addr_sparseB(A, dst, t, rowbytes, s_base):
    A(f"""v_bfe_u32 v{dst}, v0, 2, 1
    v_bfe_u32 v{t}, v0, 3, 1
    v_lshl_add_u32 v{dst}, v{t}, 3, v{dst}
    v_bfe_u32 v{t}, v0, 4, 1
    v_lshl_add_u32 v{dst}, v{t}, 2, v{dst}
    v_bfe_u32 v{t}, v0, 5, 1
    v_lshl_add_u32 v{dst}, v{t}, 4, v{dst}
    v_mul_u32_u24 v{dst}, {rowbytes}, v{dst}
    v_and_b32 v{t}, 3, v0
    v_lshl_add_u32 v{dst}, v{t}, 3, v{dst}
    v_add_u32 v{dst}, s{s_base}, v{dst}""")

def read_operand(A, p, vtr, off, rowbytes, halves=(0,1), hrows=32):
    kind, x = wloc(p)
    r = STG if kind == 'lds' else x
    for half in halves:
        for q in range(2):
            A(f"ds_read_b64_tr_b16 {ur(r+4*half+2*q,2)}, v{vtr} offset:{off + (hrows*(half-halves[0]) + 2*q)*rowbytes}")
    if kind == 'lds':
        A("s_waitcnt lgkmcnt(0)")
        for half in halves:
            A(f"ds_write_b128 v{V_WS}, {vr(STG+4*half,4)} offset:{x*2048+1024*half}")
        A("s_waitcnt lgkmcnt(0)")

def kp_of(kappa, w):
    if kappa < 4: d = kappa ^ w; return 0 if d == 0 else d + 2
    if kappa < 8: d = (kappa-4) ^ w; return 1 if d == 0 else d + 5
    return 2 if kappa - 8 == (w & 1) else 9

def load_heads(A, mats):
    VA_, VT_, t, u = MOP, MOP+6, MOP+10, MOP+11
    sb = S_T + 4
    w = S_WAVE
    for i in range(6):
        A(f"""v_add_u32 v{t}, {64*i}, v0
        v_mul_u32_u24 v{u}, {(65536+23)//24}, v{t}
        v_lshrrev_b32 v{u}, 16, v{u}
        v_mul_u32_u24 v{VA_+i}, 24, v{u}
        v_sub_u32 v{t}, v{t}, v{VA_+i}
        v_lshrrev_b32 v{VA_+i}, 1, v{u}
        v_and_b32 v{VA_+i}, 6, v{VA_+i}
        v_xor_b32 v{t}, v{t}, v{VA_+i}
        v_mul_u32_u24 v{VA_+i}, 12288, v{u}
        v_lshl_add_u32 v{VA_+i}, v{t}, 4, v{VA_+i}""")
    for tt in range(3):
        A(f"""v_bfe_u32 v{u}, v0, 4, 1
        v_bfe_u32 v{t}, v0, 3, 1
        v_lshl_add_u32 v{u}, v{t}, 1, v{u}
        v_lshlrev_b32 v{VT_+tt}, 1, v{u}
        s_mul_i32 s{S_T}, s{w}, 6
        s_add_u32 s{S_T}, s{S_T}, {2*tt}
        v_bfe_u32 v{t}, v0, 1, 1
        v_add_u32 v{t}, s{S_T}, v{t}
        v_xor_b32 v{VT_+tt}, v{VT_+tt}, v{t}
        v_lshlrev_b32 v{VT_+tt}, 4, v{VT_+tt}
        v_and_b32 v{t}, 1, v0
        v_lshl_add_u32 v{VT_+tt}, v{t}, 3, v{VT_+tt}
        v_lshlrev_b32 v{u}, 2, v{u}
        v_bfe_u32 v{t}, v0, 2, 1
        v_add_u32 v{u}, v{u}, v{t}
        v_bfe_u32 v{t}, v0, 5, 1
        v_lshl_add_u32 v{u}, v{t}, 4, v{u}
        v_mul_u32_u24 v{u}, 384, v{u}
        v_add_u32 v{VT_+tt}, v{VT_+tt}, v{u}""")
    A(f"s_mul_i32 s{sb}, s{w}, 6144\ns_mul_i32 s{S_T}, s{w}, {16*12288}")
    for sp, _ in mats: add64(A, sp, sp, f"s{S_T}")
    rounds = [(m, k) for m in range(len(mats)) for k in range(10)]
    depth, slot = 3, 24576
    def issue(r):
        sp = mats[rounds[r][0]][0]
        for i in range(6):
            A(f"s_add_u32 m0, s{sb}, {(r % depth)*slot + i*1024}")
            A(f"global_load_lds_dwordx4 v{VA_+i}, {sr(sp,2)}")
        add64(A, sp, sp, 64*12288)
    for r in range(depth): issue(r)
    labs = [A.newlabel('lw') for _ in range(4)]; lend = A.newlabel('lw')
    for ww in range(1, 4): A(f"s_cmp_eq_u32 s{w}, {ww}\ns_cbranch_scc1 {labs[ww]}")
    n = len(rounds)
    for ww in range(4):
        A(f"{labs[ww]}:")
        for r, (m, k) in enumerate(rounds):
            A(f"s_waitcnt vmcnt({6*min(depth-1, n-1-r)})\ns_barrier")
            hi = (r % depth) == 2
            if hi:
                for tt in range(3): A(f"v_add_u32 v{VT_+tt}, {2*slot}, v{VT_+tt}")
            for tt in range(3):
                read_operand(A, mats[m][1](kp_of(k, ww), tt), VT_+tt, 0 if hi else (r % depth)*slot, 384)
            if hi:
                for tt in range(3): A(f"v_subrev_u32 v{VT_+tt}, {2*slot}, v{VT_+tt}")
            A("s_waitcnt lgkmcnt(0)\ns_barrier")
            if r + depth < n: issue(r+depth)
        if ww < 3: A(f"s_branch {lend}")
    A(f"{lend}:")

def tick(A, exitlab):
    A(f"""s_add_u32 s{S_TO}, s{S_TO}, 1
    s_cmp_gt_u32 s{S_TO}, {POLL_LIMIT}
    s_cbranch_scc1 {exitlab}""")

def check(A, regs, stag, target):
    t = V_X3
    c = list(regs)
    if len(c) == 1:
        A(f"v_bitop3_b32 v{t}, v{c[0]}, 1, s{stag} bitop3:0x48")
    else:
        A(f"v_bitop3_b32 v{t}, v{c[0]}, v{c[1]}, s{stag} bitop3:0x7e")
        for x in c[2:]:
            A(f"v_bitop3_b32 v{t}, v{x}, v{t}, s{stag} bitop3:0xde")
        A(f"v_and_b32 v{t}, 1, v{t}")
    A(f"v_cmp_ne_u32 vcc, 0, v{t}\ns_cbranch_vccnz {target}")

def poll(A, name, loads, checks, stag, exitlab, shadow=None):
    l = A.newlabel(name)
    if shadow is not None:
        l2 = A.newlabel(name)
        for x in loads: A(x)
        shadow()
        A(f"s_branch {l2}")
    A(f"{l}:")
    for x in loads: A(x)
    tick(A, exitlab)
    if shadow is not None: A(f"{l2}:")
    A("s_waitcnt vmcnt(0)")
    check(A, checks, stag, l)

def ingest_mem(A, lg, exitlab, shadow=None):
    def L(b): return [bld(4, b, V_P1, S_ML, 0, 'sc1'), bld(4, b+4, V_P1, S_ML4, 0, 'sc1'), bld(4, b+8, V_P2, S_ML, 0, 'sc1')]
    W = [(V_P1, L_MS), (V_P1, L_MS+4096), (V_P2, L_MS)]
    if MMASK:
        M = [S_T, S_T+2, S_T+4]
        lp = A.newlabel('pm')
        for m in M: A(f"s_mov_b64 {sr(m,2)}, -1")
        A(f"{lp}:")
        for m, x in zip(M, L(MOP)): A(f"s_mov_b64 exec, {sr(m,2)}\n{x}")
        A("s_mov_b64 exec, -1")
        tick(A, exitlab)
        A("s_waitcnt vmcnt(0)")
        for f in range(3): A(f"v_bitop3_b32 v{MOP+12+f}, v{MOP+4*f}, 1, s{S_TAG} bitop3:0x48")
        for f in range(3): A(f"v_cmp_ne_u32 {sr(M[f],2)}, 0, v{MOP+12+f}")
        A(f"s_or_b64 vcc, {sr(M[0],2)}, {sr(M[1],2)}\ns_or_b64 vcc, vcc, {sr(M[2],2)}\ns_cbranch_scc1 {lp}")
        for f, (v, off) in enumerate(W):
            lg.ds(f"ds_write_b128 v{v}, {vr(MOP+4*f,4)} offset:{off}", ('mw', f))
        return
    if not MPIPE:
        poll(A, 'pm', L(MOP), [MOP, MOP+4, MOP+8], S_TAG, exitlab, shadow)
        if TRIM: return [(f"ds_write_b128 v{v}, {vr(MOP+4*f,4)} offset:{off}", ('mw', f)) for f, (v, off) in enumerate(W)]
        for f, (v, off) in enumerate(W):
            lg.ds(f"ds_write_b128 v{v}, {vr(MOP+4*f,4)} offset:{off}", ('mw', f))
        return
    S = [MOP+12, MOP+24]
    lp, n0, j = A.newlabel('pm'), A.newlabel('pm'), A.newlabel('pm')
    for x in L(S[0]): A(x)
    A(f"s_sleep {MPIPE}\n{lp}:")
    def fin(b):
        for f, (v, off) in enumerate(W):
            A(f"ds_write_b128 v{v}, {vr(b+4*f,4)} offset:{off}")
            A(f"v_pk_mov_b32 {vr(MOP+4*f,2)}, {vr(b+4*f,2)}, {vr(b+4*f,2)} op_sel:[0,1]\nv_pk_mov_b32 {vr(MOP+4*f+2,2)}, {vr(b+4*f+2,2)}, {vr(b+4*f+2,2)} op_sel:[0,1]")
    for x in L(S[1]): A(x)
    tick(A, exitlab)
    A("s_waitcnt vmcnt(3)")
    check(A, [S[0], S[0]+4, S[0]+8], S_TAG, n0)
    fin(S[0])
    A(f"s_branch {j}\n{n0}:")
    for x in L(S[0]): A(x)
    A("s_waitcnt vmcnt(3)")
    check(A, [S[1], S[1]+4, S[1]+8], S_TAG, lp)
    fin(S[1])
    A(f"{j}:")
    lg.n += 3; lg.tag[('mw', 2)] = lg.n

def read_mem_frags(A, lg, now=7):
    if MPIPE: A('s_waitcnt vmcnt(0)')
    L = []
    for kp in range(3, 10):
        if kp < 6: v, off = V_RD0 + kp - 3, L_MS
        elif kp < 9: v, off = V_RD0 + kp - 6, L_MS + 4096
        else: v, off = V_RD3, L_MS + 8192
        L.append((f"ds_read_b128 {vr(MOP+4*kp,4)}, v{v} offset:{off}", ('m', kp)))
    for x in L[:now]: lg.ds(*x)
    return L[now:]

def stg_load(lg, i):
    r = STG + 8*(i % 4)
    lg.ds(f"ds_read_b128 {vr(r,4)}, v{V_WS} offset:{i*2048}")
    lg.ds(f"ds_read_b128 {vr(r+4,4)}, v{V_WS} offset:{i*2048+1024}", ('w', i))

def next_step(A):
    A(f"""s_add_u32 s{S_STEP}, s{S_STEP}, 1
    s_xor_b32 s{S_TAG}, s{S_TAG}, 1""")

def t_plane_base(A, dst, c, t, plane):
    A(f"""v_mul_u32_u24 v{dst}, {plane}, v{c}
    v_and_b32 v{t}, 1, v{c}
    v_lshl_add_u32 v{dst}, v{t}, 5, v{dst}
    v_lshrrev_b32 v{t}, 1, v{c}
    v_lshl_add_u32 v{dst}, v{t}, 7, v{dst}""")

D_CNT, D_SLOW, D_POL = 2, 18, 34
D_LN = 4
NINIT = 16 + NG*NR
def checkin(A, s_dbg, vt=None):
    vt = MOP if vt is None else vt
    l2 = A.newlabel('isk')
    A(f"""s_waitcnt vmcnt(0)
    s_barrier
    s_cmp_lg_u32 s{S_WAVE}, 0
    s_cbranch_scc1 {l2}
    v_mov_b32 v{vt}, {4*D_CNT}
    v_mov_b32 v{vt+1}, 1
    s_mov_b64 exec, 1
    global_atomic_add v{vt}, v{vt+1}, {sr(s_dbg,2)}
    s_mov_b64 exec, -1
    {l2}:""")

def waitall(A, s_dbg, exitlab, vl4, vt=None, s_slow=None, s_pol=None, setup_only=False):
    vt = MOP if vt is None else vt
    l, l2 = A.newlabel('isync'), A.newlabel('isync')
    A(f"""v_lshrrev_b32 v{vt}, 2, v{vl4}
    v_mov_b32 v{vt+1}, 0
    s_mov_b32 exec_lo, 0x00030003
    s_mov_b32 exec_hi, 0x00030003
    v_mov_b32 v{vt+1}, 32
    s_mov_b32 exec_lo, 0x00100010
    s_mov_b32 exec_hi, 0x00100010
    v_mov_b32 v{vt+1}, 64
    s_mov_b64 exec, {1 << D_CNT}
    v_mov_b32 v{vt+1}, {NINIT}""")
    if s_pol is not None: A(f"s_mov_b32 exec_lo, 0\ns_mov_b32 exec_hi, {1 << (D_POL-32)}\nv_mov_b32 v{vt+1}, 1")
    A("s_mov_b64 exec, -1")
    if setup_only: return
    A(f"""s_branch {l2}
    {l}:
    s_sleep 4""")
    tick(A, exitlab)
    A(f"""{l2}:
    global_load_dword v{vt+2}, v{vt}, {sr(s_dbg,2)} sc1
    s_waitcnt vmcnt(0)
    v_cmp_gt_u32 vcc, v{vt+1}, v{vt+2}
    s_cbranch_vccnz {l}""")
    if s_slow is not None or s_pol is not None:
        A(f"global_load_dword v{vt+2}, v{vt}, {sr(s_dbg,2)} sc1\ns_waitcnt vmcnt(0)")
    if s_slow is not None: A(f"v_readlane_b32 s{s_slow}, v{vt+2}, {D_SLOW}")
    if s_pol is not None: A(f"v_readlane_b32 s{s_pol}, v{vt+2}, {D_POL}\ns_and_b32 s{s_pol}, s{s_pol}, 8192")

FSLEEP = int(os.environ.get('FSLEEP', '0'))
def wait_flags(A, v_addr, v_tmp, s_need, exitlab, sleep=2):
    l, l2 = A.newlabel('wf'), A.newlabel('wf')
    A(f"""s_branch {l2}
    {l}:
    s_sleep {FSLEEP or sleep}""")
    tick(A, exitlab)
    A(f"""{l2}:
    buffer_load_dword v{v_tmp}, v{v_addr}, {srd}, 0 offen sc1
    s_waitcnt vmcnt(0)
    v_cmp_gt_u32 vcc, s{s_need}, v{v_tmp}
    s_cbranch_vccnz {l}""")

def wait_flags_wg(A, v_addr, v_tmp, s_need, exitlab, sleep=6):
    l = A.newlabel('wg')
    A(f"s_cmp_lg_u32 s{S_WAVE}, 0\ns_cbranch_scc1 {l}")
    wait_flags(A, v_addr, v_tmp, s_need, exitlab, sleep)
    A(f"{l}:\ns_barrier")

def put_flag(A, s_off, s_val, vt):
    A(f"""v_mov_b32 v{vt}, s{s_val}
    s_mov_b64 exec, 1
    buffer_store_dword v{vt}, off, {srd}, s{s_off} sc1
    s_mov_b64 exec, -1""")

CSC = (192 ** -0.5) * math.log2(math.e)
NEG = 0xf149f2ca

def posA(kp, t):
    if kp < 3: return kp*6 + t
    if SELF and t >= 4: return 46 + (t-4)*7 + (kp-3)
    return 18 + (t//2)*14 + (kp-3)*2 + (t % 2)

def H(hooks, name, *a):
    if name in hooks: hooks[name](*a)

def role_A(A, exitlab, s_dbg, hooks, slow_too=True):
    w = S_WAVE
    set_lpos(LPOS_A)
    common_init(A)
    t0, t1, t2 = MOP, MOP+1, MOP+2
    A(f"v_lshrrev_b32 v{t0}, 4, v0")
    t_plane_base(A, V_TW, t0, t1, 1536)
    A(f"""v_and_b32 v{t1}, 15, v0
    s_mul_i32 s{S_T}, s{w}, 48
    v_add_u32 v{t1}, s{S_T}, v{t1}
    v_lshl_add_u32 v{V_TW}, v{t1}, 3, v{V_TW}
    v_and_b32 v{t2}, 3, v0""")
    t_plane_base(A, V_TR, t2, t1, 1536)
    A(f"""v_bfe_u32 v{t1}, v0, 2, 2
    v_lshl_add_u32 v{t1}, v{t0}, 3, v{t1}
    v_lshl_add_u32 v{V_TR}, v{t1}, 3, v{V_TR}
    v_add_u32 v{V_X1}, {L_X}, v{V_LANE16}
    v_and_b32 v{t2}, 1, v0""")
    t_plane_base(A, V_JUNK, t2, t1, 1536)
    A(f"""v_bfe_u32 v{t1}, v0, 2, 2
    v_lshl_add_u32 v{t1}, v{t0}, 3, v{t1}
    v_lshl_add_u32 v{V_JUNK}, v{t1}, 3, v{V_JUNK}
    v_and_b32 v{t1}, 15, v0
    v_lshlrev_b32 v{V_X2}, 4, v{t1}
    v_and_b32 v{t1}, 1, v{t0}
    v_lshl_add_u32 v{V_X2}, v{t1}, 3, v{V_X2}""")
    A(f"v_and_b32 v{t1}, 15, v0\ns_sub_u32 s{S_T}, s{w}, 1\ns_lshl_b32 s{S_T}, s{S_T}, 4\nv_add_u32 v{t1}, s{S_T}, v{t1}")
    for kt in range(2):
        for i in range(4):
            A(f"""v_lshlrev_b32 v{t2}, 2, v{t0}
            v_add_u32 v{t2}, {16*kt+i}, v{t2}
            v_cmp_le_i32 {sr(S_MSK+8*kt+2*i,2)}, v{t2}, v{t1}""")
    A(f"s_mov_b32 s{S_MSK+16}, 0\ns_mov_b32 s{S_MSK+17}, -1\ns_mov_b32 s{S_CSC}, {hexf(CSC)}\ns_mov_b32 s{S_O4}, {4-3200}")
    l = A.newlabel('a_i')
    A(f"""v_bfe_u32 v{t1}, v0, 4, 1
    v_lshlrev_b32 v{t1}, 2, v{t1}
    v_sub_u32 v{V_X3}, v{V_X2}, v{t1}
    s_cmp_lg_u32 s{w}, 0
    s_cbranch_scc1 {l}
    v_lshrrev_b32 v{t2}, 5, v0
    v_lshl_add_u32 v{V_X2}, v{t2}, 8, v{V_X2}
    {l}:""")
    A(f"""s_mul_i32 s{S_T}, s{S_H}, 12288
    s_add_u32 s{S_C1}, s{S_T}, {WS_KF}
    s_add_u32 s{S_C2}, s{S_T}, {WS_QF}
    s_lshl_b32 s{S_C3}, s{S_HL}, 9
    s_add_u32 s{S_C3}, s{S_C3}, {P_OFF}
    s_lshr_b32 s{S_T+1}, s{S_HL}, 1
    s_lshl_b32 s{S_T+1}, s{S_T+1}, 8
    s_and_b32 s{S_T+2}, s{S_HL}, 1
    s_lshl_b32 s{S_T+2}, s{S_T+2}, 3
    s_add_u32 s{S_C4}, s{S_T+1}, s{S_T+2}
    s_add_u32 s{S_C4}, s{S_C4}, {P_OFF+4096}
    s_sub_u32 s{S_T}, s{w}, 1
    s_and_b32 s{S_T}, s{S_T}, 1
    s_mul_i32 s{S_T}, s{S_T}, 10240
    s_add_u32 s{S_T}, s{S_T}, {PX_OFF}
    s_add_u32 s{S_T}, s{S_T}, s{S_CUR}
    s_lshl_b32 s{S_C5}, s{S_HL}, 10
    s_add_u32 s{S_C5}, s{S_C5}, s{S_T}
    s_lshl_b32 s{S_C6}, s{S_HL}, 8
    s_add_u32 s{S_C6}, s{S_C6}, s{S_T}
    s_add_u32 s{S_C6}, s{S_C6}, 8192
    s_add_u32 s{S_C3}, s{S_C3}, s{S_CUR}
    s_add_u32 s{S_C4}, s{S_C4}, s{S_CUR}
    s_mul_i32 s{S_T}, s{w}, 3072
    s_add_u32 s{S_C1}, s{S_C1}, s{S_T}
    s_add_u32 s{S_C2}, s{S_C2}, s{S_T}
    s_add_u32 s{S_O1}, s{S_T}, {L_X}""")
    def bulk_pieces():
        P = []
        for m, sp in enumerate((S_C1, S_C2)):
            for i in range(3):
                x = f"s_add_u32 m0, s{S_O1}, {m*12288}\n" if i == 0 else ''
                if not NOKQ: x += bdma(V_LANE16, sp, i*1024)
                if i == 2: x += f"\ns_add_u32 s{sp}, s{sp}, {SEG_QKV}"
                P.append(x)
        return P
    A(f"""s_load_dwordx4 s[{S_A}:{S_A+3}], s[0:1], {KA_WQ}
    s_mul_i32 s{S_T}, s{S_H}, 384
    s_waitcnt lgkmcnt(0)""")
    add64(A, S_A, S_A, f"s{S_T}"); add64(A, S_B, S_B, f"s{S_T}")
    load_heads(A, [(S_A, lambda kp, t: posA(kp, 2*t)), (S_B, lambda kp, t: posA(kp, 2*t+1))])
    H(hooks, 'rts', A, 2)
    l = A.newlabel('a_i')
    A(f"s_cmp_lg_u32 s{w}, 0\ns_cbranch_scc1 {l}\nv_mov_b32 v0, 0x40000000\nv_cndmask_b32 v0, v0, v{V_X3}, {sr(S_MSK+16,2)}\n{l}:")
    waitall(A, s_dbg, exitlab, V_LANE16, s_slow=S_SLOW)
    H(hooks, 'wait_in', A, 'first')
    for x in bulk_pieces(): A(x)
    A(f"s_add_u32 s{S_O1}, s{S_O1}, 24576\ns_mov_b32 s{S_O3}, -24576")
    if slow_too: A(f"s_cmp_lg_u32 s{S_SLOW}, 0\ns_cbranch_scc1 a_loop_slow")
    for ver in (['', '_slow'] if slow_too else ['']):
        LF = 'sc1' if ver else ''
        A(f"a_loop{ver}:")
        lg = Lg(A)
        for i in range(4): stg_load(lg, i)
        for i in range(24): A(f"v_mov_b32 v{ACC+i}, 0")
        H(hooks, 'wait_in', A, 'peek')
        H(hooks, 'stamp', A, 0)
        if ASLEEP: A(f"s_sleep {ASLEEP}")
        lg.all()
        dsq = ingest_mem(A, lg, exitlab) or []
        H(hooks, 'stamp', A, 1)
        seq = sorted([(kp, t) for kp in range(10) for t in range(6)], key=lambda a: posA(*a))
        KX = [MOP, MOP+4, MOP+8, STG+16, STG+20, STG+24, STG+28, STG, STG+4, STG+8, STG+12, ACC+4]
        kx_at = {20: [0], 22: [1], 24: [2], 27: [3], 29: [4], 31: [5], 33: [6], 35: [7], 37: [8], 39: [9], 41: [10], 46: [11]}
        S0, S1, SM = ACC+8, ACC+12, ACC
        def epi_ops(tp, pk=False):
            Q, K = ACC + 8*tp, ACC + 8*tp + 4
            ops = [f"v_permlane32_swap_b32 v{Q+r}, v{K+r}" for r in range(4)]
            if tp < 2 and not pk: ops += [f"v_add_f32 v{Q+r}, v{Q+r}, v{K+r}" for r in range(4)]
            else: ops += [f"v_pk_add_f32 {vr(Q+r,2)}, {vr(Q+r,2)}, {vr(K+r,2)}" for r in (0, 2)]
            ops += [f"v_cvt_pk_bf16_f32 v{K}, v{Q}, v{Q+1}", f"v_cvt_pk_bf16_f32 v{K+1}, v{Q+2}, v{Q+3}"]
            ops += [('ds', f"ds_write_b64 v{V_TW}, {vr(K,2)} offset:{L_T + tp*128}")]
            return ops
        def epi_self(c, off, pk=False):
            add = [f"v_pk_add_f32 {vr(c,2)}, {vr(c,2)}, {vr(c+2,2)}"] if pk else [f"v_add_f32 v{c}, v{c}, v{c+2}", f"v_add_f32 v{c+1}, v{c+1}, v{c+3}"]
            return [f"v_permlane32_swap_b32 v{c}, v{c+2}", f"v_permlane32_swap_b32 v{c+1}, v{c+3}"] + add + [f"v_cvt_pk_bf16_f32 v{c}, v{c}, v{c+1}",
                    ('ds', f"ds_write_b32 v{V_X3}, v{c} offset:{off}")]
        def sop(i, h):
            r = STG + 8*(i % 4) + 4*h
            return (f"ds_read_b128 {vr(r,4)}, v{V_WS} offset:{i*2048+1024*h}", ('w', i) if h else None)
        def kop(f): return (f"ds_read_b128 {vr(KX[f],4)}, v{V_X1} offset:{f*1024}", ('kx', f))
        DS = {}
        for g, x in zip(WGAPS, dsq): DS[g] = x
        sg = SGAPS
        for n, i in enumerate(range(4, 10)):
            DS[sg[2*n]] = sop(i, 0); DS[sg[2*n+1]] = sop(i, 1)
        for f, g in enumerate(KGAPS): DS[g] = kop(f)
        pend = []
        for p, (kp, t) in enumerate(seq):
            if p == AB1:
                lg.need(('mw', 2)); A("s_barrier"); H(hooks, 'stamp', A, 5)
                rest = read_mem_frags(A, lg, 1)
                for n, x in enumerate(rest):
                    assert AB1 + n not in DS
                    DS[AB1+n] = x
            kind, x = wloc(p)
            if kind == 'lds': lg.need(('w', x))
            if kp >= 3: lg.need(('m', kp))
            smf(A, ACC+4*t, MOP+4*kp, wreg(p))
            if p in DS: lg.ds(*DS[p])
            if p == EP0: pend += epi_ops(0)
            if p == 48: pend += epi_ops(1)
            if p == 55 and SELF: pend += epi_self(ACC+16, L_T + 256)
            if p == 31 and SELF: pend += [f"v_cndmask_b32 v{V_X3}, 0, 1, {sr(S_MSK+16,2)}", f"v_mad_i32_i24 v{V_X3}, v{V_X3}, s{S_O4}, v{V_TW}"]
            for _ in range(2 if (SELF and p >= 54) else 1):
                if pend:
                    o = pend.pop(0)
                    if isinstance(o, tuple): lg.ds(o[1])
                    else: A(o)
        assert not pend
        lx, l3, lend = f'a_xrows{ver}', f'a_w3{ver}', f'a_end{ver}'
        A(f"s_cmp_lg_u32 s{w}, 0")
        for o in (epi_self(ACC+20, L_T + 256 + 3200, True) if SELF else epi_ops(2)):
            if isinstance(o, tuple): lg.ds(o[1])
            else: A(o)
        A(f"v_mov_b32 v{V_X3}, 0x{NEG:x}")
        for r in range(4): A(f"v_cndmask_b32 v{SM+r}, v{V_X3}, 0, {sr(S_MSK+16,2)}")
        lg.all(); A("s_barrier")
        H(hooks, 'stamp', A, 2)
        A(f"s_cbranch_scc1 {lx}")
        QK = MOP + 12
        QQ = [MOP+36, ACC+16, ACC+20]
        lg = Lg(A)
        def rd_qq(kk):
            for q in range(2): lg.ds(f"ds_read_b64_tr_b16 {vr(QQ[kk%3]+2*q,2)}, v{V_JUNK} offset:{L_T + kk*256 + q*32}", ('qq', kk))
        def rd_qk(kk):
            for q in range(2): lg.ds(f"ds_read_b64_tr_b16 {vr(QK+4*kk+2*q,2)}, v{V_TR} offset:{L_T + kk*256 + q*32}", ('qk', kk))
        for kk in range(3): rd_qq(kk); rd_qk(kk)
        for kk in range(6):
            lg.need(('qq', kk))
            b = vr(QQ[kk%3], 4)
            A(f"v_mfma_f32_16x16x32_bf16 {vr(S0,4)}, {vr(KX[kk],4)}, {b}, {'0' if kk == 0 else vr(S0,4)}")
            A(f"v_mfma_f32_16x16x32_bf16 {vr(S1,4)}, {vr(KX[6+kk],4)}, {b}, {'0' if kk == 0 else vr(S1,4)}")
            lg.need(('qk', kk))
            A(f"v_mfma_f32_16x16x32_bf16 {vr(SM,4)}, {vr(QK+4*kk,4)}, {b}, {vr(SM,4)}")
            if kk + 3 < 6: rd_qq(kk+3); rd_qk(kk+3)
        H(hooks, 'stamp', A, 4)
        E = MOP; M_, T_, L_, G_ = MOP+8, MOP+9, MOP+10, MOP+11
        for n, s_ in enumerate((S0, S1, SM)):
            for j in range(2):
                A(f"v_cndmask_b32 v{E+2*n+j}, v{s_+j}, v{s_+2+j}, {sr(S_HI,2)}")
        A(f"""v_max3_f32 v{M_}, v{E}, v{E+1}, v{E+2}
        v_max3_f32 v{M_}, v{M_}, v{E+3}, v{E+4}
        v_max_f32 v{M_}, v{M_}, v{E+5}
        v_mul_f32 v{M_}, s{S_CSC}, v{M_}
        v_fma_f32 v{E}, v{E}, s{S_CSC}, -v{M_}
        v_fma_f32 v{E+1}, v{E+1}, s{S_CSC}, -v{M_}
        v_max_f32_dpp v{G_}, v{M_}, v{M_} row_ror:8 row_mask:0xf bank_mask:0xf
        v_mov_b32 v{T_}, v{G_}
        v_fma_f32 v{E+2}, v{E+2}, s{S_CSC}, -v{M_}
        v_fma_f32 v{E+3}, v{E+3}, s{S_CSC}, -v{M_}
        v_permlane16_swap_b32 v{G_}, v{T_}
        v_max_f32 v{G_}, v{G_}, v{T_}
        v_mov_b32 v{T_}, v{G_}
        v_fma_f32 v{E+4}, v{E+4}, s{S_CSC}, -v{M_}
        v_fma_f32 v{E+5}, v{E+5}, s{S_CSC}, -v{M_}
        v_permlane32_swap_b32 v{G_}, v{T_}
        v_max_f32 v{G_}, v{G_}, v{T_}
        v_sub_f32 v{G_}, v{M_}, v{G_}""")
        for j in range(6): A(f"v_exp_f32 v{E+j}, v{E+j}")
        A(f"""v_exp_f32 v{G_}, v{G_}
        v_pk_add_f32 {vr(M_,2)}, {vr(E,2)}, {vr(E+2,2)}
        v_pk_add_f32 {vr(M_,2)}, {vr(M_,2)}, {vr(E+4,2)}
        v_add_f32 v{L_}, v{M_}, v{T_}
        v_mul_f32 v{L_}, v{L_}, v{G_}
        v_mul_f32 v{E}, v{E}, v{G_}
        v_mul_f32 v{E+1}, v{E+1}, v{G_}
        v_add_f32_dpp v{L_}, v{L_}, v{L_} row_ror:8 row_mask:0xf bank_mask:0xf
        v_mov_b32 v{T_}, v{L_}
        v_mul_f32 v{E+2}, v{E+2}, v{G_}
        v_mul_f32 v{E+3}, v{E+3}, v{G_}
        v_permlane16_swap_b32 v{L_}, v{T_}
        v_add_f32 v{L_}, v{L_}, v{T_}
        v_mov_b32 v{T_}, v{L_}
        v_mul_f32 v{E+4}, v{E+4}, v{G_}
        v_mul_f32 v{E+5}, v{E+5}, v{G_}
        v_permlane32_swap_b32 v{L_}, v{T_}
        v_add_f32 v{L_}, v{L_}, v{T_}
        v_rcp_f32 v{L_}, v{L_}""")
        A(f"""v_pk_mul_f32 {vr(E,2)}, {vr(E,2)}, {vr(L_,2)} op_sel_hi:[1,0]
        v_pk_mul_f32 {vr(E+2,2)}, {vr(E+2,2)}, {vr(L_,2)} op_sel_hi:[1,0]
        v_cvt_pk_bf16_f32 v{E+16}, v{E}, v{E+1}
        v_cvt_pk_bf16_f32 v{E+17}, v{E+2}, v{E+3}
        v_and_or_b32 v{E+16}, v{E+16}, -2, s{S_TAG}""")
        A(bst(2, E+16, V_X2, S_C3, 0, LF))
        A(f"""v_pk_mul_f32 {vr(E+4,2)}, {vr(E+4,2)}, {vr(L_,2)} op_sel_hi:[1,0]
        v_cvt_pk_bf16_f32 v{E+18}, v{E+4}, v{E+5}
        v_and_or_b32 v{E+18}, v{E+18}, -2, s{S_TAG}""")
        A(bst(1, E+18, 0, S_C4, 0, LF))
        H(hooks, 'stamp', A, 3)
        A(f"s_branch {lend}")
        A(f"{l3}:")
        H(hooks, 'steplog', A)
        if KQW3:
            for m, sp in enumerate((S_C1, S_C2)):
                for i in range(12):
                    if i % 3 == 0: A(f"s_add_u32 m0, s{S_O1}, {m*12288 + i*1024 - 9216}\ns_add_u32 s{S_T}, s{sp}, {i*1024 - 9216}")
                    if not NOKQ: A(bdma(V_LANE16, S_T, (i % 3)*1024))
                A(f"s_add_u32 s{sp}, s{sp}, {SEG_QKV}")
        A(f"s_sleep {(7 if KQW3 else 12) if ASLEEP else 0}\ns_branch {lend}")
        A(f"{lx}:\ns_cmp_eq_u32 s{w}, 3\ns_cbranch_scc1 {l3}")
        lg = Lg(A)
        A(f"s_mul_i32 s{S_T}, s{w}, 6144\nv_add_u32 v{V_JUNK}, s{S_T}, v{V_X1}")
        def rd_qx(kk): lg.ds(f"ds_read_b128 {vr(QQ[kk%3],4)}, v{V_JUNK} offset:{6144 + kk*1024}", ('qq', kk))
        for kt, s_ in enumerate((S0, S1)):
            for r in range(4): A(f"v_cndmask_b32 v{s_+r}, v{V_X3}, 0, {sr(S_MSK+8*kt+2*r,2)}")
        for kk in range(3): rd_qx(kk); rd_qk(kk)
        for kk in range(6):
            lg.need(('qq', kk))
            b = vr(QQ[kk%3], 4)
            A(f"v_mfma_f32_16x16x32_bf16 {vr(S0,4)}, {vr(KX[kk],4)}, {b}, {vr(S0,4)}")
            A(f"v_mfma_f32_16x16x32_bf16 {vr(S1,4)}, {vr(KX[6+kk],4)}, {b}, {vr(S1,4)}")
            lg.need(('qk', kk))
            A(f"v_mfma_f32_16x16x32_bf16 {vr(SM,4)}, {vr(QK+4*kk,4)}, {b}, {vr(SM,4)}")
            if kk + 3 < 6: rd_qx(kk+3); rd_qk(kk+3)
        vals = [S0+i for i in range(4)] + [S1+i for i in range(4)] + [SM+i for i in range(4)]
        A(f"v_max3_f32 v{M_}, v{vals[0]}, v{vals[1]}, v{vals[2]}")
        for j in range(3, 11, 2): A(f"v_max3_f32 v{M_}, v{M_}, v{vals[j]}, v{vals[j+1]}")
        A(f"v_max_f32 v{M_}, v{M_}, v{vals[11]}")
        xlane_max_g(A, M_, T_)
        A(f"v_mul_f32 v{M_}, s{S_CSC}, v{M_}")
        for v in vals: A(f"v_fma_f32 v{v}, v{v}, s{S_CSC}, -v{M_}")
        for v in vals: A(f"v_exp_f32 v{v}, v{v}")
        A(f"v_add_f32 v{L_}, v{vals[0]}, v{vals[1]}")
        for v in vals[2:]: A(f"v_add_f32 v{L_}, v{L_}, v{v}")
        xlane_sum_g(A, L_, T_)
        A(f"v_rcp_f32 v{L_}, v{L_}")
        for v in vals: A(f"v_mul_f32 v{v}, v{v}, v{L_}")
        for n in range(6): A(f"v_cvt_pk_bf16_f32 v{E+n}, v{vals[2*n]}, v{vals[2*n+1]}")
        A(f"""s_bfe_u32 s{S_T}, s{S_STEP}, 0x10002
        s_and_b32 s{S_T+1}, s{S_STEP}, 3
        s_lshl_b32 s{S_T+1}, s{S_T+1}, 15
        s_add_u32 s{S_T+2}, s{S_T+1}, s{S_C6}
        s_add_u32 s{S_T+1}, s{S_T+1}, s{S_C5}
        v_and_or_b32 v{E}, v{E}, -2, s{S_T}
        v_and_or_b32 v{E+4}, v{E+4}, -2, s{S_T}""")
        A(bst(4, E, V_LANE16, S_T+1, 0, LF))
        A("s_mov_b32 exec_lo, 0")
        A(bst(2, E+4, V_X2, S_T+2, 0, LF))
        A("s_mov_b32 exec_lo, -1")
        A(f"{lend}:")
        H(hooks, 'stamp', A, 6)
        if 'wait_in' in hooks:
            lb = A.newlabel('kq')
            A(f"s_cmp_eq_u64 {sr(S_EVEN,2)}, 0\ns_cbranch_scc1 {lb}")
            H(hooks, 'wait_in', A, 'block')
            if KQEND: A(f"{lb}:")
            for x in bulk_pieces(): A(x)
            if not KQEND: A(f"{lb}:")
        next_step(A)
        A(f"""s_add_u32 s{S_O1}, s{S_O1}, s{S_O3}
        s_sub_u32 s{S_O3}, 0, s{S_O3}
        v_add_u32 v{V_X1}, s{S_O3}, v{V_X1}
        s_cmp_lt_u32 s{S_STEP}, {NSEG}
        s_cbranch_scc1 a_loop{ver}
        s_branch a_fin""")
    A("a_fin:")
    H(hooks, 'final', A)
    A(f"v_lshrrev_b32 v0, 4, v{V_LANE16}\ns_branch {hooks['next_ab']}")

def posB_v(kp, t):
    if kp < 3: return kp*3 + t
    if TRIM and t < 2: return 9 + 2*(kp-3) + t
    return 9 + t*7 + (kp-3)
def posB_o(pr, kk): return 30 + (kk*2 + pr if pr < 2 else pr*6 + kk)

def role_B(A, exitlab, s_dbg, hooks, slow_too=True):
    w = S_WAVE
    set_lpos(LPOS_B)
    common_init(A)
    t0, t1, t2 = MOP, MOP+1, MOP+2
    A(f"""v_lshrrev_b32 v{t0}, 4, v0
    v_and_b32 v{t1}, 1, v{t0}
    v_mul_u32_u24 v{V_TW}, 1568, v{t1}
    v_and_b32 v{t1}, 15, v0
    s_mul_i32 s{S_T}, s{w}, 48
    v_add_u32 v{t1}, s{S_T}, v{t1}
    v_lshl_add_u32 v{V_TW}, v{t1}, 3, v{V_TW}
    v_lshrrev_b32 v{t1}, 5, v0
    v_lshl_add_u32 v{V_X1}, v{t1}, 2, v{V_TW}
    v_lshl_add_u32 v{V_TW}, v{t1}, 7, v{V_TW}
    v_and_b32 v{t1}, 1, v0
    v_mul_u32_u24 v{V_TR}, 1568, v{t1}
    v_bfe_u32 v{t1}, v0, 2, 2
    v_lshl_add_u32 v{V_TR}, v{t1}, 3, v{V_TR}
    v_lshl_add_u32 v{V_TR}, v{t0}, 6, v{V_TR}
    v_and_b32 v{t1}, 15, v0
    v_lshlrev_b32 v{V_X2}, 4, v{t1}
    v_and_b32 v{t1}, 1, v{t0}
    v_lshl_add_u32 v{V_X2}, v{t1}, 3, v{V_X2}
    v_lshrrev_b32 v{t1}, 5, v0
    v_lshl_add_u32 v{V_X2}, v{t1}, 10, v{V_X2}""")
    A(f"""s_lshr_b32 s{S_T}, s{S_HL}, 2
    s_mul_i32 s{S_T}, s{S_T}, 40960
    s_mul_i32 s{S_T+1}, s{w}, 10240
    s_add_u32 s{S_T}, s{S_T}, s{S_T+1}
    s_and_b32 s{S_T+1}, s{S_HL}, 3
    s_lshl_b32 s{S_T+1}, s{S_T+1}, 8
    s_add_u32 s{S_T}, s{S_T}, s{S_T+1}
    s_add_u32 s{S_T}, s{S_T}, s{S_CUR}
    s_add_u32 s{S_C1}, s{S_T}, {Y_OFF}
    s_add_u32 s{S_C2}, s{S_C1}, 4096
    s_add_u32 s{S_C3}, s{S_C1}, 8192
    s_mul_i32 s{S_C4}, s{S_H}, 40960
    s_mul_i32 s{S_T}, s{w}, 10240
    s_add_u32 s{S_C4}, s{S_C4}, s{S_T}
    s_add_u32 s{S_C4}, s{S_C4}, {WS_UF + 2*SEG_U}
    s_mul_i32 s{S_C5}, s{S_H}, 12288
    s_mul_i32 s{S_T}, s{w}, 3072
    s_add_u32 s{S_C5}, s{S_C5}, s{S_T}
    s_add_u32 s{S_C6}, s{S_C5}, {WS_QF + 2*SEG_QKV}
    s_add_u32 s{S_C5}, s{S_C5}, {WS_KF + 2*SEG_QKV}
    v_mov_b32 v{V_JUNK}, 0""")
    YSO = [S_C1, S_C2, S_C3]
    A(f"""s_load_dwordx4 s[{S_A}:{S_A+3}], s[0:1], {KA_WV}
    s_mul_i32 s{S_T}, s{S_H}, 384
    s_mul_i32 s{S_T+1}, s{S_H}, 245760
    s_mul_i32 s{S_T+2}, s{w}, 320
    s_add_u32 s{S_T+1}, s{S_T+1}, s{S_T+2}
    s_waitcnt lgkmcnt(0)""")
    add64(A, S_A, S_A, f"s{S_T}"); add64(A, S_B, S_B, f"s{S_T+1}")
    load_heads(A, [(S_A, posB_v)])
    A(f"s_mul_i32 s{S_T+4}, s{w}, 20480")
    d_, t_ = MOP+2, MOP+3
    A(f"""v_bfe_u32 v{d_}, v0, 2, 1
    v_lshrrev_b32 v{t_}, 4, v0
    v_lshl_add_u32 v{d_}, v{t_}, 2, v{d_}
    v_mul_u32_u24 v{d_}, 320, v{d_}
    v_bfe_u32 v{t_}, v0, 3, 1
    v_lshl_add_u32 v{d_}, v{t_}, 5, v{d_}
    v_and_b32 v{t_}, 3, v0
    v_lshl_add_u32 v{d_}, v{t_}, 3, v{d_}
    v_add_u32 v{d_}, s{S_T+4}, v{d_}""")
    def reads(A, r, off):
        for pr in range(5):
            read_operand(A, posB_o(pr, r), MOP+2, off + pr*64, 320, hrows=16)
    load_w_rows(A, S_B, 1280, 20, 192, 32, 2, S_T+4, 0, S_T, MOP, reads)
    A("s_barrier")
    H(hooks, 'rts', A, 2)
    waitall(A, s_dbg, exitlab, V_LANE16, s_slow=S_SLOW)
    if slow_too: A(f"s_cmp_lg_u32 s{S_SLOW}, 0\ns_cbranch_scc1 b_loop_slow")
    for ver in (['', '_slow'] if slow_too else ['']):
        LF = 'sc1' if ver else ''
        A(f"b_loop{ver}:")
        lg = Lg(A)
        for i in range(4): stg_load(lg, i)
        for i in range(24): A(f"v_mov_b32 v{ACC+i}, 0")
        H(hooks, 'stamp', A, 0)
        if BSLEEP: A(f"s_sleep {BSLEEP}")
        lg.all()
        dsq = ingest_mem(A, lg, exitlab) or []
        late = []
        H(hooks, 'stamp', A, 1)
        def btouch(vt):
            lb = A.newlabel('bt')
            H(hooks, 'b_ready', A, lb)
            A(f"v_lshlrev_b32 v{vt}, 3, v{V_LANE16}\ns_mov_b32 m0, {L_X}")
            A(f"buffer_load_dword v{vt}, {srd}, s{S_C4} offen lds")
            A(f"s_add_u32 s{S_T}, s{S_C4}, 8192\ns_mov_b64 exec, 0xffff")
            A(f"buffer_load_dword v{vt}, {srd}, s{S_T} offen lds")
            if BTOUCH > 1:
                A(f"s_mov_b64 exec, 0xffffff")
                A(f"buffer_load_dword v{vt}, {srd}, s{S_C5} offen lds")
                A(f"buffer_load_dword v{vt}, {srd}, s{S_C6} offen lds")
            A(f"s_mov_b64 exec, -1\n{lb}:")
        seqv = sorted([(kp, t) for kp in range(10) for t in range(3)], key=lambda a: posB_v(*a))
        pend = []
        DS = {}
        for g, x in zip(WGAPS, dsq): DS[g] = x
        for n, i in enumerate(range(4, 10)):
            for h in range(2):
                DS[SGAPSB[2*n+h]] = (f"ds_read_b128 {vr(STG+8*(i%4)+4*h,4)}, v{V_WS} offset:{i*2048+1024*h}", ('w', i) if h else None)
        for p, (kp, t) in enumerate(seqv):
            if p == BB1:
                lg.need(('mw', 2)); A("s_barrier")
                for n, x in enumerate(read_mem_frags(A, lg, BNOW)):
                    assert BB1 + n not in DS
                    DS[BB1+n] = x
            kind, x = wloc(p)
            if kind == 'lds': lg.need(('w', x))
            if kp >= 3: lg.need(('m', kp))
            smf(A, ACC+4*t, MOP+4*kp, wreg(p))
            if p in DS: lg.ds(*DS[p])
            if p == 25:
                a, b = ACC, ACC+4
                pend += [f"v_permlane32_swap_b32 v{a+r}, v{b+r}" for r in range(4)]
                pend += [f"v_pk_add_f32 {vr(a,2)}, {vr(a,2)}, {vr(b,2)}\nv_pk_add_f32 {vr(a+2,2)}, {vr(a+2,2)}, {vr(b+2,2)}"]
            if pend: A(pend.pop(0))
        assert not pend
        A(f"v_cvt_pk_bf16_f32 v{ACC+4}, v{ACC}, v{ACC+1}\nv_cvt_pk_bf16_f32 v{ACC+5}, v{ACC+2}, v{ACC+3}")
        lg.ds(f"ds_write_b64 v{V_TW}, {vr(ACC+4,2)} offset:{L_T}")
        YA = [ACC+12, ACC+16, ACC+20, MOP+24, MOP+28]
        c = ACC + 8
        A(f"""v_permlane32_swap_b32 v{c}, v{c+2}
        v_permlane32_swap_b32 v{c+1}, v{c+3}
        v_pk_add_f32 {vr(c,2)}, {vr(c,2)}, {vr(c+2,2)}
        v_cvt_pk_bf16_f32 v{c}, v{c}, v{c+1}""")
        lg.ds(f"ds_write_b32 v{V_X1}, v{c} offset:{L_T+256}")
        for i in range(8): A(f"v_mov_b32 v{MOP+24+i}, 0")
        lg.all(); A("s_barrier")
        H(hooks, 'stamp', A, 2)
        for kk in range(6):
            for q in range(2):
                lg.ds(f"ds_read_b64_tr_b16 {vr(MOP+4*kk+2*q,2)}, v{V_TR} offset:{L_T + kk*256 + q*32}", ('v', kk))
        def yepi(pr):
            a = YA[pr]
            return [f"v_cvt_pk_bf16_f32 v{a}, v{a}, v{a+1}", f"v_cvt_pk_bf16_f32 v{a+1}, v{a+2}, v{a+3}",
                    f"v_and_or_b32 v{a}, v{a}, -2, s{S_TAG}\n" + bst(2, a, V_X2, YSO[pr//2], (pr % 2)*2048, LF)]
        pend = []
        seqy = sorted([(posB_o(pr, kk), pr, kk) for pr in range(5) for kk in range(6)])
        for p, pr, kk in seqy:
            kind, x = wloc(p)
            if kind == 'lds': lg.need(('w', x))
            lg.need(('v', kk))
            smf(A, YA[pr], MOP+4*kk, wreg(p))
            if p in DS: lg.ds(*DS[p])
            if p == 43: pend += yepi(0) + yepi(1)
            if p == 50: pend += yepi(2)
            if p == 56: pend += yepi(3)
            if pend: A(pend.pop(0))
        for o in pend + yepi(4): A(o)
        H(hooks, 'stamp', A, 3)
        if BTOUCH:
            if not BTEARLY: btouch(MOP)
            H(hooks, 'b_peek', A)
            A(f"s_add_u32 s{S_C4}, s{S_C4}, {SEG_U}\ns_add_u32 s{S_C5}, s{S_C5}, {SEG_QKV}\ns_add_u32 s{S_C6}, s{S_C6}, {SEG_QKV}")
        next_step(A)
        A(f"""s_cmp_lt_u32 s{S_STEP}, {NSEG}
        s_cbranch_scc1 b_loop{ver}
        s_branch b_fin""")
    A("b_fin:")
    H(hooks, 'final', A)
    A(f"s_branch {hooks['next_ab']}")

GREP = int(os.environ.get('GREP', '4'))
GPRE = int(os.environ.get('GPRE', '2'))
GGAP = int(os.environ.get('GGAP', '4'))
PPIPE = int(os.environ.get('PPIPE', '2'))
GMODE = os.environ.get('GMODE', 'load')
QREJ = int(os.environ.get('QREJ', '1'))
GLOOPGAP = int(os.environ.get('GLOOPGAP', '0'))

def role_R(A, exitlab, s_dbg, hooks, slow_too=True):
    w = S_WAVE
    LU, LY = 0, 98304
    VL, VIDX, VT, VG, VM, VTM, VU, VY = 1, V_IDX, 2, 3, 4, 5, 6, 7
    A(f"""v_lshlrev_b32 v{VL}, 4, v0
    s_mov_b32 s{S_HI}, 0xff00ff00
    s_mov_b32 s{S_HI+1}, 0xff00ff00
    v_mov_b32 v{VIDX}, 0x4444
    v_mov_b32 v{VT}, 0xeeee
    v_cndmask_b32 v{VIDX}, v{VIDX}, v{VT}, {sr(S_HI,2)}
    s_mov_b32 s{S_SEL0}, 0x00003f80
    s_mov_b32 s{S_SEL1}, 0x3f800000
    s_lshl_b32 s{S_CUR}, s{S_GRP}, 18
    s_add_u32 s{S_CUR}, s{S_CUR}, {LBASE}
    s_mov_b32 s{S_TAG}, 0
    s_mov_b32 s{S_STEP}, 0
    s_mov_b32 s{S_EVEN}, 0x55555555
    s_mov_b32 s{S_EVEN+1}, 0x55555555
    s_lshl_b32 s{S_T}, s{S_HL}, 2
    s_add_u32 s{S_T}, s{S_T}, s{w}
    s_mul_i32 s{S_T}, s{S_T}, 6144
    s_add_u32 s{S_T}, s{S_T}, s{S_CUR}
    s_add_u32 s{S_T}, s{S_T}, {P_OFF}
    s_add_u32 s{S_T+1}, s{S_T}, 3072""")
    for i in range(4): A(f"v_mov_b32 v{20+i}, -1")
    for i in range(6): A(bst(4, 20, VL, S_T + i//3, (i % 3)*1024, 'sc1'))
    A(f"""s_cmp_ge_u32 s{w}, 2
    s_cbranch_scc1 r_x""")
    S_UGc, S_UDc, S_ULc, S_LATE = S_MSK+8, S_MSK+9, S_MSK+10, S_MSK+12
    A(f"""s_mul_i32 s{S_UGc}, s{S_GRP}, {8*40960}
    s_lshl_b32 s{S_T+1}, s{S_HL}, 1
    s_add_u32 s{S_T+1}, s{S_T+1}, s{w}
    s_lshl_b32 s{S_T+1}, s{S_T+1}, 11
    s_add_u32 s{S_UGc}, s{S_UGc}, s{S_T+1}
    s_add_u32 s{S_UGc}, s{S_UGc}, {WS_UF}
    s_lshl_b32 s{S_ULc}, s{w}, 14
    s_mov_b32 s{S_UDc}, 0""")
    S_GS, S_GR = S_MSK, S_MSK+4
    S_YC, S_YC2, S_PC, S_MO, S_UB, S_TAGN, S_GD = S_C1, S_C2, S_C3, S_C4, S_C5, S_C6, S_O1
    A(f"""s_load_dwordx2 {sr(S_A,2)}, s[0:1], {KA_MEM0}
    s_lshl_b32 s{S_T}, s{S_HL}, 1
    s_add_u32 s{S_T}, s{S_T}, s{w}
    s_lshr_b32 s{S_T+1}, s{S_T}, 4
    s_lshl_b32 s{S_T+1}, s{S_T+1}, 14
    s_and_b32 s{S_T+2}, s{S_T}, 15
    s_lshl_b32 s{S_T+2}, s{S_T+2}, 9
    s_add_u32 s{S_T+1}, s{S_T+1}, s{S_T+2}""")
    for k in range(NG):
        A(f"""s_xor_b32 s{S_T+2}, s{S_GRP}, {k}
        s_lshl_b32 s{S_T+2}, s{S_T+2}, 18
        s_add_u32 s{S_GS+k}, s{S_T+2}, s{S_T+1}""")
    A(f"""s_lshl_b32 s{S_T+1}, s{S_T}, 11
    s_add_u32 s{S_YC}, s{S_T+1}, s{S_CUR}
    s_add_u32 s{S_YC}, s{S_YC}, {Y_OFF}
    s_add_u32 s{S_YC2}, s{S_YC}, 40960
    s_add_u32 s{S_PC}, s{S_CUR}, {P_OFF}
    s_add_u32 s{S_O2}, s{S_PC}, 4096
    s_lshl_b32 s{S_MO}, s{S_T}, 9
    s_add_u32 s{S_MO}, s{S_MO}, s{S_CUR}
    s_add_u32 s{S_MO}, s{S_MO}, {M_OFF}
    s_mov_b32 s{S_UB}, 0
    s_mov_b32 s{S_GD}, {GSLOT}
    v_lshlrev_b32 v{VG}, 3, v0
    s_lshl_b32 s{S_T+1}, s{w}, 11
    v_add_u32 v{VU}, s{S_T+1}, v{VL}
    s_lshl_b32 s{S_T+1}, s{w}, 12
    s_add_u32 s{S_T+1}, s{S_T+1}, {LY}
    v_add_u32 v{VY}, s{S_T+1}, v{VL}""")
    t = 16
    A(f"""v_bfe_u32 v{VM}, v0, 5, 1
    v_bfe_u32 v{t}, v0, 3, 1
    v_lshl_add_u32 v{VM}, v{VM}, 1, v{t}
    v_bfe_u32 v{t}, v0, 4, 1
    v_lshl_add_u32 v{VM}, v{VM}, 1, v{t}
    v_and_b32 v{t}, 1, v0
    v_lshl_add_u32 v{VM}, v{VM}, 1, v{t}
    v_bfe_u32 v{t}, v0, 1, 2
    v_lshl_add_u32 v{VM}, v{VM}, 3, v{t}
    v_lshlrev_b32 v{VM}, 2, v{VM}
    v_cmp_eq_u32 vcc, 0, v{t}
    v_cndmask_b32 v{VTM}, 0, 1, vcc""")
    A(f"""v_bfe_u32 v{t}, v0, 1, 3
    v_mul_u32_u24 v{t}, 1280, v{t}
    v_lshrrev_b32 v{t+1}, 4, v0
    v_lshl_add_u32 v{t}, v{t+1}, 4, v{t}
    v_and_b32 v{t+1}, 1, v0
    v_lshl_add_u32 v{t}, v{t+1}, 3, v{t}
    s_lshl_b32 s{S_T}, s{S_T}, 6
    v_add_u32 v{t}, s{S_T}, v{t}
    s_waitcnt lgkmcnt(0)
    global_load_dwordx2 {vr(t+2,2)}, v{t}, {sr(S_A,2)}
    v_cndmask_b32 v{t+1}, -1, -2, {sr(S_EVEN,2)}
    v_mov_b32 v{t+4}, -1
    v_mov_b32 v{t+5}, -1
    s_waitcnt vmcnt(0)
    v_and_b32 v{t+2}, v{t+1}, v{t+2}""")
    A(bst(2, t+2, VG, S_MO, 0, 'sc1'))
    VGR = 240
    A(f"s_add_u32 s{S_T}, s{S_GS}, {GSLOT}\ns_add_u32 s{S_T+1}, s{S_GS}, 8192\ns_add_u32 s{S_T+2}, s{S_T}, 8192")
    for r in range(GREP):
        A(f"v_add_u32 v{VGR+r}, {r*GBLK}, v{VG}")
        for so in (S_GS, S_T, S_T+1, S_T+2): A(bst(2, t+4, VGR+r, so, 0, 'sc1'))
    checkin(A, s_dbg)
    H(hooks, 'r_pre', A)
    waitall(A, s_dbg, exitlab, VL, s_slow=S_SLOW, s_pol=S_POL)
    for k in range(NG): A(f"s_add_u32 s{S_GS+k}, s{S_GS+k}, s{S_POL}")
    H(hooks, 'wait_u', A, 0)
    if slow_too: A(f"s_cmp_lg_u32 s{S_SLOW}, 0\ns_cbranch_scc1 r_loop_slow")
    UR = lambda t_, hh: 32 + 32*t_ + 4*hh
    YR = lambda t_, q: 96 + 8*t_ + 4*q
    PS = lambda st, f: 112 + 20*st + 4*f
    RA = 16
    GO, GF = 24, 26
    GS = lambda st, k: 172 + 8*st + 2*k
    def upark():
        return [f"ds_write_b128 v{VU}, {vr(UR(t_,hh),4)} offset:{hh*4096+t_*1024}" for hh in range(8) for t_ in range(2)] + [f"v_xor_b32 v{VU}, 32768, v{VU}"]
    def ypark():
        for t_ in range(2):
            for q in range(2): A(f"ds_write_b128 v{VY}, {vr(YR(t_,q),4)} offset:{t_*2048+q*1024}")
        A(f"v_xor_b32 v{VY}, 8192, v{VY}")
    for ver in (['', '_slow'] if slow_too else ['']):
        LF = 'sc1' if ver else ''
        A(f"r_loop{ver}:")
        H(hooks, 'stamp', A, 0)
        lg = Lg(A)
        A(f"""s_bfe_u32 s{S_TAGM}, s{S_STEP}, 0x10001
        s_xor_b32 s{S_TAGN}, s{S_TAG}, 1
        s_xor_b32 s{S_T}, s{S_TAGM}, 1
        v_mov_b32 v{GF}, s{S_T}""")
        if XLEAD: A(f"s_sleep {XLEAD}")
        def scrub():
            for r in range(GREP if SCRUB else 0): A(bst(2, GF, VGR+r, S_GS, 0, 'sc1'))
        H(hooks, 'cached_u', A)
        if SCRPOS == 0: scrub()
        for hh in range(8):
            if SCRPOS == 2 and hh == 4: scrub()
            for t_ in range(2):
                if not NOU: A(bld(4, UR(t_, hh), VL, S_UGc, t_*1024))
            A(f"s_add_u32 s{S_UGc}, s{S_UGc}, {40960 if hh < 7 else SEG_U - 7*40960}")
        H(hooks, 'peek_u', A)
        if SCRPOS == 1: scrub()
        A("s_waitcnt vmcnt(0)"); H(hooks, 'stamp', A, 6)
        if UPARK == 0:
            for x in upark(): A(x)
        if RSLEEP: A(f"s_sleep {RSLEEP}")
        shadow = None
        yl = lambda b: [bld(4, b+8*t_+4*q, VL, [S_YC, S_YC2][q], t_*1024, 'sc1') for t_ in range(2) for q in range(2)]
        yc = lambda b: [b+2*i for i in range(8)]
        if not YPIPE:
            poll(A, 'ry', yl(YR(0, 0)), yc(YR(0, 0)), S_TAG, exitlab, shadow)
        else:
            Y0, Y1 = 220, YR(0, 0)
            lp, n0, jj = A.newlabel('py'), A.newlabel('py'), A.newlabel('py')
            for x in yl(Y0): A(x)
            A(f"s_sleep {YPIPE}\n{lp}:")
            for x in yl(Y1): A(x)
            tick(A, exitlab)
            A("s_waitcnt vmcnt(4)")
            check(A, yc(Y0), S_TAG, n0)
            A(f"s_branch {jj}\n{n0}:")
            for x in yl(Y0): A(x)
            A("s_waitcnt vmcnt(4)")
            check(A, yc(Y1), S_TAG, lp)
            A(f"{jj}:")
        H(hooks, 'stamp', A, 1)
        def pl(st):
            for f in range(4): A(bld(4, PS(st, f), VL, S_PC, f*1024, 'sc1'))
            A(bld(4, PS(st, 4), VL, S_O2, 0, 'sc1'))
        A(f"s_cmp_ge_u32 s{S_STEP}, {NSEG-1}\ns_cbranch_scc1 r_last")
        for st in range(PPIPE-1): pl(st)
        lg.all()
        lp, lok = A.newlabel('rp'), A.newlabel('rok')
        nx = [A.newlabel('rn') for _ in range(PPIPE)]
        for i in range(8): A(f"v_mov_b32 v{RA+i}, 0")
        A(f"{lp}:")
        for st in range(PPIPE):
            pl((st+PPIPE-1) % PPIPE)
            if st == 0: tick(A, exitlab)
            A(f"s_waitcnt vmcnt({5*(PPIPE-1)})")
            ck = [PS(st, f)+j for f in range(4) for j in (0, 2)] + [PS(st, 4)+j for j in ((1, 3) if QREJ else range(4))]
            if QREJ: check(A, [PS(st, 4), PS(st, 4)+2], S_TAG, nx[st] if st < PPIPE-1 else lp)
            ops = [f"v_bitop3_b32 v{V_X3}, v{ck[0]}, v{ck[1]}, s{S_TAG} bitop3:0x7e"]
            ops += [f"v_bitop3_b32 v{V_X3}, v{x}, v{V_X3}, s{S_TAG} bitop3:0xde" for x in ck[2:]]
            ops += [f"v_and_b32 v{V_X3}, 1, v{V_X3}", f"v_cmp_ne_u32 vcc, 0, v{V_X3}"]
            for f in range(5):
                for t_ in range(2):
                    smf(A, RA+4*t_, PS(st, f), UR(t_, 2*f) if f < 4 else YR(t_, 0))
                    A(ops.pop(0))
            for o in ops: A(o)
            A(f"s_nop {4 if QREJ else 2}\ns_cbranch_vccz {lok}")
            for i in range(8): A(f"v_mov_b32 v{RA+i}, 0")
            if st < PPIPE-1: A(f"{nx[st]}:")
            else: A(f"s_branch {lp}")
        A(f"{lok}:")
        H(hooks, 'stamp', A, 2)
        a, b = RA, RA+4
        A(f"s_mov_b64 vcc, {sr(S_EVEN,2)}")
        for r in range(4): A(f"v_permlane32_swap_b32 v{a+r}, v{b+r}")
        A(f"""v_pk_add_f32 {vr(a,2)}, {vr(a,2)}, {vr(b,2)}
        v_pk_add_f32 {vr(a+2,2)}, {vr(a+2,2)}, {vr(b+2,2)}
        v_cvt_pk_bf16_f32 v{b}, v{a}, v{a+1}
        v_cvt_pk_bf16_f32 v{b+1}, v{a+2}, v{a+3}
        v_cndmask_b32_dpp v{GO}, v{b+1}, v{b}, vcc quad_perm:[0,0,2,2] row_mask:0xf bank_mask:0xf
        s_not_b64 vcc, vcc
        v_and_or_b32 v{GO}, v{GO}, -2, s{S_TAGM}
        v_cndmask_b32_dpp v{GO+1}, v{b}, v{b+1}, vcc quad_perm:[1,1,3,3] row_mask:0xf bank_mask:0xf""")
        for r in range(GREP): A(bst(2, GO, VGR+r, S_GS, 0, 'sc1'))
        H(hooks, 'stamp', A, 3)
        ypark()
        A(f"""v_lshlrev_b32 v{GF}, 16, v{GO}
        v_and_b32 v{GF+1}, 0xffff0000, v{GO}
        v_lshlrev_b32 v{GF+2}, 16, v{GO+1}
        v_and_b32 v{GF+3}, 0xffff0000, v{GO+1}""")
        fill = upark() if UPARK else []
        def gap(n):
            k = min(len(fill), n*UPARK)
            for _ in range(k): A(fill.pop(0))
            if n and k < n*max(UPARK, 1): A(f"s_sleep {n - k//max(UPARK, 1)}")
        gap(GDELAY)
        def gl(r):
            for k in range(1, NG): A(bld(2, GS(r, k), VGR+r, S_GS+k, 0, 'sc1'))
        def gc(r, lab):
            A(f"""v_bitop3_b32 v{V_X3}, v{GS(r,1)}, v{GS(r,2)}, s{S_TAGM} bitop3:0x7e
            v_bitop3_b32 v{V_X3}, v{GS(r,3)}, v{V_X3}, s{S_TAGM} bitop3:0xde
            v_and_b32 v{V_X3}, 1, v{V_X3}
            v_cmp_ne_u32 vcc, 0, v{V_X3}
            s_cbranch_vccz {lab}""")
        lp, lj = A.newlabel('rg'), A.newlabel('rj')
        oks = [A.newlabel('rgo') for _ in range(GREP)]
        pre = min(GPRE, GREP)
        for r in range(pre):
            gl(r)
            if r < pre-1: gap(GGAP)
        for x in fill: A(x)
        for r in range(GREP):
            A(f"s_waitcnt vmcnt({(NG-1)*(min(r+pre, GREP)-1-r)})")
            gc(r, oks[r])
            if r + pre < GREP: gl(r+pre)
        A(f"{lp}:")
        gl(0); tick(A, exitlab)
        A("s_waitcnt vmcnt(0)")
        gc(0, oks[0])
        A(f"s_branch {lp}")
        for st in range(GREP):
            A(f"{oks[st]}:")
            for k in range(1, NG):
                for j in range(4):
                    A(f"v_dot2_f32_bf16 v{GF+j}, v{GS(st,k)+j//2}, s{[S_SEL0, S_SEL1][j % 2]}, v{GF+j}")
            A(f"""v_cvt_pk_bf16_f32 v{GO}, v{GF}, v{GF+2}
            v_cvt_pk_bf16_f32 v{GO+1}, v{GF+1}, v{GF+3}
            v_bfi_b32 v{GO}, v{VTM}, s{S_TAGN}, v{GO}
            v_bfi_b32 v{GO+1}, v{VTM}, s{S_TAGN}, v{GO+1}""")
            A(bst(1, GO, VM, S_MO, 0, LF)); A(bst(1, GO+1, VM, S_MO, 16, LF))
            if st < GREP-1: A(f"s_branch {lj}")
        A(f"{lj}:")
        H(hooks, 'stamp', A, 4)
        for k in range(NG): A(f"s_add_u32 s{S_GS+k}, s{S_GS+k}, s{S_GD}")
        A(f"s_sub_u32 s{S_GD}, 0, s{S_GD}")
        next_step(A)
        A(f"s_waitcnt lgkmcnt(0)\ns_barrier")
        H(hooks, 'stamp', A, 5)
        A(f"s_branch r_loop{ver}")
    A("r_last:\ns_waitcnt vmcnt(0)")
    ypark()
    if UPARK:
        for x in upark(): A(x)
    A("s_waitcnt lgkmcnt(0)\ns_barrier")
    H(hooks, 'final', A)
    A(f"s_branch {hooks['next_r']}")
    A("r_x:")
    S_UG, S_UD, S_PX, S_OP, S_UR = S_C1, S_C2, S_C3, S_C4, S_C5
    A(f"""s_sub_u32 s{S_T}, s{w}, 2
    s_lshl_b32 s{S_T+1}, s{S_GRP}, 1
    s_add_u32 s{S_T+1}, s{S_T+1}, s{S_T}
    s_mul_i32 s{S_UG}, s{S_T+1}, {4*40960}
    s_lshl_b32 s{S_T+1}, s{S_HL}, 12
    s_add_u32 s{S_UG}, s{S_UG}, s{S_T+1}
    s_add_u32 s{S_UG}, s{S_UG}, {WS_UF}
    s_lshl_b32 s{S_O1}, s{S_T}, 14
    s_mov_b32 s{S_UD}, 0
    s_mov_b32 s{S_UR}, 0
    s_mul_i32 s{S_PX}, s{S_T}, 10240
    s_add_u32 s{S_PX}, s{S_PX}, s{S_CUR}
    s_add_u32 s{S_PX}, s{S_PX}, {PX_OFF}
    s_mul_i32 s{S_OP}, s{S_T}, {20*4096}
    s_lshl_b32 s{S_T+1}, s{S_HL}, 13
    s_add_u32 s{S_OP}, s{S_OP}, s{S_T+1}
    s_lshl_b32 s{S_T+1}, s{S_GRP}, 10
    s_add_u32 s{S_OP}, s{S_OP}, s{S_T+1}
    s_add_u32 s{S_OP}, s{S_OP}, {WS_OP}
    v_add_u32 v{VY}, {LY}, v{VL}""")
    checkin(A, s_dbg)
    H(hooks, 'r_pre', A)
    waitall(A, s_dbg, exitlab, VL, s_pol=S_POL)
    H(hooks, 'x_init', A)
    A("s_barrier")
    PXR, ZR, XA = 16, 64, 96
    A("rx_loop:")
    H(hooks, 'stamp', A, 0)
    A(f"""s_bfe_u32 s{S_TAG}, s{S_STEP}, 0x10002
    s_and_b32 s{S_T+2}, s{S_STEP}, 3
    s_lshl_b32 s{S_T+2}, s{S_T+2}, 15
    s_add_u32 s{S_T+2}, s{S_T+2}, s{S_PX}
    s_add_u32 s{S_T+3}, s{S_T+2}, 4096
    s_add_u32 s{S_T+4}, s{S_T+2}, 8192
    v_add_u32 v{VT}, s{S_UR}, v{VL}""")
    pxl = [bld(4, PXR+4*f, VL, S_T+2+f//4, (f % 4)*1024, 'sc1') for f in range(10)]
    pxc = [PXR+4*f for f in range(10)] + [PXR+34, PXR+38]
    def op_store():
        for t_ in range(2):
            A(bst(4, XA+16+4*t_, VL, S_OP, 0, 'sc1'))
            A(f"s_add_u32 s{S_OP}, s{S_OP}, {4096 if t_ < 1 else SEG_OP - 4096}")
    S_DONE = S_C2
    if XDEFER:
        def shadow():
            l = A.newlabel('xd')
            H(hooks, 'x_flag2', A, S_DONE)
            A(f"s_sub_u32 s{S_T}, s{S_STEP}, 1\ns_cmp_ge_u32 s{S_T}, {XDEFER}\ns_cbranch_scc1 {l}")
            op_store()
            A(f"s_waitcnt vmcnt(3)")
            check(A, pxc, S_TAG, l)
            A(f"s_branch rx_pok\n{l}:")
        poll(A, 'px', pxl, pxc, S_TAG, exitlab, shadow)
        A("rx_pok:")
    else:
        if XFPOS == 0:
            def shadow():
                l = A.newlabel('xd')
                H(hooks, 'x_flag', A)
                A(f"s_waitcnt vmcnt(1)")
                check(A, pxc, S_TAG, l)
                A(f"s_branch rx_pok\n{l}:")
            poll(A, 'px', pxl, pxc, S_TAG, exitlab, shadow)
            A("rx_pok:")
        else:
            poll(A, 'px', pxl, pxc, S_TAG, exitlab)
            if not XFLAGNOW and XFPOS == 1: H(hooks, 'x_flag', A)
    H(hooks, 'stamp', A, 1)
    seq = [(f, t_) for f in range(10) for t_ in range(4)]
    lg = Lg(A)
    def zrd(n):
        f, t_ = seq[n]
        if f < 8: lg.ds(f"ds_read_b128 {vr(ZR+4*(n%8),4)}, v{VT} offset:{f*4096+t_*1024}", n)
        else: lg.ds(f"ds_read_b128 {vr(ZR+4*(n%8),4)}, v{VY} offset:{t_*2048+(f-8)*1024}", n)
    for n in range(7): zrd(n)
    for n, (f, t_) in enumerate(seq):
        if n + 7 < 40: zrd(n+7)
        if XFPOS > 1 and n == XFPOS: H(hooks, 'x_flag', A)
        lg.need(n)
        A(f"v_mfma_f32_16x16x32_bf16 {vr(XA+4*t_,4)}, {vr(ZR+4*(n%8),4)}, {vr(PXR+4*f,4)}, {'0' if f == 0 else vr(XA+4*t_,4)}")
    A(f"""v_xor_b32 v{VY}, 8192, v{VY}
    s_xor_b32 s{S_UR}, s{S_UR}, 32768""")
    for i in range(8): A(f"v_cvt_pk_bf16_f32 v{XA+16+i}, v{XA+2*i}, v{XA+2*i+1}")
    if XDEFER:
        l = A.newlabel('xd')
        A(f"s_mov_b32 s{S_DONE}, s{S_STEP}\ns_cmp_lt_u32 s{S_STEP}, {XDEFER}\ns_cbranch_scc1 {l}")
        op_store()
        A(f"s_add_u32 s{S_DONE}, s{S_DONE}, 1\n{l}:")
    else: op_store()
    H(hooks, 'stamp', A, 2)
    A(f"""s_add_u32 s{S_STEP}, s{S_STEP}, 1
    s_waitcnt vmcnt(0)""")
    H(hooks, 'stamp', A, 4)
    l = A.newlabel('rx_nf')
    if not XFLAGNOW: A(f"s_cmp_lt_u32 s{S_STEP}, {NSEG-2}\ns_cbranch_scc1 {l}")
    H(hooks, 'x_flag', A)
    A(f"s_cmp_ge_u32 s{S_STEP}, {NSEG}\ns_cbranch_scc1 rx_fin\n{l}:")
    H(hooks, 'stamp', A, 3)
    A("s_barrier\ns_branch rx_loop\nrx_fin:")
    H(hooks, 'final', A)
    A(f"s_branch {hooks['next_r']}")
```

```python
from common import *
from r_ln import hexf
import os
SPS = int(os.environ.get('SPS', '3'))
OUTS = int(os.environ.get('OUTS', '2'))
WSPW = int(os.environ.get('WSPW', '1'))
LNS = int(os.environ.get('LNS', '8'))
from r_rec import Lg, WS_OP, SEG_OP, srd, tick, wait_flags, put_flag, S_WAVE
from r_proj import gelu_ops, GC0, GC1, SEG_Z
from r_u import load_w_rows
WS_SX = WS_STAT + MB
SEG_SX = 6*256
W = S_WAVE

def bl(n, dst, va, so, off=0, fl=''):
    nm = {1: 'dword', 2: 'dwordx2', 4: 'dwordx4'}[n]
    return f"buffer_load_{nm} {vr(dst,n)}, v{va}, {srd}, {so} offen offset:{off} {fl}"
def bs(n, src, va, so, off=0, fl=''):
    nm = {1: 'dword', 2: 'dwordx2', 4: 'dwordx4'}[n]
    return f"buffer_store_{nm} {vr(src,n)}, v{va}, {srd}, {so} offen offset:{off} {fl}"

def load_wout(A, s_dq, s_t, vt):
    sw, sb = s_t, s_t+2
    tr, t = vt+2, vt+3
    A(f"""s_load_dwordx2 {sr(sw,2)}, s[0:1], {KA_WOUT}
    s_mul_i32 s{sb}, s{W}, {192*1280}
    s_mul_i32 s{sb+1}, s{s_dq}, 320
    s_add_u32 s{sb}, s{sb}, s{sb+1}
    v_lshrrev_b32 v{t}, 4, v0
    v_lshlrev_b32 v{tr}, 3, v{t}
    v_bfe_u32 v{t}, v0, 2, 2
    v_add_u32 v{tr}, v{tr}, v{t}
    v_mul_u32_u24 v{tr}, 320, v{tr}
    v_and_b32 v{t}, 3, v0
    v_lshl_add_u32 v{tr}, v{t}, 4, v{tr}
    s_waitcnt lgkmcnt(0)""")
    add64(A, sw, sw, f"s{sb}")
    A(f"s_mul_i32 s{sb}, s{W}, 40960\nv_add_u32 v{tr}, s{sb}, v{tr}")
    def reads(A, kk, off):
        for dt in range(10):
            for q in range(2):
                A(f"ds_read_b64_tr_b16 {ar(24*dt+4*kk+2*q,2)}, v{tr} offset:{off + q*4*320 + (dt>>1)*64 + (dt&1)*8}")
    load_w_rows(A, sw, 1280, 20, 192, 32, 4, sb, 0, sb+1, vt, reads)

def out_task(A, s_task, f_gy, exitlab, done, outf=''):
    A(f"""s_load_dwordx2 s[20:21], s[0:1], {KA_OUT}
    s_lshr_b32 s12, s{s_task}, 2
    s_and_b32 s13, s{s_task}, 3
    s_mul_i32 s14, s12, {SEG_Z}
    s_mul_i32 s15, s{W}, 6144
    s_add_u32 s14, s14, s15
    s_add_u32 s14, s14, {WS_GY}
    s_add_u32 s15, s14, 4096
    s_add_u32 s16, s14, 24576
    s_add_u32 s17, s16, 4096
    v_lshlrev_b32 v2, 4, v0
    v_bfe_u32 v3, v0, 2, 2
    v_lshlrev_b32 v3, 3, v3
    v_and_b32 v4, 3, v0
    v_add_u32 v3, v3, v4
    v_mul_u32_u24 v3, 1280, v3
    v_lshrrev_b32 v4, 4, v0
    v_lshl_add_u32 v3, v4, 4, v3
    s_mul_i32 s18, s12, 40960
    s_mul_i32 s19, s13, 320
    s_add_u32 s18, s18, s19
    s_and_b32 s22, s{W}, 1
    s_lshr_b32 s23, s{W}, 1
    s_mul_i32 s19, s22, 5120
    s_add_u32 s18, s18, s19
    s_lshl_b32 s19, s23, 6
    s_add_u32 s18, s18, s19
    s_mul_i32 s19, s{W}, 20480
    v_add_u32 v5, s19, v2
    s_lshl_b32 s19, s22, 10
    s_lshl_b32 s24, s23, 12
    s_add_u32 s19, s19, s24
    v_add_u32 v6, s19, v2
    v_add_u32 v7, 40960, v6
    s_lshr_b32 s19, s12, 2
    s_mul_i32 s19, s19, {6*128}
    s_add_u32 s19, s19, {f_gy}
    v_min_u32 v8, 5, v0
    v_lshlrev_b32 v8, 7, v8
    v_add_u32 v8, s19, v8
    s_mov_b32 s19, 1
    s_waitcnt lgkmcnt(0)""")
    add64(A, 20, 20, 's18')
    A(f"s_add_u32 s18, s18, {WS_H}\ns_barrier")
    wait_flags(A, 8, 9, 19, exitlab, sleep=OUTS)
    GB, ACC_, HR = 16, 64, 144
    for k in range(6):
        for rt in range(2): A(bl(4, GB+24*rt+4*k, 2, f"s{14+2*rt+k//4}", 1024*(k % 4)))
    for i in range(3): A(bl(4, HR+4*i, 3, 's18', 128*i))
    for k in range(6):
        A(f"s_waitcnt vmcnt({2*(5-k)+3})")
        for dt in (range(10) if k < 4 else []):
            for rt in range(2):
                a = vr(ACC_+8*dt+4*rt, 4)
                A(f"v_mfma_f32_16x16x32_bf16 {a}, {ar(24*dt+4*k,4)}, {vr(GB+24*rt+4*k,4)}, {'0' if k == 0 else a}")
    for dt in range(10):
        for k in (4, 5):
            for rt in range(2):
                a = vr(ACC_+8*dt+4*rt, 4)
                A(f"v_mfma_f32_16x16x32_bf16 {a}, {ar(24*dt+4*k,4)}, {vr(GB+24*rt+4*k,4)}, {a}")
        if dt >= 1:
            for rt in range(2): A(f"ds_write_b128 v5, {vr(ACC_+8*(dt-1)+4*rt,4)} offset:{2048*(dt-1)+1024*rt}")
    for rt in range(2): A(f"ds_write_b128 v5, {vr(ACC_+72+4*rt,4)} offset:{2048*9+1024*rt}")
    A("s_waitcnt vmcnt(0)")
    F = 16
    for i in range(3):
        for j in range(4): A(f"v_lshlrev_b32 v{F+8*i+2*j}, 16, v{HR+4*i+j}\nv_and_b32 v{F+8*i+2*j+1}, 0xffff0000, v{HR+4*i+j}")
    A("s_waitcnt lgkmcnt(0)\ns_barrier")
    R = 64
    def rd(i):
        for ww in range(4):
            for ab in range(2):
                A(f"ds_read_b128 {vr(R+32*i+8*ww+4*ab,4)}, v{6+ww//2} offset:{(ww%2)*20480 + 8192*i + 2048*ab}")
    def fin(i):
        for ww in range(4):
            for j in range(4): A(f"v_pk_add_f32 {vr(F+8*i+2*j,2)}, {vr(F+8*i+2*j,2)}, {vr(R+32*i+8*ww+2*j,2)}")
        for j in range(4): A(f"v_cvt_pk_bf16_f32 v{48+4*i+j}, v{F+8*i+2*j}, v{F+8*i+2*j+1}")
        A(f"global_store_dwordx4 v3, {vr(48+4*i,4)}, s[20:21] offset:{128*i} {outf}")
    rd(0); rd(1)
    A("s_waitcnt lgkmcnt(8)"); fin(0)
    A("s_waitcnt lgkmcnt(0)")
    l = A.newlabel('o2')
    A(f"s_cmp_ge_u32 s{W}, 2\ns_cbranch_scc1 {l}")
    rd(2); fin(1)
    A("s_waitcnt lgkmcnt(0)"); fin(2)
    A(f"s_branch {done}\n{l}:")
    fin(1)
    A(f"s_branch {done}")

def ln2_loop(A, s_j, ncu, f_x, s_flag, s_pol, exitlab):
    VO, VX, VS, VF, VLW, VLR, T0, T1, T2, T3 = 2, 3, 4, 5, 6, 7, 8, 9, 10, 11
    OPR, XR, F, PK = 16, 64, 80, 104
    sx, so, sh, sn, ne, s0, s1 = 12, 14, 15, 16, 17, 18, 19
    A(f"""s_load_dwordx2 s[26:27], s[0:1], {KA_X}
    v_and_b32 v{T0}, 7, v0
    v_bfe_u32 v{T1}, v0, 3, 1
    v_lshrrev_b32 v{T2}, 4, v0
    s_and_b32 s{sn}, s{s_j}, 1
    s_lshl_b32 s{sn}, s{sn}, 7
    s_lshl_b32 s{ne}, s{W}, 13
    s_add_u32 s{sn}, s{sn}, s{ne}
    v_lshlrev_b32 v{VO}, 4, v{T0}
    v_lshl_add_u32 v{VO}, v{T2}, 8, v{VO}
    v_lshl_add_u32 v{VO}, v{T1}, 12, v{VO}
    v_add_u32 v{VO}, s{sn}, v{VO}
    v_mul_u32_u24 v{VX}, 1280, v{T0}
    v_lshl_add_u32 v{VX}, v{T2}, 3, v{VX}
    v_lshl_add_u32 v{VX}, v{T1}, 6, v{VX}
    s_lshl_b32 s{sn}, s{W}, 7
    v_add_u32 v{VX}, s{sn}, v{VX}
    v_bfe_u32 v{T3}, v0, 2, 1
    v_mul_u32_u24 v{VS}, 20480, v{T3}
    v_lshl_add_u32 v{VS}, v{T2}, 8, v{VS}
    v_and_b32 v{T3}, 3, v0
    v_lshl_add_u32 v{VS}, v{T3}, 4, v{VS}
    v_lshl_add_u32 v{VS}, v{T1}, 10, v{VS}
    s_and_b32 s{sn}, s{s_j}, 3
    s_lshl_b32 s{sn}, s{sn}, 6
    s_lshl_b32 s{ne}, s{W}, 11
    s_add_u32 s{sn}, s{sn}, s{ne}
    v_add_u32 v{VS}, s{sn}, v{VS}
    v_lshlrev_b32 v{VLR}, 5, v{T0}
    s_lshl_b32 s{sn}, s{W}, 3
    v_add_u32 v{VLW}, s{sn}, v{VLR}
    s_bfe_u32 s{sn}, s{s_j}, 0x10001
    s_lshl_b32 s{sn}, s{sn}, 6
    s_add_u32 s{sn}, s{sn}, {f_x}
    s_add_u32 s{sn}, s{sn}, s{s_pol}
    v_min_u32 v{VF}, 39, v0
    v_lshlrev_b32 v{VF}, 7, v{VF}
    v_add_u32 v{VF}, s{sn}, v{VF}
    s_mov_b32 s{s0}, 0x00003f80
    s_mov_b32 s{s1}, 0x3f800000
    s_cmp_lt_u32 s{W}, 2
    s_cselect_b64 s[28:29], -1, 0
    s_waitcnt lgkmcnt(0)
    ln2_loop:
    s_mul_i32 s{sh}, s{s_j}, 10240""")
    add64(A, sx, 26, f"s{sh}")
    A(f"""s_add_u32 s{sh}, s{sh}, {WS_H}
    s_lshr_b32 s{so}, s{s_j}, 1
    s_mul_i32 s{so}, s{so}, {SEG_OP//2}
    s_add_u32 s{so}, s{so}, {WS_OP}
    s_lshr_b32 s{ne}, s{s_j}, 2
    s_mul_i32 s{sn}, s{ne}, {SEG_XN}
    s_add_u32 s{sn}, s{sn}, {WS_HNF}
    s_add_u32 s{ne}, s{ne}, 1""")
    for j in range(4): A(f"v_mov_b32 v{XR+8+j}, 0")
    for j in range(16): A(f"v_mov_b32 v{OPR+32+j}, 0")
    l1, l2, l3, l4 = [A.newlabel('l2') for _ in range(4)]
    def xl(i):
        for hb in range(2): A(f"global_load_dwordx2 {vr(XR+4*i+2*hb,2)}, v{VX}, {sr(sx,2)} offset:{512*i+32*hb}")
    xl(0); xl(1)
    A(f"s_cmp_ge_u32 s{W}, 2\ns_cbranch_scc1 {l1}"); xl(2); A(f"{l1}:")
    A(f"s_cmp_lg_u32 s{W}, 0\ns_cbranch_scc1 {l2}")
    wait_flags(A, VF, T0, ne, exitlab, sleep=LNS)
    A(f"{l2}:\ns_waitcnt vmcnt(0)")
    for i in range(12): A(f"v_lshlrev_b32 v{F+2*i}, 16, v{XR+i}\nv_and_b32 v{F+2*i+1}, 0xffff0000, v{XR+i}")
    A(f"s_add_u32 s20, s{so}, 32768\ns_add_u32 s21, s{so}, 65536\ns_barrier")
    A(f"s_cmp_ge_u32 s{W}, 2\ns_cbranch_scc1 {l3}")
    for g in range(4): A(bl(4, OPR+32+4*g, VO, 's21', 1024*g))
    A(f"{l3}:")
    for i in range(2):
        for g in range(4): A(bl(4, OPR+16*i+4*g, VO, [f"s{so}", 's20'][i], 1024*g))
    A(f"v_mov_b32 v{T0}, 0\nv_mov_b32 v{T1}, 0")
    for n, i in enumerate((2, 0, 1)):
        A(f"s_waitcnt vmcnt({(8, 4, 0)[n]})")
        for g in range(4):
            for j in range(8):
                A(f"v_dot2_f32_bf16 v{F+8*i+j}, v{OPR+16*i+4*g+j//2}, s{s0+j%2}, v{F+8*i+j}")
        for j in range(4): A(f"v_cvt_pk_bf16_f32 v{PK+4*i+j}, v{F+8*i+2*j}, v{F+8*i+2*j+1}")
        for j in range(4): A(f"v_lshlrev_b32 v{F+8*i+2*j}, 16, v{PK+4*i+j}\nv_and_b32 v{F+8*i+2*j+1}, 0xffff0000, v{PK+4*i+j}")
        for j in range(8): A(f"v_add_f32 v{T0}, v{T0}, v{F+8*i+j}\nv_fmac_f32 v{T1}, v{F+8*i+j}, v{F+8*i+j}")
    A(f"""v_add_f32_dpp v{T0}, v{T0}, v{T0} row_ror:8 row_mask:0xf bank_mask:0xf
    v_add_f32_dpp v{T1}, v{T1}, v{T1} row_ror:8 row_mask:0xf bank_mask:0xf
    v_mov_b32 v{T2}, v{T0}
    v_mov_b32 v{T3}, v{T1}
    v_permlane16_swap_b32 v{T0}, v{T2}
    v_permlane16_swap_b32 v{T1}, v{T3}
    v_pk_add_f32 {vr(T0,2)}, {vr(T0,2)}, {vr(T2,2)}
    v_mov_b32 v{T2}, v{T0}
    v_mov_b32 v{T3}, v{T1}
    v_permlane32_swap_b32 v{T0}, v{T2}
    v_permlane32_swap_b32 v{T1}, v{T3}
    v_pk_add_f32 {vr(T0,2)}, {vr(T0,2)}, {vr(T2,2)}
    ds_write_b64 v{VLW}, {vr(T0,2)}""")
    for i in range(2):
        for hb in range(2): A(bs(2, PK+4*i+2*hb, VX, f"s{sh}", 512*i+32*hb, 'sc1'))
    A(f"""s_waitcnt lgkmcnt(0)
    s_barrier
    ds_read_b128 v[120:123], v{VLR}
    ds_read_b128 v[124:127], v{VLR} offset:16
    s_mov_b64 exec, s[28:29]""")
    A(f"s_cbranch_execz {l4}")
    for hb in range(2): A(bs(2, PK+8+2*hb, VX, f"s{sh}", 1024+32*hb, 'sc1'))
    A(f"""{l4}:
    s_mov_b64 exec, -1
    s_waitcnt lgkmcnt(0)
    v_pk_add_f32 v[120:121], v[120:121], v[122:123]
    v_pk_add_f32 v[124:125], v[124:125], v[126:127]
    v_pk_add_f32 v[120:121], v[120:121], v[124:125]
    v_mul_f32 v{T0}, {hexf(1.0/640)}, v120
    v_mul_f32 v{T1}, {hexf(1.0/640)}, v121
    v_fma_f32 v{T1}, -v{T0}, v{T0}, v{T1}
    v_max_f32 v{T1}, 0, v{T1}
    v_add_f32 v{T1}, {hexf(1e-5)}, v{T1}
    v_rsq_f32 v{T1}, v{T1}
    v_mul_f32 v{T0}, v{T0}, v{T1}
    s_add_u32 s20, s{sn}, 8192
    s_add_u32 s21, s{sn}, 16384""")
    l5 = A.newlabel('l2')
    for i in range(3):
        if i == 2: A(f"s_cmp_ge_u32 s{W}, 2\ns_cbranch_scc1 {l5}")
        for j in range(8): A(f"v_fma_f32 v{F+8*i+j}, v{F+8*i+j}, v{T1}, -v{T0}")
        for j in range(4): A(f"v_cvt_pk_bf16_f32 v{OPR+4*i+j}, v{F+8*i+2*j}, v{F+8*i+2*j+1}")
        A(bs(4, OPR+4*i, VS, [f"s{sn}", 's20', 's21'][i], 0, 'sc1'))
    l6 = A.newlabel('l2')
    A(f"{l5}:\ns_waitcnt vmcnt(0)\ns_barrier\ns_cmp_lg_u32 s{W}, 0\ns_cbranch_scc1 {l6}")
    put_flag(A, s_flag, ne, T0)
    A(f"""{l6}:
    s_add_u32 s{s_j}, s{s_j}, {ncu}
    s_cmp_lt_u32 s{s_j}, {4*NSEG}
    s_cbranch_scc1 ln2_loop""")

WW = 96
def win_load(A, s_w, s_t, vt):
    tr, t = vt+2, vt+3
    A(f"""v_lshrrev_b32 v{t}, 4, v0
    v_lshlrev_b32 v{tr}, 2, v{t}
    v_bfe_u32 v{t}, v0, 2, 2
    v_add_u32 v{tr}, v{tr}, v{t}
    v_lshlrev_b32 v{tr}, 6, v{tr}
    v_and_b32 v{t}, 3, v0
    v_lshl_add_u32 v{tr}, v{t}, 4, v{tr}
    s_mul_i32 s{s_t}, s{W}, 40960
    v_add_u32 v{tr}, s{s_t}, v{tr}""")
    def reads(A, r, off):
        for ksl in range(5):
            for ab in range(2):
                for q in range(2):
                    A(f"ds_read_b64_tr_b16 {vr(WW+4*((5*r+ksl)*2+ab)+2*q,2)}, v{tr} offset:{off + ksl*2048 + q*1024 + 8*ab}")
    load_w_rows(A, s_w, 3072, 4, 640, 160, 4, s_t, 0, s_t+1, vt, reads)

def win_loop(A, name, z2, s_seg, s_unit, f_ln, s_flag, s_pol, exitlab, nsets=6):
    VL, VD, VC0, VF, VF2, T0, T1, VST = 2, 3, 4, 5, 6, 7, 8, 9
    ACC, XR, GT, ST, PKD = 16, 32, 48, 64, 80
    sx, so, sdm, ne, c1, sx2 = 12, 13, 14, 15, 16, 17
    LST = 40960
    A(f"""v_lshlrev_b32 v{VL}, 4, v0
    s_mul_i32 s{sdm}, s{W}, 10240
    v_add_u32 v{VD}, s{sdm}, v{VL}
    v_mov_b32 v{VC0}, {hexf(GC0)}
    s_mov_b32 s{c1}, {hexf(GC1)}
    v_and_b32 v{VF}, 3, v0
    v_lshlrev_b32 v{VF}, 7, v{VF}
    v_add_u32 v{VF}, {f_ln}, v{VF}
    v_add_u32 v{VF}, s{s_pol}, v{VF}
    s_lshl_b32 s18, s{s_unit}, 2
    s_add_u32 s18, s18, s{W}
    s_lshl_b32 s18, s18, {11 if z2 else 10}
    s_add_u32 s18, s18, {WS_Z2 if z2 else WS_Z1}
    s_barrier
    {name}_loop:
    s_mul_hi_u32 s19, s{s_seg}, {-(-(1<<32)//nsets)}
    s_mul_i32 s19, s19, {nsets}
    s_sub_u32 s19, s{s_seg}, s19
    s_lshl_b32 s19, s19, 9
    v_add_u32 v{VF2}, s19, v{VF}
    s_add_u32 s{ne}, s{s_seg}, 1
    s_mul_i32 s{sx}, s{s_seg}, {SEG_XN}
    s_add_u32 s{sx}, s{sx}, {WS_HNF}
    s_mul_i32 s{so}, s{s_seg}, {SEG_Z}
    s_add_u32 s{so}, s{so}, s18""")
    wait_flags(A, VF2, T0, ne, exitlab, sleep=3)
    for i in range(10):
        if i % 4 == 0: A(f"s_add_u32 m0, s{sdm}, {(i//4)*4096}\ns_add_u32 s{sx2}, s{sx}, {(i//4)*4096}")
        A(f"buffer_load_dwordx4 v{VD}, {srd}, s{sx2} offen offset:{(i%4)*1024} lds")
    A("s_waitcnt vmcnt(0)\ns_barrier")
    def epi_ops(rt):
        regs = [ACC+8*rt+i for i in range(8)]
        g = GT + 8*rt
        ops = gelu_ops(regs, g, VC0, c1)
        if not z2:
            ops += [f"v_cvt_pk_bf16_f32 v{PKD+4*rt+j}, v{g+2*j}, v{g+2*j+1}" for j in range(4)]
            if rt: ops += [f"s_add_u32 s{so}, s{so}, 24576"]
            ops += [bs(4, PKD+4*rt, VL, f"s{so}", 0, 'sc1')]
        else:
            s_ = ST + 8*rt
            ops += [f"v_add_f32 v{s_+i}, v{g+i}, v{g+4+i}" for i in range(4)]
            ops += [f"v_mul_f32 v{s_+4+i}, v{g+i}, v{g+i}" for i in range(4)]
            ops += [f"v_fmac_f32 v{s_+4+i}, v{g+4+i}, v{g+4+i}" for i in range(4)]
            for sh in (8, 4, 2, 1):
                ops += [f"v_add_f32_dpp v{s_+i}, v{s_+i}, v{s_+i} row_ror:{sh} row_mask:0xf bank_mask:0xf" for i in range(8)]
        return ops
    NP = 4
    for n in range(NP-1): A(f"ds_read_b128 {vr(XR+4*n,4)}, v{VL} offset:{n*1024}")
    pend = []
    for n in range(40):
        rt, ks = divmod(n, 20)
        m = n + NP - 1
        if m < 40: A(f"ds_read_b128 {vr(XR+4*(m%NP),4)}, v{VL} offset:{m*1024}")
        A(f"s_waitcnt lgkmcnt({min(NP-1, 39-n)})")
        if n == 22: pend = epi_ops(0)
        for ab in range(2):
            a = vr(ACC+8*rt+4*ab, 4); w = vr(WW+4*(ks*2+ab), 4); x = vr(XR+4*(n % NP), 4)
            o1, o2 = (x, w) if z2 else (w, x)
            A(f"v_mfma_f32_16x16x32_bf16 {a}, {o1}, {o2}, {'0' if ks == 0 else a}")
            for _ in range(2):
                if pend: A(pend.pop(0))
    for o in pend + epi_ops(1): A(o)
    if z2:
        A(f"""s_lshl_b32 s19, s{W}, 8
        s_add_u32 s19, s19, {LST}
        v_lshlrev_b32 v{T0}, 2, v0
        v_add_u32 v{T0}, s19, v{T0}
        s_mov_b32 exec_lo, 0x00010001
        s_mov_b32 exec_hi, 0x00010001""")
        for i in range(4): A(f"ds_write_b128 v{T0}, {vr(ST+4*i,4)} offset:{16*i}")
        A(f"""s_mov_b64 exec, -1
        v_lshlrev_b32 v{VST}, 2, v0
        s_mul_i32 s19, s{s_seg}, {SEG_SX}
        s_add_u32 s19, s19, {WS_SX}
        s_lshl_b32 s20, s{s_unit}, 8
        s_add_u32 s20, s20, s19
        s_waitcnt lgkmcnt(0)
        s_barrier""")
        l = A.newlabel('wz')
        A(f"s_cmp_lg_u32 s{W}, 0\ns_cbranch_scc1 {l}")
        for i in range(4): A(f"ds_read_b32 v{ST+i}, v{VST} offset:{LST+256*i}")
        A(f"""s_waitcnt lgkmcnt(0)
        v_add_f32 v{ST}, v{ST}, v{ST+1}
        v_add_f32 v{ST+2}, v{ST+2}, v{ST+3}
        v_add_f32 v{ST}, v{ST}, v{ST+2}
        v_min_u32 v{ST}, -2, v{ST}""")
        A(bs(1, ST, VST, 's20', 0, 'sc1'))
        lp = A.newlabel('wz')
        A(f"s_sleep 3\n{lp}:")
        for u in range(6): A(bl(1, ST+u, VST, 's19', 256*u, 'sc1'))
        tick(A, exitlab)
        A(f"""s_waitcnt vmcnt(0)
        v_max3_u32 v{T0}, v{ST}, v{ST+1}, v{ST+2}
        v_max3_u32 v{T1}, v{ST+3}, v{ST+4}, v{ST+5}
        v_max_u32 v{T0}, v{T0}, v{T1}
        v_cmp_eq_u32 vcc, -1, v{T0}
        s_cbranch_vccnz {lp}
        v_add_f32 v{ST}, v{ST}, v{ST+1}
        v_add_f32 v{ST+2}, v{ST+2}, v{ST+3}
        v_add_f32 v{ST+4}, v{ST+4}, v{ST+5}
        v_add_f32 v{ST}, v{ST}, v{ST+2}
        v_add_f32 v{ST}, v{ST}, v{ST+4}
        v_mul_f32 v{ST}, {hexf(1.0/768)}, v{ST}
        v_mov_b32_dpp v{ST+1}, v{ST} row_shl:4 row_mask:0xf bank_mask:0x5
        v_mov_b32_dpp v{ST+1}, v{ST} row_shr:4 row_mask:0xf bank_mask:0xa
        s_mov_b32 vcc_lo, 0xf0f0f0f0
        s_mov_b32 vcc_hi, 0xf0f0f0f0
        v_cndmask_b32 v{ST+2}, v{ST}, v{ST+1}, vcc
        v_cndmask_b32 v{ST+3}, v{ST+1}, v{ST}, vcc
        v_fma_f32 v{ST+3}, -v{ST+2}, v{ST+2}, v{ST+3}
        v_max_f32 v{ST+3}, 0, v{ST+3}
        v_add_f32 v{ST+3}, {hexf(1e-5)}, v{ST+3}
        v_rsq_f32 v{ST+3}, v{ST+3}
        v_mul_f32 v{ST+2}, v{ST+2}, v{ST+3}
        v_cndmask_b32 v{ST+2}, v{ST+2}, v{ST+3}, vcc
        ds_write_b32 v{VST}, v{ST+2} offset:{LST+1024}
        s_waitcnt lgkmcnt(0)
        {l}:
        v_and_b32 v{T0}, 0xc0, v{VST}
        s_barrier""")
        for i in range(4): A(f"ds_read_b128 {vr(ST+4*i,4)}, v{T0} offset:{LST+1024+16*i}")
        A("s_waitcnt lgkmcnt(0)")
        for ab in range(2):
            for rt in range(2):
                for i in range(4):
                    g = GT+8*rt+4*ab+i
                    A(f"v_fma_f32 v{g}, v{g}, v{ST+8*rt+4+i}, -v{ST+8*rt+i}")
                for j in range(2): A(f"v_cvt_pk_bf16_f32 v{PKD+4*ab+2*rt+j}, v{GT+8*rt+4*ab+2*j}, v{GT+8*rt+4*ab+2*j+1}")
            A(bs(4, PKD+4*ab, VL, f"s{so}", 1024*ab, 'sc1'))
    l = A.newlabel('wz')
    A(f"s_waitcnt vmcnt(0)\ns_barrier\ns_cmp_lg_u32 s{W}, 0\ns_cbranch_scc1 {l}")
    put_flag(A, s_flag, ne, T0)
    A(f"""{l}:
    s_add_u32 s{s_seg}, s{s_seg}, 2
    s_cmp_lt_u32 s{s_seg}, {NSEG}
    s_cbranch_scc1 {name}_loop""")

def sx_init(A, s_set, s_unit):
    A(f"""s_lshl_b32 s12, s{W}, 4
    s_add_u32 s12, s12, s{s_set}
    s_mul_i32 s12, s12, {SEG_SX}
    s_lshl_b32 s13, s{s_unit}, 8
    s_add_u32 s12, s12, s13
    s_add_u32 s12, s12, {WS_SX}
    v_lshlrev_b32 v16, 2, v0
    v_mov_b32 v17, -1""")
    for i in range(8):
        A(bs(1, 17, 16, 's12', 0, 'sc1'))
        if i < 7: A(f"s_add_u32 s12, s12, {2*SEG_SX}")

def spatial2(A, s_tb, s_fb, f_win, s_flag, exitlab, stamp=None):
    VL, VA, VB, VF, VSG, VN, T0, T1 = 2, 3, 4, 5, 6, 7, 8, 9
    VW = 10
    AC, FA, FB, Z1, ZF, BI = 64, 16, 32, 128, 160, 12
    sw, sz, sc, sm, sx, tg = 12, 14, 15, 16, 17, 18
    A(f"""s_load_dwordx2 {sr(sw,2)}, s[0:1], {KA_WSP}
    s_load_dwordx2 s[20:21], s[0:1], {KA_BSP}
    v_lshlrev_b32 v{VL}, 4, v0
    v_bfe_u32 v{T0}, v0, 2, 2
    v_lshlrev_b32 v{T1}, 3, v{T0}
    v_and_b32 v{T0}, 3, v0
    v_add_u32 v{T1}, v{T1}, v{T0}
    v_lshlrev_b32 v{VW}, 12, v{T1}
    v_lshrrev_b32 v{T0}, 4, v0
    v_lshl_add_u32 v{VW}, v{T0}, 4, v{VW}
    v_add_u32 v{VW+1}, {4*4096}, v{VW}
    s_lshl_b32 s{sx}, s{s_tb}, 2
    s_add_u32 s{sx}, s{sx}, s{W}
    s_lshl_b32 s{sx}, s{sx}, 17
    s_lshr_b32 s22, s{W}, 1
    s_and_b32 s23, s{W}, 1
    s_lshl_b32 s24, s{s_tb}, 1
    s_add_u32 s24, s24, s22
    s_lshl_b32 s25, s24, 7
    v_lshlrev_b32 v{T1}, 1, v{T1}
    v_add_u32 v{T1}, s25, v{T1}
    s_waitcnt lgkmcnt(0)""")
    add64(A, sw, sw, f"s{sx}")
    if WSPW:
        A(f"""s_mul_i32 s27, s{s_fb}, 3
        s_min_u32 s27, s27, 13
        s_lshl_b32 s27, s27, 13
        v_lshlrev_b32 v{T0}, 7, v0
        v_add_u32 v{T0}, s27, v{T0}""")
        for i in range(3):
            A(f"global_load_dword v{VN}, v{T0}, {sr(sw,2)}")
            if i < 2: A(f"v_add_u32 v{T0}, 8192, v{T0}")
    for t in range(4): A(f"global_load_ushort v{BI+t}, v{T1}, s[20:21] offset:{(t>>1)*64 + (t&1)*8}")
    A(f"""s_lshl_b32 s{sz}, s{s_fb}, 2
    s_add_u32 s{sz}, s{sz}, s{W}
    s_lshl_b32 s{sz}, s{sz}, 11
    s_add_u32 s{sz}, s{sz}, {WS_Z2}
    s_lshl_b32 s{sm}, s{W}, 11
    s_lshl_b32 s{sx}, s22, 12
    v_add_u32 v{VB}, s{sx}, v{VL}
    s_lshl_b32 s{sx}, s23, 12
    s_add_u32 s{sx}, s{sx}, 8192
    v_add_u32 v{VA}, s{sx}, v{VL}
    v_and_b32 v{VSG}, 1, v0
    v_mul_u32_u24 v{VF}, {12*128}, v{VSG}
    s_lshl_b32 s{sx}, s{s_fb}, 7
    s_add_u32 s{sx}, s{sx}, {f_win + 6*128}
    v_add_u32 v{VF}, s{sx}, v{VF}
    s_mul_i32 s26, s24, {4*24576}
    s_lshl_b32 s27, s{s_fb}, 12
    s_add_u32 s26, s26, s27
    s_lshl_b32 s27, s23, 11
    s_add_u32 s26, s26, s27
    s_mov_b32 s{sc}, 0
    s_waitcnt vmcnt(0)""")
    for t in range(4):
        A(f"v_lshlrev_b32 v{BI+t}, 16, v{BI+t}")
        for i in range(16): A(f"v_mov_b32 v{AC+16*t+i}, v{BI+t}")
    def need(d):
        A(f"""s_add_u32 s{tg}, s{sc}, {d}
        v_add_u32 v{VN}, s{tg}, v{VSG}
        v_and_b32 v{VN}, 1, v{VN}
        v_xor_b32 v{VN}, 1, v{VN}
        v_sub_u32 v{VN}, s{tg}, v{VN}""")
    def dma_w(slot):
        for i in range(2):
            A(f"s_add_u32 m0, s{sm}, {slot*16384 + i*1024}\nglobal_load_lds_dwordx4 v{VW+i}, {sr(sw,2)}")
        add64(A, sw, sw, 64)
    def dma_z(slot):
        A(f"s_add_u32 m0, s{sm}, {slot*16384 + 8192}")
        for i in range(2): A(f"buffer_load_dwordx4 v{VL}, {srd}, s{sz} offen offset:{i*1024} lds")
        A(f"s_add_u32 s{sz}, s{sz}, {SEG_Z}")
    def mm(slots):
        lg = Lg(A)
        def rd(n):
            o = 32*(n % 2) if False else 0
            for t in range(4): lg.ds(f"ds_read_b128 {vr(FB+4*t,4) if n % 2 == 0 else vr(224+4*t,4)}, v{VB} offset:{slots[n]*16384+1024*t}", ('b', n, t))
            for f in range(4): lg.ds(f"ds_read_b128 {vr(FA+4*f,4) if n % 2 == 0 else vr(240+4*f,4)}, v{VA} offset:{slots[n]*16384+1024*f}", ('a', n, f))
        rd(0)
        for n in range(len(slots)):
            fb_, fa_ = (FB, FA) if n % 2 == 0 else (224, 240)
            for f in range(4):
                lg.need(('a', n, f))
                if f == 3 and n + 1 < len(slots): pass
                for t in range(4):
                    a = vr(AC+16*t+4*f, 4)
                    A(f"v_mfma_f32_16x16x32_bf16 {a}, {vr(fa_+4*f,4)}, {vr(fb_+4*t,4)}, {a}")
                if f == 0 and n + 1 < len(slots): rd(n+1)
    def z1_load():
        A(f"v_subrev_u32 v{T1}, {6*128}, v{VF}\ns_lshl_b32 s{sc}, s{s_tb}, 2")
        need(4)
        l, l2 = A.newlabel('z1'), A.newlabel('z1')
        A(f"s_branch {l2}\n{l}:\ns_sleep 2"); tick(A, exitlab)
        A(f"""{l2}:
        buffer_load_dword v{T0}, v{T1}, {srd}, 0 offen sc1
        s_waitcnt vmcnt(0)
        v_cmp_gt_u32 vcc, v{VN}, v{T0}
        s_cbranch_vccnz {l}
        s_add_u32 s27, s26, {WS_Z1}""")
        for t in range(4):
            for p in range(2): A(bl(4, Z1+8*t+4*p, VL, 's27', 1024*p))
            if t < 3: A("s_add_u32 s27, s27, 24576")
        A("s_waitcnt vmcnt(0)")
        for i in range(32): A(f"v_lshlrev_b32 v{ZF+2*i}, 16, v{Z1+i}\nv_and_b32 v{ZF+2*i+1}, 0xffff0000, v{Z1+i}")
        A(f"s_mov_b32 s{sc}, {NSEG-1}")
    A("s_barrier\nsp_top:")
    A(f"s_cmp_ge_u32 s{sc}, {NSEG-4}\ns_cbranch_scc1 sp_one")
    need(4)
    A(f"""buffer_load_dword v{T0}, v{VF}, {srd}, 0 offen sc1
    s_waitcnt vmcnt(0)
    v_cmp_gt_u32 vcc, v{VN}, v{T0}
    s_cmp_eq_u64 vcc, 0
    s_cselect_b32 s19, 1, 0
    v_mov_b32 v{T0}, s19
    v_mov_b32 v{T1}, 65536
    s_cmp_lg_u32 s{W}, 0
    s_cbranch_scc1 sp_nb
    ds_write_b32 v{T1}, v{T0}
    s_waitcnt lgkmcnt(0)
    sp_nb:
    s_barrier
    ds_read_b32 v{T0}, v{T1}
    s_waitcnt lgkmcnt(0)
    v_readfirstlane_b32 s19, v{T0}
    s_cmp_eq_u32 s19, 0
    s_cbranch_scc1 sp_one""")
    for sl in range(4): dma_w(sl); dma_z(sl)
    A("s_waitcnt vmcnt(0)\ns_barrier")
    mm([0, 1, 2, 3])
    A(f"s_add_u32 s{sc}, s{sc}, 4\ns_branch sp_top\nsp_one:\ns_barrier")
    dma_w(0)
    l = A.newlabel('sp')
    A(f"s_cmp_lg_u32 s{sc}, {NSEG-1}\ns_cbranch_scc1 {l}")
    z1_load()
    A(f"{l}:")
    need(1)
    l, l2 = A.newlabel('sp'), A.newlabel('sp')
    A(f"s_branch {l2}\n{l}:\ns_sleep {SPS}"); tick(A, exitlab)
    A(f"""{l2}:
    buffer_load_dword v{T0}, v{VF}, {srd}, 0 offen sc1
    s_waitcnt vmcnt(0)
    v_cmp_gt_u32 vcc, v{VN}, v{T0}
    s_cbranch_vccnz {l}""")
    dma_z(0)
    A("s_waitcnt vmcnt(0)\ns_barrier")
    mm([0])
    A(f"s_add_u32 s{sc}, s{sc}, 1\ns_cmp_lt_u32 s{sc}, {NSEG}\ns_cbranch_scc1 sp_top")
    if stamp: stamp(A)
    A(f"s_add_u32 s27, s26, {WS_GY}")
    for t in range(4):
        for p in range(2):
            a = AC+16*t+8*p; z = ZF+16*t+8*p
            for j in range(4): A(f"v_pk_mul_f32 {vr(a+2*j,2)}, {vr(a+2*j,2)}, {vr(z+2*j,2)}")
            for j in range(4): A(f"v_cvt_pk_bf16_f32 v{Z1+8*t+4*p+j}, v{a+2*j}, v{a+2*j+1}")
            A(bs(4, Z1+8*t+4*p, VL, 's27', 1024*p, 'sc1'))
        if t < 3: A("s_add_u32 s27, s27, 24576")
    l = A.newlabel('sp')
    A(f"s_mov_b32 s19, 1\ns_waitcnt vmcnt(0)\ns_barrier\ns_cmp_lg_u32 s{W}, 0\ns_cbranch_scc1 {l}")
    put_flag(A, s_flag, 19, T0)
    A(f"{l}:")
```

```python
import sys, os
from common import *
from r_ln import *
from r_proj import *
from r_u import *
import r_rec as R
from r_rec import checkin, waitall, wait_flags, wait_flags_wg, put_flag, tick
from r_tail import *
KNAME = 'sequential_preLN__memory_aug_recurrent_mem_tr__mixer_gmlp__prompt_kernel'
PFAB = int(os.environ.get('PFAB', '1'))
PFV = int(os.environ.get('PFV', '1'))
OUTF = os.environ.get('OUTF', '')
PFU = int(os.environ.get('PFU', '1'))
PFWO = int(os.environ.get('PFWO', '1'))
PFUN = int(os.environ.get('PFUN', '2'))
PFO = int(os.environ.get('PFO', '0'))
VFIRST = int(os.environ.get('VFIRST', '0'))
PFW = int(os.environ.get('PFW', '0'))
PFLEAD = int(os.environ.get('PFLEAD', '3'))
PFOUT = int(os.environ.get('PFOUT', '1'))
HSTAMP = int(os.environ.get('HSTAMP', '0'))
STAMP = int(os.environ.get('STAMP', '0'), 0)
DBG = 90
F_QKV = WS_FLAG
F_U = WS_FLAG + 0x4000
F_X = 7*32768 + int(os.environ.get('FXO', '0'))
F_LN = F_X + 5120
F_WIN = WS_FLAG + 0x5000
F_GY = WS_FLAG + 0x6000
EXIT = 'mega_done'
X, TK, W = R.S_GRP, 2, 3
srd = R.srd

def wave0(A, fn):
    l = A.newlabel('w0')
    A(f"s_cmp_lg_u32 s{W}, 0\ns_cbranch_scc1 {l}")
    fn()
    A(f"{l}:")

def rt_stamp(A, idx, vt=15):
    if not STAMP: return
    def f():
        A(f"""s_memrealtime s[86:87]
        s_lshl_b32 s84, s{X}, 5
        s_add_u32 s84, s84, s{TK}
        s_lshl_b32 s84, s84, 6
        s_add_u32 s84, s84, {WS_STAT + 65536 + 4*idx}
        s_waitcnt lgkmcnt(0)""")
        put_flag(A, 84, 86, vt)
    wave0(A, f)

def cy_stamp(A, idx, vt=15):
    if not STAMP: return
    def f():
        A(f"""s_memtime s[86:87]
        s_lshl_b32 s84, s{X}, 5
        s_add_u32 s84, s84, s{TK}
        s_lshl_b32 s84, s84, 6
        s_add_u32 s84, s84, {WS_STAT + 65536 + 4*idx}
        s_waitcnt lgkmcnt(0)""")
        put_flag(A, 84, 86, vt)
    wave0(A, f)

def hstamp(A, word, vt, sreg=None):
    l = A.newlabel('hs')
    A(f"s_or_b32 s84, s{X}, s{TK}\ns_cmp_lg_u32 s84, 0\ns_cbranch_scc1 {l}")
    if sreg is None: A("s_memrealtime s[86:87]\ns_waitcnt lgkmcnt(0)\ns_sub_u32 s86, s86, s88")
    A(f"v_mov_b32 v{vt}, {4*word}\nv_mov_b32 v{vt+1}, s{86 if sreg is None else sreg}\nglobal_store_dword v{vt}, v{vt+1}, s[{DBG}:{DBG+1}] sc1\n{l}:")

def ln1_duty(A, s_idx):
    A(f"""s_load_dwordx2 s[12:13], s[0:1], {KA_X}
    s_lshl_b32 s16, s{s_idx}, 2
    s_add_u32 s16, s16, s{W}
    s_mul_i32 s16, s16, 20480
    s_waitcnt lgkmcnt(0)""")
    add64(A, 12, 12, 's16')
    A(f"s_add_u32 s16, s16, {WS_XNF}")
    add64(A, 14, 4, 's16')
    ln_rowtile(A, 12, 14, 0, 'sc1')

def pf_v(A, s_unit, PFV=PFV, PFO=PFO, s_u6=35, dov=True):
    if not PFV: return
    A(f"""s_load_dwordx2 s[12:13], s[0:1], {KA_WV}
    v_lshrrev_b32 v24, 2, v0
    v_mul_u32_u24 v24, 12288, v24
    v_and_b32 v25, 3, v0
    v_lshl_add_u32 v24, v25, 7, v24
    s_lshl_b32 s14, s{s_unit}, 9
    s_mul_i32 s15, s{W}, {16*12288}
    s_add_u32 s14, s14, s15
    s_add_u32 s14, s14, {64*12288}
    s_waitcnt lgkmcnt(0)""")
    add64(A, 12, 12, 's14')
    for c in range(5 if dov else 0):
        A("global_load_dword v26, v24, s[12:13]")
        if c < 4: add64(A, 12, 12, 128*12288)
    if PFO:
        A(f"""s_load_dwordx2 s[12:13], s[0:1], {KA_WO}
        s_lshl_b32 s14, s{s_u6}, 2
        s_add_u32 s14, s14, s{W}
        s_mul_hi_u32 s15, s14, {-(-(1<<32)//3)}
        s_mul_i32 s16, s15, 3
        s_sub_u32 s16, s14, s16
        s_sub_u32 s17, s{X}, 4
        s_lshl_b32 s17, s17, 3
        s_add_u32 s15, s15, s17
        s_mul_i32 s15, s15, 245760
        s_mul_i32 s16, s16, 13696
        s_add_u32 s15, s15, s16
        v_min_u32 v25, 52, v0
        v_lshlrev_b32 v25, 7, v25
        s_waitcnt lgkmcnt(0)""")
        add64(A, 12, 12, 's15')
        rr = [1, 3, 5] if PFO == 1 else list(range(6))
        prev = 0
        for r in rr:
            for hf in range(2):
                off = r*40960 + hf*6784
                add64(A, 12, 12, off - prev); prev = off
                A("global_load_dword v26, v25, s[12:13]")
    if PFV > 1:
        n = PFV - 1
        A(f"s_load_dwordx4 s[16:19], s[0:1], {KA_WQ}\ns_add_u32 s14, s14, {(5-n)*128*12288}\ns_waitcnt lgkmcnt(0)")
        add64(A, 16, 16, 's14'); add64(A, 18, 18, 's14')
        for c in range(n):
            A("global_load_dword v26, v24, s[18:19]\nglobal_load_dword v26, v24, s[16:17]")
            if c < n-1: add64(A, 16, 16, 128*12288); add64(A, 18, 18, 128*12288)

def pf_ab(A):
    if not PFAB: return
    l, l2 = A.newlabel('pf'), A.newlabel('pf')
    A(f"""s_and_b32 s18, s{TK}, 8
    s_lshl_b32 s18, s18, 1
    s_add_u32 s18, s18, {KA_WQ}
    s_load_dwordx4 s[12:15], s[0:1], s18
    s_and_b32 s16, s{TK}, 7
    s_lshl_b32 s17, s{X}, 3
    s_add_u32 s16, s16, s17
    v_mul_u32_u24 v24, {(65536+2)//3}, v0
    v_lshrrev_b32 v24, 16, v24
    v_mul_u32_u24 v25, 3, v24
    v_sub_u32 v25, v0, v25
    v_min_u32 v24, 15, v24
    v_mul_u32_u24 v24, 12288, v24
    v_lshl_add_u32 v24, v25, 7, v24
    s_mul_i32 s17, s16, 384
    s_mul_i32 s19, s{W}, {16*12288}
    s_add_u32 s17, s17, s19
    s_add_u32 s17, s17, {64*12288}
    s_waitcnt lgkmcnt(0)
    s_mov_b32 exec_hi, 0xffff""")
    add64(A, 12, 12, 's17')
    for c in range(5):
        A("global_load_dword v26, v24, s[12:13]")
        if c < 4: add64(A, 12, 12, 128*12288)
    A(f"s_cmp_lg_u32 s18, {KA_WQ}\ns_cbranch_scc1 {l}")
    add64(A, 14, 14, 's17')
    for c in range(5):
        A("global_load_dword v26, v24, s[14:15]")
        if c < 4: add64(A, 14, 14, 128*12288)
    A(f"""s_branch {l2}
    {l}:
    s_mov_b32 exec_hi, 0xff
    v_lshlrev_b32 v24, 7, v0
    s_mul_i32 s17, s16, 245760
    s_mul_i32 s19, s{W}, 10240
    s_add_u32 s17, s17, s19
    s_add_u32 s17, s17, 40960""")
    add64(A, 14, 14, 's17')
    if PFWO == 2: A("s_waitcnt vmcnt(0)")
    for c in range(3 if PFWO else 0):
        A("global_load_dword v26, v24, s[14:15]")
        add64(A, 14, 14, 5120)
        A("global_load_dword v26, v24, s[14:15]")
        if c < 2: add64(A, 14, 14, 81920-5120)
    A(f"{l2}:\ns_mov_b64 exec, -1")

def k_mega(A):
    A(f""".p2align 8
    {KNAME}:
    s_cmp_ge_u32 s2, 256
    s_cbranch_scc1 {EXIT}
    s_load_dwordx2 s[4:5], s[0:1], {KA_WS}
    s_load_dwordx2 s[{DBG}:{DBG+1}], s[0:1], {KA_DBG}
    s_load_dwordx2 s[16:17], s[0:1], {KA_X}
    s_getreg_b32 s9, hwreg(HW_REG_XCC_ID)
    s_and_b32 s9, s9, 15
    s_and_b32 s{X}, s9, 7
    v_lshrrev_b32 v1, 6, v0
    v_readfirstlane_b32 s{W}, v1
    v_and_b32 v0, 63, v0
    s_mov_b32 s{R.S_TO}, 0
    s_mov_b32 s6, 0x10000000
    s_mov_b32 s7, 0x20000""")
    if STAMP or HSTAMP: A("s_memrealtime s[88:89]")
    A(f"""s_waitcnt lgkmcnt(0)
    v_mov_b32 v1, 0
    s_mov_b32 s19, -1
    s_cmp_lg_u32 s2, 0
    s_cbranch_scc1 mega_nocal
    s_cmp_lg_u32 s{W}, 3
    s_cbranch_scc1 mega_calj
    s_mov_b64 exec, 1
    v_mov_b32 v2, {(1<<21) - 16384}
    v_mov_b32 v3, {(1<<21) - 8192}
    s_mov_b32 s20, 0""")
    for rep in range(4):
        a, b = (2, 3) if rep % 2 == 0 else (3, 2)
        A(f"""global_store_dword v{a}, v1, s[4:5] sc1
        global_store_dword v{b}, v1, s[4:5] sc1
        s_waitcnt vmcnt(1)
        s_memtime s[12:13]
        s_waitcnt vmcnt(0)
        s_memtime s[14:15]
        s_waitcnt lgkmcnt(0)
        s_sub_u32 s14, s14, s12
        s_min_u32 s14, s14, 400
        {'s_add_u32' if rep % 2 == 0 else 's_sub_u32'} s20, s20, s14""")
    A(f"""s_cmp_lt_i32 s20, 0
    s_cselect_b32 s14, 8193, 1
    s_and_b32 s15, s9, 4
    s_lshl_b32 s15, s15, 11
    s_xor_b32 s14, s14, s15
    v_mov_b32 v2, {4*R.D_POL}
    v_mov_b32 v4, s14
    v_mov_b32 v5, s20
    global_store_dwordx2 v2, v[4:5], s[{DBG}:{DBG+1}] sc1
    {'v_mov_b32 v2, 56' if HSTAMP else ''}
    {f'global_store_dwordx2 v2, v[4:5], s[{DBG}:{DBG+1}] sc1' if HSTAMP else ''}
    s_mov_b64 exec, -1
    mega_calj:
    s_barrier
    s_branch mega_noln
    mega_nocal:
    s_cmp_eq_u32 s{W}, 3
    s_cselect_b32 s19, s2, -1
    s_lshl_b32 s12, s2, 2
    s_add_u32 s12, s12, s{W}
    s_cmp_eq_u32 s12, 6
    s_cselect_b32 s19, 0, s19
    s_cmp_eq_u32 s19, -1
    s_cbranch_scc1 mega_noln""")
    ln1_small(A, 16, 19, srd, WS_XNF)
    A(f"""mega_noln:
    s_cmp_lg_u32 s{W}, 0
    s_cbranch_scc1 mega_t1
    s_mov_b64 exec, 1
    v_mov_b32 v3, 1
    s_mov_b32 s12, 0
    mega_tk:
    s_cmp_eq_u32 s{X}, s9
    s_cbranch_scc1 mega_home
    v_mov_b32 v2, {4*R.D_SLOW}
    global_store_dword v2, v3, s[{DBG}:{DBG+1}] sc1
    s_waitcnt vmcnt(0)
    mega_home:
    s_and_b32 s14, s{X}, 3
    s_lshl_b32 s14, s14, 6
    s_and_b32 s15, s{X}, 4
    s_add_u32 s14, s14, s15
    v_mov_b32 v2, s14
    global_atomic_add v4, v2, v3, s[{DBG}:{DBG+1}] sc0
    s_waitcnt vmcnt(0)
    v_readfirstlane_b32 s14, v4
    s_cmp_lt_u32 s14, 32
    s_cbranch_scc1 mega_got
    s_add_u32 s{X}, s{X}, 1
    s_and_b32 s{X}, s{X}, 7
    s_add_u32 s12, s12, 1
    s_cmp_lt_u32 s12, 8
    s_cbranch_scc1 mega_tk
    mega_got:
    v_mov_b32 v5, s{X}
    ds_write_b64 v1, v[4:5]
    s_waitcnt lgkmcnt(0)
    s_mov_b64 exec, -1
    mega_t1:
    s_barrier
    ds_read_b64 v[4:5], v1
    s_waitcnt lgkmcnt(0)
    v_readfirstlane_b32 s{TK}, v4
    v_readfirstlane_b32 s{X}, v5
    s_cmp_eq_u32 s19, -1
    s_cbranch_scc1 mega_noln2
    s_and_b32 s18, s19, 3
    s_lshl_b32 s18, s18, 6
    s_add_u32 s18, s18, {4*R.D_LN}
    v_mov_b32 v2, s18
    v_mov_b32 v3, 1
    s_mov_b64 exec, 1
    s_waitcnt vmcnt(0)
    global_atomic_add v2, v3, s[{DBG}:{DBG+1}]
    s_mov_b64 exec, -1
    mega_noln2:
    s_barrier
    s_cmp_ge_u32 s{TK}, 32
    s_cbranch_scc1 {EXIT}""")
    if STAMP:
        A("s_mov_b32 s71, s88")
        for i in range(72, 88): A(f"s_mov_b32 s{i}, 0")
        wave0(A, lambda: (A(f"s_lshl_b32 s84, s{X}, 5\ns_add_u32 s84, s84, s{TK}\ns_lshl_b32 s84, s84, 6\ns_add_u32 s84, s84, {WS_STAT+65536}"), put_flag(A, 84, 88, 15)))
    rt_stamp(A, 1)
    A(f"""s_cmp_ge_u32 s{X}, 4
    s_cbranch_scc1 mega_hi
    s_cmp_ge_u32 s{TK}, 26
    s_cbranch_scc1 mega_ln2
    s_and_b32 s{R.S_HL}, s{TK}, 7
    s_cmp_ge_u32 s{TK}, 16
    s_cbranch_scc1 mega_R
    s_cmp_ge_u32 s{TK}, 8
    s_cbranch_scc1 mega_B
    s_branch mega_A
    mega_hi:
    s_cmp_ge_u32 s{TK}, 26
    s_cbranch_scc1 mega_win
    s_cmp_ge_u32 s{TK}, 18
    s_cbranch_scc1 mega_U""")
    A(f"""s_mul_hi_u32 s22, s{TK}, {-(-(1<<32)//6)}
    s_mul_i32 s23, s22, 6
    s_sub_u32 s23, s{TK}, s23
    s_sub_u32 s22, 2, s22
    s_sub_u32 s20, s{X}, 4
    s_mul_i32 s20, s20, 6
    s_add_u32 s23, s23, s20
    s_mul_i32 s30, s22, 24
    s_add_u32 s30, s30, s23
    s_lshl_b32 s30, s30, 7
    s_add_u32 s30, s30, {F_QKV}
    s_lshl_b32 s24, s22, 3
    s_add_u32 s24, s24, {KA_WQ}
    s_load_dwordx2 s[32:33], s[0:1], s24
    s_lshl_b32 s25, s23, 2
    s_add_u32 s25, s25, s{W}
    s_lshl_b32 s26, s25, 7
    s_mul_hi_u32 s27, s25, {-(-(1<<32)//3)}
    s_mul_i32 s28, s27, 3
    s_sub_u32 s28, s25, s28
    s_mul_i32 s27, s27, 12288
    s_lshl_b32 s28, s28, 11
    s_add_u32 s27, s27, s28
    s_mul_i32 s28, s22, {WS_KF-WS_QF}
    s_add_u32 s27, s27, s28
    s_add_u32 s27, s27, {WS_QF}""")
    A("s_waitcnt lgkmcnt(0)")
    add64(A, 32, 32, 's26'); add64(A, 34, 4, 's27'); add64(A, 36, 4, WS_XNF)
    if VFIRST:
        A(f"s_sub_u32 s21, s23, s20\ns_cmp_eq_u32 s22, 2\ns_cbranch_scc1 proj_go\ns_cmp_eq_u32 s22, 0\ns_cbranch_scc1 proj_hq")
        pf_v(A, 23, 1, 0)
        A(f"s_waitcnt vmcnt({VFIRST-1})\ns_branch proj_go\nproj_hq:")
        pf_v(A, 23, 1, 1, 21, dov=False)
        A(f"s_waitcnt vmcnt({VFIRST-1})\nproj_go:")
    A(f"s_mov_b32 s16, {NSEG}\nv_lshlrev_b32 v2, 4, v0\ns_mul_i32 s18, s{W}, 10240\nv_add_u32 v3, s18, v2\ns_mov_b32 s19, 0")
    def xn0(A):
        for i in range(10):
            if i % 4 == 0: A(f"s_add_u32 m0, s18, {(i//4)*4096}")
            A(f"global_load_lds_dwordx4 v3, s[36:37] offset:{(i%4)*1024}")
            if i % 4 == 3: add64(A, 36, 36, 4096)
        add64(A, 36, 36, SEG_XN - 8192)
    def whook(A, c, ph):
        if c == 3 and ph == 0:
            waitall(A, DBG, EXIT, 2, setup_only=True)
            A(f"global_load_dword v18, v16, s[{DBG}:{DBG+1}] sc1")
        if c == 6 and ph == 1:
            l = A.newlabel('x0')
            A(f"v_cmp_gt_u32 vcc, v17, v18\ns_cbranch_vccnz {l}")
            xn0(A)
            A(f"s_mov_b32 s19, 1\n{l}:")
    load_w64(A, 32, 12288, W, 0, 12, 4, depth=3, base=65536, hook=whook)
    rt_stamp(A, 2)
    A("s_cmp_lg_u32 s19, 0\ns_cbranch_scc1 proj_x0")
    waitall(A, DBG, EXIT, 2)
    xn0(A)
    A("proj_x0:")
    rt_stamp(A, 3); cy_stamp(A, 8)
    def mid(A):
        wave0(A, lambda: (A(f"s_sub_u32 s17, {NSEG}, s16"), put_flag(A, 30, 17, 12)))
        if STAMP & 0x100:
            for k in range(3):
                l = A.newlabel('ms'); A(f"s_cmp_lg_u32 s16, {NSEG-k}\ns_cbranch_scc1 {l}"); rt_stamp(A, 10+k); A(f"{l}:")
    proj_loop(A, 'proj', 36, 16, W, 0, make_epi_qkv(34, 2, os.environ.get('PST', 'sc1')), mid_hook=mid, s_t=12, vt=8, seg0_done=True, nmid=int(os.environ.get('NMID', '19')))
    A("s_waitcnt vmcnt(0)\ns_barrier"); mid(A)
    rt_stamp(A, 4); cy_stamp(A, 9)
    A(f"s_branch mega_sp")
    A(f"""mega_U:
    s_load_dwordx2 s[32:33], s[0:1], {KA_WO}
    s_sub_u32 s20, s{X}, 4
    s_lshl_b32 s20, s20, 3
    s_add_u32 s20, s20, s{TK}
    s_sub_u32 s20, s20, 18
    s_lshl_b32 s30, s20, 7
    s_add_u32 s30, s30, {F_U}
    s_mul_i32 s22, s20, 245760
    s_mul_i32 s23, s{W}, 320
    s_add_u32 s22, s22, s23
    s_mul_i32 s23, s20, 12288
    s_add_u32 s23, s23, {WS_VF}
    s_mul_i32 s24, s20, 40960
    s_mul_i32 s25, s{W}, 10240
    s_add_u32 s24, s24, s25
    s_add_u32 s24, s24, {WS_UF}
    s_mul_i32 s25, s20, 192
    v_and_b32 v3, 1, v0
    v_mul_u32_u24 v3, 191, v3
    v_add_u32 v3, s25, v3
    v_lshrrev_b32 v3, 8, v3
    v_lshlrev_b32 v3, 7, v3
    v_add_u32 v3, {F_QKV + 48*128}, v3""")
    A("s_waitcnt lgkmcnt(0)")
    add64(A, 32, 32, 's22')
    if PFU:
        A(f"""s_load_dwordx4 s[12:15], s[0:1], {KA_WQ}
        v_cmp_le_u32 vcc, 24, v0
        v_cndmask_b32 v24, 0, 1, vcc
        v_mul_u32_u24 v24, {12288 - 24*128}, v24
        v_lshl_add_u32 v24, v0, 7, v24
        s_sub_u32 s16, s{TK}, 18
        s_lshl_b32 s16, s16, 2
        s_add_u32 s16, s16, s{W}
        s_mul_i32 s16, s16, {2*12288}
        s_sub_u32 s17, s{X}, 4
        s_mul_i32 s17, s17, 3072
        s_add_u32 s16, s16, s17
        s_add_u32 s16, s16, {64*12288}
        s_waitcnt lgkmcnt(0)
        s_mov_b32 exec_hi, 0xffff""")
        add64(A, 12, 12, 's16'); add64(A, 14, 14, 's16')
        for c in range(PFUN):
            A("global_load_dword v26, v24, s[14:15]\nglobal_load_dword v26, v24, s[12:13]")
            if c < PFUN-1: add64(A, 12, 12, 128*12288); add64(A, 14, 14, 128*12288)
        A(f"s_mov_b64 exec, -1\ns_waitcnt vmcnt({PFU-1})")
        rt_stamp(A, 3)
    u_load_w(A, 32, W, 0, 12, 4)
    rt_stamp(A, 2)
    A(f"v_lshlrev_b32 v2, 4, v0\ns_lshl_b32 s12, s{W}, 2\ns_add_u32 s30, s30, s12")
    waitall(A, DBG, EXIT, 2)
    def ust(A, k):
        if STAMP & 0x100:
            l = A.newlabel('us'); A(f"s_cmp_lg_u32 s16, {k//4}\ns_cbranch_scc1 {l}"); rt_stamp(A, 8+k); A(f"{l}:")
    u_loop2(A, 'u', 23, 24, 30, 3, wait_flags, put_flag, srd, EXIT, ust)
    rt_stamp(A, 4)
    A(f"mega_sp:\ns_and_b32 s40, s{TK}, 3")
    load_wout(A, 40, 12, 4)
    A(f"""s_cmp_ge_u32 s{TK}, 24
    s_cbranch_scc1 mega_out
    s_mul_hi_u32 s30, s{TK}, {-(-(1<<32)//6)}
    s_mul_i32 s31, s30, 6
    s_sub_u32 s31, s{TK}, s31
    s_sub_u32 s32, s{X}, 4
    s_lshl_b32 s33, s32, 2
    s_add_u32 s30, s30, s33
    s_mul_i32 s32, s32, 24
    s_add_u32 s32, s32, s{TK}
    s_lshl_b32 s32, s32, 7
    s_add_u32 s32, s32, {F_GY}""")
    rt_stamp(A, 5)
    spatial2(A, 30, 31, F_WIN, 32, EXIT, stamp=lambda A: rt_stamp(A, 6))
    A(f"""mega_out:
    s_lshl_b32 s40, s{X}, 5
    s_add_u32 s40, s40, s{TK}""")
    out_task(A, 40, F_GY, EXIT, 'mega_end', OUTF)
    A("mega_end:")
    if STAMP: A("s_waitcnt vmcnt(0)")
    rt_stamp(A, 7)
    if HSTAMP: A("s_waitcnt vmcnt(0)"); hstamp(A, 12, 16); hstamp(A, 13, 16, 4)
    A(f"{EXIT}:\ns_endpgm")
    A(f"mega_wo:\ns_waitcnt vmcnt(0)\ns_barrier\ns_and_b32 s40, s{TK}, 3")
    load_wout(A, 40, 12, 4)
    A("s_branch mega_out")
    A(f"""mega_ln2:
    s_mul_i32 s24, s{X}, {4 if PFW else 6}
    s_add_u32 s24, s24, s{TK}
    s_sub_u32 s24, s24, 26
    s_lshl_b32 s30, s24, 7
    s_add_u32 s30, s30, {F_LN}
    s_cmp_ge_u32 s{TK}, 30
    s_cbranch_scc1 mega_ln2j
    s_lshl_b32 s12, s{X}, 2
    s_add_u32 s12, s12, s{TK}
    s_sub_u32 s12, s12, 26
    s_lshl_b32 s12, s12, 2
    s_add_u32 s12, s12, s{W}
    s_lshl_b32 s13, s12, 10
    s_add_u32 s13, s13, {WS_FLAG}
    s_lshl_b32 s14, s12, 11
    s_add_u32 s14, s14, {WS_SX}
    s_and_b32 s12, s12, 15
    s_lshl_b32 s12, s12, 10
    s_add_u32 s12, s12, {F_X}
    v_lshlrev_b32 v2, 4, v0""")
    for i in range(4): A(f"v_mov_b32 v{16+i}, 0")
    for i in range(4): A(f"v_mov_b32 v{20+i}, -1")
    A(bs(4, 16, 2, 's13', 0, 'sc1')); A(bs(4, 16, 2, 's12', 0, 'sc1'))
    A(bs(4, 20, 2, 's14', 0, 'sc1')); A(bs(4, 20, 2, 's14', 1024, 'sc1'))
    checkin(A, DBG)
    A("mega_ln2j:")
    pf_ab(A)
    rt_stamp(A, 2)
    A(f"s_and_b32 s40, s{TK}, 3\nv_lshlrev_b32 v2, 4, v0")
    waitall(A, DBG, EXIT, 2, s_pol=31)
    if PFW: A(f"s_cmp_ge_u32 s{TK}, 30\ns_cbranch_scc1 mega_pfw")
    A(f'v_mov_b32 v4, {F_U}\ns_mov_b32 s12, 1')
    wait_flags(A, 4, 5, 12, EXIT, sleep=20)
    load_wout(A, 40, 12, 4)
    A("s_add_u32 s30, s30, s31\ns_barrier")
    ln2_loop(A, 24, 16 if PFW else 24, F_X, 30, 31, EXIT)
    rt_stamp(A, 4)
    A("s_branch mega_out")
    if PFW:
        A(f"""mega_pfw:
        s_lshl_b32 s20, s{X}, 1
        s_add_u32 s20, s20, s{TK}
        s_sub_u32 s20, s20, 30
        s_lshl_b32 s20, s20, 2
        s_add_u32 s20, s20, s{W}
        s_mul_i32 s21, s20, 40960
        s_add_u32 s21, s21, {WS_UF + 2*SEG_U}
        s_mul_i32 s22, s20, 12288
        s_add_u32 s23, s22, {WS_QF + 2*SEG_QKV}
        s_add_u32 s22, s22, {WS_KF + 2*SEG_QKV}
        v_lshlrev_b32 v3, 7, v0
        s_lshl_b32 s12, s20, 7
        s_add_u32 s12, s12, {F_U}
        v_and_b32 v4, 3, v0
        v_lshlrev_b32 v4, 2, v4
        v_add_u32 v4, s12, v4
        s_mul_i32 s12, s{X}, 1280
        s_add_u32 s12, s12, {F_X}
        s_add_u32 s12, s12, s31
        v_mov_b32 v5, s12
        s_mov_b32 s24, 2
        pfw_loop:
        s_sub_u32 s12, s24, {PFLEAD}
        s_max_i32 s12, s12, 0""")
        wait_flags(A, 5, 6, 12, EXIT, sleep=3)
        A("s_add_u32 s12, s24, 1")
        wait_flags(A, 4, 6, 12, EXIT, sleep=3)
        for i in range(5):
            A(f"buffer_load_dword v7, v3, {srd}, s21 offen\ns_add_u32 s21, s21, {8192 if i < 4 else SEG_U - 4*8192}\ns_waitcnt vmcnt({PFOUT})")
        if PFW > 1:
            A("s_mov_b32 exec_hi, 0xffff")
            for sp in (22, 23):
                for i in range(2):
                    A(f"buffer_load_dword v7, v3, {srd}, s{sp} offen\ns_add_u32 s{sp}, s{sp}, {6144 if i < 1 else SEG_QKV - 6144}\ns_waitcnt vmcnt({PFOUT})")
            A("s_mov_b32 exec_hi, -1")
        A(f"s_add_u32 s24, s24, 1\ns_cmp_lt_u32 s24, {NSEG}\ns_cbranch_scc1 pfw_loop\ns_branch mega_wo")
    A(f"""mega_win:
    s_sub_u32 s34, s{X}, 4
    s_sub_u32 s35, s{TK}, 26
    s_mul_i32 s22, s34, 6
    s_add_u32 s22, s22, s35
    s_lshl_b32 s30, s22, 7
    s_add_u32 s30, s30, {F_WIN}
    s_lshr_b32 s36, s34, 1
    s_and_b32 s34, s34, 1""")
    if VFIRST: pf_v(A, 22, 6, 0, dov=False)
    else: pf_v(A, 22)
    rt_stamp(A, 2)
    A(f"""s_load_dwordx2 s[32:33], s[0:1], {KA_WIN}
    s_and_b32 s40, s{TK}, 3
    v_lshlrev_b32 v2, 4, v0""")
    waitall(A, DBG, EXIT, 2, s_pol=31)
    A(f'v_mov_b32 v4, {F_U}\ns_mov_b32 s12, 1')
    wait_flags(A, 4, 5, 12, EXIT, sleep=20)
    load_wout(A, 40, 12, 4)
    A(f"""s_mul_i32 s25, s34, 6
    s_add_u32 s25, s25, s35
    s_lshl_b32 s25, s25, 2
    s_add_u32 s25, s25, s{W}
    s_lshl_b32 s25, s25, 6""")
    add64(A, 32, 32, 's25')
    win_load(A, 32, 12, 4)
    A("s_cmp_lg_u32 s34, 0\ns_cbranch_scc1 mega_win2")
    win_loop(A, 'win1', False, 36, 35, F_LN, 30, 31, EXIT, 4 if PFW else 6)
    rt_stamp(A, 4)
    A("s_branch mega_out\nmega_win2:")
    win_loop(A, 'win2', True, 36, 35, F_LN, 30, 31, EXIT, 4 if PFW else 6)
    rt_stamp(A, 4)
    A("s_branch mega_out")
    hooks = {'next_ab': 'mega_wo', 'next_r': 'mega_wo'}
    hooks['r_pre'] = pf_ab
    hooks['rts'] = lambda A, i: rt_stamp(A, i, R.MOP)
    if STAMP:
        def stamp(A, i):
            if i == 0:
                l = A.newlabel('st')
                A(f"s_memtime s[86:87]\ns_memrealtime s[88:89]\ns_waitcnt lgkmcnt(0)\ns_cmp_lg_u32 s{R.S_STEP}, {int(os.environ.get('SSTEP','21'))}\ns_cbranch_scc1 {l}")
                for k in range(1, 8): A(f"s_sub_u32 s{92+k}, s{72+2*k}, s72")
                A(f"s_mov_b32 s92, s73\ns_mov_b32 s100, s88")
                A(f"{l}:\ns_mov_b32 s72, s86\ns_mov_b32 s73, s88")
                l = A.newlabel('st')
                A(f"s_cmp_lg_u32 s{R.S_STEP}, 0\ns_cbranch_scc1 {l}\ns_sub_u32 s101, s88, s71\n{l}:")
            elif (STAMP >> i) & 1:
                A(f"s_memtime s[{72+2*i}:{73+2*i}]\ns_waitcnt lgkmcnt(0)")
        hooks['stamp'] = stamp
        def final(A):
            A(f"""s_lshl_b32 s14, s{X}, 5
            s_add_u32 s14, s14, s{TK}
            s_lshl_b32 s14, s14, 2
            s_add_u32 s14, s14, s{W}
            s_lshl_b32 s14, s14, 6
            s_add_u32 s14, s14, {WS_STAT}
            s_memrealtime s[86:87]
            s_waitcnt lgkmcnt(0)
            s_sub_u32 s15, s86, s71
            v_mov_b32 v17, 0""")
            for i, r in enumerate(list(range(92, 102)) + [15, R.S_TO]):
                A(f"v_mov_b32 v16, s{r}\nbuffer_store_dword v16, v17, s[4:7], s14 offen offset:{4*i}")
            rt_stamp(A, 4)
        hooks['final'] = final
        def steplog(A):
            l = A.newlabel('sl')
            A(f"""s_cmp_lg_u32 s{R.S_H}, 0
            s_cbranch_scc1 {l}
            s_memrealtime s[84:85]
            s_lshl_b32 s{R.S_T}, s{R.S_STEP}, 2
            s_add_u32 s{R.S_T}, s{R.S_T}, {WS_STAT + 131072}
            s_waitcnt lgkmcnt(0)""")
            put_flag(A, R.S_T, 84, R.MOP)
            A(f"{l}:")
        hooks['steplog'] = steplog
    if HSTAMP:
        def steplog(A):
            for st, wd in ((0, 6), (6, 7), (30, 8), (50, 9), (63, 10)):
                l = A.newlabel('hl'); A(f"s_cmp_lg_u32 s{R.S_STEP}, {st}\ns_cbranch_scc1 {l}"); hstamp(A, wd, R.MOP); A(f"{l}:")
        hooks['steplog'] = steplog
        hooks['rts'] = lambda A, i: hstamp(A, 5, R.MOP)
    def wait_in(A, mode):
        t = R.MOP + 24
        if mode == 'first': A(f"s_mov_b32 s{R.S_T}, 1")
        else: A(f"s_add_u32 s{R.S_T}, s{R.S_STEP}, 2\ns_min_u32 s{R.S_T}, s{R.S_T}, {NSEG}")
        A(f"""s_mul_i32 s{R.S_T+1}, s{R.S_H}, 192
        v_bfe_u32 v{t}, v{R.V_LANE16}, 4, 1
        v_mul_u32_u24 v{t}, 191, v{t}
        v_add_u32 v{t}, s{R.S_T+1}, v{t}
        v_lshrrev_b32 v{t}, 8, v{t}
        v_bfe_u32 v{t+1}, v{R.V_LANE16}, 5, 1
        v_mad_u32_u24 v{t}, v{t+1}, 24, v{t}
        v_lshlrev_b32 v{t}, 7, v{t}
        v_add_u32 v{t}, {F_QKV}, v{t}""")
        if mode == 'peek':
            A(f"""buffer_load_dword v{t+1}, v{t}, {srd}, 0 offen sc1
            s_waitcnt vmcnt(0)
            v_cmp_gt_u32 {sr(R.S_EVEN,2)}, s{R.S_T}, v{t+1}""")
        else: wait_flags(A, t, t+1, R.S_T, EXIT)
    hooks['wait_in'] = wait_in
    def b_ready(A, skip):
        A(f"s_add_u32 s{R.S_T}, s{R.S_STEP}, 3\nv_cmp_gt_u32 vcc, s{R.S_T}, v{R.V_JUNK}\ns_cbranch_vccnz {skip}")
    def b_peek(A):
        t = R.MOP + 1
        A(f"""s_mul_i32 s{R.S_T+1}, s{R.S_H}, 192
        v_and_b32 v{t}, 1, v0
        v_mul_u32_u24 v{t}, 191, v{t}
        v_add_u32 v{t}, s{R.S_T+1}, v{t}
        v_lshrrev_b32 v{t}, 8, v{t}
        v_bfe_u32 v{t+1}, v0, 1, 1
        v_mad_u32_u24 v{t}, v{t+1}, 24, v{t}
        v_lshlrev_b32 v{t}, 7, v{t}
        v_add_u32 v{t}, {F_QKV}, v{t}
        s_lshl_b32 s{R.S_T+1}, s{R.S_H}, 5
        s_add_u32 s{R.S_T+1}, s{R.S_T+1}, s{W}
        s_lshl_b32 s{R.S_T+1}, s{R.S_T+1}, 2
        s_add_u32 s{R.S_T+1}, s{R.S_T+1}, {F_U}
        s_mov_b64 exec, -16
        v_mov_b32 v{t}, s{R.S_T+1}
        s_mov_b64 exec, -1
        buffer_load_dword v{R.V_JUNK}, v{t}, {srd}, 0 offen sc1""")
    hooks['b_ready'] = b_ready; hooks['b_peek'] = b_peek
    def wait_u(A, k):
        if k == 0:
            rt_stamp(A, 3, 24)
            A(f"""s_lshl_b32 s{R.S_T}, s{R.S_HL}, 1
            s_add_u32 s{R.S_T}, s{R.S_T}, s{W}
            s_mul_hi_u32 s{R.S_T}, s{R.S_T}, {-(-(1<<32)//5)}
            s_lshl_b32 s{R.S_T}, s{R.S_T}, 2
            s_lshl_b32 s{R.S_T+1}, s{X}, 10
            s_add_u32 s{R.S_T}, s{R.S_T}, s{R.S_T+1}
            s_add_u32 s{R.S_T}, s{R.S_T}, {F_U}
            v_and_b32 v10, 7, v0
            v_lshlrev_b32 v10, 7, v10
            v_add_u32 v10, s{R.S_T}, v10""")
        A(f"s_add_u32 s{R.S_T}, s{R.S_STEP}, {k+1}\ns_min_u32 s{R.S_T}, s{R.S_T}, {NSEG}")
        wait_flags(A, 10, 11, R.S_T, EXIT)
        if k == 0: rt_stamp(A, 5, 24)
    hooks['wait_u'] = wait_u
    hooks['x_flag'] = lambda A: put_flag(A, R.S_O4, R.S_STEP, 12)
    hooks['x_flag2'] = lambda A, sv: put_flag(A, R.S_O4, sv, 12)
    hooks['x_init'] = lambda A: A(f"s_add_u32 s{R.S_O4}, s{R.S_O4}, s{R.S_POL}")
    def cached_u(A):
        l = A.newlabel('cu')
        A(f"s_add_u32 s{R.S_T}, s{R.S_STEP}, 1\nv_cmp_gt_u32 vcc, s{R.S_T}, v11\ns_cbranch_vccz {l}")
        wait_flags(A, 10, 11, R.S_T, EXIT, sleep=1)
        A(f"{l}:")
    hooks['cached_u'] = cached_u
    PEEKM = int(os.environ.get('PEEKM', '2'))
    def peek_u(A):
        if PEEKM:
            l = A.newlabel('pk')
            A(f"s_add_u32 s{R.S_T}, s{R.S_STEP}, {1+PEEKM}\ns_min_u32 s{R.S_T}, s{R.S_T}, {NSEG}\nv_cmp_gt_u32 vcc, s{R.S_T}, v11\ns_cbranch_vccz {l}")
        A(f"buffer_load_dword v11, v10, {srd}, 0 offen sc1")
        if PEEKM: A(f"{l}:")
    hooks['peek_u'] = peek_u
    A("mega_A:")
    R.role_A(A, EXIT, DBG, hooks)
    A("mega_B:")
    R.role_B(A, EXIT, DBG, hooks)
    A(f"""mega_R:
    s_sub_u32 s{R.S_HL}, s{TK}, 16
    s_mul_i32 s{R.S_O4}, s{X}, 10
    s_add_u32 s{R.S_O4}, s{R.S_O4}, s{R.S_HL}
    s_lshl_b32 s{R.S_O4}, s{R.S_O4}, 7
    s_add_u32 s{R.S_O4}, s{R.S_O4}, {F_X}""")
    A(f"s_and_b32 s12, s{W}, 1\ns_lshl_b32 s12, s12, 6\ns_add_u32 s{R.S_O4}, s{R.S_O4}, s12")
    R.role_R(A, EXIT, DBG, hooks)

def build():
    ref = open('sequential_preLN__memory_aug_recurrent_mem_tr__mixer_gmlp__prompt.s.ref').read().split('\n')
    hdr = '\n'.join(l for l in ref if l.startswith(';') and '@launch' not in l) + '\n'
    if os.environ.get('LIST', '1') == '1': hdr += f"; @launch kernel={KNAME} grid=(256,1,1) block=(256,1,1) lds=163840\n"
    else: hdr += "; @launch grid=(256,1,1) block=(256,1,1) lds=163840\n"
    A = Asm()
    A(f'.amdgcn_target "amdgcn-amd-amdhsa--gfx950"\n.text\n.globl {KNAME}\n.type {KNAME},@function')
    k_mega(A)
    return hdr + A.text() + kdesc(KNAME)

if __name__ == '__main__':
    open(sys.argv[1], 'w').write(build())
```

```python
from common import *
import os
PDS = int(os.environ.get('PDS', '2'))
PSS = int(os.environ.get('PSS', '6'))
PRING = int(os.environ.get('PRING', '4'))
PVM = int(os.environ.get('PVM', '0'))

def wreg_proj(f):
    return 256 + 4*f if f < 64 else 192 + 4*(f-64)

def load_w64(A, s_w, wstride, s_wave, v_lane, s_t, vt, kperm=False, depth=5, base=0, hook=None, wide=0):
    voff, tr0, tr1, t = vt, vt+1, vt+2, vt+3
    sl = s_t
    A(f"""s_mul_i32 s{sl}, s{s_wave}, {8192*depth}
    s_add_u32 s{sl}, s{sl}, {base}
    v_lshrrev_b32 v{t}, 3, v{v_lane}
    s_mov_b32 s{s_t+1}, {wstride}
    v_mul_lo_u32 v{voff}, v{t}, s{s_t+1}
    v_lshlrev_b32 v{t}, 1, v{t}
    v_and_b32 v{t}, 4, v{t}
    v_and_b32 v{tr0}, 7, v{v_lane}
    v_xor_b32 v{t}, v{t}, v{tr0}
    v_lshl_add_u32 v{voff}, v{t}, 4, v{voff}
    v_lshrrev_b32 v{t}, 4, v{v_lane}
    v_lshlrev_b32 v{tr0}, {9 if kperm else 10}, v{t}
    v_bfe_u32 v{t}, v{v_lane}, 2, 2
    v_lshl_add_u32 v{tr0}, v{t}, 7, v{tr0}
    v_lshlrev_b32 v{t}, 1, v{t}
    v_and_b32 v{t}, 4, v{t}
    v_and_b32 v{tr1}, 3, v{v_lane}
    v_add_u32 v{t}, v{t}, v{tr1}
    v_lshl_add_u32 v{tr0}, v{t}, 4, v{tr0}
    v_xor_b32 v{tr1}, 64, v{tr0}
    v_add_u32 v{tr0}, s{sl}, v{tr0}
    v_add_u32 v{tr1}, s{sl}, v{tr1}""")
    def issue(c):
        for i in range(8):
            A(f"s_add_u32 m0, s{sl}, {(c%depth)*8192 + i*1024}")
            A(f"global_load_lds_dwordx4 v{voff}, {sr(s_w,2)}" if not os.environ.get('NOWLD') else "s_mov_b32 s96, 0x12345")
            add64(A, s_w, s_w, 8*wstride if not os.environ.get('SAMEROW') else 65536*0)
    for c in range(depth): issue(c)
    if hook: hook(A, -1, 0)
    for c in range(10):
        ext = (wide if c < depth else 0) + sum(1 for k in range(max(0, c-depth), c) if wide and k + depth + wide < 10)
        A(f"s_waitcnt vmcnt({8*min(depth-1, 9-c) + ext})")
        for ksl in range(2):
            for tt in range(4):
                p, ab = tt >> 1, tt & 1
                r = wreg_proj((2*c+ksl)*4 + tt)
                for q in range(2):
                    A(f"ds_read_b64_tr_b16 {ur(r+2*q,2)}, v{tr1 if p else tr0} offset:{(c%depth)*8192 + ksl*4096 + q*(2048 if kperm else 512) + 8*ab}")
        if hook: hook(A, c, 0)
        if c + depth < 10:
            A("s_waitcnt lgkmcnt(0)")
            issue(c+depth)
        if hook: hook(A, c, 1)
    A("s_waitcnt lgkmcnt(0)")

ACC = 128
XR = 160
EP = 176

def proj_loop(A, name, s_x, s_cnt, s_wave, v_lane, epi, swap=False, mid_hook=None, s_t=None, vt=8, seg0_done=False, nmid=19):
    vdma, vcur, vnxt = vt, vt+1, vt+2
    XB = 64
    sdm, snx = s_t, s_t+1
    A(f"""v_lshlrev_b32 v{vcur}, 4, v{v_lane}
    s_mul_i32 s{sdm}, s{s_wave}, 10240
    v_add_u32 v{vdma}, s{sdm}, v{vcur}
    v_add_u32 v{vnxt}, {SEG_XN}, v{vcur}
    s_barrier""")
    def dma(i, boff):
        A(f"s_add_u32 m0, s{boff}, {(i//4)*4096}" if i % 4 == 0 else "")
        A(f"global_load_lds_dwordx4 v{vdma}, {sr(s_x,2)} offset:{(i%4)*1024}")
        if i % 4 == 3: add64(A, s_x, s_x, 4096)
        if i == 9: add64(A, s_x, s_x, SEG_XN - 8192)
    if not seg0_done:
        for i in range(10): dma(i, sdm)
    A(f"s_add_u32 s{sdm}, s{sdm}, {SEG_XN}")
    for i in range(10): dma(i, sdm)
    A(f"s_add_u32 s{sdm}, s{sdm}, {SEG_XN}")
    A(f"s_mov_b32 s{snx}, 1")
    A("s_waitcnt vmcnt(10)\ns_barrier")
    for n in range(PRING-1):
        A(f"ds_read_b128 {vr(XB+4*n,4)}, v{vcur} offset:{n*1024}")
    A(f"s_mov_b32 s{s_t+2}, 0")
    A(f"{name}_loop:")
    for n in range(40):
        rt, ks = divmod(n, 20)
        m = n + PRING - 1
        A(f"ds_read_b128 {vr(XB+4*(m%PRING),4)}, v{vcur if m < 40 else vnxt} offset:{(m%40)*1024}")
        A(f"s_waitcnt lgkmcnt({PRING-1})")
        for t in range(4):
            a = vr(ACC + 16*rt + 4*t, 4)
            w = ur(wreg_proj(ks*4+t), 4); x = vr(XB+4*(n%PRING), 4)
            o1, o2 = (x, w) if swap else (w, x)
            A(f"v_mfma_f32_16x16x32_bf16 {a}, {o1}, {o2}, {'0' if ks == 0 else a}")
            if ks >= 1:
                step = (ks-1)*4 + t
                if rt == 0:
                    epi(A, 1, step, guard=s_t+2)
                else:
                    epi(A, 0, step, guard=None)
        if n == nmid:
            A(f"s_waitcnt vmcnt({PVM})\ns_barrier")
            if mid_hook: mid_hook(A)
        if n > nmid and (n-nmid-1) % PDS == 0 and (n-nmid-1)//PDS < 10:
            dma((n-nmid-1)//PDS, sdm)
    A(f"""s_add_u32 s{snx}, s{snx}, 1
    s_cmp_eq_u32 s{snx}, 3
    s_cselect_b32 s{snx}, 0, s{snx}
    v_mov_b32 v{vcur}, v{vnxt}
    s_mul_i32 s{s_t+2}, s{snx}, {SEG_XN}
    v_lshlrev_b32 v{vnxt}, 4, v{v_lane}
    v_add_u32 v{vnxt}, s{s_t+2}, v{vnxt}
    s_add_u32 s{sdm}, s{sdm}, {SEG_XN}
    s_cmp_eq_u32 s{snx}, 2
    s_cselect_b32 s{s_t+2}, {3*SEG_XN}, 0
    s_sub_u32 s{sdm}, s{sdm}, s{s_t+2}
    s_mov_b32 s{s_t+2}, 1
    s_sub_u32 s{s_cnt}, s{s_cnt}, 1
    s_cmp_lg_u32 s{s_cnt}, 0
    s_cbranch_scc1 {name}_loop""")
    step = 0
    while epi(A, 1, step, guard=None): step += 1
    A("s_waitcnt lgkmcnt(0)")

def make_epi_qkv(s_o, v_o, flags):
    def epi(A, rt, step, guard):
        if step < 2: return True
        step -= 2
        if step < 8:
            p, j = divmod(step, 4)
            a = ACC + 16*rt + 8*p + 2*j
            A(f"v_cvt_pk_bf16_f32 v{EP+4*p+j}, v{a}, v{a+1}")
            return True
        if step == 8 or step == 8 + PSS:
            if guard is not None:
                l = A.newlabel('skip')
                A(f"s_cmp_eq_u32 s{guard}, 0\ns_cbranch_scc1 {l}")
            if step == 8:
                if rt == 1: add64(A, s_o, s_o, 6144)
                A(f"global_store_dwordx4 v{v_o}, {vr(EP,4)}, {sr(s_o,2)} {flags}")
            if step == 8 + PSS:
                A(f"global_store_dwordx4 v{v_o}, {vr(EP+4,4)}, {sr(s_o,2)} offset:1024 {flags}")
                if rt == 1: add64(A, s_o, s_o, SEG_QKV - 6144)
            if guard is not None: A(f"{l}:")
            return True
        return step < 8 + PSS
    return epi

from r_ln import hexf
import math
GC0 = -2.0*math.sqrt(2.0/math.pi)*math.log2(math.e)
GC1 = GC0*0.044715
def gelu_ops(regs, tmp, s_c0, s_c1):
    n = len(regs); ops = []
    ops += [f"v_mul_f32 v{tmp+i}, v{r}, v{r}" for i, r in enumerate(regs)]
    ops += [f"v_fma_f32 v{tmp+i}, v{tmp+i}, s{s_c1}, v{s_c0}" for i, r in enumerate(regs)]
    ops += [f"v_mul_f32 v{tmp+i}, v{tmp+i}, v{r}" for i, r in enumerate(regs)]
    ops += [f"v_exp_f32 v{tmp+i}, v{tmp+i}" for i, r in enumerate(regs)]
    ops += [f"v_add_f32 v{tmp+i}, 1.0, v{tmp+i}" for i, r in enumerate(regs)]
    ops += [f"v_rcp_f32 v{tmp+i}, v{tmp+i}" for i, r in enumerate(regs)]
    ops += [f"v_mul_f32 v{tmp+i}, v{tmp+i}, v{r}" for i, r in enumerate(regs)]
    return ops

def make_epi_list(build, per=3):
    cache = {}
    def epi(A, rt, step, guard):
        if step == 0: cache[rt] = build(rt)
        ops, tail = cache[rt]
        if step < 2: return True
        k = (step-2)*per
        if k < len(ops):
            for o in ops[k:k+per]: A(o)
            return True
        if k < len(ops) + per:
            if guard is not None:
                l = A.newlabel('skip')
                A(f"s_cmp_eq_u32 s{guard}, 0\ns_cbranch_scc1 {l}")
            A(tail)
            if guard is not None: A(f"{l}:")
            return True
        return False
    return epi

SEG_Z = 48*1024
SEG_ST = 12*256
GT, ZP, ST_ = 32, 64, 96
def make_epi_z1(s_o, v_o, v_c0, s_c1, flags, seg_step=1):
    def build(rt):
        regs = [ACC + 16*rt + i for i in range(16)]
        ops = gelu_ops(regs, GT, v_c0, s_c1)
        ops += [f"v_cvt_pk_bf16_f32 v{EP+i}, v{GT+2*i}, v{GT+2*i+1}" for i in range(8)]
        tail = f"""global_store_dwordx4 v{v_o}, {vr(EP,4)}, {sr(s_o,2)} {flags}
        global_store_dwordx4 v{v_o}, {vr(EP+4,4)}, {sr(s_o,2)} offset:1024 {flags}
        s_add_u32 s{s_o}, s{s_o}, {24576 + (seg_step-1)*SEG_Z*rt}
        s_addc_u32 s{s_o+1}, s{s_o+1}, 0"""
        return ops, tail
    return make_epi_list(build, 2)

def make_epi_z2(s_o, s_st, v_o, v_st, v_c0, s_c1, flags, seg_step=1):
    def build(rt):
        regs = [ACC + 16*rt + i for i in range(16)]
        ops = gelu_ops(regs, GT, v_c0, s_c1)
        ops += [f"v_cvt_pk_bf16_f32 v{ZP+4*t+2*rt+j}, v{GT+4*t+2*j}, v{GT+4*t+2*j+1}" for t in range(4) for j in range(2)]
        ops += [f"v_add_f32 v{ST_+i}, v{GT+i}, v{GT+4+i}" for i in range(4)]
        ops += [f"v_mul_f32 v{ST_+4+i}, v{GT+i}, v{GT+i}" for i in range(4)]
        for t in range(1, 4):
            if t > 1: ops += [f"v_add_f32 v{ST_+i}, v{ST_+i}, v{GT+4*t+i}" for i in range(4)]
            ops += [f"v_fmac_f32 v{ST_+4+i}, v{GT+4*t+i}, v{GT+4*t+i}" for i in range(4)]
        for sh in (8, 4, 2, 1):
            ops += [f"v_add_f32_dpp v{ST_+i}, v{ST_+i}, v{ST_+i} row_ror:{sh} row_mask:0xf bank_mask:0xf" for i in range(8)]
        tail = f"""s_mov_b32 exec_lo, 0x00010001
        s_mov_b32 exec_hi, 0x00010001
        global_store_dwordx4 v{v_st}, {vr(ST_,4)}, {sr(s_st,2)} offset:{32*rt} {flags}
        global_store_dwordx4 v{v_st}, {vr(ST_+4,4)}, {sr(s_st,2)} offset:{32*rt+16} {flags}
        s_mov_b64 exec, -1
        """
        if rt == 1:
            tail += '\n'.join(f"global_store_dwordx4 v{v_o}, {vr(ZP+4*t,4)}, {sr(s_o,2)} offset:{1024*t} {flags}" for t in range(4))
            tail += f"""
            s_add_u32 s{s_o}, s{s_o}, {SEG_Z*seg_step}
            s_addc_u32 s{s_o+1}, s{s_o+1}, 0
            s_add_u32 s{s_st}, s{s_st}, {SEG_ST*seg_step}
            s_addc_u32 s{s_st+1}, s{s_st+1}, 0"""
        return ops, tail
    return make_epi_list(build, 3)

def proj_once_loop(A, name, s_x, s_seg, seg_step, s_wave, v_lane, epi, swap, s_t, vt, wait_in, done_hook):
    vdma, vcur = vt, vt+1
    sdm = s_t
    A(f"""v_lshlrev_b32 v{vcur}, 4, v{v_lane}
    s_mul_i32 s{sdm}, s{s_wave}, 10240
    v_add_u32 v{vdma}, s{sdm}, v{vcur}
    s_barrier
    {name}_loop:""")
    wait_in(A)
    for i in range(10):
        if i % 4 == 0: A(f"s_add_u32 m0, s{sdm}, {(i//4)*4096}")
        A(f"global_load_lds_dwordx4 v{vdma}, {sr(s_x,2)} offset:{(i%4)*1024}")
        if i % 4 == 3: add64(A, s_x, s_x, 4096)
    add64(A, s_x, s_x, seg_step*SEG_XN - 8192)
    A("s_waitcnt vmcnt(0)\ns_barrier")
    for n in range(3):
        A(f"ds_read_b128 {vr(XR+4*n,4)}, v{vcur} offset:{n*1024}")
    for n in range(40):
        rt, ks = divmod(n, 20)
        m = n + 3
        if m < 40: A(f"ds_read_b128 {vr(XR+4*(m%4),4)}, v{vcur} offset:{m*1024}")
        A(f"s_waitcnt lgkmcnt({min(3, 39-n)})")
        for t in range(4):
            a = vr(ACC + 16*rt + 4*t, 4)
            w = ur(wreg_proj(ks*4+t), 4); x = vr(XR+4*(n%4), 4)
            o1, o2 = (x, w) if swap else (w, x)
            A(f"v_mfma_f32_16x16x32_bf16 {a}, {o1}, {o2}, {'0' if ks == 0 else a}")
            if ks >= 1 and rt == 1: epi(A, 0, (ks-1)*4 + t, guard=None)
    step = 0
    while epi(A, 1, step, guard=None): step += 1
    A("s_waitcnt vmcnt(0)\ns_barrier")
    done_hook(A)
    A(f"""s_add_u32 s{s_seg}, s{s_seg}, {seg_step}
    s_cmp_lt_u32 s{s_seg}, {NSEG}
    s_cbranch_scc1 {name}_loop""")
```

```python
from common import *
from r_u import load_w_rows
from r_ln import hexf
import math, os
TOUCH = int(os.environ.get('TOUCH', '128'))
NOU = int(os.environ.get('NOU', '0'))
NOKQ = int(os.environ.get('NOKQ', '0'))

NG, HG, NR = 4, 8, 10
GBLK = 32768
GSLOT = 16*GBLK
LBASE = WS_LRING
M_OFF = 0
P_OFF = 16384
PX_OFF = 32768
Y_OFF = 163840
NSYNC = NG*(2*HG+NR)
WS_OP = WS_YF
SEG_OP = 2*20*4*1024
TLANES = int(os.environ.get('TLANES', '64'))
TOUT = int(os.environ.get('TOUT', '0'))
KQP = int(os.environ.get('KQP', '8'))
GDROP = int(os.environ.get('GDROP', '0'))
ASLEEP = int(os.environ.get('ASLEEP', '2'))
BSLEEP = int(os.environ.get('BSLEEP', '24'))
RSLEEP = int(os.environ.get('RSLEEP', '0'))
MPIPE = int(os.environ.get('MPIPE', '0'))
YPIPE = int(os.environ.get('YPIPE', '2'))
XFLAGNOW = int(os.environ.get('XFLAGNOW', '0'))
SCRUB = int(os.environ.get('SCRUB', '1'))
XLEAD = int(os.environ.get('XLEAD', '3'))
MMASK = int(os.environ.get('MMASK', '0'))
KQEND = int(os.environ.get('KQEND', '1'))
BTOUCH = int(os.environ.get('BTOUCH', '0'))
BTEARLY = int(os.environ.get('BTEARLY', '1'))
XDEFER = int(os.environ.get('XDEFER', '0'))
RST6 = int(os.environ.get('RST6', '1'))
UPARK = int(os.environ.get('UPARK', '3'))
TRIM = int(os.environ.get('TRIM', '1'))
XFPOS = int(os.environ.get('XFPOS', '1'))
SCRPOS = int(os.environ.get('SCRPOS', '2'))
YQ = int(os.environ.get('YQ', '0'))
CHEATS = int(os.environ.get('CHEATS', '0'))
SELF = int(os.environ.get('SELF', '0'))
OWN2 = int(os.environ.get('OWN2', '5'))
P64 = int(os.environ.get('P64', '1'))
EM0 = int(os.environ.get('EM0', '47'))
XD1 = int(os.environ.get('XD1', '6'))
XD2 = int(os.environ.get('XD2', '0'))
BSCRUB = int(os.environ.get('BSCRUB', '0'))
BFLAG = int(os.environ.get('BFLAG', '0'))
GREP = int(os.environ.get('GREP', '4'))
BSD = int(os.environ.get('BSD', '0'))
EK = int(os.environ.get('EK', '46'))
EM1 = int(os.environ.get('EM1', '51'))
EFAST = int(os.environ.get('EFAST', '0'))
ANOW = int(os.environ.get('ANOW', '1'))
WGAPS = eval(os.environ.get('WGAPS', '[0, 2, 4]'))
SGAPS = eval(os.environ.get('SGAPS', '[5, 6, 7, 8, 15, 16, 17, 18, 19, 20, 21, 22]'))
KGAPS = eval(os.environ.get('KGAPS', '[25, 26, 27, 28]'))
AB1 = int(os.environ.get('AB1', '9'))
BB1 = int(os.environ.get('BB1', '8'))
BX1 = int(os.environ.get('BX1', '28'))
BX2 = int(os.environ.get('BX2', '38'))
BVF = int(os.environ.get('BVF', '3'))
BYF = int(os.environ.get('BYF', '0'))
WGAPSB = eval(os.environ.get('WGAPSB', '[0, 2, 4]'))
BNOW = int(os.environ.get('BNOW', '5'))
SGAPSB = eval(os.environ.get('SGAPSB', '[14, 15, 16, 17, 18, 19, 20, 21, 41, 42, 43, 44]'))
GDELAY = int(os.environ.get('GDELAY', '2'))
KQW3 = int(os.environ.get('KQW3', '0'))
POLL_LIMIT = 1 << 17

class Lg:
    def __init__(s, A): s.A = A; s.n = 0; s.done = 0; s.tag = {}
    def ds(s, text, tag=None):
        s.A(text); s.n += 1
        if tag is not None: s.tag[tag] = s.n
    def need(s, tag):
        k = s.tag[tag]
        if k > s.done:
            w = s.n - k
            if w <= 15:
                s.A(f"s_waitcnt lgkmcnt({w})"); s.done = k
            else:
                s.A("s_waitcnt lgkmcnt(15)"); s.done = s.n - 15
    def all(s):
        s.A("s_waitcnt lgkmcnt(0)"); s.done = s.n

V_LANE16, V_P1, V_P2, V_RD0, V_RD3, V_IDX, V_TW, V_TR, V_WS, V_X1, V_X2, V_X3, V_JUNK = 1, 2, 3, 4, 7, 8, 9, 10, 11, 12, 13, 14, 15
MOP, ACC, STG = 16, 56, 80
V_X3S = 999
V_P2S = ACC + 8
LPOS_A = eval(os.environ.get('LPOSA', '[0, 1, 2, 3, 11, 13, 22, 24, 26, 28]'))
LPOS_B = eval(os.environ.get('LPOSB', '[0, 1, 2, 3, 22, 24, 26, 28, 49, 51]'))
LPOS = LPOS_A
def set_lpos(l):
    global LPOS
    LPOS = l
def wloc(p):
    if p in LPOS: return ('lds', LPOS.index(p))
    k = p - sum(1 for x in LPOS if x < p)
    return ('reg', 256 + 8*k if k < 32 else 112 + 8*(k-32))
def wreg(p):
    kind, x = wloc(p)
    return STG + 8*(x % 4) if kind == 'lds' else x
L_T = 0
L_S = 8192
L_Z = 6400
L_MS = 12288
L_X = 24576
L_R = L_X + 49152
L_W = 81920
S_WAVE = 3
SRD = 4
S_GRP, S_HL, S_STEP, S_TO = 8, 9, 10, 11
S_T = 12
S_A, S_B = 20, 22
S_POL, S_SLOW, S_H = 24, 25, 26
S_CUR, S_TAG, S_TAGM = 27, 28, 29
S_ML, S_ML4, S_MR, S_MR4 = 30, 31, 32, 33
S_MSK = 34
S_HI = 52
S_EVEN = 54
S_C1, S_C2, S_C3, S_C4, S_C5, S_C6 = 56, 57, 58, 59, 60, 61
S_O1, S_O2, S_O3, S_O4 = 62, 63, 64, 65
S_NT, S_CT0, S_SEL0, S_SEL1, S_CSC = 66, 67, 68, 69, 70
srd = sr(SRD, 4)

def smf(A, acc, a, b):
    A(f"v_smfmac_f32_16x16x64_bf16 {vr(acc,4)}, {vr(a,4)}, {ur(b,8)}, v{V_IDX}")
def bld(n, dst, va, so, off=0, fl=''):
    nm = {1: 'dword', 2: 'dwordx2', 4: 'dwordx4'}[n]
    return f"buffer_load_{nm} {vr(dst,n)}, v{va}, {srd}, s{so} offen offset:{off} {fl}"
def bst(n, src, va, so, off=0, fl=''):
    nm = {1: 'dword', 2: 'dwordx2', 4: 'dwordx4'}[n]
    return f"buffer_store_{nm} {vr(src,n)}, v{va}, {srd}, s{so} offen offset:{off} {fl}"
def bdma(va, so, off=0):
    return f"buffer_load_dwordx4 v{va}, {srd}, s{so} offen offset:{off} lds"

def common_init(A):
    w = S_WAVE
    A(f"""v_lshlrev_b32 v{V_LANE16}, 4, v0
    s_lshl_b32 s{S_T}, s{w}, 10
    v_add_u32 v{V_P1}, s{S_T}, v{V_LANE16}
    s_and_b32 s{S_MR}, s{S_T}, 1024""")
    for i in range(3):
        A(f"s_xor_b32 s{S_T+1}, s{S_T}, {(i+1)*1024}\nv_add_u32 v{V_RD0+i}, s{S_T+1}, v{V_LANE16}")
    A(f"""s_mov_b32 s{S_HI}, 0xff00ff00
    s_mov_b32 s{S_HI+1}, 0xff00ff00
    v_mov_b32 v{V_IDX}, 0x4444
    v_mov_b32 v{V_TW}, 0xeeee
    v_cndmask_b32 v{V_IDX}, v{V_IDX}, v{V_TW}, {sr(S_HI,2)}
    s_mul_i32 s{S_T+1}, s{w}, 20480
    s_add_u32 s{S_T+1}, s{S_T+1}, {L_W}
    v_add_u32 v{V_WS}, s{S_T+1}, v{V_LANE16}
    s_lshl_b32 s{S_H}, s{S_GRP}, 3
    s_add_u32 s{S_H}, s{S_H}, s{S_HL}
    s_mov_b32 s{S_SEL0}, 0x00003f80
    s_mov_b32 s{S_SEL1}, 0x3f800000
    s_lshl_b32 s{S_CUR}, s{S_GRP}, 18
    s_add_u32 s{S_CUR}, s{S_CUR}, {LBASE}
    s_mov_b32 s{S_TAG}, 0
    s_mov_b32 s{S_TAGM}, 0
    s_add_u32 s{S_ML}, s{S_CUR}, {M_OFF}
    s_add_u32 s{S_ML4}, s{S_ML}, 4096
    s_add_u32 s{S_MR}, s{S_MR}, s{S_ML}
    s_add_u32 s{S_MR}, s{S_MR}, 8192
    s_mov_b32 s{S_STEP}, 0""")

def kappa_sreg(A, kp, dst):
    w = S_WAVE
    if kp == 0: A(f"s_mov_b32 s{dst}, s{w}")
    elif kp == 1: A(f"s_add_u32 s{dst}, s{w}, 4")
    elif kp == 2: A(f"s_and_b32 s{dst}, s{w}, 1\ns_add_u32 s{dst}, s{dst}, 8")
    elif kp < 6: A(f"s_xor_b32 s{dst}, s{w}, {kp-2}")
    elif kp < 9: A(f"s_xor_b32 s{dst}, s{w}, {kp-5}\ns_add_u32 s{dst}, s{dst}, 4")
    else: A(f"s_and_b32 s{dst}, s{w}, 1\ns_xor_b32 s{dst}, s{dst}, 9")

def tr_addr_sparseB(A, dst, t, rowbytes, s_base):
    A(f"""v_bfe_u32 v{dst}, v0, 2, 1
    v_bfe_u32 v{t}, v0, 3, 1
    v_lshl_add_u32 v{dst}, v{t}, 3, v{dst}
    v_bfe_u32 v{t}, v0, 4, 1
    v_lshl_add_u32 v{dst}, v{t}, 2, v{dst}
    v_bfe_u32 v{t}, v0, 5, 1
    v_lshl_add_u32 v{dst}, v{t}, 4, v{dst}
    v_mul_u32_u24 v{dst}, {rowbytes}, v{dst}
    v_and_b32 v{t}, 3, v0
    v_lshl_add_u32 v{dst}, v{t}, 3, v{dst}
    v_add_u32 v{dst}, s{s_base}, v{dst}""")

def read_operand(A, p, vtr, off, rowbytes, halves=(0,1), hrows=32):
    kind, x = wloc(p)
    r = STG if kind == 'lds' else x
    for half in halves:
        for q in range(2):
            A(f"ds_read_b64_tr_b16 {ur(r+4*half+2*q,2)}, v{vtr} offset:{off + (hrows*(half-halves[0]) + 2*q)*rowbytes}")
    if kind == 'lds':
        A("s_waitcnt lgkmcnt(0)")
        for half in halves:
            A(f"ds_write_b128 v{V_WS}, {vr(STG+4*half,4)} offset:{x*2048+1024*half}")
        A("s_waitcnt lgkmcnt(0)")

def kp_of(kappa, w):
    if kappa < 4: d = kappa ^ w; return 0 if d == 0 else d + 2
    if kappa < 8: d = (kappa-4) ^ w; return 1 if d == 0 else d + 5
    return 2 if kappa - 8 == (w & 1) else 9

def load_heads(A, mats, tiles, pos):
    VA_, VT_, t, u = MOP, MOP+6, MOP+10, MOP+11
    sb = S_T + 4
    w = S_WAVE
    for i in range(6):
        A(f"""v_add_u32 v{t}, {64*i}, v0
        v_mul_u32_u24 v{u}, {(65536+23)//24}, v{t}
        v_lshrrev_b32 v{u}, 16, v{u}
        v_mul_u32_u24 v{VA_+i}, 24, v{u}
        v_sub_u32 v{t}, v{t}, v{VA_+i}
        v_lshrrev_b32 v{VA_+i}, 1, v{u}
        v_and_b32 v{VA_+i}, 6, v{VA_+i}
        v_xor_b32 v{t}, v{t}, v{VA_+i}
        v_mul_u32_u24 v{VA_+i}, 12288, v{u}
        v_lshl_add_u32 v{VA_+i}, v{t}, 4, v{VA_+i}""")
    for tt in range(4):
        A(f"""v_bfe_u32 v{u}, v0, 4, 1
        v_bfe_u32 v{t}, v0, 3, 1
        v_lshl_add_u32 v{u}, v{t}, 1, v{u}
        v_lshlrev_b32 v{VT_+tt}, 1, v{u}
        v_bfe_u32 v{t}, v0, 1, 1
        v_add_u32 v{t}, {2*tt}, v{t}
        v_xor_b32 v{VT_+tt}, v{VT_+tt}, v{t}
        v_lshlrev_b32 v{VT_+tt}, 4, v{VT_+tt}
        v_and_b32 v{t}, 1, v0
        v_lshl_add_u32 v{VT_+tt}, v{t}, 3, v{VT_+tt}
        v_lshlrev_b32 v{u}, 2, v{u}
        v_bfe_u32 v{t}, v0, 2, 1
        v_add_u32 v{u}, v{u}, v{t}
        v_bfe_u32 v{t}, v0, 5, 1
        v_lshl_add_u32 v{u}, v{t}, 4, v{u}
        v_mul_u32_u24 v{u}, 384, v{u}
        v_add_u32 v{VT_+tt}, v{VT_+tt}, v{u}""")
    A(f"s_mul_i32 s{sb}, s{w}, 6144\ns_mul_i32 s{S_T}, s{w}, {16*12288}")
    for sp in mats: add64(A, sp, sp, f"s{S_T}")
    rounds = [(m, k) for m in range(len(mats)) for k in range(10)]
    depth, slot = 3, 24576
    def issue(r):
        sp = mats[rounds[r][0]]
        for i in range(6):
            A(f"s_add_u32 m0, s{sb}, {(r % depth)*slot + i*1024}")
            A(f"global_load_lds_dwordx4 v{VA_+i}, {sr(sp,2)}")
        add64(A, sp, sp, 64*12288)
    for r in range(depth): issue(r)
    labs = [A.newlabel('lw') for _ in range(4)]; lend = A.newlabel('lw')
    for ww in range(1, 4): A(f"s_cmp_eq_u32 s{w}, {ww}\ns_cbranch_scc1 {labs[ww]}")
    n = len(rounds)
    for ww in range(4):
        A(f"{labs[ww]}:")
        for r, (m, k) in enumerate(rounds):
            A(f"s_waitcnt vmcnt({6*min(depth-1, n-1-r)})\ns_barrier")
            hi = (r % depth) == 2
            if hi:
                for tt in range(4): A(f"v_add_u32 v{VT_+tt}, {2*slot}, v{VT_+tt}")
            for tt, (mm_, ct) in enumerate(tiles(ww)):
                if mm_ == m: read_operand(A, pos(kp_of(k, ww), tt), VT_+(ct & 3), (0 if hi else (r % depth)*slot) + 128*(ct >> 2), 384)
            if hi:
                for tt in range(4): A(f"v_subrev_u32 v{VT_+tt}, {2*slot}, v{VT_+tt}")
            A("s_waitcnt lgkmcnt(0)\ns_barrier")
            if r + depth < n: issue(r+depth)
        if ww < 3: A(f"s_branch {lend}")
    A(f"{lend}:")

def tick(A, exitlab):
    A(f"""s_add_u32 s{S_TO}, s{S_TO}, 1
    s_cmp_gt_u32 s{S_TO}, {POLL_LIMIT}
    s_cbranch_scc1 {exitlab}""")

def check(A, regs, stag, target):
    t = V_X3
    c = list(regs)
    if len(c) == 1:
        A(f"v_bitop3_b32 v{t}, v{c[0]}, 1, s{stag} bitop3:0x48")
    else:
        A(f"v_bitop3_b32 v{t}, v{c[0]}, v{c[1]}, s{stag} bitop3:0x7e")
        for x in c[2:]:
            A(f"v_bitop3_b32 v{t}, v{x}, v{t}, s{stag} bitop3:0xde")
        A(f"v_and_b32 v{t}, 1, v{t}")
    A(f"v_cmp_ne_u32 vcc, 0, v{t}\ns_cbranch_vccnz {target}")

def poll(A, name, loads, checks, stag, exitlab, shadow=None):
    l = A.newlabel(name)
    if shadow is not None:
        l2 = A.newlabel(name)
        for x in loads: A(x)
        shadow()
        A(f"s_branch {l2}")
    A(f"{l}:")
    for x in loads: A(x)
    tick(A, exitlab)
    if shadow is not None: A(f"{l2}:")
    A("s_waitcnt vmcnt(0)")
    check(A, checks, stag, l)

def ingest_mem(A, lg, exitlab, shadow=None):
    def L(b): return [bld(4, b, V_P1, S_ML, 0, 'sc1'), bld(4, b+4, V_P1, S_ML4, 0, 'sc1'), bld(4, b+8, V_LANE16, S_MR, 0, 'sc1')]
    W = [(V_P1, L_MS), (V_P1, L_MS+4096), (V_P1, L_MS+8192)]
    if MMASK:
        M = [S_T, S_T+2, S_T+4]
        lp = A.newlabel('pm')
        for m in M: A(f"s_mov_b64 {sr(m,2)}, -1")
        A(f"{lp}:")
        for m, x in zip(M, L(MOP)): A(f"s_mov_b64 exec, {sr(m,2)}\n{x}")
        A("s_mov_b64 exec, -1")
        tick(A, exitlab)
        A("s_waitcnt vmcnt(0)")
        for f in range(3): A(f"v_bitop3_b32 v{MOP+12+f}, v{MOP+4*f}, 1, s{S_TAG} bitop3:0x48")
        for f in range(3): A(f"v_cmp_ne_u32 {sr(M[f],2)}, 0, v{MOP+12+f}")
        A(f"s_or_b64 vcc, {sr(M[0],2)}, {sr(M[1],2)}\ns_or_b64 vcc, vcc, {sr(M[2],2)}\ns_cbranch_scc1 {lp}")
        for f, (v, off) in enumerate(W):
            lg.ds(f"ds_write_b128 v{v}, {vr(MOP+4*f,4)} offset:{off}", ('mw', f))
        return
    if not MPIPE:
        poll(A, 'pm', L(MOP), [MOP, MOP+4, MOP+8], S_TAG, exitlab, shadow)
        if TRIM: return [(f"ds_write_b128 v{v}, {vr(MOP+4*f,4)} offset:{off}", ('mw', f)) for f, (v, off) in enumerate(W)]
        for f, (v, off) in enumerate(W):
            lg.ds(f"ds_write_b128 v{v}, {vr(MOP+4*f,4)} offset:{off}", ('mw', f))
        return
    S = [MOP+12, MOP+24]
    lp, n0, j = A.newlabel('pm'), A.newlabel('pm'), A.newlabel('pm')
    for x in L(S[0]): A(x)
    A(f"s_sleep {MPIPE}\n{lp}:")
    def fin(b):
        for f, (v, off) in enumerate(W):
            A(f"ds_write_b128 v{v}, {vr(b+4*f,4)} offset:{off}")
            A(f"v_pk_mov_b32 {vr(MOP+4*f,2)}, {vr(b+4*f,2)}, {vr(b+4*f,2)} op_sel:[0,1]\nv_pk_mov_b32 {vr(MOP+4*f+2,2)}, {vr(b+4*f+2,2)}, {vr(b+4*f+2,2)} op_sel:[0,1]")
    for x in L(S[1]): A(x)
    tick(A, exitlab)
    A("s_waitcnt vmcnt(3)")
    check(A, [S[0], S[0]+4, S[0]+8], S_TAG, n0)
    fin(S[0])
    A(f"s_branch {j}\n{n0}:")
    for x in L(S[0]): A(x)
    A("s_waitcnt vmcnt(3)")
    check(A, [S[1], S[1]+4, S[1]+8], S_TAG, lp)
    fin(S[1])
    A(f"{j}:")
    lg.n += 3; lg.tag[('mw', 2)] = lg.n

def read_mem_frags(A, lg, now=7):
    if MPIPE: A('s_waitcnt vmcnt(0)')
    L = []
    for kp in range(3, 10):
        if kp < 6: v, off = V_RD0 + kp - 3, L_MS
        elif kp < 9: v, off = V_RD0 + kp - 6, L_MS + 4096
        else: v, off = V_RD0, L_MS + 8192
        L.append((f"ds_read_b128 {vr(MOP+4*kp,4)}, v{v} offset:{off}", ('m', kp)))
    for x in L[:now]: lg.ds(*x)
    return L[now:]

def stg_load(lg, i):
    r = STG + 8*(i % 4)
    lg.ds(f"ds_read_b128 {vr(r,4)}, v{V_WS} offset:{i*2048}")
    lg.ds(f"ds_read_b128 {vr(r+4,4)}, v{V_WS} offset:{i*2048+1024}", ('w', i))

def next_step(A):
    A(f"""s_add_u32 s{S_STEP}, s{S_STEP}, 1
    s_xor_b32 s{S_TAG}, s{S_TAG}, 1""")

def t_plane_base(A, dst, c, t, plane):
    A(f"""v_mul_u32_u24 v{dst}, {plane}, v{c}
    v_and_b32 v{t}, 1, v{c}
    v_lshl_add_u32 v{dst}, v{t}, 5, v{dst}
    v_lshrrev_b32 v{t}, 1, v{c}
    v_lshl_add_u32 v{dst}, v{t}, 7, v{dst}""")

D_CNT, D_SLOW, D_POL = 2, 18, 34
D_LN = 4
NINIT = 16 + NG*NR
def checkin(A, s_dbg, vt=None):
    vt = MOP if vt is None else vt
    l2 = A.newlabel('isk')
    A(f"""s_waitcnt vmcnt(0)
    s_barrier
    s_cmp_lg_u32 s{S_WAVE}, 0
    s_cbranch_scc1 {l2}
    v_mov_b32 v{vt}, {4*D_CNT}
    v_mov_b32 v{vt+1}, 1
    s_mov_b64 exec, 1
    global_atomic_add v{vt}, v{vt+1}, {sr(s_dbg,2)}
    s_mov_b64 exec, -1
    {l2}:""")

def waitall(A, s_dbg, exitlab, vl4, vt=None, s_slow=None, s_pol=None, setup_only=False):
    vt = MOP if vt is None else vt
    l, l2 = A.newlabel('isync'), A.newlabel('isync')
    A(f"""v_lshrrev_b32 v{vt}, 2, v{vl4}
    v_mov_b32 v{vt+1}, 0
    s_mov_b32 exec_lo, 0x00030003
    s_mov_b32 exec_hi, 0x00030003
    v_mov_b32 v{vt+1}, 32
    s_mov_b32 exec_lo, 0x00100010
    s_mov_b32 exec_hi, 0x00100010
    v_mov_b32 v{vt+1}, 64
    s_mov_b64 exec, {1 << D_CNT}
    v_mov_b32 v{vt+1}, {NINIT}""")
    if s_pol is not None: A(f"s_mov_b32 exec_lo, 0\ns_mov_b32 exec_hi, {1 << (D_POL-32)}\nv_mov_b32 v{vt+1}, 1")
    A("s_mov_b64 exec, -1")
    if setup_only: return
    A(f"""s_branch {l2}
    {l}:
    s_sleep 4""")
    tick(A, exitlab)
    A(f"""{l2}:
    global_load_dword v{vt+2}, v{vt}, {sr(s_dbg,2)} sc1
    s_waitcnt vmcnt(0)
    v_cmp_gt_u32 vcc, v{vt+1}, v{vt+2}
    s_cbranch_vccnz {l}""")
    if s_slow is not None or s_pol is not None:
        A(f"global_load_dword v{vt+2}, v{vt}, {sr(s_dbg,2)} sc1\ns_waitcnt vmcnt(0)")
    if s_slow is not None: A(f"v_readlane_b32 s{s_slow}, v{vt+2}, {D_SLOW}")
    if s_pol is not None: A(f"v_readlane_b32 s{s_pol}, v{vt+2}, {D_POL}\ns_and_b32 s{s_pol}, s{s_pol}, 8192")

FSLEEP = int(os.environ.get('FSLEEP', '0'))
def wait_flags(A, v_addr, v_tmp, s_need, exitlab, sleep=2):
    l, l2 = A.newlabel('wf'), A.newlabel('wf')
    A(f"""s_branch {l2}
    {l}:
    s_sleep {FSLEEP or sleep}""")
    tick(A, exitlab)
    A(f"""{l2}:
    buffer_load_dword v{v_tmp}, v{v_addr}, {srd}, 0 offen sc1
    s_waitcnt vmcnt(0)
    v_cmp_gt_u32 vcc, s{s_need}, v{v_tmp}
    s_cbranch_vccnz {l}""")

def wait_flags_wg(A, v_addr, v_tmp, s_need, exitlab, sleep=6):
    l = A.newlabel('wg')
    A(f"s_cmp_lg_u32 s{S_WAVE}, 0\ns_cbranch_scc1 {l}")
    wait_flags(A, v_addr, v_tmp, s_need, exitlab, sleep)
    A(f"{l}:\ns_barrier")

def put_flag(A, s_off, s_val, vt):
    A(f"""v_mov_b32 v{vt}, s{s_val}
    s_mov_b64 exec, 1
    buffer_store_dword v{vt}, off, {srd}, s{s_off} sc1
    s_mov_b64 exec, -1""")

CSC = (192 ** -0.5) * math.log2(math.e)
NEG = 0xf149f2ca

_ownk = [(kp, t) for t in (3, 4, 5) for kp in range(3)]
SEQ_A = ([(kp, t) for kp in range(3) for t in range(3)] + _ownk[:OWN2] + [(kp, t) for kp in range(3, 10) for t in (0, 1)]
         + [(kp, 2) for kp in range(3, 10)] + [x for x in _ownk[OWN2:] if x[1] == 3] + [(kp, 3) for kp in range(3, 10)]
         + [x for x in _ownk[OWN2:] if x[1] != 3] + [(kp, t) for kp in range(3, 10) for t in (4, 5)])
def posA(kp, t): return SEQ_A.index((kp, t))

def H(hooks, name, *a):
    if name in hooks: hooks[name](*a)

def role_A(A, exitlab, s_dbg, hooks, slow_too=True):
    w = S_WAVE
    set_lpos(LPOS_A)
    common_init(A)
    t0, t1, t2 = MOP, MOP+1, MOP+2
    S_WO, S_WS2 = S_O2, S_O4
    V_TS, V_QS = V_P2, V_RD3
    A(f"""s_and_b32 s{S_T}, s{w}, 1
    s_mul_i32 s{S_T+1}, s{w}, 3
    s_add_u32 s{S_T+2}, s{S_T+1}, s{S_T}
    s_lshl_b32 s{S_WO}, s{S_T+2}, 9
    s_lshl_b32 s{S_T+2}, s{S_T+2}, 7
    s_lshl_b32 s{S_T+3}, s{S_T}, 1
    s_sub_u32 s{S_T+3}, s{S_T+1}, s{S_T+3}
    s_add_u32 s{S_T+3}, s{S_T+3}, 2
    s_lshl_b32 s{S_T+3}, s{S_T+3}, 7
    s_lshl_b32 s{S_WS2}, s{S_T}, 11
    s_sub_u32 s{S_WS2}, 1024, s{S_WS2}
    v_lshrrev_b32 v{t0}, 4, v0
    v_and_b32 v{t1}, 1, v{t0}
    v_mul_u32_u24 v{V_TW}, 1568, v{t1}
    v_and_b32 v{t1}, 15, v0
    v_lshl_add_u32 v{V_TW}, v{t1}, 3, v{V_TW}
    v_lshrrev_b32 v{t1}, 5, v0
    v_lshl_add_u32 v{V_TS}, v{t1}, 2, v{V_TW}
    v_add_u32 v{V_TS}, s{S_T+3}, v{V_TS}
    v_lshl_add_u32 v{V_TW}, v{t1}, 7, v{V_TW}
    v_add_u32 v{V_TW}, s{S_T+2}, v{V_TW}
    v_and_b32 v{t2}, 3, v0""")
    t_plane_base(A, V_TR, t2, t1, 1536)
    A(f"""v_bfe_u32 v{t1}, v0, 2, 2
    v_lshl_add_u32 v{t1}, v{t0}, 3, v{t1}
    v_lshl_add_u32 v{V_TR}, v{t1}, 3, v{V_TR}
    v_add_u32 v{V_X1}, {L_X}, v{V_LANE16}
    v_add_u32 v{V_X1}, s{S_WO}, v{V_X1}
    v_and_b32 v{t2}, 1, v0""")
    t_plane_base(A, V_JUNK, t2, t1, 1536)
    A(f"""v_bfe_u32 v{t1}, v0, 2, 2
    v_lshl_add_u32 v{t1}, v{t0}, 3, v{t1}
    v_lshl_add_u32 v{V_JUNK}, v{t1}, 3, v{V_JUNK}
    s_and_b32 s{S_T+3}, s{S_T+3}, 0xffffff00
    v_add_u32 v{V_QS}, s{S_T+3}, v{V_JUNK}
    v_add_u32 v{V_JUNK}, s{S_T+2}, v{V_JUNK}
    v_lshrrev_b32 v{t1}, 5, v0
    v_cmp_eq_u32 vcc, s{S_T}, v{t1}
    v_mov_b32 v{t1}, {L_Z}
    v_cndmask_b32 v{V_QS}, v{t1}, v{V_QS}, vcc
    v_and_b32 v{t1}, 15, v0
    v_lshlrev_b32 v{V_X2}, 4, v{t1}
    v_and_b32 v{t1}, 1, v{t0}
    v_lshl_add_u32 v{V_X2}, v{t1}, 3, v{V_X2}""")
    A(f"v_and_b32 v{t1}, 15, v0\ns_sub_u32 s{S_T}, s{w}, 1\ns_lshl_b32 s{S_T}, s{S_T}, 4\nv_add_u32 v{t1}, s{S_T}, v{t1}")
    for kt in range(2):
        for i in range(4):
            A(f"""v_lshlrev_b32 v{t2}, 2, v{t0}
            v_add_u32 v{t2}, {16*kt+i}, v{t2}
            v_cmp_le_i32 {sr(S_MSK+8*kt+2*i,2)}, v{t2}, v{t1}""")
    A(f"s_mov_b32 s{S_MSK+16}, 0\ns_mov_b32 s{S_MSK+17}, -1\ns_mov_b32 s{S_CSC}, {hexf(CSC)}")
    l = A.newlabel('a_i')
    A(f"""v_bfe_u32 v{t1}, v0, 4, 1
    v_lshlrev_b32 v{t1}, 2, v{t1}
    v_sub_u32 v{V_X3}, v{V_X2}, v{t1}
    s_cmp_lg_u32 s{w}, 0
    s_cbranch_scc1 {l}
    v_lshrrev_b32 v{t2}, 5, v0
    v_lshl_add_u32 v{V_X2}, v{t2}, 8, v{V_X2}
    {l}:""")
    A(f"""s_mul_i32 s{S_T}, s{S_H}, 12288
    s_add_u32 s{S_C1}, s{S_T}, {WS_KF}
    s_add_u32 s{S_C2}, s{S_T}, {WS_QF}
    s_lshl_b32 s{S_C3}, s{S_HL}, 9
    s_add_u32 s{S_C3}, s{S_C3}, {P_OFF}
    s_lshr_b32 s{S_T+1}, s{S_HL}, 1
    s_lshl_b32 s{S_T+1}, s{S_T+1}, 8
    s_and_b32 s{S_T+2}, s{S_HL}, 1
    s_lshl_b32 s{S_T+2}, s{S_T+2}, 3
    s_add_u32 s{S_C4}, s{S_T+1}, s{S_T+2}
    s_add_u32 s{S_C4}, s{S_C4}, {P_OFF+4096}
    s_sub_u32 s{S_T}, s{w}, 1
    s_and_b32 s{S_T}, s{S_T}, 1
    s_mul_i32 s{S_T}, s{S_T}, 10240
    s_add_u32 s{S_T}, s{S_T}, {PX_OFF}
    s_add_u32 s{S_T}, s{S_T}, s{S_CUR}
    s_lshl_b32 s{S_C5}, s{S_HL}, 10
    s_add_u32 s{S_C5}, s{S_C5}, s{S_T}
    s_lshl_b32 s{S_C6}, s{S_HL}, 8
    s_add_u32 s{S_C6}, s{S_C6}, s{S_T}
    s_add_u32 s{S_C6}, s{S_C6}, 8192
    s_add_u32 s{S_C3}, s{S_C3}, s{S_CUR}
    s_add_u32 s{S_C4}, s{S_C4}, s{S_CUR}
    s_mul_i32 s{S_T}, s{w}, 3072
    s_add_u32 s{S_C1}, s{S_C1}, s{S_T}
    s_add_u32 s{S_C2}, s{S_C2}, s{S_T}
    s_add_u32 s{S_O1}, s{S_T}, {L_X}""")
    def bulk_pieces():
        P = []
        for m, sp in enumerate((S_C1, S_C2)):
            for i in range(3):
                x = f"s_add_u32 m0, s{S_O1}, {m*12288}\n" if i == 0 else ''
                if not NOKQ: x += bdma(V_LANE16, sp, i*1024)
                if i == 2: x += f"\ns_add_u32 s{sp}, s{sp}, {SEG_QKV}"
                P.append(x)
        return P
    A(f"""s_load_dwordx4 s[{S_A}:{S_A+3}], s[0:1], {KA_WQ}
    s_mul_i32 s{S_T}, s{S_H}, 384
    s_waitcnt lgkmcnt(0)""")
    add64(A, S_A, S_A, f"s{S_T}"); add64(A, S_B, S_B, f"s{S_T}")
    load_heads(A, [S_A, S_B], lambda ww: [(0, 3*ww+(ww&1)), (0, 3*ww+(ww&1)+1), (0, 3*ww+2-2*(ww&1)), (1, 3*ww+2-2*(ww&1)), (1, 3*ww+(ww&1)), (1, 3*ww+(ww&1)+1)], posA)
    H(hooks, 'rts', A, 2)
    A(f"v_mov_b32 v{MOP}, 0\nv_lshrrev_b32 v{MOP+1}, 2, v{V_LANE16}\nds_write_b32 v{MOP+1}, v{MOP} offset:{L_Z}")
    l = A.newlabel('a_i')
    A(f"s_cmp_lg_u32 s{w}, 0\ns_cbranch_scc1 {l}\nv_mov_b32 v0, 0x40000000\nv_cndmask_b32 v0, v0, v{V_X3}, {sr(S_MSK+16,2)}\n{l}:")
    waitall(A, s_dbg, exitlab, V_LANE16, s_slow=S_SLOW)
    H(hooks, 'wait_in', A, 'first')
    for x in bulk_pieces(): A(x)
    A(f"s_add_u32 s{S_O1}, s{S_O1}, 24576\ns_mov_b32 s{S_O3}, -24576")
    if slow_too: A(f"s_cmp_lg_u32 s{S_SLOW}, 0\ns_cbranch_scc1 a_loop_slow")
    for ver in (['', '_slow'] if slow_too else ['']):
        LF = 'sc1' if ver else ''
        A(f"a_loop{ver}:")
        lg = Lg(A)
        for i in range(4): stg_load(lg, i)
        for i in range(24): A(f"v_mov_b32 v{ACC+i}, 0")
        H(hooks, 'wait_in', A, 'peek')
        H(hooks, 'stamp', A, 0)
        if ASLEEP: A(f"s_sleep {ASLEEP}")
        lg.all()
        dsq = ingest_mem(A, lg, exitlab) or []
        H(hooks, 'stamp', A, 1)
        e0, e1, e2 = posA(9, 1), posA(9, 2), posA(9, 3)
        def epi_pair(Q, off, last):
            K = Q + 4
            ops = [f"v_permlane32_swap_b32 v{Q+r}, v{K+r}" for r in range(4)]
            if not last: ops += [f"v_add_f32 v{Q+r}, v{Q+r}, v{K+r}" for r in range(4)]
            else: ops += [f"v_pk_add_f32 {vr(Q+r,2)}, {vr(Q+r,2)}, {vr(K+r,2)}" for r in (0, 2)]
            ops += [f"v_cvt_pk_bf16_f32 v{K}, v{Q}, v{Q+1}", f"v_cvt_pk_bf16_f32 v{K+1}, v{Q+2}, v{Q+3}"]
            return ops + [('ds', f"ds_write_b64 v{V_TW}, {vr(K,2)} offset:{L_T + off}", None)]
        def epi_self(c, off):
            return [f"v_permlane32_swap_b32 v{c}, v{c+2}", f"v_permlane32_swap_b32 v{c+1}, v{c+3}", f"v_add_f32 v{c}, v{c}, v{c+2}",
                    f"v_add_f32 v{c+1}, v{c+1}, v{c+3}", f"v_cvt_pk_bf16_f32 v{c}, v{c}, v{c+1}", ('ds', f"ds_write_b32 v{V_TS}, v{c} offset:{L_T + off}", None)]
        def qe_rd(n): return [('ds', f"ds_read_b64_tr_b16 {vr(QE[n]+2*q,2)}, v{[V_JUNK, V_QS][n]} offset:{L_T + q*32}", ('qe', n)) for q in range(2)]
        def sop(i, h):
            r = STG + 8*(i % 4) + 4*h
            return (f"ds_read_b128 {vr(r,4)}, v{V_WS} offset:{i*2048+1024*h}", ('w', i) if h else None)
        KE = {(0, 0): STG+16, (1, 0): STG+20, (0, 1): STG+24, (1, 1): STG+28}; QE = [STG, STG+4]
        SE = [ACC, ACC+4]; PO = STG + 8
        DS = {}
        for g, x in zip(WGAPS, dsq): DS[g] = x
        for n, i in enumerate(range(4, 10)):
            DS[SGAPS[2*n]] = sop(i, 0); DS[SGAPS[2*n+1]] = sop(i, 1)
        for g, (rt, kl) in zip(KGAPS, [(0, 0), (1, 0), (0, 1), (1, 1)]):
            DS[g] = (f"ds_read_b128 {vr(KE[rt, kl],4)}, v{[V_X1, V_X3][kl]} offset:{rt*6144}", ('ke', rt, kl))
        def early(kl):
            lg.need(('ke', 1, kl)); lg.need(('qe', kl))
            for rt in range(2):
                A(f"v_mfma_f32_16x16x32_bf16 {vr(SE[rt],4)}, {vr(KE[rt, kl],4)}, {vr(QE[kl],4)}, {'0' if kl == 0 else vr(SE[rt],4)}")
        pend = []
        for p, (kp, t) in enumerate(SEQ_A):
            if p == AB1:
                lg.need(('mw', 2)); A("s_barrier"); H(hooks, 'stamp', A, 5)
                for n, x in enumerate(read_mem_frags(A, lg, ANOW)):
                    assert AB1 + n not in DS
                    DS[AB1+n] = x
            kind, x = wloc(p)
            if kind == 'lds': lg.need(('w', x))
            if kp >= 3: lg.need(('m', kp))
            smf(A, ACC+4*t, MOP+4*kp, wreg(p))
            if p in DS: lg.ds(*DS[p])
            if p == 1: pend += [f"v_add_u32 v{V_X3}, s{S_WS2}, v{V_X1}"]
            if p == e0 + 3:
                es = epi_self(ACC+8, 0); q0 = qe_rd(0)
                pend += epi_pair(ACC, 0, False) + [es[0], q0[0], es[1], q0[1]] + es[2:] + qe_rd(1)
            if p == EK: pend += epi_self(ACC+12, 3200)
            if p == EM1 + 3:
                for rt in range(2):
                    pend += [f"v_cndmask_b32 v{PO+2*rt+j}, v{SE[rt]+j}, v{SE[rt]+2+j}, {sr(S_HI,2)}" for j in range(2)]
                    if P64: pend += [('ds', f"ds_write_b64 v{V_P1}, {vr(PO+2*rt,2)} offset:{L_S+8*rt}", None)]
                if not P64: pend += [('ds', f"ds_write_b128 v{V_P1}, {vr(PO,4)} offset:{L_S}", None)]
            nv = nd = 0
            while pend:
                o = pend[0]
                if isinstance(o, tuple):
                    if nd or nv or p in DS: break
                    lg.ds(o[1], o[2]); nd += 1
                else:
                    if nv >= (2 if (p > EM1 and EFAST) else 1): break
                    A(o); nv += 1
                pend.pop(0)
            if p == EM0: early(0)
            if p == EM1: early(1)
        lx, l3, lend = f'a_xrows{ver}', f'a_w3{ver}', f'a_end{ver}'
        A(f"s_cmp_lg_u32 s{w}, 0")
        for o in pend + epi_pair(ACC+16, 3200, True):
            if isinstance(o, tuple): lg.ds(o[1])
            else: A(o)
        S0, S1, SM = ACC, ACC+4, ACC+8
        A(f"v_mov_b32 v{V_X3}, 0x{NEG:x}")
        for r in range(4): A(f"v_cndmask_b32 v{SM+r}, v{V_X3}, 0, {sr(S_MSK+16,2)}")
        lg.all(); A("s_barrier")
        H(hooks, 'stamp', A, 2)
        A(f"s_cbranch_scc1 {lx}")
        QK = MOP + 12
        lg = Lg(A)
        def rd_qk(kk):
            for q in range(2): lg.ds(f"ds_read_b64_tr_b16 {vr(QK+4*kk+2*q,2)}, v{V_TR} offset:{L_T + kk*256 + q*32}", ('qk', kk))
        E = MOP; M_, T_, L_, G_ = MOP+8, MOP+9, MOP+10, MOP+11
        PSR = [E, STG, STG+4, PO]
        for kk in range(6): rd_qk(kk)
        for n in range(3): lg.ds(f"ds_read_b128 {vr(PSR[n],4)}, v{V_LANE16} offset:{L_S + 1024*(n+1)}", ('ps', n))
        for kk in range(6):
            lg.need(('qk', kk))
            A(f"v_mfma_f32_16x16x32_bf16 {vr(SM,4)}, {vr(QK+4*kk,4)}, {vr(QK+4*kk,4)}, {vr(SM,4)}")
        for n in (3, 1, 2):
            lg.need(('ps', n % 3))
            for j in (0, 2): A(f"v_pk_add_f32 {vr(E+j,2)}, {vr(E+j,2)}, {vr(PSR[n]+j,2)}")
        H(hooks, 'stamp', A, 4)
        A(f"""v_max3_f32 v{M_}, v{E}, v{E+1}, v{E+2}
        v_max_f32 v{M_}, v{M_}, v{E+3}
        v_mov_b32_dpp v{SM}, v{SM+2} row_shr:8 row_mask:0xf bank_mask:0xc
        v_mov_b32_dpp v{SM+1}, v{SM+3} row_shr:8 row_mask:0xf bank_mask:0xc""")
        A(f"""v_max3_f32 v{M_}, v{M_}, v{SM}, v{SM+1}
        v_mul_f32 v{M_}, s{S_CSC}, v{M_}
        v_fma_f32 v{E}, v{E}, s{S_CSC}, -v{M_}
        v_fma_f32 v{E+1}, v{E+1}, s{S_CSC}, -v{M_}
        v_max_f32_dpp v{G_}, v{M_}, v{M_} row_ror:8 row_mask:0xf bank_mask:0xf
        v_mov_b32 v{T_}, v{G_}
        v_fma_f32 v{E+2}, v{E+2}, s{S_CSC}, -v{M_}
        v_fma_f32 v{E+3}, v{E+3}, s{S_CSC}, -v{M_}
        v_permlane16_swap_b32 v{G_}, v{T_}
        v_max_f32 v{G_}, v{G_}, v{T_}
        v_mov_b32 v{T_}, v{G_}
        v_fma_f32 v{E+4}, v{SM}, s{S_CSC}, -v{M_}
        v_fma_f32 v{E+5}, v{SM+1}, s{S_CSC}, -v{M_}
        v_permlane32_swap_b32 v{G_}, v{T_}
        v_max_f32 v{G_}, v{G_}, v{T_}
        v_sub_f32 v{G_}, v{M_}, v{G_}""")
        for j in range(6): A(f"v_exp_f32 v{E+j}, v{E+j}")
        A(f"""v_exp_f32 v{G_}, v{G_}
        v_pk_add_f32 {vr(M_,2)}, {vr(E,2)}, {vr(E+2,2)}
        v_pk_add_f32 {vr(M_,2)}, {vr(M_,2)}, {vr(E+4,2)}
        v_add_f32 v{L_}, v{M_}, v{T_}
        v_mul_f32 v{L_}, v{L_}, v{G_}
        v_mul_f32 v{E}, v{E}, v{G_}
        v_mul_f32 v{E+1}, v{E+1}, v{G_}
        v_add_f32_dpp v{L_}, v{L_}, v{L_} row_ror:8 row_mask:0xf bank_mask:0xf
        v_mov_b32 v{T_}, v{L_}
        v_mul_f32 v{E+2}, v{E+2}, v{G_}
        v_mul_f32 v{E+3}, v{E+3}, v{G_}
        v_permlane16_swap_b32 v{L_}, v{T_}
        v_add_f32 v{L_}, v{L_}, v{T_}
        v_mov_b32 v{T_}, v{L_}
        v_mul_f32 v{E+4}, v{E+4}, v{G_}
        v_mul_f32 v{E+5}, v{E+5}, v{G_}
        v_permlane32_swap_b32 v{L_}, v{T_}
        v_add_f32 v{L_}, v{L_}, v{T_}
        v_rcp_f32 v{L_}, v{L_}""")
        A(f"""v_pk_mul_f32 {vr(E,2)}, {vr(E,2)}, {vr(L_,2)} op_sel_hi:[1,0]
        v_pk_mul_f32 {vr(E+2,2)}, {vr(E+2,2)}, {vr(L_,2)} op_sel_hi:[1,0]
        v_cvt_pk_bf16_f32 v{E+16}, v{E}, v{E+1}
        v_cvt_pk_bf16_f32 v{E+17}, v{E+2}, v{E+3}
        v_and_or_b32 v{E+16}, v{E+16}, -2, s{S_TAG}""")
        A(bst(2, E+16, V_X2, S_C3, 0, LF))
        A(f"""v_pk_mul_f32 {vr(E+4,2)}, {vr(E+4,2)}, {vr(L_,2)} op_sel_hi:[1,0]
        v_cvt_pk_bf16_f32 v{E+18}, v{E+4}, v{E+5}
        v_and_or_b32 v{E+18}, v{E+18}, -2, s{S_TAG}""")
        A(bst(1, E+18, 0, S_C4, 0, LF))
        H(hooks, 'stamp', A, 3)
        A(f"s_branch {lend}")
        A(f"{l3}:")
        H(hooks, 'steplog', A)
        if KQW3:
            for m, sp in enumerate((S_C1, S_C2)):
                for i in range(12):
                    if i % 3 == 0: A(f"s_add_u32 m0, s{S_O1}, {m*12288 + i*1024 - 9216}\ns_add_u32 s{S_T}, s{sp}, {i*1024 - 9216}")
                    if not NOKQ: A(bdma(V_LANE16, S_T, (i % 3)*1024))
                A(f"s_add_u32 s{sp}, s{sp}, {SEG_QKV}")
        A(f"s_sleep {(7 if KQW3 else 12) if ASLEEP else 0}\ns_branch {lend}")
        A(f"{lx}:\ns_cmp_eq_u32 s{w}, 3\ns_cbranch_scc1 {l3}")
        lg = Lg(A)
        VK, VQ = ACC+12, ACC+13
        for kt, s_ in enumerate((S0, S1)):
            for r in range(4): A(f"v_cndmask_b32 v{s_+r}, v{V_X3}, 0, {sr(S_MSK+8*kt+2*r,2)}")
        A(f"v_subrev_u32 v{VK}, s{S_WO}, v{V_X1}\ns_mul_i32 s{S_T}, s{w}, 6144\nv_add_u32 v{VQ}, s{S_T}, v{VK}")
        QQ = [MOP, MOP+4, MOP+8]; KA = [STG, STG+8, STG+16]
        def rd_x(kk):
            lg.ds(f"ds_read_b128 {vr(QQ[kk%3],4)}, v{VQ} offset:{6144 + kk*1024}")
            for rt in range(2): lg.ds(f"ds_read_b128 {vr(KA[kk%3]+4*rt,4)}, v{VK} offset:{rt*6144 + kk*1024}")
            rd_qk(kk)
        for kk in range(3): rd_x(kk)
        for kk in range(6):
            lg.need(('qk', kk))
            b = vr(QQ[kk%3], 4)
            A(f"v_mfma_f32_16x16x32_bf16 {vr(S0,4)}, {vr(KA[kk%3],4)}, {b}, {vr(S0,4)}")
            A(f"v_mfma_f32_16x16x32_bf16 {vr(S1,4)}, {vr(KA[kk%3]+4,4)}, {b}, {vr(S1,4)}")
            A(f"v_mfma_f32_16x16x32_bf16 {vr(SM,4)}, {vr(QK+4*kk,4)}, {b}, {vr(SM,4)}")
            if kk + 3 < 6: rd_x(kk+3)
        vals = [S0+i for i in range(4)] + [S1+i for i in range(4)] + [SM+i for i in range(4)]
        A(f"v_max3_f32 v{M_}, v{vals[0]}, v{vals[1]}, v{vals[2]}")
        for j in range(3, 11, 2): A(f"v_max3_f32 v{M_}, v{M_}, v{vals[j]}, v{vals[j+1]}")
        A(f"v_max_f32 v{M_}, v{M_}, v{vals[11]}")
        xlane_max_g(A, M_, T_)
        A(f"v_mul_f32 v{M_}, s{S_CSC}, v{M_}")
        for v in vals: A(f"v_fma_f32 v{v}, v{v}, s{S_CSC}, -v{M_}")
        for v in vals: A(f"v_exp_f32 v{v}, v{v}")
        A(f"v_add_f32 v{L_}, v{vals[0]}, v{vals[1]}")
        for v in vals[2:]: A(f"v_add_f32 v{L_}, v{L_}, v{v}")
        xlane_sum_g(A, L_, T_)
        A(f"v_rcp_f32 v{L_}, v{L_}")
        for v in vals: A(f"v_mul_f32 v{v}, v{v}, v{L_}")
        for n in range(6): A(f"v_cvt_pk_bf16_f32 v{E+n}, v{vals[2*n]}, v{vals[2*n+1]}")
        A(f"""s_bfe_u32 s{S_T}, s{S_STEP}, 0x10002
        s_and_b32 s{S_T+1}, s{S_STEP}, 3
        s_lshl_b32 s{S_T+1}, s{S_T+1}, 15
        s_add_u32 s{S_T+2}, s{S_T+1}, s{S_C6}
        s_add_u32 s{S_T+1}, s{S_T+1}, s{S_C5}
        v_and_or_b32 v{E}, v{E}, -2, s{S_T}
        v_and_or_b32 v{E+4}, v{E+4}, -2, s{S_T}""")
        A(bst(4, E, V_LANE16, S_T+1, 0, LF))
        A("s_mov_b32 exec_lo, 0")
        A(bst(2, E+4, V_X2, S_T+2, 0, LF))
        A("s_mov_b32 exec_lo, -1")
        A(f"{lend}:")
        H(hooks, 'stamp', A, 6)
        if 'wait_in' in hooks:
            lb = A.newlabel('kq')
            A(f"s_cmp_eq_u64 {sr(S_EVEN,2)}, 0\ns_cbranch_scc1 {lb}")
            H(hooks, 'wait_in', A, 'block')
            if KQEND: A(f"{lb}:")
            for x in bulk_pieces(): A(x)
            if not KQEND: A(f"{lb}:")
        next_step(A)
        A(f"""s_add_u32 s{S_O1}, s{S_O1}, s{S_O3}
        s_sub_u32 s{S_O3}, 0, s{S_O3}
        v_add_u32 v{V_X1}, s{S_O3}, v{V_X1}
        s_cmp_lt_u32 s{S_STEP}, {NSEG}
        s_cbranch_scc1 a_loop{ver}
        s_branch a_fin""")
    A("a_fin:")
    H(hooks, 'final', A)
    A(f"v_lshrrev_b32 v0, 4, v{V_LANE16}\ns_branch {hooks['next_ab']}")

SEQ_BV = [(kp, t) for kp in range(3) for t in range(3)] + [(kp, 2) for kp in range(3, 10)] + [(kp, t) for kp in range(3, 10) for t in (0, 1)]
SEQ_BO = [(pr, kk) for kk in (1, 4) for pr in range(5)] + [(pr, kk) for kk in (0, 2, 3, 5) for pr in (0, 1)] + [(pr, kk) for pr in (2, 3, 4) for kk in (0, 2, 3, 5)]
def posB_v(kp, t): return SEQ_BV.index((kp, t))
def posB_o(pr, kk): return 30 + SEQ_BO.index((pr, kk))

def role_B(A, exitlab, s_dbg, hooks, slow_too=True):
    w = S_WAVE
    set_lpos(LPOS_B)
    common_init(A)
    t0, t1, t2 = MOP, MOP+1, MOP+2
    A(f"""v_lshrrev_b32 v{t0}, 4, v0
    v_and_b32 v{t1}, 1, v{t0}
    v_mul_u32_u24 v{V_TW}, 1568, v{t1}
    v_and_b32 v{t1}, 15, v0
    v_lshl_add_u32 v{V_TW}, v{t1}, 3, v{V_TW}
    v_lshrrev_b32 v{t1}, 5, v0
    v_lshl_add_u32 v{V_X1}, v{t1}, 2, v{V_TW}
    v_lshl_add_u32 v{V_TW}, v{t1}, 7, v{V_TW}
    s_and_b32 s{S_T}, s{w}, 1
    s_mul_i32 s{S_T+1}, s{w}, 3
    s_add_u32 s{S_T+2}, s{S_T+1}, s{S_T}
    s_lshl_b32 s{S_T+2}, s{S_T+2}, 7
    v_add_u32 v{V_TW}, s{S_T+2}, v{V_TW}
    s_lshl_b32 s{S_T+3}, s{S_T}, 1
    s_sub_u32 s{S_T+3}, s{S_T+1}, s{S_T+3}
    s_add_u32 s{S_T+3}, s{S_T+3}, 2
    s_lshl_b32 s{S_T+3}, s{S_T+3}, 7
    v_add_u32 v{V_X1}, s{S_T+3}, v{V_X1}
    v_and_b32 v{t1}, 1, v0
    v_mul_u32_u24 v{V_TR}, 1568, v{t1}
    v_bfe_u32 v{t1}, v0, 2, 2
    v_lshl_add_u32 v{V_TR}, v{t1}, 3, v{V_TR}
    v_lshl_add_u32 v{V_TR}, v{t0}, 6, v{V_TR}
    v_and_b32 v{t1}, 15, v0
    v_lshlrev_b32 v{V_X2}, 4, v{t1}
    v_and_b32 v{t1}, 1, v{t0}
    v_lshl_add_u32 v{V_X2}, v{t1}, 3, v{V_X2}
    v_lshrrev_b32 v{t1}, 5, v0
    v_lshl_add_u32 v{V_X2}, v{t1}, 10, v{V_X2}""")
    A(f"""s_lshr_b32 s{S_T}, s{S_HL}, 2
    s_mul_i32 s{S_T}, s{S_T}, 40960
    s_mul_i32 s{S_T+1}, s{w}, 10240
    s_add_u32 s{S_T}, s{S_T}, s{S_T+1}
    s_and_b32 s{S_T+1}, s{S_HL}, 3
    s_lshl_b32 s{S_T+1}, s{S_T+1}, 8
    s_add_u32 s{S_T}, s{S_T}, s{S_T+1}
    s_add_u32 s{S_T}, s{S_T}, s{S_CUR}
    s_add_u32 s{S_C1}, s{S_T}, {Y_OFF}
    s_add_u32 s{S_C2}, s{S_C1}, 4096
    s_add_u32 s{S_C3}, s{S_C1}, 8192
    s_lshl_b32 s{S_C4}, s{S_GRP}, 2
    s_add_u32 s{S_C4}, s{S_C4}, s{w}
    s_lshl_b32 s{S_C4}, s{S_C4}, 15
    s_lshl_b32 s{S_T}, s{S_HL}, 10
    s_add_u32 s{S_C4}, s{S_C4}, s{S_T}
    s_add_u32 s{S_C4}, s{S_C4}, {2*GSLOT}""")
    YSO = [S_C1, S_C2, S_C3]
    A(f"""s_load_dwordx4 s[{S_A}:{S_A+3}], s[0:1], {KA_WV}
    s_mul_i32 s{S_T}, s{S_H}, 384
    s_mul_i32 s{S_T+1}, s{S_H}, 245760
    s_mul_i32 s{S_T+2}, s{w}, 320
    s_add_u32 s{S_T+1}, s{S_T+1}, s{S_T+2}
    s_waitcnt lgkmcnt(0)""")
    add64(A, S_A, S_A, f"s{S_T}"); add64(A, S_B, S_B, f"s{S_T+1}")
    load_heads(A, [S_A], lambda ww: [(0, 3*ww+(ww&1)), (0, 3*ww+(ww&1)+1), (0, 3*ww+2-2*(ww&1))], posB_v)
    A(f"s_mul_i32 s{S_T+4}, s{w}, 20480")
    d_, t_ = MOP+2, MOP+3
    A(f"""v_bfe_u32 v{d_}, v0, 2, 1
    v_lshrrev_b32 v{t_}, 4, v0
    v_lshl_add_u32 v{d_}, v{t_}, 2, v{d_}
    v_mul_u32_u24 v{d_}, 320, v{d_}
    v_bfe_u32 v{t_}, v0, 3, 1
    v_lshl_add_u32 v{d_}, v{t_}, 5, v{d_}
    v_and_b32 v{t_}, 3, v0
    v_lshl_add_u32 v{d_}, v{t_}, 3, v{d_}
    v_add_u32 v{d_}, s{S_T+4}, v{d_}""")
    def reads(A, r, off):
        for pr in range(5):
            read_operand(A, posB_o(pr, r), MOP+2, off + pr*64, 320, hrows=16)
    load_w_rows(A, S_B, 1280, 20, 192, 32, 2, S_T+4, 0, S_T, MOP, reads)
    A("s_barrier")
    H(hooks, 'rts', A, 2)
    waitall(A, s_dbg, exitlab, V_LANE16, s_slow=S_SLOW, s_pol=S_POL)
    A(f"s_add_u32 s{S_C4}, s{S_C4}, s{S_POL}")
    H(hooks, 'b_init', A)
    if slow_too: A(f"s_cmp_lg_u32 s{S_SLOW}, 0\ns_cbranch_scc1 b_loop_slow")
    for ver in (['', '_slow'] if slow_too else ['']):
        LF = 'sc1' if ver else ''
        A(f"b_loop{ver}:")
        lg = Lg(A)
        for i in range(4): stg_load(lg, i)
        for i in range(24): A(f"v_mov_b32 v{ACC+i}, 0")
        H(hooks, 'stamp', A, 0)
        if BSLEEP: A(f"s_sleep {BSLEEP}")
        lg.all()
        dsq = ingest_mem(A, lg, exitlab) or []
        late = []
        H(hooks, 'stamp', A, 1)
        DS = {}
        for g, x in zip(WGAPSB, dsq): DS[g] = x
        for n, i in enumerate(range(4, 10)):
            for h in range(2):
                DS[SGAPSB[2*n+h]] = (f"ds_read_b128 {vr(STG+8*(i%4)+4*h,4)}, v{V_WS} offset:{i*2048+1024*h}", ('w', i) if h else None)
        YA = [ACC+12, ACC+16, ACC+20, MOP+8, ACC+8]
        VOP = {1: MOP, 4: MOP+4, 0: MOP+12, 2: MOP+16, 3: MOP+20, 5: MOP+24}
        def vrd(kk): return [('ds', f"ds_read_b64_tr_b16 {vr(VOP[kk]+2*q,2)}, v{V_TR} offset:{L_T + kk*256 + q*32}", ('v', kk)) for q in range(2)]
        def yepi(pr):
            a = YA[pr]
            return [f"v_cvt_pk_bf16_f32 v{a}, v{a}, v{a+1}", f"v_cvt_pk_bf16_f32 v{a+1}, v{a+2}, v{a+3}",
                    f"v_and_or_b32 v{a}, v{a}, -2, s{S_TAG}", ('vm', bst(2, a, V_X2, YSO[pr//2], (pr % 2)*2048, LF))]
        c = ACC + 8; a, b = ACC, ACC + 4
        pend = []
        def drain(p, maxv=1):
            nv = nd = 0
            while pend:
                o = pend[0]
                if isinstance(o, tuple):
                    if nd or nv or p in DS: break
                    if o[0] == 'ds': lg.ds(o[1], o[2])
                    else: A(o[1])
                    nd += 1
                else:
                    if nv >= maxv: break
                    A(o); nv += 1
                pend.pop(0)
        for p in range(60):
            if p == BB1:
                lg.need(('mw', 2)); A("s_barrier")
                for n, x in enumerate(read_mem_frags(A, lg, BNOW)):
                    assert BB1 + n not in DS
                    DS[BB1+n] = x
            if p == BX1:
                lg.need('ts'); A("s_barrier")
                r = vrd(1) + vrd(4)
                for o in r[:2]: lg.ds(o[1], o[2])
                pend[:0] = r[2:]
            if p == BX2:
                while pend:
                    o = pend.pop(0)
                    if isinstance(o, tuple): lg.ds(o[1], o[2])
                    else: A(o)
                lg.need('tp'); A("s_barrier")
                H(hooks, 'stamp', A, 2)
                for kk in (0, 2, 3, 5):
                    for o in vrd(kk): lg.ds(o[1], o[2])
            kind, x = wloc(p)
            if kind == 'lds': lg.need(('w', x))
            if p < 30:
                kp, t = SEQ_BV[p]
                if kp >= 3: lg.need(('m', kp))
                smf(A, ACC+4*t, MOP+4*kp, wreg(p))
            else:
                pr, kk = SEQ_BO[p-30]
                lg.need(('v', kk))
                smf(A, YA[pr], VOP[kk], wreg(p))
            if p in DS: lg.ds(*DS[p])
            if p == 14: pend += [f"v_mov_b32 v{MOP+8+i}, 0" for i in range(4)]
            if p == 18:
                pend += [f"v_permlane32_swap_b32 v{c}, v{c+2}", f"v_permlane32_swap_b32 v{c+1}, v{c+3}", f"v_add_f32 v{c}, v{c}, v{c+2}",
                         f"v_add_f32 v{c+1}, v{c+1}, v{c+3}", f"v_cvt_pk_bf16_f32 v{V_X3}, v{c}, v{c+1}", ('ds', f"ds_write_b32 v{V_X1}, v{V_X3} offset:{L_T}", 'ts')]
                pend += [f"v_mov_b32 v{c+i}, 0" for i in range(4)]
            if p == 31:
                pend += [f"v_permlane32_swap_b32 v{a+r}, v{b+r}" for r in range(4)] + [f"v_add_f32 v{a+r}, v{a+r}, v{b+r}" for r in range(4)]
                pend += [f"v_cvt_pk_bf16_f32 v{b}, v{a}, v{a+1}", f"v_cvt_pk_bf16_f32 v{b+1}, v{a+2}, v{a+3}", ('ds', f"ds_write_b64 v{V_TW}, {vr(b,2)} offset:{L_T}", 'tp')]
            if p == 49: pend += yepi(0) + yepi(1)
            if p == 54: pend += yepi(2)
            if p == 58: pend += yepi(3)
            drain(p, BVF if 31 <= p < 40 else (2 if p >= 49 and BYF else 1))
        for o in pend + yepi(4): A(o[1] if isinstance(o, tuple) else o)
        H(hooks, 'stamp', A, 3)
        if BSCRUB:
            l = A.newlabel('bs')
            A(f"""s_add_u32 s{S_T}, s{S_STEP}, 6
            s_bfe_u32 s{S_T}, s{S_T}, 0x10002
            v_mov_b32 v{MOP+28}, s{S_T}
            v_mov_b32 v{MOP+30}, s{S_T}""")
            if BSD: A(f"s_sleep {BSD}")
            A(bst(4, MOP+28, V_LANE16, S_C4, 0, 'sc1'))
            A(f"s_cmp_ge_u32 s{S_HL}, 2\ns_cbranch_scc1 {l}\ns_add_u32 s{S_T}, s{S_C4}, 16384")
            A(bst(4, MOP+28, V_LANE16, S_T, 0, 'sc1'))
            A(f"{l}:\ns_add_u32 s{S_C4}, s{S_C4}, {GSLOT}\ns_and_b32 s{S_C4}, s{S_C4}, {4*GSLOT-1}")
        if BFLAG: H(hooks, 'b_flag', A)
        next_step(A)
        A(f"""s_cmp_lt_u32 s{S_STEP}, {NSEG}
        s_cbranch_scc1 b_loop{ver}
        s_branch b_fin""")
    A("b_fin:")
    H(hooks, 'final', A)
    A(f"s_branch {hooks['next_ab']}")

GPRE = int(os.environ.get('GPRE', '2'))
GGAP = int(os.environ.get('GGAP', '4'))
PPIPE = int(os.environ.get('PPIPE', '2'))
GMODE = os.environ.get('GMODE', 'load')
QREJ = int(os.environ.get('QREJ', '1'))
GLOOPGAP = int(os.environ.get('GLOOPGAP', '0'))

def role_R(A, exitlab, s_dbg, hooks, slow_too=True):
    w = S_WAVE
    LU, LY = 0, 98304
    VL, VIDX, VT, VG, VM, VTM, VU, VY = 1, V_IDX, 2, 3, 4, 5, 6, 7
    A(f"""v_lshlrev_b32 v{VL}, 4, v0
    s_mov_b32 s{S_HI}, 0xff00ff00
    s_mov_b32 s{S_HI+1}, 0xff00ff00
    v_mov_b32 v{VIDX}, 0x4444
    v_mov_b32 v{VT}, 0xeeee
    v_cndmask_b32 v{VIDX}, v{VIDX}, v{VT}, {sr(S_HI,2)}
    s_mov_b32 s{S_SEL0}, 0x00003f80
    s_mov_b32 s{S_SEL1}, 0x3f800000
    s_lshl_b32 s{S_CUR}, s{S_GRP}, 18
    s_add_u32 s{S_CUR}, s{S_CUR}, {LBASE}
    s_mov_b32 s{S_TAG}, 0
    s_mov_b32 s{S_STEP}, 0
    s_mov_b32 s{S_EVEN}, 0x55555555
    s_mov_b32 s{S_EVEN+1}, 0x55555555
    s_lshl_b32 s{S_T}, s{S_HL}, 2
    s_add_u32 s{S_T}, s{S_T}, s{w}
    s_mul_i32 s{S_T}, s{S_T}, 6144
    s_add_u32 s{S_T}, s{S_T}, s{S_CUR}
    s_add_u32 s{S_T}, s{S_T}, {P_OFF}
    s_add_u32 s{S_T+1}, s{S_T}, 3072""")
    for i in range(4): A(f"v_mov_b32 v{20+i}, -1")
    for i in range(6): A(bst(4, 20, VL, S_T + i//3, (i % 3)*1024, 'sc1'))
    A(f"""s_cmp_ge_u32 s{w}, 2
    s_cbranch_scc1 r_x""")
    S_UGc, S_UDc, S_ULc, S_LATE = S_MSK+8, S_MSK+9, S_MSK+10, S_MSK+12
    A(f"""s_mul_i32 s{S_UGc}, s{S_GRP}, {8*40960}
    s_lshl_b32 s{S_T+1}, s{S_HL}, 1
    s_add_u32 s{S_T+1}, s{S_T+1}, s{w}
    s_lshl_b32 s{S_T+1}, s{S_T+1}, 11
    s_add_u32 s{S_UGc}, s{S_UGc}, s{S_T+1}
    s_add_u32 s{S_UGc}, s{S_UGc}, {WS_UF}
    s_lshl_b32 s{S_ULc}, s{w}, 14
    s_mov_b32 s{S_UDc}, 0""")
    S_GS, S_GR = S_MSK, S_MSK+4
    S_YC, S_YC2, S_PC, S_MO, S_UB, S_TAGN, S_GD = S_C1, S_C2, S_C3, S_C4, S_C5, S_C6, S_O1
    A(f"""s_load_dwordx2 {sr(S_A,2)}, s[0:1], {KA_MEM0}
    s_lshl_b32 s{S_T}, s{S_HL}, 1
    s_add_u32 s{S_T}, s{S_T}, s{w}
    s_lshr_b32 s{S_T+1}, s{S_T}, 4
    s_lshl_b32 s{S_T+1}, s{S_T+1}, 14
    s_and_b32 s{S_T+2}, s{S_T}, 15
    s_lshl_b32 s{S_T+2}, s{S_T+2}, 9
    s_add_u32 s{S_T+1}, s{S_T+1}, s{S_T+2}""")
    for k in range(NG):
        A(f"""s_xor_b32 s{S_T+2}, s{S_GRP}, {k}
        s_lshl_b32 s{S_T+2}, s{S_T+2}, 17
        s_add_u32 s{S_GS+k}, s{S_T+2}, s{S_T+1}""")
    A(f"""s_lshl_b32 s{S_T+1}, s{S_T}, 11
    s_add_u32 s{S_YC}, s{S_T+1}, s{S_CUR}
    s_add_u32 s{S_YC}, s{S_YC}, {Y_OFF}
    s_add_u32 s{S_YC2}, s{S_YC}, 40960
    s_add_u32 s{S_PC}, s{S_CUR}, {P_OFF}
    s_add_u32 s{S_O2}, s{S_PC}, 4096
    s_lshl_b32 s{S_MO}, s{S_T}, 9
    s_add_u32 s{S_MO}, s{S_MO}, s{S_CUR}
    s_add_u32 s{S_MO}, s{S_MO}, {M_OFF}
    s_mov_b32 s{S_UB}, 0
    s_mov_b32 s{S_GD}, {GSLOT}
    v_lshlrev_b32 v{VG}, 3, v0
    s_lshl_b32 s{S_T+1}, s{w}, 11
    v_add_u32 v{VU}, s{S_T+1}, v{VL}
    s_lshl_b32 s{S_T+1}, s{w}, 12
    s_add_u32 s{S_T+1}, s{S_T+1}, {LY}
    v_add_u32 v{VY}, s{S_T+1}, v{VL}""")
    t = 16
    A(f"""v_bfe_u32 v{VM}, v0, 5, 1
    v_bfe_u32 v{t}, v0, 3, 1
    v_lshl_add_u32 v{VM}, v{VM}, 1, v{t}
    v_bfe_u32 v{t}, v0, 4, 1
    v_lshl_add_u32 v{VM}, v{VM}, 1, v{t}
    v_and_b32 v{t}, 1, v0
    v_lshl_add_u32 v{VM}, v{VM}, 1, v{t}
    v_bfe_u32 v{t}, v0, 1, 2
    v_lshl_add_u32 v{VM}, v{VM}, 3, v{t}
    v_lshlrev_b32 v{VM}, 2, v{VM}
    v_cmp_eq_u32 vcc, 0, v{t}
    v_cndmask_b32 v{VTM}, 0, 1, vcc""")
    A(f"""v_bfe_u32 v{t}, v0, 1, 3
    v_mul_u32_u24 v{t}, 1280, v{t}
    v_lshrrev_b32 v{t+1}, 4, v0
    v_lshl_add_u32 v{t}, v{t+1}, 4, v{t}
    v_and_b32 v{t+1}, 1, v0
    v_lshl_add_u32 v{t}, v{t+1}, 3, v{t}
    s_lshl_b32 s{S_T}, s{S_T}, 6
    v_add_u32 v{t}, s{S_T}, v{t}
    s_waitcnt lgkmcnt(0)
    global_load_dwordx2 {vr(t+2,2)}, v{t}, {sr(S_A,2)}
    v_cndmask_b32 v{t+1}, -1, -2, {sr(S_EVEN,2)}
    v_mov_b32 v{t+4}, -1
    v_mov_b32 v{t+5}, -1
    s_waitcnt vmcnt(0)
    v_and_b32 v{t+2}, v{t+1}, v{t+2}""")
    A(bst(2, t+2, VG, S_MO, 0, 'sc1'))
    VGR = 240
    for r in range(GREP): A(f"v_add_u32 v{VGR+r}, {r*GBLK}, v{VG}")
    for sl in range(8):
        A(f"s_add_u32 s{S_T}, s{S_GS}, {(sl >> 1)*GSLOT + (sl & 1)*8192}")
        for r in range(GREP): A(bst(2, t+4, VGR+r, S_T, 0, 'sc1'))
    checkin(A, s_dbg)
    H(hooks, 'r_pre', A)
    waitall(A, s_dbg, exitlab, VL, s_slow=S_SLOW, s_pol=S_POL)
    for k in range(NG): A(f"s_add_u32 s{S_GS+k}, s{S_GS+k}, s{S_POL}")
    H(hooks, 'wait_u', A, 0)
    if slow_too: A(f"s_cmp_lg_u32 s{S_SLOW}, 0\ns_cbranch_scc1 r_loop_slow")
    UR = lambda t_, hh: 32 + 32*t_ + 4*hh
    YR = lambda t_, q: 96 + 8*t_ + 4*q
    PS = lambda st, f: 112 + 20*st + 4*f
    RA = 16
    GO, GF = 24, 26
    GS = lambda st, k: 172 + 8*st + 2*k
    def upark():
        return [f"ds_write_b128 v{VU}, {vr(UR(t_,hh),4)} offset:{hh*4096+t_*1024}" for hh in range(8) for t_ in range(2)] + [f"v_xor_b32 v{VU}, 32768, v{VU}"]
    def ypark():
        for t_ in range(2):
            for q in range(2): A(f"ds_write_b128 v{VY}, {vr(YR(t_,q),4)} offset:{t_*2048+q*1024}")
        A(f"v_xor_b32 v{VY}, 8192, v{VY}")
    for ver in (['', '_slow'] if slow_too else ['']):
        LF = 'sc1' if ver else ''
        A(f"r_loop{ver}:")
        H(hooks, 'stamp', A, 0)
        lg = Lg(A)
        A(f"""s_bfe_u32 s{S_TAGM}, s{S_STEP}, 0x10002
        s_xor_b32 s{S_TAGN}, s{S_TAG}, 1
        s_xor_b32 s{S_T}, s{S_TAGM}, 1
        v_mov_b32 v{GF}, s{S_T}""")
        if XLEAD: A(f"s_sleep {XLEAD}")
        def scrub():
            for r in range(GREP if (SCRUB and not BSCRUB) else 0): A(bst(2, GF, VGR+r, S_GS, 0, 'sc1'))
        H(hooks, 'cached_u', A)
        if SCRPOS == 0: scrub()
        for hh in range(8):
            if SCRPOS == 2 and hh == 4: scrub()
            for t_ in range(2):
                if not NOU: A(bld(4, UR(t_, hh), VL, S_UGc, t_*1024))
            A(f"s_add_u32 s{S_UGc}, s{S_UGc}, {40960 if hh < 7 else SEG_U - 7*40960}")
        H(hooks, 'peek_u', A)
        if SCRPOS == 1: scrub()
        A("s_waitcnt vmcnt(0)"); H(hooks, 'stamp', A, 6)
        if UPARK == 0:
            for x in upark(): A(x)
        else:
            l = A.newlabel('r_up')
            A(f"s_cmp_lt_u32 s{S_STEP}, {NSEG-1}\ns_cbranch_scc1 {l}")
            for x in upark(): A(x)
            A(f"{l}:")
        if RSLEEP: A(f"s_sleep {RSLEEP}")
        shadow = None
        yl = lambda b: [bld(4, b+8*t_+4*q, VL, [S_YC, S_YC2][q], t_*1024, 'sc1') for t_ in range(2) for q in range(2)]
        yc = lambda b: [b+2*i for i in range(8)]
        if YQ == 9:
            pass
        elif not YPIPE:
            poll(A, 'ry', yl(YR(0, 0)), yc(YR(0, 0)), S_TAG, exitlab, shadow)
        else:
            Y0, Y1 = 220, YR(0, 0)
            lp, n0, jj = A.newlabel('py'), A.newlabel('py'), A.newlabel('py')
            for x in yl(Y0): A(x)
            A(f"s_sleep {YPIPE}\n{lp}:")
            for x in yl(Y1): A(x)
            tick(A, exitlab)
            A("s_waitcnt vmcnt(4)")
            check(A, yc(Y0), S_TAG, n0)
            A(f"s_branch {jj}\n{n0}:")
            for x in yl(Y0): A(x)
            A("s_waitcnt vmcnt(4)")
            check(A, yc(Y1), S_TAG, lp)
            A(f"{jj}:")
        H(hooks, 'stamp', A, 1)
        def pl(st):
            for f in range(4): A(bld(4, PS(st, f), VL, S_PC, f*1024, 'sc1'))
            A(bld(4, PS(st, 4), VL, S_O2, 0, 'sc1'))
        A(f"s_cmp_ge_u32 s{S_STEP}, {NSEG-1}\ns_cbranch_scc1 r_last")
        for st in range(PPIPE-1): pl(st)
        lg.all()
        lp, lok = A.newlabel('rp'), A.newlabel('rok')
        nx = [A.newlabel('rn') for _ in range(PPIPE)]
        for i in range(8): A(f"v_mov_b32 v{RA+i}, 0")
        A(f"{lp}:")
        for st in range(PPIPE):
            pl((st+PPIPE-1) % PPIPE)
            if st == 0: tick(A, exitlab)
            A(f"s_waitcnt vmcnt({5*(PPIPE-1)})")
            ck = [PS(st, f)+j for f in range(4) for j in (0, 2)] + [PS(st, 4)+j for j in ((1, 3) if QREJ else range(4))]
            if QREJ: check(A, [PS(st, 4), PS(st, 4)+2], S_TAG, nx[st] if st < PPIPE-1 else lp)
            ops = [f"v_bitop3_b32 v{V_X3}, v{ck[0]}, v{ck[1]}, s{S_TAG} bitop3:0x7e"]
            ops += [f"v_bitop3_b32 v{V_X3}, v{x}, v{V_X3}, s{S_TAG} bitop3:0xde" for x in ck[2:]]
            ops += [f"v_and_b32 v{V_X3}, 1, v{V_X3}", f"v_cmp_ne_u32 vcc, 0, v{V_X3}"]
            for f in range(5):
                for t_ in range(2):
                    smf(A, RA+4*t_, PS(st, f), UR(t_, 2*f) if f < 4 else YR(t_, 0))
                    A(ops.pop(0))
            for o in ops: A(o)
            A(f"s_nop {4 if QREJ else 2}\ns_cbranch_vccz {lok}")
            for i in range(8): A(f"v_mov_b32 v{RA+i}, 0")
            if st < PPIPE-1: A(f"{nx[st]}:")
            else: A(f"s_branch {lp}")
        A(f"{lok}:")
        H(hooks, 'stamp', A, 2)
        a, b = RA, RA+4
        A(f"s_mov_b64 vcc, {sr(S_EVEN,2)}")
        for r in range(4): A(f"v_permlane32_swap_b32 v{a+r}, v{b+r}")
        A(f"""v_pk_add_f32 {vr(a,2)}, {vr(a,2)}, {vr(b,2)}
        v_pk_add_f32 {vr(a+2,2)}, {vr(a+2,2)}, {vr(b+2,2)}
        v_cvt_pk_bf16_f32 v{b}, v{a}, v{a+1}
        v_cvt_pk_bf16_f32 v{b+1}, v{a+2}, v{a+3}
        v_cndmask_b32_dpp v{GO}, v{b+1}, v{b}, vcc quad_perm:[0,0,2,2] row_mask:0xf bank_mask:0xf
        s_not_b64 vcc, vcc
        v_and_or_b32 v{GO}, v{GO}, -2, s{S_TAGM}
        v_cndmask_b32_dpp v{GO+1}, v{b}, v{b+1}, vcc quad_perm:[1,1,3,3] row_mask:0xf bank_mask:0xf""")
        for r in range(GREP): A(bst(2, GO, VGR+r, S_GS, 0, 'sc1'))
        H(hooks, 'stamp', A, 3)
        ypark()
        A(f"""v_lshlrev_b32 v{GF}, 16, v{GO}
        v_and_b32 v{GF+1}, 0xffff0000, v{GO}
        v_lshlrev_b32 v{GF+2}, 16, v{GO+1}
        v_and_b32 v{GF+3}, 0xffff0000, v{GO+1}""")
        fill = upark() if UPARK else []
        def gap(n):
            k = min(len(fill), n*UPARK)
            for _ in range(k): A(fill.pop(0))
            if n and k < n*max(UPARK, 1): A(f"s_sleep {n - k//max(UPARK, 1)}")
        gap(GDELAY)
        def gl(r):
            for k in range(1, NG): A(bld(2, GS(r, k), VGR+r, S_GS+k, 0, 'sc1'))
        def gc(r, lab):
            A(f"""v_bitop3_b32 v{V_X3}, v{GS(r,1)}, v{GS(r,2)}, s{S_TAGM} bitop3:0x7e
            v_bitop3_b32 v{V_X3}, v{GS(r,3)}, v{V_X3}, s{S_TAGM} bitop3:0xde
            v_and_b32 v{V_X3}, 1, v{V_X3}
            v_cmp_ne_u32 vcc, 0, v{V_X3}
            s_cbranch_vccz {lab}""")
        lp, lj = A.newlabel('rg'), A.newlabel('rj')
        oks = [A.newlabel('rgo') for _ in range(GREP)]
        pre = min(GPRE, GREP)
        for r in range(pre):
            gl(r)
            if r < pre-1: gap(GGAP)
        for x in fill: A(x)
        for r in range(GREP):
            A(f"s_waitcnt vmcnt({(NG-1)*(min(r+pre, GREP)-1-r)})")
            gc(r, oks[r])
            if r + pre < GREP: gl(r+pre)
        A(f"{lp}:")
        gl(0); tick(A, exitlab)
        A("s_waitcnt vmcnt(0)")
        gc(0, oks[0])
        A(f"s_branch {lp}")
        for st in range(GREP):
            A(f"{oks[st]}:")
            for k in range(1, NG):
                for j in range(4):
                    A(f"v_dot2_f32_bf16 v{GF+j}, v{GS(st,k)+j//2}, s{[S_SEL0, S_SEL1][j % 2]}, v{GF+j}")
            A(f"""v_cvt_pk_bf16_f32 v{GO}, v{GF}, v{GF+2}
            v_cvt_pk_bf16_f32 v{GO+1}, v{GF+1}, v{GF+3}
            v_bfi_b32 v{GO}, v{VTM}, s{S_TAGN}, v{GO}
            v_bfi_b32 v{GO+1}, v{VTM}, s{S_TAGN}, v{GO+1}""")
            A(bst(1, GO, VM, S_MO, 0, LF)); A(bst(1, GO+1, VM, S_MO, 16, LF))
            if st < GREP-1: A(f"s_branch {lj}")
        A(f"{lj}:")
        H(hooks, 'stamp', A, 4)
        for k in range(NG): A(f"s_add_u32 s{S_GS+k}, s{S_GS+k}, {GSLOT}\ns_and_b32 s{S_GS+k}, s{S_GS+k}, {4*GSLOT-1}")
        next_step(A)
        A(f"s_waitcnt lgkmcnt(0)\ns_barrier")
        H(hooks, 'stamp', A, 5)
        A(f"s_branch r_loop{ver}")
    A("r_last:\ns_waitcnt vmcnt(0)")
    ypark()
    A("s_waitcnt lgkmcnt(0)\ns_barrier")
    H(hooks, 'final', A)
    A(f"s_branch {hooks['next_r']}")
    A("r_x:")
    S_UG, S_UD, S_PX, S_OP, S_UR = S_C1, S_C2, S_C3, S_C4, S_C5
    A(f"""s_sub_u32 s{S_T}, s{w}, 2
    s_lshl_b32 s{S_T+1}, s{S_GRP}, 1
    s_add_u32 s{S_T+1}, s{S_T+1}, s{S_T}
    s_mul_i32 s{S_UG}, s{S_T+1}, {4*40960}
    s_lshl_b32 s{S_T+1}, s{S_HL}, 12
    s_add_u32 s{S_UG}, s{S_UG}, s{S_T+1}
    s_add_u32 s{S_UG}, s{S_UG}, {WS_UF}
    s_lshl_b32 s{S_O1}, s{S_T}, 14
    s_mov_b32 s{S_UD}, 0
    s_mov_b32 s{S_UR}, 0
    s_mul_i32 s{S_PX}, s{S_T}, 10240
    s_add_u32 s{S_PX}, s{S_PX}, s{S_CUR}
    s_add_u32 s{S_PX}, s{S_PX}, {PX_OFF}
    s_mul_i32 s{S_OP}, s{S_T}, {20*4096}
    s_lshl_b32 s{S_T+1}, s{S_HL}, 13
    s_add_u32 s{S_OP}, s{S_OP}, s{S_T+1}
    s_lshl_b32 s{S_T+1}, s{S_GRP}, 10
    s_add_u32 s{S_OP}, s{S_OP}, s{S_T+1}
    s_add_u32 s{S_OP}, s{S_OP}, {WS_OP}
    v_add_u32 v{VY}, {LY}, v{VL}""")
    checkin(A, s_dbg)
    H(hooks, 'r_pre', A)
    waitall(A, s_dbg, exitlab, VL, s_pol=S_POL)
    H(hooks, 'x_init', A)
    A("s_barrier")
    PXR, ZR, XA = 16, 64, 96
    A("rx_loop:")
    H(hooks, 'stamp', A, 0)
    A(f"""s_bfe_u32 s{S_TAG}, s{S_STEP}, 0x10002
    s_and_b32 s{S_T+2}, s{S_STEP}, 3
    s_lshl_b32 s{S_T+2}, s{S_T+2}, 15
    s_add_u32 s{S_T+2}, s{S_T+2}, s{S_PX}
    s_add_u32 s{S_T+3}, s{S_T+2}, 4096
    s_add_u32 s{S_T+4}, s{S_T+2}, 8192
    v_add_u32 v{VT}, s{S_UR}, v{VL}""")
    pxl = [bld(4, PXR+4*f, VL, S_T+2+f//4, (f % 4)*1024, 'sc1') for f in range(10)]
    pxc = [PXR+4*f for f in range(10)] + [PXR+34, PXR+38]
    def op_store():
        for t_ in range(2):
            A(bst(4, XA+16+4*t_, VL, S_OP, 0, 'sc1'))
            A(f"s_add_u32 s{S_OP}, s{S_OP}, {4096 if t_ < 1 else SEG_OP - 4096}")
    S_DONE = S_C2
    if XDEFER:
        poll(A, 'px', pxl, pxc, S_TAG, exitlab)
        l = A.newlabel('xd')
        if BFLAG: A(f"s_cmp_lt_u32 s{S_STEP}, {BFLAG}\ns_cbranch_scc1 {l}f")
        H(hooks, 'x_flag2', A, S_DONE)
        A(f"{l}f:\ns_sub_u32 s{S_T}, s{S_STEP}, 1\ns_cmp_ge_u32 s{S_T}, {XDEFER}\ns_cbranch_scc1 {l}")
        op_store()
        A(f"{l}:")
    else:
        if XFPOS == 0:
            def shadow():
                l = A.newlabel('xd')
                H(hooks, 'x_flag', A)
                A(f"s_waitcnt vmcnt(1)")
                check(A, pxc, S_TAG, l)
                A(f"s_branch rx_pok\n{l}:")
            poll(A, 'px', pxl, pxc, S_TAG, exitlab, shadow)
            A("rx_pok:")
        else:
            poll(A, 'px', pxl, pxc, S_TAG, exitlab)
            if not XFLAGNOW and XFPOS == 1:
                l = A.newlabel('xf')
                if BFLAG: A(f"s_cmp_lt_u32 s{S_STEP}, {BFLAG}\ns_cbranch_scc1 {l}")
                H(hooks, 'x_flag', A)
                A(f"{l}:")
    H(hooks, 'stamp', A, 1)
    seq = [(f, t_) for f in range(10) for t_ in range(4)]
    lg = Lg(A)
    def zrd(n):
        f, t_ = seq[n]
        if f < 8: lg.ds(f"ds_read_b128 {vr(ZR+4*(n%8),4)}, v{VT} offset:{f*4096+t_*1024}", n)
        else: lg.ds(f"ds_read_b128 {vr(ZR+4*(n%8),4)}, v{VY} offset:{t_*2048+(f-8)*1024}", n)
    for n in range(7): zrd(n)
    for n, (f, t_) in enumerate(seq):
        if n + 7 < 40: zrd(n+7)
        if XFPOS > 1 and n == XFPOS: H(hooks, 'x_flag', A)
        lg.need(n)
        A(f"v_mfma_f32_16x16x32_bf16 {vr(XA+4*t_,4)}, {vr(ZR+4*(n%8),4)}, {vr(PXR+4*f,4)}, {'0' if f == 0 else vr(XA+4*t_,4)}")
    A(f"""v_xor_b32 v{VY}, 8192, v{VY}
    s_xor_b32 s{S_UR}, s{S_UR}, 32768""")
    for i in range(8): A(f"v_cvt_pk_bf16_f32 v{XA+16+i}, v{XA+2*i}, v{XA+2*i+1}")
    if XDEFER:
        l = A.newlabel('xd')
        A(f"s_mov_b32 s{S_DONE}, s{S_STEP}\ns_cmp_lt_u32 s{S_STEP}, {XDEFER}\ns_cbranch_scc1 {l}")
        op_store()
        A(f"s_add_u32 s{S_DONE}, s{S_DONE}, 1\n{l}:")
    else: op_store()
    H(hooks, 'stamp', A, 2)
    A(f"""s_add_u32 s{S_STEP}, s{S_STEP}, 1
    s_waitcnt vmcnt(0)""")
    H(hooks, 'stamp', A, 4)
    l = A.newlabel('rx_nf')
    if not XFLAGNOW: A(f"s_cmp_lt_u32 s{S_STEP}, {NSEG-2}\ns_cbranch_scc1 {l}")
    H(hooks, 'x_flag', A)
    A(f"s_cmp_ge_u32 s{S_STEP}, {NSEG}\ns_cbranch_scc1 rx_fin\n{l}:")
    H(hooks, 'stamp', A, 3)
    A("s_barrier\ns_branch rx_loop\nrx_fin:")
    H(hooks, 'final', A)
    A(f"s_branch {hooks['next_r']}")
```

```python
from common import *
from r_u import load_w_rows
from r_ln import hexf
import math, os
TOUCH = int(os.environ.get('TOUCH', '128'))
NOU = int(os.environ.get('NOU', '0'))
NOKQ = int(os.environ.get('NOKQ', '0'))

NG, HG, NR = 4, 8, 10
GBLK = 32768
GSLOT = 32*GBLK
LBASE = WS_LRING
M_OFF = 0
P_OFF = 16384
PX_OFF = 32768
Y_OFF = 163840
NSYNC = NG*(2*HG+NR)
WS_OP = WS_YF
SEG_OP = 2*20*4*1024
TLANES = int(os.environ.get('TLANES', '64'))
TOUT = int(os.environ.get('TOUT', '0'))
KQP = int(os.environ.get('KQP', '8'))
GDROP = int(os.environ.get('GDROP', '0'))
ASLEEP = int(os.environ.get('ASLEEP', '2'))
BSLEEP = int(os.environ.get('BSLEEP', '24'))
RSLEEP = int(os.environ.get('RSLEEP', '0'))
MPIPE = int(os.environ.get('MPIPE', '0'))
YPIPE = int(os.environ.get('YPIPE', '2'))
XFLAGNOW = int(os.environ.get('XFLAGNOW', '0'))
SCRUB = int(os.environ.get('SCRUB', '1'))
XLEAD = int(os.environ.get('XLEAD', '3'))
MMASK = int(os.environ.get('MMASK', '0'))
KQEND = int(os.environ.get('KQEND', '1'))
BTOUCH = int(os.environ.get('BTOUCH', '0'))
BTEARLY = int(os.environ.get('BTEARLY', '1'))
XDEFER = int(os.environ.get('XDEFER', '0'))
RST6 = int(os.environ.get('RST6', '1'))
UPARK = int(os.environ.get('UPARK', '3'))
TRIM = int(os.environ.get('TRIM', '1'))
XFPOS = int(os.environ.get('XFPOS', '1'))
SCRPOS = int(os.environ.get('SCRPOS', '2'))
YQ = int(os.environ.get('YQ', '0'))
CHEATS = int(os.environ.get('CHEATS', '0'))
SELF = int(os.environ.get('SELF', '0'))
EP0 = int(os.environ.get('EP0', '34'))
WGAPS = eval(os.environ.get('WGAPS', '[0, 2, 4]'))
SGAPS = eval(os.environ.get('SGAPS', '[5, 6, 7, 8, 17, 18, 19, 20, 21, 22, 23, 24]'))
KGAPS = eval(os.environ.get('KGAPS', '[25, 26, 27, 28, 29, 30, 31, 32, 33, 45, 46, 47]'))
AB1 = int(os.environ.get('AB1', '10'))
BB1 = int(os.environ.get('BB1', '8'))
BNOW = int(os.environ.get('BNOW', '2'))
SGAPSB = eval(os.environ.get('SGAPSB', '[14, 15, 16, 17, 18, 19, 20, 21, 36, 37, 38, 39]'))
GDELAY = int(os.environ.get('GDELAY', '2'))
KQW3 = int(os.environ.get('KQW3', '0'))
POLL_LIMIT = 1 << 17

class Lg:
    def __init__(s, A): s.A = A; s.n = 0; s.done = 0; s.tag = {}
    def ds(s, text, tag=None):
        s.A(text); s.n += 1
        if tag is not None: s.tag[tag] = s.n
    def need(s, tag):
        k = s.tag[tag]
        if k > s.done:
            w = s.n - k
            if w <= 15:
                s.A(f"s_waitcnt lgkmcnt({w})"); s.done = k
            else:
                s.A("s_waitcnt lgkmcnt(15)"); s.done = s.n - 15
    def all(s):
        s.A("s_waitcnt lgkmcnt(0)"); s.done = s.n

V_LANE16, V_P1, V_P2, V_RD0, V_RD3, V_IDX, V_TW, V_TR, V_WS, V_X1, V_X2, V_X3, V_JUNK = 1, 2, 3, 4, 7, 8, 9, 10, 11, 12, 13, 14, 15
MOP, ACC, STG = 16, 56, 80
V_X3S = 999
V_P2S = ACC + 8
LPOS_A = eval(os.environ.get('LPOSA', '[0, 1, 2, 3, 11, 13, 24, 26, 28, 30]'))
LPOS_B = eval(os.environ.get('LPOSB', '[0, 1, 2, 3, 22, 24, 26, 28, 44, 46]'))
LPOS = LPOS_A
def set_lpos(l):
    global LPOS
    LPOS = l
def wloc(p):
    if p in LPOS: return ('lds', LPOS.index(p))
    k = p - sum(1 for x in LPOS if x < p)
    return ('reg', 256 + 8*k if k < 32 else 112 + 8*(k-32))
def wreg(p):
    kind, x = wloc(p)
    return STG + 8*(x % 4) if kind == 'lds' else x
L_T = 0
L_MS = 8192
L_X = 18432
L_R = L_X + 49152
L_W = 81920
S_WAVE = 3
SRD = 4
S_GRP, S_HL, S_STEP, S_TO = 8, 9, 10, 11
S_T = 12
S_A, S_B = 20, 22
S_POL, S_SLOW, S_H = 24, 25, 26
S_CUR, S_TAG, S_TAGM = 27, 28, 29
S_ML, S_ML4, S_MR, S_MR4 = 30, 31, 32, 33
S_MSK = 34
S_HI = 52
S_EVEN = 54
S_C1, S_C2, S_C3, S_C4, S_C5, S_C6 = 56, 57, 58, 59, 60, 61
S_O1, S_O2, S_O3, S_O4 = 62, 63, 64, 65
S_NT, S_CT0, S_SEL0, S_SEL1, S_CSC = 66, 67, 68, 69, 70
srd = sr(SRD, 4)

def smf(A, acc, a, b):
    A(f"v_smfmac_f32_16x16x64_bf16 {vr(acc,4)}, {vr(a,4)}, {ur(b,8)}, v{V_IDX}")
def bld(n, dst, va, so, off=0, fl=''):
    nm = {1: 'dword', 2: 'dwordx2', 4: 'dwordx4'}[n]
    return f"buffer_load_{nm} {vr(dst,n)}, v{va}, {srd}, s{so} offen offset:{off} {fl}"
def bst(n, src, va, so, off=0, fl=''):
    nm = {1: 'dword', 2: 'dwordx2', 4: 'dwordx4'}[n]
    return f"buffer_store_{nm} {vr(src,n)}, v{va}, {srd}, s{so} offen offset:{off} {fl}"
def bdma(va, so, off=0):
    return f"buffer_load_dwordx4 v{va}, {srd}, s{so} offen offset:{off} lds"

def common_init(A):
    w = S_WAVE
    A(f"""v_lshlrev_b32 v{V_LANE16}, 4, v0
    s_lshl_b32 s{S_T}, s{w}, 10
    v_add_u32 v{V_P1}, s{S_T}, v{V_LANE16}
    s_and_b32 s{S_T+1}, s{S_T}, 1024
    s_add_u32 s{S_T+2}, s{S_T+1}, 8192
    v_add_u32 v{V_P2}, s{S_T+2}, v{V_LANE16}
    s_xor_b32 s{S_T+1}, s{S_T+1}, 1024
    v_add_u32 v{V_RD3}, s{S_T+1}, v{V_LANE16}""")
    for i in range(3):
        A(f"s_xor_b32 s{S_T+1}, s{S_T}, {(i+1)*1024}\nv_add_u32 v{V_RD0+i}, s{S_T+1}, v{V_LANE16}")
    A(f"""s_mov_b32 s{S_HI}, 0xff00ff00
    s_mov_b32 s{S_HI+1}, 0xff00ff00
    v_mov_b32 v{V_IDX}, 0x4444
    v_mov_b32 v{V_TW}, 0xeeee
    v_cndmask_b32 v{V_IDX}, v{V_IDX}, v{V_TW}, {sr(S_HI,2)}
    s_mul_i32 s{S_T+1}, s{w}, 20480
    s_add_u32 s{S_T+1}, s{S_T+1}, {L_W}
    v_add_u32 v{V_WS}, s{S_T+1}, v{V_LANE16}
    s_lshl_b32 s{S_H}, s{S_GRP}, 3
    s_add_u32 s{S_H}, s{S_H}, s{S_HL}
    s_mov_b32 s{S_SEL0}, 0x00003f80
    s_mov_b32 s{S_SEL1}, 0x3f800000
    s_lshl_b32 s{S_CUR}, s{S_GRP}, 18
    s_add_u32 s{S_CUR}, s{S_CUR}, {LBASE}
    s_mov_b32 s{S_TAG}, 0
    s_mov_b32 s{S_TAGM}, 0
    s_add_u32 s{S_ML}, s{S_CUR}, {M_OFF}
    s_add_u32 s{S_ML4}, s{S_ML}, 4096
    s_mov_b32 s{S_STEP}, 0""")

def kappa_sreg(A, kp, dst):
    w = S_WAVE
    if kp == 0: A(f"s_mov_b32 s{dst}, s{w}")
    elif kp == 1: A(f"s_add_u32 s{dst}, s{w}, 4")
    elif kp == 2: A(f"s_and_b32 s{dst}, s{w}, 1\ns_add_u32 s{dst}, s{dst}, 8")
    elif kp < 6: A(f"s_xor_b32 s{dst}, s{w}, {kp-2}")
    elif kp < 9: A(f"s_xor_b32 s{dst}, s{w}, {kp-5}\ns_add_u32 s{dst}, s{dst}, 4")
    else: A(f"s_and_b32 s{dst}, s{w}, 1\ns_xor_b32 s{dst}, s{dst}, 9")

def tr_addr_sparseB(A, dst, t, rowbytes, s_base):
    A(f"""v_bfe_u32 v{dst}, v0, 2, 1
    v_bfe_u32 v{t}, v0, 3, 1
    v_lshl_add_u32 v{dst}, v{t}, 3, v{dst}
    v_bfe_u32 v{t}, v0, 4, 1
    v_lshl_add_u32 v{dst}, v{t}, 2, v{dst}
    v_bfe_u32 v{t}, v0, 5, 1
    v_lshl_add_u32 v{dst}, v{t}, 4, v{dst}
    v_mul_u32_u24 v{dst}, {rowbytes}, v{dst}
    v_and_b32 v{t}, 3, v0
    v_lshl_add_u32 v{dst}, v{t}, 3, v{dst}
    v_add_u32 v{dst}, s{s_base}, v{dst}""")

def read_operand(A, p, vtr, off, rowbytes, halves=(0,1), hrows=32):
    kind, x = wloc(p)
    r = STG if kind == 'lds' else x
    for half in halves:
        for q in range(2):
            A(f"ds_read_b64_tr_b16 {ur(r+4*half+2*q,2)}, v{vtr} offset:{off + (hrows*(half-halves[0]) + 2*q)*rowbytes}")
    if kind == 'lds':
        A("s_waitcnt lgkmcnt(0)")
        for half in halves:
            A(f"ds_write_b128 v{V_WS}, {vr(STG+4*half,4)} offset:{x*2048+1024*half}")
        A("s_waitcnt lgkmcnt(0)")

def kp_of(kappa, w):
    if kappa < 4: d = kappa ^ w; return 0 if d == 0 else d + 2
    if kappa < 8: d = (kappa-4) ^ w; return 1 if d == 0 else d + 5
    return 2 if kappa - 8 == (w & 1) else 9

def load_heads(A, mats):
    VA_, VT_, t, u = MOP, MOP+6, MOP+10, MOP+11
    sb = S_T + 4
    w = S_WAVE
    for i in range(6):
        A(f"""v_add_u32 v{t}, {64*i}, v0
        v_mul_u32_u24 v{u}, {(65536+23)//24}, v{t}
        v_lshrrev_b32 v{u}, 16, v{u}
        v_mul_u32_u24 v{VA_+i}, 24, v{u}
        v_sub_u32 v{t}, v{t}, v{VA_+i}
        v_lshrrev_b32 v{VA_+i}, 1, v{u}
        v_and_b32 v{VA_+i}, 6, v{VA_+i}
        v_xor_b32 v{t}, v{t}, v{VA_+i}
        v_mul_u32_u24 v{VA_+i}, 12288, v{u}
        v_lshl_add_u32 v{VA_+i}, v{t}, 4, v{VA_+i}""")
    for tt in range(3):
        A(f"""v_bfe_u32 v{u}, v0, 4, 1
        v_bfe_u32 v{t}, v0, 3, 1
        v_lshl_add_u32 v{u}, v{t}, 1, v{u}
        v_lshlrev_b32 v{VT_+tt}, 1, v{u}
        s_mul_i32 s{S_T}, s{w}, 6
        s_add_u32 s{S_T}, s{S_T}, {2*tt}
        v_bfe_u32 v{t}, v0, 1, 1
        v_add_u32 v{t}, s{S_T}, v{t}
        v_xor_b32 v{VT_+tt}, v{VT_+tt}, v{t}
        v_lshlrev_b32 v{VT_+tt}, 4, v{VT_+tt}
        v_and_b32 v{t}, 1, v0
        v_lshl_add_u32 v{VT_+tt}, v{t}, 3, v{VT_+tt}
        v_lshlrev_b32 v{u}, 2, v{u}
        v_bfe_u32 v{t}, v0, 2, 1
        v_add_u32 v{u}, v{u}, v{t}
        v_bfe_u32 v{t}, v0, 5, 1
        v_lshl_add_u32 v{u}, v{t}, 4, v{u}
        v_mul_u32_u24 v{u}, 384, v{u}
        v_add_u32 v{VT_+tt}, v{VT_+tt}, v{u}""")
    A(f"s_mul_i32 s{sb}, s{w}, 6144\ns_mul_i32 s{S_T}, s{w}, {16*12288}")
    for sp, _ in mats: add64(A, sp, sp, f"s{S_T}")
    rounds = [(m, k) for m in range(len(mats)) for k in range(10)]
    depth, slot = 3, 24576
    def issue(r):
        sp = mats[rounds[r][0]][0]
        for i in range(6):
            A(f"s_add_u32 m0, s{sb}, {(r % depth)*slot + i*1024}")
            A(f"global_load_lds_dwordx4 v{VA_+i}, {sr(sp,2)}")
        add64(A, sp, sp, 64*12288)
    for r in range(depth): issue(r)
    labs = [A.newlabel('lw') for _ in range(4)]; lend = A.newlabel('lw')
    for ww in range(1, 4): A(f"s_cmp_eq_u32 s{w}, {ww}\ns_cbranch_scc1 {labs[ww]}")
    n = len(rounds)
    for ww in range(4):
        A(f"{labs[ww]}:")
        for r, (m, k) in enumerate(rounds):
            A(f"s_waitcnt vmcnt({6*min(depth-1, n-1-r)})\ns_barrier")
            hi = (r % depth) == 2
            if hi:
                for tt in range(3): A(f"v_add_u32 v{VT_+tt}, {2*slot}, v{VT_+tt}")
            for tt in range(3):
                read_operand(A, mats[m][1](kp_of(k, ww), tt), VT_+tt, 0 if hi else (r % depth)*slot, 384)
            if hi:
                for tt in range(3): A(f"v_subrev_u32 v{VT_+tt}, {2*slot}, v{VT_+tt}")
            A("s_waitcnt lgkmcnt(0)\ns_barrier")
            if r + depth < n: issue(r+depth)
        if ww < 3: A(f"s_branch {lend}")
    A(f"{lend}:")

def tick(A, exitlab):
    A(f"""s_add_u32 s{S_TO}, s{S_TO}, 1
    s_cmp_gt_u32 s{S_TO}, {POLL_LIMIT}
    s_cbranch_scc1 {exitlab}""")

def check(A, regs, stag, target):
    t = V_X3
    c = list(regs)
    if len(c) == 1:
        A(f"v_bitop3_b32 v{t}, v{c[0]}, 1, s{stag} bitop3:0x48")
    else:
        A(f"v_bitop3_b32 v{t}, v{c[0]}, v{c[1]}, s{stag} bitop3:0x7e")
        for x in c[2:]:
            A(f"v_bitop3_b32 v{t}, v{x}, v{t}, s{stag} bitop3:0xde")
        A(f"v_and_b32 v{t}, 1, v{t}")
    A(f"v_cmp_ne_u32 vcc, 0, v{t}\ns_cbranch_vccnz {target}")

def poll(A, name, loads, checks, stag, exitlab, shadow=None):
    l = A.newlabel(name)
    if shadow is not None:
        l2 = A.newlabel(name)
        for x in loads: A(x)
        shadow()
        A(f"s_branch {l2}")
    A(f"{l}:")
    for x in loads: A(x)
    tick(A, exitlab)
    if shadow is not None: A(f"{l2}:")
    A("s_waitcnt vmcnt(0)")
    check(A, checks, stag, l)

def ingest_mem(A, lg, exitlab, shadow=None):
    def L(b): return [bld(4, b, V_P1, S_ML, 0, 'sc1'), bld(4, b+4, V_P1, S_ML4, 0, 'sc1'), bld(4, b+8, V_P2, S_ML, 0, 'sc1')]
    W = [(V_P1, L_MS), (V_P1, L_MS+4096), (V_P2, L_MS)]
    if MMASK:
        M = [S_T, S_T+2, S_T+4]
        lp = A.newlabel('pm')
        for m in M: A(f"s_mov_b64 {sr(m,2)}, -1")
        A(f"{lp}:")
        for m, x in zip(M, L(MOP)): A(f"s_mov_b64 exec, {sr(m,2)}\n{x}")
        A("s_mov_b64 exec, -1")
        tick(A, exitlab)
        A("s_waitcnt vmcnt(0)")
        for f in range(3): A(f"v_bitop3_b32 v{MOP+12+f}, v{MOP+4*f}, 1, s{S_TAG} bitop3:0x48")
        for f in range(3): A(f"v_cmp_ne_u32 {sr(M[f],2)}, 0, v{MOP+12+f}")
        A(f"s_or_b64 vcc, {sr(M[0],2)}, {sr(M[1],2)}\ns_or_b64 vcc, vcc, {sr(M[2],2)}\ns_cbranch_scc1 {lp}")
        for f, (v, off) in enumerate(W):
            lg.ds(f"ds_write_b128 v{v}, {vr(MOP+4*f,4)} offset:{off}", ('mw', f))
        return
    if not MPIPE:
        poll(A, 'pm', L(MOP), [MOP, MOP+4, MOP+8], S_TAG, exitlab, shadow)
        if TRIM: return [(f"ds_write_b128 v{v}, {vr(MOP+4*f,4)} offset:{off}", ('mw', f)) for f, (v, off) in enumerate(W)]
        for f, (v, off) in enumerate(W):
            lg.ds(f"ds_write_b128 v{v}, {vr(MOP+4*f,4)} offset:{off}", ('mw', f))
        return
    S = [MOP+12, MOP+24]
    lp, n0, j = A.newlabel('pm'), A.newlabel('pm'), A.newlabel('pm')
    for x in L(S[0]): A(x)
    A(f"s_sleep {MPIPE}\n{lp}:")
    def fin(b):
        for f, (v, off) in enumerate(W):
            A(f"ds_write_b128 v{v}, {vr(b+4*f,4)} offset:{off}")
            A(f"v_pk_mov_b32 {vr(MOP+4*f,2)}, {vr(b+4*f,2)}, {vr(b+4*f,2)} op_sel:[0,1]\nv_pk_mov_b32 {vr(MOP+4*f+2,2)}, {vr(b+4*f+2,2)}, {vr(b+4*f+2,2)} op_sel:[0,1]")
    for x in L(S[1]): A(x)
    tick(A, exitlab)
    A("s_waitcnt vmcnt(3)")
    check(A, [S[0], S[0]+4, S[0]+8], S_TAG, n0)
    fin(S[0])
    A(f"s_branch {j}\n{n0}:")
    for x in L(S[0]): A(x)
    A("s_waitcnt vmcnt(3)")
    check(A, [S[1], S[1]+4, S[1]+8], S_TAG, lp)
    fin(S[1])
    A(f"{j}:")
    lg.n += 3; lg.tag[('mw', 2)] = lg.n

def read_mem_frags(A, lg, now=7):
    if MPIPE: A('s_waitcnt vmcnt(0)')
    L = []
    for kp in range(3, 10):
        if kp < 6: v, off = V_RD0 + kp - 3, L_MS
        elif kp < 9: v, off = V_RD0 + kp - 6, L_MS + 4096
        else: v, off = V_RD3, L_MS + 8192
        L.append((f"ds_read_b128 {vr(MOP+4*kp,4)}, v{v} offset:{off}", ('m', kp)))
    for x in L[:now]: lg.ds(*x)
    return L[now:]

def stg_load(lg, i):
    r = STG + 8*(i % 4)
    lg.ds(f"ds_read_b128 {vr(r,4)}, v{V_WS} offset:{i*2048}")
    lg.ds(f"ds_read_b128 {vr(r+4,4)}, v{V_WS} offset:{i*2048+1024}", ('w', i))

def next_step(A):
    A(f"""s_add_u32 s{S_STEP}, s{S_STEP}, 1
    s_xor_b32 s{S_TAG}, s{S_TAG}, 1""")

def t_plane_base(A, dst, c, t, plane):
    A(f"""v_mul_u32_u24 v{dst}, {plane}, v{c}
    v_and_b32 v{t}, 1, v{c}
    v_lshl_add_u32 v{dst}, v{t}, 5, v{dst}
    v_lshrrev_b32 v{t}, 1, v{c}
    v_lshl_add_u32 v{dst}, v{t}, 7, v{dst}""")

D_CNT, D_SLOW, D_POL = 2, 18, 34
D_LN = 4
NINIT = 16 + NG*NR
def checkin(A, s_dbg, vt=None):
    vt = MOP if vt is None else vt
    l2 = A.newlabel('isk')
    A(f"""s_waitcnt vmcnt(0)
    s_barrier
    s_cmp_lg_u32 s{S_WAVE}, 0
    s_cbranch_scc1 {l2}
    v_mov_b32 v{vt}, {4*D_CNT}
    v_mov_b32 v{vt+1}, 1
    s_mov_b64 exec, 1
    global_atomic_add v{vt}, v{vt+1}, {sr(s_dbg,2)}
    s_mov_b64 exec, -1
    {l2}:""")

def waitall(A, s_dbg, exitlab, vl4, vt=None, s_slow=None, s_pol=None, setup_only=False):
    vt = MOP if vt is None else vt
    l, l2 = A.newlabel('isync'), A.newlabel('isync')
    A(f"""v_lshrrev_b32 v{vt}, 2, v{vl4}
    v_mov_b32 v{vt+1}, 0
    s_mov_b32 exec_lo, 0x00030003
    s_mov_b32 exec_hi, 0x00030003
    v_mov_b32 v{vt+1}, 32
    s_mov_b32 exec_lo, 0x00100010
    s_mov_b32 exec_hi, 0x00100010
    v_mov_b32 v{vt+1}, 64
    s_mov_b64 exec, {1 << D_CNT}
    v_mov_b32 v{vt+1}, {NINIT}""")
    if s_pol is not None: A(f"s_mov_b32 exec_lo, 0\ns_mov_b32 exec_hi, {1 << (D_POL-32)}\nv_mov_b32 v{vt+1}, 1")
    A("s_mov_b64 exec, -1")
    if setup_only: return
    A(f"""s_branch {l2}
    {l}:
    s_sleep 4""")
    tick(A, exitlab)
    A(f"""{l2}:
    global_load_dword v{vt+2}, v{vt}, {sr(s_dbg,2)} sc1
    s_waitcnt vmcnt(0)
    v_cmp_gt_u32 vcc, v{vt+1}, v{vt+2}
    s_cbranch_vccnz {l}""")
    if s_slow is not None or s_pol is not None:
        A(f"global_load_dword v{vt+2}, v{vt}, {sr(s_dbg,2)} sc1\ns_waitcnt vmcnt(0)")
    if s_slow is not None: A(f"v_readlane_b32 s{s_slow}, v{vt+2}, {D_SLOW}")
    if s_pol is not None: A(f"v_readlane_b32 s{s_pol}, v{vt+2}, {D_POL}\ns_and_b32 s{s_pol}, s{s_pol}, 8192")

FSLEEP = int(os.environ.get('FSLEEP', '0'))
def wait_flags(A, v_addr, v_tmp, s_need, exitlab, sleep=2):
    l, l2 = A.newlabel('wf'), A.newlabel('wf')
    A(f"""s_branch {l2}
    {l}:
    s_sleep {FSLEEP or sleep}""")
    tick(A, exitlab)
    A(f"""{l2}:
    buffer_load_dword v{v_tmp}, v{v_addr}, {srd}, 0 offen sc1
    s_waitcnt vmcnt(0)
    v_cmp_gt_u32 vcc, s{s_need}, v{v_tmp}
    s_cbranch_vccnz {l}""")

def wait_flags_wg(A, v_addr, v_tmp, s_need, exitlab, sleep=6):
    l = A.newlabel('wg')
    A(f"s_cmp_lg_u32 s{S_WAVE}, 0\ns_cbranch_scc1 {l}")
    wait_flags(A, v_addr, v_tmp, s_need, exitlab, sleep)
    A(f"{l}:\ns_barrier")

def put_flag(A, s_off, s_val, vt):
    A(f"""v_mov_b32 v{vt}, s{s_val}
    s_mov_b64 exec, 1
    buffer_store_dword v{vt}, off, {srd}, s{s_off} sc1
    s_mov_b64 exec, -1""")

CSC = (192 ** -0.5) * math.log2(math.e)
NEG = 0xf149f2ca

def posA(kp, t):
    if kp < 3: return kp*6 + t
    if SELF and t >= 4: return 46 + (t-4)*7 + (kp-3)
    return 18 + (t//2)*14 + (kp-3)*2 + (t % 2)

def H(hooks, name, *a):
    if name in hooks: hooks[name](*a)

def role_A(A, exitlab, s_dbg, hooks, slow_too=True):
    w = S_WAVE
    set_lpos(LPOS_A)
    common_init(A)
    t0, t1, t2 = MOP, MOP+1, MOP+2
    A(f"v_lshrrev_b32 v{t0}, 4, v0")
    t_plane_base(A, V_TW, t0, t1, 1536)
    A(f"""v_and_b32 v{t1}, 15, v0
    s_mul_i32 s{S_T}, s{w}, 48
    v_add_u32 v{t1}, s{S_T}, v{t1}
    v_lshl_add_u32 v{V_TW}, v{t1}, 3, v{V_TW}
    v_and_b32 v{t2}, 3, v0""")
    t_plane_base(A, V_TR, t2, t1, 1536)
    A(f"""v_bfe_u32 v{t1}, v0, 2, 2
    v_lshl_add_u32 v{t1}, v{t0}, 3, v{t1}
    v_lshl_add_u32 v{V_TR}, v{t1}, 3, v{V_TR}
    v_add_u32 v{V_X1}, {L_X}, v{V_LANE16}
    v_and_b32 v{t2}, 1, v0""")
    t_plane_base(A, V_JUNK, t2, t1, 1536)
    A(f"""v_bfe_u32 v{t1}, v0, 2, 2
    v_lshl_add_u32 v{t1}, v{t0}, 3, v{t1}
    v_lshl_add_u32 v{V_JUNK}, v{t1}, 3, v{V_JUNK}
    v_and_b32 v{t1}, 15, v0
    v_lshlrev_b32 v{V_X2}, 4, v{t1}
    v_and_b32 v{t1}, 1, v{t0}
    v_lshl_add_u32 v{V_X2}, v{t1}, 3, v{V_X2}""")
    A(f"v_and_b32 v{t1}, 15, v0\ns_sub_u32 s{S_T}, s{w}, 1\ns_lshl_b32 s{S_T}, s{S_T}, 4\nv_add_u32 v{t1}, s{S_T}, v{t1}")
    for kt in range(2):
        for i in range(4):
            A(f"""v_lshlrev_b32 v{t2}, 2, v{t0}
            v_add_u32 v{t2}, {16*kt+i}, v{t2}
            v_cmp_le_i32 {sr(S_MSK+8*kt+2*i,2)}, v{t2}, v{t1}""")
    A(f"s_mov_b32 s{S_MSK+16}, 0\ns_mov_b32 s{S_MSK+17}, -1\ns_mov_b32 s{S_CSC}, {hexf(CSC)}\ns_mov_b32 s{S_O4}, {4-3200}")
    l = A.newlabel('a_i')
    A(f"""v_bfe_u32 v{t1}, v0, 4, 1
    v_lshlrev_b32 v{t1}, 2, v{t1}
    v_sub_u32 v{V_X3}, v{V_X2}, v{t1}
    s_cmp_lg_u32 s{w}, 0
    s_cbranch_scc1 {l}
    v_lshrrev_b32 v{t2}, 5, v0
    v_lshl_add_u32 v{V_X2}, v{t2}, 8, v{V_X2}
    {l}:""")
    A(f"""s_mul_i32 s{S_T}, s{S_H}, 12288
    s_add_u32 s{S_C1}, s{S_T}, {WS_KF}
    s_add_u32 s{S_C2}, s{S_T}, {WS_QF}
    s_lshl_b32 s{S_C3}, s{S_HL}, 9
    s_add_u32 s{S_C3}, s{S_C3}, {P_OFF}
    s_lshr_b32 s{S_T+1}, s{S_HL}, 1
    s_lshl_b32 s{S_T+1}, s{S_T+1}, 8
    s_and_b32 s{S_T+2}, s{S_HL}, 1
    s_lshl_b32 s{S_T+2}, s{S_T+2}, 3
    s_add_u32 s{S_C4}, s{S_T+1}, s{S_T+2}
    s_add_u32 s{S_C4}, s{S_C4}, {P_OFF+4096}
    s_sub_u32 s{S_T}, s{w}, 1
    s_and_b32 s{S_T}, s{S_T}, 1
    s_mul_i32 s{S_T}, s{S_T}, 10240
    s_add_u32 s{S_T}, s{S_T}, {PX_OFF}
    s_add_u32 s{S_T}, s{S_T}, s{S_CUR}
    s_lshl_b32 s{S_C5}, s{S_HL}, 10
    s_add_u32 s{S_C5}, s{S_C5}, s{S_T}
    s_lshl_b32 s{S_C6}, s{S_HL}, 8
    s_add_u32 s{S_C6}, s{S_C6}, s{S_T}
    s_add_u32 s{S_C6}, s{S_C6}, 8192
    s_add_u32 s{S_C3}, s{S_C3}, s{S_CUR}
    s_add_u32 s{S_C4}, s{S_C4}, s{S_CUR}
    s_mul_i32 s{S_T}, s{w}, 3072
    s_add_u32 s{S_C1}, s{S_C1}, s{S_T}
    s_add_u32 s{S_C2}, s{S_C2}, s{S_T}
    s_add_u32 s{S_O1}, s{S_T}, {L_X}""")
    def bulk_pieces():
        P = []
        for m, sp in enumerate((S_C1, S_C2)):
            for i in range(3):
                x = f"s_add_u32 m0, s{S_O1}, {m*12288}\n" if i == 0 else ''
                if not NOKQ: x += bdma(V_LANE16, sp, i*1024)
                if i == 2: x += f"\ns_add_u32 s{sp}, s{sp}, {SEG_QKV}"
                P.append(x)
        return P
    A(f"""s_load_dwordx4 s[{S_A}:{S_A+3}], s[0:1], {KA_WQ}
    s_mul_i32 s{S_T}, s{S_H}, 384
    s_waitcnt lgkmcnt(0)""")
    add64(A, S_A, S_A, f"s{S_T}"); add64(A, S_B, S_B, f"s{S_T}")
    load_heads(A, [(S_A, lambda kp, t: posA(kp, 2*t)), (S_B, lambda kp, t: posA(kp, 2*t+1))])
    H(hooks, 'rts', A, 2)
    l = A.newlabel('a_i')
    A(f"s_cmp_lg_u32 s{w}, 0\ns_cbranch_scc1 {l}\nv_mov_b32 v0, 0x40000000\nv_cndmask_b32 v0, v0, v{V_X3}, {sr(S_MSK+16,2)}\n{l}:")
    waitall(A, s_dbg, exitlab, V_LANE16, s_slow=S_SLOW)
    H(hooks, 'wait_in', A, 'first')
    for x in bulk_pieces(): A(x)
    A(f"s_add_u32 s{S_O1}, s{S_O1}, 24576\ns_mov_b32 s{S_O3}, -24576")
    if slow_too: A(f"s_cmp_lg_u32 s{S_SLOW}, 0\ns_cbranch_scc1 a_loop_slow")
    for ver in (['', '_slow'] if slow_too else ['']):
        LF = 'sc1' if ver else ''
        A(f"a_loop{ver}:")
        lg = Lg(A)
        for i in range(4): stg_load(lg, i)
        for i in range(24): A(f"v_mov_b32 v{ACC+i}, 0")
        H(hooks, 'wait_in', A, 'peek')
        H(hooks, 'stamp', A, 0)
        if ASLEEP: A(f"s_sleep {ASLEEP}")
        lg.all()
        dsq = ingest_mem(A, lg, exitlab) or []
        H(hooks, 'stamp', A, 1)
        seq = sorted([(kp, t) for kp in range(10) for t in range(6)], key=lambda a: posA(*a))
        KX = [MOP, MOP+4, MOP+8, STG+16, STG+20, STG+24, STG+28, STG, STG+4, STG+8, STG+12, ACC+4]
        kx_at = {20: [0], 22: [1], 24: [2], 27: [3], 29: [4], 31: [5], 33: [6], 35: [7], 37: [8], 39: [9], 41: [10], 46: [11]}
        S0, S1, SM = ACC+8, ACC+12, ACC
        def epi_ops(tp, pk=False):
            Q, K = ACC + 8*tp, ACC + 8*tp + 4
            ops = [f"v_permlane32_swap_b32 v{Q+r}, v{K+r}" for r in range(4)]
            if tp < 2 and not pk: ops += [f"v_add_f32 v{Q+r}, v{Q+r}, v{K+r}" for r in range(4)]
            else: ops += [f"v_pk_add_f32 {vr(Q+r,2)}, {vr(Q+r,2)}, {vr(K+r,2)}" for r in (0, 2)]
            ops += [f"v_cvt_pk_bf16_f32 v{K}, v{Q}, v{Q+1}", f"v_cvt_pk_bf16_f32 v{K+1}, v{Q+2}, v{Q+3}"]
            ops += [('ds', f"ds_write_b64 v{V_TW}, {vr(K,2)} offset:{L_T + tp*128}")]
            return ops
        def epi_self(c, off, pk=False):
            add = [f"v_pk_add_f32 {vr(c,2)}, {vr(c,2)}, {vr(c+2,2)}"] if pk else [f"v_add_f32 v{c}, v{c}, v{c+2}", f"v_add_f32 v{c+1}, v{c+1}, v{c+3}"]
            return [f"v_permlane32_swap_b32 v{c}, v{c+2}", f"v_permlane32_swap_b32 v{c+1}, v{c+3}"] + add + [f"v_cvt_pk_bf16_f32 v{c}, v{c}, v{c+1}",
                    ('ds', f"ds_write_b32 v{V_X3}, v{c} offset:{off}")]
        def sop(i, h):
            r = STG + 8*(i % 4) + 4*h
            return (f"ds_read_b128 {vr(r,4)}, v{V_WS} offset:{i*2048+1024*h}", ('w', i) if h else None)
        def kop(f): return (f"ds_read_b128 {vr(KX[f],4)}, v{V_X1} offset:{f*1024}", ('kx', f))
        DS = {}
        for g, x in zip(WGAPS, dsq): DS[g] = x
        sg = SGAPS
        for n, i in enumerate(range(4, 10)):
            DS[sg[2*n]] = sop(i, 0); DS[sg[2*n+1]] = sop(i, 1)
        for f, g in enumerate(KGAPS): DS[g] = kop(f)
        pend = []
        for p, (kp, t) in enumerate(seq):
            if p == AB1:
                lg.need(('mw', 2)); A("s_barrier"); H(hooks, 'stamp', A, 5)
                rest = read_mem_frags(A, lg, 1)
                for n, x in enumerate(rest):
                    assert AB1 + n not in DS
                    DS[AB1+n] = x
            kind, x = wloc(p)
            if kind == 'lds': lg.need(('w', x))
            if kp >= 3: lg.need(('m', kp))
            smf(A, ACC+4*t, MOP+4*kp, wreg(p))
            if p in DS: lg.ds(*DS[p])
            if p == EP0: pend += epi_ops(0)
            if p == 48: pend += epi_ops(1)
            if p == 55 and SELF: pend += epi_self(ACC+16, L_T + 256)
            if p == 31 and SELF: pend += [f"v_cndmask_b32 v{V_X3}, 0, 1, {sr(S_MSK+16,2)}", f"v_mad_i32_i24 v{V_X3}, v{V_X3}, s{S_O4}, v{V_TW}"]
            for _ in range(2 if (SELF and p >= 54) else 1):
                if pend:
                    o = pend.pop(0)
                    if isinstance(o, tuple): lg.ds(o[1])
                    else: A(o)
        assert not pend
        lx, l3, lend = f'a_xrows{ver}', f'a_w3{ver}', f'a_end{ver}'
        A(f"s_cmp_lg_u32 s{w}, 0")
        for o in (epi_self(ACC+20, L_T + 256 + 3200, True) if SELF else epi_ops(2)):
            if isinstance(o, tuple): lg.ds(o[1])
            else: A(o)
        A(f"v_mov_b32 v{V_X3}, 0x{NEG:x}")
        for r in range(4): A(f"v_cndmask_b32 v{SM+r}, v{V_X3}, 0, {sr(S_MSK+16,2)}")
        lg.all(); A("s_barrier")
        H(hooks, 'stamp', A, 2)
        A(f"s_cbranch_scc1 {lx}")
        QK = MOP + 12
        QQ = [MOP+36, ACC+16, ACC+20]
        lg = Lg(A)
        def rd_qq(kk):
            for q in range(2): lg.ds(f"ds_read_b64_tr_b16 {vr(QQ[kk%3]+2*q,2)}, v{V_JUNK} offset:{L_T + kk*256 + q*32}", ('qq', kk))
        def rd_qk(kk):
            for q in range(2): lg.ds(f"ds_read_b64_tr_b16 {vr(QK+4*kk+2*q,2)}, v{V_TR} offset:{L_T + kk*256 + q*32}", ('qk', kk))
        for kk in range(3): rd_qq(kk); rd_qk(kk)
        for kk in range(6):
            lg.need(('qq', kk))
            b = vr(QQ[kk%3], 4)
            if not (CHEATS and kk >= 2):
                A(f"v_mfma_f32_16x16x32_bf16 {vr(S0,4)}, {vr(KX[kk],4)}, {b}, {'0' if kk == 0 else vr(S0,4)}")
                A(f"v_mfma_f32_16x16x32_bf16 {vr(S1,4)}, {vr(KX[6+kk],4)}, {b}, {'0' if kk == 0 else vr(S1,4)}")
            lg.need(('qk', kk))
            A(f"v_mfma_f32_16x16x32_bf16 {vr(SM,4)}, {vr(QK+4*kk,4)}, {b}, {vr(SM,4)}")
            if kk + 3 < 6: rd_qq(kk+3); rd_qk(kk+3)
        H(hooks, 'stamp', A, 4)
        E = MOP; M_, T_, L_, G_ = MOP+8, MOP+9, MOP+10, MOP+11
        for n, s_ in enumerate((S0, S1, SM)):
            for j in range(2):
                A(f"v_cndmask_b32 v{E+2*n+j}, v{s_+j}, v{s_+2+j}, {sr(S_HI,2)}")
        A(f"""v_max3_f32 v{M_}, v{E}, v{E+1}, v{E+2}
        v_max3_f32 v{M_}, v{M_}, v{E+3}, v{E+4}
        v_max_f32 v{M_}, v{M_}, v{E+5}
        v_mul_f32 v{M_}, s{S_CSC}, v{M_}
        v_fma_f32 v{E}, v{E}, s{S_CSC}, -v{M_}
        v_fma_f32 v{E+1}, v{E+1}, s{S_CSC}, -v{M_}
        v_max_f32_dpp v{G_}, v{M_}, v{M_} row_ror:8 row_mask:0xf bank_mask:0xf
        v_mov_b32 v{T_}, v{G_}
        v_fma_f32 v{E+2}, v{E+2}, s{S_CSC}, -v{M_}
        v_fma_f32 v{E+3}, v{E+3}, s{S_CSC}, -v{M_}
        v_permlane16_swap_b32 v{G_}, v{T_}
        v_max_f32 v{G_}, v{G_}, v{T_}
        v_mov_b32 v{T_}, v{G_}
        v_fma_f32 v{E+4}, v{E+4}, s{S_CSC}, -v{M_}
        v_fma_f32 v{E+5}, v{E+5}, s{S_CSC}, -v{M_}
        v_permlane32_swap_b32 v{G_}, v{T_}
        v_max_f32 v{G_}, v{G_}, v{T_}
        v_sub_f32 v{G_}, v{M_}, v{G_}""")
        for j in range(6): A(f"v_exp_f32 v{E+j}, v{E+j}")
        A(f"""v_exp_f32 v{G_}, v{G_}
        v_pk_add_f32 {vr(M_,2)}, {vr(E,2)}, {vr(E+2,2)}
        v_pk_add_f32 {vr(M_,2)}, {vr(M_,2)}, {vr(E+4,2)}
        v_add_f32 v{L_}, v{M_}, v{T_}
        v_mul_f32 v{L_}, v{L_}, v{G_}
        v_mul_f32 v{E}, v{E}, v{G_}
        v_mul_f32 v{E+1}, v{E+1}, v{G_}
        v_add_f32_dpp v{L_}, v{L_}, v{L_} row_ror:8 row_mask:0xf bank_mask:0xf
        v_mov_b32 v{T_}, v{L_}
        v_mul_f32 v{E+2}, v{E+2}, v{G_}
        v_mul_f32 v{E+3}, v{E+3}, v{G_}
        v_permlane16_swap_b32 v{L_}, v{T_}
        v_add_f32 v{L_}, v{L_}, v{T_}
        v_mov_b32 v{T_}, v{L_}
        v_mul_f32 v{E+4}, v{E+4}, v{G_}
        v_mul_f32 v{E+5}, v{E+5}, v{G_}
        v_permlane32_swap_b32 v{L_}, v{T_}
        v_add_f32 v{L_}, v{L_}, v{T_}
        v_rcp_f32 v{L_}, v{L_}""")
        A(f"""v_pk_mul_f32 {vr(E,2)}, {vr(E,2)}, {vr(L_,2)} op_sel_hi:[1,0]
        v_pk_mul_f32 {vr(E+2,2)}, {vr(E+2,2)}, {vr(L_,2)} op_sel_hi:[1,0]
        v_cvt_pk_bf16_f32 v{E+16}, v{E}, v{E+1}
        v_cvt_pk_bf16_f32 v{E+17}, v{E+2}, v{E+3}
        v_and_or_b32 v{E+16}, v{E+16}, -2, s{S_TAG}""")
        A(bst(2, E+16, V_X2, S_C3, 0, LF))
        A(f"""v_pk_mul_f32 {vr(E+4,2)}, {vr(E+4,2)}, {vr(L_,2)} op_sel_hi:[1,0]
        v_cvt_pk_bf16_f32 v{E+18}, v{E+4}, v{E+5}
        v_and_or_b32 v{E+18}, v{E+18}, -2, s{S_TAG}""")
        A(bst(1, E+18, 0, S_C4, 0, LF))
        H(hooks, 'stamp', A, 3)
        A(f"s_branch {lend}")
        A(f"{l3}:")
        H(hooks, 'steplog', A)
        if KQW3:
            for m, sp in enumerate((S_C1, S_C2)):
                for i in range(12):
                    if i % 3 == 0: A(f"s_add_u32 m0, s{S_O1}, {m*12288 + i*1024 - 9216}\ns_add_u32 s{S_T}, s{sp}, {i*1024 - 9216}")
                    if not NOKQ: A(bdma(V_LANE16, S_T, (i % 3)*1024))
                A(f"s_add_u32 s{sp}, s{sp}, {SEG_QKV}")
        A(f"s_sleep {(7 if KQW3 else 12) if ASLEEP else 0}\ns_branch {lend}")
        A(f"{lx}:\ns_cmp_eq_u32 s{w}, 3\ns_cbranch_scc1 {l3}")
        lg = Lg(A)
        A(f"s_mul_i32 s{S_T}, s{w}, 6144\nv_add_u32 v{V_JUNK}, s{S_T}, v{V_X1}")
        def rd_qx(kk): lg.ds(f"ds_read_b128 {vr(QQ[kk%3],4)}, v{V_JUNK} offset:{6144 + kk*1024}", ('qq', kk))
        for kt, s_ in enumerate((S0, S1)):
            for r in range(4): A(f"v_cndmask_b32 v{s_+r}, v{V_X3}, 0, {sr(S_MSK+8*kt+2*r,2)}")
        for kk in range(3): rd_qx(kk); rd_qk(kk)
        for kk in range(6):
            lg.need(('qq', kk))
            b = vr(QQ[kk%3], 4)
            A(f"v_mfma_f32_16x16x32_bf16 {vr(S0,4)}, {vr(KX[kk],4)}, {b}, {vr(S0,4)}")
            A(f"v_mfma_f32_16x16x32_bf16 {vr(S1,4)}, {vr(KX[6+kk],4)}, {b}, {vr(S1,4)}")
            lg.need(('qk', kk))
            A(f"v_mfma_f32_16x16x32_bf16 {vr(SM,4)}, {vr(QK+4*kk,4)}, {b}, {vr(SM,4)}")
            if kk + 3 < 6: rd_qx(kk+3); rd_qk(kk+3)
        vals = [S0+i for i in range(4)] + [S1+i for i in range(4)] + [SM+i for i in range(4)]
        A(f"v_max3_f32 v{M_}, v{vals[0]}, v{vals[1]}, v{vals[2]}")
        for j in range(3, 11, 2): A(f"v_max3_f32 v{M_}, v{M_}, v{vals[j]}, v{vals[j+1]}")
        A(f"v_max_f32 v{M_}, v{M_}, v{vals[11]}")
        xlane_max_g(A, M_, T_)
        A(f"v_mul_f32 v{M_}, s{S_CSC}, v{M_}")
        for v in vals: A(f"v_fma_f32 v{v}, v{v}, s{S_CSC}, -v{M_}")
        for v in vals: A(f"v_exp_f32 v{v}, v{v}")
        A(f"v_add_f32 v{L_}, v{vals[0]}, v{vals[1]}")
        for v in vals[2:]: A(f"v_add_f32 v{L_}, v{L_}, v{v}")
        xlane_sum_g(A, L_, T_)
        A(f"v_rcp_f32 v{L_}, v{L_}")
        for v in vals: A(f"v_mul_f32 v{v}, v{v}, v{L_}")
        for n in range(6): A(f"v_cvt_pk_bf16_f32 v{E+n}, v{vals[2*n]}, v{vals[2*n+1]}")
        A(f"""s_bfe_u32 s{S_T}, s{S_STEP}, 0x10002
        s_and_b32 s{S_T+1}, s{S_STEP}, 3
        s_lshl_b32 s{S_T+1}, s{S_T+1}, 15
        s_add_u32 s{S_T+2}, s{S_T+1}, s{S_C6}
        s_add_u32 s{S_T+1}, s{S_T+1}, s{S_C5}
        v_and_or_b32 v{E}, v{E}, -2, s{S_T}
        v_and_or_b32 v{E+4}, v{E+4}, -2, s{S_T}""")
        A(bst(4, E, V_LANE16, S_T+1, 0, LF))
        A("s_mov_b32 exec_lo, 0")
        A(bst(2, E+4, V_X2, S_T+2, 0, LF))
        A("s_mov_b32 exec_lo, -1")
        A(f"{lend}:")
        H(hooks, 'stamp', A, 6)
        if 'wait_in' in hooks:
            lb = A.newlabel('kq')
            A(f"s_cmp_eq_u64 {sr(S_EVEN,2)}, 0\ns_cbranch_scc1 {lb}")
            H(hooks, 'wait_in', A, 'block')
            if KQEND: A(f"{lb}:")
            for x in bulk_pieces(): A(x)
            if not KQEND: A(f"{lb}:")
        next_step(A)
        A(f"""s_add_u32 s{S_O1}, s{S_O1}, s{S_O3}
        s_sub_u32 s{S_O3}, 0, s{S_O3}
        v_add_u32 v{V_X1}, s{S_O3}, v{V_X1}
        s_cmp_lt_u32 s{S_STEP}, {NSEG}
        s_cbranch_scc1 a_loop{ver}
        s_branch a_fin""")
    A("a_fin:")
    H(hooks, 'final', A)
    A(f"v_lshrrev_b32 v0, 4, v{V_LANE16}\ns_branch {hooks['next_ab']}")

def posB_v(kp, t):
    if kp < 3: return kp*3 + t
    if TRIM and t < 2: return 9 + 2*(kp-3) + t
    return 9 + t*7 + (kp-3)
def posB_o(pr, kk): return 30 + (kk*2 + pr if pr < 2 else pr*6 + kk)

def role_B(A, exitlab, s_dbg, hooks, slow_too=True):
    w = S_WAVE
    set_lpos(LPOS_B)
    common_init(A)
    t0, t1, t2 = MOP, MOP+1, MOP+2
    A(f"""v_lshrrev_b32 v{t0}, 4, v0
    v_and_b32 v{t1}, 1, v{t0}
    v_mul_u32_u24 v{V_TW}, 1568, v{t1}
    v_and_b32 v{t1}, 15, v0
    s_mul_i32 s{S_T}, s{w}, 48
    v_add_u32 v{t1}, s{S_T}, v{t1}
    v_lshl_add_u32 v{V_TW}, v{t1}, 3, v{V_TW}
    v_lshrrev_b32 v{t1}, 5, v0
    v_lshl_add_u32 v{V_X1}, v{t1}, 2, v{V_TW}
    v_lshl_add_u32 v{V_TW}, v{t1}, 7, v{V_TW}
    v_and_b32 v{t1}, 1, v0
    v_mul_u32_u24 v{V_TR}, 1568, v{t1}
    v_bfe_u32 v{t1}, v0, 2, 2
    v_lshl_add_u32 v{V_TR}, v{t1}, 3, v{V_TR}
    v_lshl_add_u32 v{V_TR}, v{t0}, 6, v{V_TR}
    v_and_b32 v{t1}, 15, v0
    v_lshlrev_b32 v{V_X2}, 4, v{t1}
    v_and_b32 v{t1}, 1, v{t0}
    v_lshl_add_u32 v{V_X2}, v{t1}, 3, v{V_X2}
    v_lshrrev_b32 v{t1}, 5, v0
    v_lshl_add_u32 v{V_X2}, v{t1}, 10, v{V_X2}""")
    A(f"""s_lshr_b32 s{S_T}, s{S_HL}, 2
    s_mul_i32 s{S_T}, s{S_T}, 40960
    s_mul_i32 s{S_T+1}, s{w}, 10240
    s_add_u32 s{S_T}, s{S_T}, s{S_T+1}
    s_and_b32 s{S_T+1}, s{S_HL}, 3
    s_lshl_b32 s{S_T+1}, s{S_T+1}, 8
    s_add_u32 s{S_T}, s{S_T}, s{S_T+1}
    s_add_u32 s{S_T}, s{S_T}, s{S_CUR}
    s_add_u32 s{S_C1}, s{S_T}, {Y_OFF}
    s_add_u32 s{S_C2}, s{S_C1}, 4096
    s_add_u32 s{S_C3}, s{S_C1}, 8192
    s_mul_i32 s{S_C4}, s{S_H}, 40960
    s_mul_i32 s{S_T}, s{w}, 10240
    s_add_u32 s{S_C4}, s{S_C4}, s{S_T}
    s_add_u32 s{S_C4}, s{S_C4}, {WS_UF + 2*SEG_U}
    s_mul_i32 s{S_C5}, s{S_H}, 12288
    s_mul_i32 s{S_T}, s{w}, 3072
    s_add_u32 s{S_C5}, s{S_C5}, s{S_T}
    s_add_u32 s{S_C6}, s{S_C5}, {WS_QF + 2*SEG_QKV}
    s_add_u32 s{S_C5}, s{S_C5}, {WS_KF + 2*SEG_QKV}
    v_mov_b32 v{V_JUNK}, 0""")
    YSO = [S_C1, S_C2, S_C3]
    A(f"""s_load_dwordx4 s[{S_A}:{S_A+3}], s[0:1], {KA_WV}
    s_mul_i32 s{S_T}, s{S_H}, 384
    s_mul_i32 s{S_T+1}, s{S_H}, 245760
    s_mul_i32 s{S_T+2}, s{w}, 320
    s_add_u32 s{S_T+1}, s{S_T+1}, s{S_T+2}
    s_waitcnt lgkmcnt(0)""")
    add64(A, S_A, S_A, f"s{S_T}"); add64(A, S_B, S_B, f"s{S_T+1}")
    load_heads(A, [(S_A, posB_v)])
    A(f"s_mul_i32 s{S_T+4}, s{w}, 20480")
    d_, t_ = MOP+2, MOP+3
    A(f"""v_bfe_u32 v{d_}, v0, 2, 1
    v_lshrrev_b32 v{t_}, 4, v0
    v_lshl_add_u32 v{d_}, v{t_}, 2, v{d_}
    v_mul_u32_u24 v{d_}, 320, v{d_}
    v_bfe_u32 v{t_}, v0, 3, 1
    v_lshl_add_u32 v{d_}, v{t_}, 5, v{d_}
    v_and_b32 v{t_}, 3, v0
    v_lshl_add_u32 v{d_}, v{t_}, 3, v{d_}
    v_add_u32 v{d_}, s{S_T+4}, v{d_}""")
    def reads(A, r, off):
        for pr in range(5):
            read_operand(A, posB_o(pr, r), MOP+2, off + pr*64, 320, hrows=16)
    load_w_rows(A, S_B, 1280, 20, 192, 32, 2, S_T+4, 0, S_T, MOP, reads)
    A("s_barrier")
    H(hooks, 'rts', A, 2)
    waitall(A, s_dbg, exitlab, V_LANE16, s_slow=S_SLOW)
    if slow_too: A(f"s_cmp_lg_u32 s{S_SLOW}, 0\ns_cbranch_scc1 b_loop_slow")
    for ver in (['', '_slow'] if slow_too else ['']):
        LF = 'sc1' if ver else ''
        A(f"b_loop{ver}:")
        lg = Lg(A)
        for i in range(4): stg_load(lg, i)
        for i in range(24): A(f"v_mov_b32 v{ACC+i}, 0")
        H(hooks, 'stamp', A, 0)
        if BSLEEP: A(f"s_sleep {BSLEEP}")
        lg.all()
        dsq = ingest_mem(A, lg, exitlab) or []
        late = []
        H(hooks, 'stamp', A, 1)
        def btouch(vt):
            lb = A.newlabel('bt')
            H(hooks, 'b_ready', A, lb)
            A(f"v_lshlrev_b32 v{vt}, 3, v{V_LANE16}\ns_mov_b32 m0, {L_X}")
            A(f"buffer_load_dword v{vt}, {srd}, s{S_C4} offen lds")
            A(f"s_add_u32 s{S_T}, s{S_C4}, 8192\ns_mov_b64 exec, 0xffff")
            A(f"buffer_load_dword v{vt}, {srd}, s{S_T} offen lds")
            if BTOUCH > 1:
                A(f"s_mov_b64 exec, 0xffffff")
                A(f"buffer_load_dword v{vt}, {srd}, s{S_C5} offen lds")
                A(f"buffer_load_dword v{vt}, {srd}, s{S_C6} offen lds")
            A(f"s_mov_b64 exec, -1\n{lb}:")
        seqv = sorted([(kp, t) for kp in range(10) for t in range(3)], key=lambda a: posB_v(*a))
        pend = []
        DS = {}
        for g, x in zip(WGAPS, dsq): DS[g] = x
        for n, i in enumerate(range(4, 10)):
            for h in range(2):
                DS[SGAPSB[2*n+h]] = (f"ds_read_b128 {vr(STG+8*(i%4)+4*h,4)}, v{V_WS} offset:{i*2048+1024*h}", ('w', i) if h else None)
        for p, (kp, t) in enumerate(seqv):
            if p == BB1:
                lg.need(('mw', 2)); A("s_barrier")
                for n, x in enumerate(read_mem_frags(A, lg, BNOW)):
                    assert BB1 + n not in DS
                    DS[BB1+n] = x
            kind, x = wloc(p)
            if kind == 'lds': lg.need(('w', x))
            if kp >= 3: lg.need(('m', kp))
            smf(A, ACC+4*t, MOP+4*kp, wreg(p))
            if p in DS: lg.ds(*DS[p])
            if p == 25:
                a, b = ACC, ACC+4
                pend += [f"v_permlane32_swap_b32 v{a+r}, v{b+r}" for r in range(4)]
                pend += [f"v_pk_add_f32 {vr(a,2)}, {vr(a,2)}, {vr(b,2)}\nv_pk_add_f32 {vr(a+2,2)}, {vr(a+2,2)}, {vr(b+2,2)}"]
            if pend: A(pend.pop(0))
        assert not pend
        A(f"v_cvt_pk_bf16_f32 v{ACC+4}, v{ACC}, v{ACC+1}\nv_cvt_pk_bf16_f32 v{ACC+5}, v{ACC+2}, v{ACC+3}")
        lg.ds(f"ds_write_b64 v{V_TW}, {vr(ACC+4,2)} offset:{L_T}")
        YA = [ACC+12, ACC+16, ACC+20, MOP+24, MOP+28]
        c = ACC + 8
        A(f"""v_permlane32_swap_b32 v{c}, v{c+2}
        v_permlane32_swap_b32 v{c+1}, v{c+3}
        v_pk_add_f32 {vr(c,2)}, {vr(c,2)}, {vr(c+2,2)}
        v_cvt_pk_bf16_f32 v{c}, v{c}, v{c+1}""")
        lg.ds(f"ds_write_b32 v{V_X1}, v{c} offset:{L_T+256}")
        for i in range(8): A(f"v_mov_b32 v{MOP+24+i}, 0")
        lg.all(); A("s_barrier")
        H(hooks, 'stamp', A, 2)
        for kk in range(6):
            for q in range(2):
                lg.ds(f"ds_read_b64_tr_b16 {vr(MOP+4*kk+2*q,2)}, v{V_TR} offset:{L_T + kk*256 + q*32}", ('v', kk))
        def yepi(pr):
            a = YA[pr]
            return [f"v_cvt_pk_bf16_f32 v{a}, v{a}, v{a+1}", f"v_cvt_pk_bf16_f32 v{a+1}, v{a+2}, v{a+3}",
                    f"v_and_or_b32 v{a}, v{a}, -2, s{S_TAG}\n" + bst(2, a, V_X2, YSO[pr//2], (pr % 2)*2048, LF)]
        pend = []
        seqy = sorted([(posB_o(pr, kk), pr, kk) for pr in range(5) for kk in range(6)])
        for p, pr, kk in seqy:
            kind, x = wloc(p)
            if kind == 'lds': lg.need(('w', x))
            lg.need(('v', kk))
            smf(A, YA[pr], MOP+4*kk, wreg(p))
            if p in DS: lg.ds(*DS[p])
            if p == 43: pend += yepi(0) + yepi(1)
            if p == 50: pend += yepi(2)
            if p == 56: pend += yepi(3)
            if pend: A(pend.pop(0))
        for o in pend + yepi(4): A(o)
        H(hooks, 'stamp', A, 3)
        if BTOUCH:
            if not BTEARLY: btouch(MOP)
            H(hooks, 'b_peek', A)
            A(f"s_add_u32 s{S_C4}, s{S_C4}, {SEG_U}\ns_add_u32 s{S_C5}, s{S_C5}, {SEG_QKV}\ns_add_u32 s{S_C6}, s{S_C6}, {SEG_QKV}")
        next_step(A)
        A(f"""s_cmp_lt_u32 s{S_STEP}, {NSEG}
        s_cbranch_scc1 b_loop{ver}
        s_branch b_fin""")
    A("b_fin:")
    H(hooks, 'final', A)
    A(f"s_branch {hooks['next_ab']}")

GREP = int(os.environ.get('GREP', '4'))
GPRE = int(os.environ.get('GPRE', '2'))
GGAP = int(os.environ.get('GGAP', '4'))
PPIPE = int(os.environ.get('PPIPE', '2'))
GMODE = os.environ.get('GMODE', 'load')
QREJ = int(os.environ.get('QREJ', '1'))
GLOOPGAP = int(os.environ.get('GLOOPGAP', '0'))

def role_R(A, exitlab, s_dbg, hooks, slow_too=True):
    w = S_WAVE
    LU, LY = 0, 98304
    VL, VIDX, VT, VG, VM, VTM, VU, VY = 1, V_IDX, 2, 3, 4, 5, 6, 7
    A(f"""v_lshlrev_b32 v{VL}, 4, v0
    s_mov_b32 s{S_HI}, 0xff00ff00
    s_mov_b32 s{S_HI+1}, 0xff00ff00
    v_mov_b32 v{VIDX}, 0x4444
    v_mov_b32 v{VT}, 0xeeee
    v_cndmask_b32 v{VIDX}, v{VIDX}, v{VT}, {sr(S_HI,2)}
    s_mov_b32 s{S_SEL0}, 0x00003f80
    s_mov_b32 s{S_SEL1}, 0x3f800000
    s_lshl_b32 s{S_CUR}, s{S_GRP}, 18
    s_add_u32 s{S_CUR}, s{S_CUR}, {LBASE}
    s_mov_b32 s{S_TAG}, 0
    s_mov_b32 s{S_STEP}, 0
    s_mov_b32 s{S_EVEN}, 0x55555555
    s_mov_b32 s{S_EVEN+1}, 0x55555555
    s_lshl_b32 s{S_T}, s{S_HL}, 2
    s_add_u32 s{S_T}, s{S_T}, s{w}
    s_mul_i32 s{S_T}, s{S_T}, 6144
    s_add_u32 s{S_T}, s{S_T}, s{S_CUR}
    s_add_u32 s{S_T}, s{S_T}, {P_OFF}
    s_add_u32 s{S_T+1}, s{S_T}, 3072""")
    for i in range(4): A(f"v_mov_b32 v{20+i}, -1")
    for i in range(6): A(bst(4, 20, VL, S_T + i//3, (i % 3)*1024, 'sc1'))
    A(f"""s_cmp_ge_u32 s{w}, 2
    s_cbranch_scc1 r_x""")
    S_UGc, S_UDc, S_ULc, S_LATE = S_MSK+8, S_MSK+9, S_MSK+10, S_MSK+12
    A(f"""s_mul_i32 s{S_UGc}, s{S_GRP}, {8*40960}
    s_lshl_b32 s{S_T+1}, s{S_HL}, 1
    s_add_u32 s{S_T+1}, s{S_T+1}, s{w}
    s_lshl_b32 s{S_T+1}, s{S_T+1}, 11
    s_add_u32 s{S_UGc}, s{S_UGc}, s{S_T+1}
    s_add_u32 s{S_UGc}, s{S_UGc}, {WS_UF}
    s_lshl_b32 s{S_ULc}, s{w}, 14
    s_mov_b32 s{S_UDc}, 0""")
    S_GS, S_GR = S_MSK, S_MSK+4
    S_YC, S_YC2, S_PC, S_MO, S_UB, S_TAGN, S_GD = S_C1, S_C2, S_C3, S_C4, S_C5, S_C6, S_O1
    A(f"""s_load_dwordx2 {sr(S_A,2)}, s[0:1], {KA_MEM0}
    s_lshl_b32 s{S_T}, s{S_HL}, 1
    s_add_u32 s{S_T}, s{S_T}, s{w}
    s_lshr_b32 s{S_T+1}, s{S_T}, 4
    s_lshl_b32 s{S_T+1}, s{S_T+1}, 14
    s_and_b32 s{S_T+2}, s{S_T}, 15
    s_lshl_b32 s{S_T+2}, s{S_T+2}, 9
    s_add_u32 s{S_T+1}, s{S_T+1}, s{S_T+2}""")
    for k in range(NG):
        A(f"""s_xor_b32 s{S_T+2}, s{S_GRP}, {k}
        s_lshl_b32 s{S_T+2}, s{S_T+2}, 18
        s_add_u32 s{S_GS+k}, s{S_T+2}, s{S_T+1}""")
    A(f"""s_lshl_b32 s{S_T+1}, s{S_T}, 11
    s_add_u32 s{S_YC}, s{S_T+1}, s{S_CUR}
    s_add_u32 s{S_YC}, s{S_YC}, {Y_OFF}
    s_add_u32 s{S_YC2}, s{S_YC}, 40960
    s_add_u32 s{S_PC}, s{S_CUR}, {P_OFF}
    s_add_u32 s{S_O2}, s{S_PC}, 4096
    s_lshl_b32 s{S_MO}, s{S_T}, 9
    s_add_u32 s{S_MO}, s{S_MO}, s{S_CUR}
    s_add_u32 s{S_MO}, s{S_MO}, {M_OFF}
    s_mov_b32 s{S_UB}, 0
    s_mov_b32 s{S_GD}, {GSLOT}
    v_lshlrev_b32 v{VG}, 3, v0
    s_lshl_b32 s{S_T+1}, s{w}, 11
    v_add_u32 v{VU}, s{S_T+1}, v{VL}
    s_lshl_b32 s{S_T+1}, s{w}, 12
    s_add_u32 s{S_T+1}, s{S_T+1}, {LY}
    v_add_u32 v{VY}, s{S_T+1}, v{VL}""")
    t = 16
    A(f"""v_bfe_u32 v{VM}, v0, 5, 1
    v_bfe_u32 v{t}, v0, 3, 1
    v_lshl_add_u32 v{VM}, v{VM}, 1, v{t}
    v_bfe_u32 v{t}, v0, 4, 1
    v_lshl_add_u32 v{VM}, v{VM}, 1, v{t}
    v_and_b32 v{t}, 1, v0
    v_lshl_add_u32 v{VM}, v{VM}, 1, v{t}
    v_bfe_u32 v{t}, v0, 1, 2
    v_lshl_add_u32 v{VM}, v{VM}, 3, v{t}
    v_lshlrev_b32 v{VM}, 2, v{VM}
    v_cmp_eq_u32 vcc, 0, v{t}
    v_cndmask_b32 v{VTM}, 0, 1, vcc""")
    A(f"""v_bfe_u32 v{t}, v0, 1, 3
    v_mul_u32_u24 v{t}, 1280, v{t}
    v_lshrrev_b32 v{t+1}, 4, v0
    v_lshl_add_u32 v{t}, v{t+1}, 4, v{t}
    v_and_b32 v{t+1}, 1, v0
    v_lshl_add_u32 v{t}, v{t+1}, 3, v{t}
    s_lshl_b32 s{S_T}, s{S_T}, 6
    v_add_u32 v{t}, s{S_T}, v{t}
    s_waitcnt lgkmcnt(0)
    global_load_dwordx2 {vr(t+2,2)}, v{t}, {sr(S_A,2)}
    v_cndmask_b32 v{t+1}, -1, -2, {sr(S_EVEN,2)}
    v_mov_b32 v{t+4}, -1
    v_mov_b32 v{t+5}, -1
    s_waitcnt vmcnt(0)
    v_and_b32 v{t+2}, v{t+1}, v{t+2}""")
    A(bst(2, t+2, VG, S_MO, 0, 'sc1'))
    VGR = 240
    A(f"s_add_u32 s{S_T}, s{S_GS}, {GSLOT}\ns_add_u32 s{S_T+1}, s{S_GS}, 8192\ns_add_u32 s{S_T+2}, s{S_T}, 8192")
    for r in range(GREP):
        A(f"v_add_u32 v{VGR+r}, {r*GBLK}, v{VG}")
        for so in (S_GS, S_T, S_T+1, S_T+2): A(bst(2, t+4, VGR+r, so, 0, 'sc1'))
    checkin(A, s_dbg)
    H(hooks, 'r_pre', A)
    waitall(A, s_dbg, exitlab, VL, s_slow=S_SLOW, s_pol=S_POL)
    for k in range(NG): A(f"s_add_u32 s{S_GS+k}, s{S_GS+k}, s{S_POL}")
    H(hooks, 'wait_u', A, 0)
    if slow_too: A(f"s_cmp_lg_u32 s{S_SLOW}, 0\ns_cbranch_scc1 r_loop_slow")
    UR = lambda t_, hh: 32 + 32*t_ + 4*hh
    YR = lambda t_, q: 96 + 8*t_ + 4*q
    PS = lambda st, f: 112 + 20*st + 4*f
    RA = 16
    GO, GF = 24, 26
    GS = lambda st, k: 172 + 8*st + 2*k
    def upark():
        return [f"ds_write_b128 v{VU}, {vr(UR(t_,hh),4)} offset:{hh*4096+t_*1024}" for hh in range(8) for t_ in range(2)] + [f"v_xor_b32 v{VU}, 32768, v{VU}"]
    def ypark():
        for t_ in range(2):
            for q in range(2): A(f"ds_write_b128 v{VY}, {vr(YR(t_,q),4)} offset:{t_*2048+q*1024}")
        A(f"v_xor_b32 v{VY}, 8192, v{VY}")
    for ver in (['', '_slow'] if slow_too else ['']):
        LF = 'sc1' if ver else ''
        A(f"r_loop{ver}:")
        H(hooks, 'stamp', A, 0)
        lg = Lg(A)
        A(f"""s_bfe_u32 s{S_TAGM}, s{S_STEP}, 0x10001
        s_xor_b32 s{S_TAGN}, s{S_TAG}, 1
        s_xor_b32 s{S_T}, s{S_TAGM}, 1
        v_mov_b32 v{GF}, s{S_T}""")
        if XLEAD: A(f"s_sleep {XLEAD}")
        def scrub():
            for r in range(GREP if SCRUB else 0): A(bst(2, GF, VGR+r, S_GS, 0, 'sc1'))
        H(hooks, 'cached_u', A)
        if SCRPOS == 0: scrub()
        for hh in range(8):
            if SCRPOS == 2 and hh == 4: scrub()
            for t_ in range(2):
                if not NOU: A(bld(4, UR(t_, hh), VL, S_UGc, t_*1024))
            A(f"s_add_u32 s{S_UGc}, s{S_UGc}, {40960 if hh < 7 else SEG_U - 7*40960}")
        H(hooks, 'peek_u', A)
        if SCRPOS == 1: scrub()
        A("s_waitcnt vmcnt(0)"); H(hooks, 'stamp', A, 6)
        if UPARK == 0:
            for x in upark(): A(x)
        else:
            l = A.newlabel('r_up')
            A(f"s_cmp_lt_u32 s{S_STEP}, {NSEG-1}\ns_cbranch_scc1 {l}")
            for x in upark(): A(x)
            A(f"{l}:")
        if RSLEEP: A(f"s_sleep {RSLEEP}")
        shadow = None
        yl = lambda b: [bld(4, b+8*t_+4*q, VL, [S_YC, S_YC2][q], t_*1024, 'sc1') for t_ in range(2) for q in range(2)]
        yc = lambda b: [b+2*i for i in range(8)]
        if YQ == 9:
            pass
        elif not YPIPE:
            poll(A, 'ry', yl(YR(0, 0)), yc(YR(0, 0)), S_TAG, exitlab, shadow)
        else:
            Y0, Y1 = 220, YR(0, 0)
            lp, n0, jj = A.newlabel('py'), A.newlabel('py'), A.newlabel('py')
            for x in yl(Y0): A(x)
            A(f"s_sleep {YPIPE}\n{lp}:")
            for x in yl(Y1): A(x)
            tick(A, exitlab)
            A("s_waitcnt vmcnt(4)")
            check(A, yc(Y0), S_TAG, n0)
            A(f"s_branch {jj}\n{n0}:")
            for x in yl(Y0): A(x)
            A("s_waitcnt vmcnt(4)")
            check(A, yc(Y1), S_TAG, lp)
            A(f"{jj}:")
        H(hooks, 'stamp', A, 1)
        def pl(st):
            for f in range(4): A(bld(4, PS(st, f), VL, S_PC, f*1024, 'sc1'))
            A(bld(4, PS(st, 4), VL, S_O2, 0, 'sc1'))
        A(f"s_cmp_ge_u32 s{S_STEP}, {NSEG-1}\ns_cbranch_scc1 r_last")
        for st in range(PPIPE-1): pl(st)
        lg.all()
        lp, lok = A.newlabel('rp'), A.newlabel('rok')
        nx = [A.newlabel('rn') for _ in range(PPIPE)]
        for i in range(8): A(f"v_mov_b32 v{RA+i}, 0")
        A(f"{lp}:")
        for st in range(PPIPE):
            pl((st+PPIPE-1) % PPIPE)
            if st == 0: tick(A, exitlab)
            A(f"s_waitcnt vmcnt({5*(PPIPE-1)})")
            ck = [PS(st, f)+j for f in range(4) for j in (0, 2)] + [PS(st, 4)+j for j in ((1, 3) if QREJ else range(4))]
            if QREJ: check(A, [PS(st, 4), PS(st, 4)+2], S_TAG, nx[st] if st < PPIPE-1 else lp)
            ops = [f"v_bitop3_b32 v{V_X3}, v{ck[0]}, v{ck[1]}, s{S_TAG} bitop3:0x7e"]
            ops += [f"v_bitop3_b32 v{V_X3}, v{x}, v{V_X3}, s{S_TAG} bitop3:0xde" for x in ck[2:]]
            ops += [f"v_and_b32 v{V_X3}, 1, v{V_X3}", f"v_cmp_ne_u32 vcc, 0, v{V_X3}"]
            for f in range(5):
                for t_ in range(2):
                    smf(A, RA+4*t_, PS(st, f), UR(t_, 2*f) if f < 4 else YR(t_, 0))
                    A(ops.pop(0))
            for o in ops: A(o)
            A(f"s_nop {4 if QREJ else 2}\ns_cbranch_vccz {lok}")
            for i in range(8): A(f"v_mov_b32 v{RA+i}, 0")
            if st < PPIPE-1: A(f"{nx[st]}:")
            else: A(f"s_branch {lp}")
        A(f"{lok}:")
        H(hooks, 'stamp', A, 2)
        a, b = RA, RA+4
        A(f"s_mov_b64 vcc, {sr(S_EVEN,2)}")
        for r in range(4): A(f"v_permlane32_swap_b32 v{a+r}, v{b+r}")
        A(f"""v_pk_add_f32 {vr(a,2)}, {vr(a,2)}, {vr(b,2)}
        v_pk_add_f32 {vr(a+2,2)}, {vr(a+2,2)}, {vr(b+2,2)}
        v_cvt_pk_bf16_f32 v{b}, v{a}, v{a+1}
        v_cvt_pk_bf16_f32 v{b+1}, v{a+2}, v{a+3}
        v_cndmask_b32_dpp v{GO}, v{b+1}, v{b}, vcc quad_perm:[0,0,2,2] row_mask:0xf bank_mask:0xf
        s_not_b64 vcc, vcc
        v_and_or_b32 v{GO}, v{GO}, -2, s{S_TAGM}
        v_cndmask_b32_dpp v{GO+1}, v{b}, v{b+1}, vcc quad_perm:[1,1,3,3] row_mask:0xf bank_mask:0xf""")
        for r in range(GREP): A(bst(2, GO, VGR+r, S_GS, 0, 'sc1'))
        H(hooks, 'stamp', A, 3)
        ypark()
        A(f"""v_lshlrev_b32 v{GF}, 16, v{GO}
        v_and_b32 v{GF+1}, 0xffff0000, v{GO}
        v_lshlrev_b32 v{GF+2}, 16, v{GO+1}
        v_and_b32 v{GF+3}, 0xffff0000, v{GO+1}""")
        fill = upark() if UPARK else []
        def gap(n):
            k = min(len(fill), n*UPARK)
            for _ in range(k): A(fill.pop(0))
            if n and k < n*max(UPARK, 1): A(f"s_sleep {n - k//max(UPARK, 1)}")
        gap(GDELAY)
        def gl(r):
            for k in range(1, NG): A(bld(2, GS(r, k), VGR+r, S_GS+k, 0, 'sc1'))
        def gc(r, lab):
            A(f"""v_bitop3_b32 v{V_X3}, v{GS(r,1)}, v{GS(r,2)}, s{S_TAGM} bitop3:0x7e
            v_bitop3_b32 v{V_X3}, v{GS(r,3)}, v{V_X3}, s{S_TAGM} bitop3:0xde
            v_and_b32 v{V_X3}, 1, v{V_X3}
            v_cmp_ne_u32 vcc, 0, v{V_X3}
            s_cbranch_vccz {lab}""")
        lp, lj = A.newlabel('rg'), A.newlabel('rj')
        oks = [A.newlabel('rgo') for _ in range(GREP)]
        pre = min(GPRE, GREP)
        for r in range(pre):
            gl(r)
            if r < pre-1: gap(GGAP)
        for x in fill: A(x)
        for r in range(GREP):
            A(f"s_waitcnt vmcnt({(NG-1)*(min(r+pre, GREP)-1-r)})")
            gc(r, oks[r])
            if r + pre < GREP: gl(r+pre)
        A(f"{lp}:")
        gl(0); tick(A, exitlab)
        A("s_waitcnt vmcnt(0)")
        gc(0, oks[0])
        A(f"s_branch {lp}")
        for st in range(GREP):
            A(f"{oks[st]}:")
            for k in range(1, NG):
                for j in range(4):
                    A(f"v_dot2_f32_bf16 v{GF+j}, v{GS(st,k)+j//2}, s{[S_SEL0, S_SEL1][j % 2]}, v{GF+j}")
            A(f"""v_cvt_pk_bf16_f32 v{GO}, v{GF}, v{GF+2}
            v_cvt_pk_bf16_f32 v{GO+1}, v{GF+1}, v{GF+3}
            v_bfi_b32 v{GO}, v{VTM}, s{S_TAGN}, v{GO}
            v_bfi_b32 v{GO+1}, v{VTM}, s{S_TAGN}, v{GO+1}""")
            A(bst(1, GO, VM, S_MO, 0, LF)); A(bst(1, GO+1, VM, S_MO, 16, LF))
            if st < GREP-1: A(f"s_branch {lj}")
        A(f"{lj}:")
        H(hooks, 'stamp', A, 4)
        for k in range(NG): A(f"s_add_u32 s{S_GS+k}, s{S_GS+k}, s{S_GD}")
        A(f"s_sub_u32 s{S_GD}, 0, s{S_GD}")
        next_step(A)
        A(f"s_waitcnt lgkmcnt(0)\ns_barrier")
        H(hooks, 'stamp', A, 5)
        A(f"s_branch r_loop{ver}")
    A("r_last:\ns_waitcnt vmcnt(0)")
    ypark()
    A("s_waitcnt lgkmcnt(0)\ns_barrier")
    H(hooks, 'final', A)
    A(f"s_branch {hooks['next_r']}")
    A("r_x:")
    S_UG, S_UD, S_PX, S_OP, S_UR = S_C1, S_C2, S_C3, S_C4, S_C5
    A(f"""s_sub_u32 s{S_T}, s{w}, 2
    s_lshl_b32 s{S_T+1}, s{S_GRP}, 1
    s_add_u32 s{S_T+1}, s{S_T+1}, s{S_T}
    s_mul_i32 s{S_UG}, s{S_T+1}, {4*40960}
    s_lshl_b32 s{S_T+1}, s{S_HL}, 12
    s_add_u32 s{S_UG}, s{S_UG}, s{S_T+1}
    s_add_u32 s{S_UG}, s{S_UG}, {WS_UF}
    s_lshl_b32 s{S_O1}, s{S_T}, 14
    s_mov_b32 s{S_UD}, 0
    s_mov_b32 s{S_UR}, 0
    s_mul_i32 s{S_PX}, s{S_T}, 10240
    s_add_u32 s{S_PX}, s{S_PX}, s{S_CUR}
    s_add_u32 s{S_PX}, s{S_PX}, {PX_OFF}
    s_mul_i32 s{S_OP}, s{S_T}, {20*4096}
    s_lshl_b32 s{S_T+1}, s{S_HL}, 13
    s_add_u32 s{S_OP}, s{S_OP}, s{S_T+1}
    s_lshl_b32 s{S_T+1}, s{S_GRP}, 10
    s_add_u32 s{S_OP}, s{S_OP}, s{S_T+1}
    s_add_u32 s{S_OP}, s{S_OP}, {WS_OP}
    v_add_u32 v{VY}, {LY}, v{VL}""")
    checkin(A, s_dbg)
    H(hooks, 'r_pre', A)
    waitall(A, s_dbg, exitlab, VL, s_pol=S_POL)
    H(hooks, 'x_init', A)
    A("s_barrier")
    PXR, ZR, XA = 16, 64, 96
    A("rx_loop:")
    H(hooks, 'stamp', A, 0)
    A(f"""s_bfe_u32 s{S_TAG}, s{S_STEP}, 0x10002
    s_and_b32 s{S_T+2}, s{S_STEP}, 3
    s_lshl_b32 s{S_T+2}, s{S_T+2}, 15
    s_add_u32 s{S_T+2}, s{S_T+2}, s{S_PX}
    s_add_u32 s{S_T+3}, s{S_T+2}, 4096
    s_add_u32 s{S_T+4}, s{S_T+2}, 8192
    v_add_u32 v{VT}, s{S_UR}, v{VL}""")
    pxl = [bld(4, PXR+4*f, VL, S_T+2+f//4, (f % 4)*1024, 'sc1') for f in range(10)]
    pxc = [PXR+4*f for f in range(10)] + [PXR+34, PXR+38]
    def op_store():
        for t_ in range(2):
            A(bst(4, XA+16+4*t_, VL, S_OP, 0, 'sc1'))
            A(f"s_add_u32 s{S_OP}, s{S_OP}, {4096 if t_ < 1 else SEG_OP - 4096}")
    S_DONE = S_C2
    if XDEFER:
        def shadow():
            l = A.newlabel('xd')
            H(hooks, 'x_flag2', A, S_DONE)
            A(f"s_sub_u32 s{S_T}, s{S_STEP}, 1\ns_cmp_ge_u32 s{S_T}, {XDEFER}\ns_cbranch_scc1 {l}")
            op_store()
            A(f"s_waitcnt vmcnt(3)")
            check(A, pxc, S_TAG, l)
            A(f"s_branch rx_pok\n{l}:")
        poll(A, 'px', pxl, pxc, S_TAG, exitlab, shadow)
        A("rx_pok:")
    else:
        if XFPOS == 0:
            def shadow():
                l = A.newlabel('xd')
                H(hooks, 'x_flag', A)
                A(f"s_waitcnt vmcnt(1)")
                check(A, pxc, S_TAG, l)
                A(f"s_branch rx_pok\n{l}:")
            poll(A, 'px', pxl, pxc, S_TAG, exitlab, shadow)
            A("rx_pok:")
        else:
            poll(A, 'px', pxl, pxc, S_TAG, exitlab)
            if not XFLAGNOW and XFPOS == 1: H(hooks, 'x_flag', A)
    H(hooks, 'stamp', A, 1)
    seq = [(f, t_) for f in range(10) for t_ in range(4)]
    lg = Lg(A)
    def zrd(n):
        f, t_ = seq[n]
        if f < 8: lg.ds(f"ds_read_b128 {vr(ZR+4*(n%8),4)}, v{VT} offset:{f*4096+t_*1024}", n)
        else: lg.ds(f"ds_read_b128 {vr(ZR+4*(n%8),4)}, v{VY} offset:{t_*2048+(f-8)*1024}", n)
    for n in range(7): zrd(n)
    for n, (f, t_) in enumerate(seq):
        if n + 7 < 40: zrd(n+7)
        if XFPOS > 1 and n == XFPOS: H(hooks, 'x_flag', A)
        lg.need(n)
        A(f"v_mfma_f32_16x16x32_bf16 {vr(XA+4*t_,4)}, {vr(ZR+4*(n%8),4)}, {vr(PXR+4*f,4)}, {'0' if f == 0 else vr(XA+4*t_,4)}")
    A(f"""v_xor_b32 v{VY}, 8192, v{VY}
    s_xor_b32 s{S_UR}, s{S_UR}, 32768""")
    for i in range(8): A(f"v_cvt_pk_bf16_f32 v{XA+16+i}, v{XA+2*i}, v{XA+2*i+1}")
    if XDEFER:
        l = A.newlabel('xd')
        A(f"s_mov_b32 s{S_DONE}, s{S_STEP}\ns_cmp_lt_u32 s{S_STEP}, {XDEFER}\ns_cbranch_scc1 {l}")
        op_store()
        A(f"s_add_u32 s{S_DONE}, s{S_DONE}, 1\n{l}:")
    else: op_store()
    H(hooks, 'stamp', A, 2)
    A(f"""s_add_u32 s{S_STEP}, s{S_STEP}, 1
    s_waitcnt vmcnt(0)""")
    H(hooks, 'stamp', A, 4)
    l = A.newlabel('rx_nf')
    if not XFLAGNOW: A(f"s_cmp_lt_u32 s{S_STEP}, {NSEG-2}\ns_cbranch_scc1 {l}")
    H(hooks, 'x_flag', A)
    A(f"s_cmp_ge_u32 s{S_STEP}, {NSEG}\ns_cbranch_scc1 rx_fin\n{l}:")
    H(hooks, 'stamp', A, 3)
    A("s_barrier\ns_branch rx_loop\nrx_fin:")
    H(hooks, 'final', A)
    A(f"s_branch {hooks['next_r']}")
```

```python
from common import *
from r_ln import hexf
import os
SPS = int(os.environ.get('SPS', '2'))
OUTS = int(os.environ.get('OUTS', '1'))
WSPW = int(os.environ.get('WSPW', '1'))
LNS = int(os.environ.get('LNS', '16'))
SXL = int(os.environ.get('SXL', '1'))
WINS = int(os.environ.get('WINS', '1'))
SPW0 = int(os.environ.get('SPW0', '0'))
OK1 = int(os.environ.get('OK1', '2'))
LNS2 = int(os.environ.get('LNS2', '2'))
from r_rec import Lg, WS_OP, SEG_OP, srd, tick, wait_flags, put_flag, S_WAVE
from r_proj import gelu_ops, GC0, GC1, SEG_Z
from r_u import load_w_rows
WS_SX = WS_STAT + MB
SEG_SX = 6*256
W = S_WAVE
TSH = [None]
def TS(A, i, vt):
    if TSH[0]: TSH[0](A, i, vt)

def bl(n, dst, va, so, off=0, fl=''):
    nm = {1: 'dword', 2: 'dwordx2', 4: 'dwordx4'}[n]
    return f"buffer_load_{nm} {vr(dst,n)}, v{va}, {srd}, {so} offen offset:{off} {fl}"
def bs(n, src, va, so, off=0, fl=''):
    nm = {1: 'dword', 2: 'dwordx2', 4: 'dwordx4'}[n]
    return f"buffer_store_{nm} {vr(src,n)}, v{va}, {srd}, {so} offen offset:{off} {fl}"

def load_wout(A, s_dq, s_t, vt):
    sw, sb = s_t, s_t+2
    tr, t = vt+2, vt+3
    A(f"""s_load_dwordx2 {sr(sw,2)}, s[0:1], {KA_WOUT}
    s_mul_i32 s{sb}, s{W}, {192*1280}
    s_mul_i32 s{sb+1}, s{s_dq}, 320
    s_add_u32 s{sb}, s{sb}, s{sb+1}
    v_lshrrev_b32 v{t}, 4, v0
    v_lshlrev_b32 v{tr}, 3, v{t}
    v_bfe_u32 v{t}, v0, 2, 2
    v_add_u32 v{tr}, v{tr}, v{t}
    v_mul_u32_u24 v{tr}, 320, v{tr}
    v_and_b32 v{t}, 3, v0
    v_lshl_add_u32 v{tr}, v{t}, 4, v{tr}
    s_waitcnt lgkmcnt(0)""")
    add64(A, sw, sw, f"s{sb}")
    A(f"s_mul_i32 s{sb}, s{W}, 40960\nv_add_u32 v{tr}, s{sb}, v{tr}")
    def reads(A, kk, off):
        for dt in range(10):
            for q in range(2):
                A(f"ds_read_b64_tr_b16 {ar(24*dt+4*kk+2*q,2)}, v{tr} offset:{off + q*4*320 + (dt>>1)*64 + (dt&1)*8}")
    load_w_rows(A, sw, 1280, 20, 192, 32, 4, sb, 0, sb+1, vt, reads)

def out_task(A, s_task, f_gy, exitlab, done, outf='', s_dry=None, f_win=None):
    A(f"""s_load_dwordx2 s[20:21], s[0:1], {KA_OUT}
    s_lshr_b32 s12, s{s_task}, 2
    s_and_b32 s13, s{s_task}, 3
    s_mul_i32 s14, s12, {SEG_Z}
    s_mul_i32 s15, s{W}, 6144
    s_add_u32 s14, s14, s15
    s_add_u32 s14, s14, {WS_GY}
    s_add_u32 s15, s14, 4096
    s_add_u32 s16, s14, 24576
    s_add_u32 s17, s16, 4096
    v_lshlrev_b32 v2, 4, v0
    v_bfe_u32 v3, v0, 2, 2
    v_lshlrev_b32 v3, 3, v3
    v_and_b32 v4, 3, v0
    v_add_u32 v3, v3, v4
    v_mul_u32_u24 v3, 1280, v3
    v_lshrrev_b32 v4, 4, v0
    v_lshl_add_u32 v3, v4, 4, v3
    s_mul_i32 s18, s12, 40960
    s_mul_i32 s19, s13, 320
    s_add_u32 s18, s18, s19
    s_and_b32 s22, s{W}, 1
    s_lshr_b32 s23, s{W}, 1
    s_mul_i32 s19, s22, 5120
    s_add_u32 s18, s18, s19
    s_lshl_b32 s19, s23, 6
    s_add_u32 s18, s18, s19
    s_mul_i32 s19, s{W}, 20480
    v_add_u32 v5, s19, v2
    s_lshl_b32 s19, s22, 10
    s_lshl_b32 s24, s23, 12
    s_add_u32 s19, s19, s24
    v_add_u32 v6, s19, v2
    v_add_u32 v7, 40960, v6
    s_lshr_b32 s19, s12, 2
    s_mul_i32 s19, s19, {6*128}
    s_add_u32 s19, s19, {f_gy}
    v_min_u32 v8, 5, v0
    v_lshlrev_b32 v8, 7, v8
    v_add_u32 v8, s19, v8
    s_mov_b32 s19, 1
    s_waitcnt lgkmcnt(0)""")
    add64(A, 20, 20, 's18')
    A(f"""s_mul_i32 s18, s12, 40960
    s_mul_i32 s25, s13, 5120
    s_add_u32 s18, s18, s25
    s_lshl_b32 s25, s23, 10
    s_add_u32 s18, s18, s25
    s_lshl_b32 s25, s22, 6
    s_add_u32 s18, s18, s25
    s_add_u32 s18, s18, {WS_H}
    s_add_u32 s26, s18, 4096
    v_bfe_u32 v11, v0, 3, 1
    v_mul_u32_u24 v11, 20480, v11
    v_bfe_u32 v12, v0, 2, 1
    v_lshl_add_u32 v11, v12, 7, v11
    v_and_b32 v12, 3, v0
    v_lshl_add_u32 v11, v12, 4, v11
    v_bfe_u32 v12, v0, 4, 1
    v_lshl_add_u32 v11, v12, 9, v11
    v_bfe_u32 v12, v0, 5, 1
    v_lshl_add_u32 v11, v12, 3, v11""")
    GB, ACC_, HR, F = 184, 64, 48, 160
    A(f"s_cmp_eq_u32 s{s_dry}, 3\ns_cbranch_scc1 out_hok")
    A(f"""s_and_b32 s25, s12, 1
    s_mul_i32 s25, s25, {12*128}
    s_add_u32 s25, s25, {f_win}
    v_mov_b32 v10, s25
    s_add_u32 s25, s12, 1""")
    wait_flags(A, 10, 9, 25, exitlab, sleep=OUTS)
    for i in range(3):
        for hb in range(2): A(bl(2, HR+4*i+2*hb, 11, ['s18', 's18', 's26'][i], (2048*i) % 4096 + 256*hb))
    A(f"s_waitcnt vmcnt(0)\ns_cmp_eq_u32 s{s_dry}, 1\ns_cbranch_scc1 {done}\nout_hok:\ns_barrier")
    for i in range(3):
        for j in range(4): A(f"v_lshlrev_b32 v{F+8*i+2*j}, 16, v{HR+4*i+j}\nv_and_b32 v{F+8*i+2*j+1}, 0xffff0000, v{HR+4*i+j}")
    wait_flags(A, 8, 9, 19, exitlab, sleep=OUTS)
    TS(A, 13, 10)
    for k in range(6):
        for rt in range(2): A(bl(4, GB+24*rt+4*k, 2, f"s{14+2*rt+k//4}", 1024*(k % 4)))
    for k in range(6):
        A(f"s_waitcnt vmcnt({2*(5-k)})")
        for dt in (range(10) if k < OK1 else []):
            for rt in range(2):
                a = vr(ACC_+8*dt+4*rt, 4)
                A(f"v_mfma_f32_16x16x32_bf16 {a}, {ar(24*dt+4*k,4)}, {vr(GB+24*rt+4*k,4)}, {'0' if k == 0 else a}")
    for dt in range(10):
        for k in range(OK1, 6):
            for rt in range(2):
                a = vr(ACC_+8*dt+4*rt, 4)
                A(f"v_mfma_f32_16x16x32_bf16 {a}, {ar(24*dt+4*k,4)}, {vr(GB+24*rt+4*k,4)}, {a}")
            wr = {OK1+1: 0, 5: 1} if OK1 < 4 else {4: None, 5: 2}
            if dt >= 1 and wr.get(k) is not None:
                for rt in ((wr[k],) if wr[k] < 2 else (0, 1)): A(f"ds_write_b128 v5, {vr(ACC_+8*(dt-1)+4*rt,4)} offset:{2048*(dt-1)+1024*rt}")
    for rt in range(2): A(f"ds_write_b128 v5, {vr(ACC_+72+4*rt,4)} offset:{2048*9+1024*rt}")
    TS(A, 14, 10)
    A("s_waitcnt lgkmcnt(0)\ns_barrier")
    R = 64
    def rd(i):
        for ww in range(4):
            for ab in range(2):
                A(f"ds_read_b128 {vr(R+32*i+8*ww+4*ab,4)}, v{6+ww//2} offset:{(ww%2)*20480 + 8192*i + 2048*ab}")
    def fin(i):
        for ww in range(4):
            for j in range(4): A(f"v_pk_add_f32 {vr(F+8*i+2*j,2)}, {vr(F+8*i+2*j,2)}, {vr(R+32*i+8*ww+2*j,2)}")
        for j in range(4): A(f"v_cvt_pk_bf16_f32 v{48+4*i+j}, v{F+8*i+2*j}, v{F+8*i+2*j+1}")
        A(f"global_store_dwordx4 v3, {vr(48+4*i,4)}, s[20:21] offset:{128*i} {outf}")
    rd(0); rd(1)
    A("s_waitcnt lgkmcnt(8)"); fin(0)
    A("s_waitcnt lgkmcnt(0)")
    l = A.newlabel('o2')
    A(f"s_cmp_ge_u32 s{W}, 2\ns_cbranch_scc1 {l}")
    rd(2); fin(1)
    A("s_waitcnt lgkmcnt(0)"); fin(2)
    A(f"s_branch {done}\n{l}:")
    fin(1)
    A(f"s_branch {done}")

def ln2_loop(A, s_j, ncu, f_x, s_flag, s_pol, exitlab):
    VO, VX, VS, VF, VLW, VLR, T0, T1, T2, T3 = 2, 3, 4, 5, 6, 7, 8, 9, 10, 11
    OPR, XR, F, PK = 16, 64, 80, 104
    sx, so, sh, sn, ne, s0, s1 = 12, 14, 15, 16, 17, 18, 19
    A(f"""s_load_dwordx2 s[26:27], s[0:1], {KA_X}
    v_and_b32 v{T0}, 7, v0
    v_bfe_u32 v{T1}, v0, 3, 1
    v_lshrrev_b32 v{T2}, 4, v0
    s_and_b32 s{sn}, s{s_j}, 1
    s_lshl_b32 s{sn}, s{sn}, 7
    s_lshl_b32 s{ne}, s{W}, 13
    s_add_u32 s{sn}, s{sn}, s{ne}
    v_lshlrev_b32 v{VO}, 4, v{T0}
    v_lshl_add_u32 v{VO}, v{T2}, 8, v{VO}
    v_lshl_add_u32 v{VO}, v{T1}, 12, v{VO}
    v_add_u32 v{VO}, s{sn}, v{VO}
    v_and_b32 v13, 1023, v{VO}
    v_lshrrev_b32 v14, 12, v{VO}
    v_lshl_add_u32 v13, v14, 10, v13
    v_mul_u32_u24 v{VX}, 1280, v{T0}
    v_lshl_add_u32 v{VX}, v{T2}, 3, v{VX}
    v_lshl_add_u32 v{VX}, v{T1}, 6, v{VX}
    s_lshl_b32 s{sn}, s{W}, 7
    v_add_u32 v{VX}, s{sn}, v{VX}
    v_bfe_u32 v{T3}, v0, 2, 1
    v_mul_u32_u24 v{VS}, 20480, v{T3}
    v_lshl_add_u32 v{VS}, v{T2}, 8, v{VS}
    v_and_b32 v{T3}, 3, v0
    v_lshl_add_u32 v{VS}, v{T3}, 4, v{VS}
    v_lshl_add_u32 v{VS}, v{T1}, 10, v{VS}
    s_and_b32 s{sn}, s{s_j}, 3
    s_lshl_b32 s{sn}, s{sn}, 6
    s_lshl_b32 s{ne}, s{W}, 11
    s_add_u32 s{sn}, s{sn}, s{ne}
    v_add_u32 v{VS}, s{sn}, v{VS}
    v_lshlrev_b32 v{VLR}, 5, v{T0}
    s_lshl_b32 s{sn}, s{W}, 3
    v_add_u32 v{VLW}, s{sn}, v{VLR}
    s_bfe_u32 s{sn}, s{s_j}, 0x10001
    s_lshl_b32 s{sn}, s{sn}, 6
    s_add_u32 s{sn}, s{sn}, {f_x}
    s_add_u32 s{sn}, s{sn}, s{s_pol}
    v_min_u32 v{VF}, 39, v0
    v_lshlrev_b32 v{VF}, 7, v{VF}
    v_add_u32 v{VF}, s{sn}, v{VF}
    s_mov_b32 s{s0}, 0x00003f80
    s_mov_b32 s{s1}, 0x3f800000
    s_cmp_lt_u32 s{W}, 2
    s_cselect_b64 s[28:29], -1, 0
    s_waitcnt lgkmcnt(0)
    ln2_loop:
    s_mul_i32 s{sh}, s{s_j}, 10240""")
    add64(A, sx, 26, f"s{sh}")
    A(f"""s_lshr_b32 s{so}, s{s_j}, 1
    s_mul_i32 s{sh}, s{so}, 20480
    s_add_u32 s{sh}, s{sh}, {WS_H}
    s_mul_i32 s{so}, s{so}, {SEG_OP//2}
    s_add_u32 s{so}, s{so}, {WS_OP}
    s_lshr_b32 s{ne}, s{s_j}, 2
    s_mul_i32 s{sn}, s{ne}, {SEG_XN}
    s_add_u32 s{sn}, s{sn}, {WS_HNF}
    s_add_u32 s{ne}, s{ne}, 1""")
    for j in range(4): A(f"v_mov_b32 v{XR+8+j}, 0")
    for j in range(16): A(f"v_mov_b32 v{OPR+32+j}, 0")
    l1, l2, l3, l4 = [A.newlabel('l2') for _ in range(4)]
    def xl(i):
        for hb in range(2): A(f"global_load_dwordx2 {vr(XR+4*i+2*hb,2)}, v{VX}, {sr(sx,2)} offset:{512*i+32*hb}")
    xl(0); xl(1)
    A(f"s_cmp_ge_u32 s{W}, 2\ns_cbranch_scc1 {l1}"); xl(2); A(f"{l1}:")
    A(f"s_cmp_lg_u32 s{W}, 0\ns_cbranch_scc1 {l2}")
    A(f"s_sub_u32 s20, s{ne}, 1")
    wait_flags(A, VF, T0, 20, exitlab, sleep=LNS)
    wait_flags(A, VF, T0, ne, exitlab, sleep=LNS2)
    TS(A, 8, 12)
    A(f"{l2}:\ns_waitcnt vmcnt(0)")
    for i in range(12): A(f"v_lshlrev_b32 v{F+2*i}, 16, v{XR+i}\nv_and_b32 v{F+2*i+1}, 0xffff0000, v{XR+i}")
    A(f"s_add_u32 s20, s{so}, 32768\ns_add_u32 s21, s{so}, 65536\ns_barrier")
    A(f"s_cmp_ge_u32 s{W}, 2\ns_cbranch_scc1 {l3}")
    for g in range(4): A(bl(4, OPR+32+4*g, VO, 's21', 1024*g))
    A(f"{l3}:")
    for i in range(2):
        for g in range(4): A(bl(4, OPR+16*i+4*g, VO, [f"s{so}", 's20'][i], 1024*g))
    A(f"v_mov_b32 v{T0}, 0\nv_mov_b32 v{T1}, 0")
    for n, i in enumerate((2, 0, 1)):
        A(f"s_waitcnt vmcnt({(8, 4, 0)[n]})")
        for g in range(4):
            for j in range(8):
                A(f"v_dot2_f32_bf16 v{F+8*i+j}, v{OPR+16*i+4*g+j//2}, s{s0+j%2}, v{F+8*i+j}")
        for j in range(4): A(f"v_cvt_pk_bf16_f32 v{PK+4*i+j}, v{F+8*i+2*j}, v{F+8*i+2*j+1}")
        for j in range(4): A(f"v_lshlrev_b32 v{F+8*i+2*j}, 16, v{PK+4*i+j}\nv_and_b32 v{F+8*i+2*j+1}, 0xffff0000, v{PK+4*i+j}")
        for j in range(8): A(f"v_add_f32 v{T0}, v{T0}, v{F+8*i+j}\nv_fmac_f32 v{T1}, v{F+8*i+j}, v{F+8*i+j}")
    TS(A, 9, 12)
    A(f"""v_add_f32_dpp v{T0}, v{T0}, v{T0} row_ror:8 row_mask:0xf bank_mask:0xf
    v_add_f32_dpp v{T1}, v{T1}, v{T1} row_ror:8 row_mask:0xf bank_mask:0xf
    v_mov_b32 v{T2}, v{T0}
    v_mov_b32 v{T3}, v{T1}
    v_permlane16_swap_b32 v{T0}, v{T2}
    v_permlane16_swap_b32 v{T1}, v{T3}
    v_pk_add_f32 {vr(T0,2)}, {vr(T0,2)}, {vr(T2,2)}
    v_mov_b32 v{T2}, v{T0}
    v_mov_b32 v{T3}, v{T1}
    v_permlane32_swap_b32 v{T0}, v{T2}
    v_permlane32_swap_b32 v{T1}, v{T3}
    v_pk_add_f32 {vr(T0,2)}, {vr(T0,2)}, {vr(T2,2)}
    ds_write_b64 v{VLW}, {vr(T0,2)}""")
    A(f"""s_waitcnt lgkmcnt(0)
    s_barrier
    ds_read_b128 v[120:123], v{VLR}
    ds_read_b128 v[124:127], v{VLR} offset:16
    s_waitcnt lgkmcnt(0)
    v_pk_add_f32 v[120:121], v[120:121], v[122:123]
    v_pk_add_f32 v[124:125], v[124:125], v[126:127]
    v_pk_add_f32 v[120:121], v[120:121], v[124:125]
    v_mul_f32 v{T0}, {hexf(1.0/640)}, v120
    v_mul_f32 v{T1}, {hexf(1.0/640)}, v121
    v_fma_f32 v{T1}, -v{T0}, v{T0}, v{T1}
    v_max_f32 v{T1}, 0, v{T1}
    v_add_f32 v{T1}, {hexf(1e-5)}, v{T1}
    v_rsq_f32 v{T1}, v{T1}
    v_mul_f32 v{T0}, v{T0}, v{T1}
    s_add_u32 s20, s{sn}, 8192
    s_add_u32 s21, s{sn}, 16384""")
    l5 = A.newlabel('l2')
    for i in range(3):
        if i == 2: A(f"s_cmp_ge_u32 s{W}, 2\ns_cbranch_scc1 {l5}")
        for j in range(8): A(f"v_fma_f32 v{F+8*i+j}, v{F+8*i+j}, v{T1}, -v{T0}")
        for j in range(4): A(f"v_cvt_pk_bf16_f32 v{OPR+4*i+j}, v{F+8*i+2*j}, v{F+8*i+2*j+1}")
        A(bs(4, OPR+4*i, VS, [f"s{sn}", 's20', 's21'][i], 0, 'sc1'))
    l6 = A.newlabel('l2')
    A(f"s_add_u32 s21, s{sh}, 16384")
    A(bs(4, PK+8, 13, 's21', 0, 'sc1'))
    A(f"{l5}:\ns_add_u32 s20, s{sh}, 8192")
    A(bs(4, PK, 13, f"s{sh}", 0, 'sc1')); A(bs(4, PK+4, 13, 's20', 0, 'sc1'))
    TS(A, 10, 12)
    A(f"s_waitcnt vmcnt(0)\ns_barrier\ns_cmp_lg_u32 s{W}, 0\ns_cbranch_scc1 {l6}")
    put_flag(A, s_flag, ne, T0)
    A(f"""{l6}:
    s_add_u32 s{s_j}, s{s_j}, {ncu}
    s_cmp_lt_u32 s{s_j}, {4*NSEG}
    s_cbranch_scc1 ln2_loop""")

WW = 96
def win_load(A, s_w, s_t, vt):
    tr, t = vt+2, vt+3
    A(f"""v_lshrrev_b32 v{t}, 4, v0
    v_lshlrev_b32 v{tr}, 2, v{t}
    v_bfe_u32 v{t}, v0, 2, 2
    v_add_u32 v{tr}, v{tr}, v{t}
    v_lshlrev_b32 v{tr}, 6, v{tr}
    v_and_b32 v{t}, 3, v0
    v_lshl_add_u32 v{tr}, v{t}, 4, v{tr}
    s_mul_i32 s{s_t}, s{W}, 40960
    v_add_u32 v{tr}, s{s_t}, v{tr}""")
    def reads(A, r, off):
        for ksl in range(5):
            for ab in range(2):
                for q in range(2):
                    A(f"ds_read_b64_tr_b16 {vr(WW+4*((5*r+ksl)*2+ab)+2*q,2)}, v{tr} offset:{off + ksl*2048 + q*1024 + 8*ab}")
    load_w_rows(A, s_w, 3072, 4, 640, 160, 4, s_t, 0, s_t+1, vt, reads)

def win_loop(A, name, z2, s_seg, s_unit, f_ln, s_flag, s_pol, exitlab, nsets=6, s_slow=37):
    VL, VD, VC0, VF, VF2, T0, T1, VST = 2, 3, 4, 5, 6, 7, 8, 9
    ACC, XR, GT, ST, PKD = 16, 32, 48, 64, 80
    sx, so, sdm, ne, c1, sx2 = 12, 13, 14, 15, 16, 17
    LST = 40960
    A(f"""v_lshlrev_b32 v{VL}, 4, v0
    s_mul_i32 s{sdm}, s{W}, 5120
    v_add_u32 v{VD}, s{sdm}, v{VL}
    v_mov_b32 v{VC0}, {hexf(GC0)}
    s_mov_b32 s{c1}, {hexf(GC1)}
    v_and_b32 v{VF}, 3, v0
    v_lshlrev_b32 v{VF}, 7, v{VF}
    v_add_u32 v{VF}, {f_ln}, v{VF}
    v_add_u32 v{VF}, s{s_pol}, v{VF}
    s_lshl_b32 s18, s{s_unit}, 2
    s_add_u32 s18, s18, s{W}
    s_lshl_b32 s18, s18, {11 if z2 else 10}
    s_add_u32 s18, s18, {WS_Z2 if z2 else WS_Z1}
    s_barrier
    {name}_loop:
    s_mul_hi_u32 s19, s{s_seg}, {-(-(1<<32)//nsets)}
    s_mul_i32 s19, s19, {nsets}
    s_sub_u32 s19, s{s_seg}, s19
    s_lshl_b32 s19, s19, 9
    v_add_u32 v{VF2}, s19, v{VF}
    s_add_u32 s{ne}, s{s_seg}, 1
    s_mul_i32 s{sx}, s{s_seg}, {SEG_XN}
    s_add_u32 s{sx}, s{sx}, {WS_HNF}
    s_mul_i32 s{so}, s{s_seg}, {SEG_Z}
    s_add_u32 s{so}, s{so}, s18""")
    if z2 and SXL:
        A(f"v_lshlrev_b32 v{VST}, 5, v0\ns_mul_i32 s19, s{s_seg}, {SEG_SX}\ns_add_u32 s19, s19, {WS_SX}")
        A(bl(1, T1, VST, 's19', 0, 'sc1'))
    wait_flags(A, VF2, T0, ne, exitlab, sleep=WINS)
    TS(A, 8, 12)
    for rt in range(2):
        for i in range(5):
            if i % 4 == 0: A(f"s_add_u32 m0, s{sdm}, {rt*20480 + (i//4)*4096}\ns_add_u32 s{sx2}, s{sx}, {rt*20480 + (i//4)*4096}")
            A(f"buffer_load_dwordx4 v{VD}, {srd}, s{sx2} offen offset:{(i%4)*1024} lds")
    A("s_waitcnt vmcnt(5)\ns_barrier")
    TS(A, 9, 12)
    def epi_ops(rt):
        regs = [ACC+8*rt+i for i in range(8)]
        g = GT + 8*rt
        ops = gelu_ops(regs, g, VC0, c1)
        if not z2:
            ops += [f"v_cvt_pk_bf16_f32 v{PKD+4*rt+j}, v{g+2*j}, v{g+2*j+1}" for j in range(4)]
            if rt: ops += [f"s_add_u32 s{so}, s{so}, 24576"]
            ops += [bs(4, PKD+4*rt, VL, f"s{so}", 0, 'sc1')]
        else:
            s_ = ST + 8*rt
            ops += [f"v_add_f32 v{s_+i}, v{g+i}, v{g+4+i}" for i in range(4)]
            ops += [f"v_mul_f32 v{s_+4+i}, v{g+i}, v{g+i}" for i in range(4)]
            ops += [f"v_fmac_f32 v{s_+4+i}, v{g+4+i}, v{g+4+i}" for i in range(4)]
            for sh in (8, 4, 2, 1):
                ops += [f"v_add_f32_dpp v{s_+i}, v{s_+i}, v{s_+i} row_ror:{sh} row_mask:0xf bank_mask:0xf" for i in range(8)]
        return ops
    NP = 4
    for n in range(NP-1): A(f"ds_read_b128 {vr(XR+4*n,4)}, v{VL} offset:{n*1024}")
    pend = []
    for n in range(40):
        rt, ks = divmod(n, 20)
        m = n + NP - 1
        if m == 20: A("s_waitcnt vmcnt(0)\ns_barrier")
        if m < 40: A(f"ds_read_b128 {vr(XR+4*(m%NP),4)}, v{VL} offset:{m*1024}")
        A(f"s_waitcnt lgkmcnt({min(NP-1, 39-n)})")
        if n == 22: pend = epi_ops(0)
        for ab in range(2):
            a = vr(ACC+8*rt+4*ab, 4); w = vr(WW+4*(ks*2+ab), 4); x = vr(XR+4*(n % NP), 4)
            o1, o2 = (x, w) if z2 else (w, x)
            A(f"v_mfma_f32_16x16x32_bf16 {a}, {o1}, {o2}, {'0' if ks == 0 else a}")
            for _ in range(2):
                if pend: A(pend.pop(0))
    TS(A, 10, 12)
    for o in pend + epi_ops(1): A(o)
    TS(A, 11, 12)
    if z2:
        A(f"""s_lshl_b32 s19, s{W}, 8
        s_add_u32 s19, s19, {LST}
        v_lshlrev_b32 v{T0}, 2, v0
        v_add_u32 v{T0}, s19, v{T0}
        s_mov_b32 exec_lo, 0x00010001
        s_mov_b32 exec_hi, 0x00010001""")
        for i in range(4): A(f"ds_write_b128 v{T0}, {vr(ST+4*i,4)} offset:{16*i}")
        A(f"""s_mov_b64 exec, -1
        v_lshlrev_b32 v{VST}, 2, v0
        s_mul_i32 s19, s{s_seg}, {SEG_SX}
        s_add_u32 s19, s19, {WS_SX}
        s_lshl_b32 s20, s{s_unit}, 8
        s_add_u32 s20, s20, s19
        s_waitcnt lgkmcnt(0)
        s_barrier""")
        l = A.newlabel('wz')
        A(f"s_cmp_lg_u32 s{W}, 0\ns_cbranch_scc1 {l}")
        for i in range(4): A(f"ds_read_b32 v{ST+i}, v{VST} offset:{LST+256*i}")
        A(f"""s_waitcnt lgkmcnt(0)
        v_add_f32 v{ST}, v{ST}, v{ST+1}
        v_add_f32 v{ST+2}, v{ST+2}, v{ST+3}
        v_add_f32 v{ST}, v{ST}, v{ST+2}
        v_min_u32 v{ST}, -2, v{ST}""")
        lp, ls = A.newlabel('wz'), A.newlabel('wz')
        A(f"s_cmp_lg_u32 s{s_slow}, 0\ns_cbranch_scc1 {ls}")
        A(bs(1, ST, VST, 's20', 0, '' if SXL else 'sc1'))
        A(f"s_branch {lp}\n{ls}:")
        A(bs(1, ST, VST, 's20', 0, 'sc1'))
        A(f"{lp}:")
        for u in range(6): A(bl(1, ST+u, VST, 's19', 256*u, 'sc1'))
        tick(A, exitlab)
        A(f"""s_waitcnt vmcnt(0)
        v_max3_u32 v{T0}, v{ST}, v{ST+1}, v{ST+2}
        v_max3_u32 v{T1}, v{ST+3}, v{ST+4}, v{ST+5}
        v_max_u32 v{T0}, v{T0}, v{T1}
        v_cmp_eq_u32 vcc, -1, v{T0}
        s_cbranch_vccnz {lp}
        v_add_f32 v{ST}, v{ST}, v{ST+1}
        v_add_f32 v{ST+2}, v{ST+2}, v{ST+3}
        v_add_f32 v{ST+4}, v{ST+4}, v{ST+5}
        v_add_f32 v{ST}, v{ST}, v{ST+2}
        v_add_f32 v{ST}, v{ST}, v{ST+4}
        v_mul_f32 v{ST}, {hexf(1.0/768)}, v{ST}
        v_mov_b32_dpp v{ST+1}, v{ST} row_shl:4 row_mask:0xf bank_mask:0x5
        v_mov_b32_dpp v{ST+1}, v{ST} row_shr:4 row_mask:0xf bank_mask:0xa
        s_mov_b32 vcc_lo, 0xf0f0f0f0
        s_mov_b32 vcc_hi, 0xf0f0f0f0
        v_cndmask_b32 v{ST+2}, v{ST}, v{ST+1}, vcc
        v_cndmask_b32 v{ST+3}, v{ST+1}, v{ST}, vcc
        v_fma_f32 v{ST+3}, -v{ST+2}, v{ST+2}, v{ST+3}
        v_max_f32 v{ST+3}, 0, v{ST+3}
        v_add_f32 v{ST+3}, {hexf(1e-5)}, v{ST+3}
        v_rsq_f32 v{ST+3}, v{ST+3}
        v_mul_f32 v{ST+2}, v{ST+2}, v{ST+3}
        v_cndmask_b32 v{ST+2}, v{ST+2}, v{ST+3}, vcc
        ds_write_b32 v{VST}, v{ST+2} offset:{LST+1024}
        s_waitcnt lgkmcnt(0)
        {l}:
        v_and_b32 v{T0}, 0xc0, v{VST}
        s_barrier""")
        TS(A, 12, 12)
        for i in range(4): A(f"ds_read_b128 {vr(ST+4*i,4)}, v{T0} offset:{LST+1024+16*i}")
        A("s_waitcnt lgkmcnt(0)")
        for ab in range(2):
            for rt in range(2):
                for i in range(4):
                    g = GT+8*rt+4*ab+i
                    A(f"v_fma_f32 v{g}, v{g}, v{ST+8*rt+4+i}, -v{ST+8*rt+i}")
                for j in range(2): A(f"v_cvt_pk_bf16_f32 v{PKD+4*ab+2*rt+j}, v{GT+8*rt+4*ab+2*j}, v{GT+8*rt+4*ab+2*j+1}")
            A(bs(4, PKD+4*ab, VL, f"s{so}", 1024*ab, 'sc1'))
    l = A.newlabel('wz')
    A(f"s_waitcnt vmcnt(0)\ns_barrier\ns_cmp_lg_u32 s{W}, 0\ns_cbranch_scc1 {l}")
    put_flag(A, s_flag, ne, T0)
    A(f"""{l}:
    s_add_u32 s{s_seg}, s{s_seg}, 2
    s_cmp_lt_u32 s{s_seg}, {NSEG}
    s_cbranch_scc1 {name}_loop""")

def sx_init(A, s_set, s_unit):
    A(f"""s_lshl_b32 s12, s{W}, 4
    s_add_u32 s12, s12, s{s_set}
    s_mul_i32 s12, s12, {SEG_SX}
    s_lshl_b32 s13, s{s_unit}, 8
    s_add_u32 s12, s12, s13
    s_add_u32 s12, s12, {WS_SX}
    v_lshlrev_b32 v16, 2, v0
    v_mov_b32 v17, -1""")
    for i in range(8):
        A(bs(1, 17, 16, 's12', 0, 'sc1'))
        if i < 7: A(f"s_add_u32 s12, s12, {2*SEG_SX}")

def spatial2(A, s_tb, s_fb, f_win, s_flag, exitlab, stamp=None):
    VL, VA, VB, VF, VSG, VN, T0, T1 = 2, 3, 4, 5, 6, 7, 8, 9
    VW = 10
    AC, FA, FB, Z1, ZF, BI = 64, 16, 32, 128, 160, 12
    sw, sz, sc, sm, sx, tg = 12, 14, 15, 16, 17, 18
    A(f"""s_load_dwordx2 {sr(sw,2)}, s[0:1], {KA_WSP}
    s_load_dwordx2 s[20:21], s[0:1], {KA_BSP}
    v_lshlrev_b32 v{VL}, 4, v0
    v_bfe_u32 v{T0}, v0, 2, 2
    v_lshlrev_b32 v{T1}, 3, v{T0}
    v_and_b32 v{T0}, 3, v0
    v_add_u32 v{T1}, v{T1}, v{T0}
    v_lshlrev_b32 v{VW}, 12, v{T1}
    v_lshrrev_b32 v{T0}, 4, v0
    v_lshl_add_u32 v{VW}, v{T0}, 4, v{VW}
    v_add_u32 v{VW+1}, {4*4096}, v{VW}
    s_lshl_b32 s{sx}, s{s_tb}, 2
    s_add_u32 s{sx}, s{sx}, s{W}
    s_lshl_b32 s{sx}, s{sx}, 17
    s_lshr_b32 s22, s{W}, 1
    s_and_b32 s23, s{W}, 1
    s_lshl_b32 s24, s{s_tb}, 1
    s_add_u32 s24, s24, s22
    s_lshl_b32 s25, s24, 7
    v_lshlrev_b32 v{T1}, 1, v{T1}
    v_add_u32 v{T1}, s25, v{T1}
    s_waitcnt lgkmcnt(0)""")
    add64(A, sw, sw, f"s{sx}")
    if WSPW:
        A(f"""s_mul_i32 s27, s{s_fb}, 3
        s_min_u32 s27, s27, 13
        s_lshl_b32 s27, s27, 13
        v_lshlrev_b32 v{T0}, 7, v0
        v_add_u32 v{T0}, s27, v{T0}""")
        for i in range(3):
            A(f"global_load_dword v{VN}, v{T0}, {sr(sw,2)}")
            if i < 2: A(f"v_add_u32 v{T0}, 8192, v{T0}")
    for t in range(4): A(f"global_load_ushort v{BI+t}, v{T1}, s[20:21] offset:{(t>>1)*64 + (t&1)*8}")
    A(f"""s_lshl_b32 s{sz}, s{s_fb}, 2
    s_add_u32 s{sz}, s{sz}, s{W}
    s_lshl_b32 s{sz}, s{sz}, 11
    s_add_u32 s{sz}, s{sz}, {WS_Z2}
    s_lshl_b32 s{sm}, s{W}, 11
    s_lshl_b32 s{sx}, s22, 12
    v_add_u32 v{VB}, s{sx}, v{VL}
    s_lshl_b32 s{sx}, s23, 12
    s_add_u32 s{sx}, s{sx}, 8192
    v_add_u32 v{VA}, s{sx}, v{VL}
    v_and_b32 v{VSG}, 1, v0
    v_mul_u32_u24 v{VF}, {12*128}, v{VSG}
    s_lshl_b32 s{sx}, s{s_fb}, 7
    s_add_u32 s{sx}, s{sx}, {f_win + 6*128}
    v_add_u32 v{VF}, s{sx}, v{VF}
    s_mul_i32 s26, s24, {4*24576}
    s_lshl_b32 s27, s{s_fb}, 12
    s_add_u32 s26, s26, s27
    s_lshl_b32 s27, s23, 11
    s_add_u32 s26, s26, s27
    s_mov_b32 s{sc}, 0
    s_waitcnt vmcnt(0)""")
    for t in range(4):
        A(f"v_lshlrev_b32 v{BI+t}, 16, v{BI+t}")
        for i in range(16): A(f"v_mov_b32 v{AC+16*t+i}, v{BI+t}")
    def need(d):
        A(f"""s_add_u32 s{tg}, s{sc}, {d}
        v_add_u32 v{VN}, s{tg}, v{VSG}
        v_and_b32 v{VN}, 1, v{VN}
        v_xor_b32 v{VN}, 1, v{VN}
        v_sub_u32 v{VN}, s{tg}, v{VN}""")
    def dma_w(slot):
        for i in range(2):
            A(f"s_add_u32 m0, s{sm}, {slot*16384 + i*1024}\nglobal_load_lds_dwordx4 v{VW+i}, {sr(sw,2)}")
        add64(A, sw, sw, 64)
    def dma_z(slot):
        A(f"s_add_u32 m0, s{sm}, {slot*16384 + 8192}")
        for i in range(2): A(f"buffer_load_dwordx4 v{VL}, {srd}, s{sz} offen offset:{i*1024} lds")
        A(f"s_add_u32 s{sz}, s{sz}, {SEG_Z}")
    def mm(slots):
        lg = Lg(A)
        def rd(n):
            o = 32*(n % 2) if False else 0
            for t in range(4): lg.ds(f"ds_read_b128 {vr(FB+4*t,4) if n % 2 == 0 else vr(224+4*t,4)}, v{VB} offset:{slots[n]*16384+1024*t}", ('b', n, t))
            for f in range(4): lg.ds(f"ds_read_b128 {vr(FA+4*f,4) if n % 2 == 0 else vr(240+4*f,4)}, v{VA} offset:{slots[n]*16384+1024*f}", ('a', n, f))
        rd(0)
        for n in range(len(slots)):
            fb_, fa_ = (FB, FA) if n % 2 == 0 else (224, 240)
            for f in range(4):
                lg.need(('a', n, f))
                if f == 3 and n + 1 < len(slots): pass
                for t in range(4):
                    a = vr(AC+16*t+4*f, 4)
                    A(f"v_mfma_f32_16x16x32_bf16 {a}, {vr(fa_+4*f,4)}, {vr(fb_+4*t,4)}, {a}")
                if f == 0 and n + 1 < len(slots): rd(n+1)
    def z1_issue():
        A(f"v_subrev_u32 v{T1}, {6*128}, v{VF}\ns_mov_b32 s28, s{sc}\ns_lshl_b32 s{sc}, s{s_tb}, 2")
        need(4)
        l, l2 = A.newlabel('z1'), A.newlabel('z1')
        A(f"s_mov_b32 s{sc}, s28\ns_branch {l2}\n{l}:\ns_sleep 1"); tick(A, exitlab)
        A(f"""{l2}:
        buffer_load_dword v{T0}, v{T1}, {srd}, 0 offen sc1
        s_waitcnt vmcnt(0)
        v_cmp_gt_u32 vcc, v{VN}, v{T0}
        s_cbranch_vccnz {l}
        s_add_u32 s27, s26, {WS_Z1}""")
        for t in range(4):
            for p in range(2): A(bl(4, Z1+8*t+4*p, VL, 's27', 1024*p))
            if t < 3: A("s_add_u32 s27, s27, 24576")
    def z1_unpack():
        for i in range(32): A(f"v_lshlrev_b32 v{ZF+2*i}, 16, v{Z1+i}\nv_and_b32 v{ZF+2*i+1}, 0xffff0000, v{Z1+i}")
    def decide(d, tag):
        need(d)
        A(f"""buffer_load_dword v{T0}, v{VF}, {srd}, 0 offen sc1
        s_waitcnt vmcnt(0)
        v_cmp_gt_u32 vcc, v{VN}, v{T0}
        s_cmp_eq_u64 vcc, 0
        s_cselect_b32 s19, 1, 0
        s_cmp_le_u32 s{tg}, {NSEG-4}
        s_cselect_b32 s19, s19, 0
        v_mov_b32 v{T0}, s19
        s_xor_b32 s33, s33, 4
        v_mov_b32 v{T1}, s33
        s_cmp_lg_u32 s{W}, 0
        s_cbranch_scc1 sp_nb{tag}
        ds_write_b32 v{T1}, v{T0}
        s_waitcnt lgkmcnt(0)
        sp_nb{tag}:
        s_barrier
        ds_read_b32 v{T0}, v{T1}
        s_waitcnt lgkmcnt(0)
        v_readfirstlane_b32 s19, v{T0}
        s_cmp_eq_u32 s19, 0""")
    def chunk():
        for sl in range(4): dma_w(sl); dma_z(sl)
        A(f"s_xor_b32 s{sm}, s{sm}, 65536")
    A("s_mov_b32 s33, 131072\ns_barrier\nsp_top:")
    A(f"s_cmp_gt_u32 s{sc}, {NSEG-8}\ns_cbranch_scc1 sp_one")
    decide(4, 'a')
    A("s_cbranch_scc1 sp_one")
    chunk()
    A("sp_bulk:")
    decide(8, 'b')
    A("s_cbranch_scc1 sp_nn")
    chunk()
    A("sp_nn:")
    mm([0, 1, 2, 3])
    A(f"""v_xor_b32 v{VA}, 65536, v{VA}
    v_xor_b32 v{VB}, 65536, v{VB}
    s_add_u32 s{sc}, s{sc}, 4
    s_cmp_lg_u32 s19, 0
    s_cbranch_scc1 sp_bulk
    sp_one:
    s_barrier""")
    dma_w(0)
    l = A.newlabel('sp')
    A(f"s_cmp_eq_u32 s{s_tb}, 15\ns_cselect_b32 s29, {NSEG-1}, {NSEG-4}\ns_cmp_lg_u32 s{sc}, s29\ns_cbranch_scc1 {l}")
    z1_issue()
    A(f"{l}:")
    need(1)
    l, l2, l3 = A.newlabel('sp'), A.newlabel('sp'), A.newlabel('sp')
    if SPW0: A(f"s_cmp_lg_u32 s{W}, 0\ns_cbranch_scc1 {l3}")
    A(f"s_branch {l2}\n{l}:\ns_sleep {SPS}"); tick(A, exitlab)
    A(f"""{l2}:
    buffer_load_dword v{T0}, v{VF}, {srd}, 0 offen sc1
    s_waitcnt vmcnt(0)
    v_cmp_gt_u32 vcc, v{VN}, v{T0}
    s_cbranch_vccnz {l}""")
    if SPW0: A(f"{l3}:\ns_waitcnt vmcnt(0)\ns_barrier")
    TS(A, 10, 60)
    dma_z(0)
    l = A.newlabel('sp')
    A(f"s_cmp_lg_u32 s{sc}, s29\ns_cbranch_scc1 {l}")
    z1_unpack()
    A(f"{l}:\ns_waitcnt vmcnt(0)\ns_barrier")
    TS(A, 11, 60)
    mm([0])
    A(f"s_add_u32 s{sc}, s{sc}, 1\ns_cmp_lt_u32 s{sc}, {NSEG}\ns_cbranch_scc1 sp_top")
    if stamp: stamp(A)
    A(f"s_add_u32 s27, s26, {WS_GY}")
    for t in range(4):
        for p in range(2):
            a = AC+16*t+8*p; z = ZF+16*t+8*p
            for j in range(4): A(f"v_pk_mul_f32 {vr(a+2*j,2)}, {vr(a+2*j,2)}, {vr(z+2*j,2)}")
            for j in range(4): A(f"v_cvt_pk_bf16_f32 v{Z1+8*t+4*p+j}, v{a+2*j}, v{a+2*j+1}")
            A(bs(4, Z1+8*t+4*p, VL, 's27', 1024*p, 'sc1'))
        if t < 3: A("s_add_u32 s27, s27, 24576")
    l = A.newlabel('sp')
    A(f"s_mov_b32 s19, 1\ns_waitcnt vmcnt(0)\ns_barrier\ns_cmp_lg_u32 s{W}, 0\ns_cbranch_scc1 {l}")
    put_flag(A, s_flag, 19, T0)
    A(f"{l}:")
    TS(A, 12, 60)
```

```python
import sys, os
if os.environ.get('OLDREC'):
    import r_rec_old; sys.modules['r_rec'] = r_rec_old
from common import *
from r_ln import *
from r_proj import *
from r_u import *
import r_rec as R
from r_rec import checkin, waitall, wait_flags, wait_flags_wg, put_flag, tick
from r_tail import *
KNAME = 'sequential_preLN__memory_aug_recurrent_mem_tr__mixer_gmlp__prompt_kernel'
PFAB = int(os.environ.get('PFAB', '1'))
PFV = int(os.environ.get('PFV', '1'))
OUTF = os.environ.get('OUTF', '')
PFU = int(os.environ.get('PFU', '1'))
PFWO = int(os.environ.get('PFWO', '1'))
PFUN = int(os.environ.get('PFUN', '2'))
PFO = int(os.environ.get('PFO', '0'))
VFIRST = int(os.environ.get('VFIRST', '0'))
PFW = int(os.environ.get('PFW', '0'))
DRY = int(os.environ.get('DRY', '1'))
KQD = int(os.environ.get('KQD', '0'))
UD = int(os.environ.get('UD', '0'))
TLBW = int(os.environ.get('TLBW', '0'))
TLBN = int(os.environ.get('TLBN', '8'))
WIDE = int(os.environ.get('WIDE', '0'))
ABW = int(os.environ.get('ABW', '0'))
AD = int(os.environ.get('AD', '0'))
BD = int(os.environ.get('BD', '0'))
HD = int(os.environ.get('HD', '0'))
ET = int(os.environ.get('ET', '0'))
ETM = eval(os.environ.get('ETM', '[2, 1]'))
ETS = int(os.environ.get('ETS', '4'))
PFLEAD = int(os.environ.get('PFLEAD', '3'))
PFOUT = int(os.environ.get('PFOUT', '1'))
HSTAMP = int(os.environ.get('HSTAMP', '0'))
STAMP = int(os.environ.get('STAMP', '0'), 0)
DBG = 90
F_QKV = WS_FLAG
F_U = WS_FLAG + 0x4000
F_X = 16384 + 2048
F_LN = F_X + 32768
F_WIN = WS_FLAG + 0x5000
F_GY = WS_FLAG + 0x6000
EXIT = 'mega_done'
X, TK, W = R.S_GRP, 2, 3
srd = R.srd

def wave0(A, fn):
    l = A.newlabel('w0')
    A(f"s_cmp_lg_u32 s{W}, 0\ns_cbranch_scc1 {l}")
    fn()
    A(f"{l}:")

def rt_stamp(A, idx, vt=15):
    if not STAMP: return
    def f():
        A(f"""s_memrealtime s[98:99]
        s_lshl_b32 s97, s{X}, 5
        s_add_u32 s97, s97, s{TK}
        s_lshl_b32 s97, s97, 6
        s_add_u32 s97, s97, {WS_STAT + 65536 + 4*idx}
        s_waitcnt lgkmcnt(0)""")
        put_flag(A, 97, 98, vt)
    wave0(A, f)

def cy_stamp(A, idx, vt=15):
    if not STAMP: return
    def f():
        A(f"""s_memtime s[98:99]
        s_lshl_b32 s97, s{X}, 5
        s_add_u32 s97, s97, s{TK}
        s_lshl_b32 s97, s97, 6
        s_add_u32 s97, s97, {WS_STAT + 65536 + 4*idx}
        s_waitcnt lgkmcnt(0)""")
        put_flag(A, 97, 98, vt)
    wave0(A, f)

def hstamp(A, word, vt, sreg=None):
    l = A.newlabel('hs')
    A(f"s_or_b32 s84, s{X}, s{TK}\ns_cmp_lg_u32 s84, 0\ns_cbranch_scc1 {l}")
    if sreg is None: A("s_memrealtime s[86:87]\ns_waitcnt lgkmcnt(0)\ns_sub_u32 s86, s86, s88")
    A(f"v_mov_b32 v{vt}, {4*word}\nv_mov_b32 v{vt+1}, s{86 if sreg is None else sreg}\nglobal_store_dword v{vt}, v{vt+1}, s[{DBG}:{DBG+1}] sc1\n{l}:")

def ln1_duty(A, s_idx):
    A(f"""s_load_dwordx2 s[12:13], s[0:1], {KA_X}
    s_lshl_b32 s16, s{s_idx}, 2
    s_add_u32 s16, s16, s{W}
    s_mul_i32 s16, s16, 20480
    s_waitcnt lgkmcnt(0)""")
    add64(A, 12, 12, 's16')
    A(f"s_add_u32 s16, s16, {WS_XNF}")
    add64(A, 14, 4, 's16')
    ln_rowtile(A, 12, 14, 0, 'sc1')

def pf_v(A, s_unit, PFV=PFV, PFO=PFO, s_u6=35, dov=True):
    if not PFV: return
    A(f"""s_load_dwordx2 s[12:13], s[0:1], {KA_WV}
    v_lshrrev_b32 v24, 2, v0
    v_mul_u32_u24 v24, 12288, v24
    v_and_b32 v25, 3, v0
    v_lshl_add_u32 v24, v25, 7, v24
    s_lshl_b32 s14, s{s_unit}, 9
    s_mul_i32 s15, s{W}, {16*12288}
    s_add_u32 s14, s14, s15
    s_add_u32 s14, s14, {64*12288}
    s_waitcnt lgkmcnt(0)""")
    add64(A, 12, 12, 's14')
    for c in range(5 if dov else 0):
        A("global_load_dword v26, v24, s[12:13]")
        if c < 4: add64(A, 12, 12, 128*12288)
    if PFO:
        A(f"""s_load_dwordx2 s[12:13], s[0:1], {KA_WO}
        s_lshl_b32 s14, s{s_u6}, 2
        s_add_u32 s14, s14, s{W}
        s_mul_hi_u32 s15, s14, {-(-(1<<32)//3)}
        s_mul_i32 s16, s15, 3
        s_sub_u32 s16, s14, s16
        s_sub_u32 s17, s{X}, 4
        s_lshl_b32 s17, s17, 3
        s_add_u32 s15, s15, s17
        s_mul_i32 s15, s15, 245760
        s_mul_i32 s16, s16, 13696
        s_add_u32 s15, s15, s16
        v_min_u32 v25, 52, v0
        v_lshlrev_b32 v25, 7, v25
        s_waitcnt lgkmcnt(0)""")
        add64(A, 12, 12, 's15')
        rr = [1, 3, 5] if PFO == 1 else list(range(6))
        prev = 0
        for r in rr:
            for hf in range(2):
                off = r*40960 + hf*6784
                add64(A, 12, 12, off - prev); prev = off
                A("global_load_dword v26, v25, s[12:13]")
    if PFV > 1:
        n = PFV - 1
        A(f"s_load_dwordx4 s[16:19], s[0:1], {KA_WQ}\ns_add_u32 s14, s14, {(5-n)*128*12288}\ns_waitcnt lgkmcnt(0)")
        add64(A, 16, 16, 's14'); add64(A, 18, 18, 's14')
        for c in range(n):
            A("global_load_dword v26, v24, s[18:19]\nglobal_load_dword v26, v24, s[16:17]")
            if c < n-1: add64(A, 16, 16, 128*12288); add64(A, 18, 18, 128*12288)

def pf_ab_old(A):
    if not PFAB: return
    l, l2 = A.newlabel('pf'), A.newlabel('pf')
    A(f"""s_and_b32 s18, s{TK}, 8
    s_lshl_b32 s18, s18, 1
    s_add_u32 s18, s18, {KA_WQ}
    s_load_dwordx4 s[12:15], s[0:1], s18
    s_and_b32 s16, s{TK}, 7
    s_lshl_b32 s17, s{X}, 3
    s_add_u32 s16, s16, s17
    v_mul_u32_u24 v24, {(65536+2)//3}, v0
    v_lshrrev_b32 v24, 16, v24
    v_mul_u32_u24 v25, 3, v24
    v_sub_u32 v25, v0, v25
    v_min_u32 v24, 15, v24
    v_mul_u32_u24 v24, 12288, v24
    v_lshl_add_u32 v24, v25, 7, v24
    s_mul_i32 s17, s16, 384
    s_mul_i32 s19, s{W}, {16*12288}
    s_add_u32 s17, s17, s19
    s_add_u32 s17, s17, {64*12288}
    s_waitcnt lgkmcnt(0)
    s_mov_b32 exec_hi, 0xffff""")
    add64(A, 12, 12, 's17')
    for c in range(5):
        A("global_load_dword v26, v24, s[12:13]")
        if c < 4: add64(A, 12, 12, 128*12288)
    A(f"s_cmp_lg_u32 s18, {KA_WQ}\ns_cbranch_scc1 {l}")
    add64(A, 14, 14, 's17')
    for c in range(5):
        A("global_load_dword v26, v24, s[14:15]")
        if c < 4: add64(A, 14, 14, 128*12288)
    A(f"""s_branch {l2}
    {l}:
    s_mov_b32 exec_hi, 0xff
    v_lshlrev_b32 v24, 7, v0
    s_mul_i32 s17, s16, 245760
    s_mul_i32 s19, s{W}, 10240
    s_add_u32 s17, s17, s19
    s_add_u32 s17, s17, 40960""")
    add64(A, 14, 14, 's17')
    if PFWO == 2: A("s_waitcnt vmcnt(0)")
    for c in range(3 if PFWO else 0):
        A("global_load_dword v26, v24, s[14:15]")
        add64(A, 14, 14, 5120)
        A("global_load_dword v26, v24, s[14:15]")
        if c < 2: add64(A, 14, 14, 81920-5120)
    A(f"{l2}:\ns_mov_b64 exec, -1")

def pf_ab(A):
    if not PFAB: return
    for _ in range(HD): A("s_sleep 36")
    if not ABW: return pf_ab_old(A)
    l, l2 = A.newlabel('pf'), A.newlabel('pf')
    A(f"""s_and_b32 s18, s{TK}, 8
    s_lshl_b32 s18, s18, 1
    s_add_u32 s18, s18, {KA_WQ}
    s_load_dwordx4 s[12:15], s[0:1], s18
    s_and_b32 s16, s{TK}, 7
    s_lshl_b32 s17, s16, 2
    s_add_u32 s17, s17, s{W}
    s_mul_i32 s17, s17, {2*12288}
    s_mul_i32 s19, s{X}, 3072
    s_add_u32 s17, s17, s19
    s_add_u32 s17, s17, {(ABW-1)*64*12288}
    v_cmp_le_u32 vcc, 24, v0
    v_cndmask_b32 v24, 0, 1, vcc
    v_mul_u32_u24 v24, {12288 - 24*128}, v24
    v_lshl_add_u32 v24, v0, 7, v24
    s_waitcnt lgkmcnt(0)
    s_mov_b32 exec_hi, 0xffff""")
    add64(A, 12, 12, 's17')
    for c in range(ABW-1, 10):
        A("global_load_dword v26, v24, s[12:13]")
        if c < 9: add64(A, 12, 12, 64*12288)
    A(f"s_cmp_lg_u32 s18, {KA_WQ}\ns_cbranch_scc1 {l}\ns_sub_u32 s17, s17, {(ABW-1)*64*12288}")
    add64(A, 14, 14, 's17')
    for c in range(10):
        A("global_load_dword v26, v24, s[14:15]")
        if c < 9: add64(A, 14, 14, 64*12288)
    A(f"""s_branch {l2}
    {l}:
    s_mov_b32 exec_hi, 0xff
    v_lshlrev_b32 v24, 7, v0
    s_lshl_b32 s17, s{X}, 3
    s_add_u32 s16, s16, s17
    s_mul_i32 s17, s16, 245760
    s_mul_i32 s19, s{W}, 10240
    s_add_u32 s17, s17, s19
    s_add_u32 s17, s17, 40960""")
    add64(A, 14, 14, 's17')
    for c in range(3 if PFWO else 0):
        A("global_load_dword v26, v24, s[14:15]")
        add64(A, 14, 14, 5120)
        A("global_load_dword v26, v24, s[14:15]")
        if c < 2: add64(A, 14, 14, 81920-5120)
    A(f"{l2}:\ns_mov_b64 exec, -1")

def k_mega(A):
    if STAMP & 0x200:
        def tsh(A, i, vt):
            A(f's_memrealtime s[{60+2*i}:{61+2*i}]\ns_waitcnt lgkmcnt(0)')
        TSH[0] = tsh
    A(f""".p2align 8
    {KNAME}:
    s_cmp_ge_u32 s2, 256
    s_cbranch_scc1 {EXIT}
    s_load_dwordx2 s[4:5], s[0:1], {KA_WS}
    s_load_dwordx2 s[{DBG}:{DBG+1}], s[0:1], {KA_DBG}
    s_load_dwordx2 s[16:17], s[0:1], {KA_X}
    s_getreg_b32 s9, hwreg(HW_REG_XCC_ID)
    s_and_b32 s9, s9, 15
    s_and_b32 s{X}, s9, 7
    {['', f's_lshr_b32 s{X}, s2, 5', f's_mov_b32 s{X}, 0', f's_mov_b32 s{X}, 5'][int(os.environ.get('FAKEX', '0'))]}
    v_lshrrev_b32 v1, 6, v0
    v_readfirstlane_b32 s{W}, v1
    v_and_b32 v0, 63, v0
    s_mov_b32 s{R.S_TO}, 0
    s_mov_b32 s6, 0x10000000
    s_mov_b32 s7, 0x20000""")
    if STAMP or HSTAMP: A("s_memrealtime s[88:89]")
    A(f"""s_waitcnt lgkmcnt(0)
    v_mov_b32 v1, 0
    s_mov_b32 s19, -1
    s_cmp_lg_u32 s2, 0
    s_cbranch_scc1 mega_nocal
    s_cmp_lg_u32 s{W}, 3
    s_cbranch_scc1 mega_calj
    s_mov_b64 exec, 1
    v_mov_b32 v2, {(1<<21) - 16384 + 4096}
    v_mov_b32 v3, {(1<<21) - 8192 + 4096}
    s_mov_b32 s20, 0""")
    for rep in range(4):
        a, b = (2, 3) if rep % 2 == 0 else (3, 2)
        A(f"""global_store_dword v{a}, v1, s[4:5] sc1
        global_store_dword v{b}, v1, s[4:5] sc1
        s_waitcnt vmcnt(1)
        s_memtime s[12:13]
        s_waitcnt vmcnt(0)
        s_memtime s[14:15]
        s_waitcnt lgkmcnt(0)
        s_sub_u32 s14, s14, s12
        s_min_u32 s14, s14, 400
        {'s_add_u32' if rep % 2 == 0 else 's_sub_u32'} s20, s20, s14""")
    A(f"""s_cmp_lt_i32 s20, 0
    s_cselect_b32 s14, 8193, 1
    s_and_b32 s15, s9, 4
    s_lshl_b32 s15, s15, 11
    s_xor_b32 s14, s14, s15
    v_mov_b32 v2, {4*R.D_POL}
    v_mov_b32 v4, s14
    v_mov_b32 v5, s20
    global_store_dwordx2 v2, v[4:5], s[{DBG}:{DBG+1}] sc1
    {'v_mov_b32 v2, 56' if HSTAMP else ''}
    {f'global_store_dwordx2 v2, v[4:5], s[{DBG}:{DBG+1}] sc1' if HSTAMP else ''}
    s_mov_b64 exec, -1
    mega_calj:
    s_barrier
    s_branch mega_noln
    mega_nocal:""")
    if ET:
        A(f"""s_cmp_lg_u32 s{W}, 1
        s_cbranch_scc1 mega_noet
        s_load_dwordx8 s[20:27], s[0:1], {KA_WQ}
        v_min_u32 v2, 59, v0
        v_lshlrev_b32 v2, 7, v2
        s_mul_i32 s12, s2, 7680
        v_add_u32 v2, s12, v2
        s_sleep {ETS}
        s_waitcnt lgkmcnt(0)""")
        for i in range(ET):
            m = ETM[i // 4]
            A(f"v_add_u32 v3, {(i % 4)*1966080}, v2\nglobal_load_dword v4, v3, s[{20+2*m}:{21+2*m}]")
        A("mega_noet:")
    if TLBW:
        n = -(-7864320 // (64*TLBW))
        A(f"""s_cmp_lg_u32 s{W}, 1
        s_cbranch_scc1 mega_notlb
        s_sub_u32 s12, s2, 8
        s_cmp_ge_u32 s12, {TLBN}
        s_cbranch_scc1 mega_notlb
        s_load_dwordx8 s[20:27], s[0:1], {KA_WQ}
        s_mov_b32 s12, {TLBW}
        v_mul_lo_u32 v2, s12, v0
        s_waitcnt lgkmcnt(0)""")
        for i in range(n):
            A(f"v_min_u32 v3, {7864320-4}, v2")
            for m in (2, 1, 0, 3): A(f"global_load_dword v4, v3, s[{20+2*m}:{21+2*m}]")
            if i < n-1: A(f"v_add_u32 v2, {64*TLBW}, v2")
        A("mega_notlb:")
    A(f"""s_cmp_eq_u32 s{W}, 3
    s_cselect_b32 s19, s2, -1
    s_lshl_b32 s12, s2, 2
    s_add_u32 s12, s12, s{W}
    s_cmp_eq_u32 s12, 6
    s_cselect_b32 s19, 0, s19
    s_cmp_eq_u32 s19, -1
    s_cbranch_scc1 mega_noln""")
    ln1_small(A, 16, 19, srd, WS_XNF)
    A(f"""mega_noln:
    s_cmp_lg_u32 s{W}, 0
    s_cbranch_scc1 mega_t1
    s_mov_b64 exec, 1
    v_mov_b32 v3, 1
    s_mov_b32 s12, 0
    mega_tk:
    s_cmp_eq_u32 s{X}, s9
    s_cbranch_scc1 mega_home
    v_mov_b32 v2, {4*R.D_SLOW}
    global_store_dword v2, v3, s[{DBG}:{DBG+1}] sc1
    s_waitcnt vmcnt(0)
    mega_home:
    s_and_b32 s14, s{X}, 3
    s_lshl_b32 s14, s14, 6
    s_and_b32 s15, s{X}, 4
    s_add_u32 s14, s14, s15
    v_mov_b32 v2, s14
    global_atomic_add v4, v2, v3, s[{DBG}:{DBG+1}] sc0
    s_waitcnt vmcnt(0)
    v_readfirstlane_b32 s14, v4
    s_cmp_lt_u32 s14, 32
    s_cbranch_scc1 mega_got
    s_add_u32 s{X}, s{X}, 1
    s_and_b32 s{X}, s{X}, 7
    s_add_u32 s12, s12, 1
    s_cmp_lt_u32 s12, 8
    s_cbranch_scc1 mega_tk
    mega_got:
    v_mov_b32 v5, s{X}
    ds_write_b64 v1, v[4:5]
    s_waitcnt lgkmcnt(0)
    s_mov_b64 exec, -1
    mega_t1:
    s_barrier
    ds_read_b64 v[4:5], v1
    s_waitcnt lgkmcnt(0)
    v_readfirstlane_b32 s{TK}, v4
    v_readfirstlane_b32 s{X}, v5
    s_cmp_eq_u32 s19, -1
    s_cbranch_scc1 mega_noln2
    s_and_b32 s18, s19, 3
    s_lshl_b32 s18, s18, 6
    s_add_u32 s18, s18, {4*R.D_LN}
    v_mov_b32 v2, s18
    v_mov_b32 v3, 1
    s_mov_b64 exec, 1
    s_waitcnt vmcnt(0)
    global_atomic_add v2, v3, s[{DBG}:{DBG+1}]
    s_mov_b64 exec, -1
    mega_noln2:
    s_barrier
    s_cmp_ge_u32 s{TK}, 32
    s_cbranch_scc1 {EXIT}""")
    if STAMP:
        A("s_mov_b32 s71, s88")
        for i in range(72, 88): A(f"s_mov_b32 s{i}, 0")
        wave0(A, lambda: (A(f"s_lshl_b32 s84, s{X}, 5\ns_add_u32 s84, s84, s{TK}\ns_lshl_b32 s84, s84, 6\ns_add_u32 s84, s84, {WS_STAT+65536}"), put_flag(A, 84, 88, 15)))
    rt_stamp(A, 1)
    A(f"""s_cmp_ge_u32 s{X}, 4
    s_cbranch_scc1 mega_hi
    s_cmp_ge_u32 s{TK}, 26
    s_cbranch_scc1 mega_ln2
    s_and_b32 s{R.S_HL}, s{TK}, 7
    s_cmp_ge_u32 s{TK}, 16
    s_cbranch_scc1 mega_R
    s_cmp_ge_u32 s{TK}, 8
    s_cbranch_scc1 mega_B
    s_branch mega_A
    mega_hi:
    s_cmp_ge_u32 s{TK}, 26
    s_cbranch_scc1 mega_win
    s_cmp_ge_u32 s{TK}, 18
    s_cbranch_scc1 mega_U""")
    A(f"""s_mul_hi_u32 s22, s{TK}, {-(-(1<<32)//6)}
    s_mul_i32 s23, s22, 6
    s_sub_u32 s23, s{TK}, s23
    s_sub_u32 s22, 2, s22
    s_sub_u32 s20, s{X}, 4
    s_mul_i32 s20, s20, 6
    s_add_u32 s23, s23, s20
    s_mul_i32 s30, s22, 24
    s_add_u32 s30, s30, s23
    s_lshl_b32 s30, s30, 7
    s_add_u32 s30, s30, {F_QKV}
    s_lshl_b32 s24, s22, 3
    s_add_u32 s24, s24, {KA_WQ}
    s_load_dwordx2 s[32:33], s[0:1], s24
    s_lshl_b32 s25, s23, 2
    s_add_u32 s25, s25, s{W}
    s_lshl_b32 s26, s25, 7
    s_mul_hi_u32 s27, s25, {-(-(1<<32)//3)}
    s_mul_i32 s28, s27, 3
    s_sub_u32 s28, s25, s28
    s_mul_i32 s27, s27, 12288
    s_lshl_b32 s28, s28, 11
    s_add_u32 s27, s27, s28
    s_mul_i32 s28, s22, {WS_KF-WS_QF}
    s_add_u32 s27, s27, s28
    s_add_u32 s27, s27, {WS_QF}""")
    A("s_waitcnt lgkmcnt(0)")
    if WIDE:
        A(f"""s_sub_u32 s21, s23, s20
        s_lshl_b32 s21, s21, 2
        s_add_u32 s21, s21, s{W}
        s_lshl_b32 s21, s21, 6
        v_add_u32 v24, s21, v0
        v_mul_u32_u24 v25, {(65536+23)//24}, v24
        v_lshrrev_b32 v25, 16, v25
        v_mul_u32_u24 v25, {12288 - 24*128}, v25
        v_lshl_add_u32 v24, v24, 7, v25
        s_lshl_b32 s21, s20, 9""")
        add64(A, 38, 32, 's21')
    add64(A, 32, 32, 's26'); add64(A, 34, 4, 's27'); add64(A, 36, 4, WS_XNF)
    if KQD:
        A("s_cmp_eq_u32 s22, 2\ns_cbranch_scc1 proj_go2")
        for _ in range(KQD): A("s_sleep 36")
        A("proj_go2:")
    if VFIRST:
        A(f"s_sub_u32 s21, s23, s20\ns_cmp_eq_u32 s22, 2\ns_cbranch_scc1 proj_go\ns_cmp_eq_u32 s22, 0\ns_cbranch_scc1 proj_hq")
        pf_v(A, 23, 1, 0)
        A(f"s_waitcnt vmcnt({VFIRST-1})\ns_branch proj_go\nproj_hq:")
        pf_v(A, 23, 1, 1, 21, dov=False)
        A(f"s_waitcnt vmcnt({VFIRST-1})\nproj_go:")
    A(f"s_mov_b32 s16, {NSEG}\nv_lshlrev_b32 v2, 4, v0\ns_mul_i32 s18, s{W}, 10240\nv_add_u32 v3, s18, v2\ns_mov_b32 s19, 0")
    def xn0(A):
        for i in range(10):
            if i % 4 == 0: A(f"s_add_u32 m0, s18, {(i//4)*4096}")
            A(f"global_load_lds_dwordx4 v3, s[36:37] offset:{(i%4)*1024}")
            if i % 4 == 3: add64(A, 36, 36, 4096)
        add64(A, 36, 36, SEG_XN - 8192)
    def touch(A):
        A("global_load_dword v26, v24, s[38:39]")
        add64(A, 38, 38, 64*12288)
    WPRE = int(os.environ.get('WPRE', '0'))
    if WIDE:
        if WPRE == 0: add64(A, 38, 38, 3*64*12288)
        else:
            for _ in range(3): touch(A)
    def whook(A, c, ph):
        if WIDE and c == -1:
            for _ in range(WIDE): touch(A)
        if WIDE and ph == 1 and c + 3 + WIDE < 10 and c >= 0: touch(A)
        if c == 3 and ph == 0:
            waitall(A, DBG, EXIT, 2, setup_only=True)
            A(f"global_load_dword v18, v16, s[{DBG}:{DBG+1}] sc1")
        if c == 6 and ph == 1:
            l = A.newlabel('x0')
            A(f"v_cmp_gt_u32 vcc, v17, v18\ns_cbranch_vccnz {l}")
            xn0(A)
            A(f"s_mov_b32 s19, 1\n{l}:")
    load_w64(A, 32, 12288, W, 0, 12, 4, depth=3, base=65536, hook=whook, wide=WIDE)
    rt_stamp(A, 2)
    A("s_cmp_lg_u32 s19, 0\ns_cbranch_scc1 proj_x0")
    waitall(A, DBG, EXIT, 2)
    xn0(A)
    A("proj_x0:")
    rt_stamp(A, 3); cy_stamp(A, 8)
    def mid(A):
        wave0(A, lambda: (A(f"s_sub_u32 s17, {NSEG}, s16"), put_flag(A, 30, 17, 12)))
        if STAMP & 0x100:
            for k in range(3):
                l = A.newlabel('ms'); A(f"s_cmp_lg_u32 s16, {NSEG-k}\ns_cbranch_scc1 {l}"); rt_stamp(A, 10+k); A(f"{l}:")
    proj_loop(A, 'proj', 36, 16, W, 0, make_epi_qkv(34, 2, os.environ.get('PST', 'sc1')), mid_hook=mid, s_t=12, vt=8, seg0_done=True, nmid=int(os.environ.get('NMID', '19')))
    A("s_waitcnt vmcnt(0)\ns_barrier"); mid(A)
    rt_stamp(A, 4); cy_stamp(A, 9)
    A(f"s_branch mega_sp")
    A(f"""mega_U:
    s_load_dwordx2 s[32:33], s[0:1], {KA_WO}
    s_sub_u32 s20, s{X}, 4
    s_lshl_b32 s20, s20, 3
    s_add_u32 s20, s20, s{TK}
    s_sub_u32 s20, s20, 18
    s_lshl_b32 s30, s20, 7
    s_add_u32 s30, s30, {F_U}
    s_mul_i32 s22, s20, 245760
    s_mul_i32 s23, s{W}, 320
    s_add_u32 s22, s22, s23
    s_mul_i32 s23, s20, 12288
    s_add_u32 s23, s23, {WS_VF}
    s_mul_i32 s24, s20, 40960
    s_mul_i32 s25, s{W}, 10240
    s_add_u32 s24, s24, s25
    s_add_u32 s24, s24, {WS_UF}
    s_mul_i32 s25, s20, 192
    v_and_b32 v3, 1, v0
    v_mul_u32_u24 v3, 191, v3
    v_add_u32 v3, s25, v3
    v_lshrrev_b32 v3, 8, v3
    v_lshlrev_b32 v3, 7, v3
    v_add_u32 v3, {F_QKV + 48*128}, v3""")
    A("s_waitcnt lgkmcnt(0)")
    add64(A, 32, 32, 's22')
    if PFU:
        A(f"""s_load_dwordx4 s[12:15], s[0:1], {KA_WQ}
        v_cmp_le_u32 vcc, 24, v0
        v_cndmask_b32 v24, 0, 1, vcc
        v_mul_u32_u24 v24, {12288 - 24*128}, v24
        v_lshl_add_u32 v24, v0, 7, v24
        s_sub_u32 s16, s{TK}, 18
        s_lshl_b32 s16, s16, 2
        s_add_u32 s16, s16, s{W}
        s_mul_i32 s16, s16, {2*12288}
        s_sub_u32 s17, s{X}, 4
        s_mul_i32 s17, s17, 3072
        s_add_u32 s16, s16, s17
        s_add_u32 s16, s16, {64*12288}
        s_waitcnt lgkmcnt(0)
        s_mov_b32 exec_hi, 0xffff""")
        add64(A, 12, 12, 's16'); add64(A, 14, 14, 's16')
        for c in range(PFUN):
            A("global_load_dword v26, v24, s[14:15]\nglobal_load_dword v26, v24, s[12:13]")
            if c < PFUN-1: add64(A, 12, 12, 128*12288); add64(A, 14, 14, 128*12288)
        A(f"s_mov_b64 exec, -1\ns_waitcnt vmcnt({PFU-1})")
        rt_stamp(A, 3)
    for _ in range(UD): A("s_sleep 36")
    u_load_w(A, 32, W, 0, 12, 4)
    rt_stamp(A, 2)
    A(f"v_lshlrev_b32 v2, 4, v0\ns_lshl_b32 s12, s{W}, 2\ns_add_u32 s30, s30, s12")
    waitall(A, DBG, EXIT, 2)
    def ust(A, k):
        if STAMP & 0x100:
            l = A.newlabel('us'); A(f"s_cmp_lg_u32 s16, {k//4}\ns_cbranch_scc1 {l}"); rt_stamp(A, 8+k); A(f"{l}:")
    u_loop2(A, 'u', 23, 24, 30, 3, wait_flags, put_flag, srd, EXIT, ust)
    rt_stamp(A, 4)
    A(f"mega_sp:\ns_and_b32 s40, s{TK}, 3")
    load_wout(A, 40, 12, 4)
    A(f"""s_cmp_ge_u32 s{TK}, 24
    s_cbranch_scc1 mega_out
    s_mov_b32 s41, 1
    s_branch mega_out2
    mega_ret1:
    s_mul_hi_u32 s30, s{TK}, {-(-(1<<32)//6)}
    s_mul_i32 s31, s30, 6
    s_sub_u32 s31, s{TK}, s31
    s_sub_u32 s32, s{X}, 4
    s_lshl_b32 s33, s32, 2
    s_add_u32 s30, s30, s33
    s_mul_i32 s32, s32, 24
    s_add_u32 s32, s32, s{TK}
    s_lshl_b32 s32, s32, 7
    s_add_u32 s32, s32, {F_GY}""")
    rt_stamp(A, 5)
    spatial2(A, 30, 31, F_WIN, 32, EXIT, stamp=lambda A: rt_stamp(A, 6))
    A(f"""s_mov_b32 s41, 3
    s_branch mega_out2
    mega_out:
    s_mov_b32 s41, 0
    mega_out2:
    s_xor_b32 s40, s{X}, 4
    s_lshl_b32 s40, s40, 5
    s_add_u32 s40, s40, s{TK}""")
    out_task(A, 40, F_GY, EXIT, 'mega_end', OUTF, 41, F_WIN)
    A("mega_end:")
    A("s_cmp_eq_u32 s41, 1\ns_cbranch_scc1 mega_ret1")
    if STAMP: A("s_waitcnt vmcnt(0)")
    rt_stamp(A, 7)
    if STAMP & 0x200:
        def dump():
            for i in range(8, 15):
                A(f"s_lshl_b32 s12, s{X}, 5\ns_add_u32 s12, s12, s{TK}\ns_lshl_b32 s12, s12, 6\ns_add_u32 s12, s12, {WS_STAT + 65536 + 4*i}")
                put_flag(A, 12, 60+2*i, 15)
        wave0(A, dump)
    if HSTAMP: A("s_waitcnt vmcnt(0)"); hstamp(A, 12, 16); hstamp(A, 13, 16, 4)
    A(f"{EXIT}:\ns_endpgm")
    A(f"mega_wo:\ns_waitcnt vmcnt(0)\ns_barrier\ns_and_b32 s40, s{TK}, 3")
    load_wout(A, 40, 12, 4)
    A("s_branch mega_out")
    A(f"""mega_ln2:
    s_mul_i32 s24, s{X}, {4 if PFW else 6}
    s_add_u32 s24, s24, s{TK}
    s_sub_u32 s24, s24, 26
    s_lshl_b32 s30, s24, 7
    s_add_u32 s30, s30, {F_LN}
    s_cmp_ge_u32 s{TK}, 30
    s_cbranch_scc1 mega_ln2j
    s_lshl_b32 s12, s{X}, 2
    s_add_u32 s12, s12, s{TK}
    s_sub_u32 s12, s12, 26
    s_lshl_b32 s12, s12, 2
    s_add_u32 s12, s12, s{W}
    s_lshl_b32 s13, s12, 10
    s_add_u32 s13, s13, {WS_FLAG}
    s_lshl_b32 s14, s12, 11
    s_add_u32 s14, s14, {WS_SX}
    s_and_b32 s15, s12, 7
    s_min_u32 s15, s15, 5
    s_lshl_b32 s15, s15, 10
    s_bfe_u32 s16, s12, 0x10003
    s_lshl_b32 s16, s16, 13
    s_add_u32 s15, s15, s16
    s_bfe_u32 s16, s12, 0x10004
    s_lshl_b32 s16, s16, 15
    s_add_u32 s12, s15, s16
    s_add_u32 s12, s12, {F_X}
    v_lshlrev_b32 v2, 4, v0""")
    for i in range(4): A(f"v_mov_b32 v{16+i}, 0")
    for i in range(4): A(f"v_mov_b32 v{20+i}, -1")
    A(bs(4, 16, 2, 's13', 0, 'sc1')); A(bs(4, 16, 2, 's12', 0, 'sc1'))
    A(bs(4, 20, 2, 's14', 0, 'sc1')); A(bs(4, 20, 2, 's14', 1024, 'sc1'))
    checkin(A, DBG)
    A("mega_ln2j:")
    pf_ab(A)
    rt_stamp(A, 2)
    A(f"s_and_b32 s40, s{TK}, 3\nv_lshlrev_b32 v2, 4, v0")
    waitall(A, DBG, EXIT, 2, s_pol=31)
    if PFW: A(f"s_cmp_ge_u32 s{TK}, 30\ns_cbranch_scc1 mega_pfw")
    A(f'v_mov_b32 v4, {F_U}\ns_mov_b32 s12, 1')
    wait_flags(A, 4, 5, 12, EXIT, sleep=20)
    load_wout(A, 40, 12, 4)
    A("s_add_u32 s30, s30, s31\ns_barrier")
    ln2_loop(A, 24, 16 if PFW else 24, F_X, 30, 31, EXIT)
    rt_stamp(A, 4)
    A("s_branch mega_out")
    if PFW:
        A(f"""mega_pfw:
        s_lshl_b32 s20, s{X}, 1
        s_add_u32 s20, s20, s{TK}
        s_sub_u32 s20, s20, 30
        s_lshl_b32 s20, s20, 2
        s_add_u32 s20, s20, s{W}
        s_mul_i32 s21, s20, 40960
        s_add_u32 s21, s21, {WS_UF + 2*SEG_U}
        s_mul_i32 s22, s20, 12288
        s_add_u32 s23, s22, {WS_QF + 2*SEG_QKV}
        s_add_u32 s22, s22, {WS_KF + 2*SEG_QKV}
        v_lshlrev_b32 v3, 7, v0
        s_lshl_b32 s12, s20, 7
        s_add_u32 s12, s12, {F_U}
        v_and_b32 v4, 3, v0
        v_lshlrev_b32 v4, 2, v4
        v_add_u32 v4, s12, v4
        s_mul_i32 s12, s{X}, 1280
        s_add_u32 s12, s12, {F_X}
        s_add_u32 s12, s12, s31
        v_mov_b32 v5, s12
        s_mov_b32 s24, 2
        pfw_loop:
        s_sub_u32 s12, s24, {PFLEAD}
        s_max_i32 s12, s12, 0""")
        wait_flags(A, 5, 6, 12, EXIT, sleep=3)
        A("s_add_u32 s12, s24, 1")
        wait_flags(A, 4, 6, 12, EXIT, sleep=3)
        for i in range(5):
            A(f"buffer_load_dword v7, v3, {srd}, s21 offen\ns_add_u32 s21, s21, {8192 if i < 4 else SEG_U - 4*8192}\ns_waitcnt vmcnt({PFOUT})")
        if PFW > 1:
            A("s_mov_b32 exec_hi, 0xffff")
            for sp in (22, 23):
                for i in range(2):
                    A(f"buffer_load_dword v7, v3, {srd}, s{sp} offen\ns_add_u32 s{sp}, s{sp}, {6144 if i < 1 else SEG_QKV - 6144}\ns_waitcnt vmcnt({PFOUT})")
            A("s_mov_b32 exec_hi, -1")
        A(f"s_add_u32 s24, s24, 1\ns_cmp_lt_u32 s24, {NSEG}\ns_cbranch_scc1 pfw_loop\ns_branch mega_wo")
    A(f"""mega_win:
    s_sub_u32 s34, s{X}, 4
    s_sub_u32 s35, s{TK}, 26
    s_mul_i32 s22, s34, 6
    s_add_u32 s22, s22, s35
    s_lshl_b32 s30, s22, 7
    s_add_u32 s30, s30, {F_WIN}
    s_lshr_b32 s36, s34, 1
    s_and_b32 s34, s34, 1""")
    if VFIRST: pf_v(A, 22, 6, 0, dov=False)
    else: pf_v(A, 22)
    rt_stamp(A, 2)
    A(f"""s_load_dwordx2 s[32:33], s[0:1], {KA_WIN}
    s_and_b32 s40, s{TK}, 3
    v_lshlrev_b32 v2, 4, v0""")
    waitall(A, DBG, EXIT, 2, s_pol=31, s_slow=37)
    A(f'v_mov_b32 v4, {F_U}\ns_mov_b32 s12, 1')
    wait_flags(A, 4, 5, 12, EXIT, sleep=20)
    load_wout(A, 40, 12, 4)
    A(f"""s_mul_i32 s25, s34, 6
    s_add_u32 s25, s25, s35
    s_lshl_b32 s25, s25, 2
    s_add_u32 s25, s25, s{W}
    s_lshl_b32 s25, s25, 6""")
    add64(A, 32, 32, 's25')
    win_load(A, 32, 12, 4)
    A("s_cmp_lg_u32 s34, 0\ns_cbranch_scc1 mega_win2")
    win_loop(A, 'win1', False, 36, 35, F_LN, 30, 31, EXIT, 4 if PFW else 6)
    rt_stamp(A, 4)
    A("s_branch mega_out\nmega_win2:")
    win_loop(A, 'win2', True, 36, 35, F_LN, 30, 31, EXIT, 4 if PFW else 6)
    rt_stamp(A, 4)
    A("s_branch mega_out")
    hooks = {'next_ab': 'mega_wo', 'next_r': 'mega_wo'}
    hooks['r_pre'] = pf_ab
    hooks['rts'] = lambda A, i: rt_stamp(A, i, R.MOP)
    if STAMP:
        def stamp(A, i):
            if i == 0:
                l = A.newlabel('st')
                A(f"s_memtime s[86:87]\ns_memrealtime s[88:89]\ns_waitcnt lgkmcnt(0)\ns_cmp_lg_u32 s{R.S_STEP}, {int(os.environ.get('SSTEP','21'))}\ns_cbranch_scc1 {l}")
                for k in range(1, 8): A(f"s_sub_u32 s{92+k}, s{72+2*k}, s72")
                A(f"s_mov_b32 s92, s73\ns_mov_b32 s100, s88")
                A(f"{l}:\ns_mov_b32 s72, s86\ns_mov_b32 s73, s88")
                l = A.newlabel('st')
                A(f"s_cmp_lg_u32 s{R.S_STEP}, 0\ns_cbranch_scc1 {l}\ns_sub_u32 s101, s88, s71\n{l}:")
            elif (STAMP >> i) & 1:
                A(f"s_memtime s[{72+2*i}:{73+2*i}]\ns_waitcnt lgkmcnt(0)")
        hooks['stamp'] = stamp
        def final(A):
            A(f"""s_lshl_b32 s14, s{X}, 5
            s_add_u32 s14, s14, s{TK}
            s_lshl_b32 s14, s14, 2
            s_add_u32 s14, s14, s{W}
            s_lshl_b32 s14, s14, 6
            s_add_u32 s14, s14, {WS_STAT}
            s_memrealtime s[86:87]
            s_waitcnt lgkmcnt(0)
            s_sub_u32 s15, s86, s71
            v_mov_b32 v17, 0""")
            for i, r in enumerate(list(range(92, 102)) + [15, R.S_TO]):
                A(f"v_mov_b32 v16, s{r}\nbuffer_store_dword v16, v17, s[4:7], s14 offen offset:{4*i}")
            rt_stamp(A, 4)
        hooks['final'] = final
        def steplog(A):
            l = A.newlabel('sl')
            A(f"""s_cmp_lg_u32 s{R.S_H}, 0
            s_cbranch_scc1 {l}
            s_memrealtime s[84:85]
            s_lshl_b32 s{R.S_T}, s{R.S_STEP}, 2
            s_add_u32 s{R.S_T}, s{R.S_T}, {WS_STAT + 131072}
            s_waitcnt lgkmcnt(0)""")
            put_flag(A, R.S_T, 84, R.MOP)
            A(f"{l}:")
        hooks['steplog'] = steplog
    if HSTAMP:
        def steplog(A):
            for st, wd in ((0, 6), (6, 7), (30, 8), (50, 9), (63, 10)):
                l = A.newlabel('hl'); A(f"s_cmp_lg_u32 s{R.S_STEP}, {st}\ns_cbranch_scc1 {l}"); hstamp(A, wd, R.MOP); A(f"{l}:")
        hooks['steplog'] = steplog
        hooks['rts'] = lambda A, i: hstamp(A, 5, R.MOP)
    def wait_in(A, mode):
        t = R.MOP + 24
        if mode == 'first': A(f"s_mov_b32 s{R.S_T}, 1")
        else: A(f"s_add_u32 s{R.S_T}, s{R.S_STEP}, 2\ns_min_u32 s{R.S_T}, s{R.S_T}, {NSEG}")
        A(f"""s_mul_i32 s{R.S_T+1}, s{R.S_H}, 192
        v_bfe_u32 v{t}, v{R.V_LANE16}, 4, 1
        v_mul_u32_u24 v{t}, 191, v{t}
        v_add_u32 v{t}, s{R.S_T+1}, v{t}
        v_lshrrev_b32 v{t}, 8, v{t}
        v_bfe_u32 v{t+1}, v{R.V_LANE16}, 5, 1
        v_mad_u32_u24 v{t}, v{t+1}, 24, v{t}
        v_lshlrev_b32 v{t}, 7, v{t}
        v_add_u32 v{t}, {F_QKV}, v{t}""")
        if mode == 'peek':
            A(f"""buffer_load_dword v{t+1}, v{t}, {srd}, 0 offen sc1
            s_waitcnt vmcnt(0)
            v_cmp_gt_u32 {sr(R.S_EVEN,2)}, s{R.S_T}, v{t+1}""")
        else: wait_flags(A, t, t+1, R.S_T, EXIT)
    hooks['wait_in'] = wait_in
    def b_init(A):
        A(f"""s_mul_i32 s{R.S_C5}, s{X}, 1280
        s_add_u32 s{R.S_C5}, s{R.S_C5}, {F_X}
        s_add_u32 s{R.S_C5}, s{R.S_C5}, s{R.S_POL}
        v_lshlrev_b32 v{R.V_JUNK}, 6, v0""")
    def b_flag(A):
        l = A.newlabel('bf')
        A(f"""s_lshl_b32 s{R.S_T}, s{R.S_HL}, 2
        s_add_u32 s{R.S_T}, s{R.S_T}, s{W}
        s_cmp_lg_u32 s{R.S_T}, 31
        s_cbranch_scc1 {l}
        s_sub_u32 s{R.S_T}, s{R.S_STEP}, 3
        s_cmp_ge_u32 s{R.S_T}, {R.BFLAG - 3}
        s_cbranch_scc1 {l}
        s_add_u32 s{R.S_T}, s{R.S_T}, 1
        v_mov_b32 v{R.MOP+32}, s{R.S_T}
        s_mov_b64 exec, 0xfffff""")
        if int(os.environ.get('BFD', '0')): A(f"s_sleep {os.environ['BFD']}")
        A(f"""buffer_store_dword v{R.MOP+32}, v{R.V_JUNK}, {srd}, s{R.S_C5} offen sc1
        s_mov_b64 exec, -1
        {l}:""")
    hooks['b_init'] = b_init; hooks['b_flag'] = b_flag
    def wait_u(A, k):
        if k == 0:
            rt_stamp(A, 3, 24)
            A(f"""s_lshl_b32 s{R.S_T}, s{R.S_HL}, 1
            s_add_u32 s{R.S_T}, s{R.S_T}, s{W}
            s_mul_hi_u32 s{R.S_T}, s{R.S_T}, {-(-(1<<32)//5)}
            s_lshl_b32 s{R.S_T}, s{R.S_T}, 2
            s_lshl_b32 s{R.S_T+1}, s{X}, 10
            s_add_u32 s{R.S_T}, s{R.S_T}, s{R.S_T+1}
            s_add_u32 s{R.S_T}, s{R.S_T}, {F_U}
            v_and_b32 v10, 7, v0
            v_lshlrev_b32 v10, 7, v10
            v_add_u32 v10, s{R.S_T}, v10""")
        A(f"s_add_u32 s{R.S_T}, s{R.S_STEP}, {k+1}\ns_min_u32 s{R.S_T}, s{R.S_T}, {NSEG}")
        wait_flags(A, 10, 11, R.S_T, EXIT)
        if k == 0: rt_stamp(A, 5, 24)
    hooks['wait_u'] = wait_u
    hooks['x_flag'] = lambda A: put_flag(A, R.S_O4, R.S_STEP, 12)
    hooks['x_flag2'] = lambda A, sv: put_flag(A, R.S_O4, sv, 12)
    hooks['x_init'] = lambda A: A(f"s_add_u32 s{R.S_O4}, s{R.S_O4}, s{R.S_POL}")
    def cached_u(A):
        l = A.newlabel('cu')
        A(f"s_add_u32 s{R.S_T}, s{R.S_STEP}, 1\nv_cmp_gt_u32 vcc, s{R.S_T}, v11\ns_cbranch_vccz {l}")
        wait_flags(A, 10, 11, R.S_T, EXIT, sleep=1)
        A(f"{l}:")
    hooks['cached_u'] = cached_u
    PEEKM = int(os.environ.get('PEEKM', '2'))
    def peek_u(A):
        if PEEKM:
            l = A.newlabel('pk')
            A(f"s_add_u32 s{R.S_T}, s{R.S_STEP}, {1+PEEKM}\ns_min_u32 s{R.S_T}, s{R.S_T}, {NSEG}\nv_cmp_gt_u32 vcc, s{R.S_T}, v11\ns_cbranch_vccz {l}")
        A(f"buffer_load_dword v11, v10, {srd}, 0 offen sc1")
        if PEEKM: A(f"{l}:")
    hooks['peek_u'] = peek_u
    A("mega_A:")
    for _ in range(AD): A("s_sleep 36")
    R.role_A(A, EXIT, DBG, hooks)
    A("mega_B:")
    for _ in range(BD): A("s_sleep 36")
    R.role_B(A, EXIT, DBG, hooks)
    A(f"""mega_R:
    s_sub_u32 s{R.S_HL}, s{TK}, 16
    s_mul_i32 s{R.S_O4}, s{X}, 10
    s_add_u32 s{R.S_O4}, s{R.S_O4}, s{R.S_HL}
    s_lshl_b32 s{R.S_O4}, s{R.S_O4}, 7
    s_add_u32 s{R.S_O4}, s{R.S_O4}, {F_X}""")
    A(f"s_and_b32 s12, s{W}, 1\ns_lshl_b32 s12, s12, 6\ns_add_u32 s{R.S_O4}, s{R.S_O4}, s12")
    R.role_R(A, EXIT, DBG, hooks)

def build():
    ref = open('sequential_preLN__memory_aug_recurrent_mem_tr__mixer_gmlp__prompt.s.ref').read().split('\n')
    hdr = '\n'.join(l for l in ref if l.startswith(';') and '@launch' not in l) + '\n'
    if os.environ.get('LIST', '1') == '1': hdr += f"; @launch kernel={KNAME} grid=(256,1,1) block=(256,1,1) lds=163840\n"
    else: hdr += "; @launch grid=(256,1,1) block=(256,1,1) lds=163840\n"
    A = Asm()
    A(f'.amdgcn_target "amdgcn-amd-amdhsa--gfx950"\n.text\n.globl {KNAME}\n.type {KNAME},@function')
    k_mega(A)
    return hdr + A.text() + kdesc(KNAME)

if __name__ == '__main__':
    open(sys.argv[1], 'w').write(build())
```

```python
from common import *
from r_ln import hexf
import os
SPS = int(os.environ.get('SPS', '2'))
OUTS = int(os.environ.get('OUTS', '1'))
WSPW = int(os.environ.get('WSPW', '1'))
LNS = int(os.environ.get('LNS', '16'))
SXL = int(os.environ.get('SXL', '1'))
WINS = int(os.environ.get('WINS', '1'))
SPW0 = int(os.environ.get('SPW0', '0'))
OK1 = int(os.environ.get('OK1', '3'))
ND = int(os.environ.get('ND', '2'))
OWG = int(os.environ.get('OWG', '0'))
GLW = int(os.environ.get('GLW', '1'))
GSH = int(os.environ.get('GSH', '20'))
GSH2 = int(os.environ.get('GSH2', '3'))
LNS2 = int(os.environ.get('LNS2', '2'))
from r_rec import Lg, WS_OP, SEG_OP, srd, tick, wait_flags, wait_flags_wg, put_flag, S_WAVE
from r_proj import gelu_ops, GC0, GC1, SEG_Z
from r_u import load_w_rows
WS_SX = WS_STAT + MB
SEG_SX = 6*256
W = S_WAVE
TSH = [None]
def TS(A, i, vt):
    if TSH[0]: TSH[0](A, i, vt)

def bl(n, dst, va, so, off=0, fl=''):
    nm = {1: 'dword', 2: 'dwordx2', 4: 'dwordx4'}[n]
    return f"buffer_load_{nm} {vr(dst,n)}, v{va}, {srd}, {so} offen offset:{off} {fl}"
def bs(n, src, va, so, off=0, fl=''):
    nm = {1: 'dword', 2: 'dwordx2', 4: 'dwordx4'}[n]
    return f"buffer_store_{nm} {vr(src,n)}, v{va}, {srd}, {so} offen offset:{off} {fl}"

def load_wout(A, s_dq, s_t, vt):
    sw, sb = s_t, s_t+2
    tr, t = vt+2, vt+3
    A(f"""s_load_dwordx2 {sr(sw,2)}, s[0:1], {KA_WOUT}
    s_mul_i32 s{sb}, s{W}, {192*1280}
    s_mul_i32 s{sb+1}, s{s_dq}, 320
    s_add_u32 s{sb}, s{sb}, s{sb+1}
    v_lshrrev_b32 v{t}, 4, v0
    v_lshlrev_b32 v{tr}, 3, v{t}
    v_bfe_u32 v{t}, v0, 2, 2
    v_add_u32 v{tr}, v{tr}, v{t}
    v_mul_u32_u24 v{tr}, 320, v{tr}
    v_and_b32 v{t}, 3, v0
    v_lshl_add_u32 v{tr}, v{t}, 4, v{tr}
    s_waitcnt lgkmcnt(0)""")
    add64(A, sw, sw, f"s{sb}")
    A(f"s_mul_i32 s{sb}, s{W}, 40960\nv_add_u32 v{tr}, s{sb}, v{tr}")
    def reads(A, kk, off):
        for dt in range(10):
            for q in range(2):
                A(f"ds_read_b64_tr_b16 {ar(24*dt+4*kk+2*q,2)}, v{tr} offset:{off + q*4*320 + (dt>>1)*64 + (dt&1)*8}")
    load_w_rows(A, sw, 1280, 20, 192, 32, 4, sb, 0, sb+1, vt, reads)

def owait(A, va, vt, sn, exitlab, sleep):
    if OWG:
        A("s_waitcnt vmcnt(0)")
        wait_flags_wg(A, va, vt, sn, exitlab, sleep)
    else: wait_flags(A, va, vt, sn, exitlab, sleep)

def out_task(A, s_task, f_gy, exitlab, done, outf='', s_dry=None, f_win=None, s_pre=None):
    A(f"""s_load_dwordx2 s[20:21], s[0:1], {KA_OUT}
    s_lshr_b32 s12, s{s_task}, 2
    s_and_b32 s13, s{s_task}, 3
    s_mul_i32 s14, s12, {SEG_Z}
    s_mul_i32 s15, s{W}, 6144
    s_add_u32 s14, s14, s15
    s_add_u32 s14, s14, {WS_GY}
    s_add_u32 s15, s14, 4096
    s_add_u32 s16, s14, 24576
    s_add_u32 s17, s16, 4096
    v_lshlrev_b32 v2, 4, v0
    v_bfe_u32 v3, v0, 2, 2
    v_lshlrev_b32 v3, 3, v3
    v_and_b32 v4, 3, v0
    v_add_u32 v3, v3, v4
    v_mul_u32_u24 v3, 1280, v3
    v_lshrrev_b32 v4, 4, v0
    v_lshl_add_u32 v3, v4, 4, v3
    s_mul_i32 s18, s12, 40960
    s_mul_i32 s19, s13, 320
    s_add_u32 s18, s18, s19
    s_and_b32 s22, s{W}, 1
    s_lshr_b32 s23, s{W}, 1
    s_mul_i32 s19, s22, 5120
    s_add_u32 s18, s18, s19
    s_lshl_b32 s19, s23, 6
    s_add_u32 s18, s18, s19
    s_mul_i32 s19, s{W}, 20480
    v_add_u32 v5, s19, v2
    s_lshl_b32 s19, s22, 10
    s_lshl_b32 s24, s23, 12
    s_add_u32 s19, s19, s24
    v_add_u32 v6, s19, v2
    v_add_u32 v7, 40960, v6
    s_lshr_b32 s19, s12, 2
    s_mul_i32 s19, s19, {6*128}
    s_add_u32 s19, s19, {f_gy}
    v_min_u32 v8, 5, v0
    v_lshlrev_b32 v8, 7, v8
    v_add_u32 v8, s19, v8
    s_mov_b32 s19, 1
    s_waitcnt lgkmcnt(0)""")
    add64(A, 20, 20, 's18')
    A(f"""s_mul_i32 s18, s12, 40960
    s_mul_i32 s25, s13, 5120
    s_add_u32 s18, s18, s25
    s_lshl_b32 s25, s23, 10
    s_add_u32 s18, s18, s25
    s_lshl_b32 s25, s22, 6
    s_add_u32 s18, s18, s25
    s_add_u32 s18, s18, {WS_H}
    s_add_u32 s26, s18, 4096
    v_bfe_u32 v11, v0, 3, 1
    v_mul_u32_u24 v11, 20480, v11
    v_bfe_u32 v12, v0, 2, 1
    v_lshl_add_u32 v11, v12, 7, v11
    v_and_b32 v12, 3, v0
    v_lshl_add_u32 v11, v12, 4, v11
    v_bfe_u32 v12, v0, 4, 1
    v_lshl_add_u32 v11, v12, 9, v11
    v_bfe_u32 v12, v0, 5, 1
    v_lshl_add_u32 v11, v12, 3, v11""")
    GA, Z1, ZB, OA, TM = 16, 112, 160, 160, 240
    HR, F = 16, 32
    ga = lambda k, rt: GA + 16*k + 8*rt
    z1 = lambda k, rt: Z1 + 8*k + 4*rt
    for r in range(4): A(f"s_add_u32 s{46+r}, s{14+r}, {WS_GY2 - WS_GY}")
    A(f"""s_cmp_eq_u32 s{s_dry}, 3
    s_cbranch_scc1 out_light
    v_min_u32 v10, 5, v0
    v_lshlrev_b32 v10, 7, v10
    v_add_u32 v10, {f_win}, v10
    s_barrier
    s_cmp_eq_u32 s{s_pre}, 2
    s_cbranch_scc1 out_z1a""")
    A(f"""s_load_dwordx2 s[28:29], s[0:1], {KA_WSP}
    v_bfe_u32 v12, v0, 2, 2
    v_lshlrev_b32 v12, 3, v12
    v_and_b32 v13, 3, v0
    v_add_u32 v12, v12, v13
    v_lshlrev_b32 v12, 12, v12
    v_lshl_add_u32 v12, v4, 4, v12
    v_add_u32 v13, {4*4096}, v12
    s_lshl_b32 s25, s12, 17
    s_add_u32 s25, s25, {(NSEG-ND)*64}
    s_waitcnt lgkmcnt(0)""")
    add64(A, 28, 28, 's25')
    wsr = lambda sg, rt: ar(240+8*(sg-ND+2)+4*rt, 4) if sg >= ND-2 else vr(TM+8*sg+4*rt, 4)
    for sg in range(ND):
        for rt in range(2): A(f"global_load_dwordx4 {wsr(sg, rt)}, v{12+rt}, s[28:29] offset:{64*sg}")
    def z1_get():
        A(f"""s_and_b32 s25, s12, 1
        s_mul_i32 s25, s25, {12*128}
        v_add_u32 v14, s25, v10
        s_add_u32 s25, s12, 1""")
        owait(A, 14, 9, 25, exitlab, sleep=OUTS)
        for r in range(4): A(f"s_add_u32 s{42+r}, s{14+r}, {(WS_Z1 - WS_GY) & 0xffffffff}")
        for k in range(6):
            for rt in range(2): A(bl(4, z1(k, rt), 2, f"s{42+2*rt+k//4}", 1024*(k % 4)))
    A(f"s_cmp_ge_u32 s12, {NSEG-ND}\ns_cbranch_scc1 out_z1a")
    z1_get()
    A(f"s_cmp_eq_u32 s{s_pre}, 1\ns_cbranch_scc1 {done}\nout_z1a:")
    owait(A, 8, 9, 19, exitlab, sleep=OUTS)
    for k in range(6):
        for rt in range(2): A(bl(4, ZB+8*k+4*rt, 2, f"s{14+2*rt+k//4}", 1024*(k % 4)))
    for k in range(6):
        A(f"s_waitcnt vmcnt({2*(5-k)})")
        for rt in range(2):
            for j in range(4): A(f"v_lshlrev_b32 v{ga(k,rt)+2*j}, 16, v{ZB+8*k+4*rt+j}\nv_and_b32 v{ga(k,rt)+2*j+1}, 0xffff0000, v{ZB+8*k+4*rt+j}")
    def delta(sg):
        seg = NSEG - ND + sg; last = sg == ND-1
        A(f"""v_add_u32 v14, {(seg & 1)*12*128 + 6*128}, v10
        s_mov_b32 s25, {seg+1}
        s_mul_i32 s27, s{W}, 12288
        s_add_u32 s27, s27, {WS_Z2 + seg*SEG_Z}
        s_add_u32 s28, s27, 4096
        s_add_u32 s29, s27, 8192""")
        owait(A, 14, 9, 25, exitlab, sleep=OUTS)
        if last: TS(A, 13, 10); A(f"s_mov_b32 vcc_lo, s{s_dry}\ns_mov_b32 vcc_hi, 0")
        for f in range(12): A(bl(4, ZB+4*f, 2, f"s{27+f//4}", 1024*(f % 4)))
        for f in range(12):
            A(f"s_waitcnt vmcnt({11-f})")
            for rt in range(2):
                a = vr(ga(f//2, rt) + 4*(f % 2), 4)
                A(f"v_mfma_f32_16x16x32_bf16 {a}, {vr(ZB+4*f,4)}, {wsr(sg, rt)}, {a}")
            if last and f >= 3:
                for _ in range(GSH):
                    if gq and gq[0][0] <= (f-3)//2: A(gq.pop(0)[1])
    gq = []
    for sg in range(ND-1): delta(sg)
    A(f"s_cmp_lt_u32 s12, {NSEG-ND}\ns_cbranch_scc1 out_z1b")
    z1_get()
    A("out_z1b:")
    for k in range(6):
        for rt in range(2):
            t = TM + 8*rt; g = ga(k, rt); z = z1(k, rt)
            for j in range(4): gq += [(k, f"v_lshlrev_b32 v{t+2*j}, 16, v{z+j}"), (k, f"v_and_b32 v{t+2*j+1}, 0xffff0000, v{z+j}")]
            for j in range(8): gq += [(k, f"v_mul_f32 v{t+j}, v{t+j}, v{g+j}")]
            for j in range(4): gq += [(k, f"v_cvt_pk_bf16_f32 v{z+j}, v{t+2*j}, v{t+2*j+1}")]
            l1, l2 = A.newlabel('gs'), A.newlabel('gs')
            st = bs(4, z, 2, f"s{46+2*rt+k//4}", 1024*(k % 4))
            gq += [(k, f"s_cbranch_vccnz {l1}\n{l2}:")]
            A.deferred.append(f"{l1}:\nv_min_u32 v{z}, -2, v{z}\ns_cmp_eq_u32 s{s_dry}, 2\ns_cbranch_scc1 {l1}s\n{st}\ns_branch {l2}\n{l1}s:\n{st} sc1\ns_branch {l2}")
    delta(ND-1)
    def om(dt, k, rt):
        a = vr(OA+8*dt+4*rt, 4)
        A(f"v_mfma_f32_16x16x32_bf16 {a}, {ar(24*dt+4*k,4)}, {vr(z1(k,rt),4)}, {'0' if k == 0 else a}")
    for k in range(OK1):
        while gq and gq[0][0] <= k: A(gq.pop(0)[1])
        for dt in range(10):
            for rt in range(2):
                om(dt, k, rt)
                for _ in range(GSH2):
                    if gq: A(gq.pop(0)[1])
    while gq: A(gq.pop(0)[1])
    A("out_join:")
    for i in range(3):
        for hb in range(2): A(bl(2, HR+4*i+2*hb, 11, ['s18', 's18', 's26'][i], (2048*i) % 4096 + 256*hb))
    for dt in range(10):
        for k in range(OK1, 6):
            for rt in range(2): om(dt, k, rt)
            wr = {OK1+1: 0, 5: 1} if OK1 < 4 else {4: None, 5: 2}
            if dt >= 1 and wr.get(k) is not None:
                for rt in ((wr[k],) if wr[k] < 2 else (0, 1)): A(f"ds_write_b128 v5, {vr(OA+8*(dt-1)+4*rt,4)} offset:{2048*(dt-1)+1024*rt}")
    for rt in range(2): A(f"ds_write_b128 v5, {vr(OA+72+4*rt,4)} offset:{2048*9+1024*rt}")
    A("s_waitcnt vmcnt(0)")
    for i in range(3):
        for j in range(4): A(f"v_lshlrev_b32 v{F+8*i+2*j}, 16, v{HR+4*i+j}\nv_and_b32 v{F+8*i+2*j+1}, 0xffff0000, v{HR+4*i+j}")
    TS(A, 14, 10)
    A("s_waitcnt lgkmcnt(0)\ns_barrier")
    R = 64
    def rd(i):
        for ww in range(4):
            for ab in range(2):
                A(f"ds_read_b128 {vr(R+32*i+8*ww+4*ab,4)}, v{6+ww//2} offset:{(ww%2)*20480 + 8192*i + 2048*ab}")
    def fin(i):
        for ww in range(4):
            for j in range(4): A(f"v_pk_add_f32 {vr(F+8*i+2*j,2)}, {vr(F+8*i+2*j,2)}, {vr(R+32*i+8*ww+2*j,2)}")
        for j in range(4): A(f"v_cvt_pk_bf16_f32 v{16+4*i+j}, v{F+8*i+2*j}, v{F+8*i+2*j+1}")
        A(f"global_store_dwordx4 v3, {vr(16+4*i,4)}, s[20:21] offset:{128*i} {outf}")
    rd(0); rd(1)
    A("s_waitcnt lgkmcnt(8)"); fin(0)
    A("s_waitcnt lgkmcnt(0)")
    l = A.newlabel('o2')
    A(f"s_cmp_ge_u32 s{W}, 2\ns_cbranch_scc1 {l}")
    rd(2); fin(1)
    A("s_waitcnt lgkmcnt(0)"); fin(2)
    A(f"s_branch {done}\n{l}:")
    fin(1)
    A(f"s_branch {done}")
    A("out_light:")
    for k in range(6):
        for rt in range(2): A(bl(4, z1(k, rt), 2, f"s{46+2*rt+k//4}", 1024*(k % 4), 'sc1'))
    A("s_barrier\nout_lp:\ns_sleep 1")
    A(bl(4, z1(GLW, 1), 2, f"s{48+GLW//4}", 1024*(GLW % 4), 'sc1'))
    tick(A, exitlab)
    A(f"s_waitcnt vmcnt(0)\nv_cmp_eq_u32 vcc, -1, v{z1(GLW,1)}\ns_cbranch_vccnz out_lp")
    TS(A, 13, 10)
    for ks, lab in ((range(OK1), 'out_l2'), (range(OK1, 6), 'out_l3')):
        A(f"{lab}:")
        for k in ks:
            for rt in range(2): A(bl(4, z1(k, rt), 2, f"s{46+2*rt+k//4}", 1024*(k % 4), 'sc1'))
        tick(A, exitlab)
        if lab == 'out_l3':
            l = A.newlabel('ol')
            A(f"s_cmp_lg_u32 s{s_dry}, 3\ns_cbranch_scc1 {l}\ns_mov_b32 s{s_dry}, 4")
            for k in range(OK1):
                for dt in range(10):
                    for rt in range(2): om(dt, k, rt)
            A(f"{l}:")
        A("s_waitcnt vmcnt(0)\nv_mov_b32 v9, 0")
        for k in ks: A(f"v_max3_u32 v9, v9, v{z1(k,0)}, v{z1(k,1)}")
        A(f"v_cmp_eq_u32 vcc, -1, v9\ns_cbranch_vccnz {lab}")
    A("s_branch out_join")
    A.flush_deferred()

def gy2_init(A, s_seg):
    A(f"""s_mul_i32 s12, s{s_seg}, {SEG_Z}
    s_mul_i32 s13, s{W}, 12288
    s_add_u32 s12, s12, s13
    s_add_u32 s12, s12, {WS_GY2}
    v_lshlrev_b32 v2, 4, v0""")
    for i in range(4): A(f"v_mov_b32 v{16+i}, -1")
    for i in range(12):
        A(bs(4, 16, 2, 's12', 1024*(i % 4), 'sc1'))
        if i % 4 == 3: A("s_add_u32 s12, s12, 4096")

def ln2_loop(A, s_j, ncu, f_x, s_flag, s_pol, exitlab):
    VO, VX, VS, VF, VLW, VLR, T0, T1, T2, T3 = 2, 3, 4, 5, 6, 7, 8, 9, 10, 11
    OPR, XR, F, PK = 16, 64, 80, 104
    sx, so, sh, sn, ne, s0, s1 = 12, 14, 15, 16, 17, 18, 19
    A(f"""s_load_dwordx2 s[26:27], s[0:1], {KA_X}
    v_and_b32 v{T0}, 7, v0
    v_bfe_u32 v{T1}, v0, 3, 1
    v_lshrrev_b32 v{T2}, 4, v0
    s_and_b32 s{sn}, s{s_j}, 1
    s_lshl_b32 s{sn}, s{sn}, 7
    s_lshl_b32 s{ne}, s{W}, 13
    s_add_u32 s{sn}, s{sn}, s{ne}
    v_lshlrev_b32 v{VO}, 4, v{T0}
    v_lshl_add_u32 v{VO}, v{T2}, 8, v{VO}
    v_lshl_add_u32 v{VO}, v{T1}, 12, v{VO}
    v_add_u32 v{VO}, s{sn}, v{VO}
    v_and_b32 v13, 1023, v{VO}
    v_lshrrev_b32 v14, 12, v{VO}
    v_lshl_add_u32 v13, v14, 10, v13
    v_mul_u32_u24 v{VX}, 1280, v{T0}
    v_lshl_add_u32 v{VX}, v{T2}, 3, v{VX}
    v_lshl_add_u32 v{VX}, v{T1}, 6, v{VX}
    s_lshl_b32 s{sn}, s{W}, 7
    v_add_u32 v{VX}, s{sn}, v{VX}
    v_bfe_u32 v{T3}, v0, 2, 1
    v_mul_u32_u24 v{VS}, 20480, v{T3}
    v_lshl_add_u32 v{VS}, v{T2}, 8, v{VS}
    v_and_b32 v{T3}, 3, v0
    v_lshl_add_u32 v{VS}, v{T3}, 4, v{VS}
    v_lshl_add_u32 v{VS}, v{T1}, 10, v{VS}
    s_and_b32 s{sn}, s{s_j}, 3
    s_lshl_b32 s{sn}, s{sn}, 6
    s_lshl_b32 s{ne}, s{W}, 11
    s_add_u32 s{sn}, s{sn}, s{ne}
    v_add_u32 v{VS}, s{sn}, v{VS}
    v_lshlrev_b32 v{VLR}, 5, v{T0}
    s_lshl_b32 s{sn}, s{W}, 3
    v_add_u32 v{VLW}, s{sn}, v{VLR}
    s_bfe_u32 s{sn}, s{s_j}, 0x10001
    s_lshl_b32 s{sn}, s{sn}, 6
    s_add_u32 s{sn}, s{sn}, {f_x}
    s_add_u32 s{sn}, s{sn}, s{s_pol}
    v_min_u32 v{VF}, 39, v0
    v_lshlrev_b32 v{VF}, 7, v{VF}
    v_add_u32 v{VF}, s{sn}, v{VF}
    s_mov_b32 s{s0}, 0x00003f80
    s_mov_b32 s{s1}, 0x3f800000
    s_cmp_lt_u32 s{W}, 2
    s_cselect_b64 s[28:29], -1, 0
    s_waitcnt lgkmcnt(0)
    ln2_loop:
    s_mul_i32 s{sh}, s{s_j}, 10240""")
    add64(A, sx, 26, f"s{sh}")
    A(f"""s_lshr_b32 s{so}, s{s_j}, 1
    s_mul_i32 s{sh}, s{so}, 20480
    s_add_u32 s{sh}, s{sh}, {WS_H}
    s_mul_i32 s{so}, s{so}, {SEG_OP//2}
    s_add_u32 s{so}, s{so}, {WS_OP}
    s_lshr_b32 s{ne}, s{s_j}, 2
    s_mul_i32 s{sn}, s{ne}, {SEG_XN}
    s_add_u32 s{sn}, s{sn}, {WS_HNF}
    s_add_u32 s{ne}, s{ne}, 1""")
    for j in range(4): A(f"v_mov_b32 v{XR+8+j}, 0")
    for j in range(16): A(f"v_mov_b32 v{OPR+32+j}, 0")
    l1, l2, l3, l4 = [A.newlabel('l2') for _ in range(4)]
    def xl(i):
        for hb in range(2): A(f"global_load_dwordx2 {vr(XR+4*i+2*hb,2)}, v{VX}, {sr(sx,2)} offset:{512*i+32*hb}")
    xl(0); xl(1)
    A(f"s_cmp_ge_u32 s{W}, 2\ns_cbranch_scc1 {l1}"); xl(2); A(f"{l1}:")
    A(f"s_cmp_lg_u32 s{W}, 0\ns_cbranch_scc1 {l2}")
    A(f"s_sub_u32 s20, s{ne}, 1")
    wait_flags(A, VF, T0, 20, exitlab, sleep=LNS)
    wait_flags(A, VF, T0, ne, exitlab, sleep=LNS2)
    TS(A, 8, 12)
    A(f"{l2}:\ns_waitcnt vmcnt(0)")
    for i in range(12): A(f"v_lshlrev_b32 v{F+2*i}, 16, v{XR+i}\nv_and_b32 v{F+2*i+1}, 0xffff0000, v{XR+i}")
    A(f"s_add_u32 s20, s{so}, 32768\ns_add_u32 s21, s{so}, 65536\ns_barrier")
    A(f"s_cmp_ge_u32 s{W}, 2\ns_cbranch_scc1 {l3}")
    for g in range(4): A(bl(4, OPR+32+4*g, VO, 's21', 1024*g))
    A(f"{l3}:")
    for i in range(2):
        for g in range(4): A(bl(4, OPR+16*i+4*g, VO, [f"s{so}", 's20'][i], 1024*g))
    A(f"v_mov_b32 v{T0}, 0\nv_mov_b32 v{T1}, 0")
    for n, i in enumerate((2, 0, 1)):
        A(f"s_waitcnt vmcnt({(8, 4, 0)[n]})")
        for g in range(4):
            for j in range(8):
                A(f"v_dot2_f32_bf16 v{F+8*i+j}, v{OPR+16*i+4*g+j//2}, s{s0+j%2}, v{F+8*i+j}")
        for j in range(4): A(f"v_cvt_pk_bf16_f32 v{PK+4*i+j}, v{F+8*i+2*j}, v{F+8*i+2*j+1}")
        for j in range(4): A(f"v_lshlrev_b32 v{F+8*i+2*j}, 16, v{PK+4*i+j}\nv_and_b32 v{F+8*i+2*j+1}, 0xffff0000, v{PK+4*i+j}")
        for j in range(8): A(f"v_add_f32 v{T0}, v{T0}, v{F+8*i+j}\nv_fmac_f32 v{T1}, v{F+8*i+j}, v{F+8*i+j}")
    TS(A, 9, 12)
    A(f"""v_add_f32_dpp v{T0}, v{T0}, v{T0} row_ror:8 row_mask:0xf bank_mask:0xf
    v_add_f32_dpp v{T1}, v{T1}, v{T1} row_ror:8 row_mask:0xf bank_mask:0xf
    v_mov_b32 v{T2}, v{T0}
    v_mov_b32 v{T3}, v{T1}
    v_permlane16_swap_b32 v{T0}, v{T2}
    v_permlane16_swap_b32 v{T1}, v{T3}
    v_pk_add_f32 {vr(T0,2)}, {vr(T0,2)}, {vr(T2,2)}
    v_mov_b32 v{T2}, v{T0}
    v_mov_b32 v{T3}, v{T1}
    v_permlane32_swap_b32 v{T0}, v{T2}
    v_permlane32_swap_b32 v{T1}, v{T3}
    v_pk_add_f32 {vr(T0,2)}, {vr(T0,2)}, {vr(T2,2)}
    ds_write_b64 v{VLW}, {vr(T0,2)}""")
    A(f"""s_waitcnt lgkmcnt(0)
    s_barrier
    ds_read_b128 v[120:123], v{VLR}
    ds_read_b128 v[124:127], v{VLR} offset:16
    s_waitcnt lgkmcnt(0)
    v_pk_add_f32 v[120:121], v[120:121], v[122:123]
    v_pk_add_f32 v[124:125], v[124:125], v[126:127]
    v_pk_add_f32 v[120:121], v[120:121], v[124:125]
    v_mul_f32 v{T0}, {hexf(1.0/640)}, v120
    v_mul_f32 v{T1}, {hexf(1.0/640)}, v121
    v_fma_f32 v{T1}, -v{T0}, v{T0}, v{T1}
    v_max_f32 v{T1}, 0, v{T1}
    v_add_f32 v{T1}, {hexf(1e-5)}, v{T1}
    v_rsq_f32 v{T1}, v{T1}
    v_mul_f32 v{T0}, v{T0}, v{T1}
    s_add_u32 s20, s{sn}, 8192
    s_add_u32 s21, s{sn}, 16384""")
    l5 = A.newlabel('l2')
    for i in range(3):
        if i == 2: A(f"s_cmp_ge_u32 s{W}, 2\ns_cbranch_scc1 {l5}")
        for j in range(8): A(f"v_fma_f32 v{F+8*i+j}, v{F+8*i+j}, v{T1}, -v{T0}")
        for j in range(4): A(f"v_cvt_pk_bf16_f32 v{OPR+4*i+j}, v{F+8*i+2*j}, v{F+8*i+2*j+1}")
        A(bs(4, OPR+4*i, VS, [f"s{sn}", 's20', 's21'][i], 0, 'sc1'))
    l6 = A.newlabel('l2')
    A(f"s_add_u32 s21, s{sh}, 16384")
    A(bs(4, PK+8, 13, 's21', 0, 'sc1'))
    A(f"{l5}:\ns_add_u32 s20, s{sh}, 8192")
    A(bs(4, PK, 13, f"s{sh}", 0, 'sc1')); A(bs(4, PK+4, 13, 's20', 0, 'sc1'))
    TS(A, 10, 12)
    A(f"s_waitcnt vmcnt(0)\ns_barrier\ns_cmp_lg_u32 s{W}, 0\ns_cbranch_scc1 {l6}")
    put_flag(A, s_flag, ne, T0)
    A(f"""{l6}:
    s_add_u32 s{s_j}, s{s_j}, {ncu}
    s_cmp_lt_u32 s{s_j}, {4*NSEG}
    s_cbranch_scc1 ln2_loop""")

WW = 96
def win_load(A, s_w, s_t, vt):
    tr, t = vt+2, vt+3
    A(f"""v_lshrrev_b32 v{t}, 4, v0
    v_lshlrev_b32 v{tr}, 2, v{t}
    v_bfe_u32 v{t}, v0, 2, 2
    v_add_u32 v{tr}, v{tr}, v{t}
    v_lshlrev_b32 v{tr}, 6, v{tr}
    v_and_b32 v{t}, 3, v0
    v_lshl_add_u32 v{tr}, v{t}, 4, v{tr}
    s_mul_i32 s{s_t}, s{W}, 40960
    v_add_u32 v{tr}, s{s_t}, v{tr}""")
    def reads(A, r, off):
        for ksl in range(5):
            for ab in range(2):
                for q in range(2):
                    A(f"ds_read_b64_tr_b16 {vr(WW+4*((5*r+ksl)*2+ab)+2*q,2)}, v{tr} offset:{off + ksl*2048 + q*1024 + 8*ab}")
    load_w_rows(A, s_w, 3072, 4, 640, 160, 4, s_t, 0, s_t+1, vt, reads)

def win_loop(A, name, z2, s_seg, s_unit, f_ln, s_flag, s_pol, exitlab, nsets=6, s_slow=37):
    VL, VD, VC0, VF, VF2, T0, T1, VST = 2, 3, 4, 5, 6, 7, 8, 9
    ACC, XR, GT, ST, PKD = 16, 32, 48, 64, 80
    sx, so, sdm, ne, c1, sx2 = 12, 13, 14, 15, 16, 17
    LST = 40960
    A(f"""v_lshlrev_b32 v{VL}, 4, v0
    s_mul_i32 s{sdm}, s{W}, 5120
    v_add_u32 v{VD}, s{sdm}, v{VL}
    v_mov_b32 v{VC0}, {hexf(GC0)}
    s_mov_b32 s{c1}, {hexf(GC1)}
    v_and_b32 v{VF}, 3, v0
    v_lshlrev_b32 v{VF}, 7, v{VF}
    v_add_u32 v{VF}, {f_ln}, v{VF}
    v_add_u32 v{VF}, s{s_pol}, v{VF}
    s_lshl_b32 s18, s{s_unit}, 2
    s_add_u32 s18, s18, s{W}
    s_lshl_b32 s18, s18, {11 if z2 else 10}
    s_add_u32 s18, s18, {WS_Z2 if z2 else WS_Z1}
    s_barrier
    {name}_loop:
    s_mul_hi_u32 s19, s{s_seg}, {-(-(1<<32)//nsets)}
    s_mul_i32 s19, s19, {nsets}
    s_sub_u32 s19, s{s_seg}, s19
    s_lshl_b32 s19, s19, 9
    v_add_u32 v{VF2}, s19, v{VF}
    s_add_u32 s{ne}, s{s_seg}, 1
    s_mul_i32 s{sx}, s{s_seg}, {SEG_XN}
    s_add_u32 s{sx}, s{sx}, {WS_HNF}
    s_mul_i32 s{so}, s{s_seg}, {SEG_Z}
    s_add_u32 s{so}, s{so}, s18""")
    if z2 and SXL:
        A(f"v_lshlrev_b32 v{VST}, 5, v0\ns_mul_i32 s19, s{s_seg}, {SEG_SX}\ns_add_u32 s19, s19, {WS_SX}")
        A(bl(1, T1, VST, 's19', 0, 'sc1'))
    wait_flags(A, VF2, T0, ne, exitlab, sleep=WINS)
    TS(A, 8, 12)
    for rt in range(2):
        for i in range(5):
            if i % 4 == 0: A(f"s_add_u32 m0, s{sdm}, {rt*20480 + (i//4)*4096}\ns_add_u32 s{sx2}, s{sx}, {rt*20480 + (i//4)*4096}")
            A(f"buffer_load_dwordx4 v{VD}, {srd}, s{sx2} offen offset:{(i%4)*1024} lds")
    A("s_waitcnt vmcnt(5)\ns_barrier")
    TS(A, 9, 12)
    def epi_ops(rt):
        regs = [ACC+8*rt+i for i in range(8)]
        g = GT + 8*rt
        ops = gelu_ops(regs, g, VC0, c1)
        if not z2:
            ops += [f"v_cvt_pk_bf16_f32 v{PKD+4*rt+j}, v{g+2*j}, v{g+2*j+1}" for j in range(4)]
            if rt: ops += [f"s_add_u32 s{so}, s{so}, 24576"]
            ops += [bs(4, PKD+4*rt, VL, f"s{so}", 0, 'sc1')]
        else:
            s_ = ST + 8*rt
            ops += [f"v_add_f32 v{s_+i}, v{g+i}, v{g+4+i}" for i in range(4)]
            ops += [f"v_mul_f32 v{s_+4+i}, v{g+i}, v{g+i}" for i in range(4)]
            ops += [f"v_fmac_f32 v{s_+4+i}, v{g+4+i}, v{g+4+i}" for i in range(4)]
            for sh in (8, 4, 2, 1):
                ops += [f"v_add_f32_dpp v{s_+i}, v{s_+i}, v{s_+i} row_ror:{sh} row_mask:0xf bank_mask:0xf" for i in range(8)]
        return ops
    NP = 4
    for n in range(NP-1): A(f"ds_read_b128 {vr(XR+4*n,4)}, v{VL} offset:{n*1024}")
    pend = []
    for n in range(40):
        rt, ks = divmod(n, 20)
        m = n + NP - 1
        if m == 20: A("s_waitcnt vmcnt(0)\ns_barrier")
        if m < 40: A(f"ds_read_b128 {vr(XR+4*(m%NP),4)}, v{VL} offset:{m*1024}")
        A(f"s_waitcnt lgkmcnt({min(NP-1, 39-n)})")
        if n == 22: pend = epi_ops(0)
        for ab in range(2):
            a = vr(ACC+8*rt+4*ab, 4); w = vr(WW+4*(ks*2+ab), 4); x = vr(XR+4*(n % NP), 4)
            o1, o2 = (x, w) if z2 else (w, x)
            A(f"v_mfma_f32_16x16x32_bf16 {a}, {o1}, {o2}, {'0' if ks == 0 else a}")
            for _ in range(2):
                if pend: A(pend.pop(0))
    TS(A, 10, 12)
    for o in pend + epi_ops(1): A(o)
    TS(A, 11, 12)
    if z2:
        A(f"""s_lshl_b32 s19, s{W}, 8
        s_add_u32 s19, s19, {LST}
        v_lshlrev_b32 v{T0}, 2, v0
        v_add_u32 v{T0}, s19, v{T0}
        s_mov_b32 exec_lo, 0x00010001
        s_mov_b32 exec_hi, 0x00010001""")
        for i in range(4): A(f"ds_write_b128 v{T0}, {vr(ST+4*i,4)} offset:{16*i}")
        A(f"""s_mov_b64 exec, -1
        v_lshlrev_b32 v{VST}, 2, v0
        s_mul_i32 s19, s{s_seg}, {SEG_SX}
        s_add_u32 s19, s19, {WS_SX}
        s_lshl_b32 s20, s{s_unit}, 8
        s_add_u32 s20, s20, s19
        s_waitcnt lgkmcnt(0)
        s_barrier""")
        l = A.newlabel('wz')
        A(f"s_cmp_lg_u32 s{W}, 0\ns_cbranch_scc1 {l}")
        for i in range(4): A(f"ds_read_b32 v{ST+i}, v{VST} offset:{LST+256*i}")
        A(f"""s_waitcnt lgkmcnt(0)
        v_add_f32 v{ST}, v{ST}, v{ST+1}
        v_add_f32 v{ST+2}, v{ST+2}, v{ST+3}
        v_add_f32 v{ST}, v{ST}, v{ST+2}
        v_min_u32 v{ST}, -2, v{ST}""")
        lp, ls = A.newlabel('wz'), A.newlabel('wz')
        A(f"s_cmp_lg_u32 s{s_slow}, 0\ns_cbranch_scc1 {ls}")
        A(bs(1, ST, VST, 's20', 0, '' if SXL else 'sc1'))
        A(f"s_branch {lp}\n{ls}:")
        A(bs(1, ST, VST, 's20', 0, 'sc1'))
        A(f"{lp}:")
        for u in range(6): A(bl(1, ST+u, VST, 's19', 256*u, 'sc1'))
        tick(A, exitlab)
        A(f"""s_waitcnt vmcnt(0)
        v_max3_u32 v{T0}, v{ST}, v{ST+1}, v{ST+2}
        v_max3_u32 v{T1}, v{ST+3}, v{ST+4}, v{ST+5}
        v_max_u32 v{T0}, v{T0}, v{T1}
        v_cmp_eq_u32 vcc, -1, v{T0}
        s_cbranch_vccnz {lp}
        v_add_f32 v{ST}, v{ST}, v{ST+1}
        v_add_f32 v{ST+2}, v{ST+2}, v{ST+3}
        v_add_f32 v{ST+4}, v{ST+4}, v{ST+5}
        v_add_f32 v{ST}, v{ST}, v{ST+2}
        v_add_f32 v{ST}, v{ST}, v{ST+4}
        v_mul_f32 v{ST}, {hexf(1.0/768)}, v{ST}
        v_mov_b32_dpp v{ST+1}, v{ST} row_shl:4 row_mask:0xf bank_mask:0x5
        v_mov_b32_dpp v{ST+1}, v{ST} row_shr:4 row_mask:0xf bank_mask:0xa
        s_mov_b32 vcc_lo, 0xf0f0f0f0
        s_mov_b32 vcc_hi, 0xf0f0f0f0
        v_cndmask_b32 v{ST+2}, v{ST}, v{ST+1}, vcc
        v_cndmask_b32 v{ST+3}, v{ST+1}, v{ST}, vcc
        v_fma_f32 v{ST+3}, -v{ST+2}, v{ST+2}, v{ST+3}
        v_max_f32 v{ST+3}, 0, v{ST+3}
        v_add_f32 v{ST+3}, {hexf(1e-5)}, v{ST+3}
        v_rsq_f32 v{ST+3}, v{ST+3}
        v_mul_f32 v{ST+2}, v{ST+2}, v{ST+3}
        v_cndmask_b32 v{ST+2}, v{ST+2}, v{ST+3}, vcc
        ds_write_b32 v{VST}, v{ST+2} offset:{LST+1024}
        s_waitcnt lgkmcnt(0)
        {l}:
        v_and_b32 v{T0}, 0xc0, v{VST}
        s_barrier""")
        TS(A, 12, 12)
        for i in range(4): A(f"ds_read_b128 {vr(ST+4*i,4)}, v{T0} offset:{LST+1024+16*i}")
        A("s_waitcnt lgkmcnt(0)")
        for ab in range(2):
            for rt in range(2):
                for i in range(4):
                    g = GT+8*rt+4*ab+i
                    A(f"v_fma_f32 v{g}, v{g}, v{ST+8*rt+4+i}, -v{ST+8*rt+i}")
                for j in range(2): A(f"v_cvt_pk_bf16_f32 v{PKD+4*ab+2*rt+j}, v{GT+8*rt+4*ab+2*j}, v{GT+8*rt+4*ab+2*j+1}")
            A(bs(4, PKD+4*ab, VL, f"s{so}", 1024*ab, 'sc1'))
    l = A.newlabel('wz')
    A(f"s_waitcnt vmcnt(0)\ns_barrier\ns_cmp_lg_u32 s{W}, 0\ns_cbranch_scc1 {l}")
    put_flag(A, s_flag, ne, T0)
    A(f"""{l}:
    s_add_u32 s{s_seg}, s{s_seg}, 2
    s_cmp_lt_u32 s{s_seg}, {NSEG}
    s_cbranch_scc1 {name}_loop""")

def sx_init(A, s_set, s_unit):
    A(f"""s_lshl_b32 s12, s{W}, 4
    s_add_u32 s12, s12, s{s_set}
    s_mul_i32 s12, s12, {SEG_SX}
    s_lshl_b32 s13, s{s_unit}, 8
    s_add_u32 s12, s12, s13
    s_add_u32 s12, s12, {WS_SX}
    v_lshlrev_b32 v16, 2, v0
    v_mov_b32 v17, -1""")
    for i in range(8):
        A(bs(1, 17, 16, 's12', 0, 'sc1'))
        if i < 7: A(f"s_add_u32 s12, s12, {2*SEG_SX}")

def spatial2(A, s_tb, s_fb, f_win, s_flag, exitlab, stamp=None):
    VL, VA, VB, VF, VSG, VN, T0, T1 = 2, 3, 4, 5, 6, 7, 8, 9
    VW = 10
    AC, FA, FB, Z1, BI = 48, 16, 32, 160, 12
    sw, sz, sc, sm, sx, tg = 12, 14, 15, 16, 17, 18
    A(f"""s_load_dwordx2 {sr(sw,2)}, s[0:1], {KA_WSP}
    s_load_dwordx2 s[20:21], s[0:1], {KA_BSP}
    v_lshlrev_b32 v{VL}, 4, v0
    v_bfe_u32 v{T0}, v0, 2, 2
    v_lshlrev_b32 v{T1}, 3, v{T0}
    v_and_b32 v{T0}, 3, v0
    v_add_u32 v{T1}, v{T1}, v{T0}
    v_lshlrev_b32 v{VW}, 12, v{T1}
    v_lshrrev_b32 v{T0}, 4, v0
    v_lshl_add_u32 v{VW}, v{T0}, 4, v{VW}
    v_add_u32 v{VW+1}, {4*4096}, v{VW}
    s_lshl_b32 s{sx}, s{s_tb}, 2
    s_add_u32 s{sx}, s{sx}, s{W}
    s_lshl_b32 s{sx}, s{sx}, 17
    s_lshr_b32 s22, s{W}, 1
    s_and_b32 s23, s{W}, 1
    s_lshl_b32 s24, s{s_tb}, 1
    s_add_u32 s24, s24, s22
    s_lshl_b32 s25, s24, 7
    v_lshlrev_b32 v{T1}, 1, v{T1}
    v_add_u32 v{T1}, s25, v{T1}
    s_waitcnt lgkmcnt(0)""")
    add64(A, sw, sw, f"s{sx}")
    if WSPW:
        A(f"""s_mul_i32 s27, s{s_fb}, 3
        s_min_u32 s27, s27, 13
        s_lshl_b32 s27, s27, 13
        v_lshlrev_b32 v{T0}, 7, v0
        v_add_u32 v{T0}, s27, v{T0}""")
        for i in range(3):
            A(f"global_load_dword v{VN}, v{T0}, {sr(sw,2)}")
            if i < 2: A(f"v_add_u32 v{T0}, 8192, v{T0}")
    for t in range(4): A(f"global_load_ushort v{BI+t}, v{T1}, s[20:21] offset:{(t>>1)*64 + (t&1)*8}")
    A(f"""s_lshl_b32 s{sz}, s{s_fb}, 2
    s_add_u32 s{sz}, s{sz}, s{W}
    s_lshl_b32 s{sz}, s{sz}, 11
    s_add_u32 s{sz}, s{sz}, {WS_Z2}
    s_lshl_b32 s{sm}, s{W}, 11
    s_lshl_b32 s{sx}, s22, 12
    v_add_u32 v{VB}, s{sx}, v{VL}
    s_lshl_b32 s{sx}, s23, 12
    s_add_u32 s{sx}, s{sx}, 8192
    v_add_u32 v{VA}, s{sx}, v{VL}
    v_and_b32 v{VSG}, 1, v0
    v_mul_u32_u24 v{VF}, {12*128}, v{VSG}
    s_lshl_b32 s{sx}, s{s_fb}, 7
    s_add_u32 s{sx}, s{sx}, {f_win + 6*128}
    v_add_u32 v{VF}, s{sx}, v{VF}
    s_mul_i32 s26, s24, {4*24576}
    s_lshl_b32 s27, s{s_fb}, 12
    s_add_u32 s26, s26, s27
    s_lshl_b32 s27, s23, 11
    s_add_u32 s26, s26, s27
    s_mov_b32 s{sc}, 0
    s_waitcnt vmcnt(0)""")
    for t in range(4):
        A(f"v_lshlrev_b32 v{BI+t}, 16, v{BI+t}")
        for i in range(16): A(f"v_mov_b32 v{AC+16*t+i}, v{BI+t}")
    def need(d):
        A(f"""s_add_u32 s{tg}, s{sc}, {d}
        v_add_u32 v{VN}, s{tg}, v{VSG}
        v_and_b32 v{VN}, 1, v{VN}
        v_xor_b32 v{VN}, 1, v{VN}
        v_sub_u32 v{VN}, s{tg}, v{VN}""")
    def dma_w(slot):
        for i in range(2):
            A(f"s_add_u32 m0, s{sm}, {slot*16384 + i*1024}\nglobal_load_lds_dwordx4 v{VW+i}, {sr(sw,2)}")
        add64(A, sw, sw, 64)
    def dma_z(slot):
        A(f"s_add_u32 m0, s{sm}, {slot*16384 + 8192}")
        for i in range(2): A(f"buffer_load_dwordx4 v{VL}, {srd}, s{sz} offen offset:{i*1024} lds")
        A(f"s_add_u32 s{sz}, s{sz}, {SEG_Z}")
    def mm(slots):
        lg = Lg(A)
        def rd(n):
            o = 32*(n % 2) if False else 0
            for t in range(4): lg.ds(f"ds_read_b128 {vr(FB+4*t,4) if n % 2 == 0 else vr(224+4*t,4)}, v{VB} offset:{slots[n]*16384+1024*t}", ('b', n, t))
            for f in range(4): lg.ds(f"ds_read_b128 {vr(FA+4*f,4) if n % 2 == 0 else vr(240+4*f,4)}, v{VA} offset:{slots[n]*16384+1024*f}", ('a', n, f))
        rd(0)
        for n in range(len(slots)):
            fb_, fa_ = (FB, FA) if n % 2 == 0 else (224, 240)
            for f in range(4):
                lg.need(('a', n, f))
                if f == 3 and n + 1 < len(slots): pass
                for t in range(4):
                    a = vr(AC+16*t+4*f, 4)
                    A(f"v_mfma_f32_16x16x32_bf16 {a}, {vr(fa_+4*f,4)}, {vr(fb_+4*t,4)}, {a}")
                if f == 0 and n + 1 < len(slots): rd(n+1)
    def decide(d, tag):
        need(d)
        A(f"""buffer_load_dword v{T0}, v{VF}, {srd}, 0 offen sc1
        s_waitcnt vmcnt(0)
        v_cmp_gt_u32 vcc, v{VN}, v{T0}
        s_cmp_eq_u64 vcc, 0
        s_cselect_b32 s19, 1, 0
        s_cmp_le_u32 s{tg}, {NSEG-5}
        s_cselect_b32 s19, s19, 0
        v_mov_b32 v{T0}, s19
        s_xor_b32 s33, s33, 4
        v_mov_b32 v{T1}, s33
        s_cmp_lg_u32 s{W}, 0
        s_cbranch_scc1 sp_nb{tag}
        ds_write_b32 v{T1}, v{T0}
        s_waitcnt lgkmcnt(0)
        sp_nb{tag}:
        s_barrier
        ds_read_b32 v{T0}, v{T1}
        s_waitcnt lgkmcnt(0)
        v_readfirstlane_b32 s19, v{T0}
        s_cmp_eq_u32 s19, 0""")
    def chunk():
        for sl in range(4): dma_w(sl); dma_z(sl)
        A(f"s_xor_b32 s{sm}, s{sm}, 65536")
    A("s_mov_b32 s33, 131072\ns_barrier\nsp_top:")
    A(f"s_cmp_gt_u32 s{sc}, {NSEG-9}\ns_cbranch_scc1 sp_one")
    decide(4, 'a')
    A("s_cbranch_scc1 sp_one")
    chunk()
    A("sp_bulk:")
    decide(8, 'b')
    A("s_cbranch_scc1 sp_nn")
    chunk()
    A("sp_nn:")
    mm([0, 1, 2, 3])
    A(f"""v_xor_b32 v{VA}, 65536, v{VA}
    v_xor_b32 v{VB}, 65536, v{VB}
    s_add_u32 s{sc}, s{sc}, 4
    s_cmp_lg_u32 s19, 0
    s_cbranch_scc1 sp_bulk
    sp_one:
    s_barrier""")
    dma_w(0)
    need(1)
    l, l2, l3 = A.newlabel('sp'), A.newlabel('sp'), A.newlabel('sp')
    if SPW0: A(f"s_cmp_lg_u32 s{W}, 0\ns_cbranch_scc1 {l3}")
    A(f"s_branch {l2}\n{l}:\ns_sleep {SPS}"); tick(A, exitlab)
    A(f"""{l2}:
    buffer_load_dword v{T0}, v{VF}, {srd}, 0 offen sc1
    s_waitcnt vmcnt(0)
    v_cmp_gt_u32 vcc, v{VN}, v{T0}
    s_cbranch_vccnz {l}""")
    if SPW0: A(f"{l3}:\ns_waitcnt vmcnt(0)\ns_barrier")
    TS(A, 10, 200)
    dma_z(0)
    A("s_waitcnt vmcnt(0)\ns_barrier")
    TS(A, 11, 200)
    mm([0])
    A(f"s_add_u32 s{sc}, s{sc}, 1\ns_cmp_lt_u32 s{sc}, {NSEG-ND}\ns_cbranch_scc1 sp_top")
    if stamp: stamp(A)
    A(f"s_add_u32 s27, s26, {WS_GY}")
    for t in range(4):
        for p in range(2):
            a = AC+16*t+8*p
            for j in range(4): A(f"v_cvt_pk_bf16_f32 v{Z1+8*t+4*p+j}, v{a+2*j}, v{a+2*j+1}")
            A(bs(4, Z1+8*t+4*p, VL, 's27', 1024*p, 'sc1'))
        if t < 3: A("s_add_u32 s27, s27, 24576")
    l = A.newlabel('sp')
    A(f"s_mov_b32 s19, 1\ns_waitcnt vmcnt(0)\ns_barrier\ns_cmp_lg_u32 s{W}, 0\ns_cbranch_scc1 {l}")
    put_flag(A, s_flag, 19, T0)
    A(f"{l}:")
    TS(A, 12, 200)
```

```python
import sys, os
if os.environ.get('OLDREC'):
    import r_rec_old; sys.modules['r_rec'] = r_rec_old
from common import *
from r_ln import *
from r_proj import *
from r_u import *
import r_rec as R
from r_rec import checkin, waitall, wait_flags, wait_flags_wg, put_flag, tick
from r_tail import *
KNAME = 'sequential_preLN__memory_aug_recurrent_mem_tr__mixer_gmlp__prompt_kernel'
PFAB = int(os.environ.get('PFAB', '1'))
PFV = int(os.environ.get('PFV', '1'))
OUTF = os.environ.get('OUTF', '')
PFU = int(os.environ.get('PFU', '1'))
PFWO = int(os.environ.get('PFWO', '1'))
PFUN = int(os.environ.get('PFUN', '2'))
PFO = int(os.environ.get('PFO', '0'))
VFIRST = int(os.environ.get('VFIRST', '0'))
PFW = int(os.environ.get('PFW', '0'))
DRY = int(os.environ.get('DRY', '1'))
KQD = int(os.environ.get('KQD', '0'))
UD = int(os.environ.get('UD', '0'))
TLBW = int(os.environ.get('TLBW', '0'))
TLBN = int(os.environ.get('TLBN', '8'))
WIDE = int(os.environ.get('WIDE', '0'))
ABW = int(os.environ.get('ABW', '0'))
AD = int(os.environ.get('AD', '0'))
BD = int(os.environ.get('BD', '0'))
HD = int(os.environ.get('HD', '0'))
ET = int(os.environ.get('ET', '0'))
ETM = eval(os.environ.get('ETM', '[2, 1]'))
ETS = int(os.environ.get('ETS', '4'))
CODEW = int(os.environ.get('CODEW', '1'))
PFUV = eval(os.environ.get('PFUV', '[]'))
PFLEAD = int(os.environ.get('PFLEAD', '3'))
PFOUT = int(os.environ.get('PFOUT', '1'))
HSTAMP = int(os.environ.get('HSTAMP', '0'))
STAMP = int(os.environ.get('STAMP', '0'), 0)
DBG = 90
F_QKV = WS_FLAG
F_U = WS_FLAG + 0x4000
F_X = 16384 + 2048
F_LN = F_X + 32768
F_WIN = WS_FLAG + 0x5000
F_GY = WS_FLAG + 0x6000
EXIT = 'mega_done'
X, TK, W = R.S_GRP, 2, 3
srd = R.srd

def wave0(A, fn):
    l = A.newlabel('w0')
    A(f"s_cmp_lg_u32 s{W}, 0\ns_cbranch_scc1 {l}")
    fn()
    A(f"{l}:")

def rt_stamp(A, idx, vt=15):
    if not STAMP: return
    def f():
        A(f"""s_memrealtime s[98:99]
        s_lshl_b32 s97, s{X}, 5
        s_add_u32 s97, s97, s{TK}
        s_lshl_b32 s97, s97, 6
        s_add_u32 s97, s97, {WS_STAT + 65536 + 4*idx}
        s_waitcnt lgkmcnt(0)""")
        put_flag(A, 97, 98, vt)
    wave0(A, f)

def cy_stamp(A, idx, vt=15):
    if not STAMP: return
    def f():
        A(f"""s_memtime s[98:99]
        s_lshl_b32 s97, s{X}, 5
        s_add_u32 s97, s97, s{TK}
        s_lshl_b32 s97, s97, 6
        s_add_u32 s97, s97, {WS_STAT + 65536 + 4*idx}
        s_waitcnt lgkmcnt(0)""")
        put_flag(A, 97, 98, vt)
    wave0(A, f)

def hstamp(A, word, vt, sreg=None):
    l = A.newlabel('hs')
    A(f"s_or_b32 s84, s{X}, s{TK}\ns_cmp_lg_u32 s84, 0\ns_cbranch_scc1 {l}")
    if sreg is None: A("s_memrealtime s[86:87]\ns_waitcnt lgkmcnt(0)\ns_sub_u32 s86, s86, s88")
    A(f"v_mov_b32 v{vt}, {4*word}\nv_mov_b32 v{vt+1}, s{86 if sreg is None else sreg}\nglobal_store_dword v{vt}, v{vt+1}, s[{DBG}:{DBG+1}] sc1\n{l}:")

def ln1_duty(A, s_idx):
    A(f"""s_load_dwordx2 s[12:13], s[0:1], {KA_X}
    s_lshl_b32 s16, s{s_idx}, 2
    s_add_u32 s16, s16, s{W}
    s_mul_i32 s16, s16, 20480
    s_waitcnt lgkmcnt(0)""")
    add64(A, 12, 12, 's16')
    A(f"s_add_u32 s16, s16, {WS_XNF}")
    add64(A, 14, 4, 's16')
    ln_rowtile(A, 12, 14, 0, 'sc1')

def pf_v(A, s_unit, PFV=PFV, PFO=PFO, s_u6=35, dov=True):
    if not PFV: return
    A(f"""s_load_dwordx2 s[12:13], s[0:1], {KA_WV}
    v_lshrrev_b32 v24, 2, v0
    v_mul_u32_u24 v24, 12288, v24
    v_and_b32 v25, 3, v0
    v_lshl_add_u32 v24, v25, 7, v24
    s_lshl_b32 s14, s{s_unit}, 9
    s_mul_i32 s15, s{W}, {16*12288}
    s_add_u32 s14, s14, s15
    s_add_u32 s14, s14, {64*12288}
    s_waitcnt lgkmcnt(0)""")
    add64(A, 12, 12, 's14')
    for c in range(5 if dov else 0):
        A("global_load_dword v26, v24, s[12:13]")
        if c < 4: add64(A, 12, 12, 128*12288)
    if PFO:
        A(f"""s_load_dwordx2 s[12:13], s[0:1], {KA_WO}
        s_lshl_b32 s14, s{s_u6}, 2
        s_add_u32 s14, s14, s{W}
        s_mul_hi_u32 s15, s14, {-(-(1<<32)//3)}
        s_mul_i32 s16, s15, 3
        s_sub_u32 s16, s14, s16
        s_sub_u32 s17, s{X}, 4
        s_lshl_b32 s17, s17, 3
        s_add_u32 s15, s15, s17
        s_mul_i32 s15, s15, 245760
        s_mul_i32 s16, s16, 13696
        s_add_u32 s15, s15, s16
        v_min_u32 v25, 52, v0
        v_lshlrev_b32 v25, 7, v25
        s_waitcnt lgkmcnt(0)""")
        add64(A, 12, 12, 's15')
        rr = [1, 3, 5] if PFO == 1 else list(range(6))
        prev = 0
        for r in rr:
            for hf in range(2):
                off = r*40960 + hf*6784
                add64(A, 12, 12, off - prev); prev = off
                A("global_load_dword v26, v25, s[12:13]")
    if PFV > 1:
        n = PFV - 1
        A(f"s_load_dwordx4 s[16:19], s[0:1], {KA_WQ}\ns_add_u32 s14, s14, {(5-n)*128*12288}\ns_waitcnt lgkmcnt(0)")
        add64(A, 16, 16, 's14'); add64(A, 18, 18, 's14')
        for c in range(n):
            A("global_load_dword v26, v24, s[18:19]\nglobal_load_dword v26, v24, s[16:17]")
            if c < n-1: add64(A, 16, 16, 128*12288); add64(A, 18, 18, 128*12288)

def pf_ab_old(A):
    if not PFAB: return
    l, l2 = A.newlabel('pf'), A.newlabel('pf')
    A(f"""s_and_b32 s18, s{TK}, 8
    s_lshl_b32 s18, s18, 1
    s_add_u32 s18, s18, {KA_WQ}
    s_load_dwordx4 s[12:15], s[0:1], s18
    s_and_b32 s16, s{TK}, 7
    s_lshl_b32 s17, s{X}, 3
    s_add_u32 s16, s16, s17
    v_mul_u32_u24 v24, {(65536+2)//3}, v0
    v_lshrrev_b32 v24, 16, v24
    v_mul_u32_u24 v25, 3, v24
    v_sub_u32 v25, v0, v25
    v_min_u32 v24, 15, v24
    v_mul_u32_u24 v24, 12288, v24
    v_lshl_add_u32 v24, v25, 7, v24
    s_mul_i32 s17, s16, 384
    s_mul_i32 s19, s{W}, {16*12288}
    s_add_u32 s17, s17, s19
    s_add_u32 s17, s17, {64*12288}
    s_waitcnt lgkmcnt(0)
    s_mov_b32 exec_hi, 0xffff""")
    add64(A, 12, 12, 's17')
    for c in range(5):
        A("global_load_dword v26, v24, s[12:13]")
        if c < 4: add64(A, 12, 12, 128*12288)
    A(f"s_cmp_lg_u32 s18, {KA_WQ}\ns_cbranch_scc1 {l}")
    add64(A, 14, 14, 's17')
    for c in range(5):
        A("global_load_dword v26, v24, s[14:15]")
        if c < 4: add64(A, 14, 14, 128*12288)
    A(f"""s_branch {l2}
    {l}:
    s_mov_b32 exec_hi, 0xff
    v_lshlrev_b32 v24, 7, v0
    s_mul_i32 s17, s16, 245760
    s_mul_i32 s19, s{W}, 10240
    s_add_u32 s17, s17, s19
    s_add_u32 s17, s17, 40960""")
    add64(A, 14, 14, 's17')
    if PFWO == 2: A("s_waitcnt vmcnt(0)")
    for c in range(3 if PFWO else 0):
        A("global_load_dword v26, v24, s[14:15]")
        add64(A, 14, 14, 5120)
        A("global_load_dword v26, v24, s[14:15]")
        if c < 2: add64(A, 14, 14, 81920-5120)
    A(f"{l2}:\ns_mov_b64 exec, -1")

def pf_ab(A):
    if not PFAB: return
    for _ in range(HD): A("s_sleep 36")
    if not ABW: return pf_ab_old(A)
    l, l2 = A.newlabel('pf'), A.newlabel('pf')
    A(f"""s_and_b32 s18, s{TK}, 8
    s_lshl_b32 s18, s18, 1
    s_add_u32 s18, s18, {KA_WQ}
    s_load_dwordx4 s[12:15], s[0:1], s18
    s_and_b32 s16, s{TK}, 7
    s_lshl_b32 s17, s16, 2
    s_add_u32 s17, s17, s{W}
    s_mul_i32 s17, s17, {2*12288}
    s_mul_i32 s19, s{X}, 3072
    s_add_u32 s17, s17, s19
    s_add_u32 s17, s17, {(ABW-1)*64*12288}
    v_cmp_le_u32 vcc, 24, v0
    v_cndmask_b32 v24, 0, 1, vcc
    v_mul_u32_u24 v24, {12288 - 24*128}, v24
    v_lshl_add_u32 v24, v0, 7, v24
    s_waitcnt lgkmcnt(0)
    s_mov_b32 exec_hi, 0xffff""")
    add64(A, 12, 12, 's17')
    for c in range(ABW-1, 10):
        A("global_load_dword v26, v24, s[12:13]")
        if c < 9: add64(A, 12, 12, 64*12288)
    A(f"s_cmp_lg_u32 s18, {KA_WQ}\ns_cbranch_scc1 {l}\ns_sub_u32 s17, s17, {(ABW-1)*64*12288}")
    add64(A, 14, 14, 's17')
    for c in range(10):
        A("global_load_dword v26, v24, s[14:15]")
        if c < 9: add64(A, 14, 14, 64*12288)
    A(f"""s_branch {l2}
    {l}:
    s_mov_b32 exec_hi, 0xff
    v_lshlrev_b32 v24, 7, v0
    s_lshl_b32 s17, s{X}, 3
    s_add_u32 s16, s16, s17
    s_mul_i32 s17, s16, 245760
    s_mul_i32 s19, s{W}, 10240
    s_add_u32 s17, s17, s19
    s_add_u32 s17, s17, 40960""")
    add64(A, 14, 14, 's17')
    for c in range(3 if PFWO else 0):
        A("global_load_dword v26, v24, s[14:15]")
        add64(A, 14, 14, 5120)
        A("global_load_dword v26, v24, s[14:15]")
        if c < 2: add64(A, 14, 14, 81920-5120)
    A(f"{l2}:\ns_mov_b64 exec, -1")

def k_mega(A):
    if STAMP & 0x200:
        def tsh(A, i, vt):
            A(f's_memrealtime s[{60+2*i}:{61+2*i}]\ns_waitcnt lgkmcnt(0)')
        TSH[0] = tsh
    A(f""".p2align 8
    {KNAME}:
    s_cmp_ge_u32 s2, 256
    s_cbranch_scc1 {EXIT}
    s_load_dwordx2 s[4:5], s[0:1], {KA_WS}
    s_load_dwordx2 s[{DBG}:{DBG+1}], s[0:1], {KA_DBG}
    s_load_dwordx2 s[16:17], s[0:1], {KA_X}
    s_getreg_b32 s9, hwreg(HW_REG_XCC_ID)
    s_and_b32 s9, s9, 15
    s_and_b32 s{X}, s9, 7
    {['', f's_lshr_b32 s{X}, s2, 5', f's_mov_b32 s{X}, 0', f's_mov_b32 s{X}, 5'][int(os.environ.get('FAKEX', '0'))]}
    v_lshrrev_b32 v1, 6, v0
    v_readfirstlane_b32 s{W}, v1
    v_and_b32 v0, 63, v0
    s_mov_b32 s{R.S_TO}, 0
    s_mov_b32 s6, 0x10000000
    s_mov_b32 s7, 0x20000""")
    if STAMP or HSTAMP: A("s_memrealtime s[88:89]")
    A(f"""s_waitcnt lgkmcnt(0)
    v_mov_b32 v1, 0
    s_mov_b32 s19, -1
    s_cmp_lg_u32 s2, 0
    s_cbranch_scc1 mega_nocal
    s_cmp_lg_u32 s{W}, 3
    s_cbranch_scc1 mega_calj
    s_mov_b64 exec, 1
    v_mov_b32 v2, {(1<<21) - 16384 + 4096}
    v_mov_b32 v3, {(1<<21) - 8192 + 4096}
    s_mov_b32 s20, 0""")
    for rep in range(4):
        a, b = (2, 3) if rep % 2 == 0 else (3, 2)
        A(f"""global_store_dword v{a}, v1, s[4:5] sc1
        global_store_dword v{b}, v1, s[4:5] sc1
        s_waitcnt vmcnt(1)
        s_memtime s[12:13]
        s_waitcnt vmcnt(0)
        s_memtime s[14:15]
        s_waitcnt lgkmcnt(0)
        s_sub_u32 s14, s14, s12
        s_min_u32 s14, s14, 400
        {'s_add_u32' if rep % 2 == 0 else 's_sub_u32'} s20, s20, s14""")
    A(f"""s_cmp_lt_i32 s20, 0
    s_cselect_b32 s14, 8193, 1
    s_and_b32 s15, s9, 4
    s_lshl_b32 s15, s15, 11
    s_xor_b32 s14, s14, s15
    v_mov_b32 v2, {4*R.D_POL}
    v_mov_b32 v4, s14
    v_mov_b32 v5, s20
    global_store_dwordx2 v2, v[4:5], s[{DBG}:{DBG+1}] sc1
    {'v_mov_b32 v2, 56' if HSTAMP else ''}
    {f'global_store_dwordx2 v2, v[4:5], s[{DBG}:{DBG+1}] sc1' if HSTAMP else ''}
    s_mov_b64 exec, -1
    mega_calj:
    s_barrier
    s_branch mega_noln
    mega_nocal:""")
    if CODEW:
        A(f"""s_cmp_lg_u32 s{W}, 1
        s_cbranch_scc1 mega_nocw
        s_sub_u32 s12, s2, 16
        s_cmp_ge_u32 s12, 16
        s_cbranch_scc1 mega_nocw
        s_getpc_b64 s[20:21]
        mega_pc:
        s_lshr_b32 s12, s12, 3
        s_lshl_b32 s12, s12, 13
        v_lshlrev_b32 v2, 7, v0
        v_add_u32 v2, s12, v2
        s_mov_b32 s13, mega_code_end-mega_pc-4""")
        for i in range(8):
            A(f"v_min_u32 v3, s13, v2\nglobal_load_dword v8, v3, s[20:21]\nv_add_u32 v2, 16384, v2")
        A("s_waitcnt vmcnt(0)\nmega_nocw:")
    if ET:
        A(f"""s_cmp_lg_u32 s{W}, 1
        s_cbranch_scc1 mega_noet
        s_load_dwordx8 s[20:27], s[0:1], {KA_WQ}
        v_min_u32 v2, 59, v0
        v_lshlrev_b32 v2, 7, v2
        s_mul_i32 s12, s2, 7680
        v_add_u32 v2, s12, v2
        s_sleep {ETS}
        s_waitcnt lgkmcnt(0)""")
        for i in range(ET):
            m = ETM[i // 4]
            A(f"v_add_u32 v3, {(i % 4)*1966080}, v2\nglobal_load_dword v4, v3, s[{20+2*m}:{21+2*m}]")
        A("mega_noet:")
    if TLBW:
        n = -(-7864320 // (64*TLBW))
        A(f"""s_cmp_lg_u32 s{W}, 1
        s_cbranch_scc1 mega_notlb
        s_sub_u32 s12, s2, 8
        s_cmp_ge_u32 s12, {TLBN}
        s_cbranch_scc1 mega_notlb
        s_load_dwordx8 s[20:27], s[0:1], {KA_WQ}
        s_mov_b32 s12, {TLBW}
        v_mul_lo_u32 v2, s12, v0
        s_waitcnt lgkmcnt(0)""")
        for i in range(n):
            A(f"v_min_u32 v3, {7864320-4}, v2")
            for m in (2, 1, 0, 3): A(f"global_load_dword v4, v3, s[{20+2*m}:{21+2*m}]")
            if i < n-1: A(f"v_add_u32 v2, {64*TLBW}, v2")
        A("mega_notlb:")
    A(f"""s_cmp_eq_u32 s{W}, 3
    s_cselect_b32 s19, s2, -1
    s_lshl_b32 s12, s2, 2
    s_add_u32 s12, s12, s{W}
    s_cmp_eq_u32 s12, 6
    s_cselect_b32 s19, 0, s19
    s_cmp_eq_u32 s19, -1
    s_cbranch_scc1 mega_noln""")
    ln1_small(A, 16, 19, srd, WS_XNF)
    A(f"""mega_noln:
    s_cmp_lg_u32 s{W}, 0
    s_cbranch_scc1 mega_t1
    s_mov_b64 exec, 1
    v_mov_b32 v3, 1
    s_mov_b32 s12, 0
    mega_tk:
    s_cmp_eq_u32 s{X}, s9
    s_cbranch_scc1 mega_home
    v_mov_b32 v2, {4*R.D_SLOW}
    global_store_dword v2, v3, s[{DBG}:{DBG+1}] sc1
    s_waitcnt vmcnt(0)
    mega_home:
    s_and_b32 s14, s{X}, 3
    s_lshl_b32 s14, s14, 6
    s_and_b32 s15, s{X}, 4
    s_add_u32 s14, s14, s15
    v_mov_b32 v2, s14
    global_atomic_add v4, v2, v3, s[{DBG}:{DBG+1}] sc0
    s_waitcnt vmcnt(0)
    v_readfirstlane_b32 s14, v4
    s_cmp_lt_u32 s14, 32
    s_cbranch_scc1 mega_got
    s_add_u32 s{X}, s{X}, 1
    s_and_b32 s{X}, s{X}, 7
    s_add_u32 s12, s12, 1
    s_cmp_lt_u32 s12, 8
    s_cbranch_scc1 mega_tk
    mega_got:
    v_mov_b32 v5, s{X}
    ds_write_b64 v1, v[4:5]
    s_waitcnt lgkmcnt(0)
    s_mov_b64 exec, -1
    mega_t1:
    s_barrier
    ds_read_b64 v[4:5], v1
    s_waitcnt lgkmcnt(0)
    v_readfirstlane_b32 s{TK}, v4
    v_readfirstlane_b32 s{X}, v5
    s_cmp_eq_u32 s19, -1
    s_cbranch_scc1 mega_noln2
    s_and_b32 s18, s19, 3
    s_lshl_b32 s18, s18, 6
    s_add_u32 s18, s18, {4*R.D_LN}
    v_mov_b32 v2, s18
    v_mov_b32 v3, 1
    s_mov_b64 exec, 1
    s_waitcnt vmcnt(0)
    global_atomic_add v2, v3, s[{DBG}:{DBG+1}]
    s_mov_b64 exec, -1
    mega_noln2:
    s_barrier
    s_cmp_ge_u32 s{TK}, 32
    s_cbranch_scc1 {EXIT}""")
    if STAMP:
        A("s_mov_b32 s71, s88")
        for i in range(72, 88): A(f"s_mov_b32 s{i}, 0")
        wave0(A, lambda: (A(f"s_lshl_b32 s84, s{X}, 5\ns_add_u32 s84, s84, s{TK}\ns_lshl_b32 s84, s84, 6\ns_add_u32 s84, s84, {WS_STAT+65536}"), put_flag(A, 84, 88, 15)))
    rt_stamp(A, 1)
    A(f"""s_cmp_ge_u32 s{X}, 4
    s_cbranch_scc1 mega_hi
    s_cmp_ge_u32 s{TK}, 26
    s_cbranch_scc1 mega_ln2
    s_and_b32 s{R.S_HL}, s{TK}, 7
    s_cmp_ge_u32 s{TK}, 16
    s_cbranch_scc1 mega_R
    s_cmp_ge_u32 s{TK}, 8
    s_cbranch_scc1 mega_B
    s_branch mega_A
    mega_hi:
    s_cmp_ge_u32 s{TK}, 26
    s_cbranch_scc1 mega_win
    s_cmp_ge_u32 s{TK}, 18
    s_cbranch_scc1 mega_U""")
    A(f"""s_mul_hi_u32 s22, s{TK}, {-(-(1<<32)//6)}
    s_mul_i32 s23, s22, 6
    s_sub_u32 s23, s{TK}, s23
    s_sub_u32 s22, 2, s22
    s_sub_u32 s20, s{X}, 4
    s_mul_i32 s20, s20, 6
    s_add_u32 s23, s23, s20
    s_mul_i32 s30, s22, 24
    s_add_u32 s30, s30, s23
    s_lshl_b32 s30, s30, 7
    s_add_u32 s30, s30, {F_QKV}
    s_lshl_b32 s24, s22, 3
    s_add_u32 s24, s24, {KA_WQ}
    s_load_dwordx2 s[32:33], s[0:1], s24
    s_lshl_b32 s25, s23, 2
    s_add_u32 s25, s25, s{W}
    s_lshl_b32 s26, s25, 7
    s_mul_hi_u32 s27, s25, {-(-(1<<32)//3)}
    s_mul_i32 s28, s27, 3
    s_sub_u32 s28, s25, s28
    s_mul_i32 s27, s27, 12288
    s_lshl_b32 s28, s28, 11
    s_add_u32 s27, s27, s28
    s_mul_i32 s28, s22, {WS_KF-WS_QF}
    s_add_u32 s27, s27, s28
    s_add_u32 s27, s27, {WS_QF}""")
    A("s_waitcnt lgkmcnt(0)")
    if WIDE:
        A(f"""s_sub_u32 s21, s23, s20
        s_lshl_b32 s21, s21, 2
        s_add_u32 s21, s21, s{W}
        s_lshl_b32 s21, s21, 6
        v_add_u32 v24, s21, v0
        v_mul_u32_u24 v25, {(65536+23)//24}, v24
        v_lshrrev_b32 v25, 16, v25
        v_mul_u32_u24 v25, {12288 - 24*128}, v25
        v_lshl_add_u32 v24, v24, 7, v25
        s_lshl_b32 s21, s20, 9""")
        add64(A, 38, 32, 's21')
    add64(A, 32, 32, 's26'); add64(A, 34, 4, 's27'); add64(A, 36, 4, WS_XNF)
    if KQD:
        A("s_cmp_eq_u32 s22, 2\ns_cbranch_scc1 proj_go2")
        for _ in range(KQD): A("s_sleep 36")
        A("proj_go2:")
    if VFIRST:
        A(f"s_sub_u32 s21, s23, s20\ns_cmp_eq_u32 s22, 2\ns_cbranch_scc1 proj_go\ns_cmp_eq_u32 s22, 0\ns_cbranch_scc1 proj_hq")
        pf_v(A, 23, 1, 0)
        A(f"s_waitcnt vmcnt({VFIRST-1})\ns_branch proj_go\nproj_hq:")
        pf_v(A, 23, 1, 1, 21, dov=False)
        A(f"s_waitcnt vmcnt({VFIRST-1})\nproj_go:")
    A(f"s_mov_b32 s16, {NSEG}\nv_lshlrev_b32 v2, 4, v0\ns_mul_i32 s18, s{W}, 10240\nv_add_u32 v3, s18, v2\ns_mov_b32 s19, 0")
    def xn0(A):
        for i in range(10):
            if i % 4 == 0: A(f"s_add_u32 m0, s18, {(i//4)*4096}")
            A(f"global_load_lds_dwordx4 v3, s[36:37] offset:{(i%4)*1024}")
            if i % 4 == 3: add64(A, 36, 36, 4096)
        add64(A, 36, 36, SEG_XN - 8192)
    def touch(A):
        A("global_load_dword v26, v24, s[38:39]")
        add64(A, 38, 38, 64*12288)
    WPRE = int(os.environ.get('WPRE', '0'))
    if WIDE:
        if WPRE == 0: add64(A, 38, 38, 3*64*12288)
        else:
            for _ in range(3): touch(A)
    def whook(A, c, ph):
        if WIDE and c == -1:
            for _ in range(WIDE): touch(A)
        if WIDE and ph == 1 and c + 3 + WIDE < 10 and c >= 0: touch(A)
        if c == 3 and ph == 0:
            waitall(A, DBG, EXIT, 2, setup_only=True)
            A(f"global_load_dword v18, v16, s[{DBG}:{DBG+1}] sc1")
        if c == 6 and ph == 1:
            l = A.newlabel('x0')
            A(f"v_cmp_gt_u32 vcc, v17, v18\ns_cbranch_vccnz {l}")
            xn0(A)
            A(f"s_mov_b32 s19, 1\n{l}:")
    load_w64(A, 32, 12288, W, 0, 12, 4, depth=3, base=65536, hook=whook, wide=WIDE)
    rt_stamp(A, 2)
    A("s_cmp_lg_u32 s19, 0\ns_cbranch_scc1 proj_x0")
    waitall(A, DBG, EXIT, 2)
    xn0(A)
    A("proj_x0:")
    rt_stamp(A, 3); cy_stamp(A, 8)
    def mid(A):
        wave0(A, lambda: (A(f"s_sub_u32 s17, {NSEG}, s16"), put_flag(A, 30, 17, 12)))
        if STAMP & 0x100:
            for k in range(3):
                l = A.newlabel('ms'); A(f"s_cmp_lg_u32 s16, {NSEG-k}\ns_cbranch_scc1 {l}"); rt_stamp(A, 10+k); A(f"{l}:")
    proj_loop(A, 'proj', 36, 16, W, 0, make_epi_qkv(34, 2, os.environ.get('PST', 'sc1')), mid_hook=mid, s_t=12, vt=8, seg0_done=True, nmid=int(os.environ.get('NMID', '19')))
    A("s_waitcnt vmcnt(0)\ns_barrier"); mid(A)
    rt_stamp(A, 4); cy_stamp(A, 9)
    A(f"s_mov_b32 s51, 0\ns_branch mega_sp")
    A(f"""mega_U:
    s_load_dwordx2 s[32:33], s[0:1], {KA_WO}
    s_sub_u32 s20, s{X}, 4
    s_lshl_b32 s20, s20, 3
    s_add_u32 s20, s20, s{TK}
    s_sub_u32 s20, s20, 18
    s_lshl_b32 s30, s20, 7
    s_add_u32 s30, s30, {F_U}
    s_mul_i32 s22, s20, 245760
    s_mul_i32 s23, s{W}, 320
    s_add_u32 s22, s22, s23
    s_mul_i32 s23, s20, 12288
    s_add_u32 s23, s23, {WS_VF}
    s_mul_i32 s24, s20, 40960
    s_mul_i32 s25, s{W}, 10240
    s_add_u32 s24, s24, s25
    s_add_u32 s24, s24, {WS_UF}
    s_mul_i32 s25, s20, 192
    v_and_b32 v3, 1, v0
    v_mul_u32_u24 v3, 191, v3
    v_add_u32 v3, s25, v3
    v_lshrrev_b32 v3, 8, v3
    v_lshlrev_b32 v3, 7, v3
    v_add_u32 v3, {F_QKV + 48*128}, v3""")
    A("s_waitcnt lgkmcnt(0)")
    add64(A, 32, 32, 's22')
    A(f"s_xor_b32 s14, s{X}, 4\ns_lshl_b32 s14, s14, 3\ns_and_b32 s15, s{TK}, 7\ns_add_u32 s14, s14, s15")
    gy2_init(A, 14)
    if PFU:
        A(f"""s_load_dwordx4 s[12:15], s[0:1], {KA_WQ}
        v_cmp_le_u32 vcc, 24, v0
        v_cndmask_b32 v24, 0, 1, vcc
        v_mul_u32_u24 v24, {12288 - 24*128}, v24
        v_lshl_add_u32 v24, v0, 7, v24
        s_sub_u32 s16, s{TK}, 18
        s_lshl_b32 s16, s16, 2
        s_add_u32 s16, s16, s{W}
        s_mul_i32 s16, s16, {2*12288}
        s_sub_u32 s17, s{X}, 4
        s_mul_i32 s17, s17, 3072
        s_add_u32 s16, s16, s17
        s_add_u32 s16, s16, {64*12288}
        s_waitcnt lgkmcnt(0)
        s_mov_b32 exec_hi, 0xffff""")
        add64(A, 12, 12, 's16'); add64(A, 14, 14, 's16')
        if PFUV:
            A(f"s_load_dwordx2 s[18:19], s[0:1], {KA_WV}\ns_waitcnt lgkmcnt(0)")
            add64(A, 18, 18, 's16')
            prev = 1
            for c in PFUV:
                if c != prev: add64(A, 18, 18, (c-prev)*64*12288)
                prev = c
                A("global_load_dword v26, v24, s[18:19]")
        for c in range(PFUN):
            A("global_load_dword v26, v24, s[14:15]\nglobal_load_dword v26, v24, s[12:13]")
            if c < PFUN-1: add64(A, 12, 12, 128*12288); add64(A, 14, 14, 128*12288)
        A(f"s_mov_b64 exec, -1\ns_waitcnt vmcnt({PFU-1})")
        rt_stamp(A, 3)
    for _ in range(UD): A("s_sleep 36")
    u_load_w(A, 32, W, 0, 12, 4)
    rt_stamp(A, 2)
    A(f"v_lshlrev_b32 v2, 4, v0\ns_lshl_b32 s12, s{W}, 2\ns_add_u32 s30, s30, s12")
    waitall(A, DBG, EXIT, 2, s_slow=51)
    A("s_cmp_lg_u32 s51, 0\ns_cselect_b32 s51, 2, 1")
    def ust(A, k):
        if STAMP & 0x100:
            l = A.newlabel('us'); A(f"s_cmp_lg_u32 s16, {k//4}\ns_cbranch_scc1 {l}"); rt_stamp(A, 8+k); A(f"{l}:")
    u_loop2(A, 'u', 23, 24, 30, 3, wait_flags, put_flag, srd, EXIT, ust)
    rt_stamp(A, 4)
    A(f"mega_sp:\ns_lshr_b32 s40, s{TK}, 3")
    load_wout(A, 40, 12, 4)
    A(f"""s_cmp_ge_u32 s{TK}, 24
    s_cbranch_scc1 mega_out
    s_mov_b32 s41, 0
    s_mov_b32 s52, 1
    s_branch mega_out3
    mega_ret1:
    s_mul_hi_u32 s30, s{TK}, {-(-(1<<32)//6)}
    s_mul_i32 s31, s30, 6
    s_sub_u32 s31, s{TK}, s31
    s_sub_u32 s32, s{X}, 4
    s_lshl_b32 s33, s32, 2
    s_add_u32 s30, s30, s33
    s_mul_i32 s32, s32, 24
    s_add_u32 s32, s32, s{TK}
    s_lshl_b32 s32, s32, 7
    s_add_u32 s32, s32, {F_GY}""")
    rt_stamp(A, 5)
    spatial2(A, 30, 31, F_WIN, 32, EXIT, stamp=lambda A: rt_stamp(A, 6))
    A(f"""s_mov_b32 s41, s51
    s_mov_b32 s52, 2
    s_branch mega_out3
    mega_out:
    s_mov_b32 s41, 0
    mega_out2:
    s_mov_b32 s52, 0
    mega_out3:
    s_xor_b32 s40, s{X}, 4
    s_lshl_b32 s40, s40, 3
    s_and_b32 s12, s{TK}, 7
    s_add_u32 s40, s40, s12
    s_lshl_b32 s40, s40, 2
    s_lshr_b32 s12, s{TK}, 3
    s_add_u32 s40, s40, s12""")
    out_task(A, 40, F_GY, EXIT, 'mega_end', OUTF, 41, F_WIN, 52)
    A("mega_end:\ns_cmp_eq_u32 s52, 1\ns_cbranch_scc1 mega_ret1")
    if STAMP: A("s_waitcnt vmcnt(0)")
    rt_stamp(A, 7)
    if STAMP & 0x200:
        def dump():
            for i in range(8, 15):
                A(f"s_lshl_b32 s12, s{X}, 5\ns_add_u32 s12, s12, s{TK}\ns_lshl_b32 s12, s12, 6\ns_add_u32 s12, s12, {WS_STAT + 65536 + 4*i}")
                put_flag(A, 12, 60+2*i, 15)
        wave0(A, dump)
    if HSTAMP: A("s_waitcnt vmcnt(0)"); hstamp(A, 12, 16); hstamp(A, 13, 16, 4)
    A(f"{EXIT}:\ns_endpgm")
    A(f"mega_wo:\ns_waitcnt vmcnt(0)\ns_barrier\ns_lshr_b32 s40, s{TK}, 3")
    load_wout(A, 40, 12, 4)
    A("s_branch mega_out")
    A(f"""mega_ln2:
    s_mul_i32 s24, s{X}, {4 if PFW else 6}
    s_add_u32 s24, s24, s{TK}
    s_sub_u32 s24, s24, 26
    s_lshl_b32 s30, s24, 7
    s_add_u32 s30, s30, {F_LN}
    s_cmp_ge_u32 s{TK}, 30
    s_cbranch_scc1 mega_ln2j
    s_lshl_b32 s12, s{X}, 2
    s_add_u32 s12, s12, s{TK}
    s_sub_u32 s12, s12, 26
    s_lshl_b32 s12, s12, 2
    s_add_u32 s12, s12, s{W}
    s_lshl_b32 s13, s12, 10
    s_add_u32 s13, s13, {WS_FLAG}
    s_lshl_b32 s14, s12, 11
    s_add_u32 s14, s14, {WS_SX}
    s_and_b32 s15, s12, 7
    s_min_u32 s15, s15, 5
    s_lshl_b32 s15, s15, 10
    s_bfe_u32 s16, s12, 0x10003
    s_lshl_b32 s16, s16, 13
    s_add_u32 s15, s15, s16
    s_bfe_u32 s16, s12, 0x10004
    s_lshl_b32 s16, s16, 15
    s_add_u32 s12, s15, s16
    s_add_u32 s12, s12, {F_X}
    v_lshlrev_b32 v2, 4, v0""")
    for i in range(4): A(f"v_mov_b32 v{16+i}, 0")
    for i in range(4): A(f"v_mov_b32 v{20+i}, -1")
    A(bs(4, 16, 2, 's13', 0, 'sc1')); A(bs(4, 16, 2, 's12', 0, 'sc1'))
    A(bs(4, 20, 2, 's14', 0, 'sc1')); A(bs(4, 20, 2, 's14', 1024, 'sc1'))
    checkin(A, DBG)
    A("mega_ln2j:")
    pf_ab(A)
    rt_stamp(A, 2)
    A(f"s_lshr_b32 s40, s{TK}, 3\nv_lshlrev_b32 v2, 4, v0")
    waitall(A, DBG, EXIT, 2, s_pol=31)
    if PFW: A(f"s_cmp_ge_u32 s{TK}, 30\ns_cbranch_scc1 mega_pfw")
    A(f'v_mov_b32 v4, {F_U}\ns_mov_b32 s12, 1')
    wait_flags(A, 4, 5, 12, EXIT, sleep=20)
    load_wout(A, 40, 12, 4)
    A("s_add_u32 s30, s30, s31\ns_barrier")
    ln2_loop(A, 24, 16 if PFW else 24, F_X, 30, 31, EXIT)
    rt_stamp(A, 4)
    A("s_branch mega_out")
    if PFW:
        A(f"""mega_pfw:
        s_lshl_b32 s20, s{X}, 1
        s_add_u32 s20, s20, s{TK}
        s_sub_u32 s20, s20, 30
        s_lshl_b32 s20, s20, 2
        s_add_u32 s20, s20, s{W}
        s_mul_i32 s21, s20, 40960
        s_add_u32 s21, s21, {WS_UF + 2*SEG_U}
        s_mul_i32 s22, s20, 12288
        s_add_u32 s23, s22, {WS_QF + 2*SEG_QKV}
        s_add_u32 s22, s22, {WS_KF + 2*SEG_QKV}
        v_lshlrev_b32 v3, 7, v0
        s_lshl_b32 s12, s20, 7
        s_add_u32 s12, s12, {F_U}
        v_and_b32 v4, 3, v0
        v_lshlrev_b32 v4, 2, v4
        v_add_u32 v4, s12, v4
        s_mul_i32 s12, s{X}, 1280
        s_add_u32 s12, s12, {F_X}
        s_add_u32 s12, s12, s31
        v_mov_b32 v5, s12
        s_mov_b32 s24, 2
        pfw_loop:
        s_sub_u32 s12, s24, {PFLEAD}
        s_max_i32 s12, s12, 0""")
        wait_flags(A, 5, 6, 12, EXIT, sleep=3)
        A("s_add_u32 s12, s24, 1")
        wait_flags(A, 4, 6, 12, EXIT, sleep=3)
        for i in range(5):
            A(f"buffer_load_dword v7, v3, {srd}, s21 offen\ns_add_u32 s21, s21, {8192 if i < 4 else SEG_U - 4*8192}\ns_waitcnt vmcnt({PFOUT})")
        if PFW > 1:
            A("s_mov_b32 exec_hi, 0xffff")
            for sp in (22, 23):
                for i in range(2):
                    A(f"buffer_load_dword v7, v3, {srd}, s{sp} offen\ns_add_u32 s{sp}, s{sp}, {6144 if i < 1 else SEG_QKV - 6144}\ns_waitcnt vmcnt({PFOUT})")
            A("s_mov_b32 exec_hi, -1")
        A(f"s_add_u32 s24, s24, 1\ns_cmp_lt_u32 s24, {NSEG}\ns_cbranch_scc1 pfw_loop\ns_branch mega_wo")
    A(f"""mega_win:
    s_sub_u32 s34, s{X}, 4
    s_sub_u32 s35, s{TK}, 26
    s_mul_i32 s22, s34, 6
    s_add_u32 s22, s22, s35
    s_lshl_b32 s30, s22, 7
    s_add_u32 s30, s30, {F_WIN}
    s_lshr_b32 s36, s34, 1
    s_and_b32 s34, s34, 1""")
    if VFIRST: pf_v(A, 22, 6, 0, dov=False)
    else: pf_v(A, 22)
    rt_stamp(A, 2)
    A(f"""s_load_dwordx2 s[32:33], s[0:1], {KA_WIN}
    s_lshr_b32 s40, s{TK}, 3
    v_lshlrev_b32 v2, 4, v0""")
    waitall(A, DBG, EXIT, 2, s_pol=31, s_slow=37)
    A(f'v_mov_b32 v4, {F_U}\ns_mov_b32 s12, 1')
    wait_flags(A, 4, 5, 12, EXIT, sleep=20)
    load_wout(A, 40, 12, 4)
    A(f"""s_mul_i32 s25, s34, 6
    s_add_u32 s25, s25, s35
    s_lshl_b32 s25, s25, 2
    s_add_u32 s25, s25, s{W}
    s_lshl_b32 s25, s25, 6""")
    add64(A, 32, 32, 's25')
    win_load(A, 32, 12, 4)
    A("s_cmp_lg_u32 s34, 0\ns_cbranch_scc1 mega_win2")
    win_loop(A, 'win1', False, 36, 35, F_LN, 30, 31, EXIT, 4 if PFW else 6)
    rt_stamp(A, 4)
    A("s_mov_b32 s41, 3\ns_branch mega_out2\nmega_win2:")
    win_loop(A, 'win2', True, 36, 35, F_LN, 30, 31, EXIT, 4 if PFW else 6)
    rt_stamp(A, 4)
    A("s_mov_b32 s41, 3\ns_branch mega_out2")
    hooks = {'next_ab': 'mega_wo', 'next_r': 'mega_wo'}
    hooks['r_pre'] = pf_ab
    hooks['rts'] = lambda A, i: rt_stamp(A, i, R.MOP)
    if STAMP:
        def stamp(A, i):
            if i == 0:
                l = A.newlabel('st')
                A(f"s_memtime s[86:87]\ns_memrealtime s[88:89]\ns_waitcnt lgkmcnt(0)\ns_cmp_lg_u32 s{R.S_STEP}, {int(os.environ.get('SSTEP','21'))}\ns_cbranch_scc1 {l}")
                for k in range(1, 8): A(f"s_sub_u32 s{92+k}, s{72+2*k}, s72")
                A(f"s_mov_b32 s92, s73\ns_mov_b32 s100, s88")
                A(f"{l}:\ns_mov_b32 s72, s86\ns_mov_b32 s73, s88")
                l = A.newlabel('st')
                A(f"s_cmp_lg_u32 s{R.S_STEP}, 0\ns_cbranch_scc1 {l}\ns_sub_u32 s101, s88, s71\n{l}:")
            elif (STAMP >> i) & 1:
                A(f"s_memtime s[{72+2*i}:{73+2*i}]\ns_waitcnt lgkmcnt(0)")
        hooks['stamp'] = stamp
        def final(A):
            A(f"""s_lshl_b32 s14, s{X}, 5
            s_add_u32 s14, s14, s{TK}
            s_lshl_b32 s14, s14, 2
            s_add_u32 s14, s14, s{W}
            s_lshl_b32 s14, s14, 6
            s_add_u32 s14, s14, {WS_STAT}
            s_memrealtime s[86:87]
            s_waitcnt lgkmcnt(0)
            s_sub_u32 s15, s86, s71
            v_mov_b32 v17, 0""")
            for i, r in enumerate(list(range(92, 102)) + [15, R.S_TO]):
                A(f"v_mov_b32 v16, s{r}\nbuffer_store_dword v16, v17, s[4:7], s14 offen offset:{4*i}")
            rt_stamp(A, 4)
        hooks['final'] = final
        def steplog(A):
            l = A.newlabel('sl')
            A(f"""s_cmp_lg_u32 s{R.S_H}, 0
            s_cbranch_scc1 {l}
            s_memrealtime s[84:85]
            s_lshl_b32 s{R.S_T}, s{R.S_STEP}, 2
            s_add_u32 s{R.S_T}, s{R.S_T}, {WS_STAT + 131072}
            s_waitcnt lgkmcnt(0)""")
            put_flag(A, R.S_T, 84, R.MOP)
            A(f"{l}:")
        hooks['steplog'] = steplog
    if HSTAMP:
        def steplog(A):
            for st, wd in ((0, 6), (6, 7), (30, 8), (50, 9), (63, 10)):
                l = A.newlabel('hl'); A(f"s_cmp_lg_u32 s{R.S_STEP}, {st}\ns_cbranch_scc1 {l}"); hstamp(A, wd, R.MOP); A(f"{l}:")
        hooks['steplog'] = steplog
        hooks['rts'] = lambda A, i: hstamp(A, 5, R.MOP)
    def wait_in(A, mode):
        t = R.MOP + 24
        if mode == 'first': A(f"s_mov_b32 s{R.S_T}, 1")
        else: A(f"s_add_u32 s{R.S_T}, s{R.S_STEP}, 2\ns_min_u32 s{R.S_T}, s{R.S_T}, {NSEG}")
        A(f"""s_mul_i32 s{R.S_T+1}, s{R.S_H}, 192
        v_bfe_u32 v{t}, v{R.V_LANE16}, 4, 1
        v_mul_u32_u24 v{t}, 191, v{t}
        v_add_u32 v{t}, s{R.S_T+1}, v{t}
        v_lshrrev_b32 v{t}, 8, v{t}
        v_bfe_u32 v{t+1}, v{R.V_LANE16}, 5, 1
        v_mad_u32_u24 v{t}, v{t+1}, 24, v{t}
        v_lshlrev_b32 v{t}, 7, v{t}
        v_add_u32 v{t}, {F_QKV}, v{t}""")
        if mode == 'peek':
            A(f"""buffer_load_dword v{t+1}, v{t}, {srd}, 0 offen sc1
            s_waitcnt vmcnt(0)
            v_cmp_gt_u32 {sr(R.S_EVEN,2)}, s{R.S_T}, v{t+1}""")
        else: wait_flags(A, t, t+1, R.S_T, EXIT)
    hooks['wait_in'] = wait_in
    def b_init(A):
        A(f"""s_mul_i32 s{R.S_C5}, s{X}, 1280
        s_add_u32 s{R.S_C5}, s{R.S_C5}, {F_X}
        s_add_u32 s{R.S_C5}, s{R.S_C5}, s{R.S_POL}
        v_lshlrev_b32 v{R.V_JUNK}, 6, v0""")
    def b_flag(A):
        l = A.newlabel('bf')
        A(f"""s_lshl_b32 s{R.S_T}, s{R.S_HL}, 2
        s_add_u32 s{R.S_T}, s{R.S_T}, s{W}
        s_cmp_lg_u32 s{R.S_T}, 31
        s_cbranch_scc1 {l}
        s_sub_u32 s{R.S_T}, s{R.S_STEP}, 3
        s_cmp_ge_u32 s{R.S_T}, {R.BFLAG - 3}
        s_cbranch_scc1 {l}
        s_add_u32 s{R.S_T}, s{R.S_T}, 1
        v_mov_b32 v{R.MOP+32}, s{R.S_T}
        s_mov_b64 exec, 0xfffff""")
        if int(os.environ.get('BFD', '0')): A(f"s_sleep {os.environ['BFD']}")
        A(f"""buffer_store_dword v{R.MOP+32}, v{R.V_JUNK}, {srd}, s{R.S_C5} offen sc1
        s_mov_b64 exec, -1
        {l}:""")
    hooks['b_init'] = b_init; hooks['b_flag'] = b_flag
    def wait_u(A, k):
        if k == 0:
            rt_stamp(A, 3, 24)
            A(f"""s_lshl_b32 s{R.S_T}, s{R.S_HL}, 1
            s_add_u32 s{R.S_T}, s{R.S_T}, s{W}
            s_mul_hi_u32 s{R.S_T}, s{R.S_T}, {-(-(1<<32)//5)}
            s_lshl_b32 s{R.S_T}, s{R.S_T}, 2
            s_lshl_b32 s{R.S_T+1}, s{X}, 10
            s_add_u32 s{R.S_T}, s{R.S_T}, s{R.S_T+1}
            s_add_u32 s{R.S_T}, s{R.S_T}, {F_U}
            v_and_b32 v10, 7, v0
            v_lshlrev_b32 v10, 7, v10
            v_add_u32 v10, s{R.S_T}, v10""")
        A(f"s_add_u32 s{R.S_T}, s{R.S_STEP}, {k+1}\ns_min_u32 s{R.S_T}, s{R.S_T}, {NSEG}")
        wait_flags(A, 10, 11, R.S_T, EXIT)
        if k == 0: rt_stamp(A, 5, 24)
    hooks['wait_u'] = wait_u
    hooks['x_flag'] = lambda A: put_flag(A, R.S_O4, R.S_STEP, 12)
    hooks['x_flag2'] = lambda A, sv: put_flag(A, R.S_O4, sv, 12)
    hooks['x_init'] = lambda A: A(f"s_add_u32 s{R.S_O4}, s{R.S_O4}, s{R.S_POL}")
    def cached_u(A):
        l = A.newlabel('cu')
        A(f"s_add_u32 s{R.S_T}, s{R.S_STEP}, 1\nv_cmp_gt_u32 vcc, s{R.S_T}, v11\ns_cbranch_vccz {l}")
        wait_flags(A, 10, 11, R.S_T, EXIT, sleep=1)
        A(f"{l}:")
    hooks['cached_u'] = cached_u
    PEEKM = int(os.environ.get('PEEKM', '2'))
    def peek_u(A):
        if PEEKM:
            l = A.newlabel('pk')
            A(f"s_add_u32 s{R.S_T}, s{R.S_STEP}, {1+PEEKM}\ns_min_u32 s{R.S_T}, s{R.S_T}, {NSEG}\nv_cmp_gt_u32 vcc, s{R.S_T}, v11\ns_cbranch_vccz {l}")
        A(f"buffer_load_dword v11, v10, {srd}, 0 offen sc1")
        if PEEKM: A(f"{l}:")
    hooks['peek_u'] = peek_u
    A("mega_A:")
    for _ in range(AD): A("s_sleep 36")
    R.role_A(A, EXIT, DBG, hooks)
    A("mega_B:")
    for _ in range(BD): A("s_sleep 36")
    R.role_B(A, EXIT, DBG, hooks)
    A(f"""mega_R:
    s_sub_u32 s{R.S_HL}, s{TK}, 16
    s_mul_i32 s{R.S_O4}, s{X}, 10
    s_add_u32 s{R.S_O4}, s{R.S_O4}, s{R.S_HL}
    s_lshl_b32 s{R.S_O4}, s{R.S_O4}, 7
    s_add_u32 s{R.S_O4}, s{R.S_O4}, {F_X}""")
    A(f"s_and_b32 s12, s{W}, 1\ns_lshl_b32 s12, s12, 6\ns_add_u32 s{R.S_O4}, s{R.S_O4}, s12")
    R.role_R(A, EXIT, DBG, hooks)
    A("mega_code_end:")

def build():
    ref = open('sequential_preLN__memory_aug_recurrent_mem_tr__mixer_gmlp__prompt.s.ref').read().split('\n')
    hdr = '\n'.join(l for l in ref if l.startswith(';') and '@launch' not in l) + '\n'
    if os.environ.get('LIST', '1') == '1': hdr += f"; @launch kernel={KNAME} grid=(256,1,1) block=(256,1,1) lds=163840\n"
    else: hdr += "; @launch grid=(256,1,1) block=(256,1,1) lds=163840\n"
    A = Asm()
    A(f'.amdgcn_target "amdgcn-amd-amdhsa--gfx950"\n.text\n.globl {KNAME}\n.type {KNAME},@function')
    k_mega(A)
    return hdr + A.text() + kdesc(KNAME)

if __name__ == '__main__':
    open(sys.argv[1], 'w').write(build())
```

```python
from asmlib import *

S_TOK, DM, NH, DH, NSEG = 2048, 640, 32, 192, 64
KA_X, KA_MEM0, KA_WQ, KA_WK, KA_WV, KA_WO = 0, 8, 16, 24, 32, 40
KA_WIN, KA_WSP, KA_BSP, KA_WOUT, KA_OUT, KA_DBG, KA_WS = 64, 72, 80, 88, 96, 104, 112

MB = 1 << 20
WS_RING = 0
WS_FLAG = 2 * MB
WS_XNF  = 3 * MB
WS_QF   = 6 * MB
WS_KF   = 30 * MB
WS_VF   = 54 * MB
WS_UF   = 78 * MB
WS_YF   = 158 * MB
WS_PF   = 178 * MB
WS_H    = 184 * MB
WS_HNF  = 187 * MB
WS_Z1   = 190 * MB
WS_Z2   = 194 * MB
WS_GY   = 198 * MB
WS_STAT = 202 * MB
WS_LRING = 204 * MB
WS_GY2 = 208 * MB
SEG_XN = 40960
SEG_QKV = NH * 12288
SEG_U = NH * 40960
SEG_Y = 40 * 8 * 1024
SEG_P = 80 * 1024

def add64(A, d, s, imm_or_sreg):
    A(f"s_add_u32 s{d}, s{s}, {imm_or_sreg}\ns_addc_u32 s{d+1}, s{s+1}, 0")

def prologue_ids(A, s_wave, v_lane):
    A(f"""v_lshrrev_b32 v{v_lane}, 6, v0
    v_readfirstlane_b32 s{s_wave}, v{v_lane}
    v_and_b32 v{v_lane}, 63, v0""")

def xlane_sum_g(A, v, t):
    A(f"""v_mov_b32 v{t}, v{v}
    v_permlane16_swap_b32 v{v}, v{t}
    v_add_f32 v{v}, v{v}, v{t}
    v_mov_b32 v{t}, v{v}
    v_permlane32_swap_b32 v{v}, v{t}
    v_add_f32 v{v}, v{v}, v{t}""")

def xlane_max_g(A, v, t):
    A(f"""v_mov_b32 v{t}, v{v}
    v_permlane16_swap_b32 v{v}, v{t}
    v_max_f32 v{v}, v{v}, v{t}
    v_mov_b32 v{t}, v{v}
    v_permlane32_swap_b32 v{v}, v{t}
    v_max_f32 v{v}, v{v}, v{t}""")

import os
RING = int(os.environ.get('RING', '64'))
def wrap(off, limit, span, tmp):
    if RING >= NSEG: return ''
    return f"\ns_cmp_ge_u32 s{off}, {limit}\ns_cselect_b32 s{tmp}, {span}, 0\ns_sub_u32 s{off}, s{off}, s{tmp}"
```

```python
from common import *
import os
PDS = int(os.environ.get('PDS', '2'))
PSS = int(os.environ.get('PSS', '6'))
PRING = int(os.environ.get('PRING', '4'))
PVM = int(os.environ.get('PVM', '0'))

def wreg_proj(f):
    return 256 + 4*f if f < 64 else 192 + 4*(f-64)

def load_w64(A, s_w, wstride, s_wave, v_lane, s_t, vt, kperm=False, depth=5, base=0, hook=None, wide=0):
    voff, tr0, tr1, t = vt, vt+1, vt+2, vt+3
    sl = s_t
    A(f"""s_mul_i32 s{sl}, s{s_wave}, {8192*depth}
    s_add_u32 s{sl}, s{sl}, {base}
    v_lshrrev_b32 v{t}, 3, v{v_lane}
    s_mov_b32 s{s_t+1}, {wstride}
    v_mul_lo_u32 v{voff}, v{t}, s{s_t+1}
    v_lshlrev_b32 v{t}, 1, v{t}
    v_and_b32 v{t}, 4, v{t}
    v_and_b32 v{tr0}, 7, v{v_lane}
    v_xor_b32 v{t}, v{t}, v{tr0}
    v_lshl_add_u32 v{voff}, v{t}, 4, v{voff}
    v_lshrrev_b32 v{t}, 4, v{v_lane}
    v_lshlrev_b32 v{tr0}, {9 if kperm else 10}, v{t}
    v_bfe_u32 v{t}, v{v_lane}, 2, 2
    v_lshl_add_u32 v{tr0}, v{t}, 7, v{tr0}
    v_lshlrev_b32 v{t}, 1, v{t}
    v_and_b32 v{t}, 4, v{t}
    v_and_b32 v{tr1}, 3, v{v_lane}
    v_add_u32 v{t}, v{t}, v{tr1}
    v_lshl_add_u32 v{tr0}, v{t}, 4, v{tr0}
    v_xor_b32 v{tr1}, 64, v{tr0}
    v_add_u32 v{tr0}, s{sl}, v{tr0}
    v_add_u32 v{tr1}, s{sl}, v{tr1}""")
    def issue(c):
        for i in range(8):
            A(f"s_add_u32 m0, s{sl}, {(c%depth)*8192 + i*1024}")
            A(f"global_load_lds_dwordx4 v{voff}, {sr(s_w,2)}" if not os.environ.get('NOWLD') else "s_mov_b32 s96, 0x12345")
            add64(A, s_w, s_w, 8*wstride if not os.environ.get('SAMEROW') else 65536*0)
    for c in range(depth): issue(c)
    if hook: hook(A, -1, 0)
    for c in range(10):
        ext = (wide if c < depth else 0) + sum(1 for k in range(max(0, c-depth), c) if wide and k + depth + wide < 10)
        A(f"s_waitcnt vmcnt({8*min(depth-1, 9-c) + ext})")
        for ksl in range(2):
            for tt in range(4):
                p, ab = tt >> 1, tt & 1
                r = wreg_proj((2*c+ksl)*4 + tt)
                for q in range(2):
                    A(f"ds_read_b64_tr_b16 {ur(r+2*q,2)}, v{tr1 if p else tr0} offset:{(c%depth)*8192 + ksl*4096 + q*(2048 if kperm else 512) + 8*ab}")
        if hook: hook(A, c, 0)
        if c + depth < 10:
            A("s_waitcnt lgkmcnt(0)")
            issue(c+depth)
        if hook: hook(A, c, 1)
    A("s_waitcnt lgkmcnt(0)")

ACC = 128
XR = 160
EP = 176

def proj_loop(A, name, s_x, s_cnt, s_wave, v_lane, epi, swap=False, mid_hook=None, s_t=None, vt=8, seg0_done=False, nmid=19, early=None):
    vdma, vcur, vnxt = vt, vt+1, vt+2
    XB = 64
    sdm, snx = s_t, s_t+1
    A(f"""v_lshlrev_b32 v{vcur}, 4, v{v_lane}
    s_mul_i32 s{sdm}, s{s_wave}, 10240
    v_add_u32 v{vdma}, s{sdm}, v{vcur}
    v_add_u32 v{vnxt}, {SEG_XN}, v{vcur}
    s_barrier""")
    def dma(i, boff):
        A(f"s_add_u32 m0, s{boff}, {(i//4)*4096}" if i % 4 == 0 else "")
        A(f"global_load_lds_dwordx4 v{vdma}, {sr(s_x,2)} offset:{(i%4)*1024}")
        if i % 4 == 3: add64(A, s_x, s_x, 4096)
        if i == 9: add64(A, s_x, s_x, SEG_XN - 8192)
    if not seg0_done:
        for i in range(10): dma(i, sdm)
    A(f"s_add_u32 s{sdm}, s{sdm}, {SEG_XN}")
    for i in range(10): dma(i, sdm)
    A(f"s_add_u32 s{sdm}, s{sdm}, {SEG_XN}")
    A(f"s_mov_b32 s{snx}, 1")
    A("s_waitcnt vmcnt(10)\ns_barrier")
    for n in range(PRING-1):
        A(f"ds_read_b128 {vr(XB+4*n,4)}, v{vcur} offset:{n*1024}")
    A(f"s_mov_b32 s{s_t+2}, 0")
    A(f"{name}_loop:")
    for n in range(40):
        rt, ks = divmod(n, 20)
        m = n + PRING - 1
        A(f"ds_read_b128 {vr(XB+4*(m%PRING),4)}, v{vcur if m < 40 else vnxt} offset:{(m%40)*1024}")
        A(f"s_waitcnt lgkmcnt({PRING-1})")
        for t in range(4):
            a = vr(ACC + 16*rt + 4*t, 4)
            w = ur(wreg_proj(ks*4+t), 4); x = vr(XB+4*(n%PRING), 4)
            o1, o2 = (x, w) if swap else (w, x)
            A(f"v_mfma_f32_16x16x32_bf16 {a}, {o1}, {o2}, {'0' if ks == 0 else a}")
            if ks >= 1:
                step = (ks-1)*4 + t
                if rt == 0:
                    epi(A, 1, step, guard=s_t+2)
                else:
                    epi(A, 0, step, guard=None)
        if early and n == early[0]:
            l = A.newlabel('pe')
            A(f"s_sub_u32 s{early[2]}, {NSEG-1}, s{s_cnt}\ns_cmp_ge_u32 s{early[2]}, {early[1]}\ns_cbranch_scc1 {l}\ns_waitcnt vmcnt(0)\ns_barrier")
            mid_hook(A)
            A(f"{l}:")
        if n == nmid:
            A(f"s_waitcnt vmcnt({PVM})\ns_barrier")
            if mid_hook: mid_hook(A)
        if n > nmid and (n-nmid-1) % PDS == 0 and (n-nmid-1)//PDS < 10:
            dma((n-nmid-1)//PDS, sdm)
    A(f"""s_add_u32 s{snx}, s{snx}, 1
    s_cmp_eq_u32 s{snx}, 3
    s_cselect_b32 s{snx}, 0, s{snx}
    v_mov_b32 v{vcur}, v{vnxt}
    s_mul_i32 s{s_t+2}, s{snx}, {SEG_XN}
    v_lshlrev_b32 v{vnxt}, 4, v{v_lane}
    v_add_u32 v{vnxt}, s{s_t+2}, v{vnxt}
    s_add_u32 s{sdm}, s{sdm}, {SEG_XN}
    s_cmp_eq_u32 s{snx}, 2
    s_cselect_b32 s{s_t+2}, {3*SEG_XN}, 0
    s_sub_u32 s{sdm}, s{sdm}, s{s_t+2}
    s_mov_b32 s{s_t+2}, 1
    s_sub_u32 s{s_cnt}, s{s_cnt}, 1
    s_cmp_lg_u32 s{s_cnt}, 0
    s_cbranch_scc1 {name}_loop""")
    step = 0
    while epi(A, 1, step, guard=None): step += 1
    A("s_waitcnt lgkmcnt(0)")

def make_epi_qkv(s_o, v_o, flags):
    def epi(A, rt, step, guard):
        if step < 2: return True
        step -= 2
        if step < 8:
            p, j = divmod(step, 4)
            a = ACC + 16*rt + 8*p + 2*j
            A(f"v_cvt_pk_bf16_f32 v{EP+4*p+j}, v{a}, v{a+1}")
            return True
        if step == 8 or step == 8 + PSS:
            if guard is not None:
                l = A.newlabel('skip')
                A(f"s_cmp_eq_u32 s{guard}, 0\ns_cbranch_scc1 {l}")
            if step == 8:
                if rt == 1: A(f"s_add_u32 s{s_o}, s{s_o}, 6144")
                A(f"buffer_store_dwordx4 {vr(EP,4)}, v{v_o}, s[4:7], s{s_o} offen {flags}")
            if step == 8 + PSS:
                A(f"buffer_store_dwordx4 {vr(EP+4,4)}, v{v_o}, s[4:7], s{s_o} offen offset:1024 {flags}")
                if rt == 1: A(f"s_add_u32 s{s_o}, s{s_o}, {SEG_QKV - 6144}" + wrap(s_o, f"s{s_o+1}", RING*SEG_QKV, 21))
            if guard is not None: A(f"{l}:")
            return True
        return step < 8 + PSS
    return epi

from r_ln import hexf
import math
GC0 = -2.0*math.sqrt(2.0/math.pi)*math.log2(math.e)
GC1 = GC0*0.044715
def gelu_ops(regs, tmp, s_c0, s_c1):
    n = len(regs); ops = []
    ops += [f"v_mul_f32 v{tmp+i}, v{r}, v{r}" for i, r in enumerate(regs)]
    ops += [f"v_fma_f32 v{tmp+i}, v{tmp+i}, s{s_c1}, v{s_c0}" for i, r in enumerate(regs)]
    ops += [f"v_mul_f32 v{tmp+i}, v{tmp+i}, v{r}" for i, r in enumerate(regs)]
    ops += [f"v_exp_f32 v{tmp+i}, v{tmp+i}" for i, r in enumerate(regs)]
    ops += [f"v_add_f32 v{tmp+i}, 1.0, v{tmp+i}" for i, r in enumerate(regs)]
    ops += [f"v_rcp_f32 v{tmp+i}, v{tmp+i}" for i, r in enumerate(regs)]
    ops += [f"v_mul_f32 v{tmp+i}, v{tmp+i}, v{r}" for i, r in enumerate(regs)]
    return ops

def make_epi_list(build, per=3):
    cache = {}
    def epi(A, rt, step, guard):
        if step == 0: cache[rt] = build(rt)
        ops, tail = cache[rt]
        if step < 2: return True
        k = (step-2)*per
        if k < len(ops):
            for o in ops[k:k+per]: A(o)
            return True
        if k < len(ops) + per:
            if guard is not None:
                l = A.newlabel('skip')
                A(f"s_cmp_eq_u32 s{guard}, 0\ns_cbranch_scc1 {l}")
            A(tail)
            if guard is not None: A(f"{l}:")
            return True
        return False
    return epi

SEG_Z = 48*1024
SEG_ST = 12*256
GT, ZP, ST_ = 32, 64, 96
def make_epi_z1(s_o, v_o, v_c0, s_c1, flags, seg_step=1):
    def build(rt):
        regs = [ACC + 16*rt + i for i in range(16)]
        ops = gelu_ops(regs, GT, v_c0, s_c1)
        ops += [f"v_cvt_pk_bf16_f32 v{EP+i}, v{GT+2*i}, v{GT+2*i+1}" for i in range(8)]
        tail = f"""global_store_dwordx4 v{v_o}, {vr(EP,4)}, {sr(s_o,2)} {flags}
        global_store_dwordx4 v{v_o}, {vr(EP+4,4)}, {sr(s_o,2)} offset:1024 {flags}
        s_add_u32 s{s_o}, s{s_o}, {24576 + (seg_step-1)*SEG_Z*rt}
        s_addc_u32 s{s_o+1}, s{s_o+1}, 0"""
        return ops, tail
    return make_epi_list(build, 2)

def make_epi_z2(s_o, s_st, v_o, v_st, v_c0, s_c1, flags, seg_step=1):
    def build(rt):
        regs = [ACC + 16*rt + i for i in range(16)]
        ops = gelu_ops(regs, GT, v_c0, s_c1)
        ops += [f"v_cvt_pk_bf16_f32 v{ZP+4*t+2*rt+j}, v{GT+4*t+2*j}, v{GT+4*t+2*j+1}" for t in range(4) for j in range(2)]
        ops += [f"v_add_f32 v{ST_+i}, v{GT+i}, v{GT+4+i}" for i in range(4)]
        ops += [f"v_mul_f32 v{ST_+4+i}, v{GT+i}, v{GT+i}" for i in range(4)]
        for t in range(1, 4):
            if t > 1: ops += [f"v_add_f32 v{ST_+i}, v{ST_+i}, v{GT+4*t+i}" for i in range(4)]
            ops += [f"v_fmac_f32 v{ST_+4+i}, v{GT+4*t+i}, v{GT+4*t+i}" for i in range(4)]
        for sh in (8, 4, 2, 1):
            ops += [f"v_add_f32_dpp v{ST_+i}, v{ST_+i}, v{ST_+i} row_ror:{sh} row_mask:0xf bank_mask:0xf" for i in range(8)]
        tail = f"""s_mov_b32 exec_lo, 0x00010001
        s_mov_b32 exec_hi, 0x00010001
        global_store_dwordx4 v{v_st}, {vr(ST_,4)}, {sr(s_st,2)} offset:{32*rt} {flags}
        global_store_dwordx4 v{v_st}, {vr(ST_+4,4)}, {sr(s_st,2)} offset:{32*rt+16} {flags}
        s_mov_b64 exec, -1
        """
        if rt == 1:
            tail += '\n'.join(f"global_store_dwordx4 v{v_o}, {vr(ZP+4*t,4)}, {sr(s_o,2)} offset:{1024*t} {flags}" for t in range(4))
            tail += f"""
            s_add_u32 s{s_o}, s{s_o}, {SEG_Z*seg_step}
            s_addc_u32 s{s_o+1}, s{s_o+1}, 0
            s_add_u32 s{s_st}, s{s_st}, {SEG_ST*seg_step}
            s_addc_u32 s{s_st+1}, s{s_st+1}, 0"""
        return ops, tail
    return make_epi_list(build, 3)

def proj_once_loop(A, name, s_x, s_seg, seg_step, s_wave, v_lane, epi, swap, s_t, vt, wait_in, done_hook):
    vdma, vcur = vt, vt+1
    sdm = s_t
    A(f"""v_lshlrev_b32 v{vcur}, 4, v{v_lane}
    s_mul_i32 s{sdm}, s{s_wave}, 10240
    v_add_u32 v{vdma}, s{sdm}, v{vcur}
    s_barrier
    {name}_loop:""")
    wait_in(A)
    for i in range(10):
        if i % 4 == 0: A(f"s_add_u32 m0, s{sdm}, {(i//4)*4096}")
        A(f"global_load_lds_dwordx4 v{vdma}, {sr(s_x,2)} offset:{(i%4)*1024}")
        if i % 4 == 3: add64(A, s_x, s_x, 4096)
    add64(A, s_x, s_x, seg_step*SEG_XN - 8192)
    A("s_waitcnt vmcnt(0)\ns_barrier")
    for n in range(3):
        A(f"ds_read_b128 {vr(XR+4*n,4)}, v{vcur} offset:{n*1024}")
    for n in range(40):
        rt, ks = divmod(n, 20)
        m = n + 3
        if m < 40: A(f"ds_read_b128 {vr(XR+4*(m%4),4)}, v{vcur} offset:{m*1024}")
        A(f"s_waitcnt lgkmcnt({min(3, 39-n)})")
        for t in range(4):
            a = vr(ACC + 16*rt + 4*t, 4)
            w = ur(wreg_proj(ks*4+t), 4); x = vr(XR+4*(n%4), 4)
            o1, o2 = (x, w) if swap else (w, x)
            A(f"v_mfma_f32_16x16x32_bf16 {a}, {o1}, {o2}, {'0' if ks == 0 else a}")
            if ks >= 1 and rt == 1: epi(A, 0, (ks-1)*4 + t, guard=None)
    step = 0
    while epi(A, 1, step, guard=None): step += 1
    A("s_waitcnt vmcnt(0)\ns_barrier")
    done_hook(A)
    A(f"""s_add_u32 s{s_seg}, s{s_seg}, {seg_step}
    s_cmp_lt_u32 s{s_seg}, {NSEG}
    s_cbranch_scc1 {name}_loop""")
```

```python
from common import *
from r_u import load_w_rows
from r_ln import hexf
import math, os
TOUCH = int(os.environ.get('TOUCH', '128'))
NOU = int(os.environ.get('NOU', '0'))
NOKQ = int(os.environ.get('NOKQ', '0'))

NG, HG, NR = 4, 8, 10
GBLK = 32768
GSLOT = 16*GBLK
LBASE = WS_LRING
M_OFF = 0
P_OFF = 16384
PX_OFF = 32768
Y_OFF = 163840
NSYNC = NG*(2*HG+NR)
WS_OP = WS_YF
SEG_OP = 2*20*4*1024
TLANES = int(os.environ.get('TLANES', '64'))
TOUT = int(os.environ.get('TOUT', '0'))
KQP = int(os.environ.get('KQP', '8'))
GDROP = int(os.environ.get('GDROP', '0'))
ASLEEP = int(os.environ.get('ASLEEP', '2'))
BSLEEP = int(os.environ.get('BSLEEP', '24'))
RSLEEP = int(os.environ.get('RSLEEP', '0'))
MPIPE = int(os.environ.get('MPIPE', '0'))
YPIPE = int(os.environ.get('YPIPE', '2'))
XFLAGNOW = int(os.environ.get('XFLAGNOW', '0'))
SCRUB = int(os.environ.get('SCRUB', '1'))
XLEAD = int(os.environ.get('XLEAD', '3'))
MMASK = int(os.environ.get('MMASK', '0'))
KQEND = int(os.environ.get('KQEND', '1'))
BTOUCH = int(os.environ.get('BTOUCH', '0'))
BTEARLY = int(os.environ.get('BTEARLY', '1'))
XDEFER = int(os.environ.get('XDEFER', '0'))
RST6 = int(os.environ.get('RST6', '1'))
UPARK = int(os.environ.get('UPARK', '3'))
TRIM = int(os.environ.get('TRIM', '1'))
XFPOS = int(os.environ.get('XFPOS', '1'))
SCRPOS = int(os.environ.get('SCRPOS', '2'))
YQ = int(os.environ.get('YQ', '0'))
CHEATS = int(os.environ.get('CHEATS', '0'))
SELF = int(os.environ.get('SELF', '0'))
OWN2 = int(os.environ.get('OWN2', '5'))
P64 = int(os.environ.get('P64', '1'))
EM0 = int(os.environ.get('EM0', '47'))
XD1 = int(os.environ.get('XD1', '6'))
XD2 = int(os.environ.get('XD2', '0'))
BSCRUB = int(os.environ.get('BSCRUB', '0'))
BFLAG = int(os.environ.get('BFLAG', '0'))
GREP = int(os.environ.get('GREP', '4'))
BSD = int(os.environ.get('BSD', '0'))
SMX = int(os.environ.get('SMX', '0'))
RTRIM = int(os.environ.get('RTRIM', '1'))
SMX0 = int(os.environ.get('SMX0', '4'))
SMX1 = int(os.environ.get('SMX1', '2'))
EK = int(os.environ.get('EK', '46'))
EM1 = int(os.environ.get('EM1', '51'))
EFAST = int(os.environ.get('EFAST', '0'))
ANOW = int(os.environ.get('ANOW', '1'))
WGAPS = eval(os.environ.get('WGAPS', '[0, 2, 4]'))
SGAPS = eval(os.environ.get('SGAPS', '[5, 6, 7, 8, 15, 16, 17, 18, 19, 20, 21, 22]'))
KGAPS = eval(os.environ.get('KGAPS', '[25, 26, 27, 28]'))
AB1 = int(os.environ.get('AB1', '9'))
BB1 = int(os.environ.get('BB1', '8'))
BX1 = int(os.environ.get('BX1', '28'))
BX2 = int(os.environ.get('BX2', '38'))
BVF = int(os.environ.get('BVF', '3'))
BYF = int(os.environ.get('BYF', '0'))
WGAPSB = eval(os.environ.get('WGAPSB', '[0, 2, 4]'))
BNOW = int(os.environ.get('BNOW', '5'))
SGAPSB = eval(os.environ.get('SGAPSB', '[14, 15, 16, 17, 18, 19, 20, 21, 41, 42, 43, 44]'))
GDELAY = int(os.environ.get('GDELAY', '2'))
KQW3 = int(os.environ.get('KQW3', '0'))
POLL_LIMIT = 1 << 17

class Lg:
    def __init__(s, A): s.A = A; s.n = 0; s.done = 0; s.tag = {}
    def ds(s, text, tag=None):
        s.A(text); s.n += 1
        if tag is not None: s.tag[tag] = s.n
    def need(s, tag):
        k = s.tag[tag]
        if k > s.done:
            w = s.n - k
            if w <= 15:
                s.A(f"s_waitcnt lgkmcnt({w})"); s.done = k
            else:
                s.A("s_waitcnt lgkmcnt(15)"); s.done = s.n - 15
    def all(s):
        s.A("s_waitcnt lgkmcnt(0)"); s.done = s.n

V_LANE16, V_P1, V_P2, V_RD0, V_RD3, V_IDX, V_TW, V_TR, V_WS, V_X1, V_X2, V_X3, V_JUNK = 1, 2, 3, 4, 7, 8, 9, 10, 11, 12, 13, 14, 15
MOP, ACC, STG = 16, 56, 80
V_X3S = 999
V_P2S = ACC + 8
LPOS_A = eval(os.environ.get('LPOSA', '[0, 1, 2, 3, 11, 13, 22, 24, 26, 28]'))
LPOS_B = eval(os.environ.get('LPOSB', '[0, 1, 2, 3, 22, 24, 26, 28, 49, 51]'))
LPOS = LPOS_A
def set_lpos(l):
    global LPOS
    LPOS = l
def wloc(p):
    if p in LPOS: return ('lds', LPOS.index(p))
    k = p - sum(1 for x in LPOS if x < p)
    return ('reg', 256 + 8*k if k < 32 else 112 + 8*(k-32))
def wreg(p):
    kind, x = wloc(p)
    return STG + 8*(x % 4) if kind == 'lds' else x
L_T = 0
L_S = 8192
L_Z = 6400
L_MS = 12288
L_X = 24576
L_R = L_X + 49152
L_W = 81920
S_WAVE = 3
SRD = 4
S_GRP, S_HL, S_STEP, S_TO = 8, 9, 10, 11
S_T = 12
S_A, S_B = 20, 22
S_POL, S_SLOW, S_H = 24, 25, 26
S_CUR, S_TAG, S_TAGM = 27, 28, 29
S_ML, S_ML4, S_MR, S_MR4 = 30, 31, 32, 33
S_MSK = 34
S_HI = 52
S_EVEN = 54
S_C1, S_C2, S_C3, S_C4, S_C5, S_C6 = 56, 57, 58, 59, 60, 61
S_O1, S_O2, S_O3, S_O4 = 62, 63, 64, 65
S_NT, S_CT0, S_SEL0, S_SEL1, S_CSC = 66, 67, 68, 69, 70
srd = sr(SRD, 4)

def smf(A, acc, a, b):
    A(f"v_smfmac_f32_16x16x64_bf16 {vr(acc,4)}, {vr(a,4)}, {ur(b,8)}, v{V_IDX}")
def bld(n, dst, va, so, off=0, fl=''):
    nm = {1: 'dword', 2: 'dwordx2', 4: 'dwordx4'}[n]
    return f"buffer_load_{nm} {vr(dst,n)}, v{va}, {srd}, s{so} offen offset:{off} {fl}"
def bst(n, src, va, so, off=0, fl=''):
    nm = {1: 'dword', 2: 'dwordx2', 4: 'dwordx4'}[n]
    return f"buffer_store_{nm} {vr(src,n)}, v{va}, {srd}, s{so} offen offset:{off} {fl}"
def bdma(va, so, off=0):
    return f"buffer_load_dwordx4 v{va}, {srd}, s{so} offen offset:{off} lds"

def common_init(A):
    w = S_WAVE
    A(f"""v_lshlrev_b32 v{V_LANE16}, 4, v0
    s_lshl_b32 s{S_T}, s{w}, 10
    v_add_u32 v{V_P1}, s{S_T}, v{V_LANE16}
    s_and_b32 s{S_MR}, s{S_T}, 1024""")
    for i in range(3):
        A(f"s_xor_b32 s{S_T+1}, s{S_T}, {(i+1)*1024}\nv_add_u32 v{V_RD0+i}, s{S_T+1}, v{V_LANE16}")
    A(f"""s_mov_b32 s{S_HI}, 0xff00ff00
    s_mov_b32 s{S_HI+1}, 0xff00ff00
    v_mov_b32 v{V_IDX}, 0x4444
    v_mov_b32 v{V_TW}, 0xeeee
    v_cndmask_b32 v{V_IDX}, v{V_IDX}, v{V_TW}, {sr(S_HI,2)}
    s_mul_i32 s{S_T+1}, s{w}, 20480
    s_add_u32 s{S_T+1}, s{S_T+1}, {L_W}
    v_add_u32 v{V_WS}, s{S_T+1}, v{V_LANE16}
    s_lshl_b32 s{S_H}, s{S_GRP}, 3
    s_add_u32 s{S_H}, s{S_H}, s{S_HL}
    s_mov_b32 s{S_SEL0}, 0x00003f80
    s_mov_b32 s{S_SEL1}, 0x3f800000
    s_lshl_b32 s{S_CUR}, s{S_GRP}, 18
    s_add_u32 s{S_CUR}, s{S_CUR}, {LBASE}
    s_mov_b32 s{S_TAG}, 0
    s_mov_b32 s{S_TAGM}, 0
    s_add_u32 s{S_ML}, s{S_CUR}, {M_OFF}
    s_add_u32 s{S_ML4}, s{S_ML}, 4096
    s_add_u32 s{S_MR}, s{S_MR}, s{S_ML}
    s_add_u32 s{S_MR}, s{S_MR}, 8192
    s_mov_b32 s{S_STEP}, 0""")

def kappa_sreg(A, kp, dst):
    w = S_WAVE
    if kp == 0: A(f"s_mov_b32 s{dst}, s{w}")
    elif kp == 1: A(f"s_add_u32 s{dst}, s{w}, 4")
    elif kp == 2: A(f"s_and_b32 s{dst}, s{w}, 1\ns_add_u32 s{dst}, s{dst}, 8")
    elif kp < 6: A(f"s_xor_b32 s{dst}, s{w}, {kp-2}")
    elif kp < 9: A(f"s_xor_b32 s{dst}, s{w}, {kp-5}\ns_add_u32 s{dst}, s{dst}, 4")
    else: A(f"s_and_b32 s{dst}, s{w}, 1\ns_xor_b32 s{dst}, s{dst}, 9")

def tr_addr_sparseB(A, dst, t, rowbytes, s_base):
    A(f"""v_bfe_u32 v{dst}, v0, 2, 1
    v_bfe_u32 v{t}, v0, 3, 1
    v_lshl_add_u32 v{dst}, v{t}, 3, v{dst}
    v_bfe_u32 v{t}, v0, 4, 1
    v_lshl_add_u32 v{dst}, v{t}, 2, v{dst}
    v_bfe_u32 v{t}, v0, 5, 1
    v_lshl_add_u32 v{dst}, v{t}, 4, v{dst}
    v_mul_u32_u24 v{dst}, {rowbytes}, v{dst}
    v_and_b32 v{t}, 3, v0
    v_lshl_add_u32 v{dst}, v{t}, 3, v{dst}
    v_add_u32 v{dst}, s{s_base}, v{dst}""")

def read_operand(A, p, vtr, off, rowbytes, halves=(0,1), hrows=32):
    kind, x = wloc(p)
    r = STG if kind == 'lds' else x
    for half in halves:
        for q in range(2):
            A(f"ds_read_b64_tr_b16 {ur(r+4*half+2*q,2)}, v{vtr} offset:{off + (hrows*(half-halves[0]) + 2*q)*rowbytes}")
    if kind == 'lds':
        A("s_waitcnt lgkmcnt(0)")
        for half in halves:
            A(f"ds_write_b128 v{V_WS}, {vr(STG+4*half,4)} offset:{x*2048+1024*half}")
        A("s_waitcnt lgkmcnt(0)")

def kp_of(kappa, w):
    if kappa < 4: d = kappa ^ w; return 0 if d == 0 else d + 2
    if kappa < 8: d = (kappa-4) ^ w; return 1 if d == 0 else d + 5
    return 2 if kappa - 8 == (w & 1) else 9

def load_heads(A, mats, tiles, pos):
    VA_, VT_, t, u = MOP, MOP+6, MOP+10, MOP+11
    sb = S_T + 4
    w = S_WAVE
    for i in range(6):
        A(f"""v_add_u32 v{t}, {64*i}, v0
        v_mul_u32_u24 v{u}, {(65536+23)//24}, v{t}
        v_lshrrev_b32 v{u}, 16, v{u}
        v_mul_u32_u24 v{VA_+i}, 24, v{u}
        v_sub_u32 v{t}, v{t}, v{VA_+i}
        v_lshrrev_b32 v{VA_+i}, 1, v{u}
        v_and_b32 v{VA_+i}, 6, v{VA_+i}
        v_xor_b32 v{t}, v{t}, v{VA_+i}
        v_mul_u32_u24 v{VA_+i}, 12288, v{u}
        v_lshl_add_u32 v{VA_+i}, v{t}, 4, v{VA_+i}""")
    for tt in range(4):
        A(f"""v_bfe_u32 v{u}, v0, 4, 1
        v_bfe_u32 v{t}, v0, 3, 1
        v_lshl_add_u32 v{u}, v{t}, 1, v{u}
        v_lshlrev_b32 v{VT_+tt}, 1, v{u}
        v_bfe_u32 v{t}, v0, 1, 1
        v_add_u32 v{t}, {2*tt}, v{t}
        v_xor_b32 v{VT_+tt}, v{VT_+tt}, v{t}
        v_lshlrev_b32 v{VT_+tt}, 4, v{VT_+tt}
        v_and_b32 v{t}, 1, v0
        v_lshl_add_u32 v{VT_+tt}, v{t}, 3, v{VT_+tt}
        v_lshlrev_b32 v{u}, 2, v{u}
        v_bfe_u32 v{t}, v0, 2, 1
        v_add_u32 v{u}, v{u}, v{t}
        v_bfe_u32 v{t}, v0, 5, 1
        v_lshl_add_u32 v{u}, v{t}, 4, v{u}
        v_mul_u32_u24 v{u}, 384, v{u}
        v_add_u32 v{VT_+tt}, v{VT_+tt}, v{u}""")
    A(f"s_mul_i32 s{sb}, s{w}, 6144\ns_mul_i32 s{S_T}, s{w}, {16*12288}")
    for sp in mats: add64(A, sp, sp, f"s{S_T}")
    rounds = [(m, k) for m in range(len(mats)) for k in range(10)]
    depth, slot = 3, 24576
    def issue(r):
        sp = mats[rounds[r][0]]
        for i in range(6):
            A(f"s_add_u32 m0, s{sb}, {(r % depth)*slot + i*1024}")
            A(f"global_load_lds_dwordx4 v{VA_+i}, {sr(sp,2)}")
        add64(A, sp, sp, 64*12288)
    for r in range(depth): issue(r)
    labs = [A.newlabel('lw') for _ in range(4)]; lend = A.newlabel('lw')
    for ww in range(1, 4): A(f"s_cmp_eq_u32 s{w}, {ww}\ns_cbranch_scc1 {labs[ww]}")
    n = len(rounds)
    for ww in range(4):
        A(f"{labs[ww]}:")
        for r, (m, k) in enumerate(rounds):
            A(f"s_waitcnt vmcnt({6*min(depth-1, n-1-r)})\ns_barrier")
            hi = (r % depth) == 2
            if hi:
                for tt in range(4): A(f"v_add_u32 v{VT_+tt}, {2*slot}, v{VT_+tt}")
            for tt, (mm_, ct) in enumerate(tiles(ww)):
                if mm_ == m: read_operand(A, pos(kp_of(k, ww), tt), VT_+(ct & 3), (0 if hi else (r % depth)*slot) + 128*(ct >> 2), 384)
            if hi:
                for tt in range(4): A(f"v_subrev_u32 v{VT_+tt}, {2*slot}, v{VT_+tt}")
            A("s_waitcnt lgkmcnt(0)\ns_barrier")
            if r + depth < n: issue(r+depth)
        if ww < 3: A(f"s_branch {lend}")
    A(f"{lend}:")

def tick(A, exitlab):
    A(f"""s_add_u32 s{S_TO}, s{S_TO}, 1
    s_cmp_gt_u32 s{S_TO}, {POLL_LIMIT}
    s_cbranch_scc1 {exitlab}""")

def check(A, regs, stag, target):
    t = V_X3
    c = list(regs)
    if len(c) == 1:
        A(f"v_bitop3_b32 v{t}, v{c[0]}, 1, s{stag} bitop3:0x48")
    else:
        A(f"v_bitop3_b32 v{t}, v{c[0]}, v{c[1]}, s{stag} bitop3:0x7e")
        for x in c[2:]:
            A(f"v_bitop3_b32 v{t}, v{x}, v{t}, s{stag} bitop3:0xde")
        A(f"v_and_b32 v{t}, 1, v{t}")
    A(f"v_cmp_ne_u32 vcc, 0, v{t}\ns_cbranch_vccnz {target}")

def poll(A, name, loads, checks, stag, exitlab, shadow=None):
    l = A.newlabel(name)
    if shadow is not None:
        l2 = A.newlabel(name)
        for x in loads: A(x)
        shadow()
        A(f"s_branch {l2}")
    A(f"{l}:")
    for x in loads: A(x)
    tick(A, exitlab)
    if shadow is not None: A(f"{l2}:")
    A("s_waitcnt vmcnt(0)")
    check(A, checks, stag, l)

def ingest_mem(A, lg, exitlab, shadow=None):
    def L(b): return [bld(4, b, V_P1, S_ML, 0, 'sc1'), bld(4, b+4, V_P1, S_ML4, 0, 'sc1'), bld(4, b+8, V_LANE16, S_MR, 0, 'sc1')]
    W = [(V_P1, L_MS), (V_P1, L_MS+4096), (V_P1, L_MS+8192)]
    if MMASK:
        M = [S_T, S_T+2, S_T+4]
        lp = A.newlabel('pm')
        for m in M: A(f"s_mov_b64 {sr(m,2)}, -1")
        A(f"{lp}:")
        for m, x in zip(M, L(MOP)): A(f"s_mov_b64 exec, {sr(m,2)}\n{x}")
        A("s_mov_b64 exec, -1")
        tick(A, exitlab)
        A("s_waitcnt vmcnt(0)")
        for f in range(3): A(f"v_bitop3_b32 v{MOP+12+f}, v{MOP+4*f}, 1, s{S_TAG} bitop3:0x48")
        for f in range(3): A(f"v_cmp_ne_u32 {sr(M[f],2)}, 0, v{MOP+12+f}")
        A(f"s_or_b64 vcc, {sr(M[0],2)}, {sr(M[1],2)}\ns_or_b64 vcc, vcc, {sr(M[2],2)}\ns_cbranch_scc1 {lp}")
        for f, (v, off) in enumerate(W):
            lg.ds(f"ds_write_b128 v{v}, {vr(MOP+4*f,4)} offset:{off}", ('mw', f))
        return
    if not MPIPE:
        poll(A, 'pm', L(MOP), [MOP, MOP+4, MOP+8], S_TAG, exitlab, shadow)
        if TRIM: return [(f"ds_write_b128 v{v}, {vr(MOP+4*f,4)} offset:{off}", ('mw', f)) for f, (v, off) in enumerate(W)]
        for f, (v, off) in enumerate(W):
            lg.ds(f"ds_write_b128 v{v}, {vr(MOP+4*f,4)} offset:{off}", ('mw', f))
        return
    S = [MOP+12, MOP+24]
    lp, n0, j = A.newlabel('pm'), A.newlabel('pm'), A.newlabel('pm')
    for x in L(S[0]): A(x)
    A(f"s_sleep {MPIPE}\n{lp}:")
    def fin(b):
        for f, (v, off) in enumerate(W):
            A(f"ds_write_b128 v{v}, {vr(b+4*f,4)} offset:{off}")
            A(f"v_pk_mov_b32 {vr(MOP+4*f,2)}, {vr(b+4*f,2)}, {vr(b+4*f,2)} op_sel:[0,1]\nv_pk_mov_b32 {vr(MOP+4*f+2,2)}, {vr(b+4*f+2,2)}, {vr(b+4*f+2,2)} op_sel:[0,1]")
    for x in L(S[1]): A(x)
    tick(A, exitlab)
    A("s_waitcnt vmcnt(3)")
    check(A, [S[0], S[0]+4, S[0]+8], S_TAG, n0)
    fin(S[0])
    A(f"s_branch {j}\n{n0}:")
    for x in L(S[0]): A(x)
    A("s_waitcnt vmcnt(3)")
    check(A, [S[1], S[1]+4, S[1]+8], S_TAG, lp)
    fin(S[1])
    A(f"{j}:")
    lg.n += 3; lg.tag[('mw', 2)] = lg.n

def read_mem_frags(A, lg, now=7):
    if MPIPE: A('s_waitcnt vmcnt(0)')
    L = []
    for kp in range(3, 10):
        if kp < 6: v, off = V_RD0 + kp - 3, L_MS
        elif kp < 9: v, off = V_RD0 + kp - 6, L_MS + 4096
        else: v, off = V_RD0, L_MS + 8192
        L.append((f"ds_read_b128 {vr(MOP+4*kp,4)}, v{v} offset:{off}", ('m', kp)))
    for x in L[:now]: lg.ds(*x)
    return L[now:]

def stg_load(lg, i):
    r = STG + 8*(i % 4)
    lg.ds(f"ds_read_b128 {vr(r,4)}, v{V_WS} offset:{i*2048}")
    lg.ds(f"ds_read_b128 {vr(r+4,4)}, v{V_WS} offset:{i*2048+1024}", ('w', i))

def next_step(A):
    A(f"""s_add_u32 s{S_STEP}, s{S_STEP}, 1
    s_xor_b32 s{S_TAG}, s{S_TAG}, 1""")

def t_plane_base(A, dst, c, t, plane):
    A(f"""v_mul_u32_u24 v{dst}, {plane}, v{c}
    v_and_b32 v{t}, 1, v{c}
    v_lshl_add_u32 v{dst}, v{t}, 5, v{dst}
    v_lshrrev_b32 v{t}, 1, v{c}
    v_lshl_add_u32 v{dst}, v{t}, 7, v{dst}""")

D_CNT, D_SLOW, D_POL = 2, 18, 34
D_LN = 4
NINIT = 16 + NG*NR
def checkin(A, s_dbg, vt=None):
    vt = MOP if vt is None else vt
    l2 = A.newlabel('isk')
    A(f"""s_waitcnt vmcnt(0)
    s_barrier
    s_cmp_lg_u32 s{S_WAVE}, 0
    s_cbranch_scc1 {l2}
    v_mov_b32 v{vt}, {4*D_CNT}
    v_mov_b32 v{vt+1}, 1
    s_mov_b64 exec, 1
    global_atomic_add v{vt}, v{vt+1}, {sr(s_dbg,2)}
    s_mov_b64 exec, -1
    {l2}:""")

def waitall(A, s_dbg, exitlab, vl4, vt=None, s_slow=None, s_pol=None, setup_only=False):
    vt = MOP if vt is None else vt
    l, l2 = A.newlabel('isync'), A.newlabel('isync')
    A(f"""v_lshrrev_b32 v{vt}, 2, v{vl4}
    v_mov_b32 v{vt+1}, 0
    s_mov_b32 exec_lo, 0x00030003
    s_mov_b32 exec_hi, 0x00030003
    v_mov_b32 v{vt+1}, 32
    s_mov_b32 exec_lo, 0x00100010
    s_mov_b32 exec_hi, 0x00100010
    v_mov_b32 v{vt+1}, 64
    s_mov_b64 exec, {1 << D_CNT}
    v_mov_b32 v{vt+1}, {NINIT}""")
    if s_pol is not None: A(f"s_mov_b32 exec_lo, 0\ns_mov_b32 exec_hi, {1 << (D_POL-32)}\nv_mov_b32 v{vt+1}, 1")
    A("s_mov_b64 exec, -1")
    if setup_only: return
    A(f"""s_branch {l2}
    {l}:
    s_sleep 4""")
    tick(A, exitlab)
    A(f"""{l2}:
    global_load_dword v{vt+2}, v{vt}, {sr(s_dbg,2)} sc1
    s_waitcnt vmcnt(0)
    v_cmp_gt_u32 vcc, v{vt+1}, v{vt+2}
    s_cbranch_vccnz {l}""")
    if s_slow is not None or s_pol is not None:
        A(f"global_load_dword v{vt+2}, v{vt}, {sr(s_dbg,2)} sc1\ns_waitcnt vmcnt(0)")
    if s_slow is not None: A(f"v_readlane_b32 s{s_slow}, v{vt+2}, {D_SLOW}")
    if s_pol is not None: A(f"v_readlane_b32 s{s_pol}, v{vt+2}, {D_POL}\ns_and_b32 s{s_pol}, s{s_pol}, 8192")

FSLEEP = int(os.environ.get('FSLEEP', '0'))
def wait_flags(A, v_addr, v_tmp, s_need, exitlab, sleep=2):
    l, l2 = A.newlabel('wf'), A.newlabel('wf')
    A(f"""s_branch {l2}
    {l}:
    s_sleep {FSLEEP or sleep}""")
    tick(A, exitlab)
    A(f"""{l2}:
    buffer_load_dword v{v_tmp}, v{v_addr}, {srd}, 0 offen sc1
    s_waitcnt vmcnt(0)
    v_cmp_gt_u32 vcc, s{s_need}, v{v_tmp}
    s_cbranch_vccnz {l}""")

def wait_flags_wg(A, v_addr, v_tmp, s_need, exitlab, sleep=6):
    l = A.newlabel('wg')
    A(f"s_cmp_lg_u32 s{S_WAVE}, 0\ns_cbranch_scc1 {l}")
    wait_flags(A, v_addr, v_tmp, s_need, exitlab, sleep)
    A(f"{l}:\ns_barrier")

def put_flag(A, s_off, s_val, vt):
    A(f"""v_mov_b32 v{vt}, s{s_val}
    s_mov_b64 exec, 1
    buffer_store_dword v{vt}, off, {srd}, s{s_off} sc1
    s_mov_b64 exec, -1""")

CSC = (192 ** -0.5) * math.log2(math.e)
NEG = 0xf149f2ca

_ownk = [(kp, t) for t in (3, 4, 5) for kp in range(3)]
SEQ_A = ([(kp, t) for kp in range(3) for t in range(3)] + _ownk[:OWN2] + [(kp, t) for kp in range(3, 10) for t in (0, 1)]
         + [(kp, 2) for kp in range(3, 10)] + [x for x in _ownk[OWN2:] if x[1] == 3] + [(kp, 3) for kp in range(3, 10)]
         + [x for x in _ownk[OWN2:] if x[1] != 3] + [(kp, t) for kp in range(3, 10) for t in (4, 5)])
def posA(kp, t): return SEQ_A.index((kp, t))

def H(hooks, name, *a):
    if name in hooks: hooks[name](*a)

def role_A(A, exitlab, s_dbg, hooks, slow_too=True):
    w = S_WAVE
    set_lpos(LPOS_A)
    common_init(A)
    t0, t1, t2 = MOP, MOP+1, MOP+2
    S_WO, S_WS2 = S_O2, S_O4
    V_TS, V_QS = V_P2, V_RD3
    A(f"""s_and_b32 s{S_T}, s{w}, 1
    s_mul_i32 s{S_T+1}, s{w}, 3
    s_add_u32 s{S_T+2}, s{S_T+1}, s{S_T}
    s_lshl_b32 s{S_WO}, s{S_T+2}, 9
    s_lshl_b32 s{S_T+2}, s{S_T+2}, 7
    s_lshl_b32 s{S_T+3}, s{S_T}, 1
    s_sub_u32 s{S_T+3}, s{S_T+1}, s{S_T+3}
    s_add_u32 s{S_T+3}, s{S_T+3}, 2
    s_lshl_b32 s{S_T+3}, s{S_T+3}, 7
    s_lshl_b32 s{S_WS2}, s{S_T}, 11
    s_sub_u32 s{S_WS2}, 1024, s{S_WS2}
    v_lshrrev_b32 v{t0}, 4, v0
    v_and_b32 v{t1}, 1, v{t0}
    v_mul_u32_u24 v{V_TW}, 1568, v{t1}
    v_and_b32 v{t1}, 15, v0
    v_lshl_add_u32 v{V_TW}, v{t1}, 3, v{V_TW}
    v_lshrrev_b32 v{t1}, 5, v0
    v_lshl_add_u32 v{V_TS}, v{t1}, 2, v{V_TW}
    v_add_u32 v{V_TS}, s{S_T+3}, v{V_TS}
    v_lshl_add_u32 v{V_TW}, v{t1}, 7, v{V_TW}
    v_add_u32 v{V_TW}, s{S_T+2}, v{V_TW}
    v_and_b32 v{t2}, 3, v0""")
    t_plane_base(A, V_TR, t2, t1, 1536)
    A(f"""v_bfe_u32 v{t1}, v0, 2, 2
    v_lshl_add_u32 v{t1}, v{t0}, 3, v{t1}
    v_lshl_add_u32 v{V_TR}, v{t1}, 3, v{V_TR}
    v_add_u32 v{V_X1}, {L_X}, v{V_LANE16}
    v_add_u32 v{V_X1}, s{S_WO}, v{V_X1}
    v_and_b32 v{t2}, 1, v0""")
    t_plane_base(A, V_JUNK, t2, t1, 1536)
    A(f"""v_bfe_u32 v{t1}, v0, 2, 2
    v_lshl_add_u32 v{t1}, v{t0}, 3, v{t1}
    v_lshl_add_u32 v{V_JUNK}, v{t1}, 3, v{V_JUNK}
    s_and_b32 s{S_T+3}, s{S_T+3}, 0xffffff00
    v_add_u32 v{V_QS}, s{S_T+3}, v{V_JUNK}
    v_add_u32 v{V_JUNK}, s{S_T+2}, v{V_JUNK}
    v_lshrrev_b32 v{t1}, 5, v0
    v_cmp_eq_u32 vcc, s{S_T}, v{t1}
    v_mov_b32 v{t1}, {L_Z}
    v_cndmask_b32 v{V_QS}, v{t1}, v{V_QS}, vcc
    v_and_b32 v{t1}, 15, v0
    v_lshlrev_b32 v{V_X2}, 4, v{t1}
    v_and_b32 v{t1}, 1, v{t0}
    v_lshl_add_u32 v{V_X2}, v{t1}, 3, v{V_X2}""")
    A(f"v_and_b32 v{t1}, 15, v0\ns_sub_u32 s{S_T}, s{w}, 1\ns_lshl_b32 s{S_T}, s{S_T}, 4\nv_add_u32 v{t1}, s{S_T}, v{t1}")
    for kt in range(2):
        for i in range(4):
            A(f"""v_lshlrev_b32 v{t2}, 2, v{t0}
            v_add_u32 v{t2}, {16*kt+i}, v{t2}
            v_cmp_le_i32 {sr(S_MSK+8*kt+2*i,2)}, v{t2}, v{t1}""")
    A(f"s_mov_b32 s{S_MSK+16}, 0\ns_mov_b32 s{S_MSK+17}, -1\ns_mov_b32 s{S_CSC}, {hexf(CSC)}")
    l = A.newlabel('a_i')
    A(f"""v_bfe_u32 v{t1}, v0, 4, 1
    v_lshlrev_b32 v{t1}, 2, v{t1}
    v_sub_u32 v{V_X3}, v{V_X2}, v{t1}
    s_cmp_lg_u32 s{w}, 0
    s_cbranch_scc1 {l}
    v_lshrrev_b32 v{t2}, 5, v0
    v_lshl_add_u32 v{V_X2}, v{t2}, 8, v{V_X2}
    {l}:""")
    A(f"""s_mul_i32 s{S_T}, s{S_H}, 12288
    s_add_u32 s{S_C1}, s{S_T}, {WS_KF}
    s_add_u32 s{S_C2}, s{S_T}, {WS_QF}
    s_lshl_b32 s{S_C3}, s{S_HL}, 9
    s_add_u32 s{S_C3}, s{S_C3}, {P_OFF}
    s_lshr_b32 s{S_T+1}, s{S_HL}, 1
    s_lshl_b32 s{S_T+1}, s{S_T+1}, 8
    s_and_b32 s{S_T+2}, s{S_HL}, 1
    s_lshl_b32 s{S_T+2}, s{S_T+2}, 3
    s_add_u32 s{S_C4}, s{S_T+1}, s{S_T+2}
    s_add_u32 s{S_C4}, s{S_C4}, {P_OFF+4096}
    s_sub_u32 s{S_T}, s{w}, 1
    s_and_b32 s{S_T}, s{S_T}, 1
    s_mul_i32 s{S_T}, s{S_T}, 10240
    s_add_u32 s{S_T}, s{S_T}, {PX_OFF}
    s_add_u32 s{S_T}, s{S_T}, s{S_CUR}
    s_lshl_b32 s{S_C5}, s{S_HL}, 10
    s_add_u32 s{S_C5}, s{S_C5}, s{S_T}
    s_lshl_b32 s{S_C6}, s{S_HL}, 8
    s_add_u32 s{S_C6}, s{S_C6}, s{S_T}
    s_add_u32 s{S_C6}, s{S_C6}, 8192
    s_add_u32 s{S_C3}, s{S_C3}, s{S_CUR}
    s_add_u32 s{S_C4}, s{S_C4}, s{S_CUR}
    s_mul_i32 s{S_T}, s{w}, 3072
    s_add_u32 s{S_C1}, s{S_C1}, s{S_T}
    s_add_u32 s{S_C2}, s{S_C2}, s{S_T}
    s_add_u32 s{S_O1}, s{S_T}, {L_X}""")
    def bulk_pieces():
        P = []
        for m, sp in enumerate((S_C1, S_C2)):
            for i in range(3):
                x = f"s_add_u32 m0, s{S_O1}, {m*12288}\n" if i == 0 else ''
                if not NOKQ: x += bdma(V_LANE16, sp, i*1024)
                if i == 2: x += f"\ns_add_u32 s{sp}, s{sp}, {SEG_QKV}" + wrap(sp, [WS_KF, WS_QF][m] + RING*SEG_QKV, RING*SEG_QKV, S_T+3)
                P.append(x)
        return P
    A(f"""s_load_dwordx4 s[{S_A}:{S_A+3}], s[0:1], {KA_WQ}
    s_mul_i32 s{S_T}, s{S_H}, 384
    s_waitcnt lgkmcnt(0)""")
    add64(A, S_A, S_A, f"s{S_T}"); add64(A, S_B, S_B, f"s{S_T}")
    load_heads(A, [S_A, S_B], lambda ww: [(0, 3*ww+(ww&1)), (0, 3*ww+(ww&1)+1), (0, 3*ww+2-2*(ww&1)), (1, 3*ww+2-2*(ww&1)), (1, 3*ww+(ww&1)), (1, 3*ww+(ww&1)+1)], posA)
    H(hooks, 'rts', A, 2)
    A(f"v_mov_b32 v{MOP}, 0\nv_lshrrev_b32 v{MOP+1}, 2, v{V_LANE16}\nds_write_b32 v{MOP+1}, v{MOP} offset:{L_Z}")
    l = A.newlabel('a_i')
    A(f"s_cmp_lg_u32 s{w}, 0\ns_cbranch_scc1 {l}\nv_mov_b32 v0, 0x40000000\nv_cndmask_b32 v0, v0, v{V_X3}, {sr(S_MSK+16,2)}\n{l}:")
    waitall(A, s_dbg, exitlab, V_LANE16, s_slow=S_SLOW)
    H(hooks, 'wait_in', A, 'first')
    for x in bulk_pieces(): A(x)
    A(f"s_add_u32 s{S_O1}, s{S_O1}, 24576\ns_mov_b32 s{S_O3}, -24576")
    if slow_too: A(f"s_cmp_lg_u32 s{S_SLOW}, 0\ns_cbranch_scc1 a_loop_slow")
    for ver in (['', '_slow'] if slow_too else ['']):
        LF = 'sc1' if ver else ''
        A(f"a_loop{ver}:")
        lg = Lg(A)
        for i in range(4): stg_load(lg, i)
        for i in range(24): A(f"v_mov_b32 v{ACC+i}, 0")
        H(hooks, 'wait_in', A, 'peek')
        H(hooks, 'stamp', A, 0)
        if ASLEEP: A(f"s_sleep {ASLEEP}")
        lg.all()
        dsq = ingest_mem(A, lg, exitlab) or []
        H(hooks, 'stamp', A, 1)
        e0, e1, e2 = posA(9, 1), posA(9, 2), posA(9, 3)
        def epi_pair(Q, off, last):
            K = Q + 4
            ops = [f"v_permlane32_swap_b32 v{Q+r}, v{K+r}" for r in range(4)]
            if not last: ops += [f"v_add_f32 v{Q+r}, v{Q+r}, v{K+r}" for r in range(4)]
            else: ops += [f"v_pk_add_f32 {vr(Q+r,2)}, {vr(Q+r,2)}, {vr(K+r,2)}" for r in (0, 2)]
            ops += [f"v_cvt_pk_bf16_f32 v{K}, v{Q}, v{Q+1}", f"v_cvt_pk_bf16_f32 v{K+1}, v{Q+2}, v{Q+3}"]
            return ops + [('ds', f"ds_write_b64 v{V_TW}, {vr(K,2)} offset:{L_T + off}", None)]
        def epi_self(c, off):
            return [f"v_permlane32_swap_b32 v{c}, v{c+2}", f"v_permlane32_swap_b32 v{c+1}, v{c+3}", f"v_add_f32 v{c}, v{c}, v{c+2}",
                    f"v_add_f32 v{c+1}, v{c+1}, v{c+3}", f"v_cvt_pk_bf16_f32 v{c}, v{c}, v{c+1}", ('ds', f"ds_write_b32 v{V_TS}, v{c} offset:{L_T + off}", None)]
        def qe_rd(n): return [('ds', f"ds_read_b64_tr_b16 {vr(QE[n]+2*q,2)}, v{[V_JUNK, V_QS][n]} offset:{L_T + q*32}", ('qe', n)) for q in range(2)]
        def sop(i, h):
            r = STG + 8*(i % 4) + 4*h
            return (f"ds_read_b128 {vr(r,4)}, v{V_WS} offset:{i*2048+1024*h}", ('w', i) if h else None)
        KE = {(0, 0): STG+16, (1, 0): STG+20, (0, 1): STG+24, (1, 1): STG+28}; QE = [STG, STG+4]
        SE = [ACC, ACC+4]; PO = STG + 8
        DS = {}
        for g, x in zip(WGAPS, dsq): DS[g] = x
        for n, i in enumerate(range(4, 10)):
            DS[SGAPS[2*n]] = sop(i, 0); DS[SGAPS[2*n+1]] = sop(i, 1)
        for g, (rt, kl) in zip(KGAPS, [(0, 0), (1, 0), (0, 1), (1, 1)]):
            DS[g] = (f"ds_read_b128 {vr(KE[rt, kl],4)}, v{[V_X1, V_X3][kl]} offset:{rt*6144}", ('ke', rt, kl))
        def early(kl):
            lg.need(('ke', 1, kl)); lg.need(('qe', kl))
            for rt in range(2):
                A(f"v_mfma_f32_16x16x32_bf16 {vr(SE[rt],4)}, {vr(KE[rt, kl],4)}, {vr(QE[kl],4)}, {'0' if kl == 0 else vr(SE[rt],4)}")
        pend = []
        for p, (kp, t) in enumerate(SEQ_A):
            if p == AB1:
                lg.need(('mw', 2)); A("s_barrier"); H(hooks, 'stamp', A, 5)
                for n, x in enumerate(read_mem_frags(A, lg, ANOW)):
                    assert AB1 + n not in DS
                    DS[AB1+n] = x
            kind, x = wloc(p)
            if kind == 'lds': lg.need(('w', x))
            if kp >= 3: lg.need(('m', kp))
            smf(A, ACC+4*t, MOP+4*kp, wreg(p))
            if p in DS: lg.ds(*DS[p])
            if p == 1: pend += [f"v_add_u32 v{V_X3}, s{S_WS2}, v{V_X1}"]
            if p == e0 + 3:
                es = epi_self(ACC+8, 0); q0 = qe_rd(0)
                pend += epi_pair(ACC, 0, False) + [es[0], q0[0], es[1], q0[1]] + es[2:] + qe_rd(1)
            if p == EK: pend += epi_self(ACC+12, 3200)
            if p == EM1 + 3:
                for rt in range(2):
                    pend += [f"v_cndmask_b32 v{PO+2*rt+j}, v{SE[rt]+j}, v{SE[rt]+2+j}, {sr(S_HI,2)}" for j in range(2)]
                    if P64: pend += [('ds', f"ds_write_b64 v{V_P1}, {vr(PO+2*rt,2)} offset:{L_S+8*rt}", 'pw')]
                if not P64: pend += [('ds', f"ds_write_b128 v{V_P1}, {vr(PO,4)} offset:{L_S}", 'pw')]
            nv = nd = 0
            while pend:
                o = pend[0]
                if isinstance(o, tuple):
                    if nd or nv or p in DS: break
                    lg.ds(o[1], o[2]); nd += 1
                else:
                    if nv >= (2 if (p > EM1 and EFAST) else 1): break
                    A(o); nv += 1
                pend.pop(0)
            if p == EM0: early(0)
            if p == EM1: early(1)
        lx, l3, lend = f'a_xrows{ver}', f'a_w3{ver}', f'a_end{ver}'
        A(f"s_cmp_lg_u32 s{w}, 0")
        for o in pend:
            if isinstance(o, tuple): lg.ds(o[1], o[2])
            else: A(o)
        if SMX == 2:
            lg.need('pw'); A("s_barrier")
            for n, r_ in enumerate((MOP, STG, STG+4)): lg.ds(f"ds_read_b128 {vr(r_,4)}, v{V_LANE16} offset:{L_S + 1024*(n+1)}", ('ps', n))
        for o in epi_pair(ACC+16, 3200, True):
            if isinstance(o, tuple): lg.ds(o[1])
            else: A(o)
        if SMX == 2:
            lg.need(('ps', 2))
            for r_ in (PO, STG, STG+4):
                for j in (0, 2): A(f"v_pk_add_f32 {vr(MOP+j,2)}, {vr(MOP+j,2)}, {vr(r_+j,2)}")
        S0, S1, SM = ACC, ACC+4, ACC+8
        A(f"v_mov_b32 v{V_X3}, 0x{NEG:x}")
        for r in range(4): A(f"v_cndmask_b32 v{SM+r}, v{V_X3}, 0, {sr(S_MSK+16,2)}")
        lg.all(); A("s_barrier")
        H(hooks, 'stamp', A, 2)
        A(f"s_cbranch_scc1 {lx}")
        QK = MOP + 12
        lg = Lg(A)
        def rd_qk(kk):
            for q in range(2): lg.ds(f"ds_read_b64_tr_b16 {vr(QK+4*kk+2*q,2)}, v{V_TR} offset:{L_T + kk*256 + q*32}", ('qk', kk))
        E = MOP; M_, T_, L_, G_ = MOP+8, MOP+9, MOP+10, MOP+11
        PSR = [E, STG, STG+4, PO]
        if SMX:
            for n in range(3 if SMX == 1 else 0): lg.ds(f"ds_read_b128 {vr(PSR[n],4)}, v{V_LANE16} offset:{L_S + 1024*(n+1)}", ('ps', n))
            for kk in range(6): rd_qk(kk)
            MX, LX, FX, MM = MOP+6, MOP+7, STG+12, STG+13
            xo = []
            for n in ((3, 1, 2) if SMX == 1 else ()): xo += [('need', ('ps', n % 3))] + [f"v_add_f32 v{E+j}, v{E+j}, v{PSR[n]+j}" for j in range(4)]
            xo += [f"v_max3_f32 v{MX}, v{E}, v{E+1}, v{E+2}", f"v_max_f32 v{MX}, v{MX}, v{E+3}", f"v_mul_f32 v{MX}, s{S_CSC}, v{MX}"]
            xo += [f"v_fma_f32 v{E+j}, v{E+j}, s{S_CSC}, -v{MX}" for j in range(4)]
            xo += [f"v_exp_f32 v{E+j}, v{E+j}" for j in range(4)]
            def pop(n):
                while n and xo:
                    o = xo.pop(0)
                    if isinstance(o, tuple): lg.need(o[1])
                    else: A(o); n -= 1
            pop(SMX0)
            for kk in range(6):
                lg.need(('qk', kk))
                A(f"v_mfma_f32_16x16x32_bf16 {vr(SM,4)}, {vr(QK+4*kk,4)}, {vr(QK+4*kk,4)}, {vr(SM,4)}")
                pop(SMX1)
            pop(99)
            H(hooks, 'stamp', A, 4)
            A(f"""v_mov_b32_dpp v{SM}, v{SM+2} row_shr:8 row_mask:0xf bank_mask:0xc
            v_mov_b32_dpp v{SM+1}, v{SM+3} row_shr:8 row_mask:0xf bank_mask:0xc
            v_mul_f32 v{E+4}, s{S_CSC}, v{SM}
            v_mul_f32 v{E+5}, s{S_CSC}, v{SM+1}
            v_max3_f32 v{M_}, v{MX}, v{E+4}, v{E+5}
            v_add_f32 v{LX}, v{E}, v{E+1}
            v_add_f32 v{T_}, v{E+2}, v{E+3}
            v_max_f32_dpp v{G_}, v{M_}, v{M_} row_ror:8 row_mask:0xf bank_mask:0xf
            v_max_f32_dpp v{MM}, v{M_}, v{M_} row_ror:8 row_mask:0xf bank_mask:0xf
            v_add_f32 v{LX}, v{LX}, v{T_}
            v_permlane16_swap_b32 v{G_}, v{MM}
            v_max_f32 v{T_}, v{G_}, v{MM}
            v_max_f32 v{G_}, v{G_}, v{MM}
            v_permlane32_swap_b32 v{G_}, v{T_}
            v_max_f32 v{G_}, v{G_}, v{T_}
            v_sub_f32 v{FX}, v{MX}, v{G_}
            v_sub_f32 v{E+4}, v{E+4}, v{G_}
            v_sub_f32 v{E+5}, v{E+5}, v{G_}
            v_exp_f32 v{FX}, v{FX}
            v_exp_f32 v{E+4}, v{E+4}
            v_exp_f32 v{E+5}, v{E+5}
            v_fma_f32 v{L_}, v{LX}, v{FX}, v{E+4}
            v_add_f32 v{L_}, v{L_}, v{E+5}
            v_mul_f32 v{E}, v{E}, v{FX}
            v_mul_f32 v{E+1}, v{E+1}, v{FX}
            v_add_f32_dpp v{T_}, v{L_}, v{L_} row_ror:8 row_mask:0xf bank_mask:0xf
            v_add_f32_dpp v{L_}, v{L_}, v{L_} row_ror:8 row_mask:0xf bank_mask:0xf
            v_mul_f32 v{E+2}, v{E+2}, v{FX}
            v_mul_f32 v{E+3}, v{E+3}, v{FX}
            v_permlane16_swap_b32 v{L_}, v{T_}
            v_add_f32 v{MM}, v{L_}, v{T_}
            v_add_f32 v{L_}, v{L_}, v{T_}
            v_permlane32_swap_b32 v{L_}, v{MM}
            v_add_f32 v{L_}, v{L_}, v{MM}
            v_rcp_f32 v{L_}, v{L_}""")
        else:
            for kk in range(6): rd_qk(kk)
            for n in range(3): lg.ds(f"ds_read_b128 {vr(PSR[n],4)}, v{V_LANE16} offset:{L_S + 1024*(n+1)}", ('ps', n))
            for kk in range(6):
                lg.need(('qk', kk))
                A(f"v_mfma_f32_16x16x32_bf16 {vr(SM,4)}, {vr(QK+4*kk,4)}, {vr(QK+4*kk,4)}, {vr(SM,4)}")
            for n in (3, 1, 2):
                lg.need(('ps', n % 3))
                for j in (0, 2): A(f"v_pk_add_f32 {vr(E+j,2)}, {vr(E+j,2)}, {vr(PSR[n]+j,2)}")
            H(hooks, 'stamp', A, 4)
            A(f"""v_max3_f32 v{M_}, v{E}, v{E+1}, v{E+2}
            v_max_f32 v{M_}, v{M_}, v{E+3}
            v_mov_b32_dpp v{SM}, v{SM+2} row_shr:8 row_mask:0xf bank_mask:0xc
            v_mov_b32_dpp v{SM+1}, v{SM+3} row_shr:8 row_mask:0xf bank_mask:0xc""")
            A(f"""v_max3_f32 v{M_}, v{M_}, v{SM}, v{SM+1}
            v_mul_f32 v{M_}, s{S_CSC}, v{M_}
            v_fma_f32 v{E}, v{E}, s{S_CSC}, -v{M_}
            v_fma_f32 v{E+1}, v{E+1}, s{S_CSC}, -v{M_}
            v_max_f32_dpp v{G_}, v{M_}, v{M_} row_ror:8 row_mask:0xf bank_mask:0xf
            v_mov_b32 v{T_}, v{G_}
            v_fma_f32 v{E+2}, v{E+2}, s{S_CSC}, -v{M_}
            v_fma_f32 v{E+3}, v{E+3}, s{S_CSC}, -v{M_}
            v_permlane16_swap_b32 v{G_}, v{T_}
            v_max_f32 v{G_}, v{G_}, v{T_}
            v_mov_b32 v{T_}, v{G_}
            v_fma_f32 v{E+4}, v{SM}, s{S_CSC}, -v{M_}
            v_fma_f32 v{E+5}, v{SM+1}, s{S_CSC}, -v{M_}
            v_permlane32_swap_b32 v{G_}, v{T_}
            v_max_f32 v{G_}, v{G_}, v{T_}
            v_sub_f32 v{G_}, v{M_}, v{G_}""")
            for j in range(6): A(f"v_exp_f32 v{E+j}, v{E+j}")
            A(f"""v_exp_f32 v{G_}, v{G_}
            v_pk_add_f32 {vr(M_,2)}, {vr(E,2)}, {vr(E+2,2)}
            v_pk_add_f32 {vr(M_,2)}, {vr(M_,2)}, {vr(E+4,2)}
            v_add_f32 v{L_}, v{M_}, v{T_}
            v_mul_f32 v{L_}, v{L_}, v{G_}
            v_mul_f32 v{E}, v{E}, v{G_}
            v_mul_f32 v{E+1}, v{E+1}, v{G_}
            v_add_f32_dpp v{L_}, v{L_}, v{L_} row_ror:8 row_mask:0xf bank_mask:0xf
            v_mov_b32 v{T_}, v{L_}
            v_mul_f32 v{E+2}, v{E+2}, v{G_}
            v_mul_f32 v{E+3}, v{E+3}, v{G_}
            v_permlane16_swap_b32 v{L_}, v{T_}
            v_add_f32 v{L_}, v{L_}, v{T_}
            v_mov_b32 v{T_}, v{L_}
            v_mul_f32 v{E+4}, v{E+4}, v{G_}
            v_mul_f32 v{E+5}, v{E+5}, v{G_}
            v_permlane32_swap_b32 v{L_}, v{T_}
            v_add_f32 v{L_}, v{L_}, v{T_}
            v_rcp_f32 v{L_}, v{L_}""")
        A(f"""v_pk_mul_f32 {vr(E,2)}, {vr(E,2)}, {vr(L_,2)} op_sel_hi:[1,0]
        v_pk_mul_f32 {vr(E+2,2)}, {vr(E+2,2)}, {vr(L_,2)} op_sel_hi:[1,0]
        v_cvt_pk_bf16_f32 v{E+16}, v{E}, v{E+1}
        v_cvt_pk_bf16_f32 v{E+17}, v{E+2}, v{E+3}
        v_and_or_b32 v{E+16}, v{E+16}, -2, s{S_TAG}""")
        A(bst(2, E+16, V_X2, S_C3, 0, LF))
        A(f"""v_pk_mul_f32 {vr(E+4,2)}, {vr(E+4,2)}, {vr(L_,2)} op_sel_hi:[1,0]
        v_cvt_pk_bf16_f32 v{E+18}, v{E+4}, v{E+5}
        v_and_or_b32 v{E+18}, v{E+18}, -2, s{S_TAG}""")
        A(bst(1, E+18, 0, S_C4, 0, LF))
        H(hooks, 'stamp', A, 3)
        A(f"s_branch {lend}")
        A(f"{l3}:")
        H(hooks, 'steplog', A)
        if KQW3:
            for m, sp in enumerate((S_C1, S_C2)):
                for i in range(12):
                    if i % 3 == 0: A(f"s_add_u32 m0, s{S_O1}, {m*12288 + i*1024 - 9216}\ns_add_u32 s{S_T}, s{sp}, {i*1024 - 9216}")
                    if not NOKQ: A(bdma(V_LANE16, S_T, (i % 3)*1024))
                A(f"s_add_u32 s{sp}, s{sp}, {SEG_QKV}")
        A(f"s_sleep {(7 if KQW3 else 12) if ASLEEP else 0}\ns_branch {lend}")
        A(f"{lx}:\ns_cmp_eq_u32 s{w}, 3\ns_cbranch_scc1 {l3}")
        lg = Lg(A)
        VK, VQ = ACC+12, ACC+13
        for kt, s_ in enumerate((S0, S1)):
            for r in range(4): A(f"v_cndmask_b32 v{s_+r}, v{V_X3}, 0, {sr(S_MSK+8*kt+2*r,2)}")
        A(f"v_subrev_u32 v{VK}, s{S_WO}, v{V_X1}\ns_mul_i32 s{S_T}, s{w}, 6144\nv_add_u32 v{VQ}, s{S_T}, v{VK}")
        QQ = [MOP, MOP+4, MOP+8]; KA = [STG, STG+8, STG+16]
        def rd_x(kk):
            lg.ds(f"ds_read_b128 {vr(QQ[kk%3],4)}, v{VQ} offset:{6144 + kk*1024}")
            for rt in range(2): lg.ds(f"ds_read_b128 {vr(KA[kk%3]+4*rt,4)}, v{VK} offset:{rt*6144 + kk*1024}")
            rd_qk(kk)
        for kk in range(3): rd_x(kk)
        for kk in range(6):
            lg.need(('qk', kk))
            b = vr(QQ[kk%3], 4)
            A(f"v_mfma_f32_16x16x32_bf16 {vr(S0,4)}, {vr(KA[kk%3],4)}, {b}, {vr(S0,4)}")
            A(f"v_mfma_f32_16x16x32_bf16 {vr(S1,4)}, {vr(KA[kk%3]+4,4)}, {b}, {vr(S1,4)}")
            A(f"v_mfma_f32_16x16x32_bf16 {vr(SM,4)}, {vr(QK+4*kk,4)}, {b}, {vr(SM,4)}")
            if kk + 3 < 6: rd_x(kk+3)
        vals = [S0+i for i in range(4)] + [S1+i for i in range(4)] + [SM+i for i in range(4)]
        A(f"v_max3_f32 v{M_}, v{vals[0]}, v{vals[1]}, v{vals[2]}")
        for j in range(3, 11, 2): A(f"v_max3_f32 v{M_}, v{M_}, v{vals[j]}, v{vals[j+1]}")
        A(f"v_max_f32 v{M_}, v{M_}, v{vals[11]}")
        xlane_max_g(A, M_, T_)
        A(f"v_mul_f32 v{M_}, s{S_CSC}, v{M_}")
        for v in vals: A(f"v_fma_f32 v{v}, v{v}, s{S_CSC}, -v{M_}")
        for v in vals: A(f"v_exp_f32 v{v}, v{v}")
        A(f"v_add_f32 v{L_}, v{vals[0]}, v{vals[1]}")
        for v in vals[2:]: A(f"v_add_f32 v{L_}, v{L_}, v{v}")
        xlane_sum_g(A, L_, T_)
        A(f"v_rcp_f32 v{L_}, v{L_}")
        for v in vals: A(f"v_mul_f32 v{v}, v{v}, v{L_}")
        for n in range(6): A(f"v_cvt_pk_bf16_f32 v{E+n}, v{vals[2*n]}, v{vals[2*n+1]}")
        A(f"""s_bfe_u32 s{S_T}, s{S_STEP}, 0x10002
        s_and_b32 s{S_T+1}, s{S_STEP}, 3
        s_lshl_b32 s{S_T+1}, s{S_T+1}, 15
        s_add_u32 s{S_T+2}, s{S_T+1}, s{S_C6}
        s_add_u32 s{S_T+1}, s{S_T+1}, s{S_C5}
        v_and_or_b32 v{E}, v{E}, -2, s{S_T}
        v_and_or_b32 v{E+4}, v{E+4}, -2, s{S_T}""")
        A(bst(4, E, V_LANE16, S_T+1, 0, LF))
        A("s_mov_b32 exec_lo, 0")
        A(bst(2, E+4, V_X2, S_T+2, 0, LF))
        A("s_mov_b32 exec_lo, -1")
        A(f"{lend}:")
        H(hooks, 'stamp', A, 6)
        if 'wait_in' in hooks:
            lb = A.newlabel('kq')
            A(f"s_cmp_eq_u64 {sr(S_EVEN,2)}, 0\ns_cbranch_scc1 {lb}")
            H(hooks, 'wait_in', A, 'block')
            if KQEND: A(f"{lb}:")
            for x in bulk_pieces(): A(x)
            if not KQEND: A(f"{lb}:")
        next_step(A)
        A(f"""s_add_u32 s{S_O1}, s{S_O1}, s{S_O3}
        s_sub_u32 s{S_O3}, 0, s{S_O3}
        v_add_u32 v{V_X1}, s{S_O3}, v{V_X1}
        s_cmp_lt_u32 s{S_STEP}, {NSEG}
        s_cbranch_scc1 a_loop{ver}
        s_branch a_fin""")
    A("a_fin:")
    H(hooks, 'final', A)
    A(f"v_lshrrev_b32 v0, 4, v{V_LANE16}\ns_branch {hooks['next_ab']}")

SEQ_BV = [(kp, t) for kp in range(3) for t in range(3)] + [(kp, 2) for kp in range(3, 10)] + [(kp, t) for kp in range(3, 10) for t in (0, 1)]
SEQ_BO = [(pr, kk) for kk in (1, 4) for pr in range(5)] + [(pr, kk) for kk in (0, 2, 3, 5) for pr in (0, 1)] + [(pr, kk) for pr in (2, 3, 4) for kk in (0, 2, 3, 5)]
def posB_v(kp, t): return SEQ_BV.index((kp, t))
def posB_o(pr, kk): return 30 + SEQ_BO.index((pr, kk))

def role_B(A, exitlab, s_dbg, hooks, slow_too=True):
    w = S_WAVE
    set_lpos(LPOS_B)
    common_init(A)
    t0, t1, t2 = MOP, MOP+1, MOP+2
    A(f"""v_lshrrev_b32 v{t0}, 4, v0
    v_and_b32 v{t1}, 1, v{t0}
    v_mul_u32_u24 v{V_TW}, 1568, v{t1}
    v_and_b32 v{t1}, 15, v0
    v_lshl_add_u32 v{V_TW}, v{t1}, 3, v{V_TW}
    v_lshrrev_b32 v{t1}, 5, v0
    v_lshl_add_u32 v{V_X1}, v{t1}, 2, v{V_TW}
    v_lshl_add_u32 v{V_TW}, v{t1}, 7, v{V_TW}
    s_and_b32 s{S_T}, s{w}, 1
    s_mul_i32 s{S_T+1}, s{w}, 3
    s_add_u32 s{S_T+2}, s{S_T+1}, s{S_T}
    s_lshl_b32 s{S_T+2}, s{S_T+2}, 7
    v_add_u32 v{V_TW}, s{S_T+2}, v{V_TW}
    s_lshl_b32 s{S_T+3}, s{S_T}, 1
    s_sub_u32 s{S_T+3}, s{S_T+1}, s{S_T+3}
    s_add_u32 s{S_T+3}, s{S_T+3}, 2
    s_lshl_b32 s{S_T+3}, s{S_T+3}, 7
    v_add_u32 v{V_X1}, s{S_T+3}, v{V_X1}
    v_and_b32 v{t1}, 1, v0
    v_mul_u32_u24 v{V_TR}, 1568, v{t1}
    v_bfe_u32 v{t1}, v0, 2, 2
    v_lshl_add_u32 v{V_TR}, v{t1}, 3, v{V_TR}
    v_lshl_add_u32 v{V_TR}, v{t0}, 6, v{V_TR}
    v_and_b32 v{t1}, 15, v0
    v_lshlrev_b32 v{V_X2}, 4, v{t1}
    v_and_b32 v{t1}, 1, v{t0}
    v_lshl_add_u32 v{V_X2}, v{t1}, 3, v{V_X2}
    v_lshrrev_b32 v{t1}, 5, v0
    v_lshl_add_u32 v{V_X2}, v{t1}, 10, v{V_X2}""")
    A(f"""s_lshr_b32 s{S_T}, s{S_HL}, 2
    s_mul_i32 s{S_T}, s{S_T}, 40960
    s_mul_i32 s{S_T+1}, s{w}, 10240
    s_add_u32 s{S_T}, s{S_T}, s{S_T+1}
    s_and_b32 s{S_T+1}, s{S_HL}, 3
    s_lshl_b32 s{S_T+1}, s{S_T+1}, 8
    s_add_u32 s{S_T}, s{S_T}, s{S_T+1}
    s_add_u32 s{S_T}, s{S_T}, s{S_CUR}
    s_add_u32 s{S_C1}, s{S_T}, {Y_OFF}
    s_add_u32 s{S_C2}, s{S_C1}, 4096
    s_add_u32 s{S_C3}, s{S_C1}, 8192
    s_lshl_b32 s{S_C4}, s{S_GRP}, 2
    s_add_u32 s{S_C4}, s{S_C4}, s{w}
    s_lshl_b32 s{S_C4}, s{S_C4}, 15
    s_lshl_b32 s{S_T}, s{S_HL}, 10
    s_add_u32 s{S_C4}, s{S_C4}, s{S_T}
    s_add_u32 s{S_C4}, s{S_C4}, {2*GSLOT}""")
    YSO = [S_C1, S_C2, S_C3]
    A(f"""s_load_dwordx4 s[{S_A}:{S_A+3}], s[0:1], {KA_WV}
    s_mul_i32 s{S_T}, s{S_H}, 384
    s_mul_i32 s{S_T+1}, s{S_H}, 245760
    s_mul_i32 s{S_T+2}, s{w}, 320
    s_add_u32 s{S_T+1}, s{S_T+1}, s{S_T+2}
    s_waitcnt lgkmcnt(0)""")
    add64(A, S_A, S_A, f"s{S_T}"); add64(A, S_B, S_B, f"s{S_T+1}")
    load_heads(A, [S_A], lambda ww: [(0, 3*ww+(ww&1)), (0, 3*ww+(ww&1)+1), (0, 3*ww+2-2*(ww&1))], posB_v)
    A(f"s_mul_i32 s{S_T+4}, s{w}, 20480")
    d_, t_ = MOP+2, MOP+3
    A(f"""v_bfe_u32 v{d_}, v0, 2, 1
    v_lshrrev_b32 v{t_}, 4, v0
    v_lshl_add_u32 v{d_}, v{t_}, 2, v{d_}
    v_mul_u32_u24 v{d_}, 320, v{d_}
    v_bfe_u32 v{t_}, v0, 3, 1
    v_lshl_add_u32 v{d_}, v{t_}, 5, v{d_}
    v_and_b32 v{t_}, 3, v0
    v_lshl_add_u32 v{d_}, v{t_}, 3, v{d_}
    v_add_u32 v{d_}, s{S_T+4}, v{d_}""")
    def reads(A, r, off):
        for pr in range(5):
            read_operand(A, posB_o(pr, r), MOP+2, off + pr*64, 320, hrows=16)
    load_w_rows(A, S_B, 1280, 20, 192, 32, 2, S_T+4, 0, S_T, MOP, reads)
    A("s_barrier")
    H(hooks, 'rts', A, 2)
    waitall(A, s_dbg, exitlab, V_LANE16, s_slow=S_SLOW, s_pol=S_POL)
    A(f"s_add_u32 s{S_C4}, s{S_C4}, s{S_POL}")
    H(hooks, 'b_init', A)
    if slow_too: A(f"s_cmp_lg_u32 s{S_SLOW}, 0\ns_cbranch_scc1 b_loop_slow")
    for ver in (['', '_slow'] if slow_too else ['']):
        LF = 'sc1' if ver else ''
        A(f"b_loop{ver}:")
        lg = Lg(A)
        for i in range(4): stg_load(lg, i)
        for i in range(24): A(f"v_mov_b32 v{ACC+i}, 0")
        H(hooks, 'stamp', A, 0)
        if BSLEEP: A(f"s_sleep {BSLEEP}")
        lg.all()
        dsq = ingest_mem(A, lg, exitlab) or []
        late = []
        H(hooks, 'stamp', A, 1)
        DS = {}
        for g, x in zip(WGAPSB, dsq): DS[g] = x
        for n, i in enumerate(range(4, 10)):
            for h in range(2):
                DS[SGAPSB[2*n+h]] = (f"ds_read_b128 {vr(STG+8*(i%4)+4*h,4)}, v{V_WS} offset:{i*2048+1024*h}", ('w', i) if h else None)
        YA = [ACC+12, ACC+16, ACC+20, MOP+8, ACC+8]
        VOP = {1: MOP, 4: MOP+4, 0: MOP+12, 2: MOP+16, 3: MOP+20, 5: MOP+24}
        def vrd(kk): return [('ds', f"ds_read_b64_tr_b16 {vr(VOP[kk]+2*q,2)}, v{V_TR} offset:{L_T + kk*256 + q*32}", ('v', kk)) for q in range(2)]
        def yepi(pr):
            a = YA[pr]
            return [f"v_cvt_pk_bf16_f32 v{a}, v{a}, v{a+1}", f"v_cvt_pk_bf16_f32 v{a+1}, v{a+2}, v{a+3}",
                    f"v_and_or_b32 v{a}, v{a}, -2, s{S_TAG}", ('vm', bst(2, a, V_X2, YSO[pr//2], (pr % 2)*2048, LF))]
        c = ACC + 8; a, b = ACC, ACC + 4
        pend = []
        def drain(p, maxv=1):
            nv = nd = 0
            while pend:
                o = pend[0]
                if isinstance(o, tuple):
                    if nd or nv or p in DS: break
                    if o[0] == 'ds': lg.ds(o[1], o[2])
                    else: A(o[1])
                    nd += 1
                else:
                    if nv >= maxv: break
                    A(o); nv += 1
                pend.pop(0)
        for p in range(60):
            if p == BB1:
                lg.need(('mw', 2)); A("s_barrier")
                for n, x in enumerate(read_mem_frags(A, lg, BNOW)):
                    assert BB1 + n not in DS
                    DS[BB1+n] = x
            if p == BX1:
                lg.need('ts'); A("s_barrier")
                r = vrd(1) + vrd(4)
                for o in r[:2]: lg.ds(o[1], o[2])
                pend[:0] = r[2:]
            if p == BX2:
                while pend:
                    o = pend.pop(0)
                    if isinstance(o, tuple): lg.ds(o[1], o[2])
                    else: A(o)
                lg.need('tp'); A("s_barrier")
                H(hooks, 'stamp', A, 2)
                for kk in (0, 2, 3, 5):
                    for o in vrd(kk): lg.ds(o[1], o[2])
            kind, x = wloc(p)
            if kind == 'lds': lg.need(('w', x))
            if p < 30:
                kp, t = SEQ_BV[p]
                if kp >= 3: lg.need(('m', kp))
                smf(A, ACC+4*t, MOP+4*kp, wreg(p))
            else:
                pr, kk = SEQ_BO[p-30]
                lg.need(('v', kk))
                smf(A, YA[pr], VOP[kk], wreg(p))
            if p in DS: lg.ds(*DS[p])
            if p == 14: pend += [f"v_mov_b32 v{MOP+8+i}, 0" for i in range(4)]
            if p == 18:
                pend += [f"v_permlane32_swap_b32 v{c}, v{c+2}", f"v_permlane32_swap_b32 v{c+1}, v{c+3}", f"v_add_f32 v{c}, v{c}, v{c+2}",
                         f"v_add_f32 v{c+1}, v{c+1}, v{c+3}", f"v_cvt_pk_bf16_f32 v{V_X3}, v{c}, v{c+1}", ('ds', f"ds_write_b32 v{V_X1}, v{V_X3} offset:{L_T}", 'ts')]
                pend += [f"v_mov_b32 v{c+i}, 0" for i in range(4)]
            if p == 31:
                pend += [f"v_permlane32_swap_b32 v{a+r}, v{b+r}" for r in range(4)] + [f"v_add_f32 v{a+r}, v{a+r}, v{b+r}" for r in range(4)]
                pend += [f"v_cvt_pk_bf16_f32 v{b}, v{a}, v{a+1}", f"v_cvt_pk_bf16_f32 v{b+1}, v{a+2}, v{a+3}", ('ds', f"ds_write_b64 v{V_TW}, {vr(b,2)} offset:{L_T}", 'tp')]
            if p == 49: pend += yepi(0) + yepi(1)
            if p == 54: pend += yepi(2)
            if p == 58: pend += yepi(3)
            drain(p, BVF if 31 <= p < 40 else (2 if p >= 49 and BYF else 1))
        for o in pend + yepi(4): A(o[1] if isinstance(o, tuple) else o)
        H(hooks, 'stamp', A, 3)
        if BSCRUB:
            l = A.newlabel('bs')
            A(f"""s_add_u32 s{S_T}, s{S_STEP}, 6
            s_bfe_u32 s{S_T}, s{S_T}, 0x10002
            v_mov_b32 v{MOP+28}, s{S_T}
            v_mov_b32 v{MOP+30}, s{S_T}""")
            if BSD: A(f"s_sleep {BSD}")
            A(bst(4, MOP+28, V_LANE16, S_C4, 0, 'sc1'))
            A(f"s_cmp_ge_u32 s{S_HL}, 2\ns_cbranch_scc1 {l}\ns_add_u32 s{S_T}, s{S_C4}, 16384")
            A(bst(4, MOP+28, V_LANE16, S_T, 0, 'sc1'))
            A(f"{l}:\ns_add_u32 s{S_C4}, s{S_C4}, {GSLOT}\ns_and_b32 s{S_C4}, s{S_C4}, {4*GSLOT-1}")
        if BFLAG: H(hooks, 'b_flag', A)
        next_step(A)
        A(f"""s_cmp_lt_u32 s{S_STEP}, {NSEG}
        s_cbranch_scc1 b_loop{ver}
        s_branch b_fin""")
    A("b_fin:")
    H(hooks, 'final', A)
    A(f"s_branch {hooks['next_ab']}")

GPRE = int(os.environ.get('GPRE', '2'))
GGAP = int(os.environ.get('GGAP', '4'))
PPIPE = int(os.environ.get('PPIPE', '2'))
GMODE = os.environ.get('GMODE', 'load')
QREJ = int(os.environ.get('QREJ', '1'))
GLOOPGAP = int(os.environ.get('GLOOPGAP', '0'))

def role_R(A, exitlab, s_dbg, hooks, slow_too=True):
    w = S_WAVE
    LU, LY = 0, 98304
    VL, VIDX, VT, VG, VM, VTM, VU, VY = 1, V_IDX, 2, 3, 4, 5, 6, 7
    A(f"""v_lshlrev_b32 v{VL}, 4, v0
    s_mov_b32 s{S_HI}, 0xff00ff00
    s_mov_b32 s{S_HI+1}, 0xff00ff00
    v_mov_b32 v{VIDX}, 0x4444
    v_mov_b32 v{VT}, 0xeeee
    v_cndmask_b32 v{VIDX}, v{VIDX}, v{VT}, {sr(S_HI,2)}
    s_mov_b32 s{S_SEL0}, 0x00003f80
    s_mov_b32 s{S_SEL1}, 0x3f800000
    s_lshl_b32 s{S_CUR}, s{S_GRP}, 18
    s_add_u32 s{S_CUR}, s{S_CUR}, {LBASE}
    s_mov_b32 s{S_TAG}, 0
    s_mov_b32 s{S_STEP}, 0
    s_mov_b32 s{S_EVEN}, 0x55555555
    s_mov_b32 s{S_EVEN+1}, 0x55555555
    s_lshl_b32 s{S_T}, s{S_HL}, 2
    s_add_u32 s{S_T}, s{S_T}, s{w}
    s_mul_i32 s{S_T}, s{S_T}, 6144
    s_add_u32 s{S_T}, s{S_T}, s{S_CUR}
    s_add_u32 s{S_T}, s{S_T}, {P_OFF}
    s_add_u32 s{S_T+1}, s{S_T}, 3072""")
    for i in range(4): A(f"v_mov_b32 v{20+i}, -1")
    for i in range(6): A(bst(4, 20, VL, S_T + i//3, (i % 3)*1024, 'sc1'))
    A(f"""s_cmp_ge_u32 s{w}, 2
    s_cbranch_scc1 r_x""")
    S_UGc, S_UDc, S_ULc, S_LATE = S_MSK+8, S_MSK+9, S_MSK+10, S_MSK+12
    A(f"""s_mul_i32 s{S_UGc}, s{S_GRP}, {8*40960}
    s_lshl_b32 s{S_T+1}, s{S_HL}, 1
    s_add_u32 s{S_T+1}, s{S_T+1}, s{w}
    s_lshl_b32 s{S_T+1}, s{S_T+1}, 11
    s_add_u32 s{S_UGc}, s{S_UGc}, s{S_T+1}
    s_add_u32 s{S_UGc}, s{S_UGc}, {WS_UF}
    s_lshl_b32 s{S_ULc}, s{w}, 14
    s_mov_b32 s{S_UDc}, 0""")
    S_GS, S_GR = S_MSK, S_MSK+4
    S_YC, S_YC2, S_PC, S_MO, S_UB, S_TAGN, S_GD = S_C1, S_C2, S_C3, S_C4, S_C5, S_C6, S_O1
    A(f"""s_load_dwordx2 {sr(S_A,2)}, s[0:1], {KA_MEM0}
    s_lshl_b32 s{S_T}, s{S_HL}, 1
    s_add_u32 s{S_T}, s{S_T}, s{w}
    s_lshr_b32 s{S_T+1}, s{S_T}, 4
    s_lshl_b32 s{S_T+1}, s{S_T+1}, 14
    s_and_b32 s{S_T+2}, s{S_T}, 15
    s_lshl_b32 s{S_T+2}, s{S_T+2}, 9
    s_add_u32 s{S_T+1}, s{S_T+1}, s{S_T+2}""")
    for k in range(NG):
        A(f"""s_xor_b32 s{S_T+2}, s{S_GRP}, {k}
        s_lshl_b32 s{S_T+2}, s{S_T+2}, 17
        s_add_u32 s{S_GS+k}, s{S_T+2}, s{S_T+1}""")
    A(f"""s_lshl_b32 s{S_T+1}, s{S_T}, 11
    s_add_u32 s{S_YC}, s{S_T+1}, s{S_CUR}
    s_add_u32 s{S_YC}, s{S_YC}, {Y_OFF}
    s_add_u32 s{S_YC2}, s{S_YC}, 40960
    s_add_u32 s{S_PC}, s{S_CUR}, {P_OFF}
    s_add_u32 s{S_O2}, s{S_PC}, 4096
    s_lshl_b32 s{S_MO}, s{S_T}, 9
    s_add_u32 s{S_MO}, s{S_MO}, s{S_CUR}
    s_add_u32 s{S_MO}, s{S_MO}, {M_OFF}
    s_mov_b32 s{S_UB}, 0
    s_mov_b32 s{S_GD}, {GSLOT}
    v_lshlrev_b32 v{VG}, 3, v0
    s_lshl_b32 s{S_T+1}, s{w}, 11
    v_add_u32 v{VU}, s{S_T+1}, v{VL}
    s_lshl_b32 s{S_T+1}, s{w}, 12
    s_add_u32 s{S_T+1}, s{S_T+1}, {LY}
    v_add_u32 v{VY}, s{S_T+1}, v{VL}""")
    t = 16
    A(f"""v_bfe_u32 v{VM}, v0, 5, 1
    v_bfe_u32 v{t}, v0, 3, 1
    v_lshl_add_u32 v{VM}, v{VM}, 1, v{t}
    v_bfe_u32 v{t}, v0, 4, 1
    v_lshl_add_u32 v{VM}, v{VM}, 1, v{t}
    v_and_b32 v{t}, 1, v0
    v_lshl_add_u32 v{VM}, v{VM}, 1, v{t}
    v_bfe_u32 v{t}, v0, 1, 2
    v_lshl_add_u32 v{VM}, v{VM}, 3, v{t}
    v_lshlrev_b32 v{VM}, 2, v{VM}
    v_cmp_eq_u32 vcc, 0, v{t}
    v_cndmask_b32 v{VTM}, 0, 1, vcc""")
    A(f"""v_bfe_u32 v{t}, v0, 1, 3
    v_mul_u32_u24 v{t}, 1280, v{t}
    v_lshrrev_b32 v{t+1}, 4, v0
    v_lshl_add_u32 v{t}, v{t+1}, 4, v{t}
    v_and_b32 v{t+1}, 1, v0
    v_lshl_add_u32 v{t}, v{t+1}, 3, v{t}
    s_lshl_b32 s{S_T}, s{S_T}, 6
    v_add_u32 v{t}, s{S_T}, v{t}
    s_waitcnt lgkmcnt(0)
    global_load_dwordx2 {vr(t+2,2)}, v{t}, {sr(S_A,2)}
    v_cndmask_b32 v{t+1}, -1, -2, {sr(S_EVEN,2)}
    v_mov_b32 v{t+4}, -1
    v_mov_b32 v{t+5}, -1
    s_waitcnt vmcnt(0)
    v_and_b32 v{t+2}, v{t+1}, v{t+2}""")
    A(bst(2, t+2, VG, S_MO, 0, 'sc1'))
    VGR = 240
    for r in range(GREP): A(f"v_add_u32 v{VGR+r}, {r*GBLK}, v{VG}")
    for sl in range(8):
        A(f"s_add_u32 s{S_T}, s{S_GS}, {(sl >> 1)*GSLOT + (sl & 1)*8192}")
        for r in range(GREP): A(bst(2, t+4, VGR+r, S_T, 0, 'sc1'))
    checkin(A, s_dbg)
    H(hooks, 'r_pre', A)
    waitall(A, s_dbg, exitlab, VL, s_slow=S_SLOW, s_pol=S_POL)
    for k in range(NG): A(f"s_add_u32 s{S_GS+k}, s{S_GS+k}, s{S_POL}")
    H(hooks, 'wait_u', A, 0)
    if slow_too: A(f"s_cmp_lg_u32 s{S_SLOW}, 0\ns_cbranch_scc1 r_loop_slow")
    UR = lambda t_, hh: 32 + 32*t_ + 4*hh
    YR = lambda t_, q: 96 + 8*t_ + 4*q
    PS = lambda st, f: 112 + 20*st + 4*f
    RA = 16
    GO, GF = 24, 26
    GS = lambda st, k: 172 + 8*st + 2*k
    def upark():
        return [f"ds_write_b128 v{VU}, {vr(UR(t_,hh),4)} offset:{hh*4096+t_*1024}" for hh in range(8) for t_ in range(2)] + [f"v_xor_b32 v{VU}, 32768, v{VU}"]
    def ypark():
        for t_ in range(2):
            for q in range(2): A(f"ds_write_b128 v{VY}, {vr(YR(t_,q),4)} offset:{t_*2048+q*1024}")
        A(f"v_xor_b32 v{VY}, 8192, v{VY}")
    for ver in (['', '_slow'] if slow_too else ['']):
        LF = 'sc1' if ver else ''
        A(f"r_loop{ver}:")
        H(hooks, 'stamp', A, 0)
        lg = Lg(A)
        A(f"""s_bfe_u32 s{S_TAGM}, s{S_STEP}, 0x10002
        s_xor_b32 s{S_TAGN}, s{S_TAG}, 1
        s_xor_b32 s{S_T}, s{S_TAGM}, 1
        v_mov_b32 v{GF}, s{S_T}""")
        if XLEAD: A(f"s_sleep {XLEAD}")
        def scrub():
            for r in range(GREP if (SCRUB and not BSCRUB) else 0): A(bst(2, GF, VGR+r, S_GS, 0, 'sc1'))
        H(hooks, 'cached_u', A)
        if SCRPOS == 0: scrub()
        for hh in range(8):
            if SCRPOS == 2 and hh == 4: scrub()
            for t_ in range(2):
                if not NOU: A(bld(4, UR(t_, hh), VL, S_UGc, t_*1024))
            A(f"s_add_u32 s{S_UGc}, s{S_UGc}, {40960 if hh < 7 else SEG_U - 7*40960}")
        A(wrap(S_UGc, WS_UF + RING*SEG_U, RING*SEG_U, S_T+3))
        H(hooks, 'peek_u', A)
        if SCRPOS == 1: scrub()
        A("s_waitcnt vmcnt(0)"); H(hooks, 'stamp', A, 6)
        if UPARK == 0:
            for x in upark(): A(x)
        else:
            l = A.newlabel('r_up')
            A(f"s_cmp_lt_u32 s{S_STEP}, {NSEG-1}\ns_cbranch_scc1 {l}")
            for x in upark(): A(x)
            A(f"{l}:")
        if RSLEEP: A(f"s_sleep {RSLEEP}")
        shadow = None
        yl = lambda b: [bld(4, b+8*t_+4*q, VL, [S_YC, S_YC2][q], t_*1024, 'sc1') for t_ in range(2) for q in range(2)]
        yc = lambda b: [b+2*i for i in range(8)]
        if YQ == 9:
            pass
        elif not YPIPE:
            poll(A, 'ry', yl(YR(0, 0)), yc(YR(0, 0)), S_TAG, exitlab, shadow)
        else:
            Y0, Y1 = 220, YR(0, 0)
            lp, n0, jj = A.newlabel('py'), A.newlabel('py'), A.newlabel('py')
            for x in yl(Y0): A(x)
            A(f"s_sleep {YPIPE}\n{lp}:")
            for x in yl(Y1): A(x)
            tick(A, exitlab)
            A("s_waitcnt vmcnt(4)")
            check(A, yc(Y0), S_TAG, n0)
            A(f"s_branch {jj}\n{n0}:")
            for x in yl(Y0): A(x)
            A("s_waitcnt vmcnt(4)")
            check(A, yc(Y1), S_TAG, lp)
            A(f"{jj}:")
        H(hooks, 'stamp', A, 1)
        def pl(st):
            for f in range(4): A(bld(4, PS(st, f), VL, S_PC, f*1024, 'sc1'))
            A(bld(4, PS(st, 4), VL, S_O2, 0, 'sc1'))
        A(f"s_cmp_ge_u32 s{S_STEP}, {NSEG-1}\ns_cbranch_scc1 r_last")
        for st in range(PPIPE-1): pl(st)
        lg.all()
        lp, lok = A.newlabel('rp'), A.newlabel('rok')
        nx = [A.newlabel('rn') for _ in range(PPIPE)]
        for i in range(8): A(f"v_mov_b32 v{RA+i}, 0")
        A(f"{lp}:")
        for st in range(PPIPE):
            pl((st+PPIPE-1) % PPIPE)
            if st == 0: tick(A, exitlab)
            A(f"s_waitcnt vmcnt({5*(PPIPE-1)})")
            ck = [PS(st, f)+j for f in range(4) for j in (0, 2)] + [PS(st, 4)+j for j in ((1, 3) if QREJ else range(4))]
            if QREJ: check(A, [PS(st, 4), PS(st, 4)+2], S_TAG, nx[st] if st < PPIPE-1 else lp)
            ops = [f"v_bitop3_b32 v{V_X3}, v{ck[0]}, v{ck[1]}, s{S_TAG} bitop3:0x7e"]
            ops += [f"v_bitop3_b32 v{V_X3}, v{x}, v{V_X3}, s{S_TAG} bitop3:0xde" for x in ck[2:]]
            ops += [f"v_and_b32 v{V_X3}, 1, v{V_X3}", f"v_cmp_ne_u32 vcc, 0, v{V_X3}"]
            for f in range(5):
                for t_ in range(2):
                    smf(A, RA+4*t_, PS(st, f), UR(t_, 2*f) if f < 4 else YR(t_, 0))
                    A(ops.pop(0))
            for o in ops: A(o)
            A(f"s_nop {4 if QREJ else 2}\ns_cbranch_vccz {lok}")
            for i in range(8): A(f"v_mov_b32 v{RA+i}, 0")
            if st < PPIPE-1: A(f"{nx[st]}:")
            else: A(f"s_branch {lp}")
        A(f"{lok}:")
        H(hooks, 'stamp', A, 2)
        a, b = RA, RA+4
        A(f"s_mov_b64 vcc, {sr(S_EVEN,2)}")
        for r in range(4): A(f"v_permlane32_swap_b32 v{a+r}, v{b+r}")
        A(f"""v_pk_add_f32 {vr(a,2)}, {vr(a,2)}, {vr(b,2)}
        v_pk_add_f32 {vr(a+2,2)}, {vr(a+2,2)}, {vr(b+2,2)}
        v_cvt_pk_bf16_f32 v{b}, v{a}, v{a+1}
        v_cvt_pk_bf16_f32 v{b+1}, v{a+2}, v{a+3}
        v_cndmask_b32_dpp v{GO}, v{b+1}, v{b}, vcc quad_perm:[0,0,2,2] row_mask:0xf bank_mask:0xf
        s_not_b64 vcc, vcc
        v_and_or_b32 v{GO}, v{GO}, -2, s{S_TAGM}
        v_cndmask_b32_dpp v{GO+1}, v{b}, v{b+1}, vcc quad_perm:[1,1,3,3] row_mask:0xf bank_mask:0xf""")
        for r in range(GREP): A(bst(2, GO, VGR+r, S_GS, 0, 'sc1'))
        H(hooks, 'stamp', A, 3)
        ypark()
        A(f"""v_lshlrev_b32 v{GF}, 16, v{GO}
        v_and_b32 v{GF+1}, 0xffff0000, v{GO}
        v_lshlrev_b32 v{GF+2}, 16, v{GO+1}
        v_and_b32 v{GF+3}, 0xffff0000, v{GO+1}""")
        fill = upark() if UPARK else []
        def gap(n):
            k = min(len(fill), n*UPARK)
            for _ in range(k): A(fill.pop(0))
            if n and k < n*max(UPARK, 1): A(f"s_sleep {n - k//max(UPARK, 1)}")
        gap(GDELAY)
        def gl(r):
            for k in range(1, NG): A(bld(2, GS(r, k), VGR+r, S_GS+k, 0, 'sc1'))
        def gc(r, lab):
            A(f"""v_bitop3_b32 v{V_X3}, v{GS(r,1)}, v{GS(r,2)}, s{S_TAGM} bitop3:0x7e
            v_bitop3_b32 v{V_X3}, v{GS(r,3)}, v{V_X3}, s{S_TAGM} bitop3:0xde
            v_and_b32 v{V_X3}, 1, v{V_X3}
            v_cmp_ne_u32 vcc, 0, v{V_X3}
            s_cbranch_vccz {lab}""")
        lp, lj = A.newlabel('rg'), A.newlabel('rj')
        oks = [A.newlabel('rgo') for _ in range(GREP)]
        pre = min(GPRE, GREP)
        for r in range(pre):
            gl(r)
            if r < pre-1: gap(GGAP)
        for x in fill: A(x)
        for r in range(GREP):
            A(f"s_waitcnt vmcnt({(NG-1)*(min(r+pre, GREP)-1-r)})")
            gc(r, oks[r])
            if r + pre < GREP: gl(r+pre)
        A(f"{lp}:")
        gl(0); tick(A, exitlab)
        A("s_waitcnt vmcnt(0)")
        gc(0, oks[0])
        A(f"s_branch {lp}")
        for st in range(GREP):
            A(f"{oks[st]}:")
            for k in range(1, NG):
                for j in range(4):
                    A(f"v_dot2_f32_bf16 v{GF+j}, v{GS(st,k)+j//2}, s{[S_SEL0, S_SEL1][j % 2]}, v{GF+j}")
            A(f"""v_cvt_pk_bf16_f32 v{GO}, v{GF}, v{GF+2}
            v_cvt_pk_bf16_f32 v{GO+1}, v{GF+1}, v{GF+3}
            v_bfi_b32 v{GO}, v{VTM}, s{S_TAGN}, v{GO}
            v_bfi_b32 v{GO+1}, v{VTM}, s{S_TAGN}, v{GO+1}""")
            A(bst(1, GO, VM, S_MO, 0, LF)); A(bst(1, GO+1, VM, S_MO, 16, LF))
            if st < GREP-1: A(f"s_branch {lj}")
        A(f"{lj}:")
        H(hooks, 'stamp', A, 4)
        for k in range(NG): A(f"s_add_u32 s{S_GS+k}, s{S_GS+k}, {GSLOT}\ns_and_b32 s{S_GS+k}, s{S_GS+k}, {4*GSLOT-1}")
        next_step(A)
        A(f"s_waitcnt lgkmcnt(0)\ns_barrier")
        H(hooks, 'stamp', A, 5)
        A(f"s_branch r_loop{ver}")
    A("r_last:\ns_waitcnt vmcnt(0)")
    ypark()
    A("s_waitcnt lgkmcnt(0)\ns_barrier")
    H(hooks, 'final', A)
    A(f"s_branch {hooks['next_r']}")
    A("r_x:")
    S_UG, S_UD, S_PX, S_OP, S_UR = S_C1, S_C2, S_C3, S_C4, S_C5
    A(f"""s_sub_u32 s{S_T}, s{w}, 2
    s_lshl_b32 s{S_T+1}, s{S_GRP}, 1
    s_add_u32 s{S_T+1}, s{S_T+1}, s{S_T}
    s_mul_i32 s{S_UG}, s{S_T+1}, {4*40960}
    s_lshl_b32 s{S_T+1}, s{S_HL}, 12
    s_add_u32 s{S_UG}, s{S_UG}, s{S_T+1}
    s_add_u32 s{S_UG}, s{S_UG}, {WS_UF}
    s_lshl_b32 s{S_O1}, s{S_T}, 14
    s_mov_b32 s{S_UD}, 0
    s_mov_b32 s{S_UR}, 0
    s_mul_i32 s{S_PX}, s{S_T}, 10240
    s_add_u32 s{S_PX}, s{S_PX}, s{S_CUR}
    s_add_u32 s{S_PX}, s{S_PX}, {PX_OFF}
    s_mul_i32 s{S_OP}, s{S_T}, {20*4096}
    s_lshl_b32 s{S_T+1}, s{S_HL}, 13
    s_add_u32 s{S_OP}, s{S_OP}, s{S_T+1}
    s_lshl_b32 s{S_T+1}, s{S_GRP}, 10
    s_add_u32 s{S_OP}, s{S_OP}, s{S_T+1}
    s_add_u32 s{S_OP}, s{S_OP}, {WS_OP}
    v_add_u32 v{VY}, {LY}, v{VL}""")
    checkin(A, s_dbg)
    H(hooks, 'r_pre', A)
    waitall(A, s_dbg, exitlab, VL, s_pol=S_POL)
    H(hooks, 'x_init', A)
    A("s_barrier")
    PXR, ZR, XA = 16, 64, 96
    A("rx_loop:")
    H(hooks, 'stamp', A, 0)
    A(f"""s_bfe_u32 s{S_TAG}, s{S_STEP}, 0x10002
    s_and_b32 s{S_T+2}, s{S_STEP}, 3
    s_lshl_b32 s{S_T+2}, s{S_T+2}, 15
    s_add_u32 s{S_T+2}, s{S_T+2}, s{S_PX}
    s_add_u32 s{S_T+3}, s{S_T+2}, 4096
    s_add_u32 s{S_T+4}, s{S_T+2}, 8192
    v_add_u32 v{VT}, s{S_UR}, v{VL}""")
    pxl = [bld(4, PXR+4*f, VL, S_T+2+f//4, (f % 4)*1024, 'sc1') for f in range(10)]
    pxc = [PXR+4*f for f in range(10)] + [PXR+34, PXR+38]
    def op_store():
        for t_ in range(2):
            A(bst(4, XA+16+4*t_, VL, S_OP, 0, 'sc1'))
            A(f"s_add_u32 s{S_OP}, s{S_OP}, {4096 if t_ < 1 else SEG_OP - 4096}")
    S_DONE = S_C2
    if XDEFER:
        poll(A, 'px', pxl, pxc, S_TAG, exitlab)
        l = A.newlabel('xd')
        if BFLAG: A(f"s_cmp_lt_u32 s{S_STEP}, {BFLAG}\ns_cbranch_scc1 {l}f")
        H(hooks, 'x_flag2', A, S_DONE)
        A(f"{l}f:\ns_sub_u32 s{S_T}, s{S_STEP}, 1\ns_cmp_ge_u32 s{S_T}, {XDEFER}\ns_cbranch_scc1 {l}")
        op_store()
        A(f"{l}:")
    else:
        if XFPOS == 0:
            def shadow():
                l = A.newlabel('xd')
                H(hooks, 'x_flag', A)
                A(f"s_waitcnt vmcnt(1)")
                check(A, pxc, S_TAG, l)
                A(f"s_branch rx_pok\n{l}:")
            poll(A, 'px', pxl, pxc, S_TAG, exitlab, shadow)
            A("rx_pok:")
        else:
            poll(A, 'px', pxl, pxc, S_TAG, exitlab)
            if not XFLAGNOW and XFPOS == 1:
                l = A.newlabel('xf')
                if BFLAG: A(f"s_cmp_lt_u32 s{S_STEP}, {BFLAG}\ns_cbranch_scc1 {l}")
                H(hooks, 'x_flag', A)
                A(f"{l}:")
    H(hooks, 'stamp', A, 1)
    seq = [(f, t_) for f in range(10) for t_ in range(4)]
    lg = Lg(A)
    def zrd(n):
        f, t_ = seq[n]
        if f < 8: lg.ds(f"ds_read_b128 {vr(ZR+4*(n%8),4)}, v{VT} offset:{f*4096+t_*1024}", n)
        else: lg.ds(f"ds_read_b128 {vr(ZR+4*(n%8),4)}, v{VY} offset:{t_*2048+(f-8)*1024}", n)
    for n in range(7): zrd(n)
    for n, (f, t_) in enumerate(seq):
        if n + 7 < 40: zrd(n+7)
        if XFPOS > 1 and n == XFPOS: H(hooks, 'x_flag', A)
        lg.need(n)
        A(f"v_mfma_f32_16x16x32_bf16 {vr(XA+4*t_,4)}, {vr(ZR+4*(n%8),4)}, {vr(PXR+4*f,4)}, {'0' if f == 0 else vr(XA+4*t_,4)}")
    A(f"""v_xor_b32 v{VY}, 8192, v{VY}
    s_xor_b32 s{S_UR}, s{S_UR}, 32768""")
    for i in range(8): A(f"v_cvt_pk_bf16_f32 v{XA+16+i}, v{XA+2*i}, v{XA+2*i+1}")
    if XDEFER:
        l = A.newlabel('xd')
        A(f"s_mov_b32 s{S_DONE}, s{S_STEP}\ns_cmp_lt_u32 s{S_STEP}, {XDEFER}\ns_cbranch_scc1 {l}")
        op_store()
        A(f"s_add_u32 s{S_DONE}, s{S_DONE}, 1\n{l}:")
    else: op_store()
    H(hooks, 'stamp', A, 2)
    A(f"""s_add_u32 s{S_STEP}, s{S_STEP}, 1
    s_waitcnt vmcnt(0)""")
    H(hooks, 'stamp', A, 4)
    l = A.newlabel('rx_nf')
    if not XFLAGNOW: A(f"s_cmp_lt_u32 s{S_STEP}, {NSEG-2}\ns_cbranch_scc1 {l}")
    H(hooks, 'x_flag', A)
    A(f"s_cmp_ge_u32 s{S_STEP}, {NSEG}\ns_cbranch_scc1 rx_fin\n{l}:")
    H(hooks, 'stamp', A, 3)
    A("s_barrier\ns_branch rx_loop\nrx_fin:")
    H(hooks, 'final', A)
    A(f"s_branch {hooks['next_r']}")
```

```python
from common import *
from r_ln import hexf
import os
SPS = int(os.environ.get('SPS', '2'))
OUTS = int(os.environ.get('OUTS', '1'))
WSPW = int(os.environ.get('WSPW', '1'))
LNS = int(os.environ.get('LNS', '16'))
SXL = int(os.environ.get('SXL', '1'))
WINS = int(os.environ.get('WINS', '1'))
SPW0 = int(os.environ.get('SPW0', '0'))
OK1 = int(os.environ.get('OK1', '3'))
ND = int(os.environ.get('ND', '2'))
OWG = int(os.environ.get('OWG', '0'))
WSPE = int(os.environ.get('WSPE', '0'))
GLW = int(os.environ.get('GLW', '1'))
GSH = int(os.environ.get('GSH', '20'))
GSH2 = int(os.environ.get('GSH2', '3'))
LNS2 = int(os.environ.get('LNS2', '2'))
from r_rec import Lg, WS_OP, SEG_OP, srd, tick, wait_flags, wait_flags_wg, put_flag, S_WAVE
from r_proj import gelu_ops, GC0, GC1, SEG_Z
from r_u import load_w_rows
WS_SX = WS_STAT + MB
SEG_SX = 6*256
W = S_WAVE
TSH = [None]
def TS(A, i, vt):
    if TSH[0]: TSH[0](A, i, vt)

def bl(n, dst, va, so, off=0, fl=''):
    nm = {1: 'dword', 2: 'dwordx2', 4: 'dwordx4'}[n]
    return f"buffer_load_{nm} {vr(dst,n)}, v{va}, {srd}, {so} offen offset:{off} {fl}"
def bs(n, src, va, so, off=0, fl=''):
    nm = {1: 'dword', 2: 'dwordx2', 4: 'dwordx4'}[n]
    return f"buffer_store_{nm} {vr(src,n)}, v{va}, {srd}, {so} offen offset:{off} {fl}"

def load_wout(A, s_dq, s_t, vt):
    sw, sb = s_t, s_t+2
    tr, t = vt+2, vt+3
    A(f"""s_load_dwordx2 {sr(sw,2)}, s[0:1], {KA_WOUT}
    s_mul_i32 s{sb}, s{W}, {192*1280}
    s_mul_i32 s{sb+1}, s{s_dq}, 320
    s_add_u32 s{sb}, s{sb}, s{sb+1}
    v_lshrrev_b32 v{t}, 4, v0
    v_lshlrev_b32 v{tr}, 3, v{t}
    v_bfe_u32 v{t}, v0, 2, 2
    v_add_u32 v{tr}, v{tr}, v{t}
    v_mul_u32_u24 v{tr}, 320, v{tr}
    v_and_b32 v{t}, 3, v0
    v_lshl_add_u32 v{tr}, v{t}, 4, v{tr}
    s_waitcnt lgkmcnt(0)""")
    add64(A, sw, sw, f"s{sb}")
    A(f"s_mul_i32 s{sb}, s{W}, 40960\nv_add_u32 v{tr}, s{sb}, v{tr}")
    def reads(A, kk, off):
        for dt in range(10):
            for q in range(2):
                A(f"ds_read_b64_tr_b16 {ar(24*dt+4*kk+2*q,2)}, v{tr} offset:{off + q*4*320 + (dt>>1)*64 + (dt&1)*8}")
    load_w_rows(A, sw, 1280, 20, 192, 32, 4, sb, 0, sb+1, vt, reads)

def owait(A, va, vt, sn, exitlab, sleep):
    if OWG:
        A("s_waitcnt vmcnt(0)")
        wait_flags_wg(A, va, vt, sn, exitlab, sleep)
    else: wait_flags(A, va, vt, sn, exitlab, sleep)

def out_task(A, s_task, f_gy, exitlab, done, outf='', s_dry=None, f_win=None, s_pre=None):
    A(f"""s_load_dwordx2 s[20:21], s[0:1], {KA_OUT}
    s_lshr_b32 s12, s{s_task}, 2
    s_and_b32 s13, s{s_task}, 3
    s_mul_i32 s14, s12, {SEG_Z}
    s_mul_i32 s15, s{W}, 6144
    s_add_u32 s14, s14, s15
    s_add_u32 s14, s14, {WS_GY}
    s_add_u32 s15, s14, 4096
    s_add_u32 s16, s14, 24576
    s_add_u32 s17, s16, 4096
    v_lshlrev_b32 v2, 4, v0
    v_bfe_u32 v3, v0, 2, 2
    v_lshlrev_b32 v3, 3, v3
    v_and_b32 v4, 3, v0
    v_add_u32 v3, v3, v4
    v_mul_u32_u24 v3, 1280, v3
    v_lshrrev_b32 v4, 4, v0
    v_lshl_add_u32 v3, v4, 4, v3
    s_mul_i32 s18, s12, 40960
    s_mul_i32 s19, s13, 320
    s_add_u32 s18, s18, s19
    s_and_b32 s22, s{W}, 1
    s_lshr_b32 s23, s{W}, 1
    s_mul_i32 s19, s22, 5120
    s_add_u32 s18, s18, s19
    s_lshl_b32 s19, s23, 6
    s_add_u32 s18, s18, s19
    s_mul_i32 s19, s{W}, 20480
    v_add_u32 v5, s19, v2
    s_lshl_b32 s19, s22, 10
    s_lshl_b32 s24, s23, 12
    s_add_u32 s19, s19, s24
    v_add_u32 v6, s19, v2
    v_add_u32 v7, 40960, v6
    s_lshr_b32 s19, s12, 2
    s_mul_i32 s19, s19, {6*128}
    s_add_u32 s19, s19, {f_gy}
    v_min_u32 v8, 5, v0
    v_lshlrev_b32 v8, 7, v8
    v_add_u32 v8, s19, v8
    s_mov_b32 s19, 1
    s_waitcnt lgkmcnt(0)""")
    add64(A, 20, 20, 's18')
    A(f"""s_mul_i32 s18, s12, 40960
    s_mul_i32 s25, s13, 5120
    s_add_u32 s18, s18, s25
    s_lshl_b32 s25, s23, 10
    s_add_u32 s18, s18, s25
    s_lshl_b32 s25, s22, 6
    s_add_u32 s18, s18, s25
    s_add_u32 s18, s18, {WS_H}
    s_add_u32 s26, s18, 4096
    v_bfe_u32 v11, v0, 3, 1
    v_mul_u32_u24 v11, 20480, v11
    v_bfe_u32 v12, v0, 2, 1
    v_lshl_add_u32 v11, v12, 7, v11
    v_and_b32 v12, 3, v0
    v_lshl_add_u32 v11, v12, 4, v11
    v_bfe_u32 v12, v0, 4, 1
    v_lshl_add_u32 v11, v12, 9, v11
    v_bfe_u32 v12, v0, 5, 1
    v_lshl_add_u32 v11, v12, 3, v11""")
    GA, Z1, ZB, OA, TM = 16, 112, 160, 160, 240
    HR, F = 16, 32
    ga = lambda k, rt: GA + 16*k + 8*rt
    z1 = lambda k, rt: Z1 + 8*k + 4*rt
    for r in range(4): A(f"s_add_u32 s{46+r}, s{14+r}, {WS_GY2 - WS_GY}")
    A(f"""s_cmp_eq_u32 s{s_dry}, 3
    s_cbranch_scc1 out_light
    v_min_u32 v10, 5, v0
    v_lshlrev_b32 v10, 7, v10
    v_add_u32 v10, {f_win}, v10
    s_barrier
    s_cmp_eq_u32 s{s_pre}, 2
    s_cbranch_scc1 out_z1a""")
    A(f"""s_load_dwordx2 s[28:29], s[0:1], {KA_WSP}
    v_bfe_u32 v12, v0, 2, 2
    v_lshlrev_b32 v12, 3, v12
    v_and_b32 v13, 3, v0
    v_add_u32 v12, v12, v13
    v_lshlrev_b32 v12, 12, v12
    v_lshl_add_u32 v12, v4, 4, v12
    v_add_u32 v13, {4*4096}, v12
    s_lshl_b32 s25, s12, 17
    s_add_u32 s25, s25, {(NSEG-ND)*64}
    s_waitcnt lgkmcnt(0)""")
    add64(A, 28, 28, 's25')
    wsr = lambda sg, rt: ar(240+8*(sg-ND+2)+4*rt, 4) if sg >= ND-2 else vr(TM+8*sg+4*rt, 4)
    for sg in range(ND):
        for rt in range(2): A(f"global_load_dwordx4 {wsr(sg, rt)}, v{12+rt}, s[28:29] offset:{64*sg}")
    def z1_get():
        A(f"""s_and_b32 s25, s12, 1
        s_mul_i32 s25, s25, {12*128}
        v_add_u32 v14, s25, v10
        s_add_u32 s25, s12, 1""")
        owait(A, 14, 9, 25, exitlab, sleep=OUTS)
        for r in range(4): A(f"s_add_u32 s{42+r}, s{14+r}, {(WS_Z1 - WS_GY) & 0xffffffff}")
        for k in range(6):
            for rt in range(2): A(bl(4, z1(k, rt), 2, f"s{42+2*rt+k//4}", 1024*(k % 4)))
    A(f"s_cmp_ge_u32 s12, {NSEG-ND}\ns_cbranch_scc1 out_z1a")
    z1_get()
    A(f"s_cmp_eq_u32 s{s_pre}, 1\ns_cbranch_scc1 {done}\nout_z1a:")
    owait(A, 8, 9, 19, exitlab, sleep=OUTS)
    for k in range(6):
        for rt in range(2): A(bl(4, ZB+8*k+4*rt, 2, f"s{14+2*rt+k//4}", 1024*(k % 4)))
    for k in range(6):
        A(f"s_waitcnt vmcnt({2*(5-k)})")
        for rt in range(2):
            for j in range(4): A(f"v_lshlrev_b32 v{ga(k,rt)+2*j}, 16, v{ZB+8*k+4*rt+j}\nv_and_b32 v{ga(k,rt)+2*j+1}, 0xffff0000, v{ZB+8*k+4*rt+j}")
    def delta(sg):
        seg = NSEG - ND + sg; last = sg == ND-1
        A(f"""v_add_u32 v14, {(seg & 1)*12*128 + 6*128}, v10
        s_mov_b32 s25, {seg+1}
        s_mul_i32 s27, s{W}, 12288
        s_add_u32 s27, s27, {WS_Z2 + seg*SEG_Z}
        s_add_u32 s28, s27, 4096
        s_add_u32 s29, s27, 8192""")
        owait(A, 14, 9, 25, exitlab, sleep=OUTS)
        if last: TS(A, 13, 10); A(f"s_mov_b32 vcc_lo, s{s_dry}\ns_mov_b32 vcc_hi, 0")
        for f in range(12): A(bl(4, ZB+4*f, 2, f"s{27+f//4}", 1024*(f % 4)))
        for f in range(12):
            A(f"s_waitcnt vmcnt({11-f})")
            for rt in range(2):
                a = vr(ga(f//2, rt) + 4*(f % 2), 4)
                A(f"v_mfma_f32_16x16x32_bf16 {a}, {vr(ZB+4*f,4)}, {wsr(sg, rt)}, {a}")
            if last and f >= 3:
                for _ in range(GSH):
                    if gq and gq[0][0] <= (f-3)//2: A(gq.pop(0)[1])
    gq = []
    for sg in range(ND-1): delta(sg)
    A(f"s_cmp_lt_u32 s12, {NSEG-ND}\ns_cbranch_scc1 out_z1b")
    z1_get()
    A("out_z1b:")
    for k in range(6):
        for rt in range(2):
            t = TM + 8*rt; g = ga(k, rt); z = z1(k, rt)
            for j in range(4): gq += [(k, f"v_lshlrev_b32 v{t+2*j}, 16, v{z+j}"), (k, f"v_and_b32 v{t+2*j+1}, 0xffff0000, v{z+j}")]
            for j in range(8): gq += [(k, f"v_mul_f32 v{t+j}, v{t+j}, v{g+j}")]
            for j in range(4): gq += [(k, f"v_cvt_pk_bf16_f32 v{z+j}, v{t+2*j}, v{t+2*j+1}")]
            l1, l2 = A.newlabel('gs'), A.newlabel('gs')
            st = bs(4, z, 2, f"s{46+2*rt+k//4}", 1024*(k % 4))
            gq += [(k, f"s_cbranch_vccnz {l1}\n{l2}:")]
            A.deferred.append(f"{l1}:\nv_min_u32 v{z}, -2, v{z}\ns_cmp_eq_u32 s{s_dry}, 2\ns_cbranch_scc1 {l1}s\n{st}\ns_branch {l2}\n{l1}s:\n{st} sc1\ns_branch {l2}")
    delta(ND-1)
    def om(dt, k, rt):
        a = vr(OA+8*dt+4*rt, 4)
        A(f"v_mfma_f32_16x16x32_bf16 {a}, {ar(24*dt+4*k,4)}, {vr(z1(k,rt),4)}, {'0' if k == 0 else a}")
    for k in range(OK1):
        while gq and gq[0][0] <= k: A(gq.pop(0)[1])
        for dt in range(10):
            for rt in range(2):
                om(dt, k, rt)
                for _ in range(GSH2):
                    if gq: A(gq.pop(0)[1])
    while gq: A(gq.pop(0)[1])
    A("out_join:")
    for i in range(3):
        for hb in range(2): A(bl(2, HR+4*i+2*hb, 11, ['s18', 's18', 's26'][i], (2048*i) % 4096 + 256*hb))
    for dt in range(10):
        for k in range(OK1, 6):
            for rt in range(2): om(dt, k, rt)
            wr = {OK1+1: 0, 5: 1} if OK1 < 4 else {4: None, 5: 2}
            if dt >= 1 and wr.get(k) is not None:
                for rt in ((wr[k],) if wr[k] < 2 else (0, 1)): A(f"ds_write_b128 v5, {vr(OA+8*(dt-1)+4*rt,4)} offset:{2048*(dt-1)+1024*rt}")
    for rt in range(2): A(f"ds_write_b128 v5, {vr(OA+72+4*rt,4)} offset:{2048*9+1024*rt}")
    A("s_waitcnt vmcnt(0)")
    for i in range(3):
        for j in range(4): A(f"v_lshlrev_b32 v{F+8*i+2*j}, 16, v{HR+4*i+j}\nv_and_b32 v{F+8*i+2*j+1}, 0xffff0000, v{HR+4*i+j}")
    TS(A, 14, 10)
    A("s_waitcnt lgkmcnt(0)\ns_barrier")
    R = 64
    def rd(i):
        for ww in range(4):
            for ab in range(2):
                A(f"ds_read_b128 {vr(R+32*i+8*ww+4*ab,4)}, v{6+ww//2} offset:{(ww%2)*20480 + 8192*i + 2048*ab}")
    def fin(i):
        for ww in range(4):
            for j in range(4): A(f"v_pk_add_f32 {vr(F+8*i+2*j,2)}, {vr(F+8*i+2*j,2)}, {vr(R+32*i+8*ww+2*j,2)}")
        for j in range(4): A(f"v_cvt_pk_bf16_f32 v{16+4*i+j}, v{F+8*i+2*j}, v{F+8*i+2*j+1}")
        A(f"global_store_dwordx4 v3, {vr(16+4*i,4)}, s[20:21] offset:{128*i} {outf}")
    rd(0); rd(1)
    A("s_waitcnt lgkmcnt(8)"); fin(0)
    A("s_waitcnt lgkmcnt(0)")
    l = A.newlabel('o2')
    A(f"s_cmp_ge_u32 s{W}, 2\ns_cbranch_scc1 {l}")
    rd(2); fin(1)
    A("s_waitcnt lgkmcnt(0)"); fin(2)
    A(f"s_branch {done}\n{l}:")
    fin(1)
    A(f"s_branch {done}")
    A("out_light:")
    for k in range(6):
        for rt in range(2): A(bl(4, z1(k, rt), 2, f"s{46+2*rt+k//4}", 1024*(k % 4), 'sc1'))
    A("s_barrier\nout_lp:\ns_sleep 1")
    A(bl(4, z1(GLW, 1), 2, f"s{48+GLW//4}", 1024*(GLW % 4), 'sc1'))
    tick(A, exitlab)
    A(f"s_waitcnt vmcnt(0)\nv_cmp_eq_u32 vcc, -1, v{z1(GLW,1)}\ns_cbranch_vccnz out_lp")
    TS(A, 13, 10)
    for ks, lab in ((range(OK1), 'out_l2'), (range(OK1, 6), 'out_l3')):
        A(f"{lab}:")
        for k in ks:
            for rt in range(2): A(bl(4, z1(k, rt), 2, f"s{46+2*rt+k//4}", 1024*(k % 4), 'sc1'))
        tick(A, exitlab)
        if lab == 'out_l3':
            l = A.newlabel('ol')
            A(f"s_cmp_lg_u32 s{s_dry}, 3\ns_cbranch_scc1 {l}\ns_mov_b32 s{s_dry}, 4")
            for k in range(OK1):
                for dt in range(10):
                    for rt in range(2): om(dt, k, rt)
            A(f"{l}:")
        A("s_waitcnt vmcnt(0)\nv_mov_b32 v9, 0")
        for k in ks: A(f"v_max3_u32 v9, v9, v{z1(k,0)}, v{z1(k,1)}")
        A(f"v_cmp_eq_u32 vcc, -1, v9\ns_cbranch_vccnz {lab}")
    A("s_branch out_join")
    A.flush_deferred()

def gy2_init(A, s_seg):
    A(f"""s_mul_i32 s12, s{s_seg}, {SEG_Z}
    s_mul_i32 s13, s{W}, 12288
    s_add_u32 s12, s12, s13
    s_add_u32 s12, s12, {WS_GY2}
    v_lshlrev_b32 v2, 4, v0""")
    for i in range(4): A(f"v_mov_b32 v{16+i}, -1")
    for i in range(12):
        A(bs(4, 16, 2, 's12', 1024*(i % 4), 'sc1'))
        if i % 4 == 3: A("s_add_u32 s12, s12, 4096")

def ln2_loop(A, s_j, ncu, f_x, s_flag, s_pol, exitlab):
    VO, VX, VS, VF, VLW, VLR, T0, T1, T2, T3 = 2, 3, 4, 5, 6, 7, 8, 9, 10, 11
    OPR, XR, F, PK = 16, 64, 80, 104
    sx, so, sh, sn, ne, s0, s1 = 12, 14, 15, 16, 17, 18, 19
    A(f"""s_load_dwordx2 s[26:27], s[0:1], {KA_X}
    v_and_b32 v{T0}, 7, v0
    v_bfe_u32 v{T1}, v0, 3, 1
    v_lshrrev_b32 v{T2}, 4, v0
    s_and_b32 s{sn}, s{s_j}, 1
    s_lshl_b32 s{sn}, s{sn}, 7
    s_lshl_b32 s{ne}, s{W}, 13
    s_add_u32 s{sn}, s{sn}, s{ne}
    v_lshlrev_b32 v{VO}, 4, v{T0}
    v_lshl_add_u32 v{VO}, v{T2}, 8, v{VO}
    v_lshl_add_u32 v{VO}, v{T1}, 12, v{VO}
    v_add_u32 v{VO}, s{sn}, v{VO}
    v_and_b32 v13, 1023, v{VO}
    v_lshrrev_b32 v14, 12, v{VO}
    v_lshl_add_u32 v13, v14, 10, v13
    v_mul_u32_u24 v{VX}, 1280, v{T0}
    v_lshl_add_u32 v{VX}, v{T2}, 3, v{VX}
    v_lshl_add_u32 v{VX}, v{T1}, 6, v{VX}
    s_lshl_b32 s{sn}, s{W}, 7
    v_add_u32 v{VX}, s{sn}, v{VX}
    v_bfe_u32 v{T3}, v0, 2, 1
    v_mul_u32_u24 v{VS}, 20480, v{T3}
    v_lshl_add_u32 v{VS}, v{T2}, 8, v{VS}
    v_and_b32 v{T3}, 3, v0
    v_lshl_add_u32 v{VS}, v{T3}, 4, v{VS}
    v_lshl_add_u32 v{VS}, v{T1}, 10, v{VS}
    s_and_b32 s{sn}, s{s_j}, 3
    s_lshl_b32 s{sn}, s{sn}, 6
    s_lshl_b32 s{ne}, s{W}, 11
    s_add_u32 s{sn}, s{sn}, s{ne}
    v_add_u32 v{VS}, s{sn}, v{VS}
    v_lshlrev_b32 v{VLR}, 5, v{T0}
    s_lshl_b32 s{sn}, s{W}, 3
    v_add_u32 v{VLW}, s{sn}, v{VLR}
    s_bfe_u32 s{sn}, s{s_j}, 0x10001
    s_lshl_b32 s{sn}, s{sn}, 6
    s_add_u32 s{sn}, s{sn}, {f_x}
    s_add_u32 s{sn}, s{sn}, s{s_pol}
    v_min_u32 v{VF}, 39, v0
    v_lshlrev_b32 v{VF}, 7, v{VF}
    v_add_u32 v{VF}, s{sn}, v{VF}
    s_mov_b32 s{s0}, 0x00003f80
    s_mov_b32 s{s1}, 0x3f800000
    s_cmp_lt_u32 s{W}, 2
    s_cselect_b64 s[28:29], -1, 0
    s_waitcnt lgkmcnt(0)
    ln2_loop:
    s_mul_i32 s{sh}, s{s_j}, 10240""")
    add64(A, sx, 26, f"s{sh}")
    A(f"""s_lshr_b32 s{so}, s{s_j}, 1
    s_mul_i32 s{sh}, s{so}, 20480
    s_add_u32 s{sh}, s{sh}, {WS_H}
    s_mul_i32 s{so}, s{so}, {SEG_OP//2}
    s_add_u32 s{so}, s{so}, {WS_OP}
    s_lshr_b32 s{ne}, s{s_j}, 2
    s_mul_i32 s{sn}, s{ne}, {SEG_XN}
    s_add_u32 s{sn}, s{sn}, {WS_HNF}
    s_add_u32 s{ne}, s{ne}, 1""")
    for j in range(4): A(f"v_mov_b32 v{XR+8+j}, 0")
    for j in range(16): A(f"v_mov_b32 v{OPR+32+j}, 0")
    l1, l2, l3, l4 = [A.newlabel('l2') for _ in range(4)]
    def xl(i):
        for hb in range(2): A(f"global_load_dwordx2 {vr(XR+4*i+2*hb,2)}, v{VX}, {sr(sx,2)} offset:{512*i+32*hb}")
    xl(0); xl(1)
    A(f"s_cmp_ge_u32 s{W}, 2\ns_cbranch_scc1 {l1}"); xl(2); A(f"{l1}:")
    A(f"s_cmp_lg_u32 s{W}, 0\ns_cbranch_scc1 {l2}")
    A(f"s_sub_u32 s20, s{ne}, 1")
    wait_flags(A, VF, T0, 20, exitlab, sleep=LNS)
    wait_flags(A, VF, T0, ne, exitlab, sleep=LNS2)
    TS(A, 8, 12)
    A(f"{l2}:\ns_waitcnt vmcnt(0)")
    for i in range(12): A(f"v_lshlrev_b32 v{F+2*i}, 16, v{XR+i}\nv_and_b32 v{F+2*i+1}, 0xffff0000, v{XR+i}")
    A(f"s_add_u32 s20, s{so}, 32768\ns_add_u32 s21, s{so}, 65536\ns_barrier")
    A(f"s_cmp_ge_u32 s{W}, 2\ns_cbranch_scc1 {l3}")
    for g in range(4): A(bl(4, OPR+32+4*g, VO, 's21', 1024*g))
    A(f"{l3}:")
    for i in range(2):
        for g in range(4): A(bl(4, OPR+16*i+4*g, VO, [f"s{so}", 's20'][i], 1024*g))
    A(f"v_mov_b32 v{T0}, 0\nv_mov_b32 v{T1}, 0")
    for n, i in enumerate((2, 0, 1)):
        A(f"s_waitcnt vmcnt({(8, 4, 0)[n]})")
        for g in range(4):
            for j in range(8):
                A(f"v_dot2_f32_bf16 v{F+8*i+j}, v{OPR+16*i+4*g+j//2}, s{s0+j%2}, v{F+8*i+j}")
        for j in range(4): A(f"v_cvt_pk_bf16_f32 v{PK+4*i+j}, v{F+8*i+2*j}, v{F+8*i+2*j+1}")
        for j in range(4): A(f"v_lshlrev_b32 v{F+8*i+2*j}, 16, v{PK+4*i+j}\nv_and_b32 v{F+8*i+2*j+1}, 0xffff0000, v{PK+4*i+j}")
        for j in range(8): A(f"v_add_f32 v{T0}, v{T0}, v{F+8*i+j}\nv_fmac_f32 v{T1}, v{F+8*i+j}, v{F+8*i+j}")
    TS(A, 9, 12)
    A(f"""v_add_f32_dpp v{T0}, v{T0}, v{T0} row_ror:8 row_mask:0xf bank_mask:0xf
    v_add_f32_dpp v{T1}, v{T1}, v{T1} row_ror:8 row_mask:0xf bank_mask:0xf
    v_mov_b32 v{T2}, v{T0}
    v_mov_b32 v{T3}, v{T1}
    v_permlane16_swap_b32 v{T0}, v{T2}
    v_permlane16_swap_b32 v{T1}, v{T3}
    v_pk_add_f32 {vr(T0,2)}, {vr(T0,2)}, {vr(T2,2)}
    v_mov_b32 v{T2}, v{T0}
    v_mov_b32 v{T3}, v{T1}
    v_permlane32_swap_b32 v{T0}, v{T2}
    v_permlane32_swap_b32 v{T1}, v{T3}
    v_pk_add_f32 {vr(T0,2)}, {vr(T0,2)}, {vr(T2,2)}
    ds_write_b64 v{VLW}, {vr(T0,2)}""")
    A(f"""s_waitcnt lgkmcnt(0)
    s_barrier
    ds_read_b128 v[120:123], v{VLR}
    ds_read_b128 v[124:127], v{VLR} offset:16
    s_waitcnt lgkmcnt(0)
    v_pk_add_f32 v[120:121], v[120:121], v[122:123]
    v_pk_add_f32 v[124:125], v[124:125], v[126:127]
    v_pk_add_f32 v[120:121], v[120:121], v[124:125]
    v_mul_f32 v{T0}, {hexf(1.0/640)}, v120
    v_mul_f32 v{T1}, {hexf(1.0/640)}, v121
    v_fma_f32 v{T1}, -v{T0}, v{T0}, v{T1}
    v_max_f32 v{T1}, 0, v{T1}
    v_add_f32 v{T1}, {hexf(1e-5)}, v{T1}
    v_rsq_f32 v{T1}, v{T1}
    v_mul_f32 v{T0}, v{T0}, v{T1}
    s_add_u32 s20, s{sn}, 8192
    s_add_u32 s21, s{sn}, 16384""")
    l5 = A.newlabel('l2')
    for i in range(3):
        if i == 2: A(f"s_cmp_ge_u32 s{W}, 2\ns_cbranch_scc1 {l5}")
        for j in range(8): A(f"v_fma_f32 v{F+8*i+j}, v{F+8*i+j}, v{T1}, -v{T0}")
        for j in range(4): A(f"v_cvt_pk_bf16_f32 v{OPR+4*i+j}, v{F+8*i+2*j}, v{F+8*i+2*j+1}")
        A(bs(4, OPR+4*i, VS, [f"s{sn}", 's20', 's21'][i], 0, 'sc1'))
    l6 = A.newlabel('l2')
    A(f"s_add_u32 s21, s{sh}, 16384")
    A(bs(4, PK+8, 13, 's21', 0, 'sc1'))
    A(f"{l5}:\ns_add_u32 s20, s{sh}, 8192")
    A(bs(4, PK, 13, f"s{sh}", 0, 'sc1')); A(bs(4, PK+4, 13, 's20', 0, 'sc1'))
    TS(A, 10, 12)
    A(f"s_waitcnt vmcnt(0)\ns_barrier\ns_cmp_lg_u32 s{W}, 0\ns_cbranch_scc1 {l6}")
    put_flag(A, s_flag, ne, T0)
    A(f"""{l6}:
    s_add_u32 s{s_j}, s{s_j}, {ncu}
    s_cmp_lt_u32 s{s_j}, {4*NSEG}
    s_cbranch_scc1 ln2_loop""")

WW = 96
def win_load(A, s_w, s_t, vt):
    tr, t = vt+2, vt+3
    A(f"""v_lshrrev_b32 v{t}, 4, v0
    v_lshlrev_b32 v{tr}, 2, v{t}
    v_bfe_u32 v{t}, v0, 2, 2
    v_add_u32 v{tr}, v{tr}, v{t}
    v_lshlrev_b32 v{tr}, 6, v{tr}
    v_and_b32 v{t}, 3, v0
    v_lshl_add_u32 v{tr}, v{t}, 4, v{tr}
    s_mul_i32 s{s_t}, s{W}, 40960
    v_add_u32 v{tr}, s{s_t}, v{tr}""")
    def reads(A, r, off):
        for ksl in range(5):
            for ab in range(2):
                for q in range(2):
                    A(f"ds_read_b64_tr_b16 {vr(WW+4*((5*r+ksl)*2+ab)+2*q,2)}, v{tr} offset:{off + ksl*2048 + q*1024 + 8*ab}")
    load_w_rows(A, s_w, 3072, 4, 640, 160, 4, s_t, 0, s_t+1, vt, reads)

def win_loop(A, name, z2, s_seg, s_unit, f_ln, s_flag, s_pol, exitlab, nsets=6, s_slow=37):
    VL, VD, VC0, VF, VF2, T0, T1, VST = 2, 3, 4, 5, 6, 7, 8, 9
    ACC, XR, GT, ST, PKD = 16, 32, 48, 64, 80
    sx, so, sdm, ne, c1, sx2 = 12, 13, 14, 15, 16, 17
    LST = 40960
    A(f"""v_lshlrev_b32 v{VL}, 4, v0
    s_mul_i32 s{sdm}, s{W}, 5120
    v_add_u32 v{VD}, s{sdm}, v{VL}
    v_mov_b32 v{VC0}, {hexf(GC0)}
    s_mov_b32 s{c1}, {hexf(GC1)}
    v_and_b32 v{VF}, 3, v0
    v_lshlrev_b32 v{VF}, 7, v{VF}
    v_add_u32 v{VF}, {f_ln}, v{VF}
    v_add_u32 v{VF}, s{s_pol}, v{VF}
    s_lshl_b32 s18, s{s_unit}, 2
    s_add_u32 s18, s18, s{W}
    s_lshl_b32 s18, s18, {11 if z2 else 10}
    s_add_u32 s18, s18, {WS_Z2 if z2 else WS_Z1}
    s_barrier
    {name}_loop:
    s_mul_hi_u32 s19, s{s_seg}, {-(-(1<<32)//nsets)}
    s_mul_i32 s19, s19, {nsets}
    s_sub_u32 s19, s{s_seg}, s19
    s_lshl_b32 s19, s19, 9
    v_add_u32 v{VF2}, s19, v{VF}
    s_add_u32 s{ne}, s{s_seg}, 1
    s_mul_i32 s{sx}, s{s_seg}, {SEG_XN}
    s_add_u32 s{sx}, s{sx}, {WS_HNF}
    s_mul_i32 s{so}, s{s_seg}, {SEG_Z}
    s_add_u32 s{so}, s{so}, s18""")
    if z2 and SXL:
        A(f"v_lshlrev_b32 v{VST}, 5, v0\ns_mul_i32 s19, s{s_seg}, {SEG_SX}\ns_add_u32 s19, s19, {WS_SX}")
        A(bl(1, T1, VST, 's19', 0, 'sc1'))
    wait_flags(A, VF2, T0, ne, exitlab, sleep=WINS)
    TS(A, 8, 12)
    for rt in range(2):
        for i in range(5):
            if i % 4 == 0: A(f"s_add_u32 m0, s{sdm}, {rt*20480 + (i//4)*4096}\ns_add_u32 s{sx2}, s{sx}, {rt*20480 + (i//4)*4096}")
            A(f"buffer_load_dwordx4 v{VD}, {srd}, s{sx2} offen offset:{(i%4)*1024} lds")
    A("s_waitcnt vmcnt(5)\ns_barrier")
    TS(A, 9, 12)
    def epi_ops(rt):
        regs = [ACC+8*rt+i for i in range(8)]
        g = GT + 8*rt
        ops = gelu_ops(regs, g, VC0, c1)
        if not z2:
            ops += [f"v_cvt_pk_bf16_f32 v{PKD+4*rt+j}, v{g+2*j}, v{g+2*j+1}" for j in range(4)]
            if rt: ops += [f"s_add_u32 s{so}, s{so}, 24576"]
            ops += [bs(4, PKD+4*rt, VL, f"s{so}", 0, 'sc1')]
        else:
            s_ = ST + 8*rt
            ops += [f"v_add_f32 v{s_+i}, v{g+i}, v{g+4+i}" for i in range(4)]
            ops += [f"v_mul_f32 v{s_+4+i}, v{g+i}, v{g+i}" for i in range(4)]
            ops += [f"v_fmac_f32 v{s_+4+i}, v{g+4+i}, v{g+4+i}" for i in range(4)]
            for sh in (8, 4, 2, 1):
                ops += [f"v_add_f32_dpp v{s_+i}, v{s_+i}, v{s_+i} row_ror:{sh} row_mask:0xf bank_mask:0xf" for i in range(8)]
        return ops
    NP = 4
    for n in range(NP-1): A(f"ds_read_b128 {vr(XR+4*n,4)}, v{VL} offset:{n*1024}")
    pend = []
    for n in range(40):
        rt, ks = divmod(n, 20)
        m = n + NP - 1
        if m == 20: A("s_waitcnt vmcnt(0)\ns_barrier")
        if m < 40: A(f"ds_read_b128 {vr(XR+4*(m%NP),4)}, v{VL} offset:{m*1024}")
        A(f"s_waitcnt lgkmcnt({min(NP-1, 39-n)})")
        if n == 22: pend = epi_ops(0)
        for ab in range(2):
            a = vr(ACC+8*rt+4*ab, 4); w = vr(WW+4*(ks*2+ab), 4); x = vr(XR+4*(n % NP), 4)
            o1, o2 = (x, w) if z2 else (w, x)
            A(f"v_mfma_f32_16x16x32_bf16 {a}, {o1}, {o2}, {'0' if ks == 0 else a}")
            for _ in range(2):
                if pend: A(pend.pop(0))
    TS(A, 10, 12)
    for o in pend + epi_ops(1): A(o)
    TS(A, 11, 12)
    if z2:
        A(f"""s_lshl_b32 s19, s{W}, 8
        s_add_u32 s19, s19, {LST}
        v_lshlrev_b32 v{T0}, 2, v0
        v_add_u32 v{T0}, s19, v{T0}
        s_mov_b32 exec_lo, 0x00010001
        s_mov_b32 exec_hi, 0x00010001""")
        for i in range(4): A(f"ds_write_b128 v{T0}, {vr(ST+4*i,4)} offset:{16*i}")
        A(f"""s_mov_b64 exec, -1
        v_lshlrev_b32 v{VST}, 2, v0
        s_mul_i32 s19, s{s_seg}, {SEG_SX}
        s_add_u32 s19, s19, {WS_SX}
        s_lshl_b32 s20, s{s_unit}, 8
        s_add_u32 s20, s20, s19
        s_waitcnt lgkmcnt(0)
        s_barrier""")
        l = A.newlabel('wz')
        A(f"s_cmp_lg_u32 s{W}, 0\ns_cbranch_scc1 {l}")
        for i in range(4): A(f"ds_read_b32 v{ST+i}, v{VST} offset:{LST+256*i}")
        A(f"""s_waitcnt lgkmcnt(0)
        v_add_f32 v{ST}, v{ST}, v{ST+1}
        v_add_f32 v{ST+2}, v{ST+2}, v{ST+3}
        v_add_f32 v{ST}, v{ST}, v{ST+2}
        v_min_u32 v{ST}, -2, v{ST}""")
        lp, ls = A.newlabel('wz'), A.newlabel('wz')
        A(f"s_cmp_lg_u32 s{s_slow}, 0\ns_cbranch_scc1 {ls}")
        A(bs(1, ST, VST, 's20', 0, '' if SXL else 'sc1'))
        A(f"s_branch {lp}\n{ls}:")
        A(bs(1, ST, VST, 's20', 0, 'sc1'))
        A(f"{lp}:")
        for u in range(6): A(bl(1, ST+u, VST, 's19', 256*u, 'sc1'))
        tick(A, exitlab)
        A(f"""s_waitcnt vmcnt(0)
        v_max3_u32 v{T0}, v{ST}, v{ST+1}, v{ST+2}
        v_max3_u32 v{T1}, v{ST+3}, v{ST+4}, v{ST+5}
        v_max_u32 v{T0}, v{T0}, v{T1}
        v_cmp_eq_u32 vcc, -1, v{T0}
        s_cbranch_vccnz {lp}
        v_add_f32 v{ST}, v{ST}, v{ST+1}
        v_add_f32 v{ST+2}, v{ST+2}, v{ST+3}
        v_add_f32 v{ST+4}, v{ST+4}, v{ST+5}
        v_add_f32 v{ST}, v{ST}, v{ST+2}
        v_add_f32 v{ST}, v{ST}, v{ST+4}
        v_mul_f32 v{ST}, {hexf(1.0/768)}, v{ST}
        v_mov_b32_dpp v{ST+1}, v{ST} row_shl:4 row_mask:0xf bank_mask:0x5
        v_mov_b32_dpp v{ST+1}, v{ST} row_shr:4 row_mask:0xf bank_mask:0xa
        s_mov_b32 vcc_lo, 0xf0f0f0f0
        s_mov_b32 vcc_hi, 0xf0f0f0f0
        v_cndmask_b32 v{ST+2}, v{ST}, v{ST+1}, vcc
        v_cndmask_b32 v{ST+3}, v{ST+1}, v{ST}, vcc
        v_fma_f32 v{ST+3}, -v{ST+2}, v{ST+2}, v{ST+3}
        v_max_f32 v{ST+3}, 0, v{ST+3}
        v_add_f32 v{ST+3}, {hexf(1e-5)}, v{ST+3}
        v_rsq_f32 v{ST+3}, v{ST+3}
        v_mul_f32 v{ST+2}, v{ST+2}, v{ST+3}
        v_cndmask_b32 v{ST+2}, v{ST+2}, v{ST+3}, vcc
        ds_write_b32 v{VST}, v{ST+2} offset:{LST+1024}
        s_waitcnt lgkmcnt(0)
        {l}:
        v_and_b32 v{T0}, 0xc0, v{VST}
        s_barrier""")
        TS(A, 12, 12)
        for i in range(4): A(f"ds_read_b128 {vr(ST+4*i,4)}, v{T0} offset:{LST+1024+16*i}")
        A("s_waitcnt lgkmcnt(0)")
        for ab in range(2):
            for rt in range(2):
                for i in range(4):
                    g = GT+8*rt+4*ab+i
                    A(f"v_fma_f32 v{g}, v{g}, v{ST+8*rt+4+i}, -v{ST+8*rt+i}")
                for j in range(2): A(f"v_cvt_pk_bf16_f32 v{PKD+4*ab+2*rt+j}, v{GT+8*rt+4*ab+2*j}, v{GT+8*rt+4*ab+2*j+1}")
            A(bs(4, PKD+4*ab, VL, f"s{so}", 1024*ab, 'sc1'))
    l = A.newlabel('wz')
    A(f"s_waitcnt vmcnt(0)\ns_barrier\ns_cmp_lg_u32 s{W}, 0\ns_cbranch_scc1 {l}")
    put_flag(A, s_flag, ne, T0)
    A(f"{l}:")
    if WSPE and not z2:
        l = A.newlabel('wz')
        A(f"""s_mul_i32 s19, s{s_seg}, 24
        s_lshl_b32 s20, s{s_unit}, 2
        s_add_u32 s19, s19, s20
        s_add_u32 s19, s19, s{W}
        s_cmp_ge_u32 s19, 512
        s_cbranch_scc1 {l}
        s_load_dwordx2 s[20:21], s[0:1], {KA_WSP}
        s_lshl_b32 s19, s19, 14
        v_lshlrev_b32 v{T1}, 3, v{VL}
        v_add_u32 v{T1}, s19, v{T1}
        s_waitcnt lgkmcnt(0)
        global_load_dword v{VST}, v{T1}, s[20:21]
        v_add_u32 v{T1}, 8192, v{T1}
        global_load_dword v{VST}, v{T1}, s[20:21]
        {l}:""")
    A(f"""s_add_u32 s{s_seg}, s{s_seg}, 2
    s_cmp_lt_u32 s{s_seg}, {NSEG}
    s_cbranch_scc1 {name}_loop""")

def sx_init(A, s_set, s_unit):
    A(f"""s_lshl_b32 s12, s{W}, 4
    s_add_u32 s12, s12, s{s_set}
    s_mul_i32 s12, s12, {SEG_SX}
    s_lshl_b32 s13, s{s_unit}, 8
    s_add_u32 s12, s12, s13
    s_add_u32 s12, s12, {WS_SX}
    v_lshlrev_b32 v16, 2, v0
    v_mov_b32 v17, -1""")
    for i in range(8):
        A(bs(1, 17, 16, 's12', 0, 'sc1'))
        if i < 7: A(f"s_add_u32 s12, s12, {2*SEG_SX}")

def spatial2(A, s_tb, s_fb, f_win, s_flag, exitlab, stamp=None):
    VL, VA, VB, VF, VSG, VN, T0, T1 = 2, 3, 4, 5, 6, 7, 8, 9
    VW = 10
    AC, FA, FB, Z1, BI = 48, 16, 32, 160, 12
    sw, sz, sc, sm, sx, tg = 12, 14, 15, 16, 17, 18
    A(f"""s_load_dwordx2 {sr(sw,2)}, s[0:1], {KA_WSP}
    s_load_dwordx2 s[20:21], s[0:1], {KA_BSP}
    v_lshlrev_b32 v{VL}, 4, v0
    v_bfe_u32 v{T0}, v0, 2, 2
    v_lshlrev_b32 v{T1}, 3, v{T0}
    v_and_b32 v{T0}, 3, v0
    v_add_u32 v{T1}, v{T1}, v{T0}
    v_lshlrev_b32 v{VW}, 12, v{T1}
    v_lshrrev_b32 v{T0}, 4, v0
    v_lshl_add_u32 v{VW}, v{T0}, 4, v{VW}
    v_add_u32 v{VW+1}, {4*4096}, v{VW}
    s_lshl_b32 s{sx}, s{s_tb}, 2
    s_add_u32 s{sx}, s{sx}, s{W}
    s_lshl_b32 s{sx}, s{sx}, 17
    s_lshr_b32 s22, s{W}, 1
    s_and_b32 s23, s{W}, 1
    s_lshl_b32 s24, s{s_tb}, 1
    s_add_u32 s24, s24, s22
    s_lshl_b32 s25, s24, 7
    v_lshlrev_b32 v{T1}, 1, v{T1}
    v_add_u32 v{T1}, s25, v{T1}
    s_waitcnt lgkmcnt(0)""")
    add64(A, sw, sw, f"s{sx}")
    if WSPW:
        A(f"""s_mul_i32 s27, s{s_fb}, 3
        s_min_u32 s27, s27, 13
        s_lshl_b32 s27, s27, 13
        v_lshlrev_b32 v{T0}, 7, v0
        v_add_u32 v{T0}, s27, v{T0}""")
        for i in range(3):
            A(f"global_load_dword v{VN}, v{T0}, {sr(sw,2)}")
            if i < 2: A(f"v_add_u32 v{T0}, 8192, v{T0}")
    for t in range(4): A(f"global_load_ushort v{BI+t}, v{T1}, s[20:21] offset:{(t>>1)*64 + (t&1)*8}")
    A(f"""s_lshl_b32 s{sz}, s{s_fb}, 2
    s_add_u32 s{sz}, s{sz}, s{W}
    s_lshl_b32 s{sz}, s{sz}, 11
    s_add_u32 s{sz}, s{sz}, {WS_Z2}
    s_lshl_b32 s{sm}, s{W}, 11
    s_lshl_b32 s{sx}, s22, 12
    v_add_u32 v{VB}, s{sx}, v{VL}
    s_lshl_b32 s{sx}, s23, 12
    s_add_u32 s{sx}, s{sx}, 8192
    v_add_u32 v{VA}, s{sx}, v{VL}
    v_and_b32 v{VSG}, 1, v0
    v_mul_u32_u24 v{VF}, {12*128}, v{VSG}
    s_lshl_b32 s{sx}, s{s_fb}, 7
    s_add_u32 s{sx}, s{sx}, {f_win + 6*128}
    v_add_u32 v{VF}, s{sx}, v{VF}
    s_mul_i32 s26, s24, {4*24576}
    s_lshl_b32 s27, s{s_fb}, 12
    s_add_u32 s26, s26, s27
    s_lshl_b32 s27, s23, 11
    s_add_u32 s26, s26, s27
    s_mov_b32 s{sc}, 0
    s_waitcnt vmcnt(0)""")
    for t in range(4):
        A(f"v_lshlrev_b32 v{BI+t}, 16, v{BI+t}")
        for i in range(16): A(f"v_mov_b32 v{AC+16*t+i}, v{BI+t}")
    def need(d):
        A(f"""s_add_u32 s{tg}, s{sc}, {d}
        v_add_u32 v{VN}, s{tg}, v{VSG}
        v_and_b32 v{VN}, 1, v{VN}
        v_xor_b32 v{VN}, 1, v{VN}
        v_sub_u32 v{VN}, s{tg}, v{VN}""")
    def dma_w(slot):
        for i in range(2):
            A(f"s_add_u32 m0, s{sm}, {slot*16384 + i*1024}\nglobal_load_lds_dwordx4 v{VW+i}, {sr(sw,2)}")
        add64(A, sw, sw, 64)
    def dma_z(slot):
        A(f"s_add_u32 m0, s{sm}, {slot*16384 + 8192}")
        for i in range(2): A(f"buffer_load_dwordx4 v{VL}, {srd}, s{sz} offen offset:{i*1024} lds")
        A(f"s_add_u32 s{sz}, s{sz}, {SEG_Z}")
    def mm(slots):
        lg = Lg(A)
        def rd(n):
            o = 32*(n % 2) if False else 0
            for t in range(4): lg.ds(f"ds_read_b128 {vr(FB+4*t,4) if n % 2 == 0 else vr(224+4*t,4)}, v{VB} offset:{slots[n]*16384+1024*t}", ('b', n, t))
            for f in range(4): lg.ds(f"ds_read_b128 {vr(FA+4*f,4) if n % 2 == 0 else vr(240+4*f,4)}, v{VA} offset:{slots[n]*16384+1024*f}", ('a', n, f))
        rd(0)
        for n in range(len(slots)):
            fb_, fa_ = (FB, FA) if n % 2 == 0 else (224, 240)
            for f in range(4):
                lg.need(('a', n, f))
                if f == 3 and n + 1 < len(slots): pass
                for t in range(4):
                    a = vr(AC+16*t+4*f, 4)
                    A(f"v_mfma_f32_16x16x32_bf16 {a}, {vr(fa_+4*f,4)}, {vr(fb_+4*t,4)}, {a}")
                if f == 0 and n + 1 < len(slots): rd(n+1)
    def decide(d, tag):
        need(d)
        A(f"""buffer_load_dword v{T0}, v{VF}, {srd}, 0 offen sc1
        s_waitcnt vmcnt(0)
        v_cmp_gt_u32 vcc, v{VN}, v{T0}
        s_cmp_eq_u64 vcc, 0
        s_cselect_b32 s19, 1, 0
        s_cmp_le_u32 s{tg}, {NSEG-5}
        s_cselect_b32 s19, s19, 0
        v_mov_b32 v{T0}, s19
        s_xor_b32 s33, s33, 4
        v_mov_b32 v{T1}, s33
        s_cmp_lg_u32 s{W}, 0
        s_cbranch_scc1 sp_nb{tag}
        ds_write_b32 v{T1}, v{T0}
        s_waitcnt lgkmcnt(0)
        sp_nb{tag}:
        s_barrier
        ds_read_b32 v{T0}, v{T1}
        s_waitcnt lgkmcnt(0)
        v_readfirstlane_b32 s19, v{T0}
        s_cmp_eq_u32 s19, 0""")
    def chunk():
        for sl in range(4): dma_w(sl); dma_z(sl)
        A(f"s_xor_b32 s{sm}, s{sm}, 65536")
    A("s_mov_b32 s33, 131072\ns_barrier\nsp_top:")
    A(f"s_cmp_gt_u32 s{sc}, {NSEG-9}\ns_cbranch_scc1 sp_one")
    decide(4, 'a')
    A("s_cbranch_scc1 sp_one")
    chunk()
    A("sp_bulk:")
    decide(8, 'b')
    A("s_cbranch_scc1 sp_nn")
    chunk()
    A("sp_nn:")
    mm([0, 1, 2, 3])
    A(f"""v_xor_b32 v{VA}, 65536, v{VA}
    v_xor_b32 v{VB}, 65536, v{VB}
    s_add_u32 s{sc}, s{sc}, 4
    s_cmp_lg_u32 s19, 0
    s_cbranch_scc1 sp_bulk
    sp_one:
    s_barrier""")
    dma_w(0)
    need(1)
    l, l2, l3 = A.newlabel('sp'), A.newlabel('sp'), A.newlabel('sp')
    if SPW0: A(f"s_cmp_lg_u32 s{W}, 0\ns_cbranch_scc1 {l3}")
    A(f"s_branch {l2}\n{l}:\ns_sleep {SPS}"); tick(A, exitlab)
    A(f"""{l2}:
    buffer_load_dword v{T0}, v{VF}, {srd}, 0 offen sc1
    s_waitcnt vmcnt(0)
    v_cmp_gt_u32 vcc, v{VN}, v{T0}
    s_cbranch_vccnz {l}""")
    if SPW0: A(f"{l3}:\ns_waitcnt vmcnt(0)\ns_barrier")
    TS(A, 10, 200)
    dma_z(0)
    A("s_waitcnt vmcnt(0)\ns_barrier")
    TS(A, 11, 200)
    mm([0])
    A(f"s_add_u32 s{sc}, s{sc}, 1\ns_cmp_lt_u32 s{sc}, {NSEG-ND}\ns_cbranch_scc1 sp_top")
    if stamp: stamp(A)
    A(f"s_add_u32 s27, s26, {WS_GY}")
    for t in range(4):
        for p in range(2):
            a = AC+16*t+8*p
            for j in range(4): A(f"v_cvt_pk_bf16_f32 v{Z1+8*t+4*p+j}, v{a+2*j}, v{a+2*j+1}")
            A(bs(4, Z1+8*t+4*p, VL, 's27', 1024*p, 'sc1'))
        if t < 3: A("s_add_u32 s27, s27, 24576")
    l = A.newlabel('sp')
    A(f"s_mov_b32 s19, 1\ns_waitcnt vmcnt(0)\ns_barrier\ns_cmp_lg_u32 s{W}, 0\ns_cbranch_scc1 {l}")
    put_flag(A, s_flag, 19, T0)
    A(f"{l}:")
    TS(A, 12, 200)
```

```python
import sys, os
if os.environ.get('OLDREC'):
    import r_rec_old; sys.modules['r_rec'] = r_rec_old
from common import *
from r_ln import *
from r_proj import *
from r_u import *
import r_rec as R
from r_rec import checkin, waitall, wait_flags, wait_flags_wg, put_flag, tick
from r_tail import *
KNAME = 'sequential_preLN__memory_aug_recurrent_mem_tr__mixer_gmlp__prompt_kernel'
PFAB = int(os.environ.get('PFAB', '1'))
PFV = int(os.environ.get('PFV', '1'))
OUTF = os.environ.get('OUTF', '')
PFU = int(os.environ.get('PFU', '1'))
PFWO = int(os.environ.get('PFWO', '1'))
PFUN = int(os.environ.get('PFUN', '2'))
PFO = int(os.environ.get('PFO', '0'))
VFIRST = int(os.environ.get('VFIRST', '0'))
PFW = int(os.environ.get('PFW', '0'))
DRY = int(os.environ.get('DRY', '1'))
KQD = int(os.environ.get('KQD', '0'))
UD = int(os.environ.get('UD', '0'))
TLBW = int(os.environ.get('TLBW', '0'))
TLBN = int(os.environ.get('TLBN', '8'))
WIDE = int(os.environ.get('WIDE', '0'))
ABW = int(os.environ.get('ABW', '0'))
AD = int(os.environ.get('AD', '0'))
BD = int(os.environ.get('BD', '0'))
HD = int(os.environ.get('HD', '0'))
ET = int(os.environ.get('ET', '0'))
ETM = eval(os.environ.get('ETM', '[2, 1]'))
ETS = int(os.environ.get('ETS', '4'))
CODEW = int(os.environ.get('CODEW', '1'))
PFUV = eval(os.environ.get('PFUV', '[]'))
PEN = int(os.environ.get('PEN', '9'))
PEC = int(os.environ.get('PEC', '0'))
UWE = int(os.environ.get('UWE', '1'))
HWL = int(os.environ.get('HWL', '1'))
HWW = int(os.environ.get('HWW', '1'))
WSP0 = int(os.environ.get('WSP0', '0'))
PFLEAD = int(os.environ.get('PFLEAD', '3'))
PFOUT = int(os.environ.get('PFOUT', '1'))
HSTAMP = int(os.environ.get('HSTAMP', '0'))
STAMP = int(os.environ.get('STAMP', '0'), 0)
DBG = 90
F_QKV = WS_FLAG
F_U = WS_FLAG + 0x4000
F_X = 16384 + 2048
F_LN = F_X + 32768
F_WIN = WS_FLAG + 0x5000
F_GY = WS_FLAG + 0x6000
EXIT = 'mega_done'
X, TK, W = R.S_GRP, 2, 3
srd = R.srd

def wave0(A, fn):
    l = A.newlabel('w0')
    A(f"s_cmp_lg_u32 s{W}, 0\ns_cbranch_scc1 {l}")
    fn()
    A(f"{l}:")

def rt_stamp(A, idx, vt=15):
    if not STAMP: return
    def f():
        A(f"""s_memrealtime s[98:99]
        s_lshl_b32 s97, s{X}, 5
        s_add_u32 s97, s97, s{TK}
        s_lshl_b32 s97, s97, 6
        s_add_u32 s97, s97, {WS_STAT + 65536 + 4*idx}
        s_waitcnt lgkmcnt(0)""")
        put_flag(A, 97, 98, vt)
    wave0(A, f)

def cy_stamp(A, idx, vt=15):
    if not STAMP: return
    def f():
        A(f"""s_memtime s[98:99]
        s_lshl_b32 s97, s{X}, 5
        s_add_u32 s97, s97, s{TK}
        s_lshl_b32 s97, s97, 6
        s_add_u32 s97, s97, {WS_STAT + 65536 + 4*idx}
        s_waitcnt lgkmcnt(0)""")
        put_flag(A, 97, 98, vt)
    wave0(A, f)

def hstamp(A, word, vt, sreg=None):
    l = A.newlabel('hs')
    A(f"s_or_b32 s84, s{X}, s{TK}\ns_cmp_lg_u32 s84, 0\ns_cbranch_scc1 {l}")
    if sreg is None: A("s_memrealtime s[86:87]\ns_waitcnt lgkmcnt(0)\ns_sub_u32 s86, s86, s88")
    A(f"v_mov_b32 v{vt}, {4*word}\nv_mov_b32 v{vt+1}, s{86 if sreg is None else sreg}\nglobal_store_dword v{vt}, v{vt+1}, s[{DBG}:{DBG+1}] sc1\n{l}:")

def ln1_duty(A, s_idx):
    A(f"""s_load_dwordx2 s[12:13], s[0:1], {KA_X}
    s_lshl_b32 s16, s{s_idx}, 2
    s_add_u32 s16, s16, s{W}
    s_mul_i32 s16, s16, 20480
    s_waitcnt lgkmcnt(0)""")
    add64(A, 12, 12, 's16')
    A(f"s_add_u32 s16, s16, {WS_XNF}")
    add64(A, 14, 4, 's16')
    ln_rowtile(A, 12, 14, 0, 'sc1')

def pf_v(A, s_unit, PFV=PFV, PFO=PFO, s_u6=35, dov=True):
    if not PFV: return
    A(f"""s_load_dwordx2 s[12:13], s[0:1], {KA_WV}
    v_lshrrev_b32 v24, 2, v0
    v_mul_u32_u24 v24, 12288, v24
    v_and_b32 v25, 3, v0
    v_lshl_add_u32 v24, v25, 7, v24
    s_lshl_b32 s14, s{s_unit}, 9
    s_mul_i32 s15, s{W}, {16*12288}
    s_add_u32 s14, s14, s15
    s_add_u32 s14, s14, {64*12288}
    s_waitcnt lgkmcnt(0)""")
    add64(A, 12, 12, 's14')
    for c in range(5 if dov else 0):
        A("global_load_dword v26, v24, s[12:13]")
        if c < 4: add64(A, 12, 12, 128*12288)
    if PFO:
        A(f"""s_load_dwordx2 s[12:13], s[0:1], {KA_WO}
        s_lshl_b32 s14, s{s_u6}, 2
        s_add_u32 s14, s14, s{W}
        s_mul_hi_u32 s15, s14, {-(-(1<<32)//3)}
        s_mul_i32 s16, s15, 3
        s_sub_u32 s16, s14, s16
        s_sub_u32 s17, s{X}, 4
        s_lshl_b32 s17, s17, 3
        s_add_u32 s15, s15, s17
        s_mul_i32 s15, s15, 245760
        s_mul_i32 s16, s16, 13696
        s_add_u32 s15, s15, s16
        v_min_u32 v25, 52, v0
        v_lshlrev_b32 v25, 7, v25
        s_waitcnt lgkmcnt(0)""")
        add64(A, 12, 12, 's15')
        rr = [1, 3, 5] if PFO == 1 else list(range(6))
        prev = 0
        for r in rr:
            for hf in range(2):
                off = r*40960 + hf*6784
                add64(A, 12, 12, off - prev); prev = off
                A("global_load_dword v26, v25, s[12:13]")
    if PFV > 1:
        n = PFV - 1
        A(f"s_load_dwordx4 s[16:19], s[0:1], {KA_WQ}\ns_add_u32 s14, s14, {(5-n)*128*12288}\ns_waitcnt lgkmcnt(0)")
        add64(A, 16, 16, 's14'); add64(A, 18, 18, 's14')
        for c in range(n):
            A("global_load_dword v26, v24, s[18:19]\nglobal_load_dword v26, v24, s[16:17]")
            if c < n-1: add64(A, 16, 16, 128*12288); add64(A, 18, 18, 128*12288)

def pf_ab_old(A):
    if not PFAB: return
    l, l2 = A.newlabel('pf'), A.newlabel('pf')
    A(f"""s_and_b32 s18, s{TK}, 8
    s_lshl_b32 s18, s18, 1
    s_add_u32 s18, s18, {KA_WQ}
    s_load_dwordx4 s[12:15], s[0:1], s18
    s_and_b32 s16, s{TK}, 7
    s_lshl_b32 s17, s{X}, 3
    s_add_u32 s16, s16, s17
    v_mul_u32_u24 v24, {(65536+2)//3}, v0
    v_lshrrev_b32 v24, 16, v24
    v_mul_u32_u24 v25, 3, v24
    v_sub_u32 v25, v0, v25
    v_min_u32 v24, 15, v24
    v_mul_u32_u24 v24, 12288, v24
    v_lshl_add_u32 v24, v25, 7, v24
    s_mul_i32 s17, s16, 384
    s_mul_i32 s19, s{W}, {16*12288}
    s_add_u32 s17, s17, s19
    s_add_u32 s17, s17, {64*12288}
    s_waitcnt lgkmcnt(0)
    s_mov_b32 exec_hi, 0xffff""")
    add64(A, 12, 12, 's17')
    for c in range(5):
        A("global_load_dword v26, v24, s[12:13]")
        if c < 4: add64(A, 12, 12, 128*12288)
    A(f"s_cmp_lg_u32 s18, {KA_WQ}\ns_cbranch_scc1 {l}")
    add64(A, 14, 14, 's17')
    for c in range(5):
        A("global_load_dword v26, v24, s[14:15]")
        if c < 4: add64(A, 14, 14, 128*12288)
    A(f"""s_branch {l2}
    {l}:
    s_mov_b32 exec_hi, 0xff
    v_lshlrev_b32 v24, 7, v0
    s_mul_i32 s17, s16, 245760
    s_mul_i32 s19, s{W}, 10240
    s_add_u32 s17, s17, s19
    s_add_u32 s17, s17, 40960""")
    add64(A, 14, 14, 's17')
    if PFWO == 2: A("s_waitcnt vmcnt(0)")
    for c in range(3 if PFWO else 0):
        A("global_load_dword v26, v24, s[14:15]")
        add64(A, 14, 14, 5120)
        A("global_load_dword v26, v24, s[14:15]")
        if c < 2: add64(A, 14, 14, 81920-5120)
    A(f"{l2}:\ns_mov_b64 exec, -1")

def pf_ab(A):
    if not PFAB: return
    for _ in range(HD): A("s_sleep 36")
    if not ABW: return pf_ab_old(A)
    l, l2 = A.newlabel('pf'), A.newlabel('pf')
    A(f"""s_and_b32 s18, s{TK}, 8
    s_lshl_b32 s18, s18, 1
    s_add_u32 s18, s18, {KA_WQ}
    s_load_dwordx4 s[12:15], s[0:1], s18
    s_and_b32 s16, s{TK}, 7
    s_lshl_b32 s17, s16, 2
    s_add_u32 s17, s17, s{W}
    s_mul_i32 s17, s17, {2*12288}
    s_mul_i32 s19, s{X}, 3072
    s_add_u32 s17, s17, s19
    s_add_u32 s17, s17, {(ABW-1)*64*12288}
    v_cmp_le_u32 vcc, 24, v0
    v_cndmask_b32 v24, 0, 1, vcc
    v_mul_u32_u24 v24, {12288 - 24*128}, v24
    v_lshl_add_u32 v24, v0, 7, v24
    s_waitcnt lgkmcnt(0)
    s_mov_b32 exec_hi, 0xffff""")
    add64(A, 12, 12, 's17')
    for c in range(ABW-1, 10):
        A("global_load_dword v26, v24, s[12:13]")
        if c < 9: add64(A, 12, 12, 64*12288)
    A(f"s_cmp_lg_u32 s18, {KA_WQ}\ns_cbranch_scc1 {l}\ns_sub_u32 s17, s17, {(ABW-1)*64*12288}")
    add64(A, 14, 14, 's17')
    for c in range(10):
        A("global_load_dword v26, v24, s[14:15]")
        if c < 9: add64(A, 14, 14, 64*12288)
    A(f"""s_branch {l2}
    {l}:
    s_mov_b32 exec_hi, 0xff
    v_lshlrev_b32 v24, 7, v0
    s_lshl_b32 s17, s{X}, 3
    s_add_u32 s16, s16, s17
    s_mul_i32 s17, s16, 245760
    s_mul_i32 s19, s{W}, 10240
    s_add_u32 s17, s17, s19
    s_add_u32 s17, s17, 40960""")
    add64(A, 14, 14, 's17')
    for c in range(3 if PFWO else 0):
        A("global_load_dword v26, v24, s[14:15]")
        add64(A, 14, 14, 5120)
        A("global_load_dword v26, v24, s[14:15]")
        if c < 2: add64(A, 14, 14, 81920-5120)
    A(f"{l2}:\ns_mov_b64 exec, -1")

def wsp_pull(A):
    if not WSP0: return
    if WSP0 == 2:
        A(f"v_mov_b32 v4, {F_QKV + 48*128}\ns_mov_b32 s12, 1")
        wait_flags(A, 4, 5, 12, EXIT, sleep=8)
    A(f"""s_load_dwordx2 s[12:13], s[0:1], {KA_WSP}
    s_mul_i32 s14, s{X}, 6
    s_add_u32 s14, s14, s{TK}
    s_sub_u32 s14, s14, 26
    s_lshl_b32 s14, s14, 2
    s_add_u32 s14, s14, s{W}
    s_lshl_b32 s14, s14, 13
    v_lshlrev_b32 v4, 7, v0
    v_add_u32 v4, s14, v4
    s_waitcnt lgkmcnt(0)""")
    for i in range(6):
        A(f"v_min_u32 v5, {8388608-128}, v4\nglobal_load_dword v6, v5, s[12:13]\nv_add_u32 v4, {192*8192}, v4")
    A("s_waitcnt vmcnt(0)")

def k_mega(A):
    if STAMP & 0x200:
        def tsh(A, i, vt):
            A(f's_memrealtime s[{60+2*i}:{61+2*i}]\ns_waitcnt lgkmcnt(0)')
        TSH[0] = tsh
    A(f""".p2align 8
    {KNAME}:
    s_cmp_ge_u32 s2, 256
    s_cbranch_scc1 {EXIT}
    s_load_dwordx2 s[4:5], s[0:1], {KA_WS}
    s_load_dwordx2 s[{DBG}:{DBG+1}], s[0:1], {KA_DBG}
    s_load_dwordx2 s[16:17], s[0:1], {KA_X}
    s_getreg_b32 s9, hwreg(HW_REG_XCC_ID)
    s_and_b32 s9, s9, 15
    s_and_b32 s{X}, s9, 7
    {['', f's_lshr_b32 s{X}, s2, 5', f's_mov_b32 s{X}, 0', f's_mov_b32 s{X}, 5'][int(os.environ.get('FAKEX', '0'))]}
    v_lshrrev_b32 v1, 6, v0
    v_readfirstlane_b32 s{W}, v1
    v_and_b32 v0, 63, v0
    s_mov_b32 s{R.S_TO}, 0
    s_mov_b32 s6, 0x10000000
    s_mov_b32 s7, 0x20000""")
    if STAMP or HSTAMP: A("s_memrealtime s[88:89]")
    A(f"""s_waitcnt lgkmcnt(0)
    v_mov_b32 v1, 0
    s_mov_b32 s19, -1
    s_cmp_lg_u32 s2, 0
    s_cbranch_scc1 mega_nocal
    s_cmp_lg_u32 s{W}, 3
    s_cbranch_scc1 mega_calj
    s_mov_b64 exec, 1
    v_mov_b32 v2, {(1<<21) - 16384 + 4096}
    v_mov_b32 v3, {(1<<21) - 8192 + 4096}
    s_mov_b32 s20, 0""")
    for rep in range(4):
        a, b = (2, 3) if rep % 2 == 0 else (3, 2)
        A(f"""global_store_dword v{a}, v1, s[4:5] sc1
        global_store_dword v{b}, v1, s[4:5] sc1
        s_waitcnt vmcnt(1)
        s_memtime s[12:13]
        s_waitcnt vmcnt(0)
        s_memtime s[14:15]
        s_waitcnt lgkmcnt(0)
        s_sub_u32 s14, s14, s12
        s_min_u32 s14, s14, 400
        {'s_add_u32' if rep % 2 == 0 else 's_sub_u32'} s20, s20, s14""")
    A(f"""s_cmp_lt_i32 s20, 0
    s_cselect_b32 s14, 8193, 1
    s_and_b32 s15, s9, 4
    s_lshl_b32 s15, s15, 11
    s_xor_b32 s14, s14, s15
    v_mov_b32 v2, {4*R.D_POL}
    v_mov_b32 v4, s14
    v_mov_b32 v5, s20
    global_store_dwordx2 v2, v[4:5], s[{DBG}:{DBG+1}] sc1
    {'v_mov_b32 v2, 56' if HSTAMP else ''}
    {f'global_store_dwordx2 v2, v[4:5], s[{DBG}:{DBG+1}] sc1' if HSTAMP else ''}
    s_mov_b64 exec, -1
    mega_calj:
    s_barrier
    s_branch mega_noln
    mega_nocal:""")
    if CODEW:
        A(f"""s_cmp_lg_u32 s{W}, 1
        s_cbranch_scc1 mega_nocw
        s_sub_u32 s12, s2, 16
        s_cmp_ge_u32 s12, 16
        s_cbranch_scc1 mega_nocw
        s_getpc_b64 s[20:21]
        mega_pc:
        s_lshr_b32 s12, s12, 3
        s_lshl_b32 s12, s12, 13
        v_lshlrev_b32 v2, 7, v0
        v_add_u32 v2, s12, v2
        s_mov_b32 s13, mega_code_end-mega_pc-4""")
        for i in range(8):
            A(f"v_min_u32 v3, s13, v2\nglobal_load_dword v8, v3, s[20:21]\nv_add_u32 v2, 16384, v2")
        A("s_waitcnt vmcnt(0)\nmega_nocw:")
    if ET:
        A(f"""s_cmp_lg_u32 s{W}, 1
        s_cbranch_scc1 mega_noet
        s_load_dwordx8 s[20:27], s[0:1], {KA_WQ}
        v_min_u32 v2, 59, v0
        v_lshlrev_b32 v2, 7, v2
        s_mul_i32 s12, s2, 7680
        v_add_u32 v2, s12, v2
        s_sleep {ETS}
        s_waitcnt lgkmcnt(0)""")
        for i in range(ET):
            m = ETM[i // 4]
            A(f"v_add_u32 v3, {(i % 4)*1966080}, v2\nglobal_load_dword v4, v3, s[{20+2*m}:{21+2*m}]")
        A("mega_noet:")
    if TLBW:
        n = -(-7864320 // (64*TLBW))
        A(f"""s_cmp_lg_u32 s{W}, 1
        s_cbranch_scc1 mega_notlb
        s_sub_u32 s12, s2, 8
        s_cmp_ge_u32 s12, {TLBN}
        s_cbranch_scc1 mega_notlb
        s_load_dwordx8 s[20:27], s[0:1], {KA_WQ}
        s_mov_b32 s12, {TLBW}
        v_mul_lo_u32 v2, s12, v0
        s_waitcnt lgkmcnt(0)""")
        for i in range(n):
            A(f"v_min_u32 v3, {7864320-4}, v2")
            for m in (2, 1, 0, 3): A(f"global_load_dword v4, v3, s[{20+2*m}:{21+2*m}]")
            if i < n-1: A(f"v_add_u32 v2, {64*TLBW}, v2")
        A("mega_notlb:")
    A(f"""s_cmp_eq_u32 s{W}, 3
    s_cselect_b32 s19, s2, -1
    s_lshl_b32 s12, s2, 2
    s_add_u32 s12, s12, s{W}
    s_cmp_eq_u32 s12, 6
    s_cselect_b32 s19, 0, s19
    s_cmp_eq_u32 s19, -1
    s_cbranch_scc1 mega_noln""")
    ln1_small(A, 16, 19, srd, WS_XNF)
    A(f"""mega_noln:
    s_cmp_lg_u32 s{W}, 0
    s_cbranch_scc1 mega_t1
    s_mov_b64 exec, 1
    v_mov_b32 v3, 1
    s_mov_b32 s12, 0
    mega_tk:
    s_cmp_eq_u32 s{X}, s9
    s_cbranch_scc1 mega_home
    v_mov_b32 v2, {4*R.D_SLOW}
    global_store_dword v2, v3, s[{DBG}:{DBG+1}] sc1
    s_waitcnt vmcnt(0)
    mega_home:
    s_and_b32 s14, s{X}, 3
    s_lshl_b32 s14, s14, 6
    s_and_b32 s15, s{X}, 4
    s_add_u32 s14, s14, s15
    v_mov_b32 v2, s14
    global_atomic_add v4, v2, v3, s[{DBG}:{DBG+1}] sc0
    s_waitcnt vmcnt(0)
    v_readfirstlane_b32 s14, v4
    s_cmp_lt_u32 s14, 32
    s_cbranch_scc1 mega_got
    s_add_u32 s{X}, s{X}, 1
    s_and_b32 s{X}, s{X}, 7
    s_add_u32 s12, s12, 1
    s_cmp_lt_u32 s12, 8
    s_cbranch_scc1 mega_tk
    mega_got:
    v_mov_b32 v5, s{X}
    ds_write_b64 v1, v[4:5]
    s_waitcnt lgkmcnt(0)
    s_mov_b64 exec, -1
    mega_t1:
    s_barrier
    ds_read_b64 v[4:5], v1
    s_waitcnt lgkmcnt(0)
    v_readfirstlane_b32 s{TK}, v4
    v_readfirstlane_b32 s{X}, v5
    s_cmp_eq_u32 s19, -1
    s_cbranch_scc1 mega_noln2
    s_and_b32 s18, s19, 3
    s_lshl_b32 s18, s18, 6
    s_add_u32 s18, s18, {4*R.D_LN}
    v_mov_b32 v2, s18
    v_mov_b32 v3, 1
    s_mov_b64 exec, 1
    s_waitcnt vmcnt(0)
    global_atomic_add v2, v3, s[{DBG}:{DBG+1}]
    s_mov_b64 exec, -1
    mega_noln2:
    s_barrier
    s_cmp_ge_u32 s{TK}, 32
    s_cbranch_scc1 {EXIT}""")
    if STAMP:
        A("s_mov_b32 s71, s88")
        for i in range(72, 88): A(f"s_mov_b32 s{i}, 0")
        wave0(A, lambda: (A(f"s_lshl_b32 s84, s{X}, 5\ns_add_u32 s84, s84, s{TK}\ns_lshl_b32 s84, s84, 6\ns_add_u32 s84, s84, {WS_STAT+65536}"), put_flag(A, 84, 88, 15)))
    rt_stamp(A, 1)
    A(f"""s_cmp_ge_u32 s{X}, 4
    s_cbranch_scc1 mega_hi
    s_cmp_ge_u32 s{TK}, 26
    s_cbranch_scc1 mega_ln2
    s_and_b32 s{R.S_HL}, s{TK}, 7
    s_cmp_ge_u32 s{TK}, 16
    s_cbranch_scc1 mega_R
    s_cmp_ge_u32 s{TK}, 8
    s_cbranch_scc1 mega_B
    s_branch mega_A
    mega_hi:
    s_cmp_ge_u32 s{TK}, 26
    s_cbranch_scc1 mega_win
    s_cmp_ge_u32 s{TK}, 18
    s_cbranch_scc1 mega_U""")
    A(f"""s_mul_hi_u32 s22, s{TK}, {-(-(1<<32)//6)}
    s_mul_i32 s23, s22, 6
    s_sub_u32 s23, s{TK}, s23
    s_sub_u32 s22, 2, s22
    s_sub_u32 s20, s{X}, 4
    s_mul_i32 s20, s20, 6
    s_add_u32 s23, s23, s20
    s_mul_i32 s30, s22, 24
    s_add_u32 s30, s30, s23
    s_lshl_b32 s30, s30, 7
    s_add_u32 s30, s30, {F_QKV}
    s_lshl_b32 s24, s22, 3
    s_add_u32 s24, s24, {KA_WQ}
    s_load_dwordx2 s[32:33], s[0:1], s24
    s_lshl_b32 s25, s23, 2
    s_add_u32 s25, s25, s{W}
    s_lshl_b32 s26, s25, 7
    s_mul_hi_u32 s27, s25, {-(-(1<<32)//3)}
    s_mul_i32 s28, s27, 3
    s_sub_u32 s28, s25, s28
    s_mul_i32 s27, s27, 12288
    s_lshl_b32 s28, s28, 11
    s_add_u32 s27, s27, s28
    s_mul_i32 s28, s22, {WS_KF-WS_QF}
    s_add_u32 s27, s27, s28
    s_add_u32 s27, s27, {WS_QF}""")
    A("s_waitcnt lgkmcnt(0)")
    if WIDE:
        A(f"""s_sub_u32 s21, s23, s20
        s_lshl_b32 s21, s21, 2
        s_add_u32 s21, s21, s{W}
        s_lshl_b32 s21, s21, 6
        v_add_u32 v24, s21, v0
        v_mul_u32_u24 v25, {(65536+23)//24}, v24
        v_lshrrev_b32 v25, 16, v25
        v_mul_u32_u24 v25, {12288 - 24*128}, v25
        v_lshl_add_u32 v24, v24, 7, v25
        s_lshl_b32 s21, s20, 9""")
        add64(A, 38, 32, 's21')
    add64(A, 32, 32, 's26'); A(f's_mov_b32 s34, s27\ns_add_u32 s35, s28, {WS_QF + RING*SEG_QKV}'); add64(A, 36, 4, WS_XNF)
    if KQD:
        A("s_cmp_eq_u32 s22, 2\ns_cbranch_scc1 proj_go2")
        for _ in range(KQD): A("s_sleep 36")
        A("proj_go2:")
    if VFIRST:
        A(f"s_sub_u32 s21, s23, s20\ns_cmp_eq_u32 s22, 2\ns_cbranch_scc1 proj_go\ns_cmp_eq_u32 s22, 0\ns_cbranch_scc1 proj_hq")
        pf_v(A, 23, 1, 0)
        A(f"s_waitcnt vmcnt({VFIRST-1})\ns_branch proj_go\nproj_hq:")
        pf_v(A, 23, 1, 1, 21, dov=False)
        A(f"s_waitcnt vmcnt({VFIRST-1})\nproj_go:")
    A(f"s_mov_b32 s16, {NSEG}\nv_lshlrev_b32 v2, 4, v0\ns_mul_i32 s18, s{W}, 10240\nv_add_u32 v3, s18, v2\ns_mov_b32 s19, 0")
    def xn0(A):
        for i in range(10):
            if i % 4 == 0: A(f"s_add_u32 m0, s18, {(i//4)*4096}")
            A(f"global_load_lds_dwordx4 v3, s[36:37] offset:{(i%4)*1024}")
            if i % 4 == 3: add64(A, 36, 36, 4096)
        add64(A, 36, 36, SEG_XN - 8192)
    def touch(A):
        A("global_load_dword v26, v24, s[38:39]")
        add64(A, 38, 38, 64*12288)
    WPRE = int(os.environ.get('WPRE', '0'))
    if WIDE:
        if WPRE == 0: add64(A, 38, 38, 3*64*12288)
        else:
            for _ in range(3): touch(A)
    def whook(A, c, ph):
        if WIDE and c == -1:
            for _ in range(WIDE): touch(A)
        if WIDE and ph == 1 and c + 3 + WIDE < 10 and c >= 0: touch(A)
        if c == 3 and ph == 0:
            waitall(A, DBG, EXIT, 2, setup_only=True)
            A(f"global_load_dword v18, v16, s[{DBG}:{DBG+1}] sc1")
        if c == 6 and ph == 1:
            l = A.newlabel('x0')
            A(f"v_cmp_gt_u32 vcc, v17, v18\ns_cbranch_vccnz {l}")
            xn0(A)
            A(f"s_mov_b32 s19, 1\n{l}:")
    load_w64(A, 32, 12288, W, 0, 12, 4, depth=3, base=65536, hook=whook, wide=WIDE)
    rt_stamp(A, 2)
    A("s_cmp_lg_u32 s19, 0\ns_cbranch_scc1 proj_x0")
    waitall(A, DBG, EXIT, 2)
    xn0(A)
    A("proj_x0:")
    rt_stamp(A, 3); cy_stamp(A, 8)
    def mid(A):
        wave0(A, lambda: (A(f"s_sub_u32 s17, {NSEG}, s16"), put_flag(A, 30, 17, 12)))
        if STAMP & 0x100:
            for k in range(3):
                l = A.newlabel('ms'); A(f"s_cmp_lg_u32 s16, {NSEG-k}\ns_cbranch_scc1 {l}"); rt_stamp(A, 10+k); A(f"{l}:")
    proj_loop(A, 'proj', 36, 16, W, 0, make_epi_qkv(34, 2, os.environ.get('PST', 'sc1')), mid_hook=mid, s_t=12, vt=8, seg0_done=True, nmid=int(os.environ.get('NMID', '19')), early=((PEN, PEC, 20) if PEC else None))
    A("s_waitcnt vmcnt(0)\ns_barrier"); mid(A)
    rt_stamp(A, 4); cy_stamp(A, 9)
    A(f"s_mov_b32 s51, 0\ns_branch mega_sp")
    A(f"""mega_U:
    s_load_dwordx2 s[32:33], s[0:1], {KA_WO}
    s_sub_u32 s20, s{X}, 4
    s_lshl_b32 s20, s20, 3
    s_add_u32 s20, s20, s{TK}
    s_sub_u32 s20, s20, 18
    s_lshl_b32 s30, s20, 7
    s_add_u32 s30, s30, {F_U}
    s_mul_i32 s22, s20, 245760
    s_mul_i32 s23, s{W}, 320
    s_add_u32 s22, s22, s23
    s_mul_i32 s23, s20, 12288
    s_add_u32 s23, s23, {WS_VF}
    s_mul_i32 s24, s20, 40960
    s_mul_i32 s25, s{W}, 10240
    s_add_u32 s24, s24, s25
    s_add_u32 s24, s24, {WS_UF}
    s_mul_i32 s25, s20, 192
    v_and_b32 v3, 1, v0
    v_mul_u32_u24 v3, 191, v3
    v_add_u32 v3, s25, v3
    v_lshrrev_b32 v3, 8, v3
    v_lshlrev_b32 v3, 7, v3
    v_add_u32 v3, {F_QKV + 48*128}, v3""")
    A("s_waitcnt lgkmcnt(0)")
    add64(A, 32, 32, 's22')
    A(f"s_xor_b32 s14, s{X}, 4\ns_lshl_b32 s14, s14, 3\ns_and_b32 s15, s{TK}, 7\ns_add_u32 s14, s14, s15")
    gy2_init(A, 14)
    if PFU:
        A(f"""s_load_dwordx4 s[12:15], s[0:1], {KA_WQ}
        v_cmp_le_u32 vcc, 24, v0
        v_cndmask_b32 v24, 0, 1, vcc
        v_mul_u32_u24 v24, {12288 - 24*128}, v24
        v_lshl_add_u32 v24, v0, 7, v24
        s_sub_u32 s16, s{TK}, 18
        s_lshl_b32 s16, s16, 2
        s_add_u32 s16, s16, s{W}
        s_mul_i32 s16, s16, {2*12288}
        s_sub_u32 s17, s{X}, 4
        s_mul_i32 s17, s17, 3072
        s_add_u32 s16, s16, s17
        s_add_u32 s16, s16, {64*12288}
        s_waitcnt lgkmcnt(0)
        s_mov_b32 exec_hi, 0xffff""")
        add64(A, 12, 12, 's16'); add64(A, 14, 14, 's16')
        if PFUV:
            A(f"s_load_dwordx2 s[18:19], s[0:1], {KA_WV}\ns_waitcnt lgkmcnt(0)")
            add64(A, 18, 18, 's16')
            prev = 1
            for c in PFUV:
                if c != prev: add64(A, 18, 18, (c-prev)*64*12288)
                prev = c
                A("global_load_dword v26, v24, s[18:19]")
        for c in range(PFUN):
            A("global_load_dword v26, v24, s[14:15]\nglobal_load_dword v26, v24, s[12:13]")
            if c < PFUN-1: add64(A, 12, 12, 128*12288); add64(A, 14, 14, 128*12288)
        A(f"s_mov_b64 exec, -1\ns_waitcnt vmcnt({PFU-1})")
        rt_stamp(A, 3)
    if UWE:
        waitall(A, DBG, EXIT, 2, s_slow=51)
    u_load_w(A, 32, W, 0, 12, 4)
    rt_stamp(A, 2)
    A(f"v_lshlrev_b32 v2, 4, v0\ns_lshl_b32 s12, s{W}, 2\ns_add_u32 s30, s30, s12")
    if not UWE: waitall(A, DBG, EXIT, 2, s_slow=51)
    A("s_cmp_lg_u32 s51, 0\ns_cselect_b32 s51, 2, 1")
    def ust(A, k):
        if STAMP & 0x100:
            l = A.newlabel('us'); A(f"s_cmp_lg_u32 s16, {k//4}\ns_cbranch_scc1 {l}"); rt_stamp(A, 8+k); A(f"{l}:")
    u_loop2(A, 'u', 23, 24, 30, 3, wait_flags, put_flag, srd, EXIT, ust)
    rt_stamp(A, 4)
    A(f"mega_sp:\ns_lshr_b32 s40, s{TK}, 3")
    load_wout(A, 40, 12, 4)
    A(f"""s_cmp_ge_u32 s{TK}, 24
    s_cbranch_scc1 mega_out
    s_mov_b32 s41, 0
    s_mov_b32 s52, 1
    s_branch mega_out3
    mega_ret1:
    s_mul_hi_u32 s30, s{TK}, {-(-(1<<32)//6)}
    s_mul_i32 s31, s30, 6
    s_sub_u32 s31, s{TK}, s31
    s_sub_u32 s32, s{X}, 4
    s_lshl_b32 s33, s32, 2
    s_add_u32 s30, s30, s33
    s_mul_i32 s32, s32, 24
    s_add_u32 s32, s32, s{TK}
    s_lshl_b32 s32, s32, 7
    s_add_u32 s32, s32, {F_GY}""")
    rt_stamp(A, 5)
    spatial2(A, 30, 31, F_WIN, 32, EXIT, stamp=lambda A: rt_stamp(A, 6))
    A(f"""s_mov_b32 s41, s51
    s_mov_b32 s52, 2
    s_branch mega_out3
    mega_out:
    s_mov_b32 s41, 0
    mega_out2:
    s_mov_b32 s52, 0
    mega_out3:
    s_xor_b32 s40, s{X}, 4
    s_lshl_b32 s40, s40, 3
    s_and_b32 s12, s{TK}, 7
    s_add_u32 s40, s40, s12
    s_lshl_b32 s40, s40, 2
    s_lshr_b32 s12, s{TK}, 3
    s_add_u32 s40, s40, s12""")
    out_task(A, 40, F_GY, EXIT, 'mega_end', OUTF, 41, F_WIN, 52)
    A("mega_end:\ns_cmp_eq_u32 s52, 1\ns_cbranch_scc1 mega_ret1")
    if STAMP: A("s_waitcnt vmcnt(0)")
    rt_stamp(A, 7)
    if STAMP & 0x200:
        def dump():
            for i in range(8, 15):
                A(f"s_lshl_b32 s12, s{X}, 5\ns_add_u32 s12, s12, s{TK}\ns_lshl_b32 s12, s12, 6\ns_add_u32 s12, s12, {WS_STAT + 65536 + 4*i}")
                put_flag(A, 12, 60+2*i, 15)
        wave0(A, dump)
    if HSTAMP: A("s_waitcnt vmcnt(0)"); hstamp(A, 12, 16); hstamp(A, 13, 16, 4)
    A(f"{EXIT}:\ns_endpgm")
    A(f"mega_wo:\ns_waitcnt vmcnt(0)\ns_barrier\ns_lshr_b32 s40, s{TK}, 3")
    load_wout(A, 40, 12, 4)
    A("s_branch mega_out")
    A(f"""mega_ln2:
    s_mul_i32 s24, s{X}, {4 if PFW else 6}
    s_add_u32 s24, s24, s{TK}
    s_sub_u32 s24, s24, 26
    s_lshl_b32 s30, s24, 7
    s_add_u32 s30, s30, {F_LN}
    s_cmp_ge_u32 s{TK}, 30
    s_cbranch_scc1 mega_ln2j
    s_lshl_b32 s12, s{X}, 2
    s_add_u32 s12, s12, s{TK}
    s_sub_u32 s12, s12, 26
    s_lshl_b32 s12, s12, 2
    s_add_u32 s12, s12, s{W}
    s_lshl_b32 s13, s12, 10
    s_add_u32 s13, s13, {WS_FLAG}
    s_lshl_b32 s14, s12, 11
    s_add_u32 s14, s14, {WS_SX}
    s_and_b32 s15, s12, 7
    s_min_u32 s15, s15, 5
    s_lshl_b32 s15, s15, 10
    s_bfe_u32 s16, s12, 0x10003
    s_lshl_b32 s16, s16, 13
    s_add_u32 s15, s15, s16
    s_bfe_u32 s16, s12, 0x10004
    s_lshl_b32 s16, s16, 15
    s_add_u32 s12, s15, s16
    s_add_u32 s12, s12, {F_X}
    v_lshlrev_b32 v2, 4, v0""")
    for i in range(4): A(f"v_mov_b32 v{16+i}, 0")
    for i in range(4): A(f"v_mov_b32 v{20+i}, -1")
    A(bs(4, 16, 2, 's13', 0, 'sc1')); A(bs(4, 16, 2, 's12', 0, 'sc1'))
    A(bs(4, 20, 2, 's14', 0, 'sc1')); A(bs(4, 20, 2, 's14', 1024, 'sc1'))
    checkin(A, DBG)
    A("mega_ln2j:")
    pf_ab(A)
    rt_stamp(A, 2)
    A(f"s_lshr_b32 s40, s{TK}, 3\nv_lshlrev_b32 v2, 4, v0")
    waitall(A, DBG, EXIT, 2, s_pol=31)
    if PFW: A(f"s_cmp_ge_u32 s{TK}, 30\ns_cbranch_scc1 mega_pfw")
    wsp_pull(A)
    A(f'v_mov_b32 v4, {F_U}\ns_mov_b32 s12, {HWL}')
    wait_flags(A, 4, 5, 12, EXIT, sleep=20)
    load_wout(A, 40, 12, 4)
    A("s_add_u32 s30, s30, s31\ns_barrier")
    ln2_loop(A, 24, 16 if PFW else 24, F_X, 30, 31, EXIT)
    rt_stamp(A, 4)
    A("s_branch mega_out")
    if PFW:
        A(f"""mega_pfw:
        s_lshl_b32 s20, s{X}, 1
        s_add_u32 s20, s20, s{TK}
        s_sub_u32 s20, s20, 30
        s_lshl_b32 s20, s20, 2
        s_add_u32 s20, s20, s{W}
        s_mul_i32 s21, s20, 40960
        s_add_u32 s21, s21, {WS_UF + 2*SEG_U}
        s_mul_i32 s22, s20, 12288
        s_add_u32 s23, s22, {WS_QF + 2*SEG_QKV}
        s_add_u32 s22, s22, {WS_KF + 2*SEG_QKV}
        v_lshlrev_b32 v3, 7, v0
        s_lshl_b32 s12, s20, 7
        s_add_u32 s12, s12, {F_U}
        v_and_b32 v4, 3, v0
        v_lshlrev_b32 v4, 2, v4
        v_add_u32 v4, s12, v4
        s_mul_i32 s12, s{X}, 1280
        s_add_u32 s12, s12, {F_X}
        s_add_u32 s12, s12, s31
        v_mov_b32 v5, s12
        s_mov_b32 s24, 2
        pfw_loop:
        s_sub_u32 s12, s24, {PFLEAD}
        s_max_i32 s12, s12, 0""")
        wait_flags(A, 5, 6, 12, EXIT, sleep=3)
        A("s_add_u32 s12, s24, 1")
        wait_flags(A, 4, 6, 12, EXIT, sleep=3)
        for i in range(5):
            A(f"buffer_load_dword v7, v3, {srd}, s21 offen\ns_add_u32 s21, s21, {8192 if i < 4 else SEG_U - 4*8192}\ns_waitcnt vmcnt({PFOUT})")
        if PFW > 1:
            A("s_mov_b32 exec_hi, 0xffff")
            for sp in (22, 23):
                for i in range(2):
                    A(f"buffer_load_dword v7, v3, {srd}, s{sp} offen\ns_add_u32 s{sp}, s{sp}, {6144 if i < 1 else SEG_QKV - 6144}\ns_waitcnt vmcnt({PFOUT})")
            A("s_mov_b32 exec_hi, -1")
        A(f"s_add_u32 s24, s24, 1\ns_cmp_lt_u32 s24, {NSEG}\ns_cbranch_scc1 pfw_loop\ns_branch mega_wo")
    A(f"""mega_win:
    s_sub_u32 s34, s{X}, 4
    s_sub_u32 s35, s{TK}, 26
    s_mul_i32 s22, s34, 6
    s_add_u32 s22, s22, s35
    s_lshl_b32 s30, s22, 7
    s_add_u32 s30, s30, {F_WIN}
    s_lshr_b32 s36, s34, 1
    s_and_b32 s34, s34, 1""")
    if VFIRST: pf_v(A, 22, 6, 0, dov=False)
    else: pf_v(A, 22)
    rt_stamp(A, 2)
    A(f"""s_load_dwordx2 s[32:33], s[0:1], {KA_WIN}
    s_lshr_b32 s40, s{TK}, 3
    v_lshlrev_b32 v2, 4, v0""")
    waitall(A, DBG, EXIT, 2, s_pol=31, s_slow=37)
    wsp_pull(A)
    A(f'v_mov_b32 v4, {F_U}\ns_mov_b32 s12, {HWW}')
    wait_flags(A, 4, 5, 12, EXIT, sleep=20)
    load_wout(A, 40, 12, 4)
    A(f"""s_mul_i32 s25, s34, 6
    s_add_u32 s25, s25, s35
    s_lshl_b32 s25, s25, 2
    s_add_u32 s25, s25, s{W}
    s_lshl_b32 s25, s25, 6""")
    add64(A, 32, 32, 's25')
    win_load(A, 32, 12, 4)
    A("s_cmp_lg_u32 s34, 0\ns_cbranch_scc1 mega_win2")
    win_loop(A, 'win1', False, 36, 35, F_LN, 30, 31, EXIT, 4 if PFW else 6)
    rt_stamp(A, 4)
    A("s_mov_b32 s41, 3\ns_branch mega_out2\nmega_win2:")
    win_loop(A, 'win2', True, 36, 35, F_LN, 30, 31, EXIT, 4 if PFW else 6)
    rt_stamp(A, 4)
    A("s_mov_b32 s41, 3\ns_branch mega_out2")
    hooks = {'next_ab': 'mega_wo', 'next_r': 'mega_wo'}
    hooks['r_pre'] = pf_ab
    hooks['rts'] = lambda A, i: rt_stamp(A, i, R.MOP)
    if STAMP:
        def stamp(A, i):
            if i == 0:
                l = A.newlabel('st')
                A(f"s_memtime s[86:87]\ns_memrealtime s[88:89]\ns_waitcnt lgkmcnt(0)\ns_cmp_lg_u32 s{R.S_STEP}, {int(os.environ.get('SSTEP','21'))}\ns_cbranch_scc1 {l}")
                for k in range(1, 8): A(f"s_sub_u32 s{92+k}, s{72+2*k}, s72")
                A(f"s_mov_b32 s92, s73\ns_mov_b32 s100, s88")
                A(f"{l}:\ns_mov_b32 s72, s86\ns_mov_b32 s73, s88")
                l = A.newlabel('st')
                A(f"s_cmp_lg_u32 s{R.S_STEP}, 0\ns_cbranch_scc1 {l}\ns_sub_u32 s101, s88, s71\n{l}:")
            elif (STAMP >> i) & 1:
                A(f"s_memtime s[{72+2*i}:{73+2*i}]\ns_waitcnt lgkmcnt(0)")
        hooks['stamp'] = stamp
        def final(A):
            A(f"""s_lshl_b32 s14, s{X}, 5
            s_add_u32 s14, s14, s{TK}
            s_lshl_b32 s14, s14, 2
            s_add_u32 s14, s14, s{W}
            s_lshl_b32 s14, s14, 6
            s_add_u32 s14, s14, {WS_STAT}
            s_memrealtime s[86:87]
            s_waitcnt lgkmcnt(0)
            s_sub_u32 s15, s86, s71
            v_mov_b32 v17, 0""")
            for i, r in enumerate(list(range(92, 102)) + [15, R.S_TO]):
                A(f"v_mov_b32 v16, s{r}\nbuffer_store_dword v16, v17, s[4:7], s14 offen offset:{4*i}")
            rt_stamp(A, 4)
        hooks['final'] = final
        def steplog(A):
            l = A.newlabel('sl')
            A(f"""s_cmp_lg_u32 s{R.S_H}, 0
            s_cbranch_scc1 {l}
            s_memrealtime s[84:85]
            s_lshl_b32 s{R.S_T}, s{R.S_STEP}, 2
            s_add_u32 s{R.S_T}, s{R.S_T}, {WS_STAT + 131072}
            s_waitcnt lgkmcnt(0)""")
            put_flag(A, R.S_T, 84, R.MOP)
            A(f"{l}:")
        hooks['steplog'] = steplog
    if HSTAMP:
        def steplog(A):
            for st, wd in ((0, 6), (6, 7), (30, 8), (50, 9), (63, 10)):
                l = A.newlabel('hl'); A(f"s_cmp_lg_u32 s{R.S_STEP}, {st}\ns_cbranch_scc1 {l}"); hstamp(A, wd, R.MOP); A(f"{l}:")
        hooks['steplog'] = steplog
        hooks['rts'] = lambda A, i: hstamp(A, 5, R.MOP)
    def wait_in(A, mode):
        t = R.MOP + 24
        if mode == 'first': A(f"s_mov_b32 s{R.S_T}, 1")
        else: A(f"s_add_u32 s{R.S_T}, s{R.S_STEP}, 2\ns_min_u32 s{R.S_T}, s{R.S_T}, {NSEG}")
        A(f"""s_mul_i32 s{R.S_T+1}, s{R.S_H}, 192
        v_bfe_u32 v{t}, v{R.V_LANE16}, 4, 1
        v_mul_u32_u24 v{t}, 191, v{t}
        v_add_u32 v{t}, s{R.S_T+1}, v{t}
        v_lshrrev_b32 v{t}, 8, v{t}
        v_bfe_u32 v{t+1}, v{R.V_LANE16}, 5, 1
        v_mad_u32_u24 v{t}, v{t+1}, 24, v{t}
        v_lshlrev_b32 v{t}, 7, v{t}
        v_add_u32 v{t}, {F_QKV}, v{t}""")
        if mode == 'peek':
            A(f"""buffer_load_dword v{t+1}, v{t}, {srd}, 0 offen sc1
            s_waitcnt vmcnt(0)
            v_cmp_gt_u32 {sr(R.S_EVEN,2)}, s{R.S_T}, v{t+1}""")
        else: wait_flags(A, t, t+1, R.S_T, EXIT)
    hooks['wait_in'] = wait_in
    def b_init(A):
        A(f"""s_mul_i32 s{R.S_C5}, s{X}, 1280
        s_add_u32 s{R.S_C5}, s{R.S_C5}, {F_X}
        s_add_u32 s{R.S_C5}, s{R.S_C5}, s{R.S_POL}
        v_lshlrev_b32 v{R.V_JUNK}, 6, v0""")
    def b_flag(A):
        l = A.newlabel('bf')
        A(f"""s_lshl_b32 s{R.S_T}, s{R.S_HL}, 2
        s_add_u32 s{R.S_T}, s{R.S_T}, s{W}
        s_cmp_lg_u32 s{R.S_T}, 31
        s_cbranch_scc1 {l}
        s_sub_u32 s{R.S_T}, s{R.S_STEP}, 3
        s_cmp_ge_u32 s{R.S_T}, {R.BFLAG - 3}
        s_cbranch_scc1 {l}
        s_add_u32 s{R.S_T}, s{R.S_T}, 1
        v_mov_b32 v{R.MOP+32}, s{R.S_T}
        s_mov_b64 exec, 0xfffff""")
        if int(os.environ.get('BFD', '0')): A(f"s_sleep {os.environ['BFD']}")
        A(f"""buffer_store_dword v{R.MOP+32}, v{R.V_JUNK}, {srd}, s{R.S_C5} offen sc1
        s_mov_b64 exec, -1
        {l}:""")
    hooks['b_init'] = b_init; hooks['b_flag'] = b_flag
    def wait_u(A, k):
        if k == 0:
            rt_stamp(A, 3, 24)
            A(f"""s_lshl_b32 s{R.S_T}, s{R.S_HL}, 1
            s_add_u32 s{R.S_T}, s{R.S_T}, s{W}
            s_mul_hi_u32 s{R.S_T}, s{R.S_T}, {-(-(1<<32)//5)}
            s_lshl_b32 s{R.S_T}, s{R.S_T}, 2
            s_lshl_b32 s{R.S_T+1}, s{X}, 10
            s_add_u32 s{R.S_T}, s{R.S_T}, s{R.S_T+1}
            s_add_u32 s{R.S_T}, s{R.S_T}, {F_U}
            v_and_b32 v10, 7, v0
            v_lshlrev_b32 v10, 7, v10
            v_add_u32 v10, s{R.S_T}, v10""")
        A(f"s_add_u32 s{R.S_T}, s{R.S_STEP}, {k+1}\ns_min_u32 s{R.S_T}, s{R.S_T}, {NSEG}")
        wait_flags(A, 10, 11, R.S_T, EXIT)
        if k == 0: rt_stamp(A, 5, 24)
    hooks['wait_u'] = wait_u
    hooks['x_flag'] = lambda A: put_flag(A, R.S_O4, R.S_STEP, 12)
    hooks['x_flag2'] = lambda A, sv: put_flag(A, R.S_O4, sv, 12)
    hooks['x_init'] = lambda A: A(f"s_add_u32 s{R.S_O4}, s{R.S_O4}, s{R.S_POL}")
    def cached_u(A):
        l = A.newlabel('cu')
        A(f"s_add_u32 s{R.S_T}, s{R.S_STEP}, 1\nv_cmp_gt_u32 vcc, s{R.S_T}, v11\ns_cbranch_vccz {l}")
        wait_flags(A, 10, 11, R.S_T, EXIT, sleep=1)
        A(f"{l}:")
    hooks['cached_u'] = cached_u
    PEEKM = int(os.environ.get('PEEKM', '2'))
    def peek_u(A):
        if PEEKM:
            l = A.newlabel('pk')
            A(f"s_add_u32 s{R.S_T}, s{R.S_STEP}, {1+PEEKM}\ns_min_u32 s{R.S_T}, s{R.S_T}, {NSEG}\nv_cmp_gt_u32 vcc, s{R.S_T}, v11\ns_cbranch_vccz {l}")
        A(f"buffer_load_dword v11, v10, {srd}, 0 offen sc1")
        if PEEKM: A(f"{l}:")
    hooks['peek_u'] = peek_u
    A("mega_A:")
    for _ in range(AD): A("s_sleep 36")
    R.role_A(A, EXIT, DBG, hooks)
    A("mega_B:")
    for _ in range(BD): A("s_sleep 36")
    R.role_B(A, EXIT, DBG, hooks)
    A(f"""mega_R:
    s_sub_u32 s{R.S_HL}, s{TK}, 16
    s_mul_i32 s{R.S_O4}, s{X}, 10
    s_add_u32 s{R.S_O4}, s{R.S_O4}, s{R.S_HL}
    s_lshl_b32 s{R.S_O4}, s{R.S_O4}, 7
    s_add_u32 s{R.S_O4}, s{R.S_O4}, {F_X}""")
    A(f"s_and_b32 s12, s{W}, 1\ns_lshl_b32 s12, s12, 6\ns_add_u32 s{R.S_O4}, s{R.S_O4}, s12")
    R.role_R(A, EXIT, DBG, hooks)
    A("mega_code_end:")

def build():
    ref = open('sequential_preLN__memory_aug_recurrent_mem_tr__mixer_gmlp__prompt.s.ref').read().split('\n')
    hdr = '\n'.join(l for l in ref if l.startswith(';') and '@launch' not in l) + '\n'
    if os.environ.get('LIST', '1') == '1': hdr += f"; @launch kernel={KNAME} grid=(256,1,1) block=(256,1,1) lds=163840\n"
    else: hdr += "; @launch grid=(256,1,1) block=(256,1,1) lds=163840\n"
    A = Asm()
    A(f'.amdgcn_target "amdgcn-amd-amdhsa--gfx950"\n.text\n.globl {KNAME}\n.type {KNAME},@function')
    k_mega(A)
    return hdr + A.text() + kdesc(KNAME)

if __name__ == '__main__':
    open(sys.argv[1], 'w').write(build())
```
